```python
import torch

def _softmax(x, axis=-1):
    return torch.softmax(x, dim=axis)
def _gelu(x):
    return torch.nn.functional.gelu(x, approximate="tanh")
def _silu(x):
    return torch.nn.functional.silu(x)
def _sigmoid(x):
    return torch.sigmoid(x)
def _layernorm(x, axis=-1, eps=1e-5):
    m = x.mean(dim=axis, keepdim=True)
    v = x.var(dim=axis, keepdim=True, unbiased=False)
    return (x - m) / torch.sqrt(v + eps)
def _scatter_add(tgt, idx, src, axis=0):
    return tgt.clone().index_add_(axis, idx, src)
def _segment_sum(src, seg, n):
    out = torch.zeros((n,) + src.shape[1:], dtype=src.dtype)
    return out.index_add_(0, seg, src)
def _pad(x, pw):
    flat = tuple(v for pair in reversed(pw) for v in pair)
    return torch.nn.functional.pad(x, flat)

kernel_name = 'concat_heads__compressed_kv_cla__linear_kernel_hedgehog__prompt'

def setup_inputs():

    _w = (lambda a: (lambda t: t.to(torch.bfloat16) if t.is_floating_point() else t)(torch.as_tensor(a)))
    def _A_setup():
        B, H, Sq, Sk, D, M = 1, 32, 2048, 2048, 128, 640
        Dc = 4 * D
        return {
            "x": _w((lambda *s: torch.randn(*s, dtype=torch.bfloat16) * 0.8)(B, Sq, M)),
            "c_kv": _w((lambda *s: torch.randn(*s, dtype=torch.bfloat16) * 0.4)(B, Sk, Dc)),
            "w_q": _w((lambda *s: torch.randn(*s, dtype=torch.bfloat16) * 6.4)(M, H, D) * (M ** -0.5)),
            "w_uk": _w((lambda *s: torch.randn(*s, dtype=torch.bfloat16) * 6.4)(Dc, H, D) * (Dc ** -0.5)),
            "w_uv": _w((lambda *s: torch.randn(*s, dtype=torch.bfloat16) * 0.4)(Dc, H, D) * (Dc ** -0.5)),
            "w_o": _w((lambda *s: torch.randn(*s, dtype=torch.bfloat16) * 0.4)(H, D, M) * ((H * D) ** -0.5)),
        }
    _A_in = _A_setup()

    def _B_setup():
        B, S, D, H = 1, 2048, 640, 32
        Dh = D // H
        return {
            "x": _w((lambda *s: torch.randn(*s, dtype=torch.bfloat16) * 0.4)(B, S, D)),
            "wqkv": _w((lambda *s: torch.randn(*s, dtype=torch.bfloat16) * 0.4)(D, 3 * D)),
            "w_phi": _w((lambda *s: torch.randn(*s, dtype=torch.bfloat16) * 0.4)(H, Dh, Dh) * (Dh ** -0.5)),
            "wo": _w((lambda *s: torch.randn(*s, dtype=torch.bfloat16) * 0.05)(D, D)),
        }
    _B_in = _B_setup()

    return {
        "A_x": _A_in["x"],
        "A_c_kv": _A_in["c_kv"],
        "A_w_q": _A_in["w_q"],
        "A_w_uk": _A_in["w_uk"],
        "A_w_uv": _A_in["w_uv"],
        "A_w_o": _A_in["w_o"],
        "B_x": _B_in["x"],
        "B_wqkv": _B_in["wqkv"],
        "B_w_phi": _B_in["w_phi"],
        "B_wo": _B_in["wo"],
    }

def reference(A_x, A_c_kv, A_w_q, A_w_uk, A_w_uv, A_w_o, B_x, B_wqkv, B_w_phi, B_wo):
    def _A_ref(x, c_kv, w_q, w_uk, w_uv, w_o):
        B, Sq, M = x.shape[0], x.shape[1], x.shape[2]
        Sk = c_kv.shape[1]
        H, D = w_q.shape[1], w_q.shape[2]
        q = torch.einsum("bqm,mhd->bhqd", x, w_q)
        k = torch.einsum("bkc,chd->bhkd", c_kv, w_uk)
        v = torch.einsum("bkc,chd->bhkd", c_kv, w_uv)
        scores = torch.einsum("bhqd,bhkd->bhqk", q, k) * (D ** -0.5)
        off = Sk - Sq
        qi = torch.arange(Sq)[:, None]
        kj = torch.arange(Sk)[None, :]
        cmask = kj <= (qi + off)
        scores = torch.where(cmask[None, None], scores, -1e9)
        p = _softmax(scores, axis=-1)
        ctx = torch.einsum("bhqk,bhkd->bhqd", p, v)
        return torch.einsum("bhqd,hdm->bqm", ctx, w_o)

    def _B_ref(x, wqkv, w_phi, wo):
        B, S, D = x.shape
        H = 32; Dh = D // H
        qkv = (lambda x, *d: x.permute(*d))((x @ wqkv).reshape(B, S, 3, H, Dh), 2, 0, 3, 1, 4)
        q, k, v = qkv[0], qkv[1], qkv[2]
        pq = torch.einsum("bhsd,hdf->bhsf", q, w_phi)
        pk = torch.einsum("bhsd,hdf->bhsf", k, w_phi)
        phi_q = torch.concatenate([_softmax(pq, axis=-1), _softmax(-pq, axis=-1)], axis=-1)
        phi_k = torch.concatenate([_softmax(pk, axis=-1), _softmax(-pk, axis=-1)], axis=-1)
        kv = torch.einsum("bhsf,bhsd->bhfd", phi_k, v)
        z  = torch.einsum("bhsf->bhf", phi_k)
        num = torch.einsum("bhqf,bhfd->bhqd", phi_q, kv)
        den = torch.einsum("bhqf,bhf->bhq", phi_q, z)[..., None] + 1e-6
        o = num / den
        return (lambda x, *d: x.permute(*d))(o, 0, 2, 1, 3).reshape(B, S, D) @ wo

    a = _A_ref(A_x, A_c_kv, A_w_q, A_w_uk, A_w_uv, A_w_o)
    b = _B_ref(B_x, B_wqkv, B_w_phi, B_wo)
    return torch.concatenate([a, b], axis=-1)
```

```python
import re

TRANS = ("v_exp_f32", "v_log_f32", "v_rcp_f32", "v_rsq_f32", "v_sqrt_f32", "v_sin_f32", "v_cos_f32")
_REG = re.compile(r"^(-|abs\()?([sva])(?:(\d+)|\[(\d+):(\d+)\])\)?$")


def regs_of(tok):
    tok = tok.strip()
    if tok in ("vcc", "exec", "m0", "scc"):
        return [tok]
    if tok in ("vcc_lo", "vcc_hi"):
        return ["vcc"]
    if tok in ("exec_lo", "exec_hi"):
        return ["exec"]
    m = _REG.match(tok)
    if not m:
        return []
    f = m.group(2)
    if m.group(3) is not None:
        return [(f, int(m.group(3)))]
    return [(f, i) for i in range(int(m.group(4)), int(m.group(5)) + 1)]


def split_ops(s):
    out, cur, d = [], "", 0
    for ch in s:
        if ch in "[(":
            d += 1
        if ch in "])":
            d -= 1
        if ch == "," and d == 0:
            out.append(cur.strip())
            cur = ""
        else:
            cur += ch
    if cur.strip():
        out.append(cur.strip())
    return out


class I:
    __slots__ = ("text", "mn", "kind", "rd", "wr", "ops", "mods", "label", "target", "passes",
                 "srcc", "srcab", "data", "cnt", "auto", "note", "xrd")

    def __init__(self, text, note=None, xrd=()):
        self.text = text.strip()
        self.note = note
        self.label = None
        self.target = None
        self.passes = 0
        self.srcc = []
        self.srcab = []
        self.data = []
        self.cnt = None
        self.auto = False
        self.rd, self.wr = set(), set()
        self.mods = []
        self.ops = []
        if self.text.endswith(":"):
            self.kind = "label"
            self.label = self.text[:-1]
            self.mn = ""
            return
        if self.text.startswith(".") or self.text.startswith(";"):
            self.kind = "dir"
            self.mn = ""
            return
        p = self.text.split(None, 1)
        self.mn = mn = p[0]
        rest = p[1] if len(p) > 1 else ""
        ops = split_ops(rest)
        if ops:
            w = ops[-1].split()
            ops[-1] = w[0]
            self.mods = w[1:]
        self.ops = ops
        R = [regs_of(o) for o in ops]
        flat = lambda xs: [r for x in xs for r in x]
        rd, wr = [], []
        if mn.startswith("v_mfma"):
            self.kind = "mfma"
            self.passes = 8 if "32x32x16" in mn else 4
            wr = R[0]
            rd = flat(R[1:])
            self.srcab = R[1] + R[2]
            self.srcc = R[3]
        elif mn.startswith("v_cmp"):
            self.kind = "valu"
            wr = R[0]
            rd = flat(R[1:])
        elif mn.startswith("v_permlane32_swap") or mn.startswith("v_permlane16_swap") or mn == "v_swap_b32":
            self.kind = "valu"
            wr = flat(R)
            rd = flat(R)
        elif mn in ("v_add_co_u32", "v_sub_co_u32", "v_addc_co_u32", "v_subb_co_u32"):
            self.kind = "valu"
            wr = R[0] + R[1]
            rd = flat(R[2:])
        elif mn.startswith("v_"):
            self.kind = "trans" if mn in TRANS else "valu"
            wr = R[0] if R else []
            rd = flat(R[1:])
            if mn.startswith("v_fmac") or mn.startswith("v_writelane") or mn.startswith("v_dot2c"):
                rd += R[0]
        elif mn.startswith("ds_read") or mn.startswith("ds_bpermute") or mn.startswith("ds_swizzle") or mn.startswith("ds_permute"):
            self.kind = "ds"
            self.cnt = "lgkm"
            wr = R[0]
            rd = flat(R[1:])
        elif mn.startswith("ds_"):
            self.kind = "ds"
            self.cnt = "lgkm"
            rd = flat(R)
        elif mn.startswith("buffer_load") or mn.startswith("global_load"):
            self.kind = "vmem"
            self.cnt = "vm"
            if "lds" in self.mods:
                rd = flat(R) + ["m0"]
                self.kind = "dma"
            else:
                wr = R[0]
                rd = flat(R[1:])
                if "d16" in mn:
                    rd += R[0]
        elif mn.startswith("buffer_store"):
            self.kind = "vmem"
            self.cnt = "vm"
            rd = flat(R)
            self.data = R[0]
        elif mn.startswith("global_store"):
            self.kind = "vmem"
            self.cnt = "vm"
            rd = flat(R)
            self.data = R[1]
        elif mn.startswith("buffer_atomic"):
            self.kind = "vmem"
            self.cnt = "vm"
            rd = flat(R)
            if "sc0" in self.mods:
                wr = R[0]
        elif mn.startswith("buffer_wbl2") or mn.startswith("buffer_inv"):
            self.kind = "vmem"
            self.cnt = "vm"
        elif mn.startswith("s_load") or mn.startswith("s_buffer_load") or mn in ("s_memtime", "s_memrealtime"):
            self.kind = "smem"
            self.cnt = "smem"
            wr = R[0]
            rd = flat(R[1:])
        elif mn in ("s_branch",) or mn.startswith("s_cbranch"):
            self.kind = "branch"
            self.target = ops[0]
            if "scc" in mn:
                rd = ["scc"]
            elif "vcc" in mn:
                rd = ["vcc"]
            elif "exec" in mn:
                rd = ["exec"]
        elif mn == "s_call_b64":
            self.kind = "call"
            self.target = ops[1]
            wr = R[0]
        elif mn == "s_setpc_b64":
            self.kind = "ret"
            rd = R[0]
        elif mn == "s_endpgm":
            self.kind = "end"
        elif mn == "s_waitcnt":
            self.kind = "wait"
        elif mn == "s_nop":
            self.kind = "nop"
        elif mn in ("s_barrier", "s_sleep", "s_setprio"):
            self.kind = "salu"
        elif mn.startswith("s_cmp") or mn.startswith("s_bitcmp"):
            self.kind = "salu"
            rd = flat(R)
            wr = ["scc"]
        elif mn.startswith("s_"):
            self.kind = "salu"
            wr = list(R[0]) if R else []
            rd = flat(R[1:])
            if "saveexec" in mn:
                wr += ["exec"]
                rd += ["exec"]
            if mn.startswith("s_cselect") or mn.startswith("s_addc") or mn.startswith("s_subb"):
                rd += ["scc"]
            if mn in ("s_addk_i32", "s_mulk_i32"):
                rd += R[0]
            if not (mn.startswith("s_mov") or mn.startswith("s_cselect") or mn.startswith("s_mul") or mn.startswith("s_getreg") or mn.startswith("s_getpc")):
                wr += ["scc"]
        else:
            raise ValueError("unknown instruction: " + text)
        self.rd, self.wr = set(rd) | set(xrd), set(wr)

    def states(self):
        if self.kind in ("label", "dir"):
            return 0
        if self.kind == "nop":
            return int(self.ops[0], 0) + 1
        return 1


def is_valu(i):
    return i.kind in ("valu", "trans")


def vec(rs):
    return {r for r in rs if isinstance(r, tuple) and r[0] in "va"}


def sca(rs):
    return {r for r in rs if r == "vcc" or (isinstance(r, tuple) and r[0] == "s")}


def need_states(p, c):
    n = 0
    if is_valu(p):
        pw = vec(p.wr)
        if c.kind == "mfma" and pw & c.rd:
            n = max(n, 2)
        if p.kind == "trans" and c.kind in ("valu", "mfma", "vmem", "ds", "dma") and pw & c.rd:
            n = max(n, 1)
        if (c.mn.startswith("v_readfirstlane") or c.mn.startswith("v_readlane")) and pw & c.rd:
            n = max(n, 1)
        if c.mn.startswith("v_permlane") and pw & c.rd:
            n = max(n, 2)
        if is_valu(c) and any(m.startswith("row_") or m.startswith("quad_perm") or m.startswith("wave_") for m in c.mods) and pw & c.rd:
            n = max(n, 2)
        ps = sca(p.wr)
        if ps & c.rd:
            if is_valu(c):
                n = max(n, 4 if (c.mn.startswith("v_readlane") or c.mn.startswith("v_writelane")) else 2)
            if c.kind in ("vmem", "dma"):
                n = max(n, 5)
            if c.kind in ("salu", "branch", "smem"):
                n = max(n, 1)
        if "exec" in p.wr:
            n = max(n, 5)
    if p.kind == "mfma":
        big = p.passes == 8
        D = p.wr
        if c.kind == "mfma":
            if D & set(c.srcab):
                n = max(n, 12 if big else 8)
            cc = set(c.srcc)
            if D & cc and not (cc == D and c.passes == p.passes):
                n = max(n, 10 if big else 6)
            if D & c.wr and not (c.wr == D and cc == D):
                n = max(n, 10 if big else 6) if c.wr != D else n
        elif is_valu(c) or c.kind in ("vmem", "ds", "dma"):
            if D & (c.rd | c.wr):
                n = max(n, 12 if big else 8)
        if is_valu(c) and set(p.srcc) & c.wr:
            n = max(n, 7 if big else 3)
    if p.kind == "salu" and "m0" in p.wr and c.kind == "dma":
        n = max(n, 1)
    if p.kind == "vmem" and len(p.data) >= 3 and set(p.data) & c.wr:
        n = max(n, 2 if is_valu(c) else 1)
    return n


class Prog:
    def __init__(self):
        self.ins = []
        self._lab = 0

    def __call__(self, text, **kw):
        for line in text.split("\n"):
            line = line.split(";")[0].strip() if not line.strip().startswith(";") else line.strip()
            if line:
                self.ins.append(I(line, **kw))

    def add(self, items):
        for x in items:
            if isinstance(x, I):
                self.ins.append(x)
            elif isinstance(x, (list, tuple)):
                self.add(x)
            else:
                self(x)

    def newlabel(self, base="L"):
        self._lab += 1
        return "%s_%d" % (base, self._lab)

    def _cfg(self):
        ins = self.ins
        lab = {i.label: k for k, i in enumerate(ins) if i.kind == "label"}
        succ = [[] for _ in ins]
        calls = {}
        for k, i in enumerate(ins):
            if i.kind == "call":
                calls.setdefault(i.target, []).append(k + 1)
        cur = None
        for k, i in enumerate(ins):
            if i.kind == "label" and i.label in calls:
                cur = i.label
            if i.kind == "end":
                continue
            if i.kind == "ret":
                succ[k] = list(calls.get(cur, []))
                continue
            if i.kind == "call":
                succ[k] = [lab[i.target]]
                continue
            if i.kind == "branch":
                succ[k].append(lab[i.target])
                if i.mn == "s_branch":
                    continue
            if k + 1 < len(ins):
                succ[k].append(k + 1)
        pred = [[] for _ in ins]
        for k, s in enumerate(succ):
            for t in s:
                pred[t].append(k)
        return succ, pred

    @staticmethod
    def _parse_wait(i):
        vm = re.search(r"vmcnt\((\d+)\)", i.text)
        lg = re.search(r"lgkmcnt\((\d+)\)", i.text)
        return (int(vm.group(1)) if vm else None, int(lg.group(1)) if lg else None)

    def insert_waits(self):
        while True:
            succ, pred = self._cfg()
            ins = self.ins
            n = len(ins)
            IN = [None] * n
            entries = [k for k in range(n) if not pred[k]]
            work = list(entries)
            for k in entries:
                IN[k] = {}
            need = {}

            def want(i, st):
                vm = lg = None
                for r in (i.rd | i.wr):
                    e = st.get(r)
                    if e is None:
                        continue
                    if e[0] == "vm":
                        if i.cnt == "vm" and r in i.wr and r not in i.rd:
                            continue
                        vm = e[1] if vm is None else min(vm, e[1])
                    elif e[0] == "lgkm":
                        if i.cnt == "lgkm" and r in i.wr and r not in i.rd:
                            continue
                        lg = e[1] if lg is None else min(lg, e[1])
                    else:
                        lg = 0
                if lg is not None and any(e[0] == "smem" for e in st.values()):
                    lg = 0
                if vm is not None:
                    vm = min(vm, 63)
                if lg is not None:
                    lg = min(lg, 15)
                return vm, lg

            def apply_wait(st, vm, lg):
                out = {}
                for r, e in st.items():
                    if e[0] == "vm" and vm is not None and e[1] >= vm:
                        continue
                    if e[0] == "lgkm" and lg is not None and e[1] >= lg:
                        continue
                    if e[0] == "smem" and lg == 0:
                        continue
                    out[r] = e
                return out

            while work:
                k = work.pop()
                i = ins[k]
                st = IN[k]
                if i.kind == "wait":
                    st = apply_wait(st, *self._parse_wait(i))
                elif i.kind not in ("label", "dir"):
                    vm, lg = want(i, st)
                    if vm is not None or lg is not None:
                        need[k] = (vm, lg)
                        st = apply_wait(st, vm, lg)
                    elif k in need:
                        del need[k]
                    if i.cnt:
                        cls = ("vm",) if i.cnt == "vm" else ("lgkm",)
                        st = {r: ((e[0], min(e[1] + 1, 99)) if e[0] in cls else e) for r, e in st.items()}
                        for r in i.wr:
                            st[r] = (i.cnt, 0)
                        if i.cnt == "smem" and not i.wr:
                            st["smem?"] = ("smem", 0)
                for t in succ[k]:
                    old = IN[t]
                    if old is None:
                        IN[t] = dict(st)
                        work.append(t)
                    else:
                        ch = False
                        for r, e in st.items():
                            o = old.get(r)
                            if o is None or (o[0] == e[0] and e[1] < o[1]):
                                old[r] = e
                                ch = True
                            elif o[0] != e[0]:
                                raise ValueError("mixed counters on %s at %s" % (r, ins[t].text))
                        if ch:
                            work.append(t)
            if not need:
                return
            out = []
            for k, i in enumerate(ins):
                if k in need:
                    vm, lg = need[k]
                    t = "s_waitcnt" + (" vmcnt(%d)" % vm if vm is not None else "") + (" lgkmcnt(%d)" % lg if lg is not None else "")
                    w = I(t)
                    w.auto = True
                    out.append(w)
                out.append(i)
            self.ins = out

    def insert_nops(self, verbose=False):
        total = 0
        while True:
            succ, pred = self._cfg()
            ins = self.ins
            add = {}
            for k, c in enumerate(ins):
                if c.kind in ("label", "dir", "nop", "wait", "end"):
                    continue
                worst = 0
                stack = [(p, 0) for p in pred[k]]
                seen = {}
                while stack:
                    p, d = stack.pop()
                    if d >= 12 or seen.get(p, 99) <= d:
                        continue
                    seen[p] = d
                    pi = ins[p]
                    if pi.kind not in ("label", "dir", "nop", "wait"):
                        worst = max(worst, need_states(pi, c) - d)
                    d2 = d + pi.states() + add.get(p, 0)
                    for q in pred[p]:
                        stack.append((q, d2))
                if worst > 0:
                    add[k] = worst
            if not add:
                return total
            out = []
            for k, i in enumerate(ins):
                if k in add:
                    w = I("s_nop %d" % (add[k] - 1))
                    w.auto = True
                    out.append(w)
                    total += 1
                    if verbose:
                        print("nop %d before %s" % (add[k], i.text))
                out.append(i)
            self.ins = out

    def finish(self, verbose=False):
        self.insert_waits()
        self.insert_nops(verbose)

    def text(self):
        out = []
        for i in self.ins:
            if i.kind == "label" or i.kind == "dir":
                out.append(i.text)
            else:
                out.append("  " + i.text + (" ; auto" if i.auto else "") + (" ; " + i.note if i.note else ""))
        return "\n".join(out) + "\n"

    def maxreg(self, f):
        m = -1
        for i in self.ins:
            for r in (i.rd | i.wr):
                if isinstance(r, tuple) and r[0] == f:
                    m = max(m, r[1])
        return m


def rr(f, lo, n=1):
    return "%s%d" % (f, lo) if n == 1 else "%s[%d:%d]" % (f, lo, lo + n - 1)


def interleave(mfmas, slots):
    out = list(slots.get(-1, []))
    for k, m in enumerate(mfmas):
        out.append(m)
        out += slots.get(k, [])
    return out


def spread(items, lo, hi, slots):
    n = len(items)
    w = hi - lo + 1
    for k, it in enumerate(items):
        s = lo + (k * w) // n
        slots.setdefault(s, [])
        if isinstance(it, (list, tuple)):
            slots[s] += list(it)
        else:
            slots[s].append(it)


def kernel_text(name, prog, sgprs=102, force_vgpr=None):
    nv = prog.maxreg("v") + 1
    na = prog.maxreg("a") + 1
    acc = max(4, (nv + 3) // 4 * 4)
    tot = acc + na if na else nv
    if force_vgpr:
        tot = max(tot, force_vgpr)
    body = ".text\n.globl %s\n.p2align 8\n.type %s,@function\n%s:\n" % (name, name, name) + prog.text()
    desc = """.section .rodata,"a"
.p2align 6
.amdhsa_kernel %s
  .amdhsa_next_free_vgpr %d
  .amdhsa_next_free_sgpr %d
  .amdhsa_accum_offset %d
  .amdhsa_group_segment_fixed_size 0
  .amdhsa_kernarg_size 104
  .amdhsa_user_sgpr_count 2
  .amdhsa_user_sgpr_kernarg_segment_ptr 1
  .amdhsa_system_sgpr_workgroup_id_x 1
.end_amdhsa_kernel
""" % (name, tot, sgprs, acc)
    return body, desc


import os
STAMPS = bool(int(os.environ.get("STAMPS", "0")))
WS_STAMP = 200 << 20
class Stamper:
    def __init__(self, p, base=64, kid=0):
        self.p, self.base, self.n, self.kid = p, base, 0, kid
    def ins(self):
        if not STAMPS:
            return []
        r = ["s_memtime s[%d:%d]" % (self.base + 2 * self.n, self.base + 2 * self.n + 1), "s_waitcnt lgkmcnt(0)"]
        self.n += 1
        return r
    def __call__(self):
        self.p.add(self.ins())
    def dump(self, vtmp=0):
        if not STAMPS:
            return
        p = self.p
        b = self.base
        p("s_memrealtime s[%d:%d]" % (b + 2 * self.n, b + 2 * self.n + 1))
        p("s_load_dwordx2 s[96:97], s[0:1], 96\ns_waitcnt lgkmcnt(0) vmcnt(0)")
        p("s_add_u32 s96, s96, 0x%x\ns_addc_u32 s97, s97, 0\ns_mov_b32 s98, 0x100000\ns_mov_b32 s99, 0x20000" % (WS_STAMP + (self.kid << 20)))
        p("v_lshrrev_b32 v%d, 6, v0\nv_lshlrev_b32 v%d, 7, v%d\ns_lshl_b32 s100, s2, 9\nv_add_u32 v%d, s100, v%d" % (vtmp + 1, vtmp + 1, vtmp + 1, vtmp + 1, vtmp + 1))
        for k in range(self.n + 1):
            p("v_mov_b32 v%d, s%d" % (vtmp + 2, b + 2 * k))
            p("buffer_store_dword v%d, v%d, s[96:99], 0 offen offset:%d" % (vtmp + 2, vtmp + 1, 4 * k))
```

```python
from asmlib import *
from layout import *
from k_p1 import srd, MF
from k_main import f2u
MF16 = "v_mfma_f32_16x16x32_bf16"
LOG2E = f2u(1.4426950408889634)

def build_wo():
    p = Prog()
    sS, sD = 4, 8
    sWave, sT, sT2, sKs, sNG, sOff = 20, 21, 22, 23, 24, 25
    P = 40
    vLane, vL16, vA, t0, t1 = 1, 2, 3, 4, 5
    p("s_cmp_ge_u32 s2, 148\ns_cbranch_scc1 WO_exit")
    p("s_load_dwordx2 s[%d:%d], s[0:1], %d" % (P, P + 1, A_WO))
    p("s_load_dwordx2 s[%d:%d], s[0:1], %d" % (P + 2, P + 3, B_WO))
    p("s_load_dwordx2 s[%d:%d], s[0:1], %d" % (P + 4, P + 5, D_WS))
    p("v_and_b32 v%d, 63, v0" % vLane)
    p("v_lshrrev_b32 v%d, 6, v0" % t0)
    p("v_readfirstlane_b32 s%d, v%d" % (sWave, t0))
    p("v_lshlrev_b32 v%d, 4, v%d" % (vL16, vLane))
    p("s_waitcnt lgkmcnt(0)")
    p("s_cmp_ge_u32 s2, 128")
    p("s_cselect_b32 s%d, s%d, s%d" % (P + 6, P + 2, P))
    p("s_cselect_b32 s%d, s%d, s%d" % (P + 7, P + 3, P + 1))
    p("s_cselect_b32 s%d, 128, 0" % sT)
    p("s_mov_b32 s%d, %d\ns_cselect_b32 s%d, %d, s%d" % (sNG, 128 * 5120, sNG, 20 * 5120, sNG))
    p("s_mov_b32 s%d, 0x%x\ns_cselect_b32 s%d, 0x%x, s%d" % (sT2, WS_WOA, sT2, WS_WOB, sT2))
    p("s_cselect_b32 s%d, 1, 0" % sOff)
    p("s_sub_u32 s%d, s2, s%d" % (sKs, sT))
    p("s_mul_i32 s%d, s%d, 40960" % (sT, sKs))
    srd(p, sS, P + 6, off_s=sT, nrec=40960)
    p("s_mul_i32 s%d, s%d, 5120" % (sT, sKs))
    p("s_add_u32 s%d, s%d, s%d" % (sT, sT, sT2))
    srd(p, sD, P + 4, off_s=sT, nrec=8 * 128 * 5120)
    p("v_lshrrev_b32 v%d, 4, v%d" % (t0, vLane))
    p("v_lshlrev_b32 v%d, 3, v%d" % (t1, t0))
    p("v_and_b32 v%d, 1, v%d" % (vA, t0))
    p("v_lshlrev_b32 v%d, 2, v%d" % (vA, vA))
    p("v_sub_u32 v%d, v%d, v%d" % (vA, t1, vA))
    p("s_cmp_eq_u32 s%d, 1" % sOff)
    p("s_cselect_b64 vcc, -1, 0")
    p("v_cndmask_b32 v%d, v%d, v%d, vcc" % (vA, vA, t1))
    p("v_bfe_u32 v%d, v%d, 2, 2" % (t0, vLane))
    p("v_add_u32 v%d, v%d, v%d" % (vA, vA, t0))
    p("v_mul_u32_u24 v%d, 1280, v%d" % (vA, vA))
    p("v_and_b32 v%d, 3, v%d" % (t0, vLane))
    p("v_lshl_add_u32 v%d, v%d, 3, v%d" % (vA, t0, vA))
    p("s_mul_i32 s%d, s%d, 320" % (sT, sWave))
    p("v_add_u32 v%d, s%d, v%d" % (vA, sT, vA))
    p("s_mov_b32 s%d, %d\ns_cselect_b32 s%d, %d, s%d" % (sT, 8 * 1280, sT, 4 * 1280, sT))
    p("v_add_u32 v%d, s%d, v%d" % (vA + 3, sT, vA))
    p("s_mul_i32 s%d, s%d, 10240" % (sOff, sWave))
    for q in range(10):
        p("s_mov_b32 m0, s%d" % sOff)
        p("buffer_load_dwordx4 v%d, s[%d:%d], s%d offen lds" % (vL16, sS, sS + 3, sOff))
        p("s_add_u32 s%d, s%d, 1024" % (sOff, sOff))
    p("s_waitcnt vmcnt(0)\ns_barrier")
    for n in range(10):
        p("ds_read_b64_tr_b16 v[%d:%d], v%d offset:%d" % (8 + 4 * n, 9 + 4 * n, vA, n * 32))
        p("ds_read_b64_tr_b16 v[%d:%d], v%d offset:%d" % (10 + 4 * n, 11 + 4 * n, vA + 3, n * 32))
    p("s_lshl_b32 s%d, s%d, 1" % (sT, sWave))
    p("s_mul_i32 s%d, s%d, s%d" % (sOff, sT, sNG))
    for n in range(10):
        if n == 5:
            p("s_add_u32 s%d, s%d, s%d" % (sOff, sOff, sNG))
        p("s_add_u32 s%d, s%d, %d" % (sT, sOff, (n % 5) * 1024))
        p("buffer_store_dwordx4 v[%d:%d], v%d, s[%d:%d], s%d offen" % (8 + 4 * n, 11 + 4 * n, vL16, sD, sD + 3, sT))
    p("WO_exit:\ns_endpgm")
    p.finish()
    return p

def build_p3():
    p = Prog()
    sCA, sWA, sCB, sWB, sO = 4, 8, 12, 16, 20
    sWave, sT, sT2, sQ, sN, sC, sW = 24, 25, 26, 27, 28, 29, 30
    P = 40
    vLane, vL16, vL16b, t0, t1, vSt, vRd = 1, 2, 3, 4, 5, 6, 7
    D = 5
    FR = 16
    p("s_cmp_ge_u32 s2, 256\ns_cbranch_scc1 P3_exit")
    st_ = Stamper(p, 12, kid=2)
    st_()
    p("s_load_dwordx2 s[%d:%d], s[0:1], %d" % (P, P + 1, D_WS))
    p("s_load_dwordx2 s[%d:%d], s[0:1], %d" % (P + 2, P + 3, D_OUT))
    p("v_and_b32 v%d, 63, v0" % vLane)
    p("v_lshrrev_b32 v%d, 6, v0" % t0)
    p("v_readfirstlane_b32 s%d, v%d" % (sWave, t0))
    p("v_lshlrev_b32 v%d, 4, v%d" % (vL16, vLane))
    p("v_add_u32 v%d, 0x1000, v%d" % (vL16b, vL16))
    p("s_and_b32 s%d, s2, 7" % sT)
    p("s_lshr_b32 s%d, s2, 3" % sT2)
    p("s_lshr_b32 s%d, s%d, 1" % (sQ, sT))
    p("s_lshl_b32 s%d, s%d, 3" % (sQ, sQ))
    p("s_and_b32 s%d, s%d, 7" % (sN, sT2))
    p("s_add_u32 s%d, s%d, s%d" % (sQ, sQ, sN))
    p("s_and_b32 s%d, s%d, 1" % (sN, sT))
    p("s_lshl_b32 s%d, s%d, 2" % (sN, sN))
    p("s_lshr_b32 s%d, s%d, 3" % (sT2, sT2))
    p("s_add_u32 s%d, s%d, s%d" % (sN, sN, sT2))
    p("s_waitcnt lgkmcnt(0)")
    def mk(d, base, idx, per, nk):
        p("s_mul_i32 s%d, s%d, %d" % (sT, idx, per * nk * 4))
        p("s_mul_i32 s%d, s%d, %d" % (sT2, sWave, per * nk))
        p("s_add_u32 s%d, s%d, s%d" % (sT, sT, sT2))
        srd(p, d, P, off_s=sT, off_imm=base, nrec=per * nk)
    mk(sCA, WS_CTX, sQ, 4096, 32)
    mk(sWA, WS_WOA, sN, 5120, 32)
    NS = 37
    def loads(k):
        if k >= NS:
            return []
        b = FR + (k % D) * 36
        c, w, kk = (sCA, sWA, k) if k < 32 else (sCB, sWB, k - 32)
        r = [["s_mov_b32 s%d, 0x%x" % (sC, kk * 4096), "s_mov_b32 s%d, 0x%x" % (sW, kk * 5120)]]
        for i in range(5):
            r.append("buffer_load_dwordx4 %s, v%d, s[%d:%d], s%d offen offset:%d" % (rr("v", b + 16 + 4 * i, 4), vL16 if i < 4 else vL16b, w, w + 3, sW, (i % 4) * 1024))
            if i < 4:
                r.append("buffer_load_dwordx4 %s, v%d, s[%d:%d], s%d offen offset:%d" % (rr("v", b + 4 * i, 4), vL16, c, c + 3, sC, i * 1024))
        return r
    for k in range(D - 1):
        p.add(loads(k))
    mk(sCB, WS_OB, sQ, 4096, 5)
    mk(sWB, WS_WOB, sN, 5120, 5)
    p("s_mul_i32 s%d, s%d, %d" % (sT, sQ, 64 * 2560))
    p("s_mul_i32 s%d, s%d, %d" % (sT2, sWave, 16 * 2560))
    p("s_add_u32 s%d, s%d, s%d" % (sT, sT, sT2))
    srd(p, sO, P + 2, off_s=sT, nrec=16 * 2560)
    p("v_and_b32 v%d, 15, v%d" % (t0, vLane))
    p("v_mul_u32_u24 v%d, 2560, v%d" % (vSt, t0))
    p("v_lshrrev_b32 v%d, 4, v%d" % (t0, vLane))
    p("v_lshl_add_u32 v%d, v%d, 3, v%d" % (vSt, t0, vSt))
    p("s_mul_i32 s%d, s%d, 160" % (sT, sN))
    p("v_add_u32 v%d, s%d, v%d" % (vSt, sT, vSt))
    st_()
    acc = lambda part, q, n: part * 80 + (q * 5 + n) * 4
    for k in range(NS):
        b = FR + (k % D) * 36
        part = 0 if k < 32 else 1
        mf = []
        for n in range(5):
            for q in range(4):
                a = rr("a", acc(part, q, n), 4)
                mf.append("%s %s, %s, %s, %s" % (MF16, a, rr("v", b + 16 + 4 * n, 4), rr("v", b + 4 * q, 4), "0" if k in (0, 32) else a))
        slots = {}
        ld = loads(k + D - 1)
        if ld:
            spread(ld, 0, 18, slots)
        young = sum(9 for kk in range(k + 1, k + D - 1) if kk < NS)
        slots[-1] = ["s_waitcnt vmcnt(%d)" % young]
        p.add(interleave(mf, slots))
    st_()
    p("s_mul_i32 s%d, s%d, 20480" % (sT, sWave))
    p("v_add_u32 v%d, s%d, v%d" % (t0, sT, vL16))
    p("v_add_u32 v%d, 0x14000, v%d" % (t1, t0))
    for part in range(2):
        for t in range(20):
            p("ds_write_b128 v%d, %s offset:%d" % (t1 if part else t0, rr("a", part * 80 + t * 4, 4), t * 1024))
    p("s_mul_i32 s%d, s%d, 5120" % (sT, sWave))
    p("v_add_u32 v%d, s%d, v%d" % (t0, sT, vL16))
    p("v_add_u32 v%d, 0x14000, v%d" % (t1, t0))
    p("v_add_u32 v%d, 0xa000, v%d" % (vRd, t0))
    p("v_add_u32 v%d, 0xa000, v%d" % (vRd + 1, t1))
    p("s_waitcnt lgkmcnt(0)\ns_barrier")
    for part in range(2):
        for n in range(5):
            b = FR + (part * 5 + n) * 16
            for w in range(4):
                base = ((t1, vRd + 1) if part else (t0, vRd))[w >> 1]
                p("ds_read_b128 %s, v%d offset:%d" % (rr("v", b + 4 * w, 4), base, (w & 1) * 20480 + n * 1024))
    for part in range(2):
        for n in range(5):
            b = FR + (part * 5 + n) * 16
            for e in range(4):
                p("v_add_f32 v%d, v%d, v%d" % (b + e, b + e, b + 4 + e))
                p("v_add_f32 v%d, v%d, v%d" % (b + 8 + e, b + 8 + e, b + 12 + e))
            for e in range(4):
                p("v_add_f32 v%d, v%d, v%d" % (b + e, b + e, b + 8 + e))
            p("v_cvt_pk_bf16_f32 v%d, v%d, v%d" % (b, b, b + 1))
            p("v_cvt_pk_bf16_f32 v%d, v%d, v%d" % (b + 1, b + 2, b + 3))
            p("buffer_store_dwordx2 %s, v%d, s[%d:%d], 0 offen offset:%d" % (rr("v", b, 2), vSt, sO, sO + 3, part * 1280 + n * 32))
    st_()
    st_.dump(vtmp=8)
    p("P3_exit:\ns_endpgm")
    p.finish()
    return p

class BMid:
    def __init__(self, p, sH, sJ, sWave, pWS, pPhi, sb, vLane, vb):
        self.p = p
        self.sH, self.sJ, self.sWave, self.pWS, self.pPhi = sH, sJ, sWave, pWS, pPhi
        self.sPhi, self.sBF, self.sX = sb, sb + 4, sb + 8
        self.sT, self.sT2, self.sTT, self.sL2 = sb + 12, sb + 13, sb + 14, sb + 15
        self.vLane = vLane
        self.t0, self.t1, self.t2, self.vL16 = vb, vb + 1, vb + 2, vb + 3
        self.vA = vb + 4
        self.AW = vb + 8
        self.XF = vb + 24
        self.C1 = vb + 40
        self.C2 = vb + 56
        self.PH = vb + 72
        self.W = vb + 84

    def setup(self, fbase):
        p, s = self.p, self
        p("s_mul_i32 s%d, s%d, 800" % (s.sT, s.sH))
        srd(p, s.sPhi, s.pPhi, off_s=s.sT, nrec=800)
        p("s_lshl_b32 s%d, s%d, 3" % (s.sTT, s.sJ))
        p("s_lshl_b32 s%d, s%d, 1" % (s.sT, s.sWave))
        p("s_add_u32 s%d, s%d, s%d" % (s.sTT, s.sTT, s.sT))
        p("s_mul_i32 s%d, s%d, %d" % (s.sT, s.sTT, 120 * 1024))
        srd(p, s.sBF, s.pWS, off_s=s.sT, off_imm=WS_BF, nrec=2 * 120 * 1024)
        p("v_lshlrev_b32 v%d, 4, v%d" % (s.vL16, s.vLane))
        p("s_mul_i32 s%d, s%d, 5" % (s.sT, s.sH))
        p("s_lshr_b32 s%d, s%d, 2" % (s.sT, s.sT))
        p("s_add_u32 s%d, s%d, %d" % (s.sT, s.sT, fbase))
        p("s_lshl_b32 s%d, s%d, 10" % (s.sT, s.sT))
        for tt in range(2):
            for u in range(2):
                p("buffer_load_dwordx4 %s, v%d, s[%d:%d], s%d offen offset:%d" % (rr("v", s.XF + (tt * 2 + u) * 4, 4), s.vL16, s.sBF, s.sBF + 3, s.sT, u * 1024))
            if tt == 0:
                p("s_add_u32 s%d, s%d, %d" % (s.sT, s.sT, 120 * 1024))
        b1, b2 = s.vA, s.vA + 1
        p("s_and_b32 s%d, s%d, 3" % (s.sT, s.sH))
        p("s_mul_i32 s%d, s%d, 160" % (s.sT, s.sT))
        p("v_lshrrev_b32 v%d, 5, v%d" % (s.t0, s.vLane))
        p("v_mul_u32_u24 v%d, 160, v%d" % (s.t0, s.t0))
        p("v_subrev_u32 v%d, s%d, v%d" % (s.t0, s.sT, s.t0))
        p("v_and_b32 v%d, 3, v%d" % (s.t1, s.vLane))
        p("v_lshl_add_u32 v%d, v%d, 1, v%d" % (s.t0, s.t1, s.t0))
        p("v_bfe_u32 v%d, v%d, 3, 2" % (s.t1, s.vLane))
        p("v_lshl_add_u32 v%d, v%d, 3, v%d" % (b1, s.t1, s.t0))
        p("v_add_u32 v%d, 32, v%d" % (b2, s.t0))
        p("v_mov_b32 v%d, 0x80000000" % s.t2)
        p("v_cmp_eq_u32 vcc, 0, v%d" % s.t1)
        p("v_cndmask_b32 v%d, v%d, v%d, vcc" % (b2, s.t2, b2))
        n = 0
        for tile in range(2):
            for u in range(2):
                for e in range(8):
                    cw = 16 * u + 8 * (e >> 2) + (e & 3)
                    t = (s.t0, s.t1, s.t2)[n % 3]
                    p("v_add_u32 v%d, %d, v%d" % (t, cw * 40, b2 if tile else b1))
                    p("buffer_load_ushort v%d, v%d, s[%d:%d], 0 offen" % (s.W + n, t, s.sPhi, s.sPhi + 3))
                    n += 1
        p("v_bfe_u32 v%d, v%d, 2, 1" % (s.t0, s.vLane))
        p("v_mul_u32_u24 v%d, 0x8000, v%d" % (s.t0, s.t0))
        p("v_lshl_or_b32 v%d, v%d, 16, v%d" % (s.t0, s.t0, s.t0))
        p("s_mov_b32 s%d, 0x%x" % (s.sL2, LOG2E))

    def pack_w(self):
        p, s = self.p, self
        for k in range(16):
            p("v_lshl_or_b32 v%d, v%d, 16, v%d" % (s.AW + k, s.W + 2 * k + 1, s.W + 2 * k))
            p("v_xor_b32 v%d, v%d, v%d" % (s.AW + k, s.AW + k, s.t0))

    def phi(self, tt):
        p, s = self.p, self
        for tile, C in ((0, s.C1), (1, s.C2)):
            for u in range(2):
                p("%s %s, %s, %s, %s" % (MF, rr("v", C, 16), rr("v", s.AW + (tile * 2 + u) * 4, 4), rr("v", s.XF + (tt * 2 + u) * 4, 4), rr("v", C, 16) if u else "0"))
        x = [s.C1 + k for k in range(16)] + [s.C2 + k for k in range(4)]
        m = s.t1
        p("v_max3_f32 v%d, v%d, v%d, v%d" % (m, x[0], x[1], x[2]))
        for k in range(3, 19, 2):
            p("v_max3_f32 v%d, v%d, v%d, v%d" % (m, m, x[k], x[k + 1]))
        p("v_max_f32 v%d, v%d, v%d" % (m, m, x[19]))
        p("v_mul_f32 v%d, s%d, v%d" % (m, s.sL2, m))
        for k in range(20):
            p("v_fma_f32 v%d, v%d, s%d, -v%d" % (x[k], x[k], s.sL2, m))
        for k in range(20):
            p("v_exp_f32 v%d, v%d" % (x[k], x[k]))
        p("v_add_f32 v%d, v%d, v%d" % (m, x[0], x[1]))
        for k in range(2, 20):
            p("v_add_f32 v%d, v%d, v%d" % (m, m, x[k]))
        p("v_rcp_f32 v%d, v%d" % (m, m))
        for k in range(20):
            p("v_mul_f32 v%d, v%d, v%d" % (x[k], x[k], m))
        for k in range(10):
            p("v_cvt_pk_bf16_f32 v%d, v%d, v%d" % (s.PH + k, x[2 * k], x[2 * k + 1]))

    def mid1(self, lds0, flags=""):
        p, s = self.p, self
        s.setup(40)
        VF = s.W + 32
        AF = s.W + 48
        KC = s.W + 64
        vV, vWr, vRd = s.vA + 2, s.vA + 3, s.vA
        p("s_mul_i32 s%d, s%d, 20" % (s.sT, s.sH))
        p("v_and_b32 v%d, 31, v%d" % (s.t2, s.vLane))
        p("v_add_u32 v%d, s%d, v%d" % (s.t1, s.sT, s.t2))
        p("v_lshrrev_b32 v%d, 5, v%d" % (vV, s.t1))
        p("v_lshlrev_b32 v%d, 11, v%d" % (vV, vV))
        p("v_and_b32 v%d, 31, v%d" % (s.t1, s.t1))
        p("v_lshl_add_u32 v%d, v%d, 4, v%d" % (vV, s.t1, vV))
        p("v_and_b32 v%d, 32, v%d" % (s.t1, s.vLane))
        p("v_lshl_add_u32 v%d, v%d, 4, v%d" % (vV, s.t1, vV))
        p("v_mov_b32 v%d, 0x80000000" % s.t1)
        p("v_cmp_gt_u32 vcc, 20, v%d" % s.t2)
        p("v_cndmask_b32 v%d, v%d, v%d, vcc" % (vV, s.t1, vV))
        for tt in range(2):
            p("s_mov_b32 s%d, %d" % (s.sT, (tt * 120 + 80) * 1024))
            for m in range(2):
                p("buffer_load_dwordx4 %s, v%d, s[%d:%d], s%d offen offset:%d" % (rr("v", VF + (tt * 2 + m) * 4, 4), vV, s.sBF, s.sBF + 3, s.sT, m * 1024))
        p("s_lshl_b32 s%d, s%d, 12" % (s.sT, s.sWave))
        p("s_add_u32 s%d, s%d, %d" % (s.sT, s.sT, lds0))
        p("v_lshlrev_b32 v%d, 7, v%d" % (vWr, s.t2))
        p("v_lshrrev_b32 v%d, 5, v%d" % (s.t1, s.vLane))
        p("v_lshl_add_u32 v%d, v%d, 6, v%d" % (vWr, s.t1, vWr))
        p("v_add_u32 v%d, s%d, v%d" % (vWr, s.sT, vWr))
        s.pack_w()
        p("v_lshrrev_b32 v%d, 5, v%d" % (s.t1, s.vLane))
        p("v_lshlrev_b32 v%d, 9, v%d" % (vRd, s.t1))
        p("v_bfe_u32 v%d, v%d, 2, 2" % (s.t1, s.vLane))
        p("v_lshl_add_u32 v%d, v%d, 7, v%d" % (vRd, s.t1, vRd))
        p("v_bfe_u32 v%d, v%d, 4, 1" % (s.t1, s.vLane))
        p("v_lshl_add_u32 v%d, v%d, 5, v%d" % (vRd, s.t1, vRd))
        p("v_and_b32 v%d, 3, v%d" % (s.t1, s.vLane))
        p("v_lshl_add_u32 v%d, v%d, 3, v%d" % (vRd, s.t1, vRd))
        p("v_add_u32 v%d, s%d, v%d" % (vRd, s.sT, vRd))
        p("v_mov_b32 v%d, 0x3f803f80" % s.t1)
        p("v_cmp_eq_u32 vcc, 20, v%d" % s.t2)
        for k in range(16):
            p("v_cndmask_b32 v%d, v%d, v%d, vcc" % (VF + k, VF + k, s.t1))
        for tt in range(2):
            s.phi(tt)
            p("ds_write_b128 v%d, %s" % (vWr, rr("v", s.PH, 4)))
            p("ds_write_b128 v%d, %s offset:16" % (vWr, rr("v", s.PH + 4, 4)))
            p("ds_write_b64 v%d, %s offset:32" % (vWr, rr("v", s.PH + 8, 2)))
            for n in range(2):
                for m in range(2):
                    for u in range(2):
                        p("ds_read_b64_tr_b16 %s, v%d offset:%d" % (rr("v", AF + (n * 2 + m) * 4 + 2 * u, 2), vRd, (16 * m + 8 * u) * 128 + n * 64))
            for m in range(2):
                for n in range(2):
                    c = rr("v", KC + n * 16, 16)
                    p("%s %s, %s, %s, %s" % (MF, c, rr("v", AF + (n * 2 + m) * 4, 4), rr("v", VF + (tt * 2 + m) * 4, 4), "0" if (tt == 0 and m == 0) else c))
        R0 = lds0 + 16384
        p("s_mul_i32 s%d, s%d, 6144" % (s.sT, s.sWave))
        p("s_add_u32 s%d, s%d, %d" % (s.sT, s.sT, R0))
        p("v_add_u32 v%d, s%d, v%d" % (s.t1, s.sT, s.vL16))
        for n in range(2):
            for jj in range(3):
                p("ds_write_b128 v%d, %s offset:%d" % (s.t1, rr("v", KC + n * 16 + jj * 4, 4), (n * 3 + jj) * 1024))
        p("s_lshl_b32 s%d, s%d, 3" % (s.sT, s.sH))
        p("s_add_u32 s%d, s%d, s%d" % (s.sT, s.sT, s.sJ))
        p("s_lshl_b32 s%d, s%d, 13" % (s.sT, s.sT))
        srd(p, s.sX, s.pWS, off_s=s.sT, off_imm=WS_KVP, nrec=8192)
        p("s_lshl_b32 s%d, s%d, 10" % (s.sT, s.sWave))
        p("s_add_u32 s%d, s%d, %d" % (s.sT, s.sT, R0))
        p("v_add_u32 v%d, s%d, v%d" % (s.t1, s.sT, s.vL16))
        p("v_lshlrev_b32 v%d, 8, v%d" % (vV, s.t2))
        p("v_lshrrev_b32 v%d, 5, v%d" % (s.t0, s.vLane))
        p("v_lshl_add_u32 v%d, v%d, 4, v%d" % (vV, s.t0, vV))
        p("s_waitcnt lgkmcnt(0)\ns_barrier")
        for k in range(2):
            for w in range(4):
                p("ds_read_b128 %s, v%d offset:%d" % (rr("v", s.W + k * 16 + w * 4, 4), s.t1, w * 6144 + k * 4096))
        p("s_lshl_b32 s%d, s%d, 5" % (s.sT, s.sWave))
        p("s_cmp_eq_u32 s%d, 3" % s.sWave)
        p("s_cselect_b32 s%d, 128, s%d" % (s.sT2, s.sT))
        p("s_add_u32 s%d, s%d, 160" % (s.sT, s.sT))
        p("s_cmp_ge_u32 s%d, 2" % s.sWave)
        p("s_cselect_b32 s%d, 0x10000, s%d" % (s.sT, s.sT))
        for k in range(2):
            b = s.W + k * 16
            for e in range(4):
                p("v_add_f32 v%d, v%d, v%d" % (b + e, b + e, b + 4 + e))
                p("v_add_f32 v%d, v%d, v%d" % (b + 8 + e, b + 8 + e, b + 12 + e))
            for e in range(4):
                p("v_add_f32 v%d, v%d, v%d" % (b + e, b + e, b + 8 + e))
            p("buffer_store_dwordx4 %s, v%d, s[%d:%d], s%d offen %s" % (rr("v", b, 4), vV, s.sX, s.sX + 3, s.sT if k else s.sT2, flags))

    def mid2(self, flags=""):
        p, s = self.p, self
        s.setup(0)
        L = s.W + 32
        SUM = s.W + 112
        KA = s.W
        vP = s.vA + 2
        p("s_lshl_b32 s%d, s%d, 16" % (s.sT, s.sH))
        srd(p, s.sX, s.pWS, off_s=s.sT, off_imm=WS_KVP, nrec=65536)
        p("v_and_b32 v%d, 31, v%d" % (s.t2, s.vLane))
        p("v_min_u32 v%d, 20, v%d" % (s.t2, s.t2))
        p("v_lshlrev_b32 v%d, 8, v%d" % (vP, s.t2))
        p("v_lshrrev_b32 v%d, 5, v%d" % (s.t1, s.vLane))
        p("v_lshl_add_u32 v%d, v%d, 7, v%d" % (vP, s.t1, vP))
        for half in range(2):
            for j in range(4):
                p("s_mov_b32 s%d, %d" % (s.sT, (half * 4 + j) * 8192))
                for k in range(5):
                    p("buffer_load_dwordx4 %s, v%d, s[%d:%d], s%d offen offset:%d %s" % (rr("v", L + j * 20 + k * 4, 4), vP, s.sX, s.sX + 3, s.sT, k * 16, flags))
            if half == 0:
                s.pack_w()
            for e in range(20):
                p("v_add_f32 v%d, v%d, v%d" % (L + e, L + e, L + 20 + e))
                p("v_add_f32 v%d, v%d, v%d" % (L + 40 + e, L + 40 + e, L + 60 + e))
            for e in range(20):
                if half == 0:
                    p("v_add_f32 v%d, v%d, v%d" % (SUM + e, L + e, L + 40 + e))
                else:
                    p("v_add_f32 v%d, v%d, v%d" % (L + e, L + e, L + 40 + e))
                    p("v_add_f32 v%d, v%d, v%d" % (SUM + e, SUM + e, L + e))
        for k in range(10):
            p("v_cvt_pk_bf16_f32 v%d, v%d, v%d" % (KA + k, SUM + 2 * k, SUM + 2 * k + 1))
        for r in (KA + 10, KA + 11, s.PH + 10, s.PH + 11):
            p("v_mov_b32 v%d, 0" % r)
        p("s_lshr_b32 s%d, s%d, 1" % (s.sT, s.sTT))
        p("s_mul_i32 s%d, s%d, 81920" % (s.sT, s.sT))
        srd(p, s.sX, s.pWS, off_s=s.sT, off_imm=WS_OB, nrec=81920)
        p("s_mul_i32 s%d, s%d, 20" % (s.sT, s.sH))
        vO = s.vA
        for jj in range(3):
            p("v_lshrrev_b32 v%d, 5, v%d" % (s.t1, s.vLane))
            p("v_lshlrev_b32 v%d, 2, v%d" % (s.t1, s.t1))
            p("v_add_u32 v%d, %d, v%d" % (s.t1, 8 * jj, s.t1))
            p("v_add_u32 v%d, s%d, v%d" % (s.t1, s.sT, s.t1))
            p("v_lshrrev_b32 v%d, 5, v%d" % (vO + jj, s.t1))
            p("v_lshlrev_b32 v%d, 12, v%d" % (vO + jj, vO + jj))
            p("v_bfe_u32 v%d, v%d, 3, 2" % (s.t2, s.t1))
            p("v_lshl_add_u32 v%d, v%d, 8, v%d" % (vO + jj, s.t2, vO + jj))
            p("v_and_b32 v%d, 7, v%d" % (s.t2, s.t1))
            p("v_lshl_add_u32 v%d, v%d, 1, v%d" % (vO + jj, s.t2, vO + jj))
            p("v_and_b32 v%d, 15, v%d" % (s.t2, s.vLane))
            p("v_lshl_add_u32 v%d, v%d, 4, v%d" % (vO + jj, s.t2, vO + jj))
            p("v_bfe_u32 v%d, v%d, 4, 1" % (s.t2, s.vLane))
            p("v_lshl_add_u32 v%d, v%d, 10, v%d" % (vO + jj, s.t2, vO + jj))
        p("v_mov_b32 v%d, 0x80000000" % s.t1)
        p("v_cmp_gt_u32 vcc, 32, v%d" % s.vLane)
        p("v_cndmask_b32 v%d, v%d, v%d, vcc" % (vO + 2, s.t1, vO + 2))
        N = L
        for tt in range(2):
            s.phi(tt)
            for u in range(3):
                p("%s %s, %s, %s, %s" % (MF, rr("v", N, 16), rr("v", KA + 4 * u, 4), rr("v", s.PH + 4 * u, 4), rr("v", N, 16) if u else "0"))
            p("v_add_f32 v%d, 0x%x, v%d" % (N + 12, f2u(1e-6), N + 12))
            p("v_rcp_f32 v%d, v%d" % (N + 12, N + 12))
            for k in range(12):
                p("v_mul_f32 v%d, v%d, v%d" % (N + k, N + k, N + 12))
            for k in range(6):
                p("v_cvt_pk_bf16_f32 v%d, v%d, v%d" % (N + 16 + k, N + 2 * k, N + 2 * k + 1))
            for jj in range(3):
                p("buffer_store_dwordx2 %s, v%d, s[%d:%d], 0 offen offset:%d" % (rr("v", N + 16 + 2 * jj, 2), vO + jj, s.sX, s.sX + 3, tt * 2048))


def build_bmid(which):
    p = Prog()
    sH, sJ, sWave, sT, sT2 = 4, 5, 6, 7, 8
    P = 40
    p("s_cmp_ge_u32 s2, 256\ns_cbranch_scc1 BM%d_exit" % which)
    p("s_load_dwordx2 s[%d:%d], s[0:1], %d" % (P, P + 1, D_WS))
    p("s_load_dwordx2 s[%d:%d], s[0:1], %d" % (P + 2, P + 3, B_WPHI))
    p("v_and_b32 v1, 63, v0")
    p("v_lshrrev_b32 v2, 6, v0")
    p("v_readfirstlane_b32 s%d, v2" % sWave)
    p("s_and_b32 s%d, s2, 7" % sT)
    p("s_lshr_b32 s%d, s2, 3" % sT2)
    p("s_lshl_b32 s%d, s%d, 2" % (sH, sT))
    p("s_lshr_b32 s%d, s%d, 3" % (sJ, sT2))
    p("s_add_u32 s%d, s%d, s%d" % (sH, sH, sJ))
    p("s_and_b32 s%d, s%d, 7" % (sJ, sT2))
    p("s_waitcnt lgkmcnt(0)")
    b = BMid(p, sH, sJ, sWave, P, P + 2, 12, 1, 4)
    if which == 1:
        b.mid1(0)
    else:
        b.mid2()
    p("BM%d_exit:\ns_endpgm" % which)
    p.finish()
    return p
```

```python
from asmlib import *
from layout import *
import os

MF = "v_mfma_f32_32x32x16_bf16"

def srd(p, d, base, off_s=None, off_imm=0, nrec=None):
    if off_s is not None:
        p("s_add_u32 s%d, s%d, s%d" % (d, base, off_s))
        p("s_addc_u32 s%d, s%d, 0" % (d + 1, base + 1))
        if off_imm:
            p("s_add_u32 s%d, s%d, 0x%x" % (d, d, off_imm))
            p("s_addc_u32 s%d, s%d, 0" % (d + 1, d + 1))
    elif off_imm:
        p("s_add_u32 s%d, s%d, 0x%x" % (d, base, off_imm))
        p("s_addc_u32 s%d, s%d, 0" % (d + 1, base + 1))
    else:
        p("s_mov_b32 s%d, s%d" % (d, base))
        p("s_mov_b32 s%d, s%d" % (d + 1, base + 1))
    if nrec is not None:
        p("s_mov_b32 s%d, %s" % (d + 2, nrec if isinstance(nrec, str) else "0x%x" % nrec))
    p("s_mov_b32 s%d, 0x20000" % (d + 3))


def x_dma_voff(p, ve, vo, lane, t0, t1, pitch_s):
    p("v_lshrrev_b32 v%d, 3, v%d" % (t0, lane))
    p("v_mul_lo_u32 v%d, v%d, s%d" % (t0, t0, pitch_s))
    p("v_lshrrev_b32 v%d, 4, v%d" % (t1, lane))
    p("v_and_b32 v%d, 7, v%d" % (ve, lane))
    p("v_xor_b32 v%d, v%d, v%d" % (ve, ve, t1))
    p("v_xor_b32 v%d, 4, v%d" % (vo, ve))
    p("v_lshl_add_u32 v%d, v%d, 4, v%d" % (ve, ve, t0))
    p("v_lshl_add_u32 v%d, v%d, 4, v%d" % (vo, vo, t0))


def w_dma_voff(p, vw, lane, t0, t1, pitch_s):
    p("v_lshrrev_b32 v%d, 4, v%d" % (t0, lane))
    p("v_lshlrev_b32 v%d, 2, v%d" % (t1, t0))
    p("v_mul_lo_u32 v%d, v%d, s%d" % (t0, t0, pitch_s))
    p("v_and_b32 v%d, 15, v%d" % (vw, lane))
    p("v_xor_b32 v%d, v%d, v%d" % (vw, vw, t1))
    p("v_lshl_add_u32 v%d, v%d, 4, v%d" % (vw, vw, t0))


def x_rd_addr(p, vx, lane, t0, t1):
    p("v_and_b32 v%d, 31, v%d" % (t0, lane))
    p("v_bfe_u32 v%d, v%d, 1, 3" % (t1, lane))
    p("v_lshrrev_b32 v%d, 5, v%d" % (vx, lane))
    p("v_xor_b32 v%d, v%d, v%d" % (vx, vx, t1))
    p("v_lshlrev_b32 v%d, 4, v%d" % (vx, vx))
    p("v_lshl_add_u32 v%d, v%d, 7, v%d" % (vx, t0, vx))
    for ks in range(1, 4):
        p("v_xor_b32 v%d, %d, v%d" % (vx + ks, ks * 32, vx))


def w_rd_addr(p, vw, lane, t0, t1, ct_v):
    p("v_bfe_u32 v%d, v%d, 2, 2" % (t0, lane))
    p("v_xor_b32 v%d, v%d, v%d" % (t1, ct_v, t0))
    p("v_lshlrev_b32 v%d, 6, v%d" % (t1, t1))
    p("v_lshl_add_u32 v%d, v%d, 8, v%d" % (t1, t0, t1))
    p("v_lshrrev_b32 v%d, 5, v%d" % (t0, lane))
    p("v_lshl_add_u32 v%d, v%d, 11, v%d" % (t1, t0, t1))
    p("v_bfe_u32 v%d, v%d, 4, 1" % (t0, lane))
    p("v_lshl_add_u32 v%d, v%d, 5, v%d" % (t1, t0, t1))
    p("v_and_b32 v%d, 3, v%d" % (t0, lane))
    p("v_lshl_add_u32 v%d, v%d, 3, v%d" % (vw, t0, t1))


def build_p1():
    p = Prog()
    SLOT = 32768
    sX, sW, sO, sBX, sBW, sBO = 4, 8, 12, 16, 20, 24
    sH, sJ, sWave, sW8, sW4, sT, sT2, sTB, sCB, sOff = 28, 29, 30, 31, 32, 33, 34, 35, 36, 37
    P = 40
    vLane, vXe, vXo, vWd, vBXe, vBXo, vBWd, vSt, t0, t1 = 1, 2, 3, 4, 5, 6, 7, 8, 9, 10
    vXr, vWr = 12, 16
    FR = 32
    PK = 160
    p("s_cmp_ge_u32 s2, 256\ns_cbranch_scc1 P1_exit")
    st_ = Stamper(p, kid=0)
    st_()
    p("s_load_dwordx2 s[%d:%d], s[0:1], %d" % (P, P + 1, A_CKV))
    p("s_load_dwordx4 s[%d:%d], s[0:1], %d" % (P + 4, P + 7, A_WUK))
    p("s_load_dwordx4 s[%d:%d], s[0:1], %d" % (P + 8, P + 11, B_X))
    p("s_load_dwordx2 s[%d:%d], s[0:1], %d" % (P + 2, P + 3, D_WS))
    pCKV, pWS, pWUK, pWUV, pBX, pBW = P, P + 2, P + 4, P + 6, P + 8, P + 10
    p("v_and_b32 v%d, 63, v0" % vLane)
    p("v_lshrrev_b32 v%d, 6, v0" % t0)
    p("v_readfirstlane_b32 s%d, v%d" % (sWave, t0))
    p("s_and_b32 s%d, s2, 7" % sT)
    p("s_lshr_b32 s%d, s2, 3" % sT2)
    p("s_lshl_b32 s%d, s%d, 2" % (sH, sT))
    p("s_lshr_b32 s%d, s%d, 3" % (sJ, sT2))
    p("s_add_u32 s%d, s%d, s%d" % (sH, sH, sJ))
    p("s_and_b32 s%d, s%d, 7" % (sJ, sT2))
    p("s_lshl_b32 s%d, s%d, 1" % (sTB, sT))
    p("s_cmp_ge_u32 s%d, 15" % sT2)
    p("s_cselect_b32 s%d, 15, 0" % sT)
    p("s_addc_u32 s%d, s%d, 0" % (sTB, sTB))
    p("s_sub_u32 s%d, s%d, s%d" % (sCB, sT2, sT))
    p("s_lshl_b32 s%d, s%d, 13" % (sW8, sWave))
    p("s_lshl_b32 s%d, s%d, 12" % (sW4, sWave))
    p("s_movk_i32 s%d, 1024" % sT)
    x_dma_voff(p, vXe, vXo, vLane, t0, t1, sT)
    p("s_lshl_b32 s%d, s%d, 16" % (sT, sWave))
    p("v_add_u32 v%d, s%d, v%d" % (vXe, sT, vXe))
    p("v_add_u32 v%d, s%d, v%d" % (vXo, sT, vXo))
    p("s_movk_i32 s%d, 8192" % sT)
    w_dma_voff(p, vWd, vLane, t0, t1, sT)
    p("s_and_b32 s%d, s%d, 1" % (sT, sWave))
    p("s_lshl_b32 s%d, s%d, 18" % (sT, sT))
    p("v_add_u32 v%d, s%d, v%d" % (vWd, sT, vWd))
    p("s_waitcnt lgkmcnt(0)")
    p("s_lshl_b32 s%d, s%d, 18" % (sT, sJ))
    srd(p, sX, pCKV, off_s=sT, nrec=256 * 1024)
    p("s_cmp_ge_u32 s%d, 2" % sWave)
    p("s_cselect_b32 s%d, s%d, s%d" % (sOff, pWUV, pWUK))
    p("s_cselect_b32 s%d, s%d, s%d" % (sOff + 1, pWUV + 1, pWUK + 1))
    p("s_lshl_b32 s%d, s%d, 8" % (sT, sH))
    p("s_add_u32 s%d, s%d, s%d" % (sW, sOff, sT))
    p("s_addc_u32 s%d, s%d, 0" % (sW + 1, sOff + 1))
    p("s_sub_u32 s%d, 0x400000, s%d" % (sW + 2, sT))
    p("s_mov_b32 s%d, 0x20000" % (sW + 3))

    def kv_x(s):
        return [["s_add_u32 m0, s%d, 0x%%x" % sW8, q * 1024, "s_mov_b32 s%d, 0x%x" % (sOff, q * 8192 + s * 128),
                 "buffer_load_dwordx4 v%d, s[%d:%d], s%d offen lds" % (vXo if q & 1 else vXe, sX, sX + 3, sOff)] for q in range(8)]
    def kv_w(s):
        return [["s_add_u32 m0, s%d, 0x%%x" % sW8, q * 1024, "s_mov_b32 s%d, 0x%x" % (sOff, (s * 64 + 4 * q) * 8192),
                 "buffer_load_dwordx4 v%d, s[%d:%d], s%d offen lds" % (vWd, sW, sW + 3, sOff)] for q in range(8)]
    def b_it(s):
        r = []
        for q in range(4):
            r.append(["s_add_u32 m0, s%d, 0x%%x" % sW4, q * 1024, "s_mov_b32 s%d, 0x%x" % (sOff, q * 8 * 1280 + s * 128),
                      "buffer_load_dwordx4 v%d, s[%d:%d], s%d offen lds" % (vBXo if q & 1 else vBXe, sBX, sBX + 3, sOff)])
            r.append(["s_add_u32 m0, s%d, 0x%%x" % sW4, 16384 + q * 1024, "s_mov_b32 s%d, 0x%x" % (sOff, (s * 64 + 4 * q) * 3840),
                      "buffer_load_dwordx4 v%d, s[%d:%d], s%d offen lds" % (vBWd, sBW, sBW + 3, sOff)])
        return r
    items = []
    for s in range(8):
        items += [kv_x(s), kv_w(s)]
    for s in range(10):
        items.append(b_it(s))
    def item(n):
        if n >= len(items):
            return []
        return [[m % ((n % 5) * SLOT + o), a, b] for m, o, a, b in items[n]]
    slot_of = lambda n: (n % 5) * SLOT

    for n in (0, 1):
        p.add(item(n))
    p("s_lshl_b32 s%d, s%d, 20" % (sT, sH))
    p("s_lshl_b32 s%d, s%d, 17" % (sT2, sJ))
    p("s_add_u32 s%d, s%d, s%d" % (sT, sT, sT2))
    srd(p, sO, pWS, off_s=sT, off_imm=WS_KV, nrec=128 * 1024)
    for n in (2, 3, 4):
        p.add(item(n))
    p("s_mul_i32 s%d, s%d, %d" % (sT, sTB, 128 * 1280))
    srd(p, sBX, pBX, off_s=sT)
    p("s_lshl_b32 s%d, s%d, 8" % (sT, sCB))
    srd(p, sBW, pBW, off_s=sT)
    p("s_sub_u32 s%d, %d, s%d" % (sT, 640 * 3840, sT))
    p("s_cmp_lt_u32 s2, 240")
    p("s_cselect_b32 s%d, %d, 0" % (sBX + 2, 128 * 1280))
    p("s_cselect_b32 s%d, s%d, 0" % (sBW + 2, sT))
    p("s_mul_i32 s%d, s%d, %d" % (sT, sTB, 4 * 120 * 1024))
    p("s_lshl_b32 s%d, s%d, 13" % (sT2, sCB))
    p("s_add_u32 s%d, s%d, s%d" % (sT, sT, sT2))
    srd(p, sBO, pWS, off_s=sT, off_imm=WS_BF, nrec=4 * 120 * 1024)
    p("s_movk_i32 s%d, 1280" % sT)
    x_dma_voff(p, vBXe, vBXo, vLane, t0, t1, sT)
    p("s_mul_i32 s%d, s%d, %d" % (sT, sWave, 32 * 1280))
    p("v_add_u32 v%d, s%d, v%d" % (vBXe, sT, vBXe))
    p("v_add_u32 v%d, s%d, v%d" % (vBXo, sT, vBXo))
    p("s_movk_i32 s%d, 3840" % sT)
    w_dma_voff(p, vBWd, vLane, t0, t1, sT)
    p("s_mul_i32 s%d, s%d, %d" % (sT, sWave, 16 * 3840))
    p("v_add_u32 v%d, s%d, v%d" % (vBWd, sT, vBWd))
    x_rd_addr(p, vXr, vLane, t0, t1)
    p("s_lshr_b32 s%d, s%d, 1" % (sT, sWave))
    p("s_lshl_b32 s%d, s%d, 14" % (sT, sT))
    for ks in range(4):
        p("v_add_u32 v%d, s%d, v%d" % (vXr + ks, sT, vXr + ks))
    p("s_and_b32 s%d, s%d, 1" % (sT, sWave))
    p("s_lshl_b32 s%d, s%d, 1" % (sT, sT))
    for c in range(2):
        p("v_mov_b32 v%d, s%d" % (vSt, sT))
        if c:
            p("v_add_u32 v%d, 1, v%d" % (vSt, vSt))
        w_rd_addr(p, vWr + c, vLane, t0, t1, vSt)
        p("v_add_u32 v%d, 0x%x, v%d" % (vWr + c, SLOT, vWr + c))
    p("v_lshlrev_b32 v%d, 4, v%d" % (vSt, vLane))

    fx = lambda st, i: FR + st * 32 + i * 4
    fw = lambda st, i: FR + st * 32 + 16 + i * 4
    def kv_reads(st, ks):
        r = []
        for i in range(4):
            r.append("ds_read_b128 %s, v%d offset:%d" % (rr("v", fx(st, i), 4), vXr + ks, i * 4096))
            mat, c = i >> 1, i & 1
            for u in range(2):
                r.append("ds_read_b64_tr_b16 %s, v%d offset:%d" % (rr("v", fw(st, i) + 2 * u, 2), vWr + c, mat * 16384 + ks * 4096 + u * 1024))
        return r
    acc = lambda b, i: (b * 4 + i) * 16
    def kv_mfmas(st, first):
        r = []
        for b in range(4):
            for i in range(4):
                a = rr("a", acc(b, i), 16)
                X, W = rr("v", fx(st, b), 4), rr("v", fw(st, i), 4)
                A, B = (W, X) if i < 2 else (X, W)
                r.append("%s %s, %s, %s, %s" % (MF, a, A, B, "0" if first else a))
        return r

    st_()
    p("s_waitcnt vmcnt(24)\ns_barrier")
    st_()
    p.add(kv_reads(0, 0))
    nxt = 5
    pend = []
    for s in range(8):
        for ks in range(4):
            st = ks & 1
            slots = {}
            pre = ["s_waitcnt lgkmcnt(0)"]
            if ks == 3:
                assert not pend
                if s < 7:
                    pre = ["s_waitcnt vmcnt(8) lgkmcnt(0)", "s_barrier"]
                else:
                    pre = ["s_waitcnt lgkmcnt(0)", "s_barrier"]
                pend = item(nxt) + item(nxt + 1)
                nxt += 2
                if s < 7:
                    dx = (slot_of(2 * s + 2) - slot_of(2 * s)) & 0xffffffff
                    dw = (slot_of(2 * s + 3) - slot_of(2 * s + 1)) & 0xffffffff
                    upd = ["v_add_u32 v%d, 0x%x, v%d" % (vXr + k, dx, vXr + k) for k in range(4)] + \
                          ["v_add_u32 v%d, 0x%x, v%d" % (vWr + c, dw, vWr + c) for c in range(2)]
                    slots[0] = [upd[0], upd[4], upd[5]]
                    slots[1] = upd[1:4]
                    spread(kv_reads(st ^ 1, 0), 1, 12, slots)
            else:
                spread(kv_reads(st ^ 1, ks + 1), 0, 11, slots)
            take, pend = pend[:4], pend[4:]
            if take:
                spread(take, 2, 15, slots)
            slots[-1] = pre
            p.add(interleave(kv_mfmas(st, s == 0 and ks == 0), slots))
        if s in (7,):
            st_()
    p.add(pend)
    pend = []
    p("s_lshr_b32 s%d, s%d, 1" % (sT, sWave))
    p("s_lshl_b32 s%d, s%d, 16" % (sT, sT))
    p("s_and_b32 s%d, s%d, 1" % (sT2, sWave))
    p("s_lshl_b32 s%d, s%d, 12" % (sT2, sT2))
    p("s_add_u32 s%d, s%d, s%d" % (sT, sT, sT2))
    def pack_store(accbase, tmp, srdn, soff, imm):
        r = []
        for k in range(16):
            r.append("v_accvgpr_read_b32 v%d, a%d" % (tmp + k, accbase + k))
        for k in range(8):
            r.append("v_cvt_pk_bf16_f32 v%d, v%d, v%d" % (tmp + k, tmp + 2 * k, tmp + 2 * k + 1))
        for m in range(2):
            r.append("buffer_store_dwordx4 %s, v%d, s[%d:%d], s%d offen offset:%d" % (rr("v", tmp + 4 * m, 4), vSt, srdn, srdn + 3, soff, imm + m * 1024))
        return r
    n = 0
    for b in range(4):
        for mat in range(2):
            p("s_add_u32 s%d, s%d, 0x%x" % (sOff, sT, b * 16384 + mat * 8192))
            for c in range(2):
                p.add(pack_store(acc(b, mat * 2 + c), PK + (n % 4) * 16, sO, sOff, c * 2048))
                n += 1
    st_()
    p("s_cmp_ge_u32 s2, 240\ns_cbranch_scc1 P1_end")
    p("s_lshr_b32 s%d, s%d, 1" % (sT, sWave))
    p("s_lshl_b32 s%d, s%d, 13" % (sT, sT))
    p("s_sub_u32 s%d, 0x%x, s%d" % (sT, (slot_of(16) - slot_of(14)) & 0xffffffff, sT))
    for k in range(4):
        p("v_add_u32 v%d, s%d, v%d" % (vXr + k, sT, vXr + k))
    for c in range(2):
        p("v_add_u32 v%d, 0x%x, v%d" % (vWr + c, (slot_of(16) + 16384 - slot_of(15)) & 0xffffffff, vWr + c))
    bfx = lambda st, ks, i: FR + st * 64 + ks * 16 + i * 4
    bfw = lambda st, ks, i: FR + st * 64 + ks * 16 + 8 + i * 4
    def b_reads(st):
        r = []
        for ks in range(4):
            for i in range(2):
                r.append("ds_read_b128 %s, v%d offset:%d" % (rr("v", bfx(st, ks, i), 4), vXr + ks, i * 4096))
                for u in range(2):
                    r.append("ds_read_b64_tr_b16 %s, v%d offset:%d" % (rr("v", bfw(st, ks, i) + 2 * u, 2), vWr + i, ks * 4096 + u * 1024))
        return r
    def b_upd(s):
        d = (slot_of(16 + s + 1) - slot_of(16 + s)) & 0xffffffff
        return ["v_add_u32 v%d, 0x%x, v%d" % (r, d, r) for r in (vXr, vXr + 1, vXr + 2, vXr + 3, vWr, vWr + 1)]
    p("s_waitcnt vmcnt(63)")
    p.ins.pop()
    p("s_waitcnt vmcnt(56)\ns_barrier")
    st_()
    p.add(b_reads(0))
    p.add(b_upd(0))
    p("s_cmp_ge_u32 s%d, 10\ns_cbranch_scc1 P1_bv" % sCB)
    for var in range(2):
        if var:
            p("P1_bv:")
        nx = nxt
        for s in range(10):
            st = s & 1
            mf = []
            for ks in range(4):
                for b in range(2):
                    for c in range(2):
                        a = rr("a", (b * 2 + c) * 16, 16)
                        X, W = rr("v", bfx(st, ks, b), 4), rr("v", bfw(st, ks, c), 4)
                        A, B = (X, W) if var else (W, X)
                        mf.append("%s %s, %s, %s, %s" % (MF, a, A, B, "0" if (s == 0 and ks == 0) else a))
            slots = {}
            if s < 9:
                last = min(nx, len(items)) - 1
                young = (last - (16 + s + 1)) * 8 + (32 if 16 + s + 1 <= 20 else 0)
                slots[-1] = ["s_waitcnt vmcnt(%d) lgkmcnt(0)" % min(young, 63), "s_barrier"]
                spread(b_reads(st ^ 1), 0, 13, slots)
                if s < 8:
                    spread(b_upd(s + 1), 14, 15, slots)
                it = item(nx)
                nx += 1
                if it:
                    spread(it, 0, 15, slots)
            else:
                slots[-1] = ["s_waitcnt lgkmcnt(0)"]
            p.add(interleave(mf, slots))
            if s in (1, 3, 4, 5, 7):
                if var and s == 1:
                    st_.n -= 5
                st_()
        if var == 0:
            p("s_branch P1_bst")
    p("P1_bst:")
    st_()
    p("s_lshr_b32 s%d, s%d, 1" % (sT, sWave))
    p("s_mul_i32 s%d, s%d, %d" % (sT, sT, 2 * 120 * 1024))
    p("s_and_b32 s%d, s%d, 1" % (sT2, sWave))
    p("s_lshl_b32 s%d, s%d, 12" % (sT2, sT2))
    p("s_add_u32 s%d, s%d, s%d" % (sT, sT, sT2))
    for b in range(2):
        p("s_add_u32 s%d, s%d, 0x%x" % (sOff, sT, b * 120 * 1024))
        for c in range(2):
            p.add(pack_store((b * 2 + c) * 16, PK + (b * 2 + c) * 16, sBO, sOff, c * 2048))
    st_()
    if STAMPS:
        p("s_waitcnt vmcnt(0)")
    st_()
    p("P1_end:")
    st_.dump(vtmp=20)
    p("P1_exit:\ns_endpgm")
    if os.environ.get("NOMFMA"):
        p.ins = [i for i in p.ins if i.kind != "mfma" and not i.mn.startswith("ds_read")]
    if os.environ.get("NOSTORE"):
        p.ins = [i for i in p.ins if not (i.mn == "buffer_store_dwordx4")]
    if os.environ.get("STFLAG"):
        p.ins = [I(i.text + " " + os.environ["STFLAG"]) if i.mn == "buffer_store_dwordx4" else i for i in p.ins]
    p.finish()
    return p
```

```python
from asmlib import *
from layout import *
from k_p1 import srd, x_dma_voff, w_dma_voff, x_rd_addr, w_rd_addr, MF
import os, struct

def f2u(x):
    return struct.unpack("<I", struct.pack("<f", x))[0]

NEG = 0xF149F2CA
THRESH = int(os.environ.get("THRESH", "0x5F800000"), 0)
QSCALE = f2u((128 ** -0.5) * 1.4426950408889634)

def build_p2():
    p = Prog()
    sX, sW, sKV, sC = 4, 8, 12, 16
    sH, sI, sWave, sW8, sW4, sT, sT2, sOff, sHi, sLo = 20, 21, 22, 23, 24, 25, 26, 27, 28, 29
    sRd, sWr, sG, sStep, sEvt, sLoTri, sHiTri, sThr, sCnt, sCb = 30, 31, 32, 33, 34, 35, 36, 37, 38, 39
    P = 40
    sRet, sRet2 = 50, 52
    vLane, vXe, vXo, vWd, t0, t1, vL16, vDma, vLim, vNeg, vSt = 1, 2, 3, 4, 5, 6, 7, 8, 9, 10, 11
    vXr, vWr = 12, 16
    vB = 20
    vL, vLt = 22, 24
    vU = 26
    S = lambda par, tl: 32 + par * 32 + tl * 16
    CI = lambda tl: 96 + tl * 16
    PP = lambda par, tl: 128 + par * 16 + tl * 8
    Q = lambda tl, ds: 160 + tl * 32 + ds * 4
    TMP = 224
    O = lambda tl, a: tl * 64 + a * 16
    FB = lambda j: 128 + j * 4

    p("s_cmp_ge_u32 s2, 256\ns_cbranch_scc1 P2_exit")
    st_ = Stamper(p, kid=1)
    st_()
    p("s_load_dwordx2 s[%d:%d], s[0:1], %d" % (P, P + 1, A_X))
    p("s_load_dwordx2 s[%d:%d], s[0:1], %d" % (P + 2, P + 3, A_WQ))
    p("s_load_dwordx2 s[%d:%d], s[0:1], %d" % (P + 4, P + 5, D_WS))
    pX, pWQ, pWS = P, P + 2, P + 4
    p("v_and_b32 v%d, 63, v0" % vLane)
    p("v_lshrrev_b32 v%d, 6, v0" % t0)
    p("v_readfirstlane_b32 s%d, v%d" % (sWave, t0))
    p("s_and_b32 s%d, s2, 7" % sT)
    p("s_lshr_b32 s%d, s2, 3" % sT2)
    p("s_lshl_b32 s%d, s%d, 2" % (sH, sT))
    p("s_lshr_b32 s%d, s%d, 3" % (sI, sT2))
    p("s_add_u32 s%d, s%d, s%d" % (sH, sH, sI))
    p("s_and_b32 s%d, s%d, 7" % (sI, sT2))
    p("s_lshl_b32 s%d, s%d, 13" % (sW8, sWave))
    p("s_lshl_b32 s%d, s%d, 12" % (sW4, sWave))
    p("s_mul_i32 s%d, s%d, %d" % (sLo, sI, 128 * 1280))
    p("s_sub_u32 s%d, %d, s%d" % (sHi, 15 * 128 * 1280, sLo))
    p("s_movk_i32 s%d, 1280" % sT)
    x_dma_voff(p, vXe, vXo, vLane, t0, t1, sT)
    p("s_mul_i32 s%d, s%d, %d" % (sT, sWave, 32 * 1280))
    p("v_add_u32 v%d, s%d, v%d" % (vXe, sT, vXe))
    p("v_add_u32 v%d, s%d, v%d" % (vXo, sT, vXo))
    p("s_movk_i32 s%d, 8192" % sT)
    w_dma_voff(p, vWd, vLane, t0, t1, sT)
    p("s_lshl_b32 s%d, s%d, 17" % (sT, sWave))
    p("v_add_u32 v%d, s%d, v%d" % (vWd, sT, vWd))
    p("s_waitcnt lgkmcnt(0)")
    srd(p, sX, pX, nrec=2048 * 1280)
    p("s_lshl_b32 s%d, s%d, 8" % (sT, sH))
    srd(p, sW, pWQ, off_s=sT)
    p("s_sub_u32 s%d, %d, s%d" % (sW + 2, 640 * 8192, sT))

    QS = 49152
    def q_item(s):
        base = (s % 3) * QS
        r = []
        for q in range(8):
            r.append(["s_add_u32 m0, s%d, 0x%x" % (sW8, base + q * 1024),
                      "s_add_u32 s%d, s%d, 0x%x" % (sOff, sHi if q < 4 else sLo, (q & 3) * 8 * 1280 + s * 128),
                      "buffer_load_dwordx4 v%d, s[%d:%d], s%d offen lds" % (vXo if q & 1 else vXe, sX, sX + 3, sOff)])
            if q & 1:
                k = q >> 1
                r.append(["s_add_u32 m0, s%d, 0x%x" % (sW4, base + 32768 + k * 1024),
                          "s_mov_b32 s%d, 0x%x" % (sOff, (s * 64 + 4 * k) * 8192),
                          "buffer_load_dwordx4 v%d, s[%d:%d], s%d offen lds" % (vWd, sW, sW + 3, sOff)])
        return r
    for s in range(3):
        p.add(q_item(s))
    p("s_lshl_b32 s%d, s%d, 20" % (sT, sH))
    srd(p, sKV, pWS, off_s=sT, off_imm=WS_KV)
    p("s_lshl_b32 s%d, s%d, 16" % (sT, sI))
    p("s_sub_u32 s%d, 0x100000, s%d" % (sKV + 2, sT))
    srd(p, sC, pWS, off_imm=WS_CTX, nrec=16 * MB)
    x_rd_addr(p, vXr, vLane, t0, t1)
    for ks in range(4):
        p("v_add_u32 v%d, s%d, v%d" % (vXr + ks, sW8, vXr + ks))
    for c in range(4):
        p("v_mov_b32 v%d, %d" % (vSt, c))
        w_rd_addr(p, vWr + c, vLane, t0, t1, vSt)
    p("v_lshlrev_b32 v%d, 4, v%d" % (vL16, vLane))
    p("v_add_u32 v%d, s%d, v%d" % (vDma, sW4, vL16))
    p("v_and_b32 v%d, 31, v%d" % (vLim, vLane))
    p("v_lshrrev_b32 v%d, 5, v%d" % (t0, vLane))
    p("v_lshlrev_b32 v%d, 2, v%d" % (t0, t0))
    p("v_sub_u32 v%d, v%d, v%d" % (vLim, vLim, t0))
    p("v_mov_b32 v%d, 0x%x" % (vNeg, NEG))
    p("v_bfe_u32 v%d, v%d, 4, 1" % (t0, vLane))
    p("v_lshlrev_b32 v%d, 10, v%d" % (vSt, t0))
    p("v_lshrrev_b32 v%d, 5, v%d" % (t0, vLane))
    p("v_lshl_add_u32 v%d, v%d, 8, v%d" % (vSt, t0, vSt))
    p("v_and_b32 v%d, 15, v%d" % (t0, vLane))
    p("v_lshl_add_u32 v%d, v%d, 4, v%d" % (vSt, t0, vSt))
    for k in range(128):
        p("v_accvgpr_write_b32 a%d, 0" % k)
    p("v_mov_b32 v%d, 0\nv_mov_b32 v%d, 0" % (vL, vL + 1))
    p("s_mov_b32 s%d, 0x%x" % (sThr, THRESH))
    p("s_lshl_b32 s%d, s%d, 2" % (sT, sI))
    p("s_add_u32 s%d, s%d, s%d" % (sLoTri, sT, sWave))
    p("s_sub_u32 s%d, 60, s%d" % (sHiTri, sT))
    p("s_add_u32 s%d, s%d, s%d" % (sHiTri, sHiTri, sWave))
    p("s_mov_b32 s%d, s%d" % (sEvt, sLoTri))

    def kv_dma_static(t):
        return [["s_add_u32 m0, s%d, 0x%x" % (sW4, ((t + 3) % 8) * 16384), "s_mov_b32 s%d, 0x%x" % (sOff, t * 16384)] +
                ["buffer_load_dwordx4 v%d, s[%d:%d], s%d offen offset:%d lds" % (vDma, sKV, sKV + 3, sOff, q * 1024) for q in range(4)]]

    qfx = lambda st, i: 128 + st * 24 + i * 4
    qfw = lambda st, i: 128 + st * 24 + 8 + i * 4
    qacc = lambda tl, a: 32 + (tl * 4 + a) * 16
    def q_reads(st, ks):
        r = []
        for i in range(4):
            if i < 2:
                r.append("ds_read_b128 %s, v%d offset:%d" % (rr("a", qfx(st, i), 4), vXr + ks, i * 4096))
            for u in range(2):
                r.append("ds_read_b64_tr_b16 %s, v%d offset:%d" % (rr("a", qfw(st, i) + 2 * u, 2), vWr + i, 32768 + ks * 4096 + u * 1024))
        return r
    st_()
    p("s_waitcnt vmcnt(24)\ns_barrier")
    st_()
    p.add(q_reads(0, 0))
    pend = []
    for s in range(10):
        for ks in range(4):
            st = ks & 1
            slots = {}
            pre = ["s_waitcnt lgkmcnt(0)"]
            if ks == 3:
                assert not pend
                if s <= 7:
                    pre = ["s_waitcnt vmcnt(12) lgkmcnt(0)", "s_barrier"]
                elif s == 8:
                    pre = ["s_waitcnt vmcnt(12) lgkmcnt(0)", "s_barrier"]
                else:
                    pre = ["s_waitcnt vmcnt(8) lgkmcnt(0)", "s_barrier"]
                if s + 3 < 10:
                    pend = q_item(s + 3)
                elif s == 7:
                    pend = kv_dma_static(0) + kv_dma_static(1) + kv_dma_static(2)
                elif s == 8:
                    pend = kv_dma_static(3) + kv_dma_static(4)
                if s < 9:
                    d = ((((s + 1) % 3) - (s % 3)) * QS) & 0xffffffff
                    upd = ["v_add_u32 v%d, 0x%x, v%d" % (r, d, r) for r in [vXr, vWr, vWr + 1, vWr + 2, vWr + 3, vXr + 1, vXr + 2, vXr + 3]]
                    slots[0] = upd[:5]
                    slots[7] = upd[5:]
                    spread(q_reads(st ^ 1, 0), 1, 6, slots)
            else:
                spread(q_reads(st ^ 1, ks + 1), 0, 5, slots)
            ntake = 3 if len(pend) > 3 or (pend and len(pend[0]) == 3) else 1
            take, pend = pend[:ntake], pend[ntake:]
            if take:
                spread(take, 1, 7, slots)
            slots[-1] = pre
            mf = []
            for a in range(4):
                for tl in range(2):
                    acc = rr("v", qacc(tl, a), 16)
                    mf.append("%s %s, %s, %s, %s" % (MF, acc, rr("a", qfw(st, a), 4), rr("a", qfx(st, tl), 4), "0" if (s == 0 and ks == 0) else acc))
            p.add(interleave(mf, slots))
    assert not pend
    st_()
    p("s_mov_b32 s%d, 0x%x" % (sRd, 3 * 16384))
    p("v_add_u32 v%d, s%d, v%d" % (vB, sRd, vL16))
    p("s_mov_b32 s%d, 0x%x" % (sRd, 4 * 16384))
    p("v_add_u32 v%d, s%d, v%d" % (vB + 1, sRd, vL16))
    for j in range(8):
        p("ds_read_b128 %s, v%d offset:%d" % (rr("a", FB(j), 4), vB, j * 1024))
    p("s_mov_b32 s%d, 0x%x" % (sT, QSCALE))
    for tl in range(2):
        for a in range(4):
            b = qacc(tl, a)
            for k in range(16):
                p("v_mul_f32 v%d, s%d, v%d" % (b + k, sT, b + k))
            for k in range(8):
                p("v_cvt_pk_bf16_f32 v%d, v%d, v%d" % (Q(tl, 2 * a) + k, b + 2 * k, b + 2 * k + 1))
    for k in range(32):
        p("v_mov_b32 v%d, 0" % (CI(0) + k))
    p("s_mov_b32 s%d, 0" % sStep)
    p("s_mov_b32 s%d, 0" % sWr)
    p("s_mov_b32 s%d, 0x%x" % (sG, 5 * 16384))
    stubs = []
    def evt_check():
        lab = p.newlabel("P2_ev")
        stubs.append(["%s:" % lab, "s_call_b64 s[%d:%d], P2_event" % (sRet, sRet + 1), "s_branch %s_r" % lab])
        return ["s_cmp_eq_u32 s%d, s%d" % (sStep, sEvt), "s_cbranch_scc1 %s" % lab, "%s_r:" % lab]
    def qk_mfmas(par, tiles):
        r = []
        for ds in range(8):
            for tl in tiles:
                d = rr("v", S(par, tl), 16)
                r.append((ds, "%s %s, %s, %s, %s" % (MF, d, rr("a", FB(ds), 4), rr("v", Q(tl, ds), 4), rr("v", CI(tl), 16) if ds == 0 else d)))
        return r
    def pv_mfmas(par, tiles):
        r = []
        for j in range(8):
            m, a = j >> 2, j & 3
            for tl in tiles:
                d = rr("a", O(tl, a), 16)
                r.append((8 + j, "%s %s, %s, %s, %s" % (MF, d, rr("a", FB(8 + j), 4), rr("v", PP(par, tl) + 4 * m, 4), d)))
        return r
    def v_off(j):
        m, a = j >> 2, j & 3
        return 8192 + (a * 2 + m) * 1024
    def rowmax(par, tl, dst, tmp):
        s = S(par, tl)
        r = ["v_max3_f32 v%d, v%d, v%d, v%d" % (dst, s, s + 1, s + 2)]
        for k in range(3, 15, 2):
            r.append("v_max3_f32 v%d, v%d, v%d, v%d" % (dst, dst, s + k, s + k + 1))
        r.append("v_max_f32 v%d, v%d, v%d" % (dst, dst, s + 15))
        r += ["v_mov_b32 v%d, v%d" % (tmp, dst), "v_permlane32_swap_b32 v%d, v%d" % (dst, tmp), "v_max_f32 v%d, v%d, v%d" % (dst, dst, tmp)]
        return r
    def sm_units(par, tiles, part):
        groups = [(tl, k) for k in range(part * 4, part * 4 + 4) for tl in tiles]
        units = []
        def fin(n):
            tl, k = groups[n]
            a, b = TMP + (n % 4) * 2, TMP + (n % 4) * 2 + 1
            if k == 0:
                adds = ["v_add_f32 v%d, v%d, v%d" % (vLt + tl, a, b)]
            else:
                adds = ["v_add_f32 v%d, v%d, v%d" % (vLt + tl, vLt + tl, a), "v_add_f32 v%d, v%d, v%d" % (vLt + tl, vLt + tl, b)]
            return adds, ["v_cvt_pk_bf16_f32 v%d, v%d, v%d" % (PP(par, tl) + k, a, b)]
        for n, (tl, k) in enumerate(groups):
            a, b = TMP + (n % 4) * 2, TMP + (n % 4) * 2 + 1
            ea = "v_exp_f32 v%d, v%d" % (a, S(par, tl) + 2 * k)
            eb = "v_exp_f32 v%d, v%d" % (b, S(par, tl) + 2 * k + 1)
            if n:
                ad, cv = fin(n - 1)
                units += [[ea] + ad, [eb] + cv]
            else:
                units += [[ea], [eb]]
        ad, cv = fin(len(groups) - 1)
        units.append(cv + ad)
        return units

    J0 = 4
    def iteration(par, qk, pv, barrier, tail_k=True, dma=True):
        mq, mp = qk_mfmas(par ^ 1, qk), pv_mfmas(par, pv)
        mf = mq + mp
        nq, nm = len(mq), len(mf)
        slots = {}
        first = {}
        for k, (j, _) in enumerate(mf):
            first.setdefault(j, k)
        LA = 8 if len(pv) == 2 and len(qk) == 2 else 6
        pre = []
        if qk:
            pre += ["s_add_u32 s%d, s%d, 1" % (sStep, sStep)] + evt_check()
        rd = []
        for j in range(J0, 8):
            if qk:
                rd.append((first[j] - LA, "ds_read_b128 %s, v%d offset:%d" % (rr("a", FB(j), 4), vB + (par ^ 1), j * 1024)))
        for j in range(8):
            rd.append((first[8 + j] - LA, "ds_read_b128 %s, v%d offset:%d" % (rr("a", FB(8 + j), 4), vB + par, v_off(j))))
        pos, last = -1, -1
        for want, t in rd:
            pos = max(want, -1)
            if nq == 0:
                pos = -1
            slots.setdefault(pos, []).append(t)
            last = max(last, pos)
        u2 = sm_units(par, pv, 1)
        chk = []
        if len(pv) == 2:
            chk.append("v_max_f32 v%d, v%d, v%d" % (vU, vLt, vLt + 1))
            chk.append("v_cmp_lt_f32 vcc, s%d, v%d" % (sThr, vU))
        else:
            chk.append("v_cmp_lt_f32 vcc, s%d, v%d" % (sThr, vLt + pv[0]))
        lab = p.newlabel("P2_sl")
        stubs.append(["%s:" % lab] + ["s_call_b64 s[%d:%d], P2_slow%d%d" % (sRet, sRet + 1, par, tl) for tl in pv] + ["s_branch %s_r" % lab])
        br = ["s_cbranch_vccnz %s" % lab, "%s_r:" % lab]
        accl = ["v_add_f32 v%d, v%d, v%d" % (vL + tl, vL + tl, vLt + tl) for tl in pv]
        if nq:
            spread(u2 + [chk], 0, nq - 2, slots)
            slots.setdefault(nq - 1, []).extend(br)
        else:
            for u in u2 + [chk, br]:
                slots.setdefault(-1, []).extend(u)
        slots.setdefault(nq, []).extend(accl)
        if qk:
            spread(sm_units(par ^ 1, qk, 0), nq + 2, nm - 1, slots)
        tailpos = max(last + 1, nm - (J0 * len(qk) if len(qk) == 2 else 6)) if tail_k else nm - 1
        tailpos = min(tailpos, nm - 2)
        if dma:
            d = ["buffer_load_dwordx4 v%d, s[%d:%d], s%d offen offset:%d lds" % (vDma, sKV, sKV + 3, sG, q * 1024) for q in range(4)]
            slots.setdefault(0, []).append("s_add_u32 m0, s%d, s%d" % (sWr, sW4))
            spread(d, 1, tailpos - 2, slots)
            slots.setdefault(tailpos - 1, []).extend(["s_add_u32 s%d, s%d, 0x4000" % (sG, sG), "s_add_u32 s%d, s%d, 0x4000" % (sWr, sWr), "s_and_b32 s%d, s%d, 0x1ffff" % (sWr, sWr)])
        if tail_k:
            slots.setdefault(tailpos - 1, []).extend(["s_add_u32 s%d, s%d, 0x4000" % (sRd, sRd), "s_and_b32 s%d, s%d, 0x1ffff" % (sRd, sRd)])
            tl_ = []
            if barrier:
                tl_ += ["s_waitcnt vmcnt(8)", "s_barrier"]
            tl_ += ["v_add_u32 v%d, s%d, v%d" % (vB + par, sRd, vL16)]
            slots.setdefault(tailpos, []).extend(tl_)
            spread(["ds_read_b128 %s, v%d offset:%d" % (rr("a", FB(j), 4), vB + par, j * 1024) for j in range(J0)], tailpos, nm - 1, slots)
        slots[-1] = pre + slots.get(-1, [])
        texts = []
        for k, (j, t) in enumerate(mf):
            x = ()
            if first[j] == k and j % 2 == 0:
                x = [("a", FB(j + 1) + e) for e in range(4)]
            texts.append(I(t, xrd=x))
        p.add(interleave(texts, slots))

    p.add(evt_check())
    p.add([t for _, t in qk_mfmas(0, (0, 1))])
    for j in range(J0):
        p("ds_read_b128 %s, v%d offset:%d" % (rr("a", FB(j), 4), vB + 1, j * 1024))
    for tl in range(2):
        p.add(rowmax(0, tl, vU, vU + 1))
        for k in range(16):
            p("v_sub_f32 v%d, v%d, v%d" % (S(0, tl) + k, S(0, tl) + k, vU))
            p("v_sub_f32 v%d, v%d, v%d" % (CI(tl) + k, CI(tl) + k, vU))
    p.add(sm_units(0, (0, 1), 0))
    st_()
    p("s_lshl_b32 s%d, s%d, 1" % (sCnt, sI))
    p("P2_dd:")
    iteration(0, (0, 1), (0, 1), False)
    iteration(1, (0, 1), (0, 1), True)
    p("s_sub_u32 s%d, s%d, 1\ns_cbranch_scc0 P2_dd" % (sCnt, sCnt))
    iteration(0, (0, 1), (0, 1), False)
    iteration(1, (0,), (0, 1), True)
    st_()
    def epilogue(tl, sblk):
        p("s_lshl_b32 s%d, s%d, 1" % (sT, sblk))
        p("s_lshr_b32 s%d, s%d, 1" % (sT2, sWave))
        p("s_add_u32 s%d, s%d, s%d" % (sT, sT, sT2))
        p("s_lshl_b32 s%d, s%d, 19" % (sT, sT))
        p("s_lshl_b32 s%d, s%d, 14" % (sT2, sH))
        p("s_add_u32 s%d, s%d, s%d" % (sT, sT, sT2))
        p("s_and_b32 s%d, s%d, 1" % (sT2, sWave))
        p("s_lshl_b32 s%d, s%d, 11" % (sT2, sT2))
        p("s_add_u32 s%d, s%d, s%d" % (sCb, sT, sT2))
        p("v_mov_b32 v%d, v%d" % (vU, vL + tl))
        p("v_mov_b32 v%d, v%d" % (vU + 1, vL + tl))
        p("v_permlane32_swap_b32 v%d, v%d" % (vU, vU + 1))
        p("v_add_f32 v%d, v%d, v%d" % (vU, vU, vU + 1))
        p("v_rcp_f32 v%d, v%d" % (vU, vU))
        for a in range(4):
            T = Q(1, 0) + (a & 1) * 16
            for k in range(16):
                p("v_accvgpr_read_b32 v%d, a%d" % (T + k, O(tl, a) + k))
            for k in range(16):
                p("v_mul_f32 v%d, v%d, v%d" % (T + k, T + k, vU))
            for k in range(8):
                p("v_cvt_pk_bf16_f32 v%d, v%d, v%d" % (T + k, T + 2 * k, T + 2 * k + 1))
            for m in range(2):
                p("buffer_store_dwordx4 %s, v%d, s[%d:%d], s%d offen offset:%d" % (rr("v", T + 4 * m, 4), vSt, sC, sC + 3, sCb, m * 512))
            if a < 3:
                p("s_add_u32 s%d, s%d, 0x1000" % (sCb, sCb))
    epilogue(1, sI)
    st_()
    p("s_lshl_b32 s%d, s%d, 2" % (sCnt, sI))
    p("s_sub_u32 s%d, 28, s%d" % (sCnt, sCnt))
    p("P2_ss:")
    iteration(0, (0,), (0,), False)
    iteration(1, (0,), (0,), True)
    p("s_sub_u32 s%d, s%d, 1\ns_cbranch_scc0 P2_ss" % (sCnt, sCnt))
    iteration(0, (0,), (0,), False, tail_k=False, dma=False)
    iteration(1, (), (0,), False, tail_k=False, dma=False)
    st_()
    p("s_sub_u32 s%d, 15, s%d" % (sCnt, sI))
    epilogue(0, sCnt)
    st_()
    st_.dump(vtmp=vU)
    p("P2_exit:\ns_endpgm")
    for s in stubs:
        p.add(s)
    p("P2_event:")
    p("s_cmp_ge_u32 s%d, s%d\ns_cbranch_scc1 P2_ev_hi" % (sStep, sHiTri))
    for tl, tri, nxt in ((1, sLoTri, "s%d" % sHiTri), (0, sHiTri, "-1")):
        if tl == 0:
            p("P2_ev_hi:")
        p("s_cmp_eq_u32 s%d, s%d\ns_cbranch_scc0 P2_ev_full%d" % (sStep, tri, tl))
        for r in range(16):
            p("v_cmp_gt_i32 vcc, %d, v%d" % (8 * (r >> 2) + (r & 3), vLim))
            p("v_cndmask_b32 v%d, v%d, v%d, vcc" % (CI(tl) + r, CI(tl) + r, vNeg))
        p("s_add_u32 s%d, s%d, 1" % (sEvt, sEvt))
        p("s_waitcnt lgkmcnt(0)\ns_setpc_b64 s[%d:%d]" % (sRet, sRet + 1))
        p("P2_ev_full%d:" % tl)
        for r in range(16):
            p("v_mov_b32 v%d, v%d" % (CI(tl) + r, vNeg))
        p("s_mov_b32 s%d, %s" % (sEvt, nxt))
        p("s_waitcnt lgkmcnt(0)\ns_setpc_b64 s[%d:%d]" % (sRet, sRet + 1))
    for par in range(2):
        for tl in range(2):
            p("P2_slow%d%d:" % (par, tl))
            p("s_nop 15")
            p.add(rowmax(par, tl, vU + 2, vU + 3))
            p("v_max_f32 v%d, 0, v%d" % (vU + 2, vU + 2))
            p("v_exp_f32 v%d, -v%d" % (vU + 3, vU + 2))
            for k in range(16):
                for b in (S(par, tl), S(par ^ 1, tl), CI(tl)):
                    p("v_sub_f32 v%d, v%d, v%d" % (b + k, b + k, vU + 2))
            p("v_mul_f32 v%d, v%d, v%d" % (vL + tl, vL + tl, vU + 3))
            for k in range(0, 64, 8):
                for e in range(8):
                    p("v_accvgpr_read_b32 v%d, a%d" % (TMP + 8 + e, O(tl, 0) + k + e))
                for e in range(8):
                    p("v_mul_f32 v%d, v%d, v%d" % (TMP + 8 + e, TMP + 8 + e, vU + 3))
                for e in range(8):
                    p("v_accvgpr_write_b32 a%d, v%d" % (O(tl, 0) + k + e, TMP + 8 + e))
            p.add(sm_units(par, (tl,), 0))
            p.add(sm_units(par, (tl,), 1))
            p("s_nop 1")
            p("s_waitcnt lgkmcnt(0)\ns_setpc_b64 s[%d:%d]" % (sRet, sRet + 1))
    p.finish()
    return p
```

```python
MB = 1 << 20
WS_KV = 0
WS_CTX = 32 * MB
WS_BF = 48 * MB
WS_WOA = 56 * MB
WS_WOB = 62 * MB
WS_OB = 64 * MB
WS_KVP = 68 * MB
WS_FL = 72 * MB
WS_XB = 76 * MB
A_X, A_CKV, A_WQ, A_WUK, A_WUV, A_WO, B_X, B_WQKV, B_WPHI, B_WO, D_OUT, D_DBG, D_WS = [8 * i for i in range(13)]
```

```python
import sys
from asmlib import *
import k_p1, k_p2, k_misc
HDR = open("concat_heads__compressed_kv_cla__linear_kernel_hedgehog__prompt.s.ref").read().split("; Override")[0]
def emit(path, ks):
    hdr = HDR; body = ""; desc = ""
    for name, prog, grid, block, lds in ks:
        b, d = kernel_text(name, prog)
        hdr += "; @launch kernel=%s grid=(%d,1,1) block=(%d,1,1) lds=%d\n" % (name, grid, block, lds)
        body += b; desc += d
    open(path, "w").write(hdr + ".amdgcn_target \"amdgcn-amd-amdhsa--gfx950\"\n" + body + desc)
if __name__ == "__main__":
    ks = [("p1_kernel", k_p1.build_p1(), 256, 256, 163840), ("wo_kernel", k_misc.build_wo(), 148, 256, 40960),
          ("bm1_kernel", k_misc.build_bmid(1), 256, 256, 49152),
          ("bm2_kernel", k_misc.build_bmid(2), 256, 256, 0),
          ("p2_kernel", k_p2.build_p2(), 256, 256, 163840),
          ("p3_kernel", k_misc.build_p3(), 256, 256, 163840)]
    emit(sys.argv[1], ks)
```

```python
import re

TRANS = ("v_exp_f32", "v_log_f32", "v_rcp_f32", "v_rsq_f32", "v_sqrt_f32", "v_sin_f32", "v_cos_f32")
_REG = re.compile(r"^(-|abs\()?([sva])(?:(\d+)|\[(\d+):(\d+)\])\)?$")


def regs_of(tok):
    tok = tok.strip()
    if tok in ("vcc", "exec", "m0", "scc"):
        return [tok]
    if tok in ("vcc_lo", "vcc_hi"):
        return ["vcc"]
    if tok in ("exec_lo", "exec_hi"):
        return ["exec"]
    m = _REG.match(tok)
    if not m:
        return []
    f = m.group(2)
    if m.group(3) is not None:
        return [(f, int(m.group(3)))]
    return [(f, i) for i in range(int(m.group(4)), int(m.group(5)) + 1)]


def split_ops(s):
    out, cur, d = [], "", 0
    for ch in s:
        if ch in "[(":
            d += 1
        if ch in "])":
            d -= 1
        if ch == "," and d == 0:
            out.append(cur.strip())
            cur = ""
        else:
            cur += ch
    if cur.strip():
        out.append(cur.strip())
    return out


class I:
    __slots__ = ("text", "mn", "kind", "rd", "wr", "ops", "mods", "label", "target", "passes",
                 "srcc", "srcab", "data", "cnt", "auto", "note", "xrd")

    def __init__(self, text, note=None, xrd=()):
        self.text = text.strip()
        self.note = note
        self.label = None
        self.target = None
        self.passes = 0
        self.srcc = []
        self.srcab = []
        self.data = []
        self.cnt = None
        self.auto = False
        self.rd, self.wr = set(), set()
        self.mods = []
        self.ops = []
        if self.text.endswith(":"):
            self.kind = "label"
            self.label = self.text[:-1]
            self.mn = ""
            return
        if self.text == "need":
            self.kind = "need"
            self.mn = ""
            self.text = "; need"
            self.rd = set(xrd)
            return
        if self.text.startswith(".") or self.text.startswith(";"):
            self.kind = "dir"
            self.mn = ""
            return
        p = self.text.split(None, 1)
        self.mn = mn = p[0]
        rest = p[1] if len(p) > 1 else ""
        ops = split_ops(rest)
        if ops:
            w = ops[-1].split()
            ops[-1] = w[0]
            self.mods = w[1:]
        self.ops = ops
        R = [regs_of(o) for o in ops]
        flat = lambda xs: [r for x in xs for r in x]
        rd, wr = [], []
        if mn.startswith("v_mfma"):
            self.kind = "mfma"
            self.passes = 8 if "32x32x16" in mn else 4
            wr = R[0]
            rd = flat(R[1:])
            self.srcab = R[1] + R[2]
            self.srcc = R[3]
        elif mn.startswith("v_cmp"):
            self.kind = "valu"
            wr = R[0]
            rd = flat(R[1:])
        elif mn.startswith("v_permlane32_swap") or mn.startswith("v_permlane16_swap") or mn == "v_swap_b32":
            self.kind = "valu"
            wr = flat(R)
            rd = flat(R)
        elif mn in ("v_add_co_u32", "v_sub_co_u32", "v_addc_co_u32", "v_subb_co_u32"):
            self.kind = "valu"
            wr = R[0] + R[1]
            rd = flat(R[2:])
        elif mn.startswith("v_"):
            self.kind = "trans" if mn in TRANS else "valu"
            wr = R[0] if R else []
            rd = flat(R[1:])
            if mn.startswith("v_fmac") or mn.startswith("v_writelane") or mn.startswith("v_dot2c"):
                rd += R[0]
        elif mn.startswith("ds_read") or mn.startswith("ds_bpermute") or mn.startswith("ds_swizzle") or mn.startswith("ds_permute"):
            self.kind = "ds"
            self.cnt = "lgkm"
            wr = R[0]
            rd = flat(R[1:])
        elif mn.startswith("ds_"):
            self.kind = "ds"
            self.cnt = "lgkm"
            rd = flat(R)
        elif mn.startswith("buffer_load") or mn.startswith("global_load"):
            self.kind = "vmem"
            self.cnt = "vm"
            if "lds" in self.mods:
                rd = flat(R) + ["m0"]
                self.kind = "dma"
            else:
                wr = R[0]
                rd = flat(R[1:])
        elif mn.startswith("buffer_store"):
            self.kind = "vmem"
            self.cnt = "vm"
            rd = flat(R)
            self.data = R[0]
        elif mn.startswith("global_store"):
            self.kind = "vmem"
            self.cnt = "vm"
            rd = flat(R)
            self.data = R[1]
        elif mn.startswith("buffer_atomic"):
            self.kind = "vmem"
            self.cnt = "vm"
            rd = flat(R)
            if "sc0" in self.mods:
                wr = R[0]
        elif mn.startswith("buffer_wbl2") or mn.startswith("buffer_inv"):
            self.kind = "vmem"
            self.cnt = "vm"
        elif mn.startswith("s_load") or mn.startswith("s_buffer_load") or mn in ("s_memtime", "s_memrealtime"):
            self.kind = "smem"
            self.cnt = "smem"
            wr = R[0]
            rd = flat(R[1:])
        elif mn in ("s_branch",) or mn.startswith("s_cbranch"):
            self.kind = "branch"
            self.target = ops[0]
            if "scc" in mn:
                rd = ["scc"]
            elif "vcc" in mn:
                rd = ["vcc"]
            elif "exec" in mn:
                rd = ["exec"]
        elif mn == "s_call_b64":
            self.kind = "call"
            self.target = ops[1]
            wr = R[0]
        elif mn == "s_setpc_b64":
            self.kind = "ret"
            rd = R[0]
        elif mn == "s_endpgm":
            self.kind = "end"
        elif mn == "s_waitcnt":
            self.kind = "wait"
        elif mn == "s_nop":
            self.kind = "nop"
        elif mn in ("s_barrier", "s_sleep", "s_setprio"):
            self.kind = "salu"
        elif mn.startswith("s_cmp") or mn.startswith("s_bitcmp"):
            self.kind = "salu"
            rd = flat(R)
            wr = ["scc"]
        elif mn.startswith("s_"):
            self.kind = "salu"
            wr = list(R[0]) if R else []
            rd = flat(R[1:])
            if "saveexec" in mn:
                wr += ["exec"]
                rd += ["exec"]
            if mn.startswith("s_cselect") or mn.startswith("s_addc") or mn.startswith("s_subb"):
                rd += ["scc"]
            if mn in ("s_addk_i32", "s_mulk_i32") or mn.startswith("s_bitset"):
                rd += R[0]
            if not (mn.startswith("s_mov") or mn.startswith("s_cselect") or mn.startswith("s_mul") or mn.startswith("s_getreg") or mn.startswith("s_getpc")):
                wr += ["scc"]
        else:
            raise ValueError("unknown instruction: " + text)
        self.rd, self.wr = set(rd) | set(xrd), set(wr)

    def states(self):
        if self.kind in ("label", "dir", "need"):
            return 0
        if self.kind == "nop":
            return int(self.ops[0], 0) + 1
        return 1


def is_valu(i):
    return i.kind in ("valu", "trans")


def vec(rs):
    return {r for r in rs if isinstance(r, tuple) and r[0] in "va"}


def sca(rs):
    return {r for r in rs if r == "vcc" or (isinstance(r, tuple) and r[0] == "s")}


def need_states(p, c):
    n = 0
    if is_valu(p):
        pw = vec(p.wr)
        if c.kind == "mfma" and pw & c.rd:
            n = max(n, 2)
        if p.kind == "trans" and c.kind in ("valu", "mfma", "vmem", "ds", "dma") and pw & c.rd:
            n = max(n, 1)
        if (c.mn.startswith("v_readfirstlane") or c.mn.startswith("v_readlane")) and pw & c.rd:
            n = max(n, 1)
        if c.mn.startswith("v_permlane") and pw & c.rd:
            n = max(n, 2)
        if is_valu(c) and any(m.startswith("row_") or m.startswith("quad_perm") or m.startswith("wave_") for m in c.mods) and pw & c.rd:
            n = max(n, 2)
        ps = sca(p.wr)
        if ps & c.rd:
            if is_valu(c):
                n = max(n, 4 if (c.mn.startswith("v_readlane") or c.mn.startswith("v_writelane")) else 2)
            if c.kind in ("vmem", "dma"):
                n = max(n, 5)
            if c.kind in ("salu", "branch", "smem"):
                n = max(n, 1)
        if "exec" in p.wr:
            n = max(n, 5)
    if p.kind == "mfma":
        big = p.passes == 8
        D = p.wr
        if c.kind == "mfma":
            if D & set(c.srcab):
                n = max(n, 12 if big else 8)
            cc = set(c.srcc)
            if D & cc and not (cc == D and c.passes == p.passes):
                n = max(n, 10 if big else 6)
            if D & c.wr and not (c.wr == D and cc == D):
                n = max(n, 10 if big else 6) if c.wr != D else n
        elif is_valu(c) or c.kind in ("vmem", "ds", "dma"):
            if D & (c.rd | c.wr):
                n = max(n, 12 if big else 8)
        if is_valu(c) and set(p.srcc) & c.wr:
            n = max(n, 7 if big else 3)
    if p.kind == "salu" and "m0" in p.wr and c.kind == "dma":
        n = max(n, 1)
    if p.kind == "vmem" and len(p.data) >= 3 and set(p.data) & c.wr:
        n = max(n, 2 if is_valu(c) else 1)
    return n


class Prog:
    def __init__(self):
        self.ins = []
        self._lab = 0

    def __call__(self, text, **kw):
        for line in text.split("\n"):
            line = line.split(";")[0].strip() if not line.strip().startswith(";") else line.strip()
            if line:
                self.ins.append(I(line, **kw))

    def add(self, items):
        for x in items:
            if isinstance(x, I):
                self.ins.append(x)
            elif isinstance(x, (list, tuple)):
                self.add(x)
            else:
                self(x)

    def newlabel(self, base="L"):
        self._lab += 1
        return "%s_%d" % (base, self._lab)

    def _cfg(self):
        ins = self.ins
        lab = {i.label: k for k, i in enumerate(ins) if i.kind == "label"}
        succ = [[] for _ in ins]
        calls = {}
        for k, i in enumerate(ins):
            if i.kind == "call":
                calls.setdefault(i.target, []).append(k + 1)
        cur = []
        for k, i in enumerate(ins):
            if i.kind == "label" and i.label in calls:
                pv = ins[k - 1]
                if pv.kind in ("ret", "end") or pv.mn == "s_branch":
                    cur = []
                cur = cur + [i.label]
            if i.kind == "end":
                continue
            if i.kind == "ret":
                succ[k] = [t for c in cur for t in calls[c]]
                continue
            if i.kind == "call":
                succ[k] = [lab[i.target]]
                continue
            if i.kind == "branch":
                succ[k].append(lab[i.target])
                if i.mn == "s_branch":
                    continue
            if k + 1 < len(ins):
                succ[k].append(k + 1)
        pred = [[] for _ in ins]
        for k, s in enumerate(succ):
            for t in s:
                pred[t].append(k)
        return succ, pred

    @staticmethod
    def _parse_wait(i):
        vm = re.search(r"vmcnt\((\d+)\)", i.text)
        lg = re.search(r"lgkmcnt\((\d+)\)", i.text)
        return (int(vm.group(1)) if vm else None, int(lg.group(1)) if lg else None)

    def insert_waits(self):
        while True:
            succ, pred = self._cfg()
            ins = self.ins
            n = len(ins)
            IN = {(0, None): {}}
            work = [(0, None)]
            needc = {}

            def want(i, st):
                vm = lg = None
                for r in (i.rd | i.wr):
                    e = st.get(r)
                    if e is None:
                        continue
                    if e[0] == "vm":
                        if i.cnt == "vm" and r in i.wr and r not in i.rd:
                            continue
                        vm = e[1] if vm is None else min(vm, e[1])
                    elif e[0] == "lgkm":
                        if i.cnt == "lgkm" and r in i.wr and r not in i.rd:
                            continue
                        lg = e[1] if lg is None else min(lg, e[1])
                    else:
                        lg = 0
                if lg is not None and any(e[0] == "smem" for e in st.values()):
                    lg = 0
                if vm is not None:
                    vm = min(vm, 63)
                if lg is not None:
                    lg = min(lg, 15)
                return vm, lg

            def apply_wait(st, vm, lg):
                out = {}
                for r, e in st.items():
                    if e[0] == "vm" and vm is not None and e[1] >= vm:
                        continue
                    if e[0] == "lgkm" and lg is not None and e[1] >= lg:
                        continue
                    if e[0] == "smem" and lg == 0:
                        continue
                    out[r] = e
                return out

            while work:
                key = work.pop()
                k, ctx = key
                i = ins[k]
                st = IN[key]
                if i.kind == "wait":
                    st = apply_wait(st, *self._parse_wait(i))
                elif i.kind not in ("label", "dir"):
                    vm, lg = want(i, st)
                    if vm is not None or lg is not None:
                        needc[key] = (vm, lg)
                        st = apply_wait(st, vm, lg)
                    elif key in needc:
                        del needc[key]
                    if i.cnt:
                        cls = ("vm",) if i.cnt == "vm" else ("lgkm",)
                        st = {r: ((e[0], min(e[1] + 1, 99)) if e[0] in cls else e) for r, e in st.items()}
                        for r in i.wr:
                            st[r] = (i.cnt, 0)
                if i.kind == "call":
                    assert ctx is None, "nested call"
                    nxt = [(succ[k][0], k + 1)]
                elif i.kind == "ret":
                    nxt = [(ctx, None)]
                else:
                    nxt = [(t, ctx) for t in succ[k]]
                for t in nxt:
                    old = IN.get(t)
                    if old is None:
                        IN[t] = dict(st)
                        work.append(t)
                    else:
                        ch = False
                        for r, e in st.items():
                            o = old.get(r)
                            if o is None or (o[0] == e[0] and e[1] < o[1]):
                                old[r] = e
                                ch = True
                            elif o[0] != e[0]:
                                raise ValueError("mixed counters on %s at %s" % (r, ins[t[0]].text))
                        if ch:
                            work.append(t)
            need = {}
            mn = lambda x, y: y if x is None else (x if y is None else min(x, y))
            for (k, ctx), (vm, lg) in needc.items():
                o = need.get(k, (None, None))
                need[k] = (mn(o[0], vm), mn(o[1], lg))
            if not need:
                return
            out = []
            for k, i in enumerate(ins):
                if k in need:
                    vm, lg = need[k]
                    t = "s_waitcnt" + (" vmcnt(%d)" % vm if vm is not None else "") + (" lgkmcnt(%d)" % lg if lg is not None else "")
                    w = I(t)
                    w.auto = True
                    out.append(w)
                out.append(i)
            self.ins = out

    def insert_nops(self, verbose=False):
        total = 0
        while True:
            succ, pred = self._cfg()
            ins = self.ins
            add = {}
            for k, c in enumerate(ins):
                if c.kind in ("label", "dir", "nop", "wait", "end", "need"):
                    continue
                worst = 0
                stack = [(p, 0) for p in pred[k]]
                seen = {}
                while stack:
                    p, d = stack.pop()
                    if d >= 12 or seen.get(p, 99) <= d:
                        continue
                    seen[p] = d
                    pi = ins[p]
                    if pi.kind not in ("label", "dir", "nop", "wait", "need"):
                        worst = max(worst, need_states(pi, c) - d)
                    d2 = d + pi.states() + add.get(p, 0)
                    for q in pred[p]:
                        stack.append((q, d2))
                if worst > 0:
                    add[k] = worst
            if not add:
                return total
            out = []
            for k, i in enumerate(ins):
                if k in add:
                    w = I("s_nop %d" % (add[k] - 1))
                    w.auto = True
                    out.append(w)
                    total += 1
                    if verbose:
                        print("nop %d before %s" % (add[k], i.text))
                out.append(i)
            self.ins = out

    def finish(self, verbose=False):
        self.insert_waits()
        self.insert_nops(verbose)

    def text(self):
        out = []
        for i in self.ins:
            if i.kind == "need":
                continue
            if i.kind == "label" or i.kind == "dir":
                out.append(i.text)
            else:
                out.append("  " + i.text + (" ; auto" if i.auto else "") + (" ; " + i.note if i.note else ""))
        return "\n".join(out) + "\n"

    def maxreg(self, f):
        m = -1
        for i in self.ins:
            for r in (i.rd | i.wr):
                if isinstance(r, tuple) and r[0] == f:
                    m = max(m, r[1])
        return m


def rr(f, lo, n=1):
    return "%s%d" % (f, lo) if n == 1 else "%s[%d:%d]" % (f, lo, lo + n - 1)


def interleave(mfmas, slots):
    out = list(slots.get(-1, []))
    for k, m in enumerate(mfmas):
        out.append(m)
        out += slots.get(k, [])
    return out


def spread(items, lo, hi, slots):
    n = len(items)
    w = hi - lo + 1
    for k, it in enumerate(items):
        s = lo + (k * w) // n
        slots.setdefault(s, [])
        if isinstance(it, (list, tuple)):
            slots[s] += list(it)
        else:
            slots[s].append(it)


def kernel_text(name, prog, sgprs=102, force_vgpr=None):
    nv = prog.maxreg("v") + 1
    na = prog.maxreg("a") + 1
    acc = max(4, (nv + 3) // 4 * 4)
    tot = acc + na if na else nv
    if force_vgpr:
        tot = max(tot, force_vgpr)
    body = ".text\n.globl %s\n.p2align 8\n.type %s,@function\n%s:\n" % (name, name, name) + prog.text()
    desc = """.section .rodata,"a"
.p2align 6
.amdhsa_kernel %s
  .amdhsa_next_free_vgpr %d
  .amdhsa_next_free_sgpr %d
  .amdhsa_accum_offset %d
  .amdhsa_group_segment_fixed_size 0
  .amdhsa_kernarg_size 104
  .amdhsa_user_sgpr_count 2
  .amdhsa_user_sgpr_kernarg_segment_ptr 1
  .amdhsa_system_sgpr_workgroup_id_x 1
.end_amdhsa_kernel
""" % (name, tot, sgprs, acc)
    return body, desc


import os
STAMPS = bool(int(os.environ.get("STAMPS", "0")))
WS_STAMP = 200 << 20
class Stamper:
    def __init__(self, p, vreg, sreg=100, kid=0):
        self.p, self.v, self.s, self.n, self.kid = p, vreg, sreg, 0, kid
    def ins(self, n=None):
        if not STAMPS:
            return []
        if n is None:
            n = self.n
            self.n += 1
        return ["s_memtime s[%d:%d]" % (self.s, self.s + 1), "s_memrealtime s[%d:%d]" % (self.s - 2, self.s - 1), "s_waitcnt lgkmcnt(0)",
                "v_writelane_b32 v%d, s%d, %d" % (self.v, self.s, n), "v_writelane_b32 v%d, s%d, %d" % (self.v, self.s - 2, 32 + n)]
    def __call__(self, n=None):
        self.p.add(self.ins(n))
    def dump(self, vtmp=1):
        if not STAMPS:
            return
        p = self.p
        p("s_memrealtime s[%d:%d]\ns_waitcnt lgkmcnt(0)\nv_writelane_b32 v%d, s%d, %d" % (self.s, self.s + 1, self.v, self.s, self.n))
        p("s_load_dwordx2 s[96:97], s[0:1], 96\ns_waitcnt lgkmcnt(0) vmcnt(0)")
        p("s_add_u32 s96, s96, 0x%x\ns_addc_u32 s97, s97, 0\ns_mov_b32 s98, 0x100000\ns_mov_b32 s99, 0x20000" % (WS_STAMP + (self.kid << 20)))
        p("v_lshlrev_b32 v%d, 2, v0\ns_lshl_b32 s95, s2, 10" % vtmp)
        p("buffer_store_dword v%d, v%d, s[96:99], s95 offen" % (self.v, vtmp))


def cost(t):
    i = t if isinstance(t, I) else I(t)
    if i.kind in ("label", "dir"):
        return 0
    if i.kind == "trans":
        return 8
    if i.kind == "branch":
        return 8
    if i.mn == "s_barrier":
        return 16
    return 4

def isv(t):
    i = t if isinstance(t, I) else I(t)
    return i.kind in ("valu", "trans")

class Gaps:
    def __init__(self, n, budget=24):
        self.n, self.budget = n, budget
        self.nv = [[] for _ in range(n)]
        self.va = [[] for _ in range(n)]
        self.post = [[] for _ in range(n)]
    def load(self, g):
        c = sum(cost(t) for t in self.nv[g])
        c = max(0, c - 4)
        c += sum(cost(t) for t in self.va[g])
        if self.post[g]:
            c += sum(cost(t) for t in self.post[g]) + (8 if self.va[g] else 0)
        return c
    def put(self, g, items, post=False):
        if not isinstance(items, (list, tuple)):
            items = [items]
        for t in items:
            if post:
                self.post[g].append(t)
            elif isv(t):
                self.va[g].append(t)
            else:
                self.nv[g].append(t)
    def spread(self, items, lo, hi):
        n, w = len(items), hi - lo + 1
        for k, it in enumerate(items):
            self.put(lo + (k * w) // n, it)
    def lightest(self, items, lo, hi):
        g = min(range(lo, hi + 1), key=lambda x: (len(self.nv[x]), x))
        self.put(g, items)
        return g
    def stream(self, items, lo, hi):
        for b in range(4, 200, 4):
            g, plan, ld = lo, [], {x: self.load(x) for x in range(lo, hi + 1)}
            ok = True
            for t in items:
                c = cost(t)
                while g <= hi and ld[g] + c > b:
                    g += 1
                if g > hi:
                    ok = False
                    break
                ld[g] += c
                plan.append(g)
            if ok:
                for g, t in zip(plan, items):
                    self.va[g].append(t)
                return plan[-1] if plan else lo
        raise ValueError("stream does not fit")
    def gap(self, g):
        return self.nv[g] + self.va[g] + self.post[g]
    def emit(self, mfmas, lo=0, hi=None):
        out = []
        for k in range(lo, self.n if hi is None else hi):
            out.append(mfmas[k])
            out += self.gap(k)
        return out
    def report(self):
        return [self.load(g) for g in range(self.n)]
```

```python
from asmlib import *
from layout import *
from k_p1 import srd, x_rd_addr, w_rd_addr, MF
import os, struct

def f2u(x):
    return struct.unpack("<I", struct.pack("<f", x))[0]

NEG = 0xF149F2CA
THRESH = int(os.environ.get("THRESH", "0x5F800000"), 0)
QSCALE = f2u((128 ** -0.5) * 1.4426950408889634)
LOG2E = f2u(1.4426950408889634)
WT = os.environ.get("WT", "sc0 sc1")
PREFETCH = int(os.environ.get("PREFETCH", "1"))
QS = 49152

def build_main():
    p = Prog()
    sX, sW, sO, sKV, sC, sD = 4, 8, 12, 16, 20, 24
    sH, sI, sWave, sW8, sW4, sT, sT2, sOff, sXcd, sIdx = 28, 29, 30, 31, 32, 33, 34, 35, 36, 37
    sXa, sXb, sWo, sWst, sWrS, sRdS, sDl, sTB, sCB, sF12 = 38, 39, 40, 41, 42, 43, 44, 45, 46, 47
    sRd, sWr, sG, sStep, sEvt, sLoTri, sHiTri, sThr, sCnt, sCb = 38, 39, 40, 41, 42, 43, 44, 45, 46, 47
    sRet = 48
    sTT, sL2, sSpin = 50, 51, 52
    P = 56
    ptr = lambda off: P + off // 4
    sPhi, sBF, sY = 84, 88, 92
    vLane = 1
    vX, vW, vXr, vWr = 2, 6, 10, 14
    vL16, t0, t1, t2, vDum, vStamp = 18, 19, 20, 21, 22, 23
    vA = 24
    vU = 26
    vDma, vLim, vNeg, vCt, vB, vL, vLt = 2, 3, 4, 5, 6, 8, 10
    ACC, PK, TMP, AW = 32, 160, 224, 240
    S = lambda par, tl: 32 + par * 32 + tl * 16
    CI = lambda tl: 96 + tl * 16
    PP = lambda par, tl: 128 + par * 16 + tl * 8
    Q = lambda tl, ds: 160 + tl * 32 + ds * 4
    O = lambda tl, a: tl * 64 + a * 16
    FB = lambda j: 128 + j * 4
    tail = []

    p("s_cmp_ge_u32 s2, 256\ns_cbranch_scc1 M_exit")
    p("s_load_dwordx16 s[%d:%d], s[0:1], 0" % (P, P + 15))
    p("s_load_dwordx8 s[%d:%d], s[0:1], 64" % (P + 16, P + 23))
    p("s_load_dwordx2 s[%d:%d], s[0:1], 96" % (P + 24, P + 25))
    st_ = Stamper(p, vStamp, kid=0)
    p("v_and_b32 v%d, 63, v0" % vLane)
    p("v_lshrrev_b32 v%d, 6, v0" % t0)
    p("v_readfirstlane_b32 s%d, v%d" % (sWave, t0))
    p("s_and_b32 s%d, s2, 7" % sXcd)
    p("s_lshr_b32 s%d, s2, 3" % sIdx)
    p("s_lshl_b32 s%d, s%d, 1" % (sTB, sXcd))
    p("s_cmp_ge_u32 s%d, 15" % sIdx)
    p("s_cselect_b32 s%d, 15, 0" % sT)
    p("s_addc_u32 s%d, s%d, 0" % (sTB, sTB))
    p("s_sub_u32 s%d, s%d, s%d" % (sCB, sIdx, sT))
    p("s_lshl_b32 s%d, s%d, 13" % (sW8, sWave))
    p("s_lshl_b32 s%d, s%d, 12" % (sW4, sWave))
    p("s_lshl_b32 s%d, s%d, 2" % (sH, sXcd))
    p("s_lshr_b32 s%d, s%d, 3" % (sT, sIdx))
    p("s_add_u32 s%d, s%d, s%d" % (sH, sH, sT))
    p("s_and_b32 s%d, s%d, 7" % (sI, sIdx))

    def x_voffs(pitch, wave_rows):
        r = ["v_lshrrev_b32 v%d, 3, v%d" % (t0, vLane),
             "s_mul_i32 s%d, s%d, %d" % (sT, sWave, wave_rows),
             "v_add_u32 v%d, s%d, v%d" % (t0, sT, t0),
             "v_mul_u32_u24 v%d, %d, v%d" % (t0, pitch, t0),
             "v_lshrrev_b32 v%d, 4, v%d" % (t1, vLane),
             "v_and_b32 v%d, 7, v%d" % (t2, vLane),
             "v_xor_b32 v%d, v%d, v%d" % (t2, t2, t1),
             "v_lshl_add_u32 v%d, v%d, 4, v%d" % (vX, t2, t0),
             "v_xor_b32 v%d, 4, v%d" % (t2, t2),
             "v_lshl_add_u32 v%d, v%d, 4, v%d" % (vX + 1, t2, t0),
             "v_add_u32 v%d, %d, v%d" % (vX + 1, 8 * pitch - 1024, vX + 1),
             "v_add_u32 v%d, %d, v%d" % (vX + 2, 2 * (8 * pitch - 1024), vX),
             "v_add_u32 v%d, %d, v%d" % (vX + 3, 2 * (8 * pitch - 1024), vX + 1)]
        return r
    def w_voffs(pitch):
        r = ["v_lshrrev_b32 v%d, 4, v%d" % (t0, vLane),
             "v_lshlrev_b32 v%d, 2, v%d" % (t1, t0),
             "s_lshl_b32 s%d, s%d, 4" % (sT, sWave),
             "v_add_u32 v%d, s%d, v%d" % (t0, sT, t0),
             "v_mul_u32_u24 v%d, %d, v%d" % (t0, pitch, t0),
             "v_and_b32 v%d, 15, v%d" % (t2, vLane),
             "v_xor_b32 v%d, v%d, v%d" % (t2, t2, t1),
             "v_lshl_add_u32 v%d, v%d, 4, v%d" % (vW, t2, t0)]
        r += ["v_add_u32 v%d, %d, v%d" % (vW + k, k * (4 * pitch - 1024), vW) for k in range(1, 4)]
        return r
    dmaX = lambda grp: [["s_add_u32 m0, s%d, s%d" % (sWrS, sW8)] if grp == 0 else ["s_add_u32 m0, m0, 0x1000"]] + \
        ["buffer_load_dwordx4 v%d, s[%d:%d], s%d offen offset:%d lds" % (vX + q, sX, sX + 3, sXb if grp else sXa, q * 1024) for q in range(4)]
    dmaW = lambda: [["s_add_u32 s%d, s%d, s%d" % (sT, sWrS, sW4), "s_add_u32 m0, s%d, 0x8000" % sT]] + \
        ["buffer_load_dwordx4 v%d, s[%d:%d], s%d offen offset:%d lds" % (vW + k, sW, sW + 3, sWo, k * 1024) for k in range(4)]
    dma_adv = ["s_addk_i32 s%d, 128" % sXa, "s_addk_i32 s%d, 128" % sXb, "s_add_u32 s%d, s%d, s%d" % (sWo, sWo, sWst),
               "s_add_u32 s%d, s%d, 0x%x" % (sWrS, sWrS, QS), "s_cmp_eq_u32 s%d, 0x%x" % (sWrS, 3 * QS), "s_cselect_b32 s%d, 0, s%d" % (sWrS, sWrS)]
    rd_adv = ["s_add_u32 s%d, s%d, 1" % (sRdS, sRdS), "s_cmp_eq_u32 s%d, 3" % sRdS, "s_cselect_b32 s%d, 0, s%d" % (sRdS, sRdS),
              "s_mov_b32 s%d, 0x%x" % (sDl, QS), "s_cselect_b32 s%d, 0x%x, s%d" % (sDl, (-2 * QS) & 0xffffffff, sDl)]

    def set_dma_B():
        p("s_mul_i32 s%d, s%d, %d" % (sT, sTB, 128 * 1280))
        srd(p, sX, ptr(B_X), off_s=sT, nrec=128 * 1280)
        p("s_lshl_b32 s%d, s%d, 8" % (sT, sCB))
        srd(p, sW, ptr(B_WQKV), off_s=sT)
        p("s_sub_u32 s%d, %d, s%d" % (sW + 2, 640 * 3840, sT))
        p("s_mov_b32 s%d, 0\ns_mov_b32 s%d, 0\ns_mov_b32 s%d, 0\ns_mov_b32 s%d, %d" % (sXa, sXb, sWo, sWst, 64 * 3840))
    def set_dma_W(which, rows):
        p("s_lshl_b32 s%d, s%d, 8" % (sT, sH))
        srd(p, sW, ptr(which), off_s=sT)
        p("s_sub_u32 s%d, %d, s%d" % (sW + 2, rows * 8192, sT))
        p("s_mov_b32 s%d, 0\ns_mov_b32 s%d, %d" % (sWo, sWst, 64 * 8192))
    def set_dma_K():
        p("s_lshl_b32 s%d, s%d, 18" % (sT, sI))
        srd(p, sX, ptr(A_CKV), off_s=sT, nrec=256 * 1024)
        set_dma_W(A_WUK, 512)
        p("s_mov_b32 s%d, 0\ns_mov_b32 s%d, %d" % (sXa, sXb, 32 * 1024))
        p.add(x_voffs(1024, 64))
        p.add(w_voffs(8192))
    def set_dma_V():
        set_dma_W(A_WUV, 512)
        p("s_mov_b32 s%d, 0\ns_mov_b32 s%d, %d" % (sXa, sXb, 32 * 1024))
    def set_dma_Q():
        srd(p, sX, ptr(A_X), nrec=2048 * 1280)
        set_dma_W(A_WQ, 640)
        p("s_mul_i32 s%d, s%d, %d" % (sXb, sI, 128 * 1280))
        p("s_sub_u32 s%d, %d, s%d" % (sXa, 15 * 128 * 1280, sXb))
        p.add(x_voffs(1280, 32))
    def set_dma_off():
        p("s_mov_b32 s%d, 0\ns_mov_b32 s%d, 0" % (sX + 2, sW + 2))

    def pf_lin(which, total, k):
        share = total // 32
        r = ["s_mul_i32 s%d, s%d, %d" % (sT, sIdx, share), "s_add_u32 s%d, s%d, s%d" % (sT, sT, sW8),
             "s_add_u32 s%d, s%d, %d" % (sT, sT, k * 32768),
             "v_lshl_add_u32 v%d, v%d, 7, s%d" % (t0, vLane, sT), "v_min_u32 v%d, %d, v%d" % (t0, total - 128, t0),
             "global_load_dword v%d, v%d, s[%d:%d]" % (vDum, t0, ptr(which), ptr(which) + 1)]
        return r
    def pf_w(which, rows):
        share = rows // 32
        r = ["s_mul_i32 s%d, s%d, %d" % (sT, sIdx, share), "s_lshl_b32 s%d, s%d, 3" % (sT2, sWave), "s_add_u32 s%d, s%d, s%d" % (sT, sT, sT2),
             "v_lshrrev_b32 v%d, 3, v%d" % (t0, vLane), "v_add_u32 v%d, s%d, v%d" % (t0, sT, t0), "v_min_u32 v%d, %d, v%d" % (t0, rows - 1, t0),
             "v_lshlrev_b32 v%d, 13, v%d" % (t0, t0), "v_and_b32 v%d, 7, v%d" % (t1, vLane), "v_lshl_add_u32 v%d, v%d, 7, v%d" % (t0, t1, t0),
             "s_lshl_b32 s%d, s%d, 10" % (sT, sXcd), "v_add_u32 v%d, s%d, v%d" % (t0, sT, t0),
             "global_load_dword v%d, v%d, s[%d:%d]" % (vDum, t0, ptr(which), ptr(which) + 1)]
        return r
    dummy = lambda: ["global_load_dword v%d, v%d, s[%d:%d]" % (vDum, vL16, ptr(B_WPHI), ptr(B_WPHI) + 1)]
    if not PREFETCH:
        pf_lin = lambda *a: dummy()
        pf_w = lambda *a: dummy()

    p.add(x_voffs(1280, 32))
    p.add(w_voffs(3840))
    p("v_lshlrev_b32 v%d, 4, v%d" % (vL16, vLane))
    p("s_mov_b32 s%d, 0\ns_mov_b32 s%d, 0\ns_mov_b32 s%d, 0" % (sWrS, sRdS, sF12))
    p("s_waitcnt lgkmcnt(0)")
    st_()
    p("s_cmp_ge_u32 s2, 240\ns_cbranch_scc1 M_nob")
    set_dma_B()
    for s in range(2):
        p.add(dmaX(0) + dmaW() + dma_adv)
    for k in range(3):
        p.add(pf_lin(B_WQKV, 640 * 3840, k))
    x_rd_addr(p, vXr, vLane, t0, t1)
    p("s_lshr_b32 s%d, s%d, 1" % (sT, sWave))
    p("s_lshl_b32 s%d, s%d, 14" % (sT, sT))
    for ks in range(4):
        p("v_add_u32 v%d, s%d, v%d" % (vXr + ks, sT, vXr + ks))
    p("s_and_b32 s%d, s%d, 1" % (sT, sWave))
    p("s_lshl_b32 s%d, s%d, 1" % (sT, sT))
    p("v_mov_b32 v%d, s%d" % (t2, sT))
    w_rd_addr(p, vWr, vLane, t0, t1, t2)
    p("v_xor_b32 v%d, 64, v%d" % (vWr + 1, vWr))
    for k in range(64):
        p("v_mov_b32 v%d, 0" % (ACC + k))
    bfx = lambda st, k, i: 128 + st * 32 + k * 16 + i * 4
    bfw = lambda st, k, i: 128 + st * 32 + k * 16 + 8 + i * 4
    def b_reads(st):
        r = []
        for k in range(2):
            ks = st * 2 + k
            for i in range(2):
                r.append("ds_read_b128 %s, v%d offset:%d" % (rr("a", bfx(st, k, i), 4), vXr + ks, i * 8192))
                for u in range(2):
                    r.append("ds_read_b64_tr_b16 %s, v%d offset:%d" % (rr("a", bfw(st, k, i) + 2 * u, 2), vWr + i, 32768 + ks * 4096 + u * 1024))
        return r
    def b_body(var):
        q = Prog()
        q("M_bbody%d:" % var)
        for st in range(2):
            mf = []
            for k in range(2):
                for b in range(2):
                    for c in range(2):
                        a = rr("v", ACC + (b * 2 + c) * 16, 16)
                        X, W = rr("a", bfx(st, k, b), 4), rr("a", bfw(st, k, c), 4)
                        A, B = (X, W) if var else (W, X)
                        mf.append("%s %s, %s, %s, %s" % (MF, a, A, B, a))
            slots = {}
            if st == 0:
                slots[-1] = ["s_waitcnt lgkmcnt(0)"]
                spread(b_reads(1), 0, 5, slots)
                spread(dmaW(), 0, 3, slots)
                spread(dmaX(0), 4, 7, slots)
                slots[7] += ["s_cmp_eq_u32 s%d, 0" % sF12, "s_cbranch_scc1 M_bskip%d" % var] + [x for g in dmaX(1) for x in (g if isinstance(g, list) else [g])] + ["M_bskip%d:" % var]
                slots[6] += rd_adv
            else:
                slots[-1] = ["s_waitcnt vmcnt(10) lgkmcnt(0)", "s_barrier"]
                slots[0] = ["v_add_u32 v%d, s%d, v%d" % (r, sDl, r) for r in (vXr, vWr, vWr + 1, vXr + 1)]
                spread(b_reads(0), 1, 6, slots)
                slots.setdefault(6, []).extend(dma_adv)
                slots.setdefault(7, []).extend(["v_add_u32 v%d, s%d, v%d" % (r, sDl, r) for r in (vXr + 2, vXr + 3)])
            q.add(interleave(mf, slots))
        q("s_setpc_b64 s[%d:%d]" % (sRet, sRet + 1))
        return q.ins
    tail += b_body(0) + b_body(1)
    st_()
    p("s_waitcnt vmcnt(11)\ns_barrier")
    st_()
    p.add(b_reads(0))
    bslot = [pf_lin(A_CKV, 2 * MB, 0) + pf_lin(A_CKV, 2 * MB, 1), pf_w(A_WUK, 512) + pf_w(A_WUV, 512)] + [dummy() + dummy()] * 8
    p("s_cmp_ge_u32 s%d, 10\ns_cbranch_scc1 M_bv" % sCB)
    for var in range(2):
        if var:
            p("M_bv:")
        for s in range(10):
            if s in (2, 8):
                if s == 8:
                    p("s_call_b64 s[%d:%d], M_setK" % (sRet, sRet + 1))
                p("s_mov_b32 s%d, %d" % (sCnt + 7, 5 if s == 2 else 1))
                p("M_bl%d_%d:" % (var, s))
                p.add(bslot[s])
                p("s_call_b64 s[%d:%d], M_bbody%d" % (sRet, sRet + 1, var))
                p("s_sub_u32 s%d, s%d, 1\ns_cbranch_scc0 M_bl%d_%d" % (sCnt + 7, sCnt + 7, var, s))
            elif s < 2:
                p.add(bslot[s])
                p("s_call_b64 s[%d:%d], M_bbody%d" % (sRet, sRet + 1, var))
        if var == 0:
            p("s_branch M_bdone")
    q = Prog()
    pp, p = p, q
    p("M_setK:")
    set_dma_K()
    p("s_mov_b32 s%d, 1" % sF12)
    p("s_setpc_b64 s[%d:%d]" % (sRet, sRet + 1))
    p("M_nob:")
    p("s_call_b64 s[%d:%d], M_setK" % (sRet, sRet + 1))
    p("s_mov_b32 s%d, 0x%x\ns_mov_b32 s%d, 1" % (sWrS, QS, sRdS))
    for s in range(2):
        p.add(dmaX(0) + dmaX(1) + dmaW() + dma_adv)
    p("s_waitcnt vmcnt(12)\ns_barrier")
    p("s_branch M_bdone")
    tail += q.ins
    p = pp
    p("M_bdone:")
    st_()

    x_rd_addr(p, vXr, vLane, t0, t1)
    p("s_add_u32 s%d, s%d, 0x%x" % (sT, sW8, QS))
    for ks in range(4):
        p("v_add_u32 v%d, s%d, v%d" % (vXr + ks, sT, vXr + ks))
    p("v_mov_b32 v%d, 0" % t2)
    w_rd_addr(p, vWr, vLane, t0, t1, t2)
    for c in range(1, 4):
        p("v_xor_b32 v%d, %d, v%d" % (vWr + c, c * 64, vWr))
    for c in range(4):
        p("v_add_u32 v%d, 0x%x, v%d" % (vWr + c, QS, vWr + c))
    qfx = lambda st, i: 128 + st * 24 + i * 4
    qfw = lambda st, i: 128 + st * 24 + 8 + i * 4
    qacc = lambda tl, a: ACC + (tl * 4 + a) * 16
    def q_reads(st, ks):
        r = []
        for i in range(4):
            if i < 2:
                r.append("ds_read_b128 %s, v%d offset:%d" % (rr("a", qfx(st, i), 4), vXr + ks, i * 4096))
            for u in range(2):
                r.append("ds_read_b64_tr_b16 %s, v%d offset:%d" % (rr("a", qfw(st, i) + 2 * u, 2), vWr + i, 32768 + ks * 4096 + u * 1024))
        return r
    def q_mf(var, st, zero=False):
        mf = []
        for a in range(4):
            for tl in range(2):
                acc = rr("v", qacc(tl, a), 16)
                X, W = rr("a", qfx(st, tl), 4), rr("a", qfw(st, a), 4)
                A, B = (X, W) if var else (W, X)
                mf.append("%s %s, %s, %s, %s" % (MF, acc, A, B, "0" if zero else acc))
        return mf
    def kstep(q, var, ks, extra=None):
        st = ks & 1
        slots = {}
        if ks < 3:
            slots[-1] = ["s_waitcnt lgkmcnt(0)"]
            spread(q_reads(st ^ 1, ks + 1), 0, 5, slots)
            spread([dmaX(0), dmaX(1), dmaW()][ks], 2, 7, slots)
            if ks == 1:
                slots.setdefault(7, []).extend(rd_adv)
        else:
            slots[-1] = ["s_waitcnt vmcnt(14) lgkmcnt(0)", "s_barrier"]
            upd = ["v_add_u32 v%d, s%d, v%d" % (r, sDl, r) for r in (vXr, vWr, vWr + 1, vWr + 2, vWr + 3, vXr + 1, vXr + 2, vXr + 3)]
            slots[0] = upd[:5]
            spread(q_reads(st ^ 1, 0), 1, 6, slots)
            slots[6] += dma_adv[:3]
            slots[7] = upd[5:] + dma_adv[3:]
        if extra:
            for k, v in extra.items():
                slots[k] = (v + slots.get(k, [])) if k >= 0 else (slots.get(k, []) + v)
        q.add(interleave(q_mf(var, st, zero=extra is not None), slots))
    for var in range(2):
        q = Prog()
        q("M_body%d:" % var)
        kstep(q, var, 0)
        q("M_body%d_1:" % var)
        for ks in range(1, 4):
            kstep(q, var, ks)
        q("s_setpc_b64 s[%d:%d]" % (sRet, sRet + 1))
        tail += q.ins
    def pack_tile(src, dst):
        return ["v_cvt_pk_bf16_f32 v%d, v%d, v%d" % (dst + k, src + 2 * k, src + 2 * k + 1) for k in range(8)]
    def store(reg, soff_add, imm):
        return ["s_add_u32 s%d, s%d, 0x%x" % (sOff, sT2, soff_add),
                "buffer_store_dwordx4 %s, v%d, s[%d:%d], s%d offen offset:%d %s" % (rr("v", reg, 4), vL16, sO, sO + 3, sOff, imm, WT),
                "buffer_store_dwordx4 %s, v%d, s[%d:%d], s%d offen offset:%d %s" % (rr("v", reg + 4, 4), vL16, sO, sO + 3, sOff, imm + 1024, WT)]
    def call(lab):
        p("s_call_b64 s[%d:%d], %s" % (sRet, sRet + 1, lab))
    def publish(idx_s, idx_add, val, skip_ge240=False):
        lab = p.newlabel("M_pub")
        p("s_cmp_lg_u32 s%d, 0\ns_cbranch_scc1 %s" % (sWave, lab))
        if skip_ge240:
            p("s_cmp_ge_u32 s2, 240\ns_cbranch_scc1 %s" % lab)
        p("s_lshl_b32 s%d, s%d, 2" % (sT, idx_s))
        p("v_mov_b32 v%d, %d" % (t0, val))
        p("s_mov_b64 exec, 1")
        p("buffer_atomic_add v%d, off, s[%d:%d], s%d offset:%d sc1" % (t0, sD, sD + 3, sT, idx_add * 4))
        p("s_mov_b64 exec, -1")
        p("%s:" % lab)
    def poll(idx_s, idx_add, shift, need):
        lab = p.newlabel("M_poll")
        p("s_lshl_b32 s%d, s%d, 2" % (sT, idx_s))
        p("s_mov_b32 s%d, 0x40000" % sSpin)
        p("%s:" % lab)
        p("buffer_load_dword v%d, off, s[%d:%d], s%d offset:%d sc1" % (t0, sD, sD + 3, sT, idx_add * 4))
        p("s_waitcnt vmcnt(0)")
        p("v_readfirstlane_b32 s%d, v%d" % (sT2, t0))
        p("s_bfe_u32 s%d, s%d, 0x%x" % (sT2, sT2, (8 << 16) | shift))
        p("s_cmp_ge_u32 s%d, %d\ns_cbranch_scc1 %s_ok" % (sT2, need, lab))
        p("s_sleep 2")
        p("s_sub_u32 s%d, s%d, 1\ns_cbranch_scc0 %s" % (sSpin, sSpin, lab))
        p("%s_ok:" % lab)

    srd(p, sD, ptr(D_DBG), nrec=256)
    p.add(q_reads(0, 0))
    p("s_mul_i32 s%d, s%d, %d" % (sT, sTB, 4 * 120 * 1024))
    p("s_lshl_b32 s%d, s%d, 13" % (sT2, sCB))
    p("s_add_u32 s%d, s%d, s%d" % (sT, sT, sT2))
    srd(p, sO, ptr(D_WS), off_s=sT, off_imm=WS_BF)
    p("s_cmp_lt_u32 s2, 240")
    p("s_cselect_b32 s%d, %d, 0" % (sO + 2, 4 * 120 * 1024))
    for t in range(4):
        p.add(pack_tile(ACC + t * 16, PK + t * 8))
    def b_store(t):
        return ["s_lshr_b32 s%d, s%d, 1" % (sT2, sWave), "s_mul_i32 s%d, s%d, %d" % (sT2, sT2, 2 * 120 * 1024),
                "s_and_b32 s%d, s%d, 0x1000" % (sOff, sW4), "s_add_u32 s%d, s%d, s%d" % (sT2, sT2, sOff)] + \
            store(PK + t * 8, (t >> 1) * 120 * 1024, (t & 1) * 2048)
    kslot = [b_store(t) for t in range(4)] + [pf_lin(A_X, 2048 * 1280, 0) + pf_lin(A_X, 2048 * 1280, 1), pf_lin(A_X, 2048 * 1280, 2) + pf_w(A_WQ, 640)] + [dummy() + dummy()] * 2
    for s in range(8):
        if s == 6:
            set_dma_V()
        if s == 5:
            publish(sXcd, 32, 1, skip_ge240=True)
        p.add(kslot[s])
        if s == 0:
            kstep(p, 0, 0, extra={})
            call("M_body0_1")
        else:
            call("M_body0")
    st_()
    p("s_lshl_b32 s%d, s%d, 20" % (sT, sH))
    p("s_lshl_b32 s%d, s%d, 17" % (sT2, sI))
    p("s_add_u32 s%d, s%d, s%d" % (sT, sT, sT2))
    srd(p, sO, ptr(D_WS), off_s=sT, off_imm=WS_KV, nrec=128 * 1024)
    order = [(tl, a) for a in range(4) for tl in range(2)]
    for job, var, nst in ((0, 1, 8), (1, 0, 10)):
        def kv_store(n):
            tl, a = order[n]
            return ["s_lshl_b32 s%d, s%d, 15" % (sT2, sWave)] + store(PK + n * 8, tl * 16384 + job * 8192 + (a >> 1) * 4096, (a & 1) * 2048)
        for s in range(nst):
            if s == nst - 2:
                if job == 0:
                    set_dma_Q()
                else:
                    set_dma_off()
            if job == 1 and s == 9:
                publish(sH, 0, 1)
            if s == 0:
                extra = {n - 1: pack_tile(qacc(*order[n]), PK + n * 8) for n in range(8)}
                extra[7] = kv_store(0)
                kstep(p, var, 0, extra=extra)
                call("M_body%d_1" % var)
            else:
                p.add(kv_store(s) if s < 8 else dummy() + dummy())
                call("M_body%d" % var)
        st_()

    p("s_mov_b32 s%d, 0x%x" % (sT, QSCALE))
    for tl in range(2):
        for a in range(4):
            b = qacc(tl, a)
            for k in range(16):
                p("v_mul_f32 v%d, s%d, v%d" % (b + k, sT, b + k))
            p.add(pack_tile(b, Q(tl, 2 * a)))
    p("s_lshl_b32 s%d, s%d, 20" % (sT, sH))
    srd(p, sKV, ptr(D_WS), off_s=sT, off_imm=WS_KV)
    p("s_lshl_b32 s%d, s%d, 16" % (sT, sI))
    p("s_sub_u32 s%d, 0x100000, s%d" % (sKV + 2, sT))
    srd(p, sC, ptr(D_WS), off_imm=WS_CTX, nrec=16 * MB)
    p("v_add_u32 v%d, s%d, v%d" % (vDma, sW4, vL16))
    st_()
    p("s_cmp_lg_u32 s%d, 0\ns_cbranch_scc1 M_sync1" % sWave)
    poll(sH, 0, 0, 8)
    poll(sXcd, 32, 0, 30)
    p("buffer_inv sc1")
    p("M_sync1:")
    p("s_waitcnt vmcnt(0) lgkmcnt(0)\ns_barrier")
    st_()
    for t in range(5):
        p("s_add_u32 m0, s%d, 0x%x" % (sW4, t * 16384))
        p("s_mov_b32 s%d, 0x%x" % (sOff, t * 16384))
        for q in range(4):
            p("buffer_load_dwordx4 v%d, s[%d:%d], s%d offen offset:%d lds" % (vDma, sKV, sKV + 3, sOff, q * 1024))

    XF, C1, C2, PH, VF, KC, AF = 32, 48, 64, 80, 96, 112, TMP
    RAW = KC
    def bm_frag_loads(fbase):
        p("s_lshl_b32 s%d, s%d, 3" % (sTT, sXcd))
        p("s_lshl_b32 s%d, s%d, 1" % (sT, sWave))
        p("s_add_u32 s%d, s%d, s%d" % (sTT, sTT, sT))
        p("s_mul_i32 s%d, s%d, %d" % (sT, sTT, 120 * 1024))
        srd(p, sBF, ptr(D_WS), off_s=sT, off_imm=WS_BF, nrec=2 * 120 * 1024)
        p("s_mul_i32 s%d, s%d, 5" % (sT, sIdx))
        p("s_lshr_b32 s%d, s%d, 2" % (sT, sT))
        p("s_add_u32 s%d, s%d, %d" % (sT, sT, fbase))
        p("s_lshl_b32 s%d, s%d, 10" % (sT, sT))
        for tt in range(2):
            for u in range(2):
                p("buffer_load_dwordx4 %s, v%d, s[%d:%d], s%d offen offset:%d" % (rr("v", XF + (tt * 2 + u) * 4, 4), vL16, sBF, sBF + 3, sT, u * 1024))
            if tt == 0:
                p("s_add_u32 s%d, s%d, %d" % (sT, sT, 120 * 1024))
    q = Prog()
    q("M_phi:")
    for tile, C in ((0, C1), (1, C2)):
        for u in range(2):
            q("%s %s, %s, %s, %s" % (MF, rr("v", C, 16), rr("v", AW + (tile * 2 + u) * 4, 4), rr("v", XF + u * 4, 4), rr("v", C, 16) if u else "0"))
    x = [C1 + k for k in range(16)] + [C2 + k for k in range(4)]
    m = t1
    q("v_max3_f32 v%d, v%d, v%d, v%d" % (m, x[0], x[1], x[2]))
    for k in range(3, 19, 2):
        q("v_max3_f32 v%d, v%d, v%d, v%d" % (m, m, x[k], x[k + 1]))
    q("v_max_f32 v%d, v%d, v%d" % (m, m, x[19]))
    q("v_mul_f32 v%d, s%d, v%d" % (m, sL2, m))
    for k in range(20):
        q("v_fma_f32 v%d, v%d, s%d, -v%d" % (x[k], x[k], sL2, m))
    for k in range(20):
        q("v_exp_f32 v%d, v%d" % (x[k], x[k]))
    q("v_add_f32 v%d, v%d, v%d" % (m, x[0], x[1]))
    for k in range(2, 20):
        q("v_add_f32 v%d, v%d, v%d" % (m, m, x[k]))
    q("v_rcp_f32 v%d, v%d" % (m, m))
    for k in range(8):
        q("v_mov_b32 v%d, v%d" % (XF + k, XF + 8 + k))
    for k in range(20):
        q("v_mul_f32 v%d, v%d, v%d" % (x[k], x[k], m))
    for k in range(10):
        q("v_cvt_pk_bf16_f32 v%d, v%d, v%d" % (PH + k, x[2 * k], x[2 * k + 1]))
    q("s_setpc_b64 s[%d:%d]" % (sRet, sRet + 1))
    tail += q.ins

    L0 = 96 * 1024
    bm_frag_loads(40)
    p("s_mul_i32 s%d, s%d, 800" % (sT, sIdx))
    srd(p, sPhi, ptr(B_WPHI), off_s=sT, nrec=800)
    b1, b2, vV, vWa = vA, vA + 1, vA + 2, vA + 3
    p("s_and_b32 s%d, s%d, 3" % (sT, sIdx))
    p("s_mul_i32 s%d, s%d, 160" % (sT, sT))
    p("v_lshrrev_b32 v%d, 5, v%d" % (t0, vLane))
    p("v_mul_u32_u24 v%d, 160, v%d" % (t0, t0))
    p("v_subrev_u32 v%d, s%d, v%d" % (t0, sT, t0))
    p("v_and_b32 v%d, 3, v%d" % (t1, vLane))
    p("v_lshl_add_u32 v%d, v%d, 1, v%d" % (t0, t1, t0))
    p("v_bfe_u32 v%d, v%d, 3, 2" % (t1, vLane))
    p("v_lshl_add_u32 v%d, v%d, 3, v%d" % (b1, t1, t0))
    p("v_add_u32 v%d, 32, v%d" % (b2, t0))
    p("v_mov_b32 v%d, 0x80000000" % t2)
    p("v_cmp_eq_u32 vcc, 0, v%d" % t1)
    p("v_cndmask_b32 v%d, v%d, v%d, vcc" % (b2, t2, b2))
    n = 0
    for tile in range(2):
        for u in range(2):
            for e in range(8):
                cw = 16 * u + 8 * (e >> 2) + (e & 3)
                t = (t0, t1, t2)[n % 3]
                p("v_add_u32 v%d, %d, v%d" % (t, cw * 40, b2 if tile else b1))
                p("buffer_load_ushort v%d, v%d, s[%d:%d], 0 offen" % (RAW + n, t, sPhi, sPhi + 3))
                n += 1
    p("s_mul_i32 s%d, s%d, 20" % (sT, sIdx))
    p("v_and_b32 v%d, 31, v%d" % (t2, vLane))
    p("v_add_u32 v%d, s%d, v%d" % (t1, sT, t2))
    p("v_lshrrev_b32 v%d, 5, v%d" % (vV, t1))
    p("v_lshlrev_b32 v%d, 11, v%d" % (vV, vV))
    p("v_and_b32 v%d, 31, v%d" % (t1, t1))
    p("v_lshl_add_u32 v%d, v%d, 4, v%d" % (vV, t1, vV))
    p("v_and_b32 v%d, 32, v%d" % (t1, vLane))
    p("v_lshl_add_u32 v%d, v%d, 4, v%d" % (vV, t1, vV))
    p("v_mov_b32 v%d, 0x80000000" % t1)
    p("v_cmp_gt_u32 vcc, 20, v%d" % t2)
    p("v_cndmask_b32 v%d, v%d, v%d, vcc" % (vV, t1, vV))
    for tt in range(2):
        p("s_mov_b32 s%d, %d" % (sT, (tt * 120 + 80) * 1024))
        for mm in range(2):
            p("buffer_load_dwordx4 %s, v%d, s[%d:%d], s%d offen offset:%d" % (rr("v", VF + (tt * 2 + mm) * 4, 4), vV, sBF, sBF + 3, sT, mm * 1024))
    for k in range(128):
        p("v_accvgpr_write_b32 a%d, 0" % k)
    p("v_and_b32 v%d, 31, v%d" % (vLim, vLane))
    p("v_lshrrev_b32 v%d, 5, v%d" % (t0, vLane))
    p("v_lshlrev_b32 v%d, 2, v%d" % (t0, t0))
    p("v_sub_u32 v%d, v%d, v%d" % (vLim, vLim, t0))
    p("v_mov_b32 v%d, 0x%x" % (vNeg, NEG))
    p("v_bfe_u32 v%d, v%d, 4, 1" % (t0, vLane))
    p("v_lshlrev_b32 v%d, 10, v%d" % (vCt, t0))
    p("v_lshrrev_b32 v%d, 5, v%d" % (t0, vLane))
    p("v_lshl_add_u32 v%d, v%d, 8, v%d" % (vCt, t0, vCt))
    p("v_and_b32 v%d, 15, v%d" % (t0, vLane))
    p("v_lshl_add_u32 v%d, v%d, 4, v%d" % (vCt, t0, vCt))
    p("v_mov_b32 v%d, 0\nv_mov_b32 v%d, 0" % (vL, vL + 1))
    p("s_mov_b32 s%d, 0x%x" % (sL2, LOG2E))
    p("s_add_u32 s%d, s%d, %d" % (sT, sW4, L0))
    p("v_lshlrev_b32 v%d, 7, v%d" % (vWa, t2))
    p("v_lshrrev_b32 v%d, 5, v%d" % (t1, vLane))
    p("v_lshl_add_u32 v%d, v%d, 6, v%d" % (vWa, t1, vWa))
    p("v_add_u32 v%d, s%d, v%d" % (vWa, sT, vWa))
    vRd = b1
    p("v_lshlrev_b32 v%d, 9, v%d" % (vRd, t1))
    p("v_bfe_u32 v%d, v%d, 2, 2" % (t1, vLane))
    p("v_lshl_add_u32 v%d, v%d, 7, v%d" % (vRd, t1, vRd))
    p("v_bfe_u32 v%d, v%d, 4, 1" % (t1, vLane))
    p("v_lshl_add_u32 v%d, v%d, 5, v%d" % (vRd, t1, vRd))
    p("v_and_b32 v%d, 3, v%d" % (t1, vLane))
    p("v_lshl_add_u32 v%d, v%d, 3, v%d" % (vRd, t1, vRd))
    p("v_add_u32 v%d, s%d, v%d" % (vRd, sT, vRd))
    p("v_bfe_u32 v%d, v%d, 2, 1" % (t0, vLane))
    p("v_mul_u32_u24 v%d, 0x8000, v%d" % (t0, t0))
    p("v_lshl_or_b32 v%d, v%d, 16, v%d" % (t0, t0, t0))
    for k in range(16):
        p("v_lshl_or_b32 v%d, v%d, 16, v%d" % (AW + k, RAW + 2 * k + 1, RAW + 2 * k))
        p("v_xor_b32 v%d, v%d, v%d" % (AW + k, AW + k, t0))
    p("v_mov_b32 v%d, 0x3f803f80" % t1)
    p("v_cmp_eq_u32 vcc, 20, v%d" % t2)
    for k in range(16):
        p("v_cndmask_b32 v%d, v%d, v%d, vcc" % (VF + k, VF + k, t1))
    for tt in range(2):
        call("M_phi")
        p("ds_write_b128 v%d, %s" % (vWa, rr("v", PH, 4)))
        p("ds_write_b128 v%d, %s offset:16" % (vWa, rr("v", PH + 4, 4)))
        p("ds_write_b64 v%d, %s offset:32" % (vWa, rr("v", PH + 8, 2)))
        for nn in range(2):
            for mm in range(2):
                for u in range(2):
                    p("ds_read_b64_tr_b16 %s, v%d offset:%d" % (rr("v", AF + (nn * 2 + mm) * 4 + 2 * u, 2), vRd, (16 * mm + 8 * u) * 128 + nn * 64))
        for mm in range(2):
            for nn in range(2):
                c = rr("v", KC + nn * 16, 16)
                p("%s %s, %s, %s, %s" % (MF, c, rr("v", AF + (nn * 2 + mm) * 4, 4), rr("v", VF + (tt * 2 + mm) * 4, 4), "0" if (tt == 0 and mm == 0) else c))
    R0 = L0 + 16384
    p("s_mul_i32 s%d, s%d, 6144" % (sT, sWave))
    p("s_add_u32 s%d, s%d, %d" % (sT, sT, R0))
    p("v_add_u32 v%d, s%d, v%d" % (t1, sT, vL16))
    for nn in range(2):
        for jj in range(3):
            p("ds_write_b128 v%d, %s offset:%d" % (t1, rr("v", KC + nn * 16 + jj * 4, 4), (nn * 3 + jj) * 1024))
    p("s_lshl_b32 s%d, s%d, 3" % (sT, sIdx))
    p("s_add_u32 s%d, s%d, s%d" % (sT, sT, sXcd))
    p("s_lshl_b32 s%d, s%d, 13" % (sT, sT))
    srd(p, sY, ptr(D_WS), off_s=sT, off_imm=WS_KVP, nrec=8192)
    p("s_lshl_b32 s%d, s%d, 10" % (sT, sWave))
    p("s_add_u32 s%d, s%d, %d" % (sT, sT, R0))
    p("v_add_u32 v%d, s%d, v%d" % (t1, sT, vL16))
    p("v_lshlrev_b32 v%d, 8, v%d" % (vV, t2))
    p("v_lshrrev_b32 v%d, 5, v%d" % (t0, vLane))
    p("v_lshl_add_u32 v%d, v%d, 4, v%d" % (vV, t0, vV))
    p("s_waitcnt vmcnt(0) lgkmcnt(0)\ns_barrier")
    for k in range(2):
        for w in range(4):
            p("ds_read_b128 %s, v%d offset:%d" % (rr("v", XF + k * 16 + w * 4, 4), t1, w * 6144 + k * 4096))
    p("v_mov_b32 v%d, v%d" % (vB, vL16))
    p("v_add_u32 v%d, 0x4000, v%d" % (vB + 1, vL16))
    for j in range(8):
        p("ds_read_b128 %s, v%d offset:%d" % (rr("a", FB(j), 4), vB, j * 1024))
    p("s_lshl_b32 s%d, s%d, 5" % (sT, sWave))
    p("s_cmp_eq_u32 s%d, 3" % sWave)
    p("s_cselect_b32 s%d, 128, s%d" % (sT2, sT))
    p("s_add_u32 s%d, s%d, 160" % (sT, sT))
    p("s_cmp_ge_u32 s%d, 2" % sWave)
    p("s_cselect_b32 s%d, 0x10000, s%d" % (sT, sT))
    for k in range(2):
        b = XF + k * 16
        for e in range(4):
            p("v_add_f32 v%d, v%d, v%d" % (b + e, b + e, b + 4 + e))
            p("v_add_f32 v%d, v%d, v%d" % (b + 8 + e, b + 8 + e, b + 12 + e))
        for e in range(4):
            p("v_add_f32 v%d, v%d, v%d" % (b + e, b + e, b + 8 + e))
        p("buffer_store_dwordx4 %s, v%d, s[%d:%d], s%d offen %s" % (rr("v", b, 4), vV, sY, sY + 3, sT if k else sT2, WT))
    st_()

    p("s_mov_b32 s%d, 0x%x" % (sThr, THRESH))
    p("s_lshl_b32 s%d, s%d, 2" % (sT, sI))
    p("s_add_u32 s%d, s%d, s%d" % (sLoTri, sT, sWave))
    p("s_sub_u32 s%d, 60, s%d" % (sHiTri, sT))
    p("s_add_u32 s%d, s%d, s%d" % (sHiTri, sHiTri, sWave))
    p("s_mov_b32 s%d, s%d" % (sEvt, sLoTri))
    p("s_mov_b32 s%d, 0x4000" % sRd)
    for k in range(32):
        p("v_mov_b32 v%d, 0" % (CI(0) + k))
    p("s_mov_b32 s%d, 0" % sStep)
    p("s_mov_b32 s%d, 0x%x" % (sWr, 5 * 16384))
    p("s_mov_b32 s%d, 0x%x" % (sG, 5 * 16384))
    def evt_check():
        lab = p.newlabel("M_ev")
        tail.extend(["%s:" % lab, "s_call_b64 s[%d:%d], M_event" % (sRet, sRet + 1), "s_branch %s_r" % lab])
        return ["s_cmp_eq_u32 s%d, s%d" % (sStep, sEvt), "s_cbranch_scc1 %s" % lab, "%s_r:" % lab]
    def qk_mfmas(par, tiles):
        r = []
        for ds in range(8):
            for tl in tiles:
                d = rr("v", S(par, tl), 16)
                r.append((ds, "%s %s, %s, %s, %s" % (MF, d, rr("a", FB(ds), 4), rr("v", Q(tl, ds), 4), rr("v", CI(tl), 16) if ds == 0 else d)))
        return r
    def pv_mfmas(par, tiles):
        r = []
        for j in range(8):
            mm, a = j >> 2, j & 3
            for tl in tiles:
                d = rr("a", O(tl, a), 16)
                r.append((8 + j, "%s %s, %s, %s, %s" % (MF, d, rr("a", FB(8 + j), 4), rr("v", PP(par, tl) + 4 * mm, 4), d)))
        return r
    def v_off(j):
        mm, a = j >> 2, j & 3
        return 8192 + (a * 2 + mm) * 1024
    def rowmax(par, tl, dst, tmp):
        s = S(par, tl)
        r = ["v_max3_f32 v%d, v%d, v%d, v%d" % (dst, s, s + 1, s + 2)]
        for k in range(3, 15, 2):
            r.append("v_max3_f32 v%d, v%d, v%d, v%d" % (dst, dst, s + k, s + k + 1))
        r.append("v_max_f32 v%d, v%d, v%d" % (dst, dst, s + 15))
        r += ["v_mov_b32 v%d, v%d" % (tmp, dst), "v_permlane32_swap_b32 v%d, v%d" % (dst, tmp), "v_max_f32 v%d, v%d, v%d" % (dst, dst, tmp)]
        return r
    def sm_units(par, tiles, part):
        groups = [(tl, k) for k in range(part * 4, part * 4 + 4) for tl in tiles]
        units = []
        def fin(n):
            tl, k = groups[n]
            a, b = TMP + (n % 4) * 2, TMP + (n % 4) * 2 + 1
            if k == 0:
                adds = ["v_add_f32 v%d, v%d, v%d" % (vLt + tl, a, b)]
            else:
                adds = ["v_add_f32 v%d, v%d, v%d" % (vLt + tl, vLt + tl, a), "v_add_f32 v%d, v%d, v%d" % (vLt + tl, vLt + tl, b)]
            return adds, ["v_cvt_pk_bf16_f32 v%d, v%d, v%d" % (PP(par, tl) + k, a, b)]
        for n, (tl, k) in enumerate(groups):
            a, b = TMP + (n % 4) * 2, TMP + (n % 4) * 2 + 1
            ea = "v_exp_f32 v%d, v%d" % (a, S(par, tl) + 2 * k)
            eb = "v_exp_f32 v%d, v%d" % (b, S(par, tl) + 2 * k + 1)
            if n:
                ad, cv = fin(n - 1)
                units += [[ea] + ad, [eb] + cv]
            else:
                units += [[ea], [eb]]
        ad, cv = fin(len(groups) - 1)
        units.append(cv + ad)
        return units

    J0 = 4
    def iteration(par, qk, pv, barrier, tail_k=True, dma=True):
        mq, mp = qk_mfmas(par ^ 1, qk), pv_mfmas(par, pv)
        mf = mq + mp
        nq, nm = len(mq), len(mf)
        slots = {}
        first = {}
        for k, (j, _) in enumerate(mf):
            first.setdefault(j, k)
        LA = 8 if len(pv) == 2 and len(qk) == 2 else 6
        pre = []
        if qk:
            pre += ["s_add_u32 s%d, s%d, 1" % (sStep, sStep)] + evt_check()
        rd = []
        for j in range(J0, 8):
            if qk:
                rd.append((first[j] - LA, "ds_read_b128 %s, v%d offset:%d" % (rr("a", FB(j), 4), vB + (par ^ 1), j * 1024)))
        for j in range(8):
            rd.append((first[8 + j] - LA, "ds_read_b128 %s, v%d offset:%d" % (rr("a", FB(8 + j), 4), vB + par, v_off(j))))
        pos, last = -1, -1
        for want, t in rd:
            pos = max(want, -1)
            if nq == 0:
                pos = -1
            slots.setdefault(pos, []).append(t)
            last = max(last, pos)
        u2 = sm_units(par, pv, 1)
        chk = []
        if len(pv) == 2:
            chk.append("v_max_f32 v%d, v%d, v%d" % (vU, vLt, vLt + 1))
            chk.append("v_cmp_lt_f32 vcc, s%d, v%d" % (sThr, vU))
        else:
            chk.append("v_cmp_lt_f32 vcc, s%d, v%d" % (sThr, vLt + pv[0]))
        lab = p.newlabel("M_sl")
        tail.extend(["%s:" % lab] + ["s_call_b64 s[%d:%d], M_slow%d%d" % (sRet, sRet + 1, par, tl) for tl in pv] + ["s_branch %s_r" % lab])
        br = ["s_cbranch_vccnz %s" % lab, "%s_r:" % lab]
        accl = ["v_add_f32 v%d, v%d, v%d" % (vL + tl, vL + tl, vLt + tl) for tl in pv]
        if nq:
            spread(u2 + [chk], 0, nq - 2, slots)
            slots.setdefault(nq - 1, []).extend(br)
        else:
            for u in u2 + [chk, br]:
                slots.setdefault(-1, []).extend(u)
        slots.setdefault(nq, []).extend(accl)
        if qk:
            spread(sm_units(par ^ 1, qk, 0), nq + 2, nm - 1, slots)
        tailpos = max(last + 1, nm - (J0 * len(qk) if len(qk) == 2 else 6)) if tail_k else nm - 1
        tailpos = min(tailpos, nm - 2)
        if dma:
            d = ["buffer_load_dwordx4 v%d, s[%d:%d], s%d offen offset:%d lds" % (vDma, sKV, sKV + 3, sG, q * 1024) for q in range(4)]
            slots.setdefault(0, []).append("s_add_u32 m0, s%d, s%d" % (sWr, sW4))
            spread(d, 1, tailpos - 2, slots)
            slots.setdefault(tailpos - 1, []).extend(["s_add_u32 s%d, s%d, 0x4000" % (sG, sG), "s_and_b32 s%d, s%d, 0x1ffff" % (sWr, sG)])
        if tail_k:
            slots.setdefault(tailpos - 1, []).extend(["s_add_u32 s%d, s%d, 0x4000" % (sRd, sRd), "s_and_b32 s%d, s%d, 0x1ffff" % (sRd, sRd)])
            tl_ = []
            if barrier:
                tl_ += ["s_waitcnt vmcnt(8)", "s_barrier"]
            tl_ += ["v_add_u32 v%d, s%d, v%d" % (vB + par, sRd, vL16)]
            slots.setdefault(tailpos, []).extend(tl_)
            spread(["ds_read_b128 %s, v%d offset:%d" % (rr("a", FB(j), 4), vB + par, j * 1024) for j in range(J0)], tailpos, nm - 1, slots)
        slots[-1] = pre + slots.get(-1, [])
        texts = []
        for k, (j, t) in enumerate(mf):
            x = ()
            if first[j] == k and j % 2 == 0:
                x = [("a", FB(j + 1) + e) for e in range(4)]
            texts.append(I(t, xrd=x))
        p.add(interleave(texts, slots))

    p.add(evt_check())
    p.add([t for _, t in qk_mfmas(0, (0, 1))])
    for j in range(J0):
        p("ds_read_b128 %s, v%d offset:%d" % (rr("a", FB(j), 4), vB + 1, j * 1024))
    for tl in range(2):
        p.add(rowmax(0, tl, vU, vU + 1))
        for k in range(16):
            p("v_sub_f32 v%d, v%d, v%d" % (S(0, tl) + k, S(0, tl) + k, vU))
            p("v_sub_f32 v%d, v%d, v%d" % (CI(tl) + k, CI(tl) + k, vU))
    p.add(sm_units(0, (0, 1), 0))
    p("s_waitcnt vmcnt(0)\ns_barrier")
    publish(sIdx, 0, 0x100)
    p("s_lshr_b32 s%d, s2, 1" % sT)
    p("s_mul_i32 s%d, s%d, 40960" % (sT, sT))
    p("s_and_b32 s%d, s2, 1" % sT2)
    p("s_mul_i32 s%d, s%d, 640" % (sT2, sT2))
    p("s_add_u32 s%d, s%d, s%d" % (sT, sT, sT2))
    srd(p, sY, ptr(A_WO), off_s=sT)
    p("s_sub_u32 s%d, 40960, s%d" % (sY + 2, sT2))
    def wo_dma():
        p("s_mul_i32 s%d, s%d, 320" % (sT, sWave))
        p("s_mul_i32 s%d, s%d, 5120" % (sT2, sWave))
        p("s_add_u32 m0, s%d, 0x20000" % sT2)
        for k in range(5):
            p("v_add_u32 v%d, s%d, v%d" % (t0, sT, vLane))
            p("v_mul_u32_u24 v%d, 0x667, v%d" % (t1, t0))
            p("v_lshrrev_b32 v%d, 16, v%d" % (t1, t1))
            p("v_mul_u32_u24 v%d, 640, v%d" % (t1, t1))
            p("v_lshl_add_u32 v%d, v%d, 4, v%d" % (t0, t0, t1))
            p("buffer_load_dwordx4 v%d, s[%d:%d], 0 offen lds" % (t0, sY, sY + 3))
            if k < 4:
                p("s_add_u32 s%d, s%d, 64\ns_add_u32 m0, m0, 0x400" % (sT, sT))
    wo_dma()
    st_()
    p("s_lshl_b32 s%d, s%d, 1" % (sCnt, sI))
    p("M_dd:")
    iteration(0, (0, 1), (0, 1), False)
    iteration(1, (0, 1), (0, 1), True)
    p("s_sub_u32 s%d, s%d, 1\ns_cbranch_scc0 M_dd" % (sCnt, sCnt))
    iteration(0, (0, 1), (0, 1), False)
    iteration(1, (0,), (0, 1), True)
    st_()
    def epilogue(tl, sblk):
        p("s_lshl_b32 s%d, s%d, 1" % (sT, sblk))
        p("s_lshr_b32 s%d, s%d, 1" % (sT2, sWave))
        p("s_add_u32 s%d, s%d, s%d" % (sT, sT, sT2))
        p("s_lshl_b32 s%d, s%d, 19" % (sT, sT))
        p("s_lshl_b32 s%d, s%d, 14" % (sT2, sH))
        p("s_add_u32 s%d, s%d, s%d" % (sT, sT, sT2))
        p("s_and_b32 s%d, s%d, 1" % (sT2, sWave))
        p("s_lshl_b32 s%d, s%d, 11" % (sT2, sT2))
        p("s_add_u32 s%d, s%d, s%d" % (sCb, sT, sT2))
        p("v_mov_b32 v%d, v%d" % (vU, vL + tl))
        p("v_mov_b32 v%d, v%d" % (vU + 1, vL + tl))
        p("v_permlane32_swap_b32 v%d, v%d" % (vU, vU + 1))
        p("v_add_f32 v%d, v%d, v%d" % (vU, vU, vU + 1))
        p("v_rcp_f32 v%d, v%d" % (vU, vU))
        for a in range(4):
            T = Q(1, 0) + (a & 1) * 16
            for k in range(16):
                p("v_accvgpr_read_b32 v%d, a%d" % (T + k, O(tl, a) + k))
            for k in range(16):
                p("v_mul_f32 v%d, v%d, v%d" % (T + k, T + k, vU))
            p.add(pack_tile(T, T))
            for mm in range(2):
                p("buffer_store_dwordx4 %s, v%d, s[%d:%d], s%d offen offset:%d" % (rr("v", T + 4 * mm, 4), vCt, sC, sC + 3, sCb, mm * 512))
            if a < 3:
                p("s_add_u32 s%d, s%d, 0x1000" % (sCb, sCb))
    def wo_out(isB, dstbase, nk, ks_s, half_s):
        R = S(0, 1)
        regs = [S(0, 1) + 4 * n for n in range(4)] + [S(1, 1)]
        p("v_lshrrev_b32 v%d, 4, v%d" % (t0, vLane))
        p("v_lshlrev_b32 v%d, 3, v%d" % (t1, t0))
        if not isB:
            p("v_and_b32 v%d, 1, v%d" % (t0, t0))
            p("v_lshlrev_b32 v%d, 2, v%d" % (t0, t0))
            p("v_sub_u32 v%d, v%d, v%d" % (t1, t1, t0))
        p("v_bfe_u32 v%d, v%d, 2, 2" % (t0, vLane))
        p("v_add_u32 v%d, v%d, v%d" % (t1, t1, t0))
        p("v_mul_u32_u24 v%d, 640, v%d" % (t1, t1))
        p("v_and_b32 v%d, 3, v%d" % (t0, vLane))
        p("v_lshl_add_u32 v%d, v%d, 3, v%d" % (t1, t0, t1))
        p("s_mul_i32 s%d, s%d, 160" % (sT, sWave))
        p("s_add_u32 s%d, s%d, 0x20000" % (sT, sT))
        p("v_add_u32 v%d, s%d, v%d" % (t1, sT, t1))
        for n in range(5):
            for u in range(2):
                p("ds_read_b64_tr_b16 %s, v%d offset:%d" % (rr("v", regs[n] + 2 * u, 2), t1, n * 32 + u * (4 if isB else 8) * 640))
        p("s_lshl_b32 s%d, s%d, 2" % (sT, half_s))
        p("s_add_u32 s%d, s%d, s%d" % (sT, sT, sWave))
        p("s_mul_i32 s%d, s%d, %d" % (sT, sT, nk))
        p("s_add_u32 s%d, s%d, s%d" % (sT, sT, ks_s))
        p("s_mul_i32 s%d, s%d, 5120" % (sT, sT))
        srd(p, sY, ptr(D_WS), off_s=sT, off_imm=dstbase, nrec=5120)
        p("s_movk_i32 s%d, 0x1000" % sT)
        for n in range(5):
            p("buffer_store_dwordx4 %s, v%d, s[%d:%d], %s offen offset:%d" % (rr("v", regs[n], 4), vL16, sY, sY + 3, "s%d" % sT if n == 4 else "0", (n & 3) * 1024))
    epilogue(1, sI)
    p("s_lshr_b32 s%d, s2, 1\ns_and_b32 s%d, s2, 1" % (sTT, sSpin))
    wo_out(False, WS_WOA, 128, sTT, sSpin)
    p("s_cmp_ge_u32 s2, 40\ns_cbranch_scc1 M_nowob")
    p("s_waitcnt lgkmcnt(0)\ns_barrier")
    p("s_mul_i32 s%d, s%d, 40960" % (sT, sTT))
    p("s_mul_i32 s%d, s%d, 640" % (sT2, sSpin))
    p("s_add_u32 s%d, s%d, s%d" % (sT, sT, sT2))
    srd(p, sY, ptr(B_WO), off_s=sT)
    p("s_sub_u32 s%d, 40960, s%d" % (sY + 2, sT2))
    wo_dma()
    p("M_nowob:")
    st_()
    p("s_lshl_b32 s%d, s%d, 2" % (sCnt, sI))
    p("s_sub_u32 s%d, 28, s%d" % (sCnt, sCnt))
    p("M_ss:")
    iteration(0, (0,), (0,), False)
    iteration(1, (0,), (0,), True)
    p("s_sub_u32 s%d, s%d, 1\ns_cbranch_scc0 M_ss" % (sCnt, sCnt))
    iteration(0, (0,), (0,), False, tail_k=False, dma=False)
    iteration(1, (), (0,), False, tail_k=False, dma=False)
    st_()
    p("s_sub_u32 s%d, 15, s%d" % (sCnt, sI))
    epilogue(0, sCnt)
    p("s_cmp_ge_u32 s2, 40\ns_cbranch_scc1 M_nowob2")
    p("s_lshr_b32 s%d, s2, 1\ns_and_b32 s%d, s2, 1" % (sTT, sSpin))
    wo_out(True, WS_WOB, 20, sTT, sSpin)
    p("M_nowob2:")
    st_()
    bm_frag_loads(0)
    poll(sIdx, 0, 8, 8)
    L, SUM, KA, N = 96, 176, 200, 96
    vP = vA
    p("s_lshl_b32 s%d, s%d, 16" % (sT, sIdx))
    srd(p, sY, ptr(D_WS), off_s=sT, off_imm=WS_KVP, nrec=65536)
    p("v_and_b32 v%d, 31, v%d" % (t2, vLane))
    p("v_min_u32 v%d, 20, v%d" % (t2, t2))
    p("v_lshlrev_b32 v%d, 8, v%d" % (vP, t2))
    p("v_lshrrev_b32 v%d, 5, v%d" % (t1, vLane))
    p("v_lshl_add_u32 v%d, v%d, 7, v%d" % (vP, t1, vP))
    for half in range(2):
        for j in range(4):
            p("s_mov_b32 s%d, %d" % (sT, (half * 4 + j) * 8192))
            for k in range(5):
                p("buffer_load_dwordx4 %s, v%d, s[%d:%d], s%d offen offset:%d %s" % (rr("v", L + j * 20 + k * 4, 4), vP, sY, sY + 3, sT, k * 16, WT))
        if half == 0:
            call("M_phi")
        for e in range(20):
            p("v_add_f32 v%d, v%d, v%d" % (L + e, L + e, L + 20 + e))
            p("v_add_f32 v%d, v%d, v%d" % (L + 40 + e, L + 40 + e, L + 60 + e))
        for e in range(20):
            if half == 0:
                p("v_add_f32 v%d, v%d, v%d" % (SUM + e, L + e, L + 40 + e))
            else:
                p("v_add_f32 v%d, v%d, v%d" % (L + e, L + e, L + 40 + e))
                p("v_add_f32 v%d, v%d, v%d" % (SUM + e, SUM + e, L + e))
    for k in range(10):
        p("v_cvt_pk_bf16_f32 v%d, v%d, v%d" % (KA + k, SUM + 2 * k, SUM + 2 * k + 1))
    for r in (KA + 10, KA + 11, PH + 10, PH + 11):
        p("v_mov_b32 v%d, 0" % r)
    p("s_lshr_b32 s%d, s%d, 1" % (sT, sTT))
    p("s_mul_i32 s%d, s%d, 81920" % (sT, sT))
    srd(p, sY, ptr(D_WS), off_s=sT, off_imm=WS_OB, nrec=81920)
    p("s_mul_i32 s%d, s%d, 20" % (sT, sIdx))
    vO = vA
    for jj in range(3):
        p("v_lshrrev_b32 v%d, 5, v%d" % (t1, vLane))
        p("v_lshlrev_b32 v%d, 2, v%d" % (t1, t1))
        p("v_add_u32 v%d, %d, v%d" % (t1, 8 * jj, t1))
        p("v_add_u32 v%d, s%d, v%d" % (t1, sT, t1))
        p("v_lshrrev_b32 v%d, 5, v%d" % (vO + jj, t1))
        p("v_lshlrev_b32 v%d, 12, v%d" % (vO + jj, vO + jj))
        p("v_bfe_u32 v%d, v%d, 3, 2" % (t2, t1))
        p("v_lshl_add_u32 v%d, v%d, 8, v%d" % (vO + jj, t2, vO + jj))
        p("v_and_b32 v%d, 7, v%d" % (t2, t1))
        p("v_lshl_add_u32 v%d, v%d, 1, v%d" % (vO + jj, t2, vO + jj))
        p("v_and_b32 v%d, 15, v%d" % (t2, vLane))
        p("v_lshl_add_u32 v%d, v%d, 4, v%d" % (vO + jj, t2, vO + jj))
        p("v_bfe_u32 v%d, v%d, 4, 1" % (t2, vLane))
        p("v_lshl_add_u32 v%d, v%d, 10, v%d" % (vO + jj, t2, vO + jj))
    p("v_mov_b32 v%d, 0x80000000" % t1)
    p("v_cmp_gt_u32 vcc, 32, v%d" % vLane)
    p("v_cndmask_b32 v%d, v%d, v%d, vcc" % (vO + 2, t1, vO + 2))
    for tt in range(2):
        if tt:
            call("M_phi")
        for u in range(3):
            p("%s %s, %s, %s, %s" % (MF, rr("v", N, 16), rr("v", KA + 4 * u, 4), rr("v", PH + 4 * u, 4), rr("v", N, 16) if u else "0"))
        p("v_add_f32 v%d, 0x%x, v%d" % (N + 12, f2u(1e-6), N + 12))
        p("v_rcp_f32 v%d, v%d" % (N + 12, N + 12))
        for k in range(12):
            p("v_mul_f32 v%d, v%d, v%d" % (N + k, N + k, N + 12))
        for k in range(6):
            p("v_cvt_pk_bf16_f32 v%d, v%d, v%d" % (N + 16 + k, N + 2 * k, N + 2 * k + 1))
        for jj in range(3):
            p("buffer_store_dwordx2 %s, v%d, s[%d:%d], 0 offen offset:%d" % (rr("v", N + 16 + 2 * jj, 2), vO + jj, sY, sY + 3, tt * 2048))
    st_()
    st_.dump(vtmp=t0)
    p("M_exit:\ns_endpgm")
    p.add(tail)
    p("M_event:")
    p("s_cmp_ge_u32 s%d, s%d\ns_cbranch_scc1 M_ev_hi" % (sStep, sHiTri))
    for tl, tri, nxt in ((1, sLoTri, "s%d" % sHiTri), (0, sHiTri, "-1")):
        if tl == 0:
            p("M_ev_hi:")
        p("s_cmp_eq_u32 s%d, s%d\ns_cbranch_scc0 M_ev_full%d" % (sStep, tri, tl))
        for r in range(16):
            p("v_cmp_gt_i32 vcc, %d, v%d" % (8 * (r >> 2) + (r & 3), vLim))
            p("v_cndmask_b32 v%d, v%d, v%d, vcc" % (CI(tl) + r, CI(tl) + r, vNeg))
        p("s_add_u32 s%d, s%d, 1" % (sEvt, sEvt))
        p("s_waitcnt lgkmcnt(0)\ns_setpc_b64 s[%d:%d]" % (sRet, sRet + 1))
        p("M_ev_full%d:" % tl)
        for r in range(16):
            p("v_mov_b32 v%d, v%d" % (CI(tl) + r, vNeg))
        p("s_mov_b32 s%d, %s" % (sEvt, nxt))
        p("s_waitcnt lgkmcnt(0)\ns_setpc_b64 s[%d:%d]" % (sRet, sRet + 1))
    for par in range(2):
        for tl in range(2):
            p("M_slow%d%d:" % (par, tl))
            p("s_nop 15")
            p.add(rowmax(par, tl, vU + 2, vU + 3))
            p("v_max_f32 v%d, 0, v%d" % (vU + 2, vU + 2))
            p("v_exp_f32 v%d, -v%d" % (vU + 3, vU + 2))
            for k in range(16):
                for b in (S(par, tl), S(par ^ 1, tl), CI(tl)):
                    p("v_sub_f32 v%d, v%d, v%d" % (b + k, b + k, vU + 2))
            p("v_mul_f32 v%d, v%d, v%d" % (vL + tl, vL + tl, vU + 3))
            for k in range(0, 64, 8):
                for e in range(8):
                    p("v_accvgpr_read_b32 v%d, a%d" % (TMP + 8 + e, O(tl, 0) + k + e))
                for e in range(8):
                    p("v_mul_f32 v%d, v%d, v%d" % (TMP + 8 + e, TMP + 8 + e, vU + 3))
                for e in range(8):
                    p("v_accvgpr_write_b32 a%d, v%d" % (O(tl, 0) + k + e, TMP + 8 + e))
            p.add(sm_units(par, (tl,), 0))
            p.add(sm_units(par, (tl,), 1))
            p("s_nop 1")
            p("s_waitcnt lgkmcnt(0)\ns_setpc_b64 s[%d:%d]" % (sRet, sRet + 1))
    p.finish()
    return p
```

```python
from asmlib import *
from layout import *
from k_p1 import srd, x_rd_addr, w_rd_addr, MF
import os, struct

def f2u(x):
    return struct.unpack("<I", struct.pack("<f", x))[0]

NEG = 0xF149F2CA
THRESH = int(os.environ.get("THRESH", "0x5F800000"), 0)
QSCALE = f2u((128 ** -0.5) * 1.4426950408889634)
LOG2E = f2u(1.4426950408889634)
WT = os.environ.get("WT", "sc1")
PREFETCH = int(os.environ.get("PREFETCH", "1"))
VERB = int(os.environ.get("VERB", "0"))
U = 16384
u32 = lambda x: x & 0xffffffff

def L(f, *a, **k):
    q = Prog()
    f(q, *a, **k)
    return q.ins

def build_main():
    p = Prog()
    sX, sW, sW2, sO, sD, sBO = 4, 8, 12, 16, 20, 24
    sBF, sPhi, sY, sC, sKV = sW2, sO, sX, sW, sBO
    sH, sI, sWave, sW4, sT, sT2, sOff, sXcd, sIdx, sTB, sCB, sHi, sLo = range(28, 41)
    sM, sS, sKo, sRet, sTT, sL2, sSpin, sBo = 41, 44, 47, 48, 50, 51, 52, 53
    sRd, sWr, sG, sStep, sEvt, sLoTri, sHiTri, sThr, sCnt, sCb = range(37, 47)
    P = 56
    ptr = lambda off: P + off // 4
    vLane = 1
    vX, vW, vXr, vWr = 2, 6, 10, 18
    vL16, t0, t1, t2, vDum, vStamp, vA = 22, 23, 24, 25, 26, 27, 28
    vDma, vLim, vNeg, vCt, vB, vL, vLt, vU = 2, 3, 4, 5, 6, 8, 10, 12
    RA, RB, RC, RD = 32, 96, 160, 224
    TMP, AW = 224, 240
    S = lambda par, tl: 32 + par * 32 + tl * 16
    CI = lambda tl: 96 + tl * 16
    PP = lambda par, tl: 128 + par * 16 + tl * 8
    Q = lambda tl, ds: 160 + tl * 32 + ds * 4
    O = lambda tl, a: tl * 64 + a * 16
    FB = lambda j: 128 + j * 4
    aXF, aVF, aRAW, aPA = 192, 208, 32, 208
    tail = []
    ret = "s_setpc_b64 s[%d:%d]" % (sRet, sRet + 1)
    call = lambda lab: "s_call_b64 s[%d:%d], %s" % (sRet, sRet + 1, lab)

    def x_voffs(pitch):
        return ["v_lshrrev_b32 v%d, 3, v%d" % (t0, vLane),
                "s_lshl_b32 s%d, s%d, 5" % (sT, sWave),
                "v_add_u32 v%d, s%d, v%d" % (t0, sT, t0),
                "v_mul_u32_u24 v%d, %d, v%d" % (t0, pitch, t0),
                "v_lshrrev_b32 v%d, 4, v%d" % (t1, vLane),
                "v_and_b32 v%d, 7, v%d" % (t2, vLane),
                "v_xor_b32 v%d, v%d, v%d" % (t2, t2, t1),
                "v_lshl_add_u32 v%d, v%d, 4, v%d" % (vX, t2, t0),
                "v_xor_b32 v%d, 4, v%d" % (t2, t2),
                "v_lshl_add_u32 v%d, v%d, 4, v%d" % (vX + 1, t2, t0),
                "v_add_u32 v%d, %d, v%d" % (vX + 1, 8 * pitch - 1024, vX + 1),
                "v_add_u32 v%d, %d, v%d" % (vX + 2, 2 * (8 * pitch - 1024), vX),
                "v_add_u32 v%d, %d, v%d" % (vX + 3, 2 * (8 * pitch - 1024), vX + 1)]
    def w_voffs(pitch):
        return ["v_lshrrev_b32 v%d, 4, v%d" % (t0, vLane),
                "v_lshlrev_b32 v%d, 2, v%d" % (t1, t0),
                "s_lshl_b32 s%d, s%d, 4" % (sT, sWave),
                "v_add_u32 v%d, s%d, v%d" % (t0, sT, t0),
                "v_mul_u32_u24 v%d, %d, v%d" % (t0, pitch, t0),
                "v_and_b32 v%d, 15, v%d" % (t2, vLane),
                "v_xor_b32 v%d, v%d, v%d" % (t2, t2, t1),
                "v_lshl_add_u32 v%d, v%d, 4, v%d" % (vW, t2, t0)] + \
               ["v_add_u32 v%d, %d, v%d" % (vW + k, k * (4 * pitch - 1024), vW) for k in range(1, 4)]
    def dma(i, srdn):
        v = vX if srdn == sX else vW
        return [["s_mov_b32 m0, s%d" % (sM + i)]] + \
               ["buffer_load_dwordx4 v%d, s[%d:%d], s%d offen offset:%d lds" % (v + q, srdn, srdn + 3, sS + i, q * 1024) for q in range(4)]
    def put_dma(G, i, srdn, lo, hi):
        d = dma(i, srdn)
        G.put(lo, d[0])
        G.spread(d[1:], lo + 1, hi)
    def w_srd(q, d, which, col_s, total):
        q("s_lshl_b32 s%d, s%d, 8" % (sT, col_s))
        srd(q, d, ptr(which), off_s=sT)
        q("s_sub_u32 s%d, %d, s%d" % (d + 2, total, sT))
    def sw_XB(q):
        q("s_mul_i32 s%d, s%d, %d" % (sT, sTB, 128 * 1280))
        srd(q, sX, ptr(B_X), off_s=sT)
        q("s_cmp_lt_u32 s2, 240\ns_cselect_b32 s%d, %d, 0" % (sX + 2, 128 * 1280))
        q.add(x_voffs(1280))
    def sw_WB(q):
        w_srd(q, sW, B_WQKV, sCB, 640 * 3840)
        q("s_cmp_lt_u32 s2, 240\ns_cselect_b32 s%d, s%d, 0" % (sW + 2, sW + 2))
        q("s_mov_b64 s[%d:%d], s[%d:%d]\ns_mov_b32 s%d, s%d" % (sW2, sW2 + 1, sW, sW + 1, sW2 + 2, sW + 2))
        q.add(w_voffs(3840))
    def sw_XQ(q):
        srd(q, sX, ptr(A_X), nrec=2048 * 1280)
    def sw_WQ(q):
        w_srd(q, sW, A_WQ, sH, 640 * 8192)
        q.add(w_voffs(8192))

    class Plan:
        def __init__(s):
            s.vm, s.unit, s.free, s.when, s.now = [], {}, [], {}, 0
            s.pend = {"X": [], "W": []}
            s.job = {"X": "KV", "W": "KV"}
            for st in range(8):
                for g in range(2):
                    s.pend["X"].append((("KX", st, g), "KV", st, str(g * 128 * 1024 + st * 128), ((2 * st) % 5) * 2 + g))
                    s.pend["W"].append((("KW", st, g), "KV", st, str(st * 64 * 8192), ((2 * st + 1) % 5) * 2 + g))
            for b in range(10):
                s.pend["X"].append((("BX", b), "B", 8 + b, str(b * 128), None))
                s.pend["W"].append((("BW", b), "B", 8 + b, str(b * 64 * 3840), None))
            for st in range(10):
                s.pend["X"].append((("QX", st, 0), "Q", 18 + st, (sHi, st * 128), None))
                s.pend["X"].append((("QX", st, 1), "Q", 18 + st, (sLo, st * 128), None))
                s.pend["W"].append((("QW", st), "Q", 18 + st, str(st * 64 * 8192), None))
            s.free = list(range(10))
        def copy(s):
            import copy
            return copy.deepcopy(s)
        def take(s, ty, i):
            oth = "W" if ty == "X" else "X"
            pre = []
            c = s.pend[ty][0] if s.pend[ty] else None
            if c is not None:
                if c[4] is not None:
                    ok = c[4] in s.free
                else:
                    resv = {g[4] for t in "XW" for g in s.pend[t] if g[4] is not None}
                    av = [x for x in s.free if x not in resv]
                    ok = len(av) - 1 >= sum(1 for g in s.pend[oth] if g[2] < c[2] and g[4] is None)
                if not ok:
                    c = None
            if c is None:
                return ["s_mov_b32 s%d, 0x30000" % (sM + i), "s_brev_b32 s%d, 1" % (sS + i)], None
            s.pend[ty].pop(0)
            un = c[4] if c[4] is not None else av[0]
            s.free.remove(un)
            s.unit[c[0]] = un
            s.when[c[0]] = s.now
            if c[1] != s.job[ty]:
                s.job[ty] = c[1]
                pre += L({"XB": sw_XB, "WB": sw_WB, "XQ": sw_XQ, "WQ": sw_WQ}[ty + c[1]])
            pre.append("s_add_u32 s%d, s%d, 0x%x" % (sM + i, sW4, un * U))
            if isinstance(c[3], tuple):
                pre.append("s_add_u32 s%d, s%d, %d" % (sS + i, c[3][0], c[3][1]))
            else:
                pre.append("s_mov_b32 s%d, %s" % (sS + i, c[3]))
            return pre, c[0]
        def issue(s, tag, n=4):
            s.vm += [tag] * n
        def hook(s, ins, tag="h"):
            for t in ins:
                i = t if isinstance(t, I) else I(t)
                if i.cnt == "vm":
                    s.vm.append(tag)
        def barrier(s, need, free, dt):
            last = max(max(k for k, t in enumerate(s.vm) if t == n) for n in need) if need else -1
            N = len(s.vm) - 1 - last
            if VERB:
                print("barrier need", need, "N", N, "flight", [s.now - s.when[n] for n in need if n in s.when])
            for f in free:
                s.free.append(s.unit[f])
            s.now += dt
            s.done = last
            return ["s_waitcnt %slgkmcnt(0)" % ("vmcnt(%d) " % min(N, 63) if need else ""), "s_barrier"]
        def complete(s, tag):
            return max(k for k, t in enumerate(s.vm) if t == tag) <= s.done
    pl = Plan()

    def pf_lin(which, total, k):
        share = total // 32
        return ["s_mul_i32 s%d, s%d, %d" % (sT, sIdx, share), "s_lshl_b32 s%d, s%d, 13" % (sT2, sWave), "s_add_u32 s%d, s%d, s%d" % (sT, sT, sT2),
                "s_add_u32 s%d, s%d, %d" % (sT, sT, k * 32768),
                "v_lshl_add_u32 v%d, v%d, 7, s%d" % (t0, vLane, sT), "v_min_u32 v%d, %d, v%d" % (t0, total - 128, t0),
                "global_load_dword v%d, v%d, s[%d:%d]" % (vDum, t0, ptr(which), ptr(which) + 1)]
    def pf_w(which, rows):
        share = rows // 32
        return ["s_mul_i32 s%d, s%d, %d" % (sT, sIdx, share), "s_lshl_b32 s%d, s%d, 3" % (sT2, sWave), "s_add_u32 s%d, s%d, s%d" % (sT, sT, sT2),
                "v_lshrrev_b32 v%d, 3, v%d" % (t0, vLane), "v_add_u32 v%d, s%d, v%d" % (t0, sT, t0), "v_min_u32 v%d, %d, v%d" % (t0, rows - 1, t0),
                "v_lshlrev_b32 v%d, 13, v%d" % (t0, t0), "v_and_b32 v%d, 7, v%d" % (t1, vLane), "v_lshl_add_u32 v%d, v%d, 7, v%d" % (t0, t1, t0),
                "s_lshl_b32 s%d, s%d, 10" % (sT, sXcd), "v_add_u32 v%d, s%d, v%d" % (t0, sT, t0),
                "global_load_dword v%d, v%d, s[%d:%d]" % (vDum, t0, ptr(which), ptr(which) + 1)]
    def pf_bx():
        return ["s_mul_i32 s%d, s%d, %d" % (sT, sXcd, 256 * 1280), "s_mul_i32 s%d, s%d, 10240" % (sT2, sIdx), "s_add_u32 s%d, s%d, s%d" % (sT, sT, sT2),
                "v_lshlrev_b32 v%d, 7, v0" % t0, "v_min_u32 v%d, %d, v%d" % (t0, 10240 - 128, t0), "v_add_u32 v%d, s%d, v%d" % (t0, sT, t0),
                "global_load_dword v%d, v%d, s[%d:%d]" % (vDum, t0, ptr(B_X), ptr(B_X) + 1)]

    def extra(ty, keep):
        if len(pl.free) <= keep:
            return []
        pre, tag = pl.take(ty, 2)
        if tag is None:
            return []
        pl.issue(tag)
        d = dma(2, sX if ty == "X" else sW)
        return pre + d[0] + d[1:]
    def skel(last_mf, bar, mf01, custom, target):
        if last_mf:
            p(last_mf)
        p.add(bar)
        h = (len(custom) + 1) // 2
        p.add([mf01[0]] + custom[:h] + [mf01[1]] + custom[h:] + [call(target)])
    def body(name, G, mf, entries=None):
        out = ["%s:" % name]
        for k in range(2, G.n - 1):
            if entries and k in entries:
                out.append("%s:" % entries[k])
            out += [mf[k]] + G.gap(k)
        assert not G.gap(0) and not G.gap(1) and not G.gap(G.n - 1)
        tail.extend(out + [ret])
    def pack_tile(src, dst):
        return ["v_cvt_pk_bf16_f32 v%d, v%d, v%d" % (dst + k, src + 2 * k, src + 2 * k + 1) for k in range(8)]
    def publish(idx_s, idx_add, val, skip_ge240=False):
        lab = p.newlabel("M_pub")
        r = ["s_cmp_lg_u32 s%d, 0" % sWave, "s_cbranch_scc1 %s" % lab]
        if skip_ge240:
            r += ["s_cmp_ge_u32 s2, 240", "s_cbranch_scc1 %s" % lab]
        return r + ["s_lshl_b32 s%d, s%d, 2" % (sT, idx_s), "v_mov_b32 v%d, %d" % (t0, val), "s_mov_b64 exec, 1",
                    "buffer_atomic_add v%d, off, s[%d:%d], s%d offset:%d sc1" % (t0, sD, sD + 3, sT, idx_add * 4),
                    "s_mov_b64 exec, -1", "%s:" % lab]
    def poll_load(idx_s, idx_add):
        return ["s_lshl_b32 s%d, s%d, 2" % (sT, idx_s), "buffer_load_dword v%d, off, s[%d:%d], s%d offset:%d sc1" % (vDum, sD, sD + 3, sT, idx_add * 4)]
    def poll_check(idx_s, idx_add, shift, need):
        lab = p.newlabel("M_poll")
        chk = ["v_readfirstlane_b32 s%d, v%d" % (sT2, vDum), "s_bfe_u32 s%d, s%d, 0x%x" % (sT2, sT2, (8 << 16) | shift), "s_cmp_ge_u32 s%d, %d" % (sT2, need)]
        tail.extend(["%s:" % lab, "s_mov_b32 s%d, 0x40000" % sSpin, "%s_l:" % lab, "s_sleep 1"] + poll_load(idx_s, idx_add) + ["s_waitcnt vmcnt(0)"] + chk +
                    ["s_cbranch_scc1 %s_r" % lab, "s_sub_u32 s%d, s%d, 1" % (sSpin, sSpin), "s_cbranch_scc0 %s_l" % lab, "s_branch %s_r" % lab])
        return chk + ["s_cbranch_scc0 %s" % lab, "%s_r:" % lab]

    p("s_cmp_ge_u32 s2, 256\ns_cbranch_scc1 M_exit")
    p("s_load_dwordx16 s[%d:%d], s[0:1], 0" % (P, P + 15))
    p("s_load_dwordx8 s[%d:%d], s[0:1], 64" % (P + 16, P + 23))
    p("s_load_dwordx2 s[%d:%d], s[0:1], 96" % (P + 24, P + 25))
    st_ = Stamper(p, vStamp, kid=0)
    p("v_and_b32 v%d, 63, v0" % vLane)
    p("v_lshrrev_b32 v%d, 6, v0" % t0)
    p("v_readfirstlane_b32 s%d, v%d" % (sWave, t0))
    p("s_and_b32 s%d, s2, 7" % sXcd)
    p("s_lshr_b32 s%d, s2, 3" % sIdx)
    p("s_lshl_b32 s%d, s%d, 12" % (sW4, sWave))
    p("s_lshl_b32 s%d, s%d, 2" % (sH, sXcd))
    p("s_lshr_b32 s%d, s%d, 3" % (sT, sIdx))
    p("s_add_u32 s%d, s%d, s%d" % (sH, sH, sT))
    p("s_and_b32 s%d, s%d, 7" % (sI, sIdx))
    p.add(x_voffs(1024))
    p.add(w_voffs(8192))
    p("s_waitcnt lgkmcnt(0)")
    st_()
    p("s_lshl_b32 s%d, s%d, 18" % (sT, sI))
    srd(p, sX, ptr(A_CKV), off_s=sT, nrec=256 * 1024)
    w_srd(p, sW, A_WUK, sH, 512 * 8192)
    w_srd(p, sW2, A_WUV, sH, 512 * 8192)
    for ty in "XWXWX":
        for g in range(2):
            pre, tag = pl.take(ty, 0)
            p.add(pre + dma(0, sX if ty == "X" else (sW, sW2)[g]))
            pl.issue(tag)
    p("s_mul_i32 s%d, s%d, 800" % (sT, sIdx))
    srd(p, sPhi, ptr(B_WPHI), off_s=sT, nrec=800)
    b1, b2 = vA, vA + 1
    p("s_and_b32 s%d, s%d, 3" % (sT, sIdx))
    p("s_mul_i32 s%d, s%d, 160" % (sT, sT))
    p("v_lshrrev_b32 v%d, 5, v%d" % (t0, vLane))
    p("v_mul_u32_u24 v%d, 160, v%d" % (t0, t0))
    p("v_subrev_u32 v%d, s%d, v%d" % (t0, sT, t0))
    p("v_and_b32 v%d, 3, v%d" % (t1, vLane))
    p("v_lshl_add_u32 v%d, v%d, 1, v%d" % (t0, t1, t0))
    p("v_bfe_u32 v%d, v%d, 3, 2" % (t1, vLane))
    p("v_lshl_add_u32 v%d, v%d, 3, v%d" % (b1, t1, t0))
    p("v_add_u32 v%d, 32, v%d" % (b2, t0))
    p("v_bfrev_b32 v%d, 1" % t2)
    p("v_cmp_eq_u32 vcc, 0, v%d" % t1)
    p("v_cndmask_b32 v%d, v%d, v%d, vcc" % (b2, t2, b2))
    x_rd_addr(p, vXr, vLane, t0, t1)
    p("s_lshr_b32 s%d, s%d, 1" % (sT, sWave))
    p("s_lshl_b32 s%d, s%d, 14" % (sT, sT))
    for ks in range(4):
        p("v_add_u32 v%d, s%d, v%d" % (vXr + ks, sT, vXr + ks))
    p("s_lshl_b32 s%d, s%d, 2" % (sKo, sT))
    p("s_and_b32 s%d, s%d, 0x1000" % (sT, sW4))
    p("s_add_u32 s%d, s%d, s%d" % (sKo, sKo, sT))
    p("s_lshr_b32 s%d, s%d, 11" % (sT, sT))
    p("v_mov_b32 v%d, s%d" % (t2, sT))
    w_rd_addr(p, vWr, vLane, t0, t1, t2)
    p("v_add_u32 v%d, 0x%x, v%d" % (vWr, 2 * U, vWr))
    p("v_xor_b32 v%d, 64, v%d" % (vWr + 1, vWr))
    p("v_lshlrev_b32 v%d, 4, v%d" % (vL16, vLane))
    gath = []
    n = 0
    for tile in range(2):
        for u in range(2):
            for e in range(8):
                cw = 16 * u + 8 * (e >> 2) + (e & 3)
                t = (t0, t1, t2)[n % 3]
                gath += ["v_add_u32 v%d, %d, v%d" % (t, cw * 40, b2 if tile else b1),
                         "buffer_load_ushort a%d, v%d, s[%d:%d], 0 offen" % (aRAW + n, t, sPhi, sPhi + 3)]
                n += 1
    p.add(gath[:40])
    pl.hook(gath[:40])
    p("s_lshl_b32 s%d, s%d, 1" % (sTB, sXcd))
    p("s_cmp_ge_u32 s%d, 15" % sIdx)
    p("s_cselect_b32 s%d, 15, 0" % sT)
    p("s_addc_u32 s%d, s%d, 0" % (sTB, sTB))
    p("s_sub_u32 s%d, s%d, s%d" % (sCB, sIdx, sT))
    p("s_mul_i32 s%d, s%d, %d" % (sLo, sI, 128 * 1280))
    p("s_sub_u32 s%d, %d, s%d" % (sHi, 15 * 128 * 1280, sLo))
    srd(p, sD, ptr(D_DBG), nrec=256)

    fx = lambda st, i: 128 + st * 32 + i * 4
    fw = lambda st, i: 128 + st * 32 + 16 + i * 4
    def kvreg(mat, n):
        if mat == 0:
            return ("v", RB + 16 * n if n < 4 else RA + 16 * (n - 4))
        return ("v", RC + 16 * n) if n < 4 else (("v", RD + 16 * (n - 4)) if n < 6 else ("a", 16 * (n - 6)))
    def kv_reads(st, ks):
        X = ["ds_read_b128 %s, v%d offset:%d" % (rr("a", fx(st, i), 4), vXr + ks, i * 4096) for i in range(4)]
        W = [["ds_read_b64_tr_b16 %s, v%d offset:%d" % (rr("a", fw(st, i) + 2 * u, 2), vWr + (i & 1), (i >> 1) * U + ks * 4096 + u * 1024) for u in range(2)] for i in range(4)]
        return [X[0]] + W[0] + W[1] + X[1:] + W[2] + W[3]
    def kv_mf(st, zero=False):
        r = []
        for mat in range(2):
            for n in range(8):
                f, b0 = kvreg(mat, n)
                a = rr(f, b0, 16)
                X, W = rr("a", fx(st, n >> 1), 4), rr("a", fw(st, mat * 2 + (n & 1)), 4)
                A, B = (X, W) if mat else (W, X)
                r.append("%s %s, %s, %s, %s" % (MF, a, A, B, "0" if zero else a))
        return r
    WL = "s_waitcnt lgkmcnt(0)"
    mfA, mfB = kv_mf(1) + kv_mf(0), kv_mf(1) + kv_mf(0)
    G = Gaps(32)
    G.spread(kv_reads(0, 0), 2, 13); G.put(15, WL); G.spread(kv_reads(1, 1), 16, 27)
    put_dma(G, 0, sW, 2, 15); put_dma(G, 1, sW2, 16, 30)
    body("M_kvA", G, mfA)
    G = Gaps(32)
    G.spread(kv_reads(0, 2), 2, 13); G.put(15, WL); G.spread(kv_reads(1, 3), 16, 27)
    put_dma(G, 0, sX, 2, 15); put_dma(G, 1, sX, 16, 30)
    body("M_kvB", G, mfB)
    KVs = lambda s: [("KX", s, 0), ("KX", s, 1), ("KW", s, 0), ("KW", s, 1)]
    st_()
    p.add(pl.barrier(KVs(0), [], 1536))
    st_()
    p.add(kv_reads(0, 0))
    p(WL)
    G = Gaps(16)
    G.spread(kv_reads(1, 1), 0, 11)
    z = kv_mf(0, zero=True)
    p.add(G.emit(z, 0, 15))
    last = z[15]
    hooks = [gath[40:], pf_lin(B_WQKV, 640 * 3840, 0) + pf_bx(), pf_lin(B_WQKV, 640 * 3840, 1), pf_lin(B_WQKV, 640 * 3840, 2),
             pf_w(A_WQ, 640), pf_lin(A_X, 2048 * 1280, 0), pf_lin(A_X, 2048 * 1280, 1), pf_lin(A_X, 2048 * 1280, 2)]
    if not PREFETCH:
        hooks = hooks[:1] + [[]] * 7
    def upd(regs, d):
        return ["v_add_u32 v%d, 0x%x, v%d" % (r, u32(d), r) for r in regs]
    for s in range(8):
        if s:
            bar = pl.barrier(KVs(s), KVs(s - 1), 2048)
            cu = upd([vXr, vXr + 1, vXr + 2, vXr + 3], (pl.unit[("KX", s, 0)] - pl.unit[("KX", s - 1, 0)]) * U) + \
                 upd([vWr, vWr + 1], (pl.unit[("KW", s, 0)] - pl.unit[("KW", s - 1, 0)]) * U)
            tags = []
            for i in range(2):
                pre, tag = pl.take("W", i)
                cu += pre
                tags.append(tag)
            for t in tags:
                pl.issue(t)
            skel(last, bar, mfA, cu, "M_kvA")
            last = mfA[31]
        cu = list(hooks[s])
        pl.hook(cu)
        tags = []
        for i in range(2):
            pre, tag = pl.take("X", i)
            cu += pre
            tags.append(tag)
        for t in tags:
            pl.issue(t)
        skel(last, [WL], mfB, cu, "M_kvB")
        last = mfB[31]
        if s in (3,) and STAMPS and os.environ.get("FINE"):
            st_()
    st_()

    bfx = lambda st, k, i: 128 + st * 32 + k * 16 + i * 4
    bfw = lambda st, k, i: 128 + st * 32 + k * 16 + 8 + i * 4
    def b_reads(st):
        r = []
        for k in range(2):
            ks = st * 2 + k
            for i in range(2):
                r.append("ds_read_b128 %s, v%d offset:%d" % (rr("a", bfx(st, k, i), 4), vXr + ks, i * 4096))
                for u in range(2):
                    r.append("ds_read_b64_tr_b16 %s, v%d offset:%d" % (rr("a", bfw(st, k, i) + 2 * u, 2), vWr + i, ks * 4096 + u * 1024))
        return r
    def b_mf(var, st, zero=False):
        mf = []
        for k in range(2):
            for b in range(2):
                for c in range(2):
                    a = rr("v", RA + (b * 2 + c) * 16, 16)
                    X, W = rr("a", bfx(st, k, b), 4), rr("a", bfw(st, k, c), 4)
                    A, B = (X, W) if var else (W, X)
                    mf.append("%s %s, %s, %s, %s" % (MF, a, A, B, "0" if (zero and k == 0) else a))
        return mf
    def kv_pack(mat, n):
        f, b0 = kvreg(mat, n)
        dst = (RC if mat else RB) + 8 * n
        if f == "v":
            return pack_tile(b0, dst)
        return ["v_accvgpr_read_b32 v%d, a%d" % (RD + k, b0 + k) for k in range(16)] + pack_tile(RD, dst)
    def kv_store(mat, n):
        reg = (RC if mat else RB) + 8 * n
        return ["s_add_u32 s%d, s%d, 0x%x" % (sOff, sKo, (n >> 1) * U + mat * 8192)] + \
               ["buffer_store_dwordx4 %s, v%d, s[%d:%d], s%d offen offset:%d %s" % (rr("v", reg + 4 * m, 4), vL16, sO, sO + 3, sOff, (n & 1) * 2048 + m * 1024, WT) for m in range(2)]
    def b_store(t):
        return ["s_add_u32 s%d, s%d, 0x%x" % (sOff, sBo, (t >> 1) * 120 * 1024)] + \
               ["buffer_store_dwordx4 %s, v%d, s[%d:%d], s%d offen offset:%d %s" % (rr("v", RD + 8 * t + 4 * m, 4), vL16, sBO, sBO + 3, sOff, (t & 1) * 2048 + m * 1024, WT) for m in range(2)]
    Bs = lambda b: [("BX", b), ("BW", b)]
    Qs = lambda s: [("QX", s, 0), ("QX", s, 1), ("QW", s)]
    p(last)
    p.add(pl.barrier(Bs(0), KVs(7), 768))
    G = Gaps(16)
    G.put(0, ["s_lshr_b32 s%d, s%d, 1" % (sT, sWave), "s_lshl_b32 s%d, s%d, 13" % (sT, sT),
              "s_sub_u32 s%d, 0x%x, s%d" % (sT, u32((pl.unit[("BX", 0)] - pl.unit[("KX", 7, 0)]) * U), sT)])
    G.put(0, ["v_add_u32 v%d, s%d, v%d" % (vXr + k, sT, vXr + k) for k in range(4)])
    G.put(1, upd([vWr, vWr + 1], (pl.unit[("BW", 0)] - pl.unit[("KW", 7, 0)]) * U))
    for i in range(2):
        pre, tag = pl.take("W", i)
        assert len(pre) == 2
        G.put(1, pre)
        pl.issue(tag)
        put_dma(G, i, sW, 2 + 7 * i, 8 + 7 * i)
    G.spread(b_reads(0), 2, 13)
    G.stream([x for n in range(8) for x in kv_pack(0, n)], 3, 15)
    p.add(G.emit(kv_mf(1)))
    p("s_lshl_b32 s%d, s%d, 20" % (sT, sH))
    p("s_lshl_b32 s%d, s%d, 17" % (sT2, sI))
    p("s_add_u32 s%d, s%d, s%d" % (sT, sT, sT2))
    srd(p, sO, ptr(D_WS), off_s=sT, off_imm=WS_KV, nrec=128 * 1024)
    p(WL)
    p("s_cmp_ge_u32 s%d, 10\ns_cbranch_scc1 M_bv" % sCB)
    pl0 = pl
    qfx = lambda st, i: 128 + st * 24 + i * 4
    qfw = lambda st, i: 128 + st * 24 + 8 + i * 4
    qacc = lambda tl, a: RA + (tl * 4 + a) * 16
    def q_reads(st, ks):
        r = []
        for i in range(4):
            if i < 2:
                r.append("ds_read_b128 %s, v%d" % (rr("a", qfx(st, i), 4), vXr + 4 * i + ks))
            for u in range(2):
                r.append("ds_read_b64_tr_b16 %s, v%d offset:%d" % (rr("a", qfw(st, i) + 2 * u, 2), vWr + i, ks * 4096 + u * 1024))
        return r
    for var in range(2):
        pl = pl0.copy()
        if var:
            p("M_bv:")
        mfb = b_mf(var, 1) + b_mf(var, 0)
        G = Gaps(16)
        G.spread(b_reads(0), 2, 6); G.put(7, WL); G.spread(b_reads(1), 8, 13)
        put_dma(G, 0, sW, 2, 8); put_dma(G, 1, sX, 9, 14)
        body("M_b%d" % var, G, mfb)
        G = Gaps(8)
        pre, tag = pl.take("X", 1)
        assert len(pre) == 2
        G.put(0, pre)
        pl.issue(tag)
        put_dma(G, 1, sX, 1, 6)
        G.spread(b_reads(1), 0, 5)
        G.stream([x for n in range(8) for x in kv_pack(1, n)], 0, 6)
        z = b_mf(var, 0, zero=True)
        p.add(G.emit(z, 0, 7))
        last = z[7]
        stores = [kv_store(0, n) for n in range(8)] + [kv_store(1, 0)]
        for b in range(1, 10):
            bar = pl.barrier(Bs(b), Bs(b - 1), 512)
            cu = upd([vXr, vXr + 1, vXr + 2, vXr + 3], (pl.unit[("BX", b)] - pl.unit[("BX", b - 1)]) * U) + \
                 upd([vWr, vWr + 1], (pl.unit[("BW", b)] - pl.unit[("BW", b - 1)]) * U)
            cu += extra("X" if (b != 2) else "W", 2)
            tags = []
            for i, ty in enumerate("WX"):
                pre, tag = pl.take(ty, i)
                cu += pre
                tags.append(tag)
            cu += stores[b - 1]
            pl.hook(stores[b - 1], "kv")
            for t in tags:
                pl.issue(t)
            skel(last, bar, mfb, cu, "M_b%d" % var)
            if STAMPS and os.environ.get("FINE") and b in (1, 3, 5, 7):
                if var and b == 1:
                    st_.n -= 4
                st_()
            last = mfb[15]
        p(last)
        p.add(pl.barrier(Qs(0), Bs(9), 1024))
        G = Gaps(8)
        G.put(0, ["s_and_b32 s%d, s%d, 0x1000" % (sT, sW4), "s_add_u32 s%d, s%d, 0x%x" % (sT2, sT, u32((pl.unit[("QX", 0, 1)] - pl.unit[("BX", 9)]) * U)),
                  "s_add_u32 s%d, s%d, 0x%x" % (sT, sT, u32((pl.unit[("QX", 0, 0)] - pl.unit[("BX", 9)]) * U))])
        G.put(0, ["v_add_u32 v%d, s%d, v%d" % (vXr + 4 + k, sT2, vXr + k) for k in range(4)])
        G.put(1, ["s_lshr_b32 s%d, s%d, 5" % (sT2, sW4), "s_and_b32 s%d, s%d, 0x80" % (sT2, sT2)])
        G.put(1, ["v_add_u32 v%d, s%d, v%d" % (vXr + k, sT, vXr + k) for k in range(4)])
        G.put(1, ["v_xor_b32 v%d, s%d, v%d" % (vWr, sT2, vWr)] + upd([vWr], (pl.unit[("QW", 0)] - pl.unit[("BW", 9)]) * U) +
                 ["v_xor_b32 v%d, %d, v%d" % (vWr + c, c * 64, vWr) for c in range(1, 4)])
        pre, tag = pl.take("X", 0)
        assert len(pre) == 2
        G.put(2, pre)
        pl.issue(tag)
        put_dma(G, 0, sX, 3, 7)
        G.spread(q_reads(0, 0), 2, 6)
        p.add(G.emit(b_mf(var, 1)))
        if var == 0:
            p("s_branch M_bdone")
    p("M_bdone:")
    st_()

    qorder = [(tl, a) for tl in (1, 0) for a in range(4)]
    def q_mf(st, zero=False):
        return ["%s %s, %s, %s, %s" % (MF, rr("v", qacc(tl, a), 16), rr("a", qfw(st, a), 4), rr("a", qfx(st, tl), 4), "0" if zero else rr("v", qacc(tl, a), 16)) for tl, a in qorder]
    mfq = q_mf(1) + q_mf(0) + q_mf(1) + q_mf(0)
    G = Gaps(32)
    G.spread(q_reads(0, 0), 2, 6)
    for ks in range(3):
        G.put(8 * ks + 7, WL)
        G.spread(q_reads((ks + 1) & 1, ks + 1), 8 * ks + 8, 8 * ks + 13)
    put_dma(G, 0, sX, 2, 10); put_dma(G, 1, sX, 11, 20); put_dma(G, 2, sW, 21, 30)
    Gq = G
    body("M_q", G, mfq, entries={16: "M_q16"})
    p("s_mul_i32 s%d, s%d, %d" % (sT, sTB, 4 * 120 * 1024))
    p("s_lshl_b32 s%d, s%d, 13" % (sT2, sCB))
    p("s_add_u32 s%d, s%d, s%d" % (sT, sT, sT2))
    srd(p, sBO, ptr(D_WS), off_s=sT, off_imm=WS_BF)
    p("s_cmp_lt_u32 s2, 240\ns_cselect_b32 s%d, %d, 0" % (sBO + 2, 4 * 120 * 1024))
    p("s_lshr_b32 s%d, s%d, 1" % (sBo, sWave))
    p("s_mul_i32 s%d, s%d, %d" % (sBo, sBo, 2 * 120 * 1024))
    p("s_and_b32 s%d, s%d, 0x1000" % (sT, sW4))
    p("s_add_u32 s%d, s%d, s%d" % (sBo, sBo, sT))
    tags = []
    for i, ty in ((1, "X"), (2, "W")):
        pre, tag = pl.take(ty, i)
        p.add(pre)
        tags.append(tag)
    for t in tags:
        pl.issue(t)
    p(WL)
    G = Gaps(8)
    for k in range(8):
        G.put(k, [x for x in Gq.gap(8 + k) if not ("lds" in x and "s%d offen" % sS in x)])
    G.stream([x for t in range(4) for x in pack_tile(RA + 16 * t, RD + 8 * t)], 0, 3)
    p.add(G.emit(q_mf(0, zero=True)))
    p(call("M_q16"))
    last = mfq[31]
    def bm_frag_loads(q, fbase):
        q("s_lshl_b32 s%d, s%d, 3" % (sTT, sXcd))
        q("s_lshl_b32 s%d, s%d, 1" % (sT, sWave))
        q("s_add_u32 s%d, s%d, s%d" % (sTT, sTT, sT))
        q("s_mul_i32 s%d, s%d, %d" % (sT, sTT, 120 * 1024))
        srd(q, sBF, ptr(D_WS), off_s=sT, off_imm=WS_BF, nrec=2 * 120 * 1024)
        q("s_mul_i32 s%d, s%d, 5" % (sT, sIdx))
        q("s_lshr_b32 s%d, s%d, 2" % (sT, sT))
        q("s_add_u32 s%d, s%d, %d" % (sT, sT, fbase))
        q("s_lshl_b32 s%d, s%d, 10" % (sT, sT))
        for tt in range(2):
            for u in range(2):
                q("buffer_load_dwordx4 %s, v%d, s[%d:%d], s%d offen offset:%d %s" % (rr("a", aXF + (tt * 2 + u) * 4, 4), vL16, sBF, sBF + 3, sT, u * 1024, WT))
            if tt == 0:
                q("s_add_u32 s%d, s%d, %d" % (sT, sT, 120 * 1024))
    vV, vWa, vRd = vA + 2, vA + 3, vA
    def bm1_loads(q):
        bm_frag_loads(q, 40)
        q("s_mul_i32 s%d, s%d, 20" % (sT, sIdx))
        q("v_and_b32 v%d, 31, v%d" % (t2, vLane))
        q("v_add_u32 v%d, s%d, v%d" % (t1, sT, t2))
        q("v_lshrrev_b32 v%d, 5, v%d" % (vV, t1))
        q("v_lshlrev_b32 v%d, 11, v%d" % (vV, vV))
        q("v_and_b32 v%d, 31, v%d" % (t1, t1))
        q("v_lshl_add_u32 v%d, v%d, 4, v%d" % (vV, t1, vV))
        q("v_and_b32 v%d, 32, v%d" % (t1, vLane))
        q("v_lshl_add_u32 v%d, v%d, 4, v%d" % (vV, t1, vV))
        q("v_bfrev_b32 v%d, 1" % t1)
        q("v_cmp_gt_u32 vcc, 20, v%d" % t2)
        q("v_cndmask_b32 v%d, v%d, v%d, vcc" % (vV, t1, vV))
        for tt in range(2):
            q("s_mov_b32 s%d, %d" % (sT, (tt * 120 + 80) * 1024))
            for mm in range(2):
                q("buffer_load_dwordx4 %s, v%d, s[%d:%d], s%d offen offset:%d %s" % (rr("a", aVF + (tt * 2 + mm) * 4, 4), vV, sBF, sBF + 3, sT, mm * 1024, WT))
    qst = {1: [("b", b_store(0)), ("b", b_store(1))], 2: [("b", b_store(2)), ("b", b_store(3))], 3: [("kv", kv_store(1, 1)), ("kv", kv_store(1, 2))],
           4: [("kv", kv_store(1, 3))], 5: [("kv", kv_store(1, 4)), ("kv", kv_store(1, 5))], 6: [("kv", kv_store(1, 6))], 7: [("kv", kv_store(1, 7))]}
    pubB = pubKV = None
    for s in range(1, 10):
        bar = pl.barrier(Qs(s), Qs(s - 1), 1024)
        cu = upd([vXr], (pl.unit[("QX", s, 0)] - pl.unit[("QX", s - 1, 0)]) * U) + upd([vXr + 4], (pl.unit[("QX", s, 1)] - pl.unit[("QX", s - 1, 1)]) * U) + \
             upd([vWr + c for c in range(4)], (pl.unit[("QW", s)] - pl.unit[("QW", s - 1)]) * U) + \
             ["v_xor_b32 v%d, %d, v%d" % (vXr + 4 * g + k, 32 * k, vXr + 4 * g) for g in range(2) for k in range(1, 4)]
        cu += extra("X", 3)
        tags = []
        for i, ty in enumerate("XXW"):
            pre, tag = pl.take(ty, i)
            cu += pre
            tags.append(tag)
        if pubB is None and s > 2 and pl.complete("b"):
            pubB = s
            cu.append(publish(sXcd, 32, 1, skip_ge240=True))
        if pubKV is None and s > 7 and pl.complete("kv"):
            pubKV = s
            cu.append(publish(sH, 0, 1))
        for tag, ins in qst.get(s, []):
            cu += ins
            pl.hook(ins, tag)
        if s == 6:
            ins = poll_load(sXcd, 32)
            cu += ins
            pl.hook(ins, "poll")
        if s == 8:
            assert pl.complete("poll")
            cu.append(poll_check(sXcd, 32, 0, 30))
            ins = L(bm1_loads)
            cu += ins
            pl.hook(ins)
        for t in tags:
            pl.issue(t)
        skel(last, bar, mfq, cu, "M_q")
        if STAMPS and os.environ.get("FINE"):
            st_()
    if VERB:
        print("pubB", pubB, "pubKV", pubKV)
    assert pubB and pubKV and not pl.pend["X"] and not pl.pend["W"]
    p(last)
    p(WL)
    p("s_mov_b32 s%d, 0x%x" % (sT, QSCALE))
    qp = []
    for tl, a in qorder:
        b = qacc(tl, a)
        qp += ["v_mul_f32 v%d, s%d, v%d" % (b + k, sT, b + k) for k in range(16)] + pack_tile(b, Q(tl, 2 * a))
    G = Gaps(8)
    G.stream(qp[:30], 3, 7)
    p.add(G.emit(q_mf(1)))
    p.add(qp[30:])
    st_()
    p.add(poll_load(sH, 0))

    C1, C2, PH, VF, KC, AF, RR = 48, 64, 80, 96, 112, TMP, 32
    q = Prog()
    q("M_phi:")
    for tile, C in ((0, C1), (1, C2)):
        for u in range(2):
            q("%s %s, %s, %s, %s" % (MF, rr("v", C, 16), rr("v", AW + (tile * 2 + u) * 4, 4), rr("a", aXF + u * 4, 4), rr("v", C, 16) if u else "0"))
    for k in range(8):
        q("v_accvgpr_mov_b32 a%d, a%d" % (aXF + k, aXF + 8 + k))
    x = [C1 + k for k in range(16)] + [C2 + k for k in range(4)]
    m = t1
    q("v_max3_f32 v%d, v%d, v%d, v%d" % (m, x[0], x[1], x[2]))
    for k in range(3, 19, 2):
        q("v_max3_f32 v%d, v%d, v%d, v%d" % (m, m, x[k], x[k + 1]))
    q("v_max_f32 v%d, v%d, v%d" % (m, m, x[19]))
    q("v_mul_f32 v%d, s%d, v%d" % (m, sL2, m))
    for k in range(20):
        q("v_fma_f32 v%d, v%d, s%d, -v%d" % (x[k], x[k], sL2, m))
    for k in range(20):
        q("v_exp_f32 v%d, v%d" % (x[k], x[k]))
    q("v_add_f32 v%d, v%d, v%d" % (m, x[0], x[1]))
    for k in range(2, 20):
        q("v_add_f32 v%d, v%d, v%d" % (m, m, x[k]))
    q("v_rcp_f32 v%d, v%d" % (m, m))
    for k in range(20):
        q("v_mul_f32 v%d, v%d, v%d" % (x[k], x[k], m))
    for k in range(10):
        q("v_cvt_pk_bf16_f32 v%d, v%d, v%d" % (PH + k, x[2 * k], x[2 * k + 1]))
    q(ret)
    tail += q.ins

    L0 = 96 * 1024
    p("s_mov_b32 s%d, 0x%x" % (sL2, LOG2E))
    p("v_bfe_u32 v%d, v%d, 2, 1" % (t0, vLane))
    p("v_mul_u32_u24 v%d, 0x8000, v%d" % (t0, t0))
    p("v_lshl_or_b32 v%d, v%d, 16, v%d" % (t0, t0, t0))
    for k in range(32):
        p("v_accvgpr_read_b32 v%d, a%d" % (KC + k, aRAW + k))
    for k in range(16):
        p("v_lshl_or_b32 v%d, v%d, 16, v%d" % (AW + k, KC + 2 * k + 1, KC + 2 * k))
        p("v_xor_b32 v%d, v%d, v%d" % (AW + k, AW + k, t0))
    p(call("M_phi"))
    p("s_lshl_b32 s%d, s%d, 20" % (sT, sH))
    srd(p, sKV, ptr(D_WS), off_s=sT, off_imm=WS_KV)
    p("s_lshl_b32 s%d, s%d, 16" % (sT, sI))
    p("s_sub_u32 s%d, 0x100000, s%d" % (sKV + 2, sT))
    p("v_add_u32 v%d, s%d, v%d" % (vDma, sW4, vL16))
    p.add(poll_check(sH, 0, 0, 8))
    p("s_barrier")
    st_()
    for t in range(5):
        p("s_add_u32 m0, s%d, 0x%x" % (sW4, t * U))
        p("s_mov_b32 s%d, 0x%x" % (sOff, t * U))
        for k in range(4):
            p("buffer_load_dwordx4 v%d, s[%d:%d], s%d offen offset:%d %s lds" % (vDma, sKV, sKV + 3, sOff, k * 1024, WT))
    p("v_and_b32 v%d, 31, v%d" % (t2, vLane))
    p("s_add_u32 s%d, s%d, %d" % (sT, sW4, L0))
    p("v_lshlrev_b32 v%d, 7, v%d" % (vWa, t2))
    p("v_lshrrev_b32 v%d, 5, v%d" % (t1, vLane))
    p("v_lshl_add_u32 v%d, v%d, 6, v%d" % (vWa, t1, vWa))
    p("v_add_u32 v%d, s%d, v%d" % (vWa, sT, vWa))
    p("v_lshlrev_b32 v%d, 9, v%d" % (vRd, t1))
    p("v_bfe_u32 v%d, v%d, 2, 2" % (t1, vLane))
    p("v_lshl_add_u32 v%d, v%d, 7, v%d" % (vRd, t1, vRd))
    p("v_bfe_u32 v%d, v%d, 4, 1" % (t1, vLane))
    p("v_lshl_add_u32 v%d, v%d, 5, v%d" % (vRd, t1, vRd))
    p("v_and_b32 v%d, 3, v%d" % (t1, vLane))
    p("v_lshl_add_u32 v%d, v%d, 3, v%d" % (vRd, t1, vRd))
    p("v_add_u32 v%d, s%d, v%d" % (vRd, sT, vRd))
    p("v_mov_b32 v%d, 0x3f803f80" % t0)
    p("v_cmp_eq_u32 vcc, 20, v%d" % t2)
    for tt in range(2):
        if tt:
            p(call("M_phi"))
        p("ds_write_b128 v%d, %s" % (vWa, rr("v", PH, 4)))
        p("ds_write_b128 v%d, %s offset:16" % (vWa, rr("v", PH + 4, 4)))
        p("ds_write_b64 v%d, %s offset:32" % (vWa, rr("v", PH + 8, 2)))
        for nn in range(2):
            for mm in range(2):
                for u in range(2):
                    p("ds_read_b64_tr_b16 %s, v%d offset:%d" % (rr("v", AF + (nn * 2 + mm) * 4 + 2 * u, 2), vRd, (16 * mm + 8 * u) * 128 + nn * 64))
        for k in range(8):
            p("v_accvgpr_read_b32 v%d, a%d" % (VF + k, aVF + tt * 8 + k))
        for k in range(8):
            p("v_cndmask_b32 v%d, v%d, v%d, vcc" % (VF + k, VF + k, t0))
        for mm in range(2):
            for nn in range(2):
                c = rr("v", KC + nn * 16, 16)
                p("%s %s, %s, %s, %s" % (MF, c, rr("v", AF + (nn * 2 + mm) * 4, 4), rr("v", VF + mm * 4, 4), "0" if (tt == 0 and mm == 0) else c))
    R0 = L0 + 16384
    p("s_mul_i32 s%d, s%d, 6144" % (sT, sWave))
    p("s_add_u32 s%d, s%d, %d" % (sT, sT, R0))
    p("v_add_u32 v%d, s%d, v%d" % (t1, sT, vL16))
    p("v_and_b32 v%d, 31, v%d" % (vLim, vLane))
    p("v_lshrrev_b32 v%d, 5, v%d" % (t0, vLane))
    p("v_lshlrev_b32 v%d, 8, v%d" % (vCt, t0))
    p("v_lshlrev_b32 v%d, 10, v%d" % (vV, t0))
    p("v_lshl_add_u32 v%d, v%d, 4, v%d" % (vV, t2, vV))
    p("v_lshlrev_b32 v%d, 2, v%d" % (t0, t0))
    p("v_sub_u32 v%d, v%d, v%d" % (vLim, vLim, t0))
    p("v_mov_b32 v%d, 0x%x" % (vNeg, NEG))
    p("v_bfe_u32 v%d, v%d, 4, 1" % (t0, vLane))
    p("v_lshl_add_u32 v%d, v%d, 10, v%d" % (vCt, t0, vCt))
    p("v_and_b32 v%d, 15, v%d" % (t0, vLane))
    p("v_lshl_add_u32 v%d, v%d, 4, v%d" % (vCt, t0, vCt))
    p("v_mov_b32 v%d, 0\nv_mov_b32 v%d, 0" % (vL, vL + 1))
    for nn in range(2):
        for jj in range(3):
            p("ds_write_b128 v%d, %s offset:%d" % (t1, rr("v", KC + nn * 16 + jj * 4, 4), (nn * 3 + jj) * 1024))
    p("s_lshl_b32 s%d, s%d, 3" % (sT, sIdx))
    p("s_add_u32 s%d, s%d, s%d" % (sT, sT, sXcd))
    p("s_lshl_b32 s%d, s%d, 13" % (sT, sT))
    srd(p, sY, ptr(D_WS), off_s=sT, off_imm=WS_KVP, nrec=5120)
    srd(p, sC, ptr(D_WS), off_imm=WS_CTX, nrec=16 * MB)
    p("s_lshl_b32 s%d, s%d, 10" % (sT, sWave))
    p("s_add_u32 s%d, s%d, %d" % (sT, sT, R0))
    p("v_add_u32 v%d, s%d, v%d" % (t1, sT, vL16))
    for k in range(128):
        p("v_accvgpr_write_b32 a%d, 0" % k)
    p("v_mov_b32 v%d, v%d" % (vB, vL16))
    p("v_add_u32 v%d, 0x4000, v%d" % (vB + 1, vL16))
    p("s_waitcnt vmcnt(8) lgkmcnt(0)\ns_barrier")
    st_()
    for j in range(8):
        p("ds_read_b128 %s, v%d offset:%d" % (rr("a", FB(j), 4), vB, j * 1024))
    RS = 128
    for k in range(2):
        for w in range(4):
            p("ds_read_b128 %s, v%d offset:%d" % (rr("v", RS + k * 16 + w * 4, 4), t1, w * 6144 + k * 4096))
    p("s_lshl_b32 s%d, s%d, 11" % (sT, sWave))
    p("s_cmp_eq_u32 s%d, 3" % sWave)
    p("s_cselect_b32 s%d, 512, s%d" % (sT2, sT))
    p("s_add_u32 s%d, s%d, 2560" % (sOff, sT))
    p("s_mov_b32 s%d, 0x%x" % (sThr, THRESH))
    p("s_lshl_b32 s%d, s%d, 2" % (sT, sI))
    p("s_add_u32 s%d, s%d, s%d" % (sLoTri, sT, sWave))
    p("s_sub_u32 s%d, 60, s%d" % (sHiTri, sT))
    p("s_add_u32 s%d, s%d, s%d" % (sHiTri, sHiTri, sWave))
    p("s_mov_b32 s%d, s%d" % (sEvt, sLoTri))
    p("s_mov_b32 s%d, 0x4000" % sRd)
    for k in range(32):
        p("v_mov_b32 v%d, 0" % (CI(0) + k))
    p("s_mov_b32 s%d, 0" % sStep)
    p("s_mov_b32 s%d, 0x%x" % (sG, 5 * U))

    def evt_check():
        lab = p.newlabel("M_ev")
        tail.extend(["%s:" % lab, call("M_event"), "s_branch %s_r" % lab])
        return ["s_cmp_eq_u32 s%d, s%d" % (sStep, sEvt), "s_cbranch_scc1 %s" % lab, "%s_r:" % lab]
    def qk_mfmas(par, tiles):
        return [(ds, "%s %s, %s, %s, %s" % (MF, rr("v", S(par, tl), 16), rr("a", FB(ds), 4), rr("v", Q(tl, ds), 4), rr("v", CI(tl) if ds == 0 else S(par, tl), 16)))
                for ds in range(8) for tl in tiles]
    def pv_mfmas(par, tiles):
        return [(8 + j, "%s %s, %s, %s, %s" % (MF, rr("a", O(tl, j & 3), 16), rr("a", FB(8 + j), 4), rr("v", PP(par, tl) + 4 * (j >> 2), 4), rr("a", O(tl, j & 3), 16)))
                for j in range(8) for tl in tiles]
    v_off = lambda j: 8192 + ((j & 3) * 2 + (j >> 2)) * 1024
    def rowmax(par, tl, dst, tmp):
        s = S(par, tl)
        r = ["v_max3_f32 v%d, v%d, v%d, v%d" % (dst, s, s + 1, s + 2)]
        for k in range(3, 15, 2):
            r.append("v_max3_f32 v%d, v%d, v%d, v%d" % (dst, dst, s + k, s + k + 1))
        r.append("v_max_f32 v%d, v%d, v%d" % (dst, dst, s + 15))
        return r + ["v_mov_b32 v%d, v%d" % (tmp, dst), "v_permlane32_swap_b32 v%d, v%d" % (dst, tmp), "v_max_f32 v%d, v%d, v%d" % (dst, dst, tmp)]
    def sm_stream(par, tiles, part):
        groups = [(tl, k) for k in range(part * 4, part * 4 + 4) for tl in tiles]
        out = []
        def fin(n):
            tl, k = groups[n]
            a, b = TMP + (n % 4) * 2, TMP + (n % 4) * 2 + 1
            if k == 0:
                adds = ["v_add_f32 v%d, v%d, v%d" % (vLt + tl, a, b)]
            else:
                adds = ["v_add_f32 v%d, v%d, v%d" % (vLt + tl, vLt + tl, a), "v_add_f32 v%d, v%d, v%d" % (vLt + tl, vLt + tl, b)]
            return adds, ["v_cvt_pk_bf16_f32 v%d, v%d, v%d" % (PP(par, tl) + k, a, b)]
        for n, (tl, k) in enumerate(groups):
            a, b = TMP + (n % 4) * 2, TMP + (n % 4) * 2 + 1
            ea = "v_exp_f32 v%d, v%d" % (a, S(par, tl) + 2 * k)
            eb = "v_exp_f32 v%d, v%d" % (b, S(par, tl) + 2 * k + 1)
            if n:
                ad, cv = fin(n - 1)
                out += [ea] + ad[:1] + cv + [eb] + ad[1:]
            else:
                out += [ea, eb]
        ad, cv = fin(len(groups) - 1)
        return out + ad[:1] + cv + ad[1:] if len(ad) > 1 else out + ["s_nop 0"] + ad + cv
    need = lambda js: I("need", xrd=[("a", FB(j) + e) for j in js for e in range(4)])
    kread = lambda j, par: "ds_read_b128 %s, v%d offset:%d" % (rr("a", FB(j), 4), vB + par, j * 1024)

    def iteration(par, qk, pv, barrier, jin, jout, dma=True, loop=None, evt=True):
        mq, mp = qk_mfmas(par ^ 1, qk), pv_mfmas(par, pv)
        mf = mq + mp
        nq, nm = len(mq), len(mf)
        G = Gaps(nm)
        pre = []
        first = {}
        for k, (j, _) in enumerate(mf):
            first.setdefault(j, k)
        rd = [(j, kread(j, par ^ 1)) for j in range(jin, 8) if qk] + \
             [(8 + j, "ds_read_b128 %s, v%d offset:%d" % (rr("a", FB(8 + j), 4), vB + par, v_off(j))) for j in range(8)]
        LA = 8 if len(qk) == 2 else 6
        lastv = -1
        for j, t in rd:
            g = first[j] - LA
            if nq == 0:
                pre.append(t)
            else:
                g = max(g, lastv + (1 if g > 0 else 0), 0)
                G.put(g, t)
                lastv = g
        for j in range(0, 16, 2):
            if j in first:
                if first[j] > 0:
                    G.nv[first[j] - 1].insert(0, need([j, j + 1]))
                else:
                    pre.append(need([j, j + 1]))
        tp = lastv + 1
        if jout:
            G.va[lastv].insert(0, "v_add_u32 v%d, s%d, v%d" % (vB + par, sRd, vL16))
            G.lightest(["s_add_u32 s%d, s%d, 0x4000" % (sRd, sRd), "s_and_b32 s%d, s%d, 0x1ffff" % (sRd, sRd)], 1, lastv - 1)
            if barrier:
                G.put(tp, ["s_waitcnt vmcnt(8)", "s_barrier"])
            G.spread([kread(j, par) for j in range(jout)], tp, nm - 1)
        if dma:
            d = ["buffer_load_dwordx4 v%d, s[%d:%d], s%d offen offset:%d %s lds" % (vDma, sKV, sKV + 3, sG, q * 1024, WT) for q in range(4)]
            G.put(0, ["s_and_b32 s%d, s%d, 0x1ffff" % (sWr, sG), "s_add_u32 m0, s%d, s%d" % (sWr, sW4)])
            step = 2 * max(1, (tp - 1) // 8)
            for q in range(4):
                G.put(1 + q * step, d[q])
            G.lightest(["s_add_u32 s%d, s%d, 0x4000" % (sG, sG)], 2 + 3 * step, nm - 2)
        if evt:
            G.lightest(["s_add_u32 s%d, s%d, 1" % (sStep, sStep)] + evt_check(), nq + 1, nm - 2)
        chk = []
        if len(pv) == 2:
            chk = ["v_max_f32 v%d, v%d, v%d" % (vU, vLt, vLt + 1), "v_cmp_lt_f32 vcc, s%d, v%d" % (sThr, vU)]
        else:
            chk = ["v_cmp_lt_f32 vcc, s%d, v%d" % (sThr, vLt + pv[0])]
        lab = p.newlabel("M_sl")
        tail.extend(["%s:" % lab] + [call("M_slow%d%d" % (par, tl)) for tl in pv] + ["s_branch %s_r" % lab])
        br = ["s_cbranch_vccnz %s" % lab, "%s_r:" % lab]
        accl = ["v_add_f32 v%d, v%d, v%d" % (vL + tl, vL + tl, vLt + tl) for tl in pv]
        if loop:
            G.put(nm - 1, ["s_sub_u32 s%d, s%d, 1" % (sCnt, sCnt)])
            G.put(nm - 1, ["s_cbranch_scc0 %s" % loop], post=True)
        if nq:
            G.put(nq - 1, br + accl)
            G.stream(sm_stream(par, pv, 1) + chk, 0, nq - 2)
            G.stream(sm_stream(par ^ 1, qk, 0), nq + 1, nm - 1)
        else:
            pre += sm_stream(par, pv, 1) + chk + br + accl
        if VERB:
            print("iteration", par, qk, pv, G.report())
        p.add(pre + G.emit([t for _, t in mf]))

    p.add(evt_check())
    mf0 = [t for _, t in qk_mfmas(0, (0, 1))]
    G = Gaps(16)
    red = []
    for k in range(2):
        b = RS + k * 16
        for e in range(4):
            red += ["v_add_f32 v%d, v%d, v%d" % (b + e, b + e, b + 4 + e), "v_add_f32 v%d, v%d, v%d" % (b + 8 + e, b + 8 + e, b + 12 + e)]
        red += ["v_add_f32 v%d, v%d, v%d" % (b + e, b + e, b + 8 + e) for e in range(4)]
    G.stream(red, 2, 8)
    for k in range(2):
        G.put(9 + k, "buffer_store_dwordx4 %s, v%d, s[%d:%d], s%d offen %s" % (rr("v", RS + k * 16, 4), vV, sY, sY + 3, sOff if k else sT2, WT))
    G.spread([kread(j, 1) for j in range(4)], 11, 15)
    p.add(G.emit(mf0))
    p("s_add_u32 s%d, s%d, 1" % (sStep, sStep))
    for tl in range(2):
        p.add(rowmax(0, tl, vU, vU + 1))
        for k in range(16):
            p("v_sub_f32 v%d, v%d, v%d" % (S(0, tl) + k, S(0, tl) + k, vU))
            p("v_sub_f32 v%d, v%d, v%d" % (CI(tl) + k, CI(tl) + k, vU))
    p.add(evt_check())
    p.add(sm_stream(0, (0, 1), 0))
    p("s_waitcnt vmcnt(0)\ns_barrier")
    p.add(publish(sIdx, 0, 0x100))
    def wo_src(which):
        p("s_lshr_b32 s%d, s2, 1" % sT)
        p("s_mul_i32 s%d, s%d, 40960" % (sT, sT))
        p("s_and_b32 s%d, s2, 1" % sT2)
        p("s_mul_i32 s%d, s%d, 640" % (sT2, sT2))
        p("s_add_u32 s%d, s%d, s%d" % (sT, sT, sT2))
        srd(p, sY, ptr(which), off_s=sT)
        p("s_sub_u32 s%d, 40960, s%d" % (sY + 2, sT2))
        p(call("M_wodma"))
    q = Prog()
    q("M_wodma:")
    q("s_mul_i32 s%d, s%d, 320" % (sT, sWave))
    q("s_mul_i32 s%d, s%d, 5120" % (sT2, sWave))
    q("s_add_u32 m0, s%d, 0x20000" % sT2)
    for k in range(5):
        q("v_add_u32 v%d, s%d, v%d" % (t0, sT, vLane))
        q("v_mul_u32_u24 v%d, 0x667, v%d" % (t1, t0))
        q("v_lshrrev_b32 v%d, 16, v%d" % (t1, t1))
        q("v_mul_u32_u24 v%d, 640, v%d" % (t1, t1))
        q("v_lshl_add_u32 v%d, v%d, 4, v%d" % (t0, t0, t1))
        q("buffer_load_dwordx4 v%d, s[%d:%d], 0 offen lds" % (t0, sY, sY + 3))
        if k < 4:
            q("s_add_u32 s%d, s%d, 64\ns_add_u32 m0, m0, 0x400" % (sT, sT))
    q(ret)
    tail += q.ins
    wo_src(A_WO)
    st_()
    p("s_lshl_b32 s%d, s%d, 1" % (sCnt, sI))
    p("M_dd:")
    iteration(0, (0, 1), (0, 1), False, 4, 4)
    iteration(1, (0, 1), (0, 1), True, 4, 4, loop="M_dd")
    iteration(0, (0, 1), (0, 1), False, 4, 6)
    iteration(1, (0,), (0, 1), True, 6, 6)
    st_()
    def epilogue(tl, sblk):
        p("s_lshl_b32 s%d, s%d, 1" % (sT, sblk))
        p("s_lshr_b32 s%d, s%d, 1" % (sT2, sWave))
        p("s_add_u32 s%d, s%d, s%d" % (sT, sT, sT2))
        p("s_lshl_b32 s%d, s%d, 19" % (sT, sT))
        p("s_lshl_b32 s%d, s%d, 14" % (sT2, sH))
        p("s_add_u32 s%d, s%d, s%d" % (sT, sT, sT2))
        p("s_and_b32 s%d, s%d, 1" % (sT2, sWave))
        p("s_lshl_b32 s%d, s%d, 11" % (sT2, sT2))
        p("s_add_u32 s%d, s%d, s%d" % (sCb, sT, sT2))
        p("v_mov_b32 v%d, v%d" % (vU, vL + tl))
        p("v_mov_b32 v%d, v%d" % (vU + 1, vL + tl))
        p("v_permlane32_swap_b32 v%d, v%d" % (vU, vU + 1))
        p("v_add_f32 v%d, v%d, v%d" % (vU, vU, vU + 1))
        p("v_rcp_f32 v%d, v%d" % (vU, vU))
        for a in range(4):
            T = Q(1, 0) + (a & 1) * 16
            for k in range(16):
                p("v_accvgpr_read_b32 v%d, a%d" % (T + k, O(tl, a) + k))
            for k in range(16):
                p("v_mul_f32 v%d, v%d, v%d" % (T + k, T + k, vU))
            p.add(pack_tile(T, T))
            for mm in range(2):
                p("buffer_store_dwordx4 %s, v%d, s[%d:%d], s%d offen offset:%d" % (rr("v", T + 4 * mm, 4), vCt, sC, sC + 3, sCb, mm * 512))
            if a < 3:
                p("s_add_u32 s%d, s%d, 0x1000" % (sCb, sCb))
    def wo_reads(isB):
        regs = [S(0, 1) + 4 * n for n in range(4)] + [S(1, 1)]
        p("v_lshrrev_b32 v%d, 4, v%d" % (t0, vLane))
        p("v_lshlrev_b32 v%d, 3, v%d" % (t1, t0))
        if not isB:
            p("v_and_b32 v%d, 1, v%d" % (t0, t0))
            p("v_lshlrev_b32 v%d, 2, v%d" % (t0, t0))
            p("v_sub_u32 v%d, v%d, v%d" % (t1, t1, t0))
        p("v_bfe_u32 v%d, v%d, 2, 2" % (t0, vLane))
        p("v_add_u32 v%d, v%d, v%d" % (t1, t1, t0))
        p("v_mul_u32_u24 v%d, 640, v%d" % (t1, t1))
        p("v_and_b32 v%d, 3, v%d" % (t0, vLane))
        p("v_lshl_add_u32 v%d, v%d, 3, v%d" % (t1, t0, t1))
        p("s_mul_i32 s%d, s%d, 160" % (sT, sWave))
        p("s_add_u32 s%d, s%d, 0x20000" % (sT, sT))
        p("v_add_u32 v%d, s%d, v%d" % (t1, sT, t1))
        for n in range(5):
            for u in range(2):
                p("ds_read_b64_tr_b16 %s, v%d offset:%d" % (rr("v", regs[n] + 2 * u, 2), t1, n * 32 + u * (4 if isB else 8) * 640))
    def wo_stores(dstbase, nk):
        regs = [S(0, 1) + 4 * n for n in range(4)] + [S(1, 1)]
        p("s_and_b32 s%d, s2, 1" % sT)
        p("s_lshl_b32 s%d, s%d, 2" % (sT, sT))
        p("s_add_u32 s%d, s%d, s%d" % (sT, sT, sWave))
        p("s_mul_i32 s%d, s%d, %d" % (sT, sT, nk))
        p("s_lshr_b32 s%d, s2, 1" % sT2)
        p("s_add_u32 s%d, s%d, s%d" % (sT, sT, sT2))
        p("s_mul_i32 s%d, s%d, 5120" % (sT, sT))
        srd(p, sY, ptr(D_WS), off_s=sT, off_imm=dstbase, nrec=5120)
        p("s_movk_i32 s%d, 0x1000" % sT)
        for n in range(5):
            p("buffer_store_dwordx4 %s, v%d, s[%d:%d], %s offen offset:%d" % (rr("v", regs[n], 4), vL16, sY, sY + 3, "s%d" % sT if n == 4 else "0", (n & 3) * 1024))
    wo_reads(False)
    epilogue(1, sI)
    wo_stores(WS_WOA, 128)
    p("s_cmp_ge_u32 s2, 40\ns_cbranch_scc1 M_nowob")
    p("s_barrier")
    wo_src(B_WO)
    p("M_nowob:")
    p.add(poll_load(sIdx, 0))
    st_()
    p("s_lshl_b32 s%d, s%d, 2" % (sCnt, sI))
    p("s_sub_u32 s%d, 28, s%d" % (sCnt, sCnt))
    p("M_ss:")
    iteration(0, (0,), (0,), False, 6, 6)
    iteration(1, (0,), (0,), True, 6, 6, loop="M_ss")
    p.add(poll_check(sIdx, 0, 8, 8))
    bm_frag_loads(p, 0)
    vP = vA
    p("s_lshl_b32 s%d, s%d, 16" % (sT, sIdx))
    p("s_lshl_b32 s%d, s%d, 14" % (sT2, sWave))
    p("s_add_u32 s%d, s%d, s%d" % (sT, sT, sT2))
    srd(p, sO, ptr(D_WS), off_s=sT, off_imm=WS_KVP, nrec=16384)
    for j in range(2):
        for k in range(5):
            if k in (0, 4):
                p("s_mov_b32 s%d, %d" % (sT, j * 8192 + k * 1024))
            p("buffer_load_dwordx4 %s, v%d, s[%d:%d], s%d offen offset:%d %s" % (rr("a", aPA + j * 20 + k * 4, 4), vL16, sO, sO + 3, sT, (k & 3) * 1024, WT))
    iteration(0, (0,), (0,), False, 6, 0, dma=False, evt=False)
    iteration(1, (), (0,), False, 0, 0, dma=False, evt=False)
    st_()
    p("s_cmp_ge_u32 s2, 40\ns_cbranch_scc1 M_nowob2")
    wo_reads(True)
    wo_stores(WS_WOB, 20)
    p("M_nowob2:")
    Lr, SUM, KA, N = 96, 176, 200, 96
    for k in range(40):
        p("v_accvgpr_read_b32 v%d, a%d" % (Lr + k, aPA + k))
    for e in range(20):
        p("v_add_f32 v%d, v%d, v%d" % (Lr + e, Lr + e, Lr + 20 + e))
    p("s_and_b32 s%d, s%d, 1" % (sT, sI))
    p("s_lshl_b32 s%d, s%d, 16" % (sT, sT))
    p("v_add_u32 v%d, s%d, v%d" % (t0, sT, vDma))
    for k in range(5):
        p("ds_write_b128 v%d, %s offset:%d" % (t0, rr("v", Lr + 4 * k, 4), (k & 3) * 1024 + (k >> 2) * U))
    p("v_and_b32 v%d, 31, v%d" % (t2, vLane))
    p("v_min_u32 v%d, 20, v%d" % (t2, t2))
    p("v_and_b32 v%d, 32, v%d" % (t1, vLane))
    p("v_add_u32 v%d, v%d, v%d" % (t2, t1, t2))
    p("v_lshl_add_u32 v%d, v%d, 4, s%d" % (vP, t2, sT))
    p("s_sub_u32 s%d, 15, s%d" % (sCnt, sI))
    epilogue(0, sCnt)
    st_()
    p("s_waitcnt lgkmcnt(0)\ns_barrier")
    for w in range(4):
        for k in range(5):
            p("ds_read_b128 %s, v%d offset:%d" % (rr("v", Lr + w * 20 + 4 * k, 4), vP, w * 4096 + (k & 3) * 1024 + (k >> 2) * U))
    p(call("M_phi"))
    for e in range(20):
        p("v_add_f32 v%d, v%d, v%d" % (Lr + e, Lr + e, Lr + 20 + e))
        p("v_add_f32 v%d, v%d, v%d" % (Lr + 40 + e, Lr + 40 + e, Lr + 60 + e))
    for e in range(20):
        p("v_add_f32 v%d, v%d, v%d" % (SUM + e, Lr + e, Lr + 40 + e))
    for k in range(10):
        p("v_cvt_pk_bf16_f32 v%d, v%d, v%d" % (KA + k, SUM + 2 * k, SUM + 2 * k + 1))
    for r in (KA + 10, KA + 11, PH + 10, PH + 11):
        p("v_mov_b32 v%d, 0" % r)
    def num(N):
        for u in range(3):
            p("%s %s, %s, %s, %s" % (MF, rr("v", N, 16), rr("v", KA + 4 * u, 4), rr("v", PH + 4 * u, 4), rr("v", N, 16) if u else "0"))
    num(N)
    p(call("M_phi"))
    num(N + 32)
    p("s_lshr_b32 s%d, s%d, 1" % (sT, sTT))
    p("s_mul_i32 s%d, s%d, 81920" % (sT, sT))
    srd(p, sY, ptr(D_WS), off_s=sT, off_imm=WS_OB, nrec=81920)
    p("s_mul_i32 s%d, s%d, 20" % (sT, sIdx))
    vO = vA
    p("v_and_b32 v%d, 15, v%d" % (t0, vLane))
    p("v_lshlrev_b32 v%d, 4, v%d" % (t0, t0))
    p("v_bfe_u32 v%d, v%d, 4, 1" % (t2, vLane))
    p("v_lshl_add_u32 v%d, v%d, 10, v%d" % (t0, t2, t0))
    p("v_lshrrev_b32 v%d, 5, v%d" % (t1, vLane))
    p("v_lshl_add_u32 v%d, v%d, 2, s%d" % (t1, t1, sT))
    for jj in range(3):
        if jj:
            p("v_add_u32 v%d, 8, v%d" % (t1, t1))
        p("v_lshrrev_b32 v%d, 5, v%d" % (t2, t1))
        p("v_lshl_add_u32 v%d, v%d, 12, v%d" % (vO + jj, t2, t0))
        p("v_bfe_u32 v%d, v%d, 3, 2" % (t2, t1))
        p("v_lshl_add_u32 v%d, v%d, 8, v%d" % (vO + jj, t2, vO + jj))
        p("v_and_b32 v%d, 7, v%d" % (t2, t1))
        p("v_lshl_add_u32 v%d, v%d, 1, v%d" % (vO + jj, t2, vO + jj))
    p("v_bfrev_b32 v%d, 1" % t1)
    p("v_cmp_gt_u32 vcc, 32, v%d" % vLane)
    p("v_cndmask_b32 v%d, v%d, v%d, vcc" % (vO + 2, t1, vO + 2))
    for tt in range(2):
        n0 = N + 32 * tt
        p("v_add_f32 v%d, 0x%x, v%d" % (n0 + 12, f2u(1e-6), n0 + 12))
        p("v_rcp_f32 v%d, v%d" % (n0 + 12, n0 + 12))
        for k in range(12):
            p("v_mul_f32 v%d, v%d, v%d" % (n0 + k, n0 + k, n0 + 12))
        for k in range(6):
            p("v_cvt_pk_bf16_f32 v%d, v%d, v%d" % (n0 + 16 + k, n0 + 2 * k, n0 + 2 * k + 1))
        for jj in range(3):
            p("buffer_store_dwordx2 %s, v%d, s[%d:%d], 0 offen offset:%d" % (rr("v", n0 + 16 + 2 * jj, 2), vO + jj, sY, sY + 3, tt * 2048))
    st_()
    st_.dump(vtmp=t0)
    p("M_exit:\ns_endpgm")
    p.add(tail)
    p("M_event:")
    p("s_cmp_ge_u32 s%d, s%d\ns_cbranch_scc1 M_ev_hi" % (sStep, sHiTri))
    for tl, tri, nxt in ((1, sLoTri, "s%d" % sHiTri), (0, sHiTri, "-1")):
        if tl == 0:
            p("M_ev_hi:")
        p("s_cmp_eq_u32 s%d, s%d\ns_cbranch_scc0 M_ev_full%d" % (sStep, tri, tl))
        for r in range(16):
            p("v_cmp_gt_i32 vcc, %d, v%d" % (8 * (r >> 2) + (r & 3), vLim))
            p("v_cndmask_b32 v%d, v%d, v%d, vcc" % (CI(tl) + r, CI(tl) + r, vNeg))
        p("s_add_u32 s%d, s%d, 1" % (sEvt, sEvt))
        p(WL + "\n" + ret)
        p("M_ev_full%d:" % tl)
        for r in range(16):
            p("v_mov_b32 v%d, v%d" % (CI(tl) + r, vNeg))
        p("s_mov_b32 s%d, %s" % (sEvt, nxt))
        p(WL + "\n" + ret)
    for par in range(2):
        for tl in range(2):
            p("M_slow%d%d:" % (par, tl))
            p("s_nop 15")
            p.add(rowmax(par, tl, vU + 2, vU + 3))
            p("v_max_f32 v%d, 0, v%d" % (vU + 2, vU + 2))
            p("v_exp_f32 v%d, -v%d" % (vU + 3, vU + 2))
            for k in range(16):
                for b in (S(par, tl), S(par ^ 1, tl), CI(tl)):
                    p("v_sub_f32 v%d, v%d, v%d" % (b + k, b + k, vU + 2))
            p("v_mul_f32 v%d, v%d, v%d" % (vL + tl, vL + tl, vU + 3))
            for k in range(0, 64, 8):
                for e in range(8):
                    p("v_accvgpr_read_b32 v%d, a%d" % (TMP + 8 + e, O(tl, 0) + k + e))
                for e in range(8):
                    p("v_mul_f32 v%d, v%d, v%d" % (TMP + 8 + e, TMP + 8 + e, vU + 3))
                for e in range(8):
                    p("v_accvgpr_write_b32 a%d, v%d" % (O(tl, 0) + k + e, TMP + 8 + e))
            p.add(sm_stream(par, (tl,), 0))
            p.add(sm_stream(par, (tl,), 1))
            p("s_nop 1")
            p(WL + "\n" + ret)
    if os.environ.get("NOST"):
        p.ins = [I("buffer_load_dword v%d, off, s[%d:%d], 0" % (vA + 1, sD, sD + 3)) if (i.mn == "buffer_store_dwordx4" and ("s[16:19]" in i.text or "s[24:27]" in i.text)) else i for i in p.ins]
    if os.environ.get("NOATOM"):
        p.ins = [i for i in p.ins if not (i.mn.startswith("buffer_atomic") or (i.kind == "branch" and i.target.startswith("M_poll") and "_" not in i.target[7:]))]
    p.finish()
    return p
```

```python
import sys
from asmlib import *
import k_misc
HDR = open("concat_heads__compressed_kv_cla__linear_kernel_hedgehog__prompt.s.ref").read().split("; Override")[0]
def emit(path, ks):
    hdr = HDR; body = ""; desc = ""
    for name, prog, grid, block, lds in ks:
        b, d = kernel_text(name, prog)
        hdr += "; @launch kernel=%s grid=(%d,1,1) block=(%d,1,1) lds=%d\n" % (name, grid, block, lds)
        body += b; desc += d
    open(path, "w").write(hdr + ".amdgcn_target \"amdgcn-amd-amdhsa--gfx950\"\n" + body + desc)
if __name__ == "__main__":
    import k_main2 as k_main
    ks = [("main_kernel", k_main.build_main(), 256, 256, 163840),
          ("p3_kernel", k_misc.build_p3(), 256, 256, 163840)]
    emit(sys.argv[1], ks)
```

```python
from asmlib import *
from layout import *
from k_p1 import srd, x_rd_addr, w_rd_addr, MF
import os, struct

def f2u(x):
    return struct.unpack("<I", struct.pack("<f", x))[0]

NEG = 0xF149F2CA
THRESH = int(os.environ.get("THRESH", "0x5F800000"), 0)
BIAS = float(os.environ.get("BIAS", "40"))
QSCALE = f2u((128 ** -0.5) * 1.4426950408889634)
LOG2E = f2u(1.4426950408889634)
WT = os.environ.get("WT", "sc1")
PREFETCH = int(os.environ.get("PREFETCH", "2"))
NTW = os.environ.get("NTW", "")
VERB = int(os.environ.get("VERB", "0"))
U = 16384
u32 = lambda x: x & 0xffffffff

def L(f, *a, **k):
    q = Prog()
    f(q, *a, **k)
    return q.ins

def build_main():
    p = Prog()
    sX, sW, sW2, sO, sD, sBO = 4, 8, 12, 16, 20, 24
    sBF, sPhi, sY, sC, sKV = sW2, sO, sX, sW, sBO
    sH, sI, sWave, sW4, sT, sT2, sOff, sXcd, sIdx, sTB, sCB, sHi, sLo = range(28, 41)
    sM, sS, sKo, sRet, sTT, sL2, sSpin, sBo = 41, 44, 47, 48, 50, 51, 52, 53
    sRd, sWr, sG, sStep, sEvt, sLoTri, sHiTri, sThr, sCnt, sCb = range(37, 47)
    P = 56
    ptr = lambda off: P + off // 4
    vLane = 1
    vX, vW, vXr, vWr = 2, 6, 10, 18
    vL16, t0, t1, t2, vDum, vStamp, vA = 22, 23, 24, 25, 26, 27, 28
    vGo = vA + 1
    vPoll = 20
    vDma, vLim, vNeg, vCt, vB, vL, vLt, vU = 2, 3, 4, 5, 6, 8, 10, 12
    RA, RB, RC, RD = 32, 96, 160, 224
    TMP, AW = 224, 240
    S = lambda par, tl: 32 + par * 32 + tl * 16
    CI = lambda tl: 96 + tl * 16
    PP = lambda par, tl: 128 + par * 16 + tl * 8
    Q = lambda tl, ds: 160 + tl * 32 + ds * 4
    O = lambda tl, a: tl * 64 + a * 16
    FB = lambda j: 128 + j * 4
    aXF, aVF, aRAW, aPA = 192, 208, 32, 208
    tail = []
    ret = "s_setpc_b64 s[%d:%d]" % (sRet, sRet + 1)
    call = lambda lab: "s_call_b64 s[%d:%d], %s" % (sRet, sRet + 1, lab)

    def x_voffs(pitch):
        return ["v_lshrrev_b32 v%d, 3, v%d" % (t0, vLane),
                "s_lshl_b32 s%d, s%d, 5" % (sT, sWave),
                "v_add_u32 v%d, s%d, v%d" % (t0, sT, t0),
                "v_mul_u32_u24 v%d, %d, v%d" % (t0, pitch, t0),
                "v_lshrrev_b32 v%d, 4, v%d" % (t1, vLane),
                "v_and_b32 v%d, 7, v%d" % (t2, vLane),
                "v_xor_b32 v%d, v%d, v%d" % (t2, t2, t1),
                "v_lshl_add_u32 v%d, v%d, 4, v%d" % (vX, t2, t0),
                "v_xor_b32 v%d, 4, v%d" % (t2, t2),
                "v_lshl_add_u32 v%d, v%d, 4, v%d" % (vX + 1, t2, t0),
                "v_add_u32 v%d, %d, v%d" % (vX + 1, 8 * pitch - 1024, vX + 1),
                "v_add_u32 v%d, %d, v%d" % (vX + 2, 2 * (8 * pitch - 1024), vX),
                "v_add_u32 v%d, %d, v%d" % (vX + 3, 2 * (8 * pitch - 1024), vX + 1)]
    def w_voffs(pitch):
        return ["v_lshrrev_b32 v%d, 4, v%d" % (t0, vLane),
                "v_lshlrev_b32 v%d, 2, v%d" % (t1, t0),
                "s_lshl_b32 s%d, s%d, 4" % (sT, sWave),
                "v_add_u32 v%d, s%d, v%d" % (t0, sT, t0),
                "v_mul_u32_u24 v%d, %d, v%d" % (t0, pitch, t0),
                "v_and_b32 v%d, 15, v%d" % (t2, vLane),
                "v_xor_b32 v%d, v%d, v%d" % (t2, t2, t1),
                "v_lshl_add_u32 v%d, v%d, 4, v%d" % (vW, t2, t0)] + \
               ["v_add_u32 v%d, %d, v%d" % (vW + k, k * (4 * pitch - 1024), vW) for k in range(1, 4)]
    def dma(i, srdn, fl=""):
        v = vX if srdn == sX else vW
        return [["s_mov_b32 m0, s%d" % (sM + i)]] + \
               ["buffer_load_dwordx4 v%d, s[%d:%d], s%d offen offset:%d %s lds" % (v + q, srdn, srdn + 3, sS + i, q * 1024, fl) for q in range(4)]
    def put_dma(G, i, srdn, lo, hi, fl=""):
        d = dma(i, srdn, fl)
        G.put(lo, d[0])
        G.spread(d[1:], lo + 1, hi)
    def w_srd(q, d, which, col_s, total):
        q("s_lshl_b32 s%d, s%d, 8" % (sT, col_s))
        srd(q, d, ptr(which), off_s=sT)
        q("s_sub_u32 s%d, %d, s%d" % (d + 2, total, sT))
    def sw_XB(q):
        q("s_mul_i32 s%d, s%d, %d" % (sT, sTB, 128 * 1280))
        srd(q, sX, ptr(B_X), off_s=sT)
        q("s_cmp_lt_u32 s2, 240\ns_cselect_b32 s%d, %d, 0" % (sX + 2, 128 * 1280))
        q.add(x_voffs(1280))
    def sw_WB(q):
        w_srd(q, sW, B_WQKV, sCB, 640 * 3840)
        q("s_cmp_lt_u32 s2, 240\ns_cselect_b32 s%d, s%d, 0" % (sW + 2, sW + 2))
        q("s_mov_b64 s[%d:%d], s[%d:%d]\ns_mov_b32 s%d, s%d" % (sW2, sW2 + 1, sW, sW + 1, sW2 + 2, sW + 2))
        q.add(w_voffs(3840))
    def sw_XQ(q):
        srd(q, sX, ptr(A_X), nrec=2048 * 1280)
    def sw_WQ(q):
        w_srd(q, sW, A_WQ, sH, 640 * 8192)
        q.add(w_voffs(8192))

    class Plan:
        def __init__(s):
            s.vm, s.unit, s.free, s.when, s.now = [], {}, [], {}, 0
            s.pend = {"X": [], "W": []}
            s.job = {"X": "KV", "W": "KV"}
            for st in range(8):
                for g in range(2):
                    s.pend["X"].append((("KX", st, g), "KV", st, str(g * 128 * 1024 + st * 128), ((2 * st) % 5) * 2 + g))
                    s.pend["W"].append((("KW", st, g), "KV", st, str(st * 64 * 8192), ((2 * st + 1) % 5) * 2 + g))
            for b in range(10):
                s.pend["X"].append((("BX", b), "B", 8 + b, str(b * 128), None))
                s.pend["W"].append((("BW", b), "B", 8 + b, str(b * 64 * 3840), None))
            for st in range(10):
                s.pend["X"].append((("QX", st, 0), "Q", 18 + st, (sHi, st * 128), None))
                s.pend["X"].append((("QX", st, 1), "Q", 18 + st, (sLo, st * 128), None))
                s.pend["W"].append((("QW", st), "Q", 18 + st, str(st * 64 * 8192), None))
            s.free = list(range(10))
        def copy(s):
            import copy
            return copy.deepcopy(s)
        def take(s, ty, i):
            oth = "W" if ty == "X" else "X"
            pre = []
            c = s.pend[ty][0] if s.pend[ty] else None
            if c is not None:
                if c[4] is not None:
                    ok = c[4] in s.free
                else:
                    resv = {g[4] for t in "XW" for g in s.pend[t] if g[4] is not None}
                    av = [x for x in s.free if x not in resv]
                    ok = len(av) - 1 >= sum(1 for g in s.pend[oth] if g[2] < c[2] and g[4] is None)
                if not ok:
                    c = None
            if c is None:
                return ["s_mov_b32 s%d, 0x30000" % (sM + i), "s_brev_b32 s%d, 1" % (sS + i)], None
            s.pend[ty].pop(0)
            un = c[4] if c[4] is not None else av[0]
            s.free.remove(un)
            s.unit[c[0]] = un
            s.when[c[0]] = s.now
            if c[1] != s.job[ty]:
                s.job[ty] = c[1]
                pre += L({"XB": sw_XB, "WB": sw_WB, "XQ": sw_XQ, "WQ": sw_WQ}[ty + c[1]])
            pre.append("s_add_u32 s%d, s%d, 0x%x" % (sM + i, sW4, un * U))
            if isinstance(c[3], tuple):
                pre.append("s_add_u32 s%d, s%d, %d" % (sS + i, c[3][0], c[3][1]))
            else:
                pre.append("s_mov_b32 s%d, %s" % (sS + i, c[3]))
            return pre, c[0]
        def issue(s, tag, n=4):
            s.vm += [tag] * n
        def hook(s, ins, tag="h"):
            for t in ins:
                i = t if isinstance(t, I) else I(t)
                if i.cnt == "vm":
                    s.vm.append(tag)
        def barrier(s, need, free, dt):
            last = max(max(k for k, t in enumerate(s.vm) if t == n) for n in need) if need else -1
            N = len(s.vm) - 1 - last
            if VERB:
                print("barrier need", need, "N", N, "flight", [s.now - s.when[n] for n in need if n in s.when])
            for f in free:
                s.free.append(s.unit[f])
            s.now += dt
            s.done = last
            return ["s_waitcnt %slgkmcnt(0)" % ("vmcnt(%d) " % min(N, 63) if need else ""), "s_barrier"]
        def complete(s, tag):
            return max(k for k, t in enumerate(s.vm) if t == tag) <= s.done
    pl = Plan()

    def pf_lin(which, total, k):
        share = total // 32
        return ["s_mul_i32 s%d, s%d, %d" % (sT, sIdx, share), "s_lshl_b32 s%d, s%d, 13" % (sT2, sWave), "s_add_u32 s%d, s%d, s%d" % (sT, sT, sT2),
                "s_add_u32 s%d, s%d, %d" % (sT, sT, k * 32768),
                "v_lshl_add_u32 v%d, v%d, 7, s%d" % (t0, vLane, sT), "v_min_u32 v%d, %d, v%d" % (t0, total - 128, t0),
                "global_load_dword v%d, v%d, s[%d:%d]" % (vDum, t0, ptr(which), ptr(which) + 1)]
    def pf_w(which, rows):
        share = rows // 32
        return ["s_mul_i32 s%d, s%d, %d" % (sT, sIdx, share), "s_lshl_b32 s%d, s%d, 3" % (sT2, sWave), "s_add_u32 s%d, s%d, s%d" % (sT, sT, sT2),
                "v_lshrrev_b32 v%d, 3, v%d" % (t0, vLane), "v_add_u32 v%d, s%d, v%d" % (t0, sT, t0), "v_min_u32 v%d, %d, v%d" % (t0, rows - 1, t0),
                "v_lshlrev_b32 v%d, 13, v%d" % (t0, t0), "v_and_b32 v%d, 7, v%d" % (t1, vLane), "v_lshl_add_u32 v%d, v%d, 7, v%d" % (t0, t1, t0),
                "s_lshl_b32 s%d, s%d, 10" % (sT, sXcd), "v_add_u32 v%d, s%d, v%d" % (t0, sT, t0),
                "global_load_dword v%d, v%d, s[%d:%d]" % (vDum, t0, ptr(which), ptr(which) + 1)]
    def pf_bx():
        return ["s_mul_i32 s%d, s%d, %d" % (sT, sXcd, 256 * 1280), "s_mul_i32 s%d, s%d, 10240" % (sT2, sIdx), "s_add_u32 s%d, s%d, s%d" % (sT, sT, sT2),
                "v_lshlrev_b32 v%d, 7, v0" % t0, "v_min_u32 v%d, %d, v%d" % (t0, 10240 - 128, t0), "v_add_u32 v%d, s%d, v%d" % (t0, sT, t0),
                "global_load_dword v%d, v%d, s[%d:%d]" % (vDum, t0, ptr(B_X), ptr(B_X) + 1)]

    def extra(ty, keep):
        if len(pl.free) <= keep:
            return []
        pre, tag = pl.take(ty, 2)
        if tag is None:
            return []
        pl.issue(tag)
        d = dma(2, sX if ty == "X" else sW)
        return pre + d[0] + d[1:]
    def skel(last_mf, bar, mf01, custom, target):
        if last_mf:
            p(last_mf)
        p.add(bar)
        h = (len(custom) + 1) // 2
        p.add([mf01[0]] + custom[:h] + [mf01[1]] + custom[h:] + [call(target)])
    def body(name, G, mf, entries=None):
        out = ["%s:" % name]
        for k in range(2, G.n - 1):
            if entries and k in entries:
                out.append("%s:" % entries[k])
            out += [mf[k]] + G.gap(k)
        assert not G.gap(0) and not G.gap(1) and not G.gap(G.n - 1)
        tail.extend(out + [ret])
    def pack_tile(src, dst):
        return ["v_cvt_pk_bf16_f32 v%d, v%d, v%d" % (dst + k, src + 2 * k, src + 2 * k + 1) for k in range(8)]
    def publish(val):
        lab = p.newlabel("M_pub")
        return ["s_cmp_lg_u32 s%d, 0" % sWave, "s_cbranch_scc1 %s" % lab,
                "s_lshl_b32 s%d, s2, 7" % sT, "v_mov_b32 v%d, %d" % (t0, val), "s_mov_b64 exec, 1",
                "buffer_store_dword v%d, off, s[%d:%d], s%d sc1" % (t0, sD, sD + 3, sT),
                "s_mov_b64 exec, -1", "%s:" % lab]
    def poll_load(kind):
        if kind == "go":
            return ["v_mov_b32 v%d, 0" % t0, "global_load_dword v%d, v%d, s[%d:%d] sc1" % (vGo, t0, ptr(D_DBG), ptr(D_DBG) + 1)]
        if kind == 1:
            r = ["v_min_u32 v%d, 29, v%d" % (t0, vLane), "v_lshlrev_b32 v%d, 10, v%d" % (t0, t0), "s_lshl_b32 s%d, s%d, 7" % (sT, sXcd)]
        elif kind == 2:
            r = ["v_and_b32 v%d, 7, v%d" % (t0, vLane), "v_lshlrev_b32 v%d, 10, v%d" % (t0, t0), "s_andn2_b32 s%d, s2, 0x38" % sT, "s_lshl_b32 s%d, s%d, 7" % (sT, sT)]
        elif kind in ("A", "B", 7):
            return ["buffer_load_dword v%d, v%d, s[%d:%d], 0 offen sc1" % (vDum, vPoll, sD, sD + 3)]
        else:
            r = ["v_and_b32 v%d, 7, v%d" % (t0, vLane), "v_lshlrev_b32 v%d, 7, v%d" % (t0, t0), "s_lshl_b32 s%d, s%d, 10" % (sT, sIdx)]
        return r + ["buffer_load_dword v%d, v%d, s[%d:%d], s%d offen sc1" % (vDum, t0, sD, sD + 3, sT)]
    def poll_check(kind):
        lab = p.newlabel("M_poll")
        chk = ["v_cmp_gt_u32 vcc, %s, v%d" % (("1", vGo) if kind == "go" else (("v%d" % (vPoll + 1), vDum) if kind in ("A", "B") else (str(kind), vDum)))]
        tail.extend(["%s:" % lab, "s_mov_b32 s%d, 0x40000" % sSpin, "%s_l:" % lab, "s_sleep 1"] + poll_load(kind) + ["s_waitcnt vmcnt(0)"] + chk +
                    ["s_cbranch_vccz %s_r" % lab, "s_sub_u32 s%d, s%d, 1" % (sSpin, sSpin), "s_cbranch_scc0 %s_l" % lab, "s_branch %s_r" % lab])
        return chk + ["s_cbranch_vccnz %s" % lab, "%s_r:" % lab]
    def pf(which, total, first, nlines):
        return ["s_lshl_b32 s%d, s2, 2" % sT, "s_add_u32 s%d, s%d, s%d" % (sT, sT, sWave), "s_mul_i32 s%d, s%d, %d" % (sT, sT, nlines),
                "s_add_u32 s%d, s%d, %d" % (sT, sT, first), "v_min_u32 v%d, %d, v%d" % (t0, nlines - 1, vLane), "v_add_u32 v%d, s%d, v%d" % (t0, sT, t0),
                "v_min_u32 v%d, %d, v%d" % (t0, total // 128 - 1, t0), "v_lshlrev_b32 v%d, 7, v%d" % (t0, t0),
                "global_load_dword v%d, v%d, s[%d:%d]" % (vDum, t0, ptr(which), ptr(which) + 1)]

    p("s_cmp_ge_u32 s2, 256\ns_cbranch_scc1 M_exit")
    p("s_load_dwordx16 s[%d:%d], s[0:1], 0" % (P, P + 15))
    p("s_load_dwordx8 s[%d:%d], s[0:1], 64" % (P + 16, P + 23))
    p("s_load_dwordx2 s[%d:%d], s[0:1], 96" % (P + 24, P + 25))
    st_ = Stamper(p, vStamp, kid=0)
    p("v_and_b32 v%d, 63, v0" % vLane)
    p("v_lshrrev_b32 v%d, 6, v0" % t0)
    p("v_readfirstlane_b32 s%d, v%d" % (sWave, t0))
    p("s_and_b32 s%d, s2, 7" % sXcd)
    p("s_lshr_b32 s%d, s2, 3" % sIdx)
    p("s_lshl_b32 s%d, s%d, 12" % (sW4, sWave))
    p("s_lshl_b32 s%d, s%d, 2" % (sH, sXcd))
    p("s_lshr_b32 s%d, s%d, 3" % (sT, sIdx))
    p("s_add_u32 s%d, s%d, s%d" % (sH, sH, sT))
    p("s_and_b32 s%d, s%d, 7" % (sI, sIdx))
    p.add(x_voffs(1024))
    p.add(w_voffs(8192))
    p("s_waitcnt lgkmcnt(0)")
    st_()
    srd(p, sD, ptr(D_WS), off_imm=WS_FL, nrec=32768)
    p("s_cmp_lg_u32 s2, 255\ns_cbranch_scc1 M_nolead")
    p("v_lshlrev_b32 v%d, 7, v0\nv_mov_b32 v%d, 0" % (t0, t1))
    p("buffer_store_dword v%d, v%d, s[%d:%d], 0 offen sc1" % (t1, t0, sD, sD + 3))
    p("M_nolead:")
    p("s_lshl_b32 s%d, s%d, 18" % (sT, sI))
    srd(p, sX, ptr(A_CKV), off_s=sT, nrec=256 * 1024)
    w_srd(p, sW, A_WUK, sH, 512 * 8192)
    w_srd(p, sW2, A_WUV, sH, 512 * 8192)
    for ty in "XWXWX":
        for g in range(2):
            pre, tag = pl.take(ty, 0)
            p.add(pre + dma(0, sX if ty == "X" else (sW, sW2)[g], "" if ty == "X" else NTW))
            pl.issue(tag)
    p("s_mul_i32 s%d, s%d, 800" % (sT, sIdx))
    srd(p, sPhi, ptr(B_WPHI), off_s=sT, nrec=800)
    b1, b2 = vA, vA + 1
    p("s_and_b32 s%d, s%d, 3" % (sT, sIdx))
    p("s_mul_i32 s%d, s%d, 160" % (sT, sT))
    p("v_lshrrev_b32 v%d, 5, v%d" % (t0, vLane))
    p("v_mul_u32_u24 v%d, 160, v%d" % (t0, t0))
    p("v_subrev_u32 v%d, s%d, v%d" % (t0, sT, t0))
    p("v_and_b32 v%d, 3, v%d" % (t1, vLane))
    p("v_lshl_add_u32 v%d, v%d, 1, v%d" % (t0, t1, t0))
    p("v_bfe_u32 v%d, v%d, 3, 2" % (t1, vLane))
    p("v_lshl_add_u32 v%d, v%d, 3, v%d" % (b1, t1, t0))
    p("v_add_u32 v%d, 32, v%d" % (b2, t0))
    p("v_bfrev_b32 v%d, 1" % t2)
    p("v_cmp_eq_u32 vcc, 0, v%d" % t1)
    p("v_cndmask_b32 v%d, v%d, v%d, vcc" % (b2, t2, b2))
    x_rd_addr(p, vXr, vLane, t0, t1)
    p("s_lshr_b32 s%d, s%d, 1" % (sT, sWave))
    p("s_lshl_b32 s%d, s%d, 14" % (sT, sT))
    for ks in range(4):
        p("v_add_u32 v%d, s%d, v%d" % (vXr + ks, sT, vXr + ks))
    p("s_lshl_b32 s%d, s%d, 2" % (sKo, sT))
    p("s_and_b32 s%d, s%d, 0x1000" % (sT, sW4))
    p("s_add_u32 s%d, s%d, s%d" % (sKo, sKo, sT))
    p("s_lshr_b32 s%d, s%d, 11" % (sT, sT))
    p("v_mov_b32 v%d, s%d" % (t2, sT))
    w_rd_addr(p, vWr, vLane, t0, t1, t2)
    p("v_add_u32 v%d, 0x%x, v%d" % (vWr, 2 * U, vWr))
    p("v_xor_b32 v%d, 64, v%d" % (vWr + 1, vWr))
    p("v_lshlrev_b32 v%d, 4, v%d" % (vL16, vLane))
    gath = []
    n = 0
    for tile in range(2):
        for u in range(2):
            for e in range(8):
                cw = 16 * u + 8 * (e >> 2) + (e & 3)
                t = (t0, t1, t2)[n % 3]
                gath += ["v_add_u32 v%d, %d, v%d" % (t, cw * 40, b2 if tile else b1),
                         "buffer_load_ushort a%d, v%d, s[%d:%d], 0 offen" % (aRAW + n, t, sPhi, sPhi + 3)]
                n += 1
    p.add(gath[:40])
    pl.hook(gath[:40])
    p("s_lshl_b32 s%d, s%d, 1" % (sTB, sXcd))
    p("s_cmp_ge_u32 s%d, 15" % sIdx)
    p("s_cselect_b32 s%d, 15, 0" % sT)
    p("s_addc_u32 s%d, s%d, 0" % (sTB, sTB))
    p("s_sub_u32 s%d, s%d, s%d" % (sCB, sIdx, sT))
    p("s_mul_i32 s%d, s%d, %d" % (sLo, sI, 128 * 1280))
    p("s_sub_u32 s%d, %d, s%d" % (sHi, 15 * 128 * 1280, sLo))

    fx = lambda st, i: 128 + st * 32 + i * 4
    fw = lambda st, i: 128 + st * 32 + 16 + i * 4
    def kvreg(mat, n):
        if mat == 0:
            return ("v", RB + 16 * n if n < 4 else RA + 16 * (n - 4))
        return ("v", RC + 16 * n) if n < 4 else (("v", RD + 16 * (n - 4)) if n < 6 else ("a", 16 * (n - 6)))
    def kv_reads(st, ks):
        X = ["ds_read_b128 %s, v%d offset:%d" % (rr("a", fx(st, i), 4), vXr + ks, i * 4096) for i in range(4)]
        W = [["ds_read_b64_tr_b16 %s, v%d offset:%d" % (rr("a", fw(st, i) + 2 * u, 2), vWr + (i & 1), (i >> 1) * U + ks * 4096 + u * 1024) for u in range(2)] for i in range(4)]
        return [X[0]] + W[0] + W[1] + X[1:] + W[2] + W[3]
    def kv_mf(st, zero=False):
        r = []
        for mat in range(2):
            for n in range(8):
                f, b0 = kvreg(mat, n)
                a = rr(f, b0, 16)
                X, W = rr("a", fx(st, n >> 1), 4), rr("a", fw(st, mat * 2 + (n & 1)), 4)
                A, B = (X, W) if mat else (W, X)
                r.append("%s %s, %s, %s, %s" % (MF, a, A, B, "0" if zero else a))
        return r
    WL = "s_waitcnt lgkmcnt(0)"
    mfA, mfB = kv_mf(1) + kv_mf(0), kv_mf(1) + kv_mf(0)
    G = Gaps(32)
    G.spread(kv_reads(0, 0), 2, 13); G.put(15, WL); G.spread(kv_reads(1, 1), 16, 27)
    put_dma(G, 0, sW, 2, 15, NTW); put_dma(G, 1, sW2, 16, 30, NTW)
    body("M_kvA", G, mfA)
    G = Gaps(32)
    G.spread(kv_reads(0, 2), 2, 13); G.put(15, WL); G.spread(kv_reads(1, 3), 16, 27)
    put_dma(G, 0, sX, 2, 15); put_dma(G, 1, sX, 16, 30)
    body("M_kvB", G, mfB)
    KVs = lambda s: [("KX", s, 0), ("KX", s, 1), ("KW", s, 0), ("KW", s, 1)]
    st_()
    p.add(pl.barrier(KVs(0), [], 1536))
    st_()
    p.add(kv_reads(0, 0))
    p("s_cmp_lg_u32 s2, 255\ns_cbranch_scc1 M_nolead2\ns_cmp_lg_u32 s%d, 0\ns_cbranch_scc1 M_nolead2" % sWave)
    p("v_mov_b32 v%d, 0\nv_mov_b32 v%d, 1\ns_mov_b64 exec, 1" % (t0, t1))
    p("global_store_dword v%d, v%d, s[%d:%d] sc1" % (t0, t1, ptr(D_DBG), ptr(D_DBG) + 1))
    p("s_mov_b64 exec, -1\nM_nolead2:")
    p(WL)
    G = Gaps(16)
    G.spread(kv_reads(1, 1), 0, 11)
    z = kv_mf(0, zero=True)
    p.add(G.emit(z, 0, 15))
    last = z[15]
    if PREFETCH == 1:
        hooks = [gath[40:], pf_lin(B_WQKV, 640 * 3840, 0) + pf_bx(), pf_lin(B_WQKV, 640 * 3840, 1), pf_lin(B_WQKV, 640 * 3840, 2),
                 pf_w(A_WQ, 640), pf_lin(A_X, 2048 * 1280, 0), pf_lin(A_X, 2048 * 1280, 1), pf_lin(A_X, 2048 * 1280, 2)]
    elif PREFETCH == 2:
        hooks = [gath[40:], pf(B_WQKV, 640 * 3840, 0, 19), pf(B_X, 2048 * 1280, 0, 20), pf(A_X, 2048 * 1280, 0, 20),
                 pf(A_WQ, 640 * 8192, 0, 20), pf(A_WQ, 640 * 8192, 20480, 20), [], []]
    else:
        hooks = [gath[40:]] + [[]] * 7
    hooks[6] = hooks[6] + poll_load("go")
    def upd(regs, d):
        return ["v_add_u32 v%d, 0x%x, v%d" % (r, u32(d), r) for r in regs]
    for s in range(8):
        if s:
            bar = pl.barrier(KVs(s), KVs(s - 1), 2048)
            cu = upd([vXr, vXr + 1, vXr + 2, vXr + 3], (pl.unit[("KX", s, 0)] - pl.unit[("KX", s - 1, 0)]) * U) + \
                 upd([vWr, vWr + 1], (pl.unit[("KW", s, 0)] - pl.unit[("KW", s - 1, 0)]) * U)
            tags = []
            for i in range(2):
                pre, tag = pl.take("W", i)
                cu += pre
                tags.append(tag)
            for t in tags:
                pl.issue(t)
            skel(last, bar, mfA, cu, "M_kvA")
            last = mfA[31]
        cu = list(hooks[s])
        pl.hook(cu)
        tags = []
        for i in range(2):
            pre, tag = pl.take("X", i)
            cu += pre
            tags.append(tag)
        for t in tags:
            pl.issue(t)
        skel(last, [WL], mfB, cu, "M_kvB")
        last = mfB[31]
        if s in (3,) and STAMPS and os.environ.get("FINE"):
            st_()
    st_()

    bfx = lambda st, k, i: 128 + st * 32 + k * 16 + i * 4
    bfw = lambda st, k, i: 128 + st * 32 + k * 16 + 8 + i * 4
    def b_reads(st):
        r = []
        for k in range(2):
            ks = st * 2 + k
            for i in range(2):
                r.append("ds_read_b128 %s, v%d offset:%d" % (rr("a", bfx(st, k, i), 4), vXr + ks, i * 4096))
                for u in range(2):
                    r.append("ds_read_b64_tr_b16 %s, v%d offset:%d" % (rr("a", bfw(st, k, i) + 2 * u, 2), vWr + i, ks * 4096 + u * 1024))
        return r
    def b_mf(var, st, zero=False):
        mf = []
        for k in range(2):
            for b in range(2):
                for c in range(2):
                    a = rr("v", RA + (b * 2 + c) * 16, 16)
                    X, W = rr("a", bfx(st, k, b), 4), rr("a", bfw(st, k, c), 4)
                    A, B = (X, W) if var else (W, X)
                    mf.append("%s %s, %s, %s, %s" % (MF, a, A, B, "0" if (zero and k == 0) else a))
        return mf
    def kv_pack(mat, n):
        f, b0 = kvreg(mat, n)
        dst = (RC if mat else RB) + 8 * n
        if f == "v":
            return pack_tile(b0, dst)
        return ["v_accvgpr_read_b32 v%d, a%d" % (RD + k, b0 + k) for k in range(16)] + pack_tile(RD, dst)
    def kv_store(mat, n):
        reg = (RC if mat else RB) + 8 * n
        return ["s_add_u32 s%d, s%d, 0x%x" % (sOff, sKo, (n >> 1) * U + mat * 8192)] + \
               ["buffer_store_dwordx4 %s, v%d, s[%d:%d], s%d offen offset:%d %s" % (rr("v", reg + 4 * m, 4), vL16, sO, sO + 3, sOff, (n & 1) * 2048 + m * 1024, WT) for m in range(2)]
    def b_store(t):
        return ["s_add_u32 s%d, s%d, 0x%x" % (sOff, sBo, (t >> 1) * 120 * 1024)] + \
               ["buffer_store_dwordx4 %s, v%d, s[%d:%d], s%d offen offset:%d %s" % (rr("v", RD + 8 * t + 4 * m, 4), vL16, sBO, sBO + 3, sOff, (t & 1) * 2048 + m * 1024, WT) for m in range(2)]
    Bs = lambda b: [("BX", b), ("BW", b)]
    Qs = lambda s: [("QX", s, 0), ("QX", s, 1), ("QW", s)]
    p(last)
    p.add(pl.barrier(Bs(0), KVs(7), 768))
    G = Gaps(16)
    G.put(0, ["s_lshr_b32 s%d, s%d, 1" % (sT, sWave), "s_lshl_b32 s%d, s%d, 13" % (sT, sT),
              "s_sub_u32 s%d, 0x%x, s%d" % (sT, u32((pl.unit[("BX", 0)] - pl.unit[("KX", 7, 0)]) * U), sT)])
    G.put(0, ["v_add_u32 v%d, s%d, v%d" % (vXr + k, sT, vXr + k) for k in range(4)])
    G.put(1, upd([vWr, vWr + 1], (pl.unit[("BW", 0)] - pl.unit[("KW", 7, 0)]) * U))
    for i in range(2):
        pre, tag = pl.take("W", i)
        assert len(pre) == 2
        G.put(1, pre)
        pl.issue(tag)
        put_dma(G, i, sW, 2 + 7 * i, 8 + 7 * i)
    G.spread(b_reads(0), 2, 13)
    G.stream([x for n in range(8) for x in kv_pack(0, n)], 3, 15)
    p.add(G.emit(kv_mf(1)))
    p("s_lshl_b32 s%d, s%d, 20" % (sT, sH))
    p("s_lshl_b32 s%d, s%d, 17" % (sT2, sI))
    p("s_add_u32 s%d, s%d, s%d" % (sT, sT, sT2))
    srd(p, sO, ptr(D_WS), off_s=sT, off_imm=WS_KV, nrec=128 * 1024)
    p(WL)
    p("s_cmp_ge_u32 s%d, 10\ns_cbranch_scc1 M_bv" % sCB)
    pl0 = pl
    qfx = lambda st, i: 128 + st * 24 + i * 4
    qfw = lambda st, i: 128 + st * 24 + 8 + i * 4
    qacc = lambda tl, a: RA + (tl * 4 + a) * 16
    def q_reads(st, ks):
        r = []
        for i in range(4):
            if i < 2:
                r.append("ds_read_b128 %s, v%d" % (rr("a", qfx(st, i), 4), vXr + 4 * i + ks))
            for u in range(2):
                r.append("ds_read_b64_tr_b16 %s, v%d offset:%d" % (rr("a", qfw(st, i) + 2 * u, 2), vWr + i, ks * 4096 + u * 1024))
        return r
    for var in range(2):
        pl = pl0.copy()
        if var:
            p("M_bv:")
        mfb = b_mf(var, 1) + b_mf(var, 0)
        G = Gaps(16)
        G.spread(b_reads(0), 2, 6); G.put(7, WL); G.spread(b_reads(1), 8, 13)
        put_dma(G, 0, sW, 2, 8); put_dma(G, 1, sX, 9, 14)
        body("M_b%d" % var, G, mfb)
        G = Gaps(8)
        pre, tag = pl.take("X", 1)
        assert len(pre) == 2
        G.put(0, pre)
        pl.issue(tag)
        put_dma(G, 1, sX, 1, 6)
        G.spread(b_reads(1), 0, 5)
        G.stream([x for n in range(8) for x in kv_pack(1, n)], 0, 6)
        z = b_mf(var, 0, zero=True)
        p.add(G.emit(z, 0, 7))
        last = z[7]
        stores = [kv_store(0, n) for n in range(8)] + [kv_store(1, 0)]
        for b in range(1, 10):
            bar = pl.barrier(Bs(b), Bs(b - 1), 512)
            cu = upd([vXr, vXr + 1, vXr + 2, vXr + 3], (pl.unit[("BX", b)] - pl.unit[("BX", b - 1)]) * U) + \
                 upd([vWr, vWr + 1], (pl.unit[("BW", b)] - pl.unit[("BW", b - 1)]) * U)
            cu += extra("X" if (b != 2) else "W", 2)
            tags = []
            for i, ty in enumerate("WX"):
                pre, tag = pl.take(ty, i)
                cu += pre
                tags.append(tag)
            cu += stores[b - 1]
            pl.hook(stores[b - 1], "kv")
            for t in tags:
                pl.issue(t)
            skel(last, bar, mfb, cu, "M_b%d" % var)
            if STAMPS and os.environ.get("FINE") and b in (1, 3, 5, 7):
                if var and b == 1:
                    st_.n -= 4
                st_()
            last = mfb[15]
        p(last)
        p.add(pl.barrier(Qs(0), Bs(9), 1024))
        G = Gaps(8)
        G.put(0, ["s_and_b32 s%d, s%d, 0x1000" % (sT, sW4), "s_add_u32 s%d, s%d, 0x%x" % (sT2, sT, u32((pl.unit[("QX", 0, 1)] - pl.unit[("BX", 9)]) * U)),
                  "s_add_u32 s%d, s%d, 0x%x" % (sT, sT, u32((pl.unit[("QX", 0, 0)] - pl.unit[("BX", 9)]) * U))])
        G.put(0, ["v_add_u32 v%d, s%d, v%d" % (vXr + 4 + k, sT2, vXr + k) for k in range(4)])
        G.put(1, ["s_lshr_b32 s%d, s%d, 5" % (sT2, sW4), "s_and_b32 s%d, s%d, 0x80" % (sT2, sT2)])
        G.put(1, ["v_add_u32 v%d, s%d, v%d" % (vXr + k, sT, vXr + k) for k in range(4)])
        G.put(1, ["v_xor_b32 v%d, s%d, v%d" % (vWr, sT2, vWr)] + upd([vWr], (pl.unit[("QW", 0)] - pl.unit[("BW", 9)]) * U) +
                 ["v_xor_b32 v%d, %d, v%d" % (vWr + c, c * 64, vWr) for c in range(1, 4)])
        pre, tag = pl.take("X", 0)
        assert len(pre) == 2
        G.put(2, pre)
        pl.issue(tag)
        put_dma(G, 0, sX, 3, 7)
        G.spread(q_reads(0, 0), 2, 6)
        p.add(G.emit(b_mf(var, 1)))
        if var == 0:
            p("s_branch M_bdone")
    p("M_bdone:")
    st_()

    qorder = [(tl, a) for tl in (1, 0) for a in range(4)]
    def q_mf(st, zero=False):
        return ["%s %s, %s, %s, %s" % (MF, rr("v", qacc(tl, a), 16), rr("a", qfw(st, a), 4), rr("a", qfx(st, tl), 4), "0" if zero else rr("v", qacc(tl, a), 16)) for tl, a in qorder]
    mfq = q_mf(1) + q_mf(0) + q_mf(1) + q_mf(0)
    G = Gaps(32)
    G.spread(q_reads(0, 0), 2, 6)
    for ks in range(3):
        G.put(8 * ks + 7, WL)
        G.spread(q_reads((ks + 1) & 1, ks + 1), 8 * ks + 8, 8 * ks + 13)
    put_dma(G, 0, sX, 2, 10); put_dma(G, 1, sX, 11, 20); put_dma(G, 2, sW, 21, 30)
    Gq = G
    body("M_q", G, mfq, entries={16: "M_q16"})
    p("s_mul_i32 s%d, s%d, %d" % (sT, sTB, 4 * 120 * 1024))
    p("s_lshl_b32 s%d, s%d, 13" % (sT2, sCB))
    p("s_add_u32 s%d, s%d, s%d" % (sT, sT, sT2))
    srd(p, sBO, ptr(D_WS), off_s=sT, off_imm=WS_BF)
    p("s_cmp_lt_u32 s2, 240\ns_cselect_b32 s%d, %d, 0" % (sBO + 2, 4 * 120 * 1024))
    p("s_lshr_b32 s%d, s%d, 1" % (sBo, sWave))
    p("s_mul_i32 s%d, s%d, %d" % (sBo, sBo, 2 * 120 * 1024))
    p("s_and_b32 s%d, s%d, 0x1000" % (sT, sW4))
    p("s_add_u32 s%d, s%d, s%d" % (sBo, sBo, sT))
    tags = []
    for i, ty in ((1, "X"), (2, "W")):
        pre, tag = pl.take(ty, i)
        p.add(pre)
        tags.append(tag)
    for t in tags:
        pl.issue(t)
    p(WL)
    G = Gaps(8)
    for k in range(8):
        G.put(k, [x for x in Gq.gap(8 + k) if not ("lds" in x and "s%d offen" % sS in x)])
    G.stream([x for t in range(4) for x in pack_tile(RA + 16 * t, RD + 8 * t)], 0, 3)
    p.add(G.emit(q_mf(0, zero=True)))
    p(call("M_q16"))
    last = mfq[31]
    def bm_frag_loads(q, fbase):
        q("s_lshl_b32 s%d, s%d, 3" % (sTT, sXcd))
        q("s_lshl_b32 s%d, s%d, 1" % (sT, sWave))
        q("s_add_u32 s%d, s%d, s%d" % (sTT, sTT, sT))
        q("s_mul_i32 s%d, s%d, %d" % (sT, sTT, 120 * 1024))
        srd(q, sBF, ptr(D_WS), off_s=sT, off_imm=WS_BF, nrec=2 * 120 * 1024)
        q("s_mul_i32 s%d, s%d, 5" % (sT, sIdx))
        q("s_lshr_b32 s%d, s%d, 2" % (sT, sT))
        q("s_add_u32 s%d, s%d, %d" % (sT, sT, fbase))
        q("s_lshl_b32 s%d, s%d, 10" % (sT, sT))
        for tt in range(2):
            for u in range(2):
                q("buffer_load_dwordx4 %s, v%d, s[%d:%d], s%d offen offset:%d %s" % (rr("a", aXF + (tt * 2 + u) * 4, 4), vL16, sBF, sBF + 3, sT, u * 1024, WT))
            if tt == 0:
                q("s_add_u32 s%d, s%d, %d" % (sT, sT, 120 * 1024))
    vV, vWa, vRd = vA + 2, vA + 3, vA
    def bm1_loads(q):
        bm_frag_loads(q, 40)
        q("s_mul_i32 s%d, s%d, 20" % (sT, sIdx))
        q("v_and_b32 v%d, 31, v%d" % (t2, vLane))
        q("v_add_u32 v%d, s%d, v%d" % (t1, sT, t2))
        q("v_lshrrev_b32 v%d, 5, v%d" % (vV, t1))
        q("v_lshlrev_b32 v%d, 11, v%d" % (vV, vV))
        q("v_and_b32 v%d, 31, v%d" % (t1, t1))
        q("v_lshl_add_u32 v%d, v%d, 4, v%d" % (vV, t1, vV))
        q("v_and_b32 v%d, 32, v%d" % (t1, vLane))
        q("v_lshl_add_u32 v%d, v%d, 4, v%d" % (vV, t1, vV))
        q("v_bfrev_b32 v%d, 1" % t1)
        q("v_cmp_gt_u32 vcc, 20, v%d" % t2)
        q("v_cndmask_b32 v%d, v%d, v%d, vcc" % (vV, t1, vV))
        for tt in range(2):
            q("s_mov_b32 s%d, %d" % (sT, (tt * 120 + 80) * 1024))
            for mm in range(2):
                q("buffer_load_dwordx4 %s, v%d, s[%d:%d], s%d offen offset:%d %s" % (rr("a", aVF + (tt * 2 + mm) * 4, 4), vV, sBF, sBF + 3, sT, mm * 1024, WT))
    qst = {1: [("b", b_store(0)), ("b", b_store(1))], 2: [("b", b_store(2)), ("b", b_store(3))], 3: [("kv", kv_store(1, 1)), ("kv", kv_store(1, 2))],
           4: [("kv", kv_store(1, 3))], 5: [("kv", kv_store(1, 4)), ("kv", kv_store(1, 5))], 6: [("kv", kv_store(1, 6))], 7: [("kv", kv_store(1, 7))]}
    pubB = pubKV = None
    for s in range(1, 10):
        bar = pl.barrier(Qs(s), Qs(s - 1), 1024)
        cu = upd([vXr], (pl.unit[("QX", s, 0)] - pl.unit[("QX", s - 1, 0)]) * U) + upd([vXr + 4], (pl.unit[("QX", s, 1)] - pl.unit[("QX", s - 1, 1)]) * U) + \
             upd([vWr + c for c in range(4)], (pl.unit[("QW", s)] - pl.unit[("QW", s - 1)]) * U) + \
             ["v_xor_b32 v%d, %d, v%d" % (vXr + 4 * g + k, 32 * k, vXr + 4 * g) for g in range(2) for k in range(1, 4)]
        cu += extra("X", 3)
        tags = []
        for i, ty in enumerate("XXW"):
            pre, tag = pl.take(ty, i)
            cu += pre
            tags.append(tag)
        if s == 3:
            cu.append(poll_check("go"))
        if pubB is None and s > 2 and pl.complete("b"):
            pubB = s
            cu.append(publish(1))
        if pubKV is None and s > 7 and pl.complete("kv"):
            pubKV = s
            cu.append(publish(2))
        for tag, ins in qst.get(s, []):
            cu += ins
            pl.hook(ins, tag)
        if s == 6:
            ins = poll_load(1)
            cu += ins
            pl.hook(ins, "poll")
        if s == 8:
            assert pl.complete("poll")
            cu.append(poll_check(1))
            ins = L(bm1_loads)
            cu += ins
            pl.hook(ins)
        for t in tags:
            pl.issue(t)
        skel(last, bar, mfq, cu, "M_q")
        if STAMPS and os.environ.get("FINE"):
            st_()
    if VERB:
        print("pubB", pubB, "pubKV", pubKV)
    assert pubB and pubKV and not pl.pend["X"] and not pl.pend["W"]
    p(last)
    p(WL)
    p("s_mov_b32 s%d, 0x%x" % (sT, QSCALE))
    qp = []
    for tl, a in qorder:
        b = qacc(tl, a)
        qp += ["v_mul_f32 v%d, s%d, v%d" % (b + k, sT, b + k) for k in range(16)] + pack_tile(b, Q(tl, 2 * a))
    G = Gaps(8)
    G.stream(qp[:30], 3, 7)
    p.add(G.emit(q_mf(1)))
    p.add(qp[30:])
    st_()
    p.add(poll_load(2))

    C1, C2, PH, VF, KC, AF, RR = 48, 64, 80, 96, 112, TMP, 32
    q = Prog()
    q("M_phi:")
    for tile, C in ((0, C1), (1, C2)):
        for u in range(2):
            q("%s %s, %s, %s, %s" % (MF, rr("v", C, 16), rr("v", AW + (tile * 2 + u) * 4, 4), rr("a", aXF + u * 4, 4), rr("v", C, 16) if u else "0"))
    for k in range(8):
        q("v_accvgpr_mov_b32 a%d, a%d" % (aXF + k, aXF + 8 + k))
    x = [C1 + k for k in range(16)] + [C2 + k for k in range(4)]
    m = t1
    q("v_max3_f32 v%d, v%d, v%d, v%d" % (m, x[0], x[1], x[2]))
    for k in range(3, 19, 2):
        q("v_max3_f32 v%d, v%d, v%d, v%d" % (m, m, x[k], x[k + 1]))
    q("v_max_f32 v%d, v%d, v%d" % (m, m, x[19]))
    q("v_mul_f32 v%d, s%d, v%d" % (m, sL2, m))
    for k in range(20):
        q("v_fma_f32 v%d, v%d, s%d, -v%d" % (x[k], x[k], sL2, m))
    for k in range(20):
        q("v_exp_f32 v%d, v%d" % (x[k], x[k]))
    q("v_add_f32 v%d, v%d, v%d" % (m, x[0], x[1]))
    for k in range(2, 20):
        q("v_add_f32 v%d, v%d, v%d" % (m, m, x[k]))
    q("v_rcp_f32 v%d, v%d" % (m, m))
    for k in range(20):
        q("v_mul_f32 v%d, v%d, v%d" % (x[k], x[k], m))
    for k in range(10):
        q("v_cvt_pk_bf16_f32 v%d, v%d, v%d" % (PH + k, x[2 * k], x[2 * k + 1]))
    q(ret)
    tail += q.ins

    L0 = 96 * 1024
    p("s_mov_b32 s%d, 0x%x" % (sL2, LOG2E))
    p("v_bfe_u32 v%d, v%d, 2, 1" % (t0, vLane))
    p("v_mul_u32_u24 v%d, 0x8000, v%d" % (t0, t0))
    p("v_lshl_or_b32 v%d, v%d, 16, v%d" % (t0, t0, t0))
    for k in range(32):
        p("v_accvgpr_read_b32 v%d, a%d" % (KC + k, aRAW + k))
    for k in range(16):
        p("v_lshl_or_b32 v%d, v%d, 16, v%d" % (AW + k, KC + 2 * k + 1, KC + 2 * k))
        p("v_xor_b32 v%d, v%d, v%d" % (AW + k, AW + k, t0))
    p(call("M_phi"))
    p("s_lshl_b32 s%d, s%d, 20" % (sT, sH))
    srd(p, sKV, ptr(D_WS), off_s=sT, off_imm=WS_KV)
    p("s_lshl_b32 s%d, s%d, 16" % (sT, sI))
    p("s_sub_u32 s%d, 0x100000, s%d" % (sKV + 2, sT))
    p("v_add_u32 v%d, s%d, v%d" % (vDma, sW4, vL16))
    p.add(poll_check(2))
    p("s_barrier")
    st_()
    for t in range(5):
        p("s_add_u32 m0, s%d, 0x%x" % (sW4, t * U))
        p("s_mov_b32 s%d, 0x%x" % (sOff, t * U))
        for k in range(4):
            p("buffer_load_dwordx4 v%d, s[%d:%d], s%d offen offset:%d %s lds" % (vDma, sKV, sKV + 3, sOff, k * 1024, WT))
    p("v_and_b32 v%d, 31, v%d" % (t2, vLane))
    p("s_add_u32 s%d, s%d, %d" % (sT, sW4, L0))
    p("v_lshlrev_b32 v%d, 7, v%d" % (vWa, t2))
    p("v_lshrrev_b32 v%d, 5, v%d" % (t1, vLane))
    p("v_lshl_add_u32 v%d, v%d, 6, v%d" % (vWa, t1, vWa))
    p("v_add_u32 v%d, s%d, v%d" % (vWa, sT, vWa))
    p("v_lshlrev_b32 v%d, 9, v%d" % (vRd, t1))
    p("v_bfe_u32 v%d, v%d, 2, 2" % (t1, vLane))
    p("v_lshl_add_u32 v%d, v%d, 7, v%d" % (vRd, t1, vRd))
    p("v_bfe_u32 v%d, v%d, 4, 1" % (t1, vLane))
    p("v_lshl_add_u32 v%d, v%d, 5, v%d" % (vRd, t1, vRd))
    p("v_and_b32 v%d, 3, v%d" % (t1, vLane))
    p("v_lshl_add_u32 v%d, v%d, 3, v%d" % (vRd, t1, vRd))
    p("v_add_u32 v%d, s%d, v%d" % (vRd, sT, vRd))
    p("v_mov_b32 v%d, 0x3f803f80" % t0)
    p("v_cmp_eq_u32 vcc, 20, v%d" % t2)
    for tt in range(2):
        if tt:
            p(call("M_phi"))
        p("ds_write_b128 v%d, %s" % (vWa, rr("v", PH, 4)))
        p("ds_write_b128 v%d, %s offset:16" % (vWa, rr("v", PH + 4, 4)))
        p("ds_write_b64 v%d, %s offset:32" % (vWa, rr("v", PH + 8, 2)))
        for nn in range(2):
            for mm in range(2):
                for u in range(2):
                    p("ds_read_b64_tr_b16 %s, v%d offset:%d" % (rr("v", AF + (nn * 2 + mm) * 4 + 2 * u, 2), vRd, (16 * mm + 8 * u) * 128 + nn * 64))
        for k in range(8):
            p("v_accvgpr_read_b32 v%d, a%d" % (VF + k, aVF + tt * 8 + k))
        for k in range(8):
            p("v_cndmask_b32 v%d, v%d, v%d, vcc" % (VF + k, VF + k, t0))
        for mm in range(2):
            for nn in range(2):
                c = rr("v", KC + nn * 16, 16)
                p("%s %s, %s, %s, %s" % (MF, c, rr("v", AF + (nn * 2 + mm) * 4, 4), rr("v", VF + mm * 4, 4), "0" if (tt == 0 and mm == 0) else c))
    R0 = L0 + 16384
    p("s_mul_i32 s%d, s%d, 6144" % (sT, sWave))
    p("s_add_u32 s%d, s%d, %d" % (sT, sT, R0))
    p("v_add_u32 v%d, s%d, v%d" % (t1, sT, vL16))
    p("v_and_b32 v%d, 31, v%d" % (vLim, vLane))
    p("v_lshrrev_b32 v%d, 5, v%d" % (t0, vLane))
    p("v_lshlrev_b32 v%d, 8, v%d" % (vCt, t0))
    p("v_lshlrev_b32 v%d, 10, v%d" % (vV, t0))
    p("v_lshl_add_u32 v%d, v%d, 4, v%d" % (vV, t2, vV))
    p("v_lshlrev_b32 v%d, 2, v%d" % (t0, t0))
    p("v_sub_u32 v%d, v%d, v%d" % (vLim, vLim, t0))
    p("v_mov_b32 v%d, 0x%x" % (vNeg, NEG))
    p("v_bfe_u32 v%d, v%d, 4, 1" % (t0, vLane))
    p("v_lshl_add_u32 v%d, v%d, 10, v%d" % (vCt, t0, vCt))
    p("v_and_b32 v%d, 15, v%d" % (t0, vLane))
    p("v_lshl_add_u32 v%d, v%d, 4, v%d" % (vCt, t0, vCt))
    p("v_mov_b32 v%d, 0\nv_mov_b32 v%d, 0" % (vL, vL + 1))
    for nn in range(2):
        for jj in range(3):
            p("ds_write_b128 v%d, %s offset:%d" % (t1, rr("v", KC + nn * 16 + jj * 4, 4), (nn * 3 + jj) * 1024))
    p("s_lshl_b32 s%d, s%d, 3" % (sT, sIdx))
    p("s_add_u32 s%d, s%d, s%d" % (sT, sT, sXcd))
    p("s_lshl_b32 s%d, s%d, 13" % (sT, sT))
    srd(p, sY, ptr(D_WS), off_s=sT, off_imm=WS_KVP, nrec=5120)
    srd(p, sC, ptr(D_WS), off_imm=WS_CTX, nrec=16 * MB)
    p("s_lshl_b32 s%d, s%d, 10" % (sT, sWave))
    p("s_add_u32 s%d, s%d, %d" % (sT, sT, R0))
    p("v_add_u32 v%d, s%d, v%d" % (t1, sT, vL16))
    for k in range(128):
        p("v_accvgpr_write_b32 a%d, 0" % k)
    p("v_mov_b32 v%d, v%d" % (vB, vL16))
    p("v_add_u32 v%d, 0x4000, v%d" % (vB + 1, vL16))
    p("s_waitcnt vmcnt(8) lgkmcnt(0)\ns_barrier")
    st_()
    for j in range(8):
        p("ds_read_b128 %s, v%d offset:%d" % (rr("a", FB(j), 4), vB, j * 1024))
    RS = 128
    for k in range(2):
        for w in range(4):
            p("ds_read_b128 %s, v%d offset:%d" % (rr("v", RS + k * 16 + w * 4, 4), t1, w * 6144 + k * 4096))
    p("s_lshl_b32 s%d, s%d, 11" % (sT, sWave))
    p("s_cmp_eq_u32 s%d, 3" % sWave)
    p("s_cselect_b32 s%d, 512, s%d" % (sT2, sT))
    p("s_add_u32 s%d, s%d, 2560" % (sOff, sT))
    p("s_mov_b32 s%d, 0x%x" % (sThr, THRESH))
    p("s_lshl_b32 s%d, s%d, 2" % (sT, sI))
    p("s_add_u32 s%d, s%d, s%d" % (sLoTri, sT, sWave))
    p("s_sub_u32 s%d, 60, s%d" % (sHiTri, sT))
    p("s_add_u32 s%d, s%d, s%d" % (sHiTri, sHiTri, sWave))
    p("s_mov_b32 s%d, s%d" % (sEvt, sLoTri))
    p("s_mov_b32 s%d, 0x4000" % sRd)
    for k in range(32):
        p("v_mov_b32 v%d, 0" % (CI(0) + k))
    p("s_mov_b32 s%d, 0" % sStep)
    p("s_mov_b32 s%d, 0x%x" % (sG, 5 * U))

    def evt_check():
        lab = p.newlabel("M_ev")
        tail.extend(["%s:" % lab, call("M_event"), "s_branch %s_r" % lab])
        return ["s_cmp_eq_u32 s%d, s%d" % (sStep, sEvt), "s_cbranch_scc1 %s" % lab, "%s_r:" % lab]
    def qk_mfmas(par, tiles):
        return [(ds, "%s %s, %s, %s, %s" % (MF, rr("v", S(par, tl), 16), rr("a", FB(ds), 4), rr("v", Q(tl, ds), 4), rr("v", CI(tl) if ds == 0 else S(par, tl), 16)))
                for ds in range(8) for tl in tiles]
    def pv_mfmas(par, tiles):
        return [(8 + j, "%s %s, %s, %s, %s" % (MF, rr("a", O(tl, j & 3), 16), rr("a", FB(8 + j), 4), rr("v", PP(par, tl) + 4 * (j >> 2), 4), rr("a", O(tl, j & 3), 16)))
                for j in range(8) for tl in tiles]
    v_off = lambda j: 8192 + ((j & 3) * 2 + (j >> 2)) * 1024
    def rowmax(par, tl, dst, tmp):
        s = S(par, tl)
        r = ["v_max3_f32 v%d, v%d, v%d, v%d" % (dst, s, s + 1, s + 2)]
        for k in range(3, 15, 2):
            r.append("v_max3_f32 v%d, v%d, v%d, v%d" % (dst, dst, s + k, s + k + 1))
        r.append("v_max_f32 v%d, v%d, v%d" % (dst, dst, s + 15))
        return r + ["v_mov_b32 v%d, v%d" % (tmp, dst), "v_permlane32_swap_b32 v%d, v%d" % (dst, tmp), "v_max_f32 v%d, v%d, v%d" % (dst, dst, tmp)]
    def sm_stream(par, tiles, part):
        groups = [(tl, k) for k in range(part * 4, part * 4 + 4) for tl in tiles]
        out = []
        def fin(n):
            tl, k = groups[n]
            a, b = TMP + (n % 4) * 2, TMP + (n % 4) * 2 + 1
            if k == 0:
                adds = ["v_add_f32 v%d, v%d, v%d" % (vLt + tl, a, b)]
            else:
                adds = ["v_add_f32 v%d, v%d, v%d" % (vLt + tl, vLt + tl, a), "v_add_f32 v%d, v%d, v%d" % (vLt + tl, vLt + tl, b)]
            return adds, ["v_cvt_pk_bf16_f32 v%d, v%d, v%d" % (PP(par, tl) + k, a, b)]
        for n, (tl, k) in enumerate(groups):
            a, b = TMP + (n % 4) * 2, TMP + (n % 4) * 2 + 1
            ea = "v_exp_f32 v%d, v%d" % (a, S(par, tl) + 2 * k)
            eb = "v_exp_f32 v%d, v%d" % (b, S(par, tl) + 2 * k + 1)
            if n:
                ad, cv = fin(n - 1)
                out += [ea] + ad[:1] + cv + [eb] + ad[1:]
            else:
                out += [ea, eb]
        ad, cv = fin(len(groups) - 1)
        return out + ad[:1] + cv + ad[1:] if len(ad) > 1 else out + ["s_nop 0"] + ad + cv
    need = lambda js: I("need", xrd=[("a", FB(j) + e) for j in js for e in range(4)])
    kread = lambda j, par: "ds_read_b128 %s, v%d offset:%d" % (rr("a", FB(j), 4), vB + par, j * 1024)

    JS = int(os.environ.get("JS", "6"))
    def iteration(par, qk, pv, barrier, jin, jout, dma=True, loop=None, evt=True):
        jin, jout = [JS if x == 6 else x for x in (jin, jout)]
        mq, mp = qk_mfmas(par ^ 1, qk), pv_mfmas(par, pv)
        mf = mq + mp
        nq, nm = len(mq), len(mf)
        G = Gaps(nm)
        pre = []
        first = {}
        for k, (j, _) in enumerate(mf):
            first.setdefault(j, k)
        rd = [(j, kread(j, par ^ 1)) for j in range(jin, 8) if qk] + \
             [(8 + j, "ds_read_b128 %s, v%d offset:%d" % (rr("a", FB(8 + j), 4), vB + par, v_off(j))) for j in range(8)]
        LA = 8 if len(qk) == 2 else JS
        lastv = -1
        for j, t in rd:
            g = first[j] - LA
            if nq == 0:
                pre.append(t)
            else:
                g = max(g, lastv + (1 if g > 0 else 0), 0)
                G.put(g, t)
                lastv = g
        for j in range(0, 16, 2):
            if j in first:
                if first[j] > 0:
                    G.nv[first[j] - 1].insert(0, need([j, j + 1]))
                else:
                    pre.append(need([j, j + 1]))
        tp = lastv + 1
        if jout:
            G.va[lastv].insert(0, "v_add_u32 v%d, s%d, v%d" % (vB + par, sRd, vL16))
            G.lightest(["s_add_u32 s%d, s%d, 0x4000" % (sRd, sRd), "s_and_b32 s%d, s%d, 0x1ffff" % (sRd, sRd)], 1, lastv - 1)
            if barrier and not os.environ.get("X_NOBAR"):
                G.put(tp, ["s_waitcnt vmcnt(8)", "s_barrier"])
            G.spread([kread(j, par) for j in range(jout)], tp, nm - 1)
        if dma and not os.environ.get("X_NODMA"):
            d = ["buffer_load_dwordx4 v%d, s[%d:%d], s%d offen offset:%d %s lds" % (vDma, sKV, sKV + 3, sG, q * 1024, WT) for q in range(4)]
            G.put(0, ["s_and_b32 s%d, s%d, 0x1ffff" % (sWr, sG), "s_add_u32 m0, s%d, s%d" % (sWr, sW4)])
            step = 2 * max(1, (tp - 1) // 8)
            for q in range(4):
                G.put(1 + q * step, d[q])
            G.lightest(["s_add_u32 s%d, s%d, 0x4000" % (sG, sG)], 2 + 3 * step, nm - 2)
        if evt and not os.environ.get("X_NOEVT"):
            G.lightest(["s_add_u32 s%d, s%d, 1" % (sStep, sStep)] + evt_check(), nq + 1, nm - 2)
        chk = []
        if len(pv) == 2:
            chk = ["v_max_f32 v%d, v%d, v%d" % (vU, vLt, vLt + 1), "v_cmp_lt_f32 vcc, s%d, v%d" % (sThr, vU)]
        else:
            chk = ["v_cmp_lt_f32 vcc, s%d, v%d" % (sThr, vLt + pv[0])]
        lab = p.newlabel("M_sl")
        tail.extend(["%s:" % lab] + [call("M_slow%d%d" % (par, tl)) for tl in pv] + ["s_branch %s_r" % lab])
        br = ["s_cbranch_vccnz %s" % lab, "%s_r:" % lab]
        accl = ["v_add_f32 v%d, v%d, v%d" % (vL + tl, vL + tl, vLt + tl) for tl in pv]
        if loop:
            G.put(nm - 1, ["s_sub_u32 s%d, s%d, 1" % (sCnt, sCnt)])
            G.put(nm - 1, ["s_cbranch_scc0 %s" % loop], post=True)
        if nq:
            G.put(nq - 1, br + accl)
            G.stream(sm_stream(par, pv, 1) + chk, 0, nq - 2)
            G.stream(sm_stream(par ^ 1, qk, 0), nq + 1, nm - 1)
        else:
            pre += sm_stream(par, pv, 1) + chk + br + accl
        if VERB:
            print("iteration", par, qk, pv, G.report())
        p.add(pre + G.emit([t for _, t in mf]))

    p.add(evt_check())
    mf0 = [t for _, t in qk_mfmas(0, (0, 1))]
    G = Gaps(16)
    red = []
    for k in range(2):
        b = RS + k * 16
        for e in range(4):
            red += ["v_add_f32 v%d, v%d, v%d" % (b + e, b + e, b + 4 + e), "v_add_f32 v%d, v%d, v%d" % (b + 8 + e, b + 8 + e, b + 12 + e)]
        red += ["v_add_f32 v%d, v%d, v%d" % (b + e, b + e, b + 8 + e) for e in range(4)]
    G.stream(red, 2, 8)
    for k in range(2):
        G.put(9 + k, "buffer_store_dwordx4 %s, v%d, s[%d:%d], s%d offen %s" % (rr("v", RS + k * 16, 4), vV, sY, sY + 3, sOff if k else sT2, WT))
    G.spread([kread(j, 1) for j in range(4)], 11, 15)
    p.add(G.emit(mf0))
    p("s_add_u32 s%d, s%d, 1" % (sStep, sStep))
    for tl in range(2):
        p.add(rowmax(0, tl, vU, vU + 1))
        p("v_add_f32 v%d, 0x%x, v%d" % (vU, f2u(BIAS), vU))
        for k in range(16):
            p("v_sub_f32 v%d, v%d, v%d" % (S(0, tl) + k, S(0, tl) + k, vU))
            p("v_sub_f32 v%d, v%d, v%d" % (CI(tl) + k, CI(tl) + k, vU))
    p.add(evt_check())
    p.add(sm_stream(0, (0, 1), 0))
    p("s_waitcnt vmcnt(0)\ns_barrier")
    p.add(publish(3))
    def wo_src(which, un):
        p("s_lshr_b32 s%d, s%d, 1" % (sT, un))
        p("s_mul_i32 s%d, s%d, 40960" % (sT, sT))
        p("s_and_b32 s%d, s%d, 1" % (sT2, un))
        p("s_mul_i32 s%d, s%d, 640" % (sT2, sT2))
        p("s_add_u32 s%d, s%d, s%d" % (sT, sT, sT2))
        srd(p, sY, ptr(which), off_s=sT)
        p("s_sub_u32 s%d, 40960, s%d" % (sY + 2, sT2))
        p(call("M_wodma"))
    q = Prog()
    q("M_wodma:")
    q("s_mul_i32 s%d, s%d, 320" % (sT, sWave))
    q("s_mul_i32 s%d, s%d, 5120" % (sT2, sWave))
    q("s_add_u32 m0, s%d, 0x20000" % sT2)
    for k in range(5):
        q("v_add_u32 v%d, s%d, v%d" % (t0, sT, vLane))
        q("v_mul_u32_u24 v%d, 0x667, v%d" % (t1, t0))
        q("v_lshrrev_b32 v%d, 16, v%d" % (t1, t1))
        q("v_mul_u32_u24 v%d, 640, v%d" % (t1, t1))
        q("v_lshl_add_u32 v%d, v%d, 4, v%d" % (t0, t0, t1))
        q("buffer_load_dwordx4 v%d, s[%d:%d], 0 offen lds" % (t0, sY, sY + 3))
        if k < 4:
            q("s_add_u32 s%d, s%d, 64\ns_add_u32 m0, m0, 0x400" % (sT, sT))
    q(ret)
    tail += q.ins
    wo_src(A_WO, 2)
    st_()
    p("s_lshl_b32 s%d, s%d, 1" % (sCnt, sI))
    p("M_dd:")
    iteration(0, (0, 1), (0, 1), False, 4, 4)
    iteration(1, (0, 1), (0, 1), True, 4, 4, loop="M_dd")
    iteration(0, (0, 1), (0, 1), False, 4, 6)
    iteration(1, (0,), (0, 1), True, 6, 6)
    st_()
    def epilogue(tl, sblk):
        p("s_lshl_b32 s%d, s%d, 20" % (sT, sblk))
        p("s_lshl_b32 s%d, s%d, 15" % (sT2, sH))
        p("s_add_u32 s%d, s%d, s%d" % (sT, sT, sT2))
        p("s_lshl_b32 s%d, s%d, 11" % (sT2, sWave))
        p("s_add_u32 s%d, s%d, s%d" % (sCb, sT, sT2))
        p("v_mov_b32 v%d, v%d" % (vU, vL + tl))
        p("v_mov_b32 v%d, v%d" % (vU + 1, vL + tl))
        p("v_permlane32_swap_b32 v%d, v%d" % (vU, vU + 1))
        p("v_add_f32 v%d, v%d, v%d" % (vU, vU, vU + 1))
        p("v_rcp_f32 v%d, v%d" % (vU, vU))
        for a in range(4):
            T = Q(1, 0) + (a & 1) * 16
            for k in range(16):
                p("v_accvgpr_read_b32 v%d, a%d" % (T + k, O(tl, a) + k))
            for k in range(16):
                p("v_mul_f32 v%d, v%d, v%d" % (T + k, T + k, vU))
            p.add(pack_tile(T, T))
            for mm in range(2):
                p("buffer_store_dwordx4 %s, v%d, s[%d:%d], s%d offen offset:%d %s" % (rr("v", T + 4 * mm, 4), vCt, sC, sC + 3, sCb, mm * 512, WT))
            if a < 3:
                p("s_add_u32 s%d, s%d, 0x2000" % (sCb, sCb))
    def wo_reads(isB):
        regs = [S(0, 1) + 4 * n for n in range(4)] + [S(1, 1)]
        p("v_lshrrev_b32 v%d, 4, v%d" % (t0, vLane))
        p("v_lshlrev_b32 v%d, 3, v%d" % (t1, t0))
        if not isB:
            p("v_and_b32 v%d, 1, v%d" % (t0, t0))
            p("v_lshlrev_b32 v%d, 2, v%d" % (t0, t0))
            p("v_sub_u32 v%d, v%d, v%d" % (t1, t1, t0))
        p("v_bfe_u32 v%d, v%d, 2, 2" % (t0, vLane))
        p("v_add_u32 v%d, v%d, v%d" % (t1, t1, t0))
        p("v_mul_u32_u24 v%d, 640, v%d" % (t1, t1))
        p("v_and_b32 v%d, 3, v%d" % (t0, vLane))
        p("v_lshl_add_u32 v%d, v%d, 3, v%d" % (t1, t0, t1))
        p("s_mul_i32 s%d, s%d, 160" % (sT, sWave))
        p("s_add_u32 s%d, s%d, 0x20000" % (sT, sT))
        p("v_add_u32 v%d, s%d, v%d" % (t1, sT, t1))
        for n in range(5):
            for u in range(2):
                p("ds_read_b64_tr_b16 %s, v%d offset:%d" % (rr("v", regs[n] + 2 * u, 2), t1, n * 32 + u * (4 if isB else 8) * 640))
    def wo_stores(isB, un):
        regs = [S(0, 1) + 4 * n for n in range(4)] + [S(1, 1)]
        p("s_and_b32 s%d, s%d, 1" % (sT, un))
        p("s_lshl_b32 s%d, s%d, 2" % (sT, sT))
        p("s_add_u32 s%d, s%d, s%d" % (sT, sT, sWave))
        p("s_lshr_b32 s%d, s%d, 1" % (sT2, un))
        if isB:
            p("s_mul_i32 s%d, s%d, 20" % (sT, sT))
            p("s_add_u32 s%d, s%d, s%d" % (sT, sT, sT2))
        else:
            p("s_lshr_b32 s%d, s%d, 1" % (sT, sT))
            p("s_lshl_b32 s%d, s%d, 7" % (sT, sT))
            p("s_add_u32 s%d, s%d, s%d" % (sT, sT, sT2))
            p("s_lshl_b32 s%d, s%d, 1" % (sT, sT))
            p("s_and_b32 s%d, s%d, 1" % (sT2, sWave))
            p("s_add_u32 s%d, s%d, s%d" % (sT, sT, sT2))
        p("s_mul_i32 s%d, s%d, 5120" % (sT, sT))
        srd(p, sY, ptr(D_WS), off_s=sT, off_imm=WS_WOB if isB else WS_WOA, nrec=5120)
        p("s_movk_i32 s%d, 0x1000" % sT)
        for n in range(5):
            p("buffer_store_dwordx4 %s, v%d, s[%d:%d], %s offen offset:%d %s" % (rr("v", regs[n], 4), vL16, sY, sY + 3, "s%d" % sT if n == 4 else "0", (n & 3) * 1024, WT))
    wo_reads(False)
    epilogue(1, sI)
    wo_stores(False, 2)
    sUB = sBo
    p("s_andn2_b32 s%d, s%d, 7" % (sUB, sIdx))
    p("s_add_u32 s%d, s%d, s%d" % (sUB, sUB, sXcd))
    p("s_cmp_eq_u32 s%d, 7" % sI)
    p("s_cselect_b32 s%d, s%d, 64" % (sUB, sUB))
    p("s_add_u32 s%d, s%d, 32" % (sT, sXcd))
    p("s_cmp_eq_u32 s%d, 6" % sIdx)
    p("s_cselect_b32 s%d, s%d, s%d" % (sUB, sT, sUB))
    p("s_cmp_ge_u32 s%d, 40\ns_cbranch_scc1 M_nowob" % sUB)
    p("s_barrier")
    wo_src(B_WO, sUB)
    p("M_nowob:")
    p.add(poll_load(3))
    st_()
    p("s_lshl_b32 s%d, s%d, 2" % (sCnt, sI))
    p("s_sub_u32 s%d, 28, s%d" % (sCnt, sCnt))
    p("M_ss:")
    iteration(0, (0,), (0,), False, 6, 6)
    iteration(1, (0,), (0,), True, 6, 6, loop="M_ss")
    p.add(publish(4))
    p.add(poll_check(3))
    bm_frag_loads(p, 0)
    vP = vA
    p("s_lshl_b32 s%d, s%d, 16" % (sT, sIdx))
    p("s_lshl_b32 s%d, s%d, 14" % (sT2, sWave))
    p("s_add_u32 s%d, s%d, s%d" % (sT, sT, sT2))
    srd(p, sO, ptr(D_WS), off_s=sT, off_imm=WS_KVP, nrec=16384)
    for j in range(2):
        for k in range(5):
            if k in (0, 4):
                p("s_mov_b32 s%d, %d" % (sT, j * 8192 + k * 1024))
            p("buffer_load_dwordx4 %s, v%d, s[%d:%d], s%d offen offset:%d %s" % (rr("a", aPA + j * 20 + k * 4, 4), vL16, sO, sO + 3, sT, (k & 3) * 1024, WT))
    iteration(0, (0,), (0,), False, 6, 0, dma=False, evt=False)
    iteration(1, (), (0,), False, 0, 0, dma=False, evt=False)
    st_()
    p("s_sub_u32 s%d, 15, s%d" % (sCnt, sI))
    epilogue(0, sCnt)
    p("s_cmp_ge_u32 s%d, 40\ns_cbranch_scc1 M_nowob2" % sUB)
    wo_reads(True)
    wo_stores(True, sUB)
    p("M_nowob2:")
    st_()
    Lr, SUM, KA, N = 96, 176, 200, 96
    for k in range(40):
        p("v_accvgpr_read_b32 v%d, a%d" % (Lr + k, aPA + k))
    for e in range(20):
        p("v_add_f32 v%d, v%d, v%d" % (Lr + e, Lr + e, Lr + 20 + e))
    p("s_and_b32 s%d, s%d, 1" % (sT, sI))
    p("s_lshl_b32 s%d, s%d, 16" % (sT, sT))
    p("v_add_u32 v%d, s%d, v%d" % (t0, sT, vDma))
    for k in range(5):
        p("ds_write_b128 v%d, %s offset:%d" % (t0, rr("v", Lr + 4 * k, 4), (k & 3) * 1024 + (k >> 2) * U))
    p("v_and_b32 v%d, 31, v%d" % (t2, vLane))
    p("v_min_u32 v%d, 20, v%d" % (t2, t2))
    p("v_and_b32 v%d, 32, v%d" % (t1, vLane))
    p("v_add_u32 v%d, v%d, v%d" % (t2, t1, t2))
    p("v_lshl_add_u32 v%d, v%d, 4, s%d" % (vP, t2, sT))
    p(call("M_phi"))
    p("s_waitcnt vmcnt(0) lgkmcnt(0)\ns_barrier")
    p.add(publish(5))
    for w in range(4):
        for k in range(5):
            p("ds_read_b128 %s, v%d offset:%d" % (rr("v", Lr + w * 20 + 4 * k, 4), vP, w * 4096 + (k & 3) * 1024 + (k >> 2) * U))
    sKq, sMb, sCc, sGc, sGw, sGw2, sWs, sRs, sW5, sDl = range(37, 47)
    sPC, sPW, sXO, sOut = sBO, sW, sO, sW2
    vDw, vC, vWf = 3, 4, 8
    SZ = 36864
    p("s_lshr_b32 s%d, s%d, 1" % (sKq, sXcd))
    p("s_lshr_b32 s%d, s%d, 3" % (sCc, sIdx))
    p("s_sub_u32 s%d, 15, s%d" % (sT, sI))
    p("s_bitcmp1_b32 s%d, 0" % sXcd)
    p("s_cselect_b32 s%d, s%d, s%d" % (sMb, sT, sI))
    p("s_cselect_b32 s%d, 5, 4" % sT2)
    p("v_mov_b32 v%d, s%d" % (t0, sT2))
    p("v_cmp_gt_u32 vcc, 32, v%d" % vLane)
    p("s_lshl_b32 s%d, s%d, 6" % (sT, sKq))
    p("s_lshr_b32 s%d, s%d, 1" % (sT2, sCc))
    p("s_add_u32 s%d, s%d, s%d" % (sT, sT, sT2))
    p("v_cndmask_b32 v%d, v%d, 4, vcc" % (vPoll + 1, t0))
    p("v_lshl_add_u32 v%d, v%d, 1, s%d" % (t0, vLane, sT))
    p("s_and_b32 s%d, s2, 0x3e" % sT)
    p("v_bfe_u32 v%d, v%d, 1, 2" % (t1, vLane))
    p("v_lshl_add_u32 v%d, v%d, 6, s%d" % (t1, t1, sT))
    p("v_and_b32 v%d, 1, v%d" % (t2, vLane))
    p("v_add_u32 v%d, v%d, v%d" % (t1, t1, t2))
    p("v_cndmask_b32 v%d, v%d, v%d, vcc" % (vPoll, t1, t0))
    p("v_lshlrev_b32 v%d, 7, v%d" % (vPoll, vPoll))
    for e in range(20):
        p("v_add_f32 v%d, v%d, v%d" % (Lr + e, Lr + e, Lr + 20 + e))
        p("v_add_f32 v%d, v%d, v%d" % (Lr + 40 + e, Lr + 40 + e, Lr + 60 + e))
    for e in range(20):
        p("v_add_f32 v%d, v%d, v%d" % (SUM + e, Lr + e, Lr + 40 + e))
    for k in range(10):
        p("v_cvt_pk_bf16_f32 v%d, v%d, v%d" % (KA + k, SUM + 2 * k, SUM + 2 * k + 1))
    for r in (KA + 10, KA + 11, PH + 10, PH + 11):
        p("v_mov_b32 v%d, 0" % r)
    def num(N):
        for u in range(3):
            p("%s %s, %s, %s, %s" % (MF, rr("v", N, 16), rr("v", KA + 4 * u, 4), rr("v", PH + 4 * u, 4), rr("v", N, 16) if u else "0"))
    num(N)
    p("s_lshl_b32 s%d, s%d, 20" % (sT, sMb))
    p("s_lshl_b32 s%d, s%d, 18" % (sT2, sKq))
    p("s_add_u32 s%d, s%d, s%d" % (sT, sT, sT2))
    srd(p, sPC, ptr(D_WS), off_s=sT, off_imm=WS_CTX, nrec=32 * 8192)
    p("s_lshl_b32 s%d, s%d, 2" % (sT, sCc))
    p("s_add_u32 s%d, s%d, s%d" % (sT, sT, sKq))
    p("s_mul_i32 s%d, s%d, %d" % (sT, sT, 32 * 10240))
    srd(p, sPW, ptr(D_WS), off_s=sT, off_imm=WS_WOA, nrec=32 * 10240)
    p("s_mul_i32 s%d, s%d, 5120" % (sW5, sWave))
    p("v_add_u32 v%d, s%d, v%d" % (vDw, sW5, vL16))
    p("s_add_u32 s%d, s%d, 0x4000" % (sW5, sW5))
    p.add(poll_load("A"))
    p(call("M_phi"))
    num(N + 32)
    p("s_mov_b32 s%d, 0\ns_mov_b32 s%d, 0\ns_movk_i32 s%d, 0x1000\ns_mov_b32 s%d, 0\ns_mov_b32 s%d, 0" % (sGc, sGw, sGw2, sWs, sRs))
    sIc, sIw = sKo, sL2
    p("s_movk_i32 s%d, 0x4000\ns_movk_i32 s%d, 0x5000" % (sIc, sIw))
    p.add(poll_check("A"))
    p("s_barrier")
    st_()
    dC = [["s_add_u32 m0, s%d, s%d" % (sWs, sW4)]] + \
         ["buffer_load_dwordx4 v%d, s[%d:%d], s%d offen offset:%d %s lds" % (vDma, sPC, sPC + 3, sGc, k * 1024, WT) for k in range(4)]
    dW = [["s_add_u32 m0, s%d, s%d" % (sWs, sW5)]] + \
         ["buffer_load_dwordx4 v%d, s[%d:%d], s%d offen offset:%d %s lds" % (vDw, sPW, sPW + 3, sGw, k * 1024, WT) for k in range(4)] + \
         [["s_add_u32 m0, m0, 0x1000"], "buffer_load_dwordx4 v%d, s[%d:%d], s%d offen %s lds" % (vDw, sPW, sPW + 3, sGw2, WT)]
    dAdv = ["s_add_u32 s%d, s%d, s%d" % (sGc, sGc, sIc), "s_add_u32 s%d, s%d, s%d" % (sGw, sGw, sIw), "s_add_u32 s%d, s%d, s%d" % (sGw2, sGw2, sIw),
            "s_add_u32 s%d, s%d, %d" % (sWs, sWs, SZ), "s_cmp_eq_u32 s%d, %d" % (sWs, 4 * SZ), "s_cselect_b32 s%d, 0, s%d" % (sWs, sWs)]
    p("s_mov_b32 s%d, 2\nM_p3pre:" % sSpin)
    p.add(dC + dW + dAdv)
    p("s_sub_u32 s%d, s%d, 1\ns_cbranch_scc0 M_p3pre" % (sSpin, sSpin))
    p("s_lshr_b32 s%d, s%d, 1" % (sT, sTT))
    p("s_mul_i32 s%d, s%d, 81920" % (sT, sT))
    srd(p, sY, ptr(D_WS), off_s=sT, off_imm=WS_OB, nrec=81920)
    p("s_mul_i32 s%d, s%d, 20" % (sT, sIdx))
    vO = vA
    p("v_and_b32 v%d, 15, v%d" % (t0, vLane))
    p("v_lshlrev_b32 v%d, 4, v%d" % (t0, t0))
    p("v_bfe_u32 v%d, v%d, 4, 1" % (t2, vLane))
    p("v_lshl_add_u32 v%d, v%d, 10, v%d" % (t0, t2, t0))
    p("v_lshrrev_b32 v%d, 5, v%d" % (t1, vLane))
    p("v_lshl_add_u32 v%d, v%d, 2, s%d" % (t1, t1, sT))
    for jj in range(3):
        if jj:
            p("v_add_u32 v%d, 8, v%d" % (t1, t1))
        p("v_lshrrev_b32 v%d, 5, v%d" % (t2, t1))
        p("v_lshl_add_u32 v%d, v%d, 12, v%d" % (vO + jj, t2, t0))
        p("v_bfe_u32 v%d, v%d, 3, 2" % (t2, t1))
        p("v_lshl_add_u32 v%d, v%d, 8, v%d" % (vO + jj, t2, vO + jj))
        p("v_and_b32 v%d, 7, v%d" % (t2, t1))
        p("v_lshl_add_u32 v%d, v%d, 1, v%d" % (vO + jj, t2, vO + jj))
    p("v_bfrev_b32 v%d, 1" % t1)
    p("v_cmp_gt_u32 vcc, 32, v%d" % vLane)
    p("v_cndmask_b32 v%d, v%d, v%d, vcc" % (vO + 2, t1, vO + 2))
    for tt in range(2):
        n0 = N + 32 * tt
        p("v_add_f32 v%d, 0x%x, v%d" % (n0 + 12, f2u(1e-6), n0 + 12))
        p("v_rcp_f32 v%d, v%d" % (n0 + 12, n0 + 12))
        for k in range(12):
            p("v_mul_f32 v%d, v%d, v%d" % (n0 + k, n0 + k, n0 + 12))
        for k in range(6):
            p("v_cvt_pk_bf16_f32 v%d, v%d, v%d" % (n0 + 16 + k, n0 + 2 * k, n0 + 2 * k + 1))
        for jj in range(3):
            p("buffer_store_dwordx2 %s, v%d, s[%d:%d], 0 offen offset:%d %s" % (rr("v", n0 + 16 + 2 * jj, 2), vO + jj, sY, sY + 3, tt * 2048, WT))
    MF16 = "v_mfma_f32_16x16x32_bf16"
    PA = 160
    pacc = lambda q, n: PA + (q * 5 + n) * 4
    pfr = lambda st, i: st * 36 + i * 4
    aOB = 80
    p("s_lshr_b32 s%d, s%d, 1" % (sT, sWave))
    p("s_lshl_b32 s%d, s%d, 2" % (sT, sT))
    p("s_add_u32 s%d, s%d, s%d" % (sT, sT, sKq))
    p("s_lshl_b32 s%d, s%d, 10" % (sT, sT))
    p("v_add_u32 v%d, s%d, v%d" % (vC, sT, vL16))
    for qq in range(1, 4):
        p("v_xor_b32 v%d, 0x%x, v%d" % (vC + qq, qq << 10, vC))
    p("s_and_b32 s%d, s%d, 1" % (sT, sWave))
    p("s_mul_i32 s%d, s%d, 5120" % (sT, sT))
    p("s_add_u32 s%d, s%d, 0x4000" % (sT, sT))
    p("v_add_u32 v%d, s%d, v%d" % (vWf, sT, vL16))
    for k in range(80):
        p("v_mov_b32 v%d, 0" % (PA + k))
    def p_reads(st):
        c = ["ds_read_b128 %s, v%d offset:%d" % (rr("a", pfr(st, qq), 4), vC + qq, st * 8192) for qq in range(4)]
        w = ["ds_read_b128 %s, v%d offset:%d" % (rr("a", pfr(st, 4 + n), 4), vWf, st * 10240 + n * 1024) for n in range(5)]
        return [w[0]] + c + w[1:]
    p_mf = lambda st: ["%s %s, %s, %s, %s" % (MF16, rr("v", pacc(qq, n), 4), rr("a", pfr(st, 4 + n), 4), rr("a", pfr(st, qq), 4), rr("v", pacc(qq, n), 4)) for n in range(5) for qq in range(4)]
    G = Gaps(40)
    G.spread(p_reads(1), 0, 12)
    G.put(19, ["s_waitcnt vmcnt(13) lgkmcnt(0)", "s_barrier"])
    G.put(13, ["s_add_u32 s%d, s%d, 1" % (sRs, sRs), "s_and_b32 s%d, s%d, 3" % (sRs, sRs)])
    G.put(14, ["s_mov_b32 s%d, %d" % (sDl, SZ), "s_cselect_b32 s%d, s%d, 0x%x" % (sDl, sDl, u32(-3 * SZ))])
    G.spread(["v_add_u32 v%d, s%d, v%d" % (r, sDl, r) for r in (vWf, vC, vC + 1, vC + 2, vC + 3)], 15, 18)
    G.spread(p_reads(0), 20, 32)
    for k, x in enumerate(dC):
        G.put(max(0, 4 * k - 1) + (1 if k == 0 else 0), x)
    for k, x in zip((20, 21, 25, 29, 33, 36, 37), dW):
        G.put(k, x)
    G.put(38, dAdv[:3]); G.put(39, dAdv[3:] + [WL])
    tail.extend(["M_p3:"] + G.emit(p_mf(0) + p_mf(1)) + [ret])
    p("s_waitcnt vmcnt(24)\ns_barrier")
    st_()
    p.add(p_reads(0))
    p(WL)
    for s in range(16):
        if s == 3:
            p.add(publish(6))
        if s == 9:
            p("s_lshr_b32 s%d, s%d, 4" % (sT, sIdx))
            p("v_min_u32 v%d, 19, v%d" % (t0, vLane))
            p("v_lshl_add_u32 v%d, v%d, 1, s%d" % (t0, t0, sT))
            p("v_lshrrev_b32 v%d, 3, v%d" % (t1, t0))
            p("v_lshlrev_b32 v%d, 6, v%d" % (t1, t1))
            p("v_and_b32 v%d, 7, v%d" % (t2, t0))
            p("v_add3_u32 v%d, v%d, v%d, 56" % (t1, t1, t2))
            p("v_add_u32 v%d, 16, v%d" % (t2, t0))
            p("v_cmp_gt_u32 vcc, 32, v%d" % t0)
            p("v_cndmask_b32 v%d, v%d, v%d, vcc" % (t0, t2, t1))
            p("v_and_b32 v%d, 31, v%d" % (t1, vLane))
            p("v_lshl_add_u32 v%d, v%d, 3, s%d" % (t1, t1, sXcd))
            p("v_cmp_gt_u32 vcc, 32, v%d" % vLane)
            p("v_cndmask_b32 v%d, v%d, v%d, vcc" % (vPoll, t1, t0))
            p("v_lshlrev_b32 v%d, 7, v%d" % (vPoll, vPoll))
            p("v_cndmask_b32 v%d, 6, 5, vcc" % (vPoll + 1))
            p.add(poll_load("B"))
        if s == 13:
            p.add(poll_check("B"))
            p("s_lshr_b32 s%d, s%d, 2" % (sT, sIdx))
            p("s_mul_i32 s%d, s%d, 102400" % (sT, sT))
            srd(p, sPC, ptr(D_WS), off_s=sT, off_imm=WS_WOB, nrec=102400)
            p("s_mov_b64 s[%d:%d], s[%d:%d]\ns_mov_b32 s%d, s%d" % (sPW, sPW + 1, sPC, sPC + 1, sPW + 2, sPC + 2))
            p("s_mov_b32 s%d, 0\ns_movk_i32 s%d, 0x4000\ns_movk_i32 s%d, 0x5000\ns_mov_b32 s%d, %d\ns_mov_b32 s%d, %d" % (sGc, sGw, sGw2, sIc, SZ, sIw, SZ))
            p("s_lshl_b32 s%d, s%d, 2" % (sTT, sXcd))
            p("s_and_b32 s%d, s%d, 3" % (sT, sIdx))
            p("s_add_u32 s%d, s%d, s%d" % (sTT, sTT, sT))
            p("s_mul_i32 s%d, s%d, 81920" % (sT, sTT))
            srd(p, sY, ptr(D_WS), off_s=sT, off_imm=WS_OB, nrec=81920)
        if s >= 13:
            ks0 = (s - 13) * 7
            p("s_lshl_b32 s%d, s%d, 10" % (sT, sWave))
            if ks0:
                p("s_add_u32 s%d, s%d, %d" % (sT, sT, ks0 * 4096))
            for ks in range(ks0, min(ks0 + 7, 20)):
                p("buffer_load_dwordx4 %s, v%d, s[%d:%d], s%d offen %s" % (rr("a", aOB + 4 * ks, 4), vL16, sY, sY + 3, sT, WT))
                p("s_addk_i32 s%d, 0x1000" % sT)
        p(call("M_p3"))
    st_()
    p("s_and_b32 s%d, s%d, 1" % (sT, sXcd))
    p("s_lshl_b32 s%d, s%d, 5" % (sT, sT))
    p("s_add_u32 s%d, s%d, s%d" % (sT, sT, sIdx))
    p("s_mul_i32 s%d, s%d, %d" % (sT, sT, 16 * 20480))
    srd(p, sXO, ptr(D_WS), off_s=sT, off_imm=WS_XB, nrec=16 * 20480)
    p("v_add_u32 v%d, 0x1000, v%d" % (vC, vDw))
    for qq in range(1, 4):
        p("s_xor_b32 s%d, s%d, %d" % (sT, sKq, qq))
        p("s_lshl_b32 s%d, s%d, 2" % (sT, sT))
        p("s_add_u32 s%d, s%d, s%d" % (sT, sT, sKq))
        p("s_mul_i32 s%d, s%d, 20480" % (sT, sT))
        for n in range(5):
            p("buffer_store_dwordx4 %s, v%d, s[%d:%d], s%d offen offset:%d %s" % (rr("v", pacc(qq, n), 4), vC if n == 4 else vDw, sXO, sXO + 3, sT, (n & 3) * 1024, WT))
    BA = 32
    p("v_add_u32 v%d, %d, v%d" % (vWf, 10 * 5120, vL16))
    p("s_waitcnt vmcnt(15)\ns_barrier")
    bfr = lambda k: (k % 15) * 4
    brd = lambda k: "ds_read_b128 %s, v%d offset:%d" % (rr("a", bfr(k), 4), vWf if k >= 50 else vL16, (k % 50) * 1024)
    for k in range(10):
        p(brd(k))
    for k in range(100):
        ks, n = divmod(k, 5)
        a = rr("v", BA + 4 * n, 4)
        if n == 0:
            p.add([I("need", xrd=[("a", bfr(k + 4) + e) for e in range(4)])])
        p("%s %s, %s, %s, %s" % (MF16, a, rr("a", bfr(k), 4), rr("a", aOB + 4 * ks, 4), a if ks else "0"))
        if k + 10 < 100:
            p(brd(k + 10))
        if k == 60:
            p("s_waitcnt vmcnt(0)\ns_barrier")
            p.add(publish(7))
    st_()
    srd(p, sOut, ptr(D_OUT), nrec=2048 * 2560)
    p("v_and_b32 v%d, 15, v%d" % (t0, vLane))
    p("v_mul_u32_u24 v%d, 2560, v%d" % (vWf, t0))
    p("v_lshrrev_b32 v%d, 4, v%d" % (t0, vLane))
    p("v_lshl_add_u32 v%d, v%d, 3, v%d" % (vWf, t0, vWf))
    p("s_andn2_b32 s%d, s2, 6" % sT)
    p("v_and_b32 v%d, 3, v%d" % (t0, vLane))
    p("v_lshl_add_u32 v%d, v%d, 1, s%d" % (vPoll, t0, sT))
    p("v_lshlrev_b32 v%d, 7, v%d" % (vPoll, vPoll))
    p.add(poll_load(7))
    p("s_lshl_b32 s%d, s%d, 2" % (sT, sTT))
    p("s_add_u32 s%d, s%d, s%d" % (sT, sT, sWave))
    p("s_mul_i32 s%d, s%d, %d" % (sT, sT, 16 * 2560))
    p("s_lshr_b32 s%d, s%d, 2" % (sT2, sIdx))
    p("s_mul_i32 s%d, s%d, 160" % (sT2, sT2))
    p("s_add_u32 s%d, s%d, s%d" % (sOff, sT, sT2))
    for n in range(5):
        b = BA + 4 * n
        p("v_cvt_pk_bf16_f32 v%d, v%d, v%d" % (b, b, b + 1))
        p("v_cvt_pk_bf16_f32 v%d, v%d, v%d" % (b + 1, b + 2, b + 3))
        p("buffer_store_dwordx2 %s, v%d, s[%d:%d], s%d offen offset:%d" % (rr("v", b, 2), vWf, sOut, sOut + 3, sOff, 1280 + n * 32))
    p.add(poll_check(7))
    for qq in range(1, 4):
        p("s_xor_b32 s%d, s%d, %d" % (sT, sKq, qq))
        p("s_lshl_b32 s%d, s%d, 2" % (sT2, sKq))
        p("s_add_u32 s%d, s%d, s%d" % (sT, sT, sT2))
        p("s_mul_i32 s%d, s%d, 20480" % (sT, sT))
        for n in range(5):
            p("buffer_load_dwordx4 %s, v%d, s[%d:%d], s%d offen offset:%d %s" % (rr("v", pacc(qq, n), 4), vC if n == 4 else vDw, sXO, sXO + 3, sT, (n & 3) * 1024, WT))
    p("s_lshl_b32 s%d, s%d, 3" % (sT, sMb))
    p("s_lshr_b32 s%d, s%d, 1" % (sT2, sWave))
    p("s_lshl_b32 s%d, s%d, 2" % (sT2, sT2))
    p("s_add_u32 s%d, s%d, s%d" % (sT, sT, sT2))
    p("s_add_u32 s%d, s%d, s%d" % (sT, sT, sKq))
    p("s_mul_i32 s%d, s%d, %d" % (sT, sT, 16 * 2560))
    p("s_lshl_b32 s%d, s%d, 1" % (sT2, sCc))
    p("s_and_b32 s%d, s%d, 1" % (sOff, sWave))
    p("s_add_u32 s%d, s%d, s%d" % (sT2, sT2, sOff))
    p("s_mul_i32 s%d, s%d, 160" % (sT2, sT2))
    p("s_add_u32 s%d, s%d, s%d" % (sOff, sT, sT2))
    for qq in range(1, 4):
        for k in range(20):
            p("v_add_f32 v%d, v%d, v%d" % (PA + k, PA + k, PA + qq * 20 + k))
    for n in range(5):
        b = pacc(0, n)
        p("v_cvt_pk_bf16_f32 v%d, v%d, v%d" % (b, b, b + 1))
        p("v_cvt_pk_bf16_f32 v%d, v%d, v%d" % (b + 1, b + 2, b + 3))
        p("buffer_store_dwordx2 %s, v%d, s[%d:%d], s%d offen offset:%d" % (rr("v", b, 2), vWf, sOut, sOut + 3, sOff, n * 32))
    st_()
    st_.dump(vtmp=t0)
    p("M_exit:\ns_endpgm")
    p.add(tail)
    p("M_event:")
    p("s_cmp_ge_u32 s%d, s%d\ns_cbranch_scc1 M_ev_hi" % (sStep, sHiTri))
    for tl, tri, nxt in ((1, sLoTri, "s%d" % sHiTri), (0, sHiTri, "-1")):
        if tl == 0:
            p("M_ev_hi:")
        p("s_cmp_eq_u32 s%d, s%d\ns_cbranch_scc0 M_ev_full%d" % (sStep, tri, tl))
        for r in range(16):
            p("v_cmp_gt_i32 vcc, %d, v%d" % (8 * (r >> 2) + (r & 3), vLim))
            p("v_cndmask_b32 v%d, v%d, v%d, vcc" % (CI(tl) + r, CI(tl) + r, vNeg))
        p("s_add_u32 s%d, s%d, 1" % (sEvt, sEvt))
        p(WL + "\n" + ret)
        p("M_ev_full%d:" % tl)
        for r in range(16):
            p("v_mov_b32 v%d, v%d" % (CI(tl) + r, vNeg))
        p("s_mov_b32 s%d, %s" % (sEvt, nxt))
        p(WL + "\n" + ret)
    for par in range(2):
        for tl in range(2):
            p("M_slow%d%d:" % (par, tl))
            p("s_nop 15")
            p.add(rowmax(par, tl, vU + 2, vU + 3))
            p("v_add_f32 v%d, 0x%x, v%d" % (vU + 2, f2u(BIAS), vU + 2))
            p("v_max_f32 v%d, 0, v%d" % (vU + 2, vU + 2))
            p("v_exp_f32 v%d, -v%d" % (vU + 3, vU + 2))
            for k in range(16):
                for b in (S(par, tl), S(par ^ 1, tl), CI(tl)):
                    p("v_sub_f32 v%d, v%d, v%d" % (b + k, b + k, vU + 2))
            p("v_mul_f32 v%d, v%d, v%d" % (vL + tl, vL + tl, vU + 3))
            for k in range(0, 64, 8):
                for e in range(8):
                    p("v_accvgpr_read_b32 v%d, a%d" % (TMP + 8 + e, O(tl, 0) + k + e))
                for e in range(8):
                    p("v_mul_f32 v%d, v%d, v%d" % (TMP + 8 + e, TMP + 8 + e, vU + 3))
                for e in range(8):
                    p("v_accvgpr_write_b32 a%d, v%d" % (O(tl, 0) + k + e, TMP + 8 + e))
            p.add(sm_stream(par, (tl,), 0))
            p.add(sm_stream(par, (tl,), 1))
            p("s_nop 1")
            p(WL + "\n" + ret)
    if os.environ.get("NOST"):
        p.ins = [I("buffer_load_dword v%d, off, s[%d:%d], 0" % (vA + 1, sD, sD + 3)) if (i.mn == "buffer_store_dwordx4" and ("s[16:19]" in i.text or "s[24:27]" in i.text)) else i for i in p.ins]
    if os.environ.get("NOATOM"):
        p.ins = [i for i in p.ins if not (i.mn.startswith("buffer_atomic") or (i.kind == "branch" and i.target.startswith("M_poll") and "_" not in i.target[7:]))]
    p.finish()
    return p
```

```python
import sys
from asmlib import *
HDR = open("concat_heads__compressed_kv_cla__linear_kernel_hedgehog__prompt.s.ref").read().split("; Override")[0]
DOC = """; Generated by the author's own scripts (hand-scheduled instruction streams).
"""
def emit(path, ks):
    hdr = HDR; body = ""; desc = ""
    for name, prog, grid, block, lds in ks:
        b, d = kernel_text(name, prog)
        hdr += "; @launch kernel=%s grid=(%d,1,1) block=(%d,1,1) lds=%d\n" % (name, grid, block, lds)
        body += b; desc += d
    hdr += DOC
    open(path, "w").write(hdr + ".amdgcn_target \"amdgcn-amd-amdhsa--gfx950\"\n" + body + desc)
if __name__ == "__main__":
    import k_main18 as k_main
    ks = [("main_kernel", k_main.build_main(), 256, 256, 163840)]
    emit(sys.argv[1], ks)
```

```python
from asmlib import *
from layout import *
from k_p1 import srd, x_rd_addr, w_rd_addr, MF
import os, struct

def f2u(x):
    return struct.unpack("<I", struct.pack("<f", x))[0]

NEG = 0xF149F2CA
THRESH = int(os.environ.get("THRESH", "0x5F800000"), 0)
BIAS = float(os.environ.get("BIAS", "40"))
QSCALE = f2u((128 ** -0.5) * 1.4426950408889634)
LOG2E = f2u(1.4426950408889634)
WT = os.environ.get("WT", "sc1")
PREFETCH = int(os.environ.get("PREFETCH", "2"))
NTW = os.environ.get("NTW", "nt")
WE = int(os.environ.get("WE", "15"))
WBL2 = int(os.environ.get("WBL2", "0"))
VERB = int(os.environ.get("VERB", "0"))
U = 16384
u32 = lambda x: x & 0xffffffff

def L(f, *a, **k):
    q = Prog()
    f(q, *a, **k)
    return q.ins

def build_main():
    p = Prog()
    sX, sW, sW2, sO, sD, sBO = 4, 8, 12, 16, 20, 24
    sBF, sPhi, sY, sC, sKV = sW2, sO, sX, sW, sBO
    sH, sI, sWave, sW4, sT, sT2, sOff, sXcd, sIdx, sTB, sCB, sHi, sLo = range(28, 41)
    sM, sS, sKo, sRet, sTT, sL2, sSpin, sBo = 41, 44, 47, 48, 50, 51, 52, 53
    sRd, sWr, sG, sStep, sP2, sLoTri, sHiTri, sThr, sCnt, sCb = range(37, 47)
    sMask = 54
    P = 56
    ptr = lambda off: P + off // 4
    vLane = 1
    vX, vW, vXr, vWr = 2, 6, 10, 18
    vL16, t0, t1, t2, vDum, vStamp, vA = 22, 23, 24, 25, 26, 27, 28
    vGo = vA + 1
    vPoll, vKV = 20, 19
    vDma, vLim, vNeg, vCt, vB, vL, vLt, vU = 2, 3, 4, 5, 6, 8, 10, 12
    RA, RB, RC, RD = 32, 96, 160, 224
    TMP, AW = 224, 240
    S = lambda par, tl: 32 + par * 32 + tl * 16
    CI = lambda tl: 96 + tl * 16
    PP = lambda par, tl: 128 + par * 16 + tl * 8
    Q = lambda tl, ds: 160 + tl * 32 + ds * 4
    O = lambda tl, a: tl * 64 + a * 16
    FB = lambda j: 128 + j * 4
    aXF, aVF, aRAW, aPA, aPK = 192, 208, 224, 208, 32
    tail = []
    ret = "s_setpc_b64 s[%d:%d]" % (sRet, sRet + 1)
    call = lambda lab: "s_call_b64 s[%d:%d], %s" % (sRet, sRet + 1, lab)

    def x_voffs(pitch, wsh=5):
        return ["v_lshrrev_b32 v%d, 3, v%d" % (t0, vLane),
                "s_lshl_b32 s%d, s%d, %d" % (sT, sWave, wsh),
                "v_add_u32 v%d, s%d, v%d" % (t0, sT, t0),
                "v_mul_u32_u24 v%d, %d, v%d" % (t0, pitch, t0),
                "v_lshrrev_b32 v%d, 4, v%d" % (t1, vLane),
                "v_and_b32 v%d, 7, v%d" % (t2, vLane),
                "v_xor_b32 v%d, v%d, v%d" % (t2, t2, t1),
                "v_lshl_add_u32 v%d, v%d, 4, v%d" % (vX, t2, t0),
                "v_xor_b32 v%d, 4, v%d" % (t2, t2),
                "v_lshl_add_u32 v%d, v%d, 4, v%d" % (vX + 1, t2, t0),
                "v_add_u32 v%d, %d, v%d" % (vX + 1, 8 * pitch - 1024, vX + 1),
                "v_add_u32 v%d, %d, v%d" % (vX + 2, 2 * (8 * pitch - 1024), vX),
                "v_add_u32 v%d, %d, v%d" % (vX + 3, 2 * (8 * pitch - 1024), vX + 1)]
    def w_voffs(pitch):
        return ["v_lshrrev_b32 v%d, 4, v%d" % (t0, vLane),
                "v_lshlrev_b32 v%d, 2, v%d" % (t1, t0),
                "s_lshl_b32 s%d, s%d, 4" % (sT, sWave),
                "v_add_u32 v%d, s%d, v%d" % (t0, sT, t0),
                "v_mul_u32_u24 v%d, %d, v%d" % (t0, pitch, t0),
                "v_and_b32 v%d, 15, v%d" % (t2, vLane),
                "v_xor_b32 v%d, v%d, v%d" % (t2, t2, t1),
                "v_lshl_add_u32 v%d, v%d, 4, v%d" % (vW, t2, t0)] + \
               ["v_add_u32 v%d, %d, v%d" % (vW + k, k * (4 * pitch - 1024), vW) for k in range(1, 4)]
    def dma(i, srdn, fl=""):
        v = vX if srdn == sX else vW
        return [["s_mov_b32 m0, s%d" % (sM + i)]] + \
               ["buffer_load_dwordx4 v%d, s[%d:%d], s%d offen offset:%d %s lds" % (v + q, srdn, srdn + 3, sS + i, q * 1024, fl) for q in range(4)]
    def put_dma(G, i, srdn, lo, hi, fl=""):
        d = dma(i, srdn, fl)
        G.put(lo, d[0])
        G.spread(d[1:], lo + 1, hi)
    def w_srd(q, d, which, col_s, total):
        q("s_lshl_b32 s%d, s%d, 8" % (sT, col_s))
        srd(q, d, ptr(which), off_s=sT)
        q("s_sub_u32 s%d, %d, s%d" % (d + 2, total, sT))
    def sw_XB(q):
        q("s_mul_i32 s%d, s%d, %d" % (sT, sTB, 128 * 1280))
        srd(q, sX, ptr(B_X), off_s=sT)
        q("s_cmp_lt_u32 s2, 240\ns_cselect_b32 s%d, %d, 0" % (sX + 2, 128 * 1280))
        q.add(x_voffs(1280))
    def sw_WB(q):
        w_srd(q, sW, B_WQKV, sCB, 640 * 3840)
        q("s_cmp_lt_u32 s2, 240\ns_cselect_b32 s%d, s%d, 0" % (sW + 2, sW + 2))
        q("s_mov_b64 s[%d:%d], s[%d:%d]\ns_mov_b32 s%d, s%d" % (sW2, sW2 + 1, sW, sW + 1, sW2 + 2, sW + 2))
        q.add(w_voffs(3840))
    def sw_XQ(q):
        srd(q, sX, ptr(A_X), nrec=2048 * 1280)
    def sw_WQ(q):
        w_srd(q, sW, A_WQ, sH, 640 * 8192)
        q.add(w_voffs(8192))

    class Plan:
        def __init__(s):
            s.vm, s.unit, s.free, s.when, s.now = [], {}, [], {}, 0
            s.pend = {"X": [], "W": []}
            s.job = {"X": "KV", "W": "KV"}
            for st in range(8):
                for g in range(2):
                    s.pend["X"].append((("KX", st, g), "KV", st, str(g * 256 * 1024 + st * 128), ((2 * st) % 5) * 2 + g))
                    s.pend["W"].append((("KW", st, g), "KV", st, str(st * 64 * 8192), ((2 * st + 1) % 5) * 2 + g))
            for b in range(10):
                s.pend["X"].append((("BX", b), "B", 8 + b, str(b * 128), None))
                s.pend["W"].append((("BW", b), "B", 8 + b, str(b * 64 * 3840), None))
            for st in range(10):
                s.pend["X"].append((("QX", st, 0), "Q", 18 + st, (sHi, st * 128), None))
                s.pend["X"].append((("QX", st, 1), "Q", 18 + st, (sLo, st * 128), None))
                s.pend["W"].append((("QW", st), "Q", 18 + st, str(st * 64 * 8192), None))
            s.free = list(range(10))
        def copy(s):
            import copy
            return copy.deepcopy(s)
        def take(s, ty, i):
            oth = "W" if ty == "X" else "X"
            pre = []
            c = s.pend[ty][0] if s.pend[ty] else None
            if c is not None:
                if c[4] is not None:
                    ok = c[4] in s.free
                else:
                    resv = {g[4] for t in "XW" for g in s.pend[t] if g[4] is not None}
                    av = [x for x in s.free if x not in resv]
                    ok = len(av) - 1 >= sum(1 for g in s.pend[oth] if g[2] < c[2] and g[4] is None)
                if not ok:
                    c = None
            if c is None:
                return ["s_mov_b32 s%d, 0x30000" % (sM + i), "s_brev_b32 s%d, 1" % (sS + i)], None
            s.pend[ty].pop(0)
            un = c[4] if c[4] is not None else av[0]
            s.free.remove(un)
            s.unit[c[0]] = un
            s.when[c[0]] = s.now
            if c[1] != s.job[ty]:
                s.job[ty] = c[1]
                pre += L({"XB": sw_XB, "WB": sw_WB, "XQ": sw_XQ, "WQ": sw_WQ}[ty + c[1]])
            pre.append("s_add_u32 s%d, s%d, 0x%x" % (sM + i, sW4, un * U))
            if isinstance(c[3], tuple):
                pre.append("s_add_u32 s%d, s%d, %d" % (sS + i, c[3][0], c[3][1]))
            else:
                pre.append("s_mov_b32 s%d, %s" % (sS + i, c[3]))
            return pre, c[0]
        def issue(s, tag, n=4):
            s.vm += [tag] * n
        def hook(s, ins, tag="h"):
            for t in ins:
                i = t if isinstance(t, I) else I(t)
                if i.cnt == "vm":
                    s.vm.append(tag)
        def barrier(s, need, free, dt):
            last = max(max(k for k, t in enumerate(s.vm) if t == n) for n in need) if need else -1
            N = len(s.vm) - 1 - last
            if VERB:
                print("barrier need", need, "N", N, "flight", [s.now - s.when[n] for n in need if n in s.when])
            for f in free:
                s.free.append(s.unit[f])
            s.now += dt
            s.done = last
            return ["s_waitcnt %slgkmcnt(0)" % ("vmcnt(%d) " % min(N, 63) if need else ""), "s_barrier"]
        def complete(s, tag):
            return max(k for k, t in enumerate(s.vm) if t == tag) <= s.done
    pl = Plan()

    def pf_lin(which, total, k):
        share = total // 32
        return ["s_mul_i32 s%d, s%d, %d" % (sT, sIdx, share), "s_lshl_b32 s%d, s%d, 13" % (sT2, sWave), "s_add_u32 s%d, s%d, s%d" % (sT, sT, sT2),
                "s_add_u32 s%d, s%d, %d" % (sT, sT, k * 32768),
                "v_lshl_add_u32 v%d, v%d, 7, s%d" % (t0, vLane, sT), "v_min_u32 v%d, %d, v%d" % (t0, total - 128, t0),
                "global_load_dword v%d, v%d, s[%d:%d]" % (vDum, t0, ptr(which), ptr(which) + 1)]
    def pf_w(which, rows):
        share = rows // 32
        return ["s_mul_i32 s%d, s%d, %d" % (sT, sIdx, share), "s_lshl_b32 s%d, s%d, 3" % (sT2, sWave), "s_add_u32 s%d, s%d, s%d" % (sT, sT, sT2),
                "v_lshrrev_b32 v%d, 3, v%d" % (t0, vLane), "v_add_u32 v%d, s%d, v%d" % (t0, sT, t0), "v_min_u32 v%d, %d, v%d" % (t0, rows - 1, t0),
                "v_lshlrev_b32 v%d, 13, v%d" % (t0, t0), "v_and_b32 v%d, 7, v%d" % (t1, vLane), "v_lshl_add_u32 v%d, v%d, 7, v%d" % (t0, t1, t0),
                "s_lshl_b32 s%d, s%d, 10" % (sT, sXcd), "v_add_u32 v%d, s%d, v%d" % (t0, sT, t0),
                "global_load_dword v%d, v%d, s[%d:%d]" % (vDum, t0, ptr(which), ptr(which) + 1)]
    def pf_bx():
        return ["s_mul_i32 s%d, s%d, %d" % (sT, sXcd, 256 * 1280), "s_mul_i32 s%d, s%d, 10240" % (sT2, sIdx), "s_add_u32 s%d, s%d, s%d" % (sT, sT, sT2),
                "v_lshlrev_b32 v%d, 7, v0" % t0, "v_min_u32 v%d, %d, v%d" % (t0, 10240 - 128, t0), "v_add_u32 v%d, s%d, v%d" % (t0, sT, t0),
                "global_load_dword v%d, v%d, s[%d:%d]" % (vDum, t0, ptr(B_X), ptr(B_X) + 1)]

    def extra(ty, keep):
        if len(pl.free) <= keep:
            return []
        pre, tag = pl.take(ty, 2)
        if tag is None:
            return []
        pl.issue(tag)
        d = dma(2, sX if ty == "X" else sW)
        return pre + d[0] + d[1:]
    def skel(last_mf, bar, mf01, custom, target):
        if last_mf:
            p(last_mf)
        p.add(bar)
        h = (len(custom) + 1) // 2
        p.add([mf01[0]] + custom[:h] + [mf01[1]] + custom[h:] + [call(target)])
    def body(name, G, mf, entries=None):
        out = ["%s:" % name]
        for k in range(2, G.n - 1):
            if entries and k in entries:
                out.append("%s:" % entries[k])
            out += [mf[k]] + G.gap(k)
        assert not G.gap(0) and not G.gap(1) and not G.gap(G.n - 1)
        tail.extend(out + [ret])
    def pack_tile(src, dst):
        return ["v_cvt_pk_bf16_f32 v%d, v%d, v%d" % (dst + k, src + 2 * k, src + 2 * k + 1) for k in range(8)]
    def publish(val):
        lab = p.newlabel("M_pub")
        return ["s_cmp_lg_u32 s%d, 0" % sWave, "s_cbranch_scc1 %s" % lab] + (["buffer_wbl2 sc1", "s_waitcnt vmcnt(0)"] if (WBL2 and val == 2) else []) + [
                "s_lshl_b32 s%d, s2, 7" % sT, "v_mov_b32 v%d, %d" % (t0, val), "s_mov_b64 exec, 1",
                "buffer_store_dword v%d, off, s[%d:%d], s%d sc1" % (t0, sD, sD + 3, sT),
                "s_mov_b64 exec, -1", "%s:" % lab]
    def poll_load(kind):
        if kind == "go":
            return ["v_mov_b32 v%d, 0" % t0, "global_load_dword v%d, v%d, s[%d:%d] sc1" % (vGo, t0, ptr(D_DBG), ptr(D_DBG) + 1)]
        if kind == 2:
            r = ["v_min_u32 v%d, 29, v%d" % (t0, vLane), "v_lshlrev_b32 v%d, 10, v%d" % (t0, t0), "s_lshl_b32 s%d, s%d, 7" % (sT, sXcd)]
        elif kind in (1, "KV"):
            r = ["v_and_b32 v%d, 7, v%d" % (t0, vLane), "v_lshlrev_b32 v%d, 10, v%d" % (t0, t0), "s_andn2_b32 s%d, s2, 0x38" % sT, "s_lshl_b32 s%d, s%d, 7" % (sT, sT)]
        elif kind in ("A", "B", 7, 3):
            return ["buffer_load_dword v%d, v%d, s[%d:%d], 0 offen sc1" % (vDum, vPoll, sD, sD + 3)]
        else:
            r = ["v_and_b32 v%d, 7, v%d" % (t0, vLane), "v_lshlrev_b32 v%d, 7, v%d" % (t0, t0), "s_lshl_b32 s%d, s%d, 10" % (sT, sIdx)]
        return r + ["buffer_load_dword v%d, v%d, s[%d:%d], s%d offen sc1" % (vKV if kind == "KV" else vDum, t0, sD, sD + 3, sT)]
    def poll_check(kind):
        lab = p.newlabel("M_poll")
        chk = ["v_cmp_gt_u32 vcc, %s, v%d" % (("1", vGo) if kind == "go" else (("v%d" % (vPoll + 1), vDum) if kind in ("A", "B") else (str(kind), vDum)))]
        if kind == "KV":
            chk = ["v_cmp_gt_u32 vcc, 3, v%d" % vKV]
        tail.extend(["%s:" % lab, "s_mov_b32 s%d, 0x40000" % sSpin, "%s_l:" % lab, "s_sleep 1"] + poll_load(kind) + ["s_waitcnt vmcnt(0)"] + chk +
                    ["s_cbranch_vccz %s_r" % lab, "s_sub_u32 s%d, s%d, 1" % (sSpin, sSpin), "s_cbranch_scc0 %s_l" % lab, "s_branch %s_r" % lab])
        if kind in ("KV", 3):
            c = I(chk[0])
            c.rd = set()
            chk = ["s_waitcnt vmcnt(8)", c]
        return chk + ["s_cbranch_vccnz %s" % lab, "%s_r:" % lab]
    def pf(which, total, first, nlines):
        return ["s_lshl_b32 s%d, s2, 2" % sT, "s_add_u32 s%d, s%d, s%d" % (sT, sT, sWave), "s_mul_i32 s%d, s%d, %d" % (sT, sT, nlines),
                "s_add_u32 s%d, s%d, %d" % (sT, sT, first), "v_min_u32 v%d, %d, v%d" % (t0, nlines - 1, vLane), "v_add_u32 v%d, s%d, v%d" % (t0, sT, t0),
                "v_min_u32 v%d, %d, v%d" % (t0, total // 128 - 1, t0), "v_lshlrev_b32 v%d, 7, v%d" % (t0, t0),
                "global_load_dword v%d, v%d, s[%d:%d]" % (vDum, t0, ptr(which), ptr(which) + 1)]

    p("s_cmp_ge_u32 s2, 256\ns_cbranch_scc1 M_exit")
    p("s_load_dwordx16 s[%d:%d], s[0:1], 0" % (P, P + 15))
    p("s_load_dwordx8 s[%d:%d], s[0:1], 64" % (P + 16, P + 23))
    p("s_load_dwordx2 s[%d:%d], s[0:1], 96" % (P + 24, P + 25))
    st_ = Stamper(p, vStamp, kid=0)
    p("v_and_b32 v%d, 63, v0" % vLane)
    p("v_lshrrev_b32 v%d, 6, v0" % t0)
    p("v_readfirstlane_b32 s%d, v%d" % (sWave, t0))
    p("s_and_b32 s%d, s2, 7" % sXcd)
    p("s_lshr_b32 s%d, s2, 3" % sIdx)
    p("s_lshl_b32 s%d, s%d, 12" % (sW4, sWave))
    p("s_lshl_b32 s%d, s%d, 2" % (sH, sXcd))
    p("s_lshr_b32 s%d, s%d, 3" % (sT, sIdx))
    p("s_add_u32 s%d, s%d, s%d" % (sH, sH, sT))
    p("s_and_b32 s%d, s%d, 7" % (sI, sIdx))
    p.add(x_voffs(1024, 9))
    p.add(w_voffs(8192))
    p("s_waitcnt lgkmcnt(0)")
    st_()
    srd(p, sD, ptr(D_WS), off_imm=WS_FL, nrec=32768)
    p("s_cmp_lg_u32 s2, 255\ns_cbranch_scc1 M_nolead")
    p("v_lshlrev_b32 v%d, 7, v0\nv_mov_b32 v%d, 0" % (t0, t1))
    p("buffer_store_dword v%d, v%d, s[%d:%d], 0 offen sc1" % (t1, t0, sD, sD + 3))
    p("M_nolead:")
    p("s_lshl_b32 s%d, s%d, 15" % (sT, sI))
    srd(p, sX, ptr(A_CKV), off_s=sT)
    p("s_sub_u32 s%d, 0x200000, s%d" % (sX + 2, sT))
    w_srd(p, sW, A_WUK, sH, 512 * 8192)
    w_srd(p, sW2, A_WUV, sH, 512 * 8192)
    for ty in "XWXW":
        for g in range(2):
            pre, tag = pl.take(ty, 0)
            p.add(pre + dma(0, sX if ty == "X" else (sW, sW2)[g], "" if ty == "X" else NTW))
            pl.issue(tag)
    p("s_mul_i32 s%d, s%d, 800" % (sT, sIdx))
    srd(p, sPhi, ptr(B_WPHI), off_s=sT, nrec=800)
    b1, b2 = vA, vA + 1
    p("s_and_b32 s%d, s%d, 3" % (sT, sIdx))
    p("s_mul_i32 s%d, s%d, 160" % (sT, sT))
    p("v_lshrrev_b32 v%d, 5, v%d" % (t0, vLane))
    p("v_mul_u32_u24 v%d, 160, v%d" % (t0, t0))
    p("v_subrev_u32 v%d, s%d, v%d" % (t0, sT, t0))
    p("v_and_b32 v%d, 3, v%d" % (t1, vLane))
    p("v_lshl_add_u32 v%d, v%d, 1, v%d" % (t0, t1, t0))
    p("v_bfe_u32 v%d, v%d, 3, 2" % (t1, vLane))
    p("v_lshl_add_u32 v%d, v%d, 3, v%d" % (b1, t1, t0))
    p("v_add_u32 v%d, 32, v%d" % (b2, t0))
    p("v_bfrev_b32 v%d, 1" % t2)
    p("v_cmp_eq_u32 vcc, 0, v%d" % t1)
    p("v_cndmask_b32 v%d, v%d, v%d, vcc" % (b2, t2, b2))
    x_rd_addr(p, vXr, vLane, t0, t1)
    p("s_lshr_b32 s%d, s%d, 1" % (sT, sWave))
    p("s_lshl_b32 s%d, s%d, 14" % (sT, sT))
    for ks in range(4):
        p("v_add_u32 v%d, s%d, v%d" % (vXr + ks, sT, vXr + ks))
    p("s_lshl_b32 s%d, s%d, 3" % (sKo, sT))
    p("s_and_b32 s%d, s%d, 0x1000" % (sT, sW4))
    p("s_add_u32 s%d, s%d, s%d" % (sKo, sKo, sT))
    p("s_lshr_b32 s%d, s%d, 11" % (sT, sT))
    p("v_mov_b32 v%d, s%d" % (t2, sT))
    w_rd_addr(p, vWr, vLane, t0, t1, t2)
    p("v_add_u32 v%d, 0x%x, v%d" % (vWr, 2 * U, vWr))
    p("v_xor_b32 v%d, 64, v%d" % (vWr + 1, vWr))
    p("v_lshlrev_b32 v%d, 4, v%d" % (vL16, vLane))
    gath = []
    n = 0
    for tile in range(2):
        for u in range(2):
            for e in range(8):
                cw = 16 * u + 8 * (e >> 2) + (e & 3)
                t = (t0, t1, t2)[n % 3]
                gath += ["v_add_u32 v%d, %d, v%d" % (t, cw * 40, b2 if tile else b1),
                         "buffer_load_ushort a%d, v%d, s[%d:%d], 0 offen" % (aRAW + n, t, sPhi, sPhi + 3)]
                n += 1
    p("s_lshl_b32 s%d, s%d, 1" % (sTB, sXcd))
    p("s_cmp_ge_u32 s%d, 15" % sIdx)
    p("s_cselect_b32 s%d, 15, 0" % sT)
    p("s_addc_u32 s%d, s%d, 0" % (sTB, sTB))
    p("s_sub_u32 s%d, s%d, s%d" % (sCB, sIdx, sT))
    p("s_mul_i32 s%d, s%d, %d" % (sLo, sI, 128 * 1280))
    p("s_sub_u32 s%d, %d, s%d" % (sHi, 15 * 128 * 1280, sLo))

    fx = lambda st, i: 128 + st * 32 + i * 4
    fw = lambda st, i: 128 + st * 32 + 16 + i * 4
    def kvreg(mat, n):
        if mat == 0:
            return ("v", RB + 16 * n if n < 4 else RA + 16 * (n - 4))
        return ("v", RC + 16 * n) if n < 4 else (("v", RD + 16 * (n - 4)) if n < 6 else ("a", 16 * (n - 6)))
    def kv_reads(st, ks):
        X = ["ds_read_b128 %s, v%d offset:%d" % (rr("a", fx(st, i), 4), vXr + ks, i * 4096) for i in range(4)]
        W = [["ds_read_b64_tr_b16 %s, v%d offset:%d" % (rr("a", fw(st, i) + 2 * u, 2), vWr + (i & 1), (i >> 1) * U + ks * 4096 + u * 1024) for u in range(2)] for i in range(4)]
        return [X[0]] + W[0] + W[1] + X[1:] + W[2] + W[3]
    def kv_mf(st, zero=False):
        r = []
        for mat in range(2):
            for n in range(8):
                f, b0 = kvreg(mat, n)
                a = rr(f, b0, 16)
                X, W = rr("a", fx(st, n >> 1), 4), rr("a", fw(st, mat * 2 + (n & 1)), 4)
                A, B = (X, W) if mat else (W, X)
                r.append("%s %s, %s, %s, %s" % (MF, a, A, B, "0" if zero else a))
        return r
    WL = "s_waitcnt lgkmcnt(0)"
    mfA, mfB = kv_mf(1) + kv_mf(0), kv_mf(1) + kv_mf(0)
    G = Gaps(32)
    G.spread(kv_reads(0, 0), 2, 13); G.put(15, WL); G.spread(kv_reads(1, 1), 16, 27)
    put_dma(G, 0, sW, 2, WE, NTW); put_dma(G, 1, sW2, WE + 1, 2 * WE, NTW)
    body("M_kvA", G, mfA)
    G = Gaps(32)
    G.spread(kv_reads(0, 2), 2, 13); G.put(15, WL); G.spread(kv_reads(1, 3), 16, 27)
    put_dma(G, 0, sX, 2, 15); put_dma(G, 1, sX, 16, 30)
    body("M_kvB", G, mfB)
    KVs = lambda s: [("KX", s, 0), ("KX", s, 1), ("KW", s, 0), ("KW", s, 1)]
    st_()
    p.add(pl.barrier(KVs(0), [], 1536))
    st_()
    p.add(kv_reads(0, 0))
    p("s_cmp_lg_u32 s2, 255\ns_cbranch_scc1 M_nolead2\ns_cmp_lg_u32 s%d, 0\ns_cbranch_scc1 M_nolead2" % sWave)
    p("v_mov_b32 v%d, 0\nv_mov_b32 v%d, 1\ns_mov_b64 exec, 1" % (t0, t1))
    p("global_store_dword v%d, v%d, s[%d:%d] sc1" % (t0, t1, ptr(D_DBG), ptr(D_DBG) + 1))
    p("s_mov_b64 exec, -1\nM_nolead2:")
    p(WL)
    G = Gaps(16)
    G.spread(kv_reads(1, 1), 0, 11)
    for k in range(32):
        G.put(k // 3 + 3, gath[2 * k:2 * k + 2], post=True)
    pl.hook(gath)
    z = kv_mf(0, zero=True)
    p.add(G.emit(z, 0, 15))
    last = z[15]
    if PREFETCH == 1:
        hooks = [gath[40:], pf_lin(B_WQKV, 640 * 3840, 0) + pf_bx(), pf_lin(B_WQKV, 640 * 3840, 1), pf_lin(B_WQKV, 640 * 3840, 2),
                 pf_w(A_WQ, 640), pf_lin(A_X, 2048 * 1280, 0), pf_lin(A_X, 2048 * 1280, 1), pf_lin(A_X, 2048 * 1280, 2)]
    elif PREFETCH == 2:
        hooks = [gath[40:], pf(B_WQKV, 640 * 3840, 0, 19), pf(B_X, 2048 * 1280, 0, 20), pf(A_X, 2048 * 1280, 0, 20),
                 pf(A_WQ, 640 * 8192, 0, 20), pf(A_WQ, 640 * 8192, 20480, 20), pf(A_WO, 4096 * 1280, 0, 20), pf(A_WO, 4096 * 1280, 20480, 20)]
    elif PREFETCH in (3, 4, 5):
        nt = lambda x: x[:-1] + [x[-1] + (" nt" if PREFETCH == 4 else "")]
        pfo = ["s_lshr_b32 s%d, s2, 1" % sT, "s_mul_i32 s%d, s%d, 40960" % (sT, sT), "s_and_b32 s%d, s2, 1" % sT2, "s_mul_i32 s%d, s%d, 640" % (sT2, sT2),
               "s_add_u32 s%d, s%d, s%d" % (sT, sT, sT2), "v_lshrrev_b32 v%d, 3, v0" % t0, "v_mul_u32_u24 v%d, 1280, v%d" % (t0, t0),
               "v_and_b32 v%d, 7, v0" % t1, "v_min_u32 v%d, 4, v%d" % (t1, t1), "v_lshl_add_u32 v%d, v%d, 7, v%d" % (t0, t1, t0), "v_add_u32 v%d, s%d, v%d" % (t0, sT, t0),
               "global_load_dword v%d, v%d, s[%d:%d]" % (vDum, t0, ptr(A_WO), ptr(A_WO) + 1)]
        def pf_wq(half):
            return ["s_mul_i32 s%d, s%d, 20" % (sT, sWave), "v_min_u32 v%d, 19, v%d" % (t0, vLane), "v_add_u32 v%d, s%d, v%d" % (t0, sT, t0),
                    "s_mul_i32 s%d, s%d, 10" % (sT, sIdx), "s_add_u32 s%d, s%d, %d" % (sT, sT, half * 320), "v_lshrrev_b32 v%d, 3, v%d" % (t1, t0), "v_add_u32 v%d, s%d, v%d" % (t1, sT, t1),
                    "v_and_b32 v%d, 7, v%d" % (t0, t0), "v_lshlrev_b32 v%d, 7, v%d" % (t0, t0), "v_lshl_add_u32 v%d, v%d, 13, v%d" % (t0, t1, t0),
                    "s_lshl_b32 s%d, s%d, 10" % (sT, sXcd), "v_add_u32 v%d, s%d, v%d" % (t0, sT, t0),
                    "global_load_dword v%d, v%d, s[%d:%d]" % (vDum, t0, ptr(A_WQ), ptr(A_WQ) + 1)]
        hooks = [[], pf(B_WQKV, 640 * 3840, 0, 19), nt(pf_bx()), pf(A_X, 2048 * 1280, 0, 20), nt(pf_wq(0)), nt(pf_wq(1)), [], [] if PREFETCH == 5 else nt(pfo)]
    else:
        hooks = [gath[40:]] + [[]] * 7
    hooks[0] = []
    hooks[6] = hooks[6] + poll_load("go")
    def upd(regs, d):
        return ["v_add_u32 v%d, 0x%x, v%d" % (r, u32(d), r) for r in regs]
    for s in range(8):
        if s:
            bar = pl.barrier(KVs(s), KVs(s - 1), 2048)
            cu = upd([vXr, vXr + 1, vXr + 2, vXr + 3], (pl.unit[("KX", s, 0)] - pl.unit[("KX", s - 1, 0)]) * U) + \
                 upd([vWr, vWr + 1], (pl.unit[("KW", s, 0)] - pl.unit[("KW", s - 1, 0)]) * U)
            tags = []
            for i in range(2):
                pre, tag = pl.take("W", i)
                cu += pre
                tags.append(tag)
            for t in tags:
                pl.issue(t)
            skel(last, bar, mfA, cu, "M_kvA")
            last = mfA[31]
        cu = list(hooks[s])
        pl.hook(cu)
        tags = []
        for i in range(2):
            pre, tag = pl.take("X", i)
            cu += pre
            tags.append(tag)
        for t in tags:
            pl.issue(t)
        skel(last, [WL], mfB, cu, "M_kvB")
        last = mfB[31]
        if s in (3,) and STAMPS and os.environ.get("FINE"):
            st_()
    st_()

    bfx = lambda st, k, i: 128 + st * 32 + k * 16 + i * 4
    bfw = lambda st, k, i: 128 + st * 32 + k * 16 + 8 + i * 4
    def b_reads(st):
        r = []
        for k in range(2):
            ks = st * 2 + k
            for i in range(2):
                r.append("ds_read_b128 %s, v%d offset:%d" % (rr("a", bfx(st, k, i), 4), vXr + ks, i * 4096))
                for u in range(2):
                    r.append("ds_read_b64_tr_b16 %s, v%d offset:%d" % (rr("a", bfw(st, k, i) + 2 * u, 2), vWr + i, ks * 4096 + u * 1024))
        return r
    def b_mf(var, st, zero=False):
        mf = []
        for k in range(2):
            for b in range(2):
                for c in range(2):
                    a = rr("v", RA + (b * 2 + c) * 16, 16)
                    X, W = rr("a", bfx(st, k, b), 4), rr("a", bfw(st, k, c), 4)
                    A, B = (X, W) if var else (W, X)
                    mf.append("%s %s, %s, %s, %s" % (MF, a, A, B, "0" if (zero and k == 0) else a))
        return mf
    def kv_pack(mat, n):
        f, b0 = kvreg(mat, n)
        dst = (RC if mat else RB) + 8 * n
        if f == "v":
            return pack_tile(b0, dst)
        return ["v_accvgpr_read_b32 v%d, a%d" % (RD + k, b0 + k) for k in range(16)] + pack_tile(RD, dst)
    def kv_store(mat, n):
        f, reg = ("v", (RC if mat else RB) + 8 * n) if (mat or n < 2) else ("a", aPK + 8 * (n - 2))
        return ["s_add_u32 s%d, s%d, 0x%x" % (sOff, sKo, (n >> 1) * 16 * U + mat * 8192)] + \
               ["buffer_store_dwordx4 %s, v%d, s[%d:%d], s%d offen offset:%d %s" % (rr(f, reg + 4 * m, 4), vL16, sO, sO + 3, sOff, (n & 1) * 2048 + m * 1024, "" if WBL2 else WT) for m in range(2)]
    def b_store(t):
        return ["s_add_u32 s%d, s%d, 0x%x" % (sOff, sBo, (t >> 1) * 120 * 1024)] + \
               ["buffer_store_dwordx4 %s, v%d, s[%d:%d], s%d offen offset:%d %s" % (rr("v", RD + 8 * t + 4 * m, 4), vL16, sBO, sBO + 3, sOff, (t & 1) * 2048 + m * 1024, WT) for m in range(2)]
    Bs = lambda b: [("BX", b), ("BW", b)]
    Qs = lambda s: [("QX", s, 0), ("QX", s, 1), ("QW", s)]
    p(last)
    p.add(pl.barrier(Bs(0), KVs(7), 768))
    G = Gaps(16)
    G.put(0, ["s_lshr_b32 s%d, s%d, 1" % (sT, sWave), "s_lshl_b32 s%d, s%d, 13" % (sT, sT),
              "s_sub_u32 s%d, 0x%x, s%d" % (sT, u32((pl.unit[("BX", 0)] - pl.unit[("KX", 7, 0)]) * U), sT)])
    G.put(0, ["v_add_u32 v%d, s%d, v%d" % (vXr + k, sT, vXr + k) for k in range(4)])
    G.put(1, upd([vWr, vWr + 1], (pl.unit[("BW", 0)] - pl.unit[("KW", 7, 0)]) * U))
    for i in range(2):
        pre, tag = pl.take("W", i)
        assert len(pre) == 2
        G.put(1, pre)
        pl.issue(tag)
        put_dma(G, i, sW, 2 + 7 * i, 8 + 7 * i)
    G.spread(b_reads(0), 2, 13)
    G.stream([x for n in range(8) for x in kv_pack(0, n)], 3, 15)
    p.add(G.emit(kv_mf(1)))
    p("s_lshl_b32 s%d, s%d, 20" % (sT, sH))
    p("s_lshl_b32 s%d, s%d, 14" % (sT2, sI))
    p("s_add_u32 s%d, s%d, s%d" % (sT, sT, sT2))
    srd(p, sO, ptr(D_WS), off_s=sT, off_imm=WS_KV)
    p("s_sub_u32 s%d, 0x100000, s%d" % (sO + 2, sT2))
    p(WL)
    p("s_cmp_ge_u32 s%d, 10\ns_cbranch_scc1 M_bv" % sCB)
    pl0 = pl
    qfx = lambda st, i: 128 + st * 24 + i * 4
    qfw = lambda st, i: 128 + st * 24 + 8 + i * 4
    qacc = lambda tl, a: RA + (tl * 4 + a) * 16
    def q_reads(st, ks):
        r = []
        for i in range(4):
            if i < 2:
                r.append("ds_read_b128 %s, v%d" % (rr("a", qfx(st, i), 4), vXr + 4 * i + ks))
            for u in range(2):
                r.append("ds_read_b64_tr_b16 %s, v%d offset:%d" % (rr("a", qfw(st, i) + 2 * u, 2), vWr + i, ks * 4096 + u * 1024))
        return r
    for var in range(2):
        pl = pl0.copy()
        if var:
            p("M_bv:")
        mfb = b_mf(var, 1) + b_mf(var, 0)
        G = Gaps(16)
        G.spread(b_reads(0), 2, 6); G.put(7, WL); G.spread(b_reads(1), 8, 13)
        put_dma(G, 0, sW, 2, 8); put_dma(G, 1, sX, 9, 14)
        body("M_b%d" % var, G, mfb)
        G = Gaps(8)
        pre, tag = pl.take("X", 1)
        assert len(pre) == 2
        G.put(0, pre)
        pl.issue(tag)
        put_dma(G, 1, sX, 1, 6)
        G.spread(b_reads(1), 0, 5)
        G.stream([x for n in range(8) for x in kv_pack(1, n)], 0, 6)
        z = b_mf(var, 0, zero=True)
        p.add(G.emit(z, 0, 7))
        last = z[7]
        park = ["v_accvgpr_write_b32 a%d, v%d" % (aPK + k, RB + 16 + k) for k in range(48)]
        stores = [kv_store(0, 0), park[:8], kv_store(0, 1), park[8:16], kv_store(1, 0), park[16:24], kv_store(1, 1), park[24:36], park[36:]]
        for b in range(1, 10):
            bar = pl.barrier(Bs(b), Bs(b - 1), 512)
            cu = upd([vXr, vXr + 1, vXr + 2, vXr + 3], (pl.unit[("BX", b)] - pl.unit[("BX", b - 1)]) * U) + \
                 upd([vWr, vWr + 1], (pl.unit[("BW", b)] - pl.unit[("BW", b - 1)]) * U)
            cu += extra("X" if (b != 2) else "W", 2)
            tags = []
            for i, ty in enumerate("WX"):
                pre, tag = pl.take(ty, i)
                cu += pre
                tags.append(tag)
            cu += stores[b - 1]
            pl.hook(stores[b - 1], "kv")
            for t in tags:
                pl.issue(t)
            skel(last, bar, mfb, cu, "M_b%d" % var)
            if STAMPS and os.environ.get("FINE") and b in (1, 3, 5, 7):
                if var and b == 1:
                    st_.n -= 4
                st_()
            last = mfb[15]
        p(last)
        p.add(pl.barrier(Qs(0), Bs(9), 1024))
        G = Gaps(8)
        G.put(0, ["s_and_b32 s%d, s%d, 0x1000" % (sT, sW4), "s_add_u32 s%d, s%d, 0x%x" % (sT2, sT, u32((pl.unit[("QX", 0, 1)] - pl.unit[("BX", 9)]) * U)),
                  "s_add_u32 s%d, s%d, 0x%x" % (sT, sT, u32((pl.unit[("QX", 0, 0)] - pl.unit[("BX", 9)]) * U))])
        G.put(0, ["v_add_u32 v%d, s%d, v%d" % (vXr + 4 + k, sT2, vXr + k) for k in range(4)])
        G.put(1, ["s_lshr_b32 s%d, s%d, 5" % (sT2, sW4), "s_and_b32 s%d, s%d, 0x80" % (sT2, sT2)])
        G.put(1, ["v_add_u32 v%d, s%d, v%d" % (vXr + k, sT, vXr + k) for k in range(4)])
        G.put(1, ["v_xor_b32 v%d, s%d, v%d" % (vWr, sT2, vWr)] + upd([vWr], (pl.unit[("QW", 0)] - pl.unit[("BW", 9)]) * U) +
                 ["v_xor_b32 v%d, %d, v%d" % (vWr + c, c * 64, vWr) for c in range(1, 4)])
        pre, tag = pl.take("X", 0)
        assert len(pre) == 2
        G.put(2, pre)
        pl.issue(tag)
        put_dma(G, 0, sX, 3, 7)
        G.spread(q_reads(0, 0), 2, 6)
        p.add(G.emit(b_mf(var, 1)))
        if var == 0:
            p("s_branch M_bdone")
    p("M_bdone:")
    st_()

    qorder = [(tl, a) for tl in (1, 0) for a in range(4)]
    def q_mf(st, zero=False):
        return ["%s %s, %s, %s, %s" % (MF, rr("v", qacc(tl, a), 16), rr("a", qfw(st, a), 4), rr("a", qfx(st, tl), 4), "0" if zero else rr("v", qacc(tl, a), 16)) for tl, a in qorder]
    mfq = q_mf(1) + q_mf(0) + q_mf(1) + q_mf(0)
    G = Gaps(32)
    G.spread(q_reads(0, 0), 2, 6)
    for ks in range(3):
        G.put(8 * ks + 7, WL)
        G.spread(q_reads((ks + 1) & 1, ks + 1), 8 * ks + 8, 8 * ks + 13)
    put_dma(G, 0, sX, 2, 10); put_dma(G, 1, sX, 11, 20); put_dma(G, 2, sW, 21, 30)
    Gq = G
    body("M_q", G, mfq, entries={16: "M_q16"})
    p("s_mul_i32 s%d, s%d, %d" % (sT, sTB, 4 * 120 * 1024))
    p("s_lshl_b32 s%d, s%d, 13" % (sT2, sCB))
    p("s_add_u32 s%d, s%d, s%d" % (sT, sT, sT2))
    srd(p, sBO, ptr(D_WS), off_s=sT, off_imm=WS_BF)
    p("s_cmp_lt_u32 s2, 240\ns_cselect_b32 s%d, %d, 0" % (sBO + 2, 4 * 120 * 1024))
    p("s_lshr_b32 s%d, s%d, 1" % (sBo, sWave))
    p("s_mul_i32 s%d, s%d, %d" % (sBo, sBo, 2 * 120 * 1024))
    p("s_and_b32 s%d, s%d, 0x1000" % (sT, sW4))
    p("s_add_u32 s%d, s%d, s%d" % (sBo, sBo, sT))
    tags = []
    for i, ty in ((1, "X"), (2, "W")):
        pre, tag = pl.take(ty, i)
        p.add(pre)
        tags.append(tag)
    for t in tags:
        pl.issue(t)
    p(WL)
    G = Gaps(8)
    for k in range(8):
        G.put(k, [x for x in Gq.gap(8 + k) if not ("lds" in x and "s%d offen" % sS in x)])
    G.stream([x for t in range(4) for x in pack_tile(RA + 16 * t, RD + 8 * t)], 0, 3)
    p.add(G.emit(q_mf(0, zero=True)))
    p(call("M_q16"))
    last = mfq[31]
    def bm_frag_loads(q, fbase):
        q("s_lshl_b32 s%d, s%d, 3" % (sTT, sXcd))
        q("s_lshl_b32 s%d, s%d, 1" % (sT, sWave))
        q("s_add_u32 s%d, s%d, s%d" % (sTT, sTT, sT))
        q("s_mul_i32 s%d, s%d, %d" % (sT, sTT, 120 * 1024))
        srd(q, sBF, ptr(D_WS), off_s=sT, off_imm=WS_BF, nrec=2 * 120 * 1024)
        q("s_mul_i32 s%d, s%d, 5" % (sT, sIdx))
        q("s_lshr_b32 s%d, s%d, 2" % (sT, sT))
        q("s_add_u32 s%d, s%d, %d" % (sT, sT, fbase))
        q("s_lshl_b32 s%d, s%d, 10" % (sT, sT))
        for tt in range(2):
            for u in range(2):
                q("buffer_load_dwordx4 %s, v%d, s[%d:%d], s%d offen offset:%d %s" % (rr("a", aXF + (tt * 2 + u) * 4, 4), vL16, sBF, sBF + 3, sT, u * 1024, WT))
            if tt == 0:
                q("s_add_u32 s%d, s%d, %d" % (sT, sT, 120 * 1024))
    vV, vWa, vRd = vA + 2, vA + 3, vA
    def bm1_loads(q):
        bm_frag_loads(q, 40)
        q("s_mul_i32 s%d, s%d, 20" % (sT, sIdx))
        q("v_and_b32 v%d, 31, v%d" % (t2, vLane))
        q("v_add_u32 v%d, s%d, v%d" % (t1, sT, t2))
        q("v_lshrrev_b32 v%d, 5, v%d" % (vV, t1))
        q("v_lshlrev_b32 v%d, 11, v%d" % (vV, vV))
        q("v_and_b32 v%d, 31, v%d" % (t1, t1))
        q("v_lshl_add_u32 v%d, v%d, 4, v%d" % (vV, t1, vV))
        q("v_and_b32 v%d, 32, v%d" % (t1, vLane))
        q("v_lshl_add_u32 v%d, v%d, 4, v%d" % (vV, t1, vV))
        q("v_bfrev_b32 v%d, 1" % t1)
        q("v_cmp_gt_u32 vcc, 20, v%d" % t2)
        q("v_cndmask_b32 v%d, v%d, v%d, vcc" % (vV, t1, vV))
        for tt in range(2):
            q("s_mov_b32 s%d, %d" % (sT, (tt * 120 + 80) * 1024))
            for mm in range(2):
                q("buffer_load_dwordx4 %s, v%d, s[%d:%d], s%d offen offset:%d %s" % (rr("a", aVF + (tt * 2 + mm) * 4, 4), vV, sBF, sBF + 3, sT, mm * 1024, WT))
    qst = {k + 1: [("b", b_store(k))] for k in range(4)}
    pubB = pubKV = None
    for s in range(1, 10):
        bar = pl.barrier(Qs(s), Qs(s - 1), 1024)
        cu = upd([vXr], (pl.unit[("QX", s, 0)] - pl.unit[("QX", s - 1, 0)]) * U) + upd([vXr + 4], (pl.unit[("QX", s, 1)] - pl.unit[("QX", s - 1, 1)]) * U) + \
             upd([vWr + c for c in range(4)], (pl.unit[("QW", s)] - pl.unit[("QW", s - 1)]) * U) + \
             ["v_xor_b32 v%d, %d, v%d" % (vXr + 4 * g + k, 32 * k, vXr + 4 * g) for g in range(2) for k in range(1, 4)]
        cu += extra("X", 3)
        tags = []
        for i, ty in enumerate("XXW"):
            pre, tag = pl.take(ty, i)
            cu += pre
            tags.append(tag)
        if s == 1:
            cu.append(poll_check("go"))
        if pubKV is None and pl.complete("kv"):
            pubKV = s
            cu.append(publish(1))
        if pubB is None and s > 4 and pl.complete("b"):
            pubB = s
            cu.append(publish(2))
        for tag, ins in qst.get(s, []):
            cu += ins
            pl.hook(ins, tag)
        if s == 4:
            ins = poll_load(1)
            cu += ins
            pl.hook(ins, "poll")
        if s == 7:
            assert pl.complete("poll")
            cu.append(poll_check(1))
        if s == 8:
            ins = poll_load(2)
            cu += ins
            pl.hook(ins, "poll")
        for t in tags:
            pl.issue(t)
        skel(last, bar, mfq, cu, "M_q")
        if STAMPS and os.environ.get("FINE"):
            st_()
    if VERB:
        print("pubB", pubB, "pubKV", pubKV)
    assert pubB and pubKV and not pl.pend["X"] and not pl.pend["W"]
    C1, C2, PH, VF, KC, AF, RR = 48, 64, 80, 96, 112, TMP, 32
    q = Prog()
    q("M_phi:")
    for tile, C in ((0, C1), (1, C2)):
        for u in range(2):
            q("%s %s, %s, %s, %s" % (MF, rr("v", C, 16), rr("v", AW + (tile * 2 + u) * 4, 4), rr("a", aXF + u * 4, 4), rr("v", C, 16) if u else "0"))
    for k in range(8):
        q("v_accvgpr_mov_b32 a%d, a%d" % (aXF + k, aXF + 8 + k))
    x = [C1 + k for k in range(16)] + [C2 + k for k in range(4)]
    m = t1
    q("v_max3_f32 v%d, v%d, v%d, v%d" % (m, x[0], x[1], x[2]))
    for k in range(3, 19, 2):
        q("v_max3_f32 v%d, v%d, v%d, v%d" % (m, m, x[k], x[k + 1]))
    q("v_max_f32 v%d, v%d, v%d" % (m, m, x[19]))
    q("v_mul_f32 v%d, s%d, v%d" % (m, sL2, m))
    for k in range(20):
        q("v_fma_f32 v%d, v%d, s%d, -v%d" % (x[k], x[k], sL2, m))
    for k in range(20):
        q("v_exp_f32 v%d, v%d" % (x[k], x[k]))
    q("v_add_f32 v%d, v%d, v%d" % (m, x[0], x[1]))
    for k in range(2, 20):
        q("v_add_f32 v%d, v%d, v%d" % (m, m, x[k]))
    q("v_rcp_f32 v%d, v%d" % (m, m))
    for k in range(20):
        q("v_mul_f32 v%d, v%d, v%d" % (x[k], x[k], m))
    for k in range(10):
        q("v_cvt_pk_bf16_f32 v%d, v%d, v%d" % (PH + k, x[2 * k], x[2 * k + 1]))
    q(ret)
    tail += q.ins

    vWo = vA + 1
    def wo_src(which, un):
        p("s_lshr_b32 s%d, s%d, 1" % (sT, un))
        p("s_mul_i32 s%d, s%d, 40960" % (sT, sT))
        p("s_and_b32 s%d, s%d, 1" % (sT2, un))
        p("s_mul_i32 s%d, s%d, 640" % (sT2, sT2))
        p("s_add_u32 s%d, s%d, s%d" % (sT, sT, sT2))
        srd(p, sY, ptr(which), off_s=sT)
        p("s_sub_u32 s%d, 40960, s%d" % (sY + 2, sT2))
        p(call("M_wodma"))
    q = Prog()
    q("M_wodma:")
    q("s_mul_i32 s%d, s%d, 320" % (sT, sWave))
    q("s_mul_i32 s%d, s%d, 5120" % (sT2, sWave))
    q("s_add_u32 m0, s%d, 0x20000" % sT2)
    for k in range(5):
        q("v_add_u32 v%d, s%d, v%d" % (t0, sT, vLane))
        q("v_mul_u32_u24 v%d, 0x667, v%d" % (t1, t0))
        q("v_lshrrev_b32 v%d, 16, v%d" % (t1, t1))
        q("v_mul_u32_u24 v%d, 640, v%d" % (t1, t1))
        q("v_lshl_add_u32 v%d, v%d, 4, v%d" % (t0, t0, t1))
        q("buffer_load_dwordx4 v%d, s[%d:%d], 0 offen lds" % (t0, sY, sY + 3))
        if k < 4:
            q("s_add_u32 s%d, s%d, 64\ns_add_u32 m0, m0, 0x400" % (sT, sT))
    q(ret)
    tail += q.ins
    def wo_reads(isB, regs):
        p("v_lshrrev_b32 v%d, 4, v%d" % (t0, vLane))
        p("v_lshlrev_b32 v%d, 3, v%d" % (vWo, t0))
        if not isB:
            p("v_and_b32 v%d, 1, v%d" % (t0, t0))
            p("v_lshlrev_b32 v%d, 2, v%d" % (t0, t0))
            p("v_sub_u32 v%d, v%d, v%d" % (vWo, vWo, t0))
        p("v_bfe_u32 v%d, v%d, 2, 2" % (t0, vLane))
        p("v_add_u32 v%d, v%d, v%d" % (vWo, vWo, t0))
        p("v_mul_u32_u24 v%d, 640, v%d" % (vWo, vWo))
        p("v_and_b32 v%d, 3, v%d" % (t0, vLane))
        p("v_lshl_add_u32 v%d, v%d, 3, v%d" % (vWo, t0, vWo))
        p("s_mul_i32 s%d, s%d, 160" % (sT, sWave))
        p("s_add_u32 s%d, s%d, 0x20000" % (sT, sT))
        p("v_add_u32 v%d, s%d, v%d" % (vWo, sT, vWo))
        for n in range(5):
            for u in range(2):
                p("ds_read_b64_tr_b16 %s, v%d offset:%d" % (rr("v", regs[n] + 2 * u, 2), vWo, n * 32 + u * (4 if isB else 8) * 640))
    def wo_stores(isB, un, regs, sY):
        p("s_and_b32 s%d, s%d, 1" % (sT, un))
        p("s_lshl_b32 s%d, s%d, 2" % (sT, sT))
        p("s_add_u32 s%d, s%d, s%d" % (sT, sT, sWave))
        p("s_lshr_b32 s%d, s%d, 1" % (sT2, un))
        if isB:
            p("s_mul_i32 s%d, s%d, 20" % (sT, sT))
            p("s_add_u32 s%d, s%d, s%d" % (sT, sT, sT2))
        else:
            p("s_lshr_b32 s%d, s%d, 1" % (sT, sT))
            p("s_lshl_b32 s%d, s%d, 7" % (sT, sT))
            p("s_add_u32 s%d, s%d, s%d" % (sT, sT, sT2))
            p("s_lshl_b32 s%d, s%d, 1" % (sT, sT))
            p("s_and_b32 s%d, s%d, 1" % (sT2, sWave))
            p("s_add_u32 s%d, s%d, s%d" % (sT, sT, sT2))
        p("s_mul_i32 s%d, s%d, 5120" % (sT, sT))
        srd(p, sY, ptr(D_WS), off_s=sT, off_imm=WS_WOB if isB else WS_WOA, nrec=5120)
        p("s_movk_i32 s%d, 0x1000" % sT)
        for n in range(5):
            p("buffer_store_dwordx4 %s, v%d, s[%d:%d], %s offen offset:%d %s" % (rr("v", regs[n], 4), vL16, sY, sY + 3, "s%d" % sT if n == 4 else "0", (n & 3) * 1024, WT))
    L0 = 80 * 1024
    p(last)
    p(WL + "\ns_barrier")
    sQs = sTB
    def kvsetup(q):
        q("s_mov_b32 s%d, 0x%x" % (sQs, QSCALE))
        q("s_mov_b32 s%d, 0x%x" % (sL2, LOG2E))
        q("s_lshl_b32 s%d, s%d, 20" % (sT, sH))
        srd(q, sKV, ptr(D_WS), off_s=sT, off_imm=WS_KV)
        q("s_lshl_b32 s%d, s%d, 16" % (sT, sI))
        q("s_sub_u32 s%d, 0x100000, s%d" % (sKV + 2, sT))
        q("v_add_u32 v%d, s%d, v%d" % (vDma, sW4, vL16))
    def kv0(t):
        d = ["buffer_load_dwordx4 v%d, s[%d:%d], s%d offen offset:%d %s lds" % (vDma, sKV, sKV + 3, sOff, k * 1024, WT) for k in range(4)]
        return [["s_add_u32 m0, s%d, 0x%x" % (sW4, t * U), "s_mov_b32 s%d, 0x%x" % (sOff, t * U), d[0]]] + d[1:]
    fl = L(kvsetup) + kv0(0) + [poll_check(2)] + L(bm1_loads)
    mfl = q_mf(1)
    for k in range(8):
        p(mfl[k])
        p.add(fl[k * len(fl) // 8:(k + 1) * len(fl) // 8])
    st_()
    pp, p = p, Prog()
    wo_src(A_WO, 2)
    wo_chunk, p = p.ins, pp
    va = ["v_mul_f32 v%d, s%d, v%d" % (qacc(tl, a) + k, sQs, qacc(tl, a) + k) for tl, a in qorder for k in range(16)]
    va += ["v_accvgpr_read_b32 v%d, a%d" % (RD + k, aRAW + k) for k in range(32)]
    va += ["v_bfe_u32 v%d, v%d, 2, 1" % (vWa, vLane), "v_mul_u32_u24 v%d, 0x8000, v%d" % (vWa, vWa), "v_lshl_or_b32 v%d, v%d, 16, v%d" % (vWa, vWa, vWa)]
    for k in range(15, -1, -1):
        va += ["v_lshl_or_b32 v%d, v%d, 16, v%d" % (AW + k, RD + 2 * k + 1, RD + 2 * k), "v_xor_b32 v%d, v%d, v%d" % (AW + k, AW + k, vWa)]
    grp = lambda x: [x[:2], x[2]]
    vm = kv0(1) + kv0(2) + [wo_chunk] + kv0(3) + kv0(4) + [y for n in range(2, 8) for y in grp(kv_store(1, n))]
    def mix(va, vm):
        for k, x in enumerate(vm):
            p.add([x] + va[k * len(va) // len(vm):(k + 1) * len(va) // len(vm)])
    mix(va, vm)
    mix([x for tl, a in qorder for x in pack_tile(qacc(tl, a), Q(tl, 2 * a))], [y for n in range(2, 8) for y in grp(kv_store(0, n))])
    st_()
    p(call("M_phi"))
    for k in range(4):
        p("v_mov_b32 v%d, 0" % (RR + k))
    zero_o = ["%s %s, %s, %s, 0" % (MF, rr("a", 16 * k, 16), rr("v", RR, 4), rr("v", RR, 4)) for k in range(8)]
    p("v_and_b32 v%d, 31, v%d" % (t2, vLane))
    p("s_add_u32 s%d, s%d, %d" % (sT, sW4, L0))
    p("v_lshlrev_b32 v%d, 7, v%d" % (vWa, t2))
    p("v_lshrrev_b32 v%d, 5, v%d" % (t1, vLane))
    p("v_lshl_add_u32 v%d, v%d, 6, v%d" % (vWa, t1, vWa))
    p("v_add_u32 v%d, s%d, v%d" % (vWa, sT, vWa))
    p(zero_o[0])
    p("v_lshlrev_b32 v%d, 9, v%d" % (vRd, t1))
    p("v_bfe_u32 v%d, v%d, 2, 2" % (t1, vLane))
    p("v_lshl_add_u32 v%d, v%d, 7, v%d" % (vRd, t1, vRd))
    p("v_bfe_u32 v%d, v%d, 4, 1" % (t1, vLane))
    p("v_lshl_add_u32 v%d, v%d, 5, v%d" % (vRd, t1, vRd))
    p("v_and_b32 v%d, 3, v%d" % (t1, vLane))
    p("v_lshl_add_u32 v%d, v%d, 3, v%d" % (vRd, t1, vRd))
    p("v_add_u32 v%d, s%d, v%d" % (vRd, sT, vRd))
    p(zero_o[1])
    p("v_mov_b32 v%d, 0x3f803f80" % t0)
    p("v_cmp_eq_u32 vcc, 20, v%d" % t2)
    for tt in range(2):
        if tt:
            p(call("M_phi"))
        p("ds_write_b128 v%d, %s" % (vWa, rr("v", PH, 4)))
        p("ds_write_b128 v%d, %s offset:16" % (vWa, rr("v", PH + 4, 4)))
        p("ds_write_b64 v%d, %s offset:32" % (vWa, rr("v", PH + 8, 2)))
        for nn in range(2):
            for mm in range(2):
                for u in range(2):
                    p("ds_read_b64_tr_b16 %s, v%d offset:%d" % (rr("v", AF + (nn * 2 + mm) * 4 + 2 * u, 2), vRd, (16 * mm + 8 * u) * 128 + nn * 64))
        p(zero_o[2 + 3 * tt])
        for k in range(8):
            p("v_accvgpr_read_b32 v%d, a%d" % (VF + k, aVF + tt * 8 + k))
        p(zero_o[3 + 3 * tt])
        for k in range(8):
            p("v_cndmask_b32 v%d, v%d, v%d, vcc" % (VF + k, VF + k, t0))
        p(zero_o[4 + 3 * tt])
        for mm in range(2):
            for nn in range(2):
                c = rr("v", KC + nn * 16, 16)
                p("%s %s, %s, %s, %s" % (MF, c, rr("v", AF + (nn * 2 + mm) * 4, 4), rr("v", VF + mm * 4, 4), "0" if (tt == 0 and mm == 0) else c))
    R0 = L0 + 16384
    p("s_mul_i32 s%d, s%d, 6144" % (sT, sWave))
    p("s_add_u32 s%d, s%d, %d" % (sT, sT, R0))
    p("v_add_u32 v%d, s%d, v%d" % (t1, sT, vL16))
    p("v_and_b32 v%d, 31, v%d" % (vLim, vLane))
    p("v_lshrrev_b32 v%d, 5, v%d" % (t0, vLane))
    p("v_lshlrev_b32 v%d, 8, v%d" % (vCt, t0))
    p("v_lshlrev_b32 v%d, 10, v%d" % (vV, t0))
    p("v_lshl_add_u32 v%d, v%d, 4, v%d" % (vV, t2, vV))
    p("v_lshlrev_b32 v%d, 2, v%d" % (t0, t0))
    p("v_sub_u32 v%d, v%d, v%d" % (vLim, vLim, t0))
    p("v_mov_b32 v%d, 0x%x" % (vNeg, NEG))
    p("v_bfe_u32 v%d, v%d, 4, 1" % (t0, vLane))
    p("v_lshl_add_u32 v%d, v%d, 10, v%d" % (vCt, t0, vCt))
    p("v_and_b32 v%d, 15, v%d" % (t0, vLane))
    p("v_lshl_add_u32 v%d, v%d, 4, v%d" % (vCt, t0, vCt))
    p("v_mov_b32 v%d, 0\nv_mov_b32 v%d, 0" % (vL, vL + 1))
    for nn in range(2):
        for jj in range(3):
            p("ds_write_b128 v%d, %s offset:%d" % (t1, rr("v", KC + nn * 16 + jj * 4, 4), (nn * 3 + jj) * 1024))
    p("s_lshl_b32 s%d, s%d, 3" % (sT, sIdx))
    p("s_add_u32 s%d, s%d, s%d" % (sT, sT, sXcd))
    p("s_lshl_b32 s%d, s%d, 13" % (sT, sT))
    srd(p, sY, ptr(D_WS), off_s=sT, off_imm=WS_KVP, nrec=5120)
    srd(p, sC, ptr(D_WS), off_imm=WS_CTX, nrec=16 * MB)
    p("s_lshl_b32 s%d, s%d, 10" % (sT, sWave))
    p("s_add_u32 s%d, s%d, %d" % (sT, sT, R0))
    p("v_add_u32 v%d, s%d, v%d" % (t1, sT, vL16))
    p("v_mov_b32 v%d, v%d" % (vB, vL16))
    p("v_add_u32 v%d, 0x4000, v%d" % (vB + 1, vL16))
    p("s_waitcnt vmcnt(32) lgkmcnt(0)\ns_barrier")
    st_()
    for j in range(8):
        p("ds_read_b128 %s, v%d offset:%d" % (rr("a", FB(j), 4), vB, j * 1024))
    RS = 128
    woA = [S(1, 0) + 4 * n for n in range(5)]
    woB = [S(0, 1) + 4 * n for n in range(4)] + [S(1, 1)]
    for k in range(2):
        for w in range(4):
            p("ds_read_b128 %s, v%d offset:%d" % (rr("v", RS + k * 16 + w * 4, 4), t1, w * 6144 + k * 4096))
    wo_reads(False, woA)
    wo_stores(False, 2, woA, sO)
    p("s_lshl_b32 s%d, s%d, 11" % (sT, sWave))
    p("s_cmp_eq_u32 s%d, 3" % sWave)
    p("s_cselect_b32 s%d, 512, s%d" % (sT2, sT))
    p("s_add_u32 s%d, s%d, 2560" % (sOff, sT))
    p("s_mov_b32 s%d, 0x%x" % (sThr, THRESH))
    p("s_lshl_b32 s%d, s%d, 2" % (sT, sI))
    p("s_add_u32 s%d, s%d, s%d" % (sLoTri, sT, sWave))
    p("s_sub_u32 s%d, 60, s%d" % (sHiTri, sT))
    p("s_add_u32 s%d, s%d, s%d" % (sHiTri, sHiTri, sWave))
    p("s_sub_u32 s%d, 58, s%d" % (sP2, sT))
    p("s_mov_b32 s%d, 0x%x\ns_mov_b32 s%d, 0" % (sMask, (1 << 4) | (1 << 9) | (1 << 12), sMask + 1))
    p("s_bitset1_b64 s[%d:%d], s%d" % (sMask, sMask + 1, sP2))
    for r in (sLoTri, sHiTri):
        p("s_bitset1_b64 s[%d:%d], s%d" % (sMask, sMask + 1, r))
        p("s_add_u32 s%d, s%d, 1" % (sT, r))
        p("s_bitset1_b64 s[%d:%d], s%d" % (sMask, sMask + 1, sT))
    p("s_mov_b32 s%d, 0x4000" % sRd)
    for k in range(32):
        p("v_mov_b32 v%d, 0" % (CI(0) + k))
    p("s_mov_b32 s%d, 0" % sStep)
    p("s_mov_b32 s%d, 0x%x" % (sG, 5 * U))

    def evt_check():
        lab = p.newlabel("M_ev")
        tail.extend(["%s:" % lab, call("M_event"), "s_branch %s_r" % lab])
        return ["s_bitcmp1_b64 s[%d:%d], s%d" % (sMask, sMask + 1, sStep), "s_cbranch_scc1 %s" % lab, "%s_r:" % lab]
    def qk_mfmas(par, tiles):
        return [(ds, "%s %s, %s, %s, %s" % (MF, rr("v", S(par, tl), 16), rr("a", FB(ds), 4), rr("v", Q(tl, ds), 4), rr("v", CI(tl) if ds == 0 else S(par, tl), 16)))
                for ds in range(8) for tl in tiles]
    def pv_mfmas(par, tiles):
        return [(8 + j, "%s %s, %s, %s, %s" % (MF, rr("a", O(tl, j & 3), 16), rr("a", FB(8 + j), 4), rr("v", PP(par, tl) + 4 * (j >> 2), 4), rr("a", O(tl, j & 3), 16)))
                for j in range(8) for tl in tiles]
    v_off = lambda j: 8192 + ((j & 3) * 2 + (j >> 2)) * 1024
    def rowmax(par, tl, dst, tmp):
        s = S(par, tl)
        r = ["v_max3_f32 v%d, v%d, v%d, v%d" % (dst, s, s + 1, s + 2)]
        for k in range(3, 15, 2):
            r.append("v_max3_f32 v%d, v%d, v%d, v%d" % (dst, dst, s + k, s + k + 1))
        r.append("v_max_f32 v%d, v%d, v%d" % (dst, dst, s + 15))
        return r + ["v_mov_b32 v%d, v%d" % (tmp, dst), "v_permlane32_swap_b32 v%d, v%d" % (dst, tmp), "v_max_f32 v%d, v%d, v%d" % (dst, dst, tmp)]
    def sm_stream(par, tiles, part):
        groups = [(tl, k) for k in range(part * 4, part * 4 + 4) for tl in tiles]
        out = []
        def fin(n):
            tl, k = groups[n]
            a, b = TMP + (n % 4) * 2, TMP + (n % 4) * 2 + 1
            if k == 0:
                adds = ["v_add_f32 v%d, v%d, v%d" % (vLt + tl, a, b)]
            else:
                adds = ["v_add_f32 v%d, v%d, v%d" % (vLt + tl, vLt + tl, a), "v_add_f32 v%d, v%d, v%d" % (vLt + tl, vLt + tl, b)]
            return adds, ["v_cvt_pk_bf16_f32 v%d, v%d, v%d" % (PP(par, tl) + k, a, b)]
        for n, (tl, k) in enumerate(groups):
            a, b = TMP + (n % 4) * 2, TMP + (n % 4) * 2 + 1
            ea = "v_exp_f32 v%d, v%d" % (a, S(par, tl) + 2 * k)
            eb = "v_exp_f32 v%d, v%d" % (b, S(par, tl) + 2 * k + 1)
            if n:
                ad, cv = fin(n - 1)
                out += [ea] + ad[:1] + cv + [eb] + ad[1:]
            else:
                out += [ea, eb]
        ad, cv = fin(len(groups) - 1)
        return out + ad[:1] + cv + ad[1:] if len(ad) > 1 else out + ["s_nop 0"] + ad + cv
    need = lambda js: I("need", xrd=[("a", FB(j) + e) for j in js for e in range(4)])
    kread = lambda j, par: "ds_read_b128 %s, v%d offset:%d" % (rr("a", FB(j), 4), vB + par, j * 1024)

    JS = int(os.environ.get("JS", "8"))
    def iteration(par, qk, pv, barrier, jin, jout, dma=True, loop=None, evt=True):
        jin, jout = [JS if x == 6 else x for x in (jin, jout)]
        mq, mp = qk_mfmas(par ^ 1, qk), pv_mfmas(par, pv)
        mf = mq + mp
        nq, nm = len(mq), len(mf)
        G = Gaps(nm)
        pre = []
        first = {}
        for k, (j, _) in enumerate(mf):
            first.setdefault(j, k)
        rd = [(j, kread(j, par ^ 1)) for j in range(jin, 8) if qk] + \
             [(8 + j, "ds_read_b128 %s, v%d offset:%d" % (rr("a", FB(8 + j), 4), vB + par, v_off(j))) for j in range(8)]
        LA = 8 if len(qk) == 2 else JS
        lastv = -1
        for j, t in rd:
            g = first[j] - LA
            if nq == 0:
                pre.append(t)
            else:
                g = max(g, lastv + (1 if g > 0 else 0), 0)
                G.put(g, t)
                lastv = g
        for j in range(0, 16, 2):
            if j in first:
                if first[j] > 0:
                    G.nv[first[j] - 1].insert(0, need([j, j + 1]))
                else:
                    pre.append(need([j, j + 1]))
        tp = lastv + 1
        if jout:
            G.va[lastv].insert(0, "v_add_u32 v%d, s%d, v%d" % (vB + par, sRd, vL16))
            G.lightest(["s_add_u32 s%d, s%d, 0x4000" % (sRd, sRd), "s_and_b32 s%d, s%d, 0x1ffff" % (sRd, sRd)], 1, lastv - 1)
            if barrier and not os.environ.get("X_NOBAR"):
                G.put(tp, ["s_waitcnt vmcnt(8)", "s_barrier"])
            G.spread([kread(j, par) for j in range(jout)], tp, nm - 1)
        if dma and not os.environ.get("X_NODMA"):
            d = ["buffer_load_dwordx4 v%d, s[%d:%d], s%d offen offset:%d %s lds" % (vDma, sKV, sKV + 3, sG, q * 1024, WT) for q in range(4)]
            G.put(0, ["s_and_b32 s%d, s%d, 0x1ffff" % (sWr, sG), "s_add_u32 m0, s%d, s%d" % (sWr, sW4)])
            step = 2 * max(1, (tp - 1) // 8)
            for q in range(4):
                G.put(1 + q * step, d[q])
            G.lightest(["s_add_u32 s%d, s%d, 0x4000" % (sG, sG)], 2 + 3 * step, nm - 2)
        if evt and not os.environ.get("X_NOEVT"):
            G.lightest(["s_add_u32 s%d, s%d, 1" % (sStep, sStep)] + evt_check(), nq + 1, nm - 2)
        chk = []
        if len(pv) == 2:
            chk = ["v_max_f32 v%d, v%d, v%d" % (vU, vLt, vLt + 1), "v_cmp_lt_f32 vcc, s%d, v%d" % (sThr, vU)]
        else:
            chk = ["v_cmp_lt_f32 vcc, s%d, v%d" % (sThr, vLt + pv[0])]
        lab = p.newlabel("M_sl")
        tail.extend(["%s:" % lab] + [call("M_slow%d%d" % (par, tl)) for tl in pv] + ["s_branch %s_r" % lab])
        br = ["s_cbranch_vccnz %s" % lab, "%s_r:" % lab]
        accl = ["v_add_f32 v%d, v%d, v%d" % (vL + tl, vL + tl, vLt + tl) for tl in pv]
        if loop:
            G.put(nm - 1, ["s_sub_u32 s%d, s%d, 1" % (sCnt, sCnt)])
            G.put(nm - 1, ["s_cbranch_scc0 %s" % loop], post=True)
        if nq:
            G.put(nq - 1, br + accl)
            G.stream(sm_stream(par, pv, 1) + chk, 0, nq - 2)
            G.stream(sm_stream(par ^ 1, qk, 0), nq + 1, nm - 1)
        else:
            pre += sm_stream(par, pv, 1) + chk + br + accl
        if VERB:
            print("iteration", par, qk, pv, G.report())
        p.add(pre + G.emit([t for _, t in mf]))

    p.add(evt_check())
    mf0 = [t for _, t in qk_mfmas(0, (0, 1))]
    G = Gaps(16)
    red = []
    for k in range(2):
        b = RS + k * 16
        for e in range(4):
            red += ["v_add_f32 v%d, v%d, v%d" % (b + e, b + e, b + 4 + e), "v_add_f32 v%d, v%d, v%d" % (b + 8 + e, b + 8 + e, b + 12 + e)]
        red += ["v_add_f32 v%d, v%d, v%d" % (b + e, b + e, b + 8 + e) for e in range(4)]
    G.stream(red, 2, 8)
    for k in range(2):
        G.put(9 + k, "buffer_store_dwordx4 %s, v%d, s[%d:%d], s%d offen %s" % (rr("v", RS + k * 16, 4), vV, sY, sY + 3, sOff if k else sT2, WT))
    G.spread([kread(j, 1) for j in range(4)], 11, 15)
    p.add(G.emit(mf0))
    p("s_add_u32 s%d, s%d, 1" % (sStep, sStep))
    for tl in range(2):
        p.add(rowmax(0, tl, vU, vU + 1))
        p("v_add_f32 v%d, 0x%x, v%d" % (vU, f2u(BIAS), vU))
        for k in range(16):
            p("v_sub_f32 v%d, v%d, v%d" % (S(0, tl) + k, S(0, tl) + k, vU))
            p("v_sub_f32 v%d, v%d, v%d" % (CI(tl) + k, CI(tl) + k, vU))
    p.add(evt_check())
    p.add(sm_stream(0, (0, 1), 0))
    p("s_lshr_b32 s%d, s%d, 1" % (sT, sXcd))
    p("s_lshl_b32 s%d, s%d, 6" % (sT, sT))
    p("s_lshr_b32 s%d, s%d, 4" % (sT2, sIdx))
    p("s_add_u32 s%d, s%d, s%d" % (sT, sT, sT2))
    p("v_and_b32 v%d, 31, v%d" % (t0, vLane))
    p("v_lshl_add_u32 v%d, v%d, 1, s%d" % (t0, t0, sT))
    p("s_lshl_b32 s%d, s%d, 3" % (sT, sIdx))
    p("v_and_b32 v%d, 7, v%d" % (t1, vLane))
    p("v_add_u32 v%d, s%d, v%d" % (t1, sT, t1))
    p("v_cmp_gt_u32 vcc, 32, v%d" % vLane)
    p("v_cndmask_b32 v%d, v%d, v%d, vcc" % (vPoll, t0, t1))
    p("v_lshlrev_b32 v%d, 7, v%d" % (vPoll, vPoll))
    p("s_barrier")
    sUB = sBo
    p("s_andn2_b32 s%d, s%d, 7" % (sUB, sIdx))
    p("s_add_u32 s%d, s%d, s%d" % (sUB, sUB, sXcd))
    p("s_cmp_eq_u32 s%d, 7" % sI)
    p("s_cselect_b32 s%d, s%d, 64" % (sUB, sUB))
    p("s_add_u32 s%d, s%d, 32" % (sT, sXcd))
    p("s_cmp_eq_u32 s%d, 6" % sIdx)
    p("s_cselect_b32 s%d, s%d, s%d" % (sUB, sT, sUB))
    p("s_cmp_ge_u32 s%d, 40\ns_cbranch_scc1 M_nowob" % sUB)
    wo_src(B_WO, sUB)
    p("M_nowob:")
    st_()
    p("s_lshl_b32 s%d, s%d, 1" % (sCnt, sI))
    p("M_dd:")
    iteration(0, (0, 1), (0, 1), False, 4, 4)
    iteration(1, (0, 1), (0, 1), True, 4, 4, loop="M_dd")
    iteration(0, (0, 1), (0, 1), False, 4, 6)
    iteration(1, (0,), (0, 1), True, 6, 6)
    st_()
    def epilogue(tl, sblk):
        p("s_lshl_b32 s%d, s%d, 20" % (sT, sblk))
        p("s_lshl_b32 s%d, s%d, 15" % (sT2, sH))
        p("s_add_u32 s%d, s%d, s%d" % (sT, sT, sT2))
        p("s_lshl_b32 s%d, s%d, 11" % (sT2, sWave))
        p("s_add_u32 s%d, s%d, s%d" % (sCb, sT, sT2))
        p("v_mov_b32 v%d, v%d" % (vU, vL + tl))
        p("v_mov_b32 v%d, v%d" % (vU + 1, vL + tl))
        p("v_permlane32_swap_b32 v%d, v%d" % (vU, vU + 1))
        p("v_add_f32 v%d, v%d, v%d" % (vU, vU, vU + 1))
        p("v_rcp_f32 v%d, v%d" % (vU, vU))
        for a in range(4):
            T = Q(1, 0) + (a & 1) * 16
            for k in range(16):
                p("v_accvgpr_read_b32 v%d, a%d" % (T + k, O(tl, a) + k))
            for k in range(16):
                p("v_mul_f32 v%d, v%d, v%d" % (T + k, T + k, vU))
            p.add(pack_tile(T, T))
            for mm in range(2):
                p("buffer_store_dwordx4 %s, v%d, s[%d:%d], s%d offen offset:%d %s" % (rr("v", T + 4 * mm, 4), vCt, sC, sC + 3, sCb, mm * 512, WT))
            if a < 3:
                p("s_add_u32 s%d, s%d, 0x2000" % (sCb, sCb))
    epilogue(1, sI)
    p("s_cmp_ge_u32 s%d, 40\ns_cbranch_scc1 M_nowob2" % sUB)
    wo_reads(True, woB)
    wo_stores(True, sUB, woB, sY)
    p("M_nowob2:")
    st_()
    p("s_lshl_b32 s%d, s%d, 2" % (sCnt, sI))
    p("s_sub_u32 s%d, 28, s%d" % (sCnt, sCnt))
    p("M_ss:")
    iteration(0, (0,), (0,), False, 6, 6)
    iteration(1, (0,), (0,), True, 6, 6, loop="M_ss")
    p.add(publish(4))
    p.add(poll_check(3))
    bm_frag_loads(p, 0)
    vP = vA
    p("s_lshl_b32 s%d, s%d, 16" % (sT, sIdx))
    p("s_lshl_b32 s%d, s%d, 14" % (sT2, sWave))
    p("s_add_u32 s%d, s%d, s%d" % (sT, sT, sT2))
    srd(p, sO, ptr(D_WS), off_s=sT, off_imm=WS_KVP, nrec=16384)
    for j in range(2):
        for k in range(5):
            if k in (0, 4):
                p("s_mov_b32 s%d, %d" % (sT, j * 8192 + k * 1024))
            p("buffer_load_dwordx4 %s, v%d, s[%d:%d], s%d offen offset:%d %s" % (rr("a", aPA + j * 20 + k * 4, 4), vL16, sO, sO + 3, sT, (k & 3) * 1024, WT))
    p("s_lshr_b32 s%d, s%d, 3" % (sT, sIdx))
    p("s_lshl_b32 s%d, s%d, 2" % (sT, sT))
    p("s_lshr_b32 s%d, s%d, 1" % (sT2, sXcd))
    p("s_add_u32 s%d, s%d, s%d" % (sT, sT, sT2))
    p("s_lshl_b32 s%d, s%d, 3" % (sT, sT))
    p("s_add_u32 s%d, s%d, s%d" % (sT, sT, sI))
    p("s_mul_i32 s%d, s%d, 40960" % (sT, sT))
    srd(p, sY, ptr(D_WS), off_s=sT, off_imm=WS_WOA, nrec=40960)
    p("v_lshlrev_b32 v%d, 7, v0" % t0)
    p("s_mov_b32 s%d, 0x8000" % sT)
    p("buffer_load_dword v%d, v%d, s[%d:%d], 0 offen %s" % (vDum, t0, sY, sY + 3, WT))
    p("buffer_load_dword v%d, v%d, s[%d:%d], s%d offen %s" % (vDum, t0, sY, sY + 3, sT, WT))
    iteration(0, (0,), (0,), False, 6, 0, dma=False, evt=False)
    iteration(1, (), (0,), False, 0, 0, dma=False, evt=False)
    st_()
    p("s_sub_u32 s%d, 15, s%d" % (sCnt, sI))
    epilogue(0, sCnt)
    st_()
    Lr, SUM, KA, N = 96, 176, 200, 96
    for k in range(40):
        p("v_accvgpr_read_b32 v%d, a%d" % (Lr + k, aPA + k))
    for e in range(20):
        p("v_add_f32 v%d, v%d, v%d" % (Lr + e, Lr + e, Lr + 20 + e))
    p("s_and_b32 s%d, s%d, 1" % (sT, sI))
    p("s_lshl_b32 s%d, s%d, 16" % (sT, sT))
    p("v_add_u32 v%d, s%d, v%d" % (t0, sT, vDma))
    for k in range(5):
        p("ds_write_b128 v%d, %s offset:%d" % (t0, rr("v", Lr + 4 * k, 4), (k & 3) * 1024 + (k >> 2) * U))
    p("v_and_b32 v%d, 31, v%d" % (t2, vLane))
    p("v_min_u32 v%d, 20, v%d" % (t2, t2))
    p("v_and_b32 v%d, 32, v%d" % (t1, vLane))
    p("v_add_u32 v%d, v%d, v%d" % (t2, t1, t2))
    p("v_lshl_add_u32 v%d, v%d, 4, s%d" % (vP, t2, sT))
    p(call("M_phi"))
    p("s_waitcnt vmcnt(0) lgkmcnt(0)\ns_barrier")
    p.add(publish(5))
    for w in range(4):
        for k in range(5):
            p("ds_read_b128 %s, v%d offset:%d" % (rr("v", Lr + w * 20 + 4 * k, 4), vP, w * 4096 + (k & 3) * 1024 + (k >> 2) * U))
    sKq, sMb, sCc, sGc, sGw, sGw2, sWs, sRs, sW5, sDl = range(37, 47)
    sPC, sPW, sXO, sOut = sBO, sW, sO, sW2
    vDw, vC, vWf = 3, 4, 8
    SZ = 36864
    p("s_lshr_b32 s%d, s%d, 1" % (sKq, sXcd))
    p("s_lshr_b32 s%d, s%d, 3" % (sCc, sIdx))
    p("s_sub_u32 s%d, 15, s%d" % (sT, sI))
    p("s_bitcmp1_b32 s%d, 0" % sXcd)
    p("s_cselect_b32 s%d, s%d, s%d" % (sMb, sT, sI))
    p("s_cselect_b32 s%d, 5, 4" % sT2)
    p("v_mov_b32 v%d, s%d" % (vPoll + 1, sT2))
    p("s_and_b32 s%d, s2, 0x3e" % sT)
    p("v_bfe_u32 v%d, v%d, 1, 2" % (t1, vLane))
    p("v_lshl_add_u32 v%d, v%d, 6, s%d" % (t1, t1, sT))
    p("v_and_b32 v%d, 1, v%d" % (t2, vLane))
    p("v_add_lshl_u32 v%d, v%d, v%d, 7" % (vPoll, t1, t2))
    for e in range(20):
        p("v_add_f32 v%d, v%d, v%d" % (Lr + e, Lr + e, Lr + 20 + e))
        p("v_add_f32 v%d, v%d, v%d" % (Lr + 40 + e, Lr + 40 + e, Lr + 60 + e))
    for e in range(20):
        p("v_add_f32 v%d, v%d, v%d" % (SUM + e, Lr + e, Lr + 40 + e))
    for k in range(10):
        p("v_cvt_pk_bf16_f32 v%d, v%d, v%d" % (KA + k, SUM + 2 * k, SUM + 2 * k + 1))
    for r in (KA + 10, KA + 11, PH + 10, PH + 11):
        p("v_mov_b32 v%d, 0" % r)
    def num(N):
        for u in range(3):
            p("%s %s, %s, %s, %s" % (MF, rr("v", N, 16), rr("v", KA + 4 * u, 4), rr("v", PH + 4 * u, 4), rr("v", N, 16) if u else "0"))
    num(N)
    p("s_lshl_b32 s%d, s%d, 20" % (sT, sMb))
    p("s_lshl_b32 s%d, s%d, 18" % (sT2, sKq))
    p("s_add_u32 s%d, s%d, s%d" % (sT, sT, sT2))
    srd(p, sPC, ptr(D_WS), off_s=sT, off_imm=WS_CTX, nrec=32 * 8192)
    p("s_lshl_b32 s%d, s%d, 2" % (sT, sCc))
    p("s_add_u32 s%d, s%d, s%d" % (sT, sT, sKq))
    p("s_mul_i32 s%d, s%d, %d" % (sT, sT, 32 * 10240))
    srd(p, sPW, ptr(D_WS), off_s=sT, off_imm=WS_WOA, nrec=32 * 10240)
    p("s_mul_i32 s%d, s%d, 5120" % (sW5, sWave))
    p("v_add_u32 v%d, s%d, v%d" % (vDw, sW5, vL16))
    p("s_add_u32 s%d, s%d, 0x4000" % (sW5, sW5))
    p.add(poll_load("A"))
    p(call("M_phi"))
    num(N + 32)
    p("s_mov_b32 s%d, 0\ns_mov_b32 s%d, 0\ns_movk_i32 s%d, 0x1000\ns_mov_b32 s%d, 0\ns_mov_b32 s%d, 0" % (sGc, sGw, sGw2, sWs, sRs))
    sIc, sIw = sKo, sL2
    p("s_movk_i32 s%d, 0x4000\ns_movk_i32 s%d, 0x5000" % (sIc, sIw))
    p.add(poll_check("A"))
    p("s_barrier")
    st_()
    dC = [["s_add_u32 m0, s%d, s%d" % (sWs, sW4)]] + \
         ["buffer_load_dwordx4 v%d, s[%d:%d], s%d offen offset:%d %s lds" % (vDma, sPC, sPC + 3, sGc, k * 1024, WT) for k in range(4)]
    dW = [["s_add_u32 m0, s%d, s%d" % (sWs, sW5)]] + \
         ["buffer_load_dwordx4 v%d, s[%d:%d], s%d offen offset:%d %s lds" % (vDw, sPW, sPW + 3, sGw, k * 1024, WT) for k in range(4)] + \
         [["s_add_u32 m0, m0, 0x1000"], "buffer_load_dwordx4 v%d, s[%d:%d], s%d offen %s lds" % (vDw, sPW, sPW + 3, sGw2, WT)]
    dAdv = ["s_add_u32 s%d, s%d, s%d" % (sGc, sGc, sIc), "s_add_u32 s%d, s%d, s%d" % (sGw, sGw, sIw), "s_add_u32 s%d, s%d, s%d" % (sGw2, sGw2, sIw),
            "s_add_u32 s%d, s%d, %d" % (sWs, sWs, SZ), "s_cmp_eq_u32 s%d, %d" % (sWs, 4 * SZ), "s_cselect_b32 s%d, 0, s%d" % (sWs, sWs)]
    p("s_mov_b32 s%d, 2\nM_p3pre:" % sSpin)
    p.add(dC + dW + dAdv)
    p("s_sub_u32 s%d, s%d, 1\ns_cbranch_scc0 M_p3pre" % (sSpin, sSpin))
    p("v_lshlrev_b32 v%d, 7, v0" % t0)
    p("s_lshl_b32 s%d, s%d, 16" % (sT, sCc))
    p("buffer_load_dword v%d, v%d, s[%d:%d], s%d offen %s" % (vDum, t0, sPC, sPC + 3, sT, WT))
    p("s_add_u32 s%d, s%d, 0x8000" % (sT, sT))
    p("buffer_load_dword v%d, v%d, s[%d:%d], s%d offen %s" % (vDum, t0, sPC, sPC + 3, sT, WT))
    p("s_lshr_b32 s%d, s%d, 1" % (sT, sTT))
    p("s_mul_i32 s%d, s%d, 81920" % (sT, sT))
    srd(p, sY, ptr(D_WS), off_s=sT, off_imm=WS_OB, nrec=81920)
    p("s_mul_i32 s%d, s%d, 20" % (sT, sIdx))
    vO = vA
    p("v_and_b32 v%d, 15, v%d" % (t0, vLane))
    p("v_lshlrev_b32 v%d, 4, v%d" % (t0, t0))
    p("v_bfe_u32 v%d, v%d, 4, 1" % (t2, vLane))
    p("v_lshl_add_u32 v%d, v%d, 10, v%d" % (t0, t2, t0))
    p("v_lshrrev_b32 v%d, 5, v%d" % (t1, vLane))
    p("v_lshl_add_u32 v%d, v%d, 2, s%d" % (t1, t1, sT))
    for jj in range(3):
        if jj:
            p("v_add_u32 v%d, 8, v%d" % (t1, t1))
        p("v_lshrrev_b32 v%d, 5, v%d" % (t2, t1))
        p("v_lshl_add_u32 v%d, v%d, 12, v%d" % (vO + jj, t2, t0))
        p("v_bfe_u32 v%d, v%d, 3, 2" % (t2, t1))
        p("v_lshl_add_u32 v%d, v%d, 8, v%d" % (vO + jj, t2, vO + jj))
        p("v_and_b32 v%d, 7, v%d" % (t2, t1))
        p("v_lshl_add_u32 v%d, v%d, 1, v%d" % (vO + jj, t2, vO + jj))
    p("v_bfrev_b32 v%d, 1" % t1)
    p("v_cmp_gt_u32 vcc, 32, v%d" % vLane)
    p("v_cndmask_b32 v%d, v%d, v%d, vcc" % (vO + 2, t1, vO + 2))
    for tt in range(2):
        n0 = N + 32 * tt
        p("v_add_f32 v%d, 0x%x, v%d" % (n0 + 12, f2u(1e-6), n0 + 12))
        p("v_rcp_f32 v%d, v%d" % (n0 + 12, n0 + 12))
        for k in range(12):
            p("v_mul_f32 v%d, v%d, v%d" % (n0 + k, n0 + k, n0 + 12))
        for k in range(6):
            p("v_cvt_pk_bf16_f32 v%d, v%d, v%d" % (n0 + 16 + k, n0 + 2 * k, n0 + 2 * k + 1))
        for jj in range(3):
            p("buffer_store_dwordx2 %s, v%d, s[%d:%d], 0 offen offset:%d %s" % (rr("v", n0 + 16 + 2 * jj, 2), vO + jj, sY, sY + 3, tt * 2048, WT))
    MF16 = "v_mfma_f32_16x16x32_bf16"
    PA = 160
    pacc = lambda q, n: PA + (q * 5 + n) * 4
    pfr = lambda st, i: st * 36 + i * 4
    aOB = 80
    p("s_lshr_b32 s%d, s%d, 1" % (sT, sWave))
    p("s_lshl_b32 s%d, s%d, 2" % (sT, sT))
    p("s_add_u32 s%d, s%d, s%d" % (sT, sT, sKq))
    p("s_lshl_b32 s%d, s%d, 10" % (sT, sT))
    p("v_add_u32 v%d, s%d, v%d" % (vC, sT, vL16))
    for qq in range(1, 4):
        p("v_xor_b32 v%d, 0x%x, v%d" % (vC + qq, qq << 10, vC))
    p("s_and_b32 s%d, s%d, 1" % (sT, sWave))
    p("s_mul_i32 s%d, s%d, 5120" % (sT, sT))
    p("s_add_u32 s%d, s%d, 0x4000" % (sT, sT))
    p("v_add_u32 v%d, s%d, v%d" % (vWf, sT, vL16))
    for k in range(80):
        p("v_mov_b32 v%d, 0" % (PA + k))
    def p_reads(st):
        c = ["ds_read_b128 %s, v%d offset:%d" % (rr("a", pfr(st, qq), 4), vC + qq, st * 8192) for qq in range(4)]
        w = ["ds_read_b128 %s, v%d offset:%d" % (rr("a", pfr(st, 4 + n), 4), vWf, st * 10240 + n * 1024) for n in range(5)]
        return [w[0]] + c + w[1:]
    p_mf = lambda st: ["%s %s, %s, %s, %s" % (MF16, rr("v", pacc(qq, n), 4), rr("a", pfr(st, 4 + n), 4), rr("a", pfr(st, qq), 4), rr("v", pacc(qq, n), 4)) for n in range(5) for qq in range(4)]
    G = Gaps(40)
    G.spread(p_reads(1), 0, 12)
    G.put(19, ["s_waitcnt vmcnt(13) lgkmcnt(0)", "s_barrier"])
    G.put(13, ["s_add_u32 s%d, s%d, 1" % (sRs, sRs), "s_and_b32 s%d, s%d, 3" % (sRs, sRs)])
    G.put(14, ["s_mov_b32 s%d, %d" % (sDl, SZ), "s_cselect_b32 s%d, s%d, 0x%x" % (sDl, sDl, u32(-3 * SZ))])
    G.spread(["v_add_u32 v%d, s%d, v%d" % (r, sDl, r) for r in (vWf, vC, vC + 1, vC + 2, vC + 3)], 15, 18)
    G.spread(p_reads(0), 20, 32)
    for k, x in enumerate(dC):
        G.put(max(0, 4 * k - 1) + (1 if k == 0 else 0), x)
    for k, x in zip((20, 21, 25, 29, 33, 36, 37), dW):
        G.put(k, x)
    G.put(38, dAdv[:3]); G.put(39, dAdv[3:] + [WL])
    tail.extend(["M_p3:"] + G.emit(p_mf(0) + p_mf(1)) + [ret])
    p("s_waitcnt vmcnt(26)\ns_barrier")
    st_()
    p.add(p_reads(0))
    p(WL)
    for s in range(16):
        if s == 3:
            p.add(publish(6))
        if s == 9:
            p("s_lshr_b32 s%d, s%d, 4" % (sT, sIdx))
            p("v_min_u32 v%d, 19, v%d" % (t0, vLane))
            p("v_lshl_add_u32 v%d, v%d, 1, s%d" % (t0, t0, sT))
            p("v_lshrrev_b32 v%d, 3, v%d" % (t1, t0))
            p("v_lshlrev_b32 v%d, 6, v%d" % (t1, t1))
            p("v_and_b32 v%d, 7, v%d" % (t2, t0))
            p("v_add3_u32 v%d, v%d, v%d, 56" % (t1, t1, t2))
            p("v_add_u32 v%d, 16, v%d" % (t2, t0))
            p("v_cmp_gt_u32 vcc, 32, v%d" % t0)
            p("v_cndmask_b32 v%d, v%d, v%d, vcc" % (t0, t2, t1))
            p("v_and_b32 v%d, 31, v%d" % (t1, vLane))
            p("v_lshl_add_u32 v%d, v%d, 3, s%d" % (t1, t1, sXcd))
            p("v_cmp_gt_u32 vcc, 32, v%d" % vLane)
            p("v_cndmask_b32 v%d, v%d, v%d, vcc" % (vPoll, t1, t0))
            p("v_lshlrev_b32 v%d, 7, v%d" % (vPoll, vPoll))
            p("v_cndmask_b32 v%d, 6, 4, vcc" % (vPoll + 1))
            p.add(poll_load("B"))
        if s == 13:
            p.add(poll_check("B"))
            p("s_lshr_b32 s%d, s%d, 2" % (sT, sIdx))
            p("s_mul_i32 s%d, s%d, 102400" % (sT, sT))
            srd(p, sPC, ptr(D_WS), off_s=sT, off_imm=WS_WOB, nrec=102400)
            p("s_mov_b64 s[%d:%d], s[%d:%d]\ns_mov_b32 s%d, s%d" % (sPW, sPW + 1, sPC, sPC + 1, sPW + 2, sPC + 2))
            p("s_mov_b32 s%d, 0\ns_movk_i32 s%d, 0x4000\ns_movk_i32 s%d, 0x5000\ns_mov_b32 s%d, %d\ns_mov_b32 s%d, %d" % (sGc, sGw, sGw2, sIc, SZ, sIw, SZ))
            p("s_lshl_b32 s%d, s%d, 2" % (sTT, sXcd))
            p("s_and_b32 s%d, s%d, 3" % (sT, sIdx))
            p("s_add_u32 s%d, s%d, s%d" % (sTT, sTT, sT))
            p("s_mul_i32 s%d, s%d, 81920" % (sT, sTT))
            srd(p, sY, ptr(D_WS), off_s=sT, off_imm=WS_OB, nrec=81920)
        if s >= 13:
            ks0 = (s - 13) * 7
            p("s_lshl_b32 s%d, s%d, 10" % (sT, sWave))
            if ks0:
                p("s_add_u32 s%d, s%d, %d" % (sT, sT, ks0 * 4096))
            for ks in range(ks0, min(ks0 + 7, 20)):
                p("buffer_load_dwordx4 %s, v%d, s[%d:%d], s%d offen %s" % (rr("a", aOB + 4 * ks, 4), vL16, sY, sY + 3, sT, WT))
                p("s_addk_i32 s%d, 0x1000" % sT)
        p(call("M_p3"))
    st_()
    XS = 4 * 2560
    p("s_and_b32 s%d, s%d, 1" % (sT, sXcd))
    p("s_lshl_b32 s%d, s%d, 5" % (sT, sT))
    p("s_add_u32 s%d, s%d, s%d" % (sT, sT, sIdx))
    p("s_mul_i32 s%d, s%d, %d" % (sT, sT, 16 * XS))
    srd(p, sXO, ptr(D_WS), off_s=sT, off_imm=WS_XB, nrec=16 * XS)
    p("s_mul_i32 s%d, s%d, 2560" % (sT, sWave))
    p("v_add_u32 v%d, s%d, v%d" % (vDw, sT, vL16))
    p("v_lshl_add_u32 v%d, v%d, 3, s%d" % (vC, vLane, sT))
    def xfer(op, qq):
        b = PA + qq * 20
        for k in range(2):
            p("buffer_%s_dwordx4 %s, v%d, s[%d:%d], s%d offen offset:%d %s" % (op, rr("v", b + 4 * k, 4), vDw, sXO, sXO + 3, sT, k * 1024, WT))
        p("buffer_%s_dwordx2 %s, v%d, s[%d:%d], s%d offen offset:2048 %s" % (op, rr("v", b + 8, 2), vC, sXO, sXO + 3, sT, WT))
    for qq in range(1, 4):
        p("s_xor_b32 s%d, s%d, %d" % (sT, sKq, qq))
        p("s_lshl_b32 s%d, s%d, 2" % (sT, sT))
        p("s_add_u32 s%d, s%d, s%d" % (sT, sT, sKq))
        p("s_mul_i32 s%d, s%d, %d" % (sT, sT, XS))
        for k in range(10):
            p("v_cvt_pk_bf16_f32 v%d, v%d, v%d" % (PA + qq * 20 + k, PA + qq * 20 + 2 * k, PA + qq * 20 + 2 * k + 1))
        xfer("store", qq)
    BA = 32
    p("v_add_u32 v%d, %d, v%d" % (vWf, 10 * 5120, vL16))
    p("s_waitcnt vmcnt(9)\ns_barrier")
    bfr = lambda k: (k % 15) * 4
    brd = lambda k: "ds_read_b128 %s, v%d offset:%d" % (rr("a", bfr(k), 4), vWf if k >= 50 else vL16, (k % 50) * 1024)
    for k in range(10):
        p(brd(k))
    for k in range(100):
        ks, n = divmod(k, 5)
        a = rr("v", BA + 4 * n, 4)
        if n == 0:
            p.add([I("need", xrd=[("a", bfr(k + 4) + e) for e in range(4)])])
        p("%s %s, %s, %s, %s" % (MF16, a, rr("a", bfr(k), 4), rr("a", aOB + 4 * ks, 4), a if ks else "0"))
        if k + 10 < 100:
            p(brd(k + 10))
        if k == 40:
            p("s_waitcnt vmcnt(0)\ns_barrier")
            p.add(publish(7))
    st_()
    srd(p, sOut, ptr(D_OUT), nrec=2048 * 2560)
    p("v_and_b32 v%d, 15, v%d" % (t0, vLane))
    p("v_mul_u32_u24 v%d, 2560, v%d" % (vWf, t0))
    p("v_lshrrev_b32 v%d, 4, v%d" % (t0, vLane))
    p("v_lshl_add_u32 v%d, v%d, 3, v%d" % (vWf, t0, vWf))
    p("s_andn2_b32 s%d, s2, 6" % sT)
    p("v_and_b32 v%d, 3, v%d" % (t0, vLane))
    p("v_lshl_add_u32 v%d, v%d, 1, s%d" % (vPoll, t0, sT))
    p("v_lshlrev_b32 v%d, 7, v%d" % (vPoll, vPoll))
    p.add(poll_load(7))
    p("s_lshl_b32 s%d, s%d, 2" % (sT, sTT))
    p("s_add_u32 s%d, s%d, s%d" % (sT, sT, sWave))
    p("s_mul_i32 s%d, s%d, %d" % (sT, sT, 16 * 2560))
    p("s_lshr_b32 s%d, s%d, 2" % (sT2, sIdx))
    p("s_mul_i32 s%d, s%d, 160" % (sT2, sT2))
    p("s_add_u32 s%d, s%d, s%d" % (sOff, sT, sT2))
    for n in range(5):
        b = BA + 4 * n
        p("v_cvt_pk_bf16_f32 v%d, v%d, v%d" % (b, b, b + 1))
        p("v_cvt_pk_bf16_f32 v%d, v%d, v%d" % (b + 1, b + 2, b + 3))
        p("buffer_store_dwordx2 %s, v%d, s[%d:%d], s%d offen offset:%d" % (rr("v", b, 2), vWf, sOut, sOut + 3, sOff, 1280 + n * 32))
    p.add(poll_check(7))
    for qq in range(1, 4):
        p("s_xor_b32 s%d, s%d, %d" % (sT, sKq, qq))
        p("s_lshl_b32 s%d, s%d, 2" % (sT2, sKq))
        p("s_add_u32 s%d, s%d, s%d" % (sT, sT, sT2))
        p("s_mul_i32 s%d, s%d, %d" % (sT, sT, XS))
        xfer("load", qq)
    p("s_lshl_b32 s%d, s%d, 3" % (sT, sMb))
    p("s_lshr_b32 s%d, s%d, 1" % (sT2, sWave))
    p("s_lshl_b32 s%d, s%d, 2" % (sT2, sT2))
    p("s_add_u32 s%d, s%d, s%d" % (sT, sT, sT2))
    p("s_add_u32 s%d, s%d, s%d" % (sT, sT, sKq))
    p("s_mul_i32 s%d, s%d, %d" % (sT, sT, 16 * 2560))
    p("s_lshl_b32 s%d, s%d, 1" % (sT2, sCc))
    p("s_and_b32 s%d, s%d, 1" % (sOff, sWave))
    p("s_add_u32 s%d, s%d, s%d" % (sT2, sT2, sOff))
    p("s_mul_i32 s%d, s%d, 160" % (sT2, sT2))
    p("s_add_u32 s%d, s%d, s%d" % (sOff, sT, sT2))
    for qq in range(1, 4):
        for k in range(10):
            r = PA + qq * 20 + k
            p("v_lshlrev_b32 v%d, 16, v%d" % (t0, r))
            p("v_and_b32 v%d, 0xffff0000, v%d" % (r, r))
            p("v_add_f32 v%d, v%d, v%d" % (PA + 2 * k, PA + 2 * k, t0))
            p("v_add_f32 v%d, v%d, v%d" % (PA + 2 * k + 1, PA + 2 * k + 1, r))
    for n in range(5):
        b = pacc(0, n)
        p("v_cvt_pk_bf16_f32 v%d, v%d, v%d" % (b, b, b + 1))
        p("v_cvt_pk_bf16_f32 v%d, v%d, v%d" % (b + 1, b + 2, b + 3))
        p("buffer_store_dwordx2 %s, v%d, s[%d:%d], s%d offen offset:%d" % (rr("v", b, 2), vWf, sOut, sOut + 3, sOff, n * 32))
    st_()
    st_.dump(vtmp=t0)
    p("M_exit:\ns_endpgm")
    p("M_event:")
    for tl, tri in ((1, sLoTri), (0, sHiTri)):
        p("s_sub_u32 s%d, s%d, s%d" % (sT, sStep, tri))
        p("s_cmp_gt_u32 s%d, 1\ns_cbranch_scc1 M_ev_n%d" % (sT, tl))
        p("s_cmp_eq_u32 s%d, 1\ns_cbranch_scc1 M_ev_full%d" % (sT, tl))
        for r0 in range(0, 16, 4):
            for r in range(r0, r0 + 4):
                p("v_cmp_gt_i32 s[%d:%d], %d, v%d" % (84 + 2 * (r & 3), 85 + 2 * (r & 3), 8 * (r >> 2) + (r & 3), vLim))
            for r in range(r0, r0 + 4):
                p("v_cndmask_b32 v%d, v%d, v%d, s[%d:%d]" % (CI(tl) + r, CI(tl) + r, vNeg, 84 + 2 * (r & 3), 85 + 2 * (r & 3)))
        p("s_branch M_ev_n%d" % tl)
        p("M_ev_full%d:" % tl)
        for r in range(16):
            p("v_mov_b32 v%d, v%d" % (CI(tl) + r, vNeg))
        p("M_ev_n%d:" % tl)
    p("s_cmp_lg_u32 s%d, 4\ns_cbranch_scc1 M_ev_a" % sStep)
    p.add(publish(3))
    p("M_ev_a:\ns_cmp_lg_u32 s%d, 9\ns_cbranch_scc1 M_ev_b" % sStep)
    p.add(poll_load("KV"))
    p("M_ev_b:\ns_cmp_lg_u32 s%d, 12\ns_cbranch_scc1 M_ev_c" % sStep)
    p.add(poll_check("KV"))
    p("M_ev_c:\ns_cmp_lg_u32 s%d, s%d\ns_cbranch_scc1 M_ev_d" % (sStep, sP2))
    p.add(poll_load(3))
    p("M_ev_d:\n" + ret)
    p.add(tail)
    for par in range(2):
        for tl in range(2):
            p("M_slow%d%d:" % (par, tl))
            p("s_nop 15")
            p.add(rowmax(par, tl, vU + 2, vU + 3))
            p("v_add_f32 v%d, 0x%x, v%d" % (vU + 2, f2u(BIAS), vU + 2))
            p("v_max_f32 v%d, 0, v%d" % (vU + 2, vU + 2))
            p("v_exp_f32 v%d, -v%d" % (vU + 3, vU + 2))
            for k in range(16):
                for b in (S(par, tl), S(par ^ 1, tl), CI(tl)):
                    p("v_sub_f32 v%d, v%d, v%d" % (b + k, b + k, vU + 2))
            p("v_mul_f32 v%d, v%d, v%d" % (vL + tl, vL + tl, vU + 3))
            for k in range(0, 64, 8):
                for e in range(8):
                    p("v_accvgpr_read_b32 v%d, a%d" % (TMP + 8 + e, O(tl, 0) + k + e))
                for e in range(8):
                    p("v_mul_f32 v%d, v%d, v%d" % (TMP + 8 + e, TMP + 8 + e, vU + 3))
                for e in range(8):
                    p("v_accvgpr_write_b32 a%d, v%d" % (O(tl, 0) + k + e, TMP + 8 + e))
            p.add(sm_stream(par, (tl,), 0))
            p.add(sm_stream(par, (tl,), 1))
            p("s_nop 1")
            p(WL + "\n" + ret)
    if os.environ.get("NOST"):
        p.ins = [I("buffer_load_dword v%d, off, s[%d:%d], 0" % (vA + 1, sD, sD + 3)) if (i.mn == "buffer_store_dwordx4" and ("s[16:19]" in i.text or "s[24:27]" in i.text)) else i for i in p.ins]
    if os.environ.get("NOATOM"):
        p.ins = [i for i in p.ins if not (i.mn.startswith("buffer_atomic") or (i.kind == "branch" and i.target.startswith("M_poll") and "_" not in i.target[7:]))]
    p.finish()
    return p
```

```python
import re

TRANS = ("v_exp_f32", "v_log_f32", "v_rcp_f32", "v_rsq_f32", "v_sqrt_f32", "v_sin_f32", "v_cos_f32")
_REG = re.compile(r"^(-|abs\()?([sva])(?:(\d+)|\[(\d+):(\d+)\])\)?$")


def regs_of(tok):
    tok = tok.strip()
    if tok in ("vcc", "exec", "m0", "scc"):
        return [tok]
    if tok in ("vcc_lo", "vcc_hi"):
        return ["vcc"]
    if tok in ("exec_lo", "exec_hi"):
        return ["exec"]
    m = _REG.match(tok)
    if not m:
        return []
    f = m.group(2)
    if m.group(3) is not None:
        return [(f, int(m.group(3)))]
    return [(f, i) for i in range(int(m.group(4)), int(m.group(5)) + 1)]


def split_ops(s):
    out, cur, d = [], "", 0
    for ch in s:
        if ch in "[(":
            d += 1
        if ch in "])":
            d -= 1
        if ch == "," and d == 0:
            out.append(cur.strip())
            cur = ""
        else:
            cur += ch
    if cur.strip():
        out.append(cur.strip())
    return out


class I:
    __slots__ = ("text", "mn", "kind", "rd", "wr", "ops", "mods", "label", "target", "passes",
                 "srcc", "srcab", "data", "cnt", "auto", "note", "xrd")

    def __init__(self, text, note=None, xrd=()):
        self.text = text.strip()
        self.note = note
        self.label = None
        self.target = None
        self.passes = 0
        self.srcc = []
        self.srcab = []
        self.data = []
        self.cnt = None
        self.auto = False
        self.rd, self.wr = set(), set()
        self.mods = []
        self.ops = []
        if self.text.endswith(":"):
            self.kind = "label"
            self.label = self.text[:-1]
            self.mn = ""
            return
        if self.text == "need":
            self.kind = "need"
            self.mn = ""
            self.text = "; need"
            self.rd = set(xrd)
            return
        if self.text.startswith(".") or self.text.startswith(";"):
            self.kind = "dir"
            self.mn = ""
            return
        p = self.text.split(None, 1)
        self.mn = mn = p[0]
        rest = p[1] if len(p) > 1 else ""
        ops = split_ops(rest)
        if ops:
            w = ops[-1].split()
            ops[-1] = w[0]
            self.mods = w[1:]
        self.ops = ops
        R = [regs_of(o) for o in ops]
        flat = lambda xs: [r for x in xs for r in x]
        rd, wr = [], []
        if mn.startswith("v_mfma"):
            self.kind = "mfma"
            self.passes = 8 if "32x32x16" in mn else 4
            wr = R[0]
            rd = flat(R[1:])
            self.srcab = R[1] + R[2]
            self.srcc = R[3]
        elif mn.startswith("v_cmp"):
            self.kind = "valu"
            wr = R[0]
            rd = flat(R[1:])
        elif mn.startswith("v_permlane32_swap") or mn.startswith("v_permlane16_swap") or mn == "v_swap_b32":
            self.kind = "valu"
            wr = flat(R)
            rd = flat(R)
        elif mn in ("v_add_co_u32", "v_sub_co_u32", "v_addc_co_u32", "v_subb_co_u32"):
            self.kind = "valu"
            wr = R[0] + R[1]
            rd = flat(R[2:])
        elif mn.startswith("v_"):
            self.kind = "trans" if mn in TRANS else "valu"
            wr = R[0] if R else []
            rd = flat(R[1:])
            if mn.startswith("v_fmac") or mn.startswith("v_writelane") or mn.startswith("v_dot2c"):
                rd += R[0]
        elif mn.startswith("ds_read") or mn.startswith("ds_bpermute") or mn.startswith("ds_swizzle") or mn.startswith("ds_permute"):
            self.kind = "ds"
            self.cnt = "lgkm"
            wr = R[0]
            rd = flat(R[1:])
        elif mn.startswith("ds_"):
            self.kind = "ds"
            self.cnt = "lgkm"
            rd = flat(R)
        elif mn.startswith("buffer_load") or mn.startswith("global_load"):
            self.kind = "vmem"
            self.cnt = "vm"
            if "lds" in self.mods:
                rd = flat(R) + ["m0"]
                self.kind = "dma"
            else:
                wr = R[0]
                rd = flat(R[1:])
        elif mn.startswith("buffer_store"):
            self.kind = "vmem"
            self.cnt = "vm"
            rd = flat(R)
            self.data = R[0]
        elif mn.startswith("global_store"):
            self.kind = "vmem"
            self.cnt = "vm"
            rd = flat(R)
            self.data = R[1]
        elif mn.startswith("buffer_atomic"):
            self.kind = "vmem"
            self.cnt = "vm"
            rd = flat(R)
            if "sc0" in self.mods:
                wr = R[0]
        elif mn.startswith("buffer_wbl2") or mn.startswith("buffer_inv"):
            self.kind = "vmem"
            self.cnt = "vm"
        elif mn.startswith("s_load") or mn.startswith("s_buffer_load") or mn in ("s_memtime", "s_memrealtime"):
            self.kind = "smem"
            self.cnt = "smem"
            wr = R[0]
            rd = flat(R[1:])
        elif mn in ("s_branch",) or mn.startswith("s_cbranch"):
            self.kind = "branch"
            self.target = ops[0]
            if "scc" in mn:
                rd = ["scc"]
            elif "vcc" in mn:
                rd = ["vcc"]
            elif "exec" in mn:
                rd = ["exec"]
        elif mn == "s_call_b64":
            self.kind = "call"
            self.target = ops[1]
            wr = R[0]
        elif mn == "s_setpc_b64":
            self.kind = "ret"
            rd = R[0]
        elif mn == "s_endpgm":
            self.kind = "end"
        elif mn == "s_waitcnt":
            self.kind = "wait"
        elif mn == "s_nop":
            self.kind = "nop"
        elif mn in ("s_barrier", "s_sleep", "s_setprio"):
            self.kind = "salu"
        elif mn.startswith("s_cmp") or mn.startswith("s_bitcmp"):
            self.kind = "salu"
            rd = flat(R)
            wr = ["scc"]
        elif mn.startswith("s_"):
            self.kind = "salu"
            wr = list(R[0]) if R else []
            rd = flat(R[1:])
            if "saveexec" in mn:
                wr += ["exec"]
                rd += ["exec"]
            if mn.startswith("s_cselect") or mn.startswith("s_addc") or mn.startswith("s_subb"):
                rd += ["scc"]
            if mn in ("s_addk_i32", "s_mulk_i32") or mn.startswith("s_bitset"):
                rd += R[0]
            if not (mn.startswith("s_mov") or mn.startswith("s_cselect") or mn.startswith("s_mul") or mn.startswith("s_getreg") or mn.startswith("s_getpc")):
                wr += ["scc"]
        else:
            raise ValueError("unknown instruction: " + text)
        self.rd, self.wr = set(rd) | set(xrd), set(wr)

    def states(self):
        if self.kind in ("label", "dir", "need"):
            return 0
        if self.kind == "nop":
            return int(self.ops[0], 0) + 1
        return 1


def jump(text, targets):
    i = I(text)
    i.kind = "jump"
    i.target = list(targets)
    return i


def is_valu(i):
    return i.kind in ("valu", "trans")


def vec(rs):
    return {r for r in rs if isinstance(r, tuple) and r[0] in "va"}


def sca(rs):
    return {r for r in rs if r == "vcc" or (isinstance(r, tuple) and r[0] == "s")}


def need_states(p, c):
    n = 0
    if p.mn.startswith("v_pk_") and c.kind == "mfma":
        n = 5
    if is_valu(p):
        pw = vec(p.wr)
        if c.kind == "mfma" and pw & c.rd:
            n = max(n, 2)
        if p.kind == "trans" and c.kind in ("valu", "mfma", "vmem", "ds", "dma") and pw & c.rd:
            n = max(n, 1)
        if (c.mn.startswith("v_readfirstlane") or c.mn.startswith("v_readlane")) and pw & c.rd:
            n = max(n, 1)
        if c.mn.startswith("v_permlane") and pw & c.rd:
            n = max(n, 2)
        if is_valu(c) and any(m.startswith("row_") or m.startswith("quad_perm") or m.startswith("wave_") for m in c.mods) and pw & c.rd:
            n = max(n, 2)
        ps = sca(p.wr)
        if ps & c.rd:
            if is_valu(c):
                n = max(n, 4 if (c.mn.startswith("v_readlane") or c.mn.startswith("v_writelane")) else 2)
            if c.kind in ("vmem", "dma"):
                n = max(n, 5)
            if c.kind in ("salu", "branch", "smem"):
                n = max(n, 1)
        if "exec" in p.wr:
            n = max(n, 5)
    if p.kind == "mfma":
        big = p.passes == 8
        D = p.wr
        if c.kind == "mfma":
            if D & set(c.srcab):
                n = max(n, 12 if big else 8)
            cc = set(c.srcc)
            if D & cc and not (cc == D and c.passes == p.passes):
                n = max(n, 10 if big else 6)
            if D & c.wr and not (c.wr == D and cc == D):
                n = max(n, 10 if big else 6) if c.wr != D else n
        elif is_valu(c) or c.kind in ("vmem", "ds", "dma"):
            if D & (c.rd | c.wr):
                n = max(n, 12 if big else 8)
        if is_valu(c) and set(p.srcc) & c.wr:
            n = max(n, 7 if big else 3)
    if p.kind == "salu" and "m0" in p.wr and c.kind == "dma":
        n = max(n, 1)
    if p.kind == "vmem" and len(p.data) >= 3 and set(p.data) & c.wr:
        n = max(n, 2 if is_valu(c) else 1)
    return n


class Prog:
    def __init__(self):
        self.ins = []
        self._lab = 0

    def __call__(self, text, **kw):
        for line in text.split("\n"):
            line = line.split(";")[0].strip() if not line.strip().startswith(";") else line.strip()
            if line:
                self.ins.append(I(line, **kw))

    def add(self, items):
        for x in items:
            if isinstance(x, I):
                self.ins.append(x)
            elif isinstance(x, (list, tuple)):
                self.add(x)
            else:
                self(x)

    def newlabel(self, base="L"):
        self._lab += 1
        return "%s_%d" % (base, self._lab)

    def _cfg(self):
        ins = self.ins
        lab = {i.label: k for k, i in enumerate(ins) if i.kind == "label"}
        succ = [[] for _ in ins]
        calls = {}
        for k, i in enumerate(ins):
            if i.kind == "call":
                calls.setdefault(i.target, []).append(k + 1)
        cur = []
        for k, i in enumerate(ins):
            if i.kind == "label" and i.label in calls:
                pv = ins[k - 1]
                if pv.kind in ("ret", "end", "jump") or pv.mn == "s_branch":
                    cur = []
                cur = cur + [i.label]
            if i.kind == "end":
                continue
            if i.kind == "jump":
                succ[k] = [lab[t] for t in i.target]
                continue
            if i.kind == "ret":
                succ[k] = [t for c in cur for t in calls[c]]
                continue
            if i.kind == "call":
                succ[k] = [lab[i.target]]
                continue
            if i.kind == "branch":
                succ[k].append(lab[i.target])
                if i.mn == "s_branch":
                    continue
            if k + 1 < len(ins):
                succ[k].append(k + 1)
        pred = [[] for _ in ins]
        for k, s in enumerate(succ):
            for t in s:
                pred[t].append(k)
        return succ, pred

    @staticmethod
    def _parse_wait(i):
        vm = re.search(r"vmcnt\((\d+)\)", i.text)
        lg = re.search(r"lgkmcnt\((\d+)\)", i.text)
        return (int(vm.group(1)) if vm else None, int(lg.group(1)) if lg else None)

    def insert_waits(self):
        while True:
            succ, pred = self._cfg()
            ins = self.ins
            n = len(ins)
            IN = {(0, None): {}}
            work = [(0, None)]
            needc = {}

            def want(i, st):
                vm = lg = None
                for r in (i.rd | i.wr):
                    e = st.get(r)
                    if e is None:
                        continue
                    if e[0] == "vm":
                        if i.cnt == "vm" and r in i.wr and r not in i.rd:
                            continue
                        vm = e[1] if vm is None else min(vm, e[1])
                    elif e[0] == "lgkm":
                        if i.cnt == "lgkm" and r in i.wr and r not in i.rd:
                            continue
                        lg = e[1] if lg is None else min(lg, e[1])
                    else:
                        lg = 0
                if lg is not None and any(e[0] == "smem" for e in st.values()):
                    lg = 0
                if vm is not None:
                    vm = min(vm, 63)
                if lg is not None:
                    lg = min(lg, 15)
                return vm, lg

            def apply_wait(st, vm, lg):
                out = {}
                for r, e in st.items():
                    if e[0] == "vm" and vm is not None and e[1] >= vm:
                        continue
                    if e[0] == "lgkm" and lg is not None and e[1] >= lg:
                        continue
                    if e[0] == "smem" and lg == 0:
                        continue
                    out[r] = e
                return out

            while work:
                key = work.pop()
                k, ctx = key
                i = ins[k]
                st = IN[key]
                if i.kind == "wait":
                    st = apply_wait(st, *self._parse_wait(i))
                elif i.kind not in ("label", "dir"):
                    vm, lg = want(i, st)
                    if vm is not None or lg is not None:
                        needc[key] = (vm, lg)
                        st = apply_wait(st, vm, lg)
                    elif key in needc:
                        del needc[key]
                    if i.cnt:
                        cls = ("vm",) if i.cnt == "vm" else ("lgkm",)
                        st = {r: ((e[0], min(e[1] + 1, 99)) if e[0] in cls else e) for r, e in st.items()}
                        for r in i.wr:
                            st[r] = (i.cnt, 0)
                if i.kind == "call":
                    assert ctx is None, "nested call"
                    nxt = [(succ[k][0], k + 1)]
                elif i.kind == "ret":
                    nxt = [(ctx, None)]
                else:
                    nxt = [(t, ctx) for t in succ[k]]
                for t in nxt:
                    old = IN.get(t)
                    if old is None:
                        IN[t] = dict(st)
                        work.append(t)
                    else:
                        ch = False
                        for r, e in st.items():
                            o = old.get(r)
                            if o is None or (o[0] == e[0] and e[1] < o[1]):
                                old[r] = e
                                ch = True
                            elif o[0] != e[0]:
                                raise ValueError("mixed counters on %s at %s" % (r, ins[t[0]].text))
                        if ch:
                            work.append(t)
            need = {}
            mn = lambda x, y: y if x is None else (x if y is None else min(x, y))
            for (k, ctx), (vm, lg) in needc.items():
                o = need.get(k, (None, None))
                need[k] = (mn(o[0], vm), mn(o[1], lg))
            if not need:
                return
            out = []
            for k, i in enumerate(ins):
                if k in need:
                    vm, lg = need[k]
                    t = "s_waitcnt" + (" vmcnt(%d)" % vm if vm is not None else "") + (" lgkmcnt(%d)" % lg if lg is not None else "")
                    w = I(t)
                    w.auto = True
                    out.append(w)
                out.append(i)
            self.ins = out

    def insert_nops(self, verbose=False):
        total = 0
        while True:
            succ, pred = self._cfg()
            ins = self.ins
            add = {}
            for k, c in enumerate(ins):
                if c.kind in ("label", "dir", "nop", "wait", "end", "need"):
                    continue
                worst = 0
                stack = [(p, 0) for p in pred[k]]
                seen = {}
                while stack:
                    p, d = stack.pop()
                    if d >= 12 or seen.get(p, 99) <= d:
                        continue
                    seen[p] = d
                    pi = ins[p]
                    if pi.kind not in ("label", "dir", "nop", "wait", "need"):
                        worst = max(worst, need_states(pi, c) - d)
                    d2 = d + pi.states() + add.get(p, 0)
                    for q in pred[p]:
                        stack.append((q, d2))
                if worst > 0:
                    add[k] = worst
            if not add:
                return total
            out = []
            for k, i in enumerate(ins):
                if k in add:
                    w = I("s_nop %d" % (add[k] - 1))
                    w.auto = True
                    out.append(w)
                    total += 1
                    if verbose:
                        print("nop %d before %s" % (add[k], i.text))
                out.append(i)
            self.ins = out

    def finish(self, verbose=False):
        self.insert_waits()
        self.insert_nops(verbose)

    def text(self):
        out = []
        for i in self.ins:
            if i.kind == "need":
                continue
            if i.kind == "label" or i.kind == "dir":
                out.append(i.text)
            else:
                out.append("  " + i.text + (" ; auto" if i.auto else "") + (" ; " + i.note if i.note else ""))
        return "\n".join(out) + "\n"

    def maxreg(self, f):
        m = -1
        for i in self.ins:
            for r in (i.rd | i.wr):
                if isinstance(r, tuple) and r[0] == f:
                    m = max(m, r[1])
        return m


def rr(f, lo, n=1):
    return "%s%d" % (f, lo) if n == 1 else "%s[%d:%d]" % (f, lo, lo + n - 1)


def interleave(mfmas, slots):
    out = list(slots.get(-1, []))
    for k, m in enumerate(mfmas):
        out.append(m)
        out += slots.get(k, [])
    return out


def spread(items, lo, hi, slots):
    n = len(items)
    w = hi - lo + 1
    for k, it in enumerate(items):
        s = lo + (k * w) // n
        slots.setdefault(s, [])
        if isinstance(it, (list, tuple)):
            slots[s] += list(it)
        else:
            slots[s].append(it)


def kernel_text(name, prog, sgprs=102, force_vgpr=None):
    nv = prog.maxreg("v") + 1
    na = prog.maxreg("a") + 1
    acc = max(4, (nv + 3) // 4 * 4)
    tot = acc + na if na else nv
    if force_vgpr:
        tot = max(tot, force_vgpr)
    body = ".text\n.globl %s\n.p2align 8\n.type %s,@function\n%s:\n" % (name, name, name) + prog.text()
    desc = """.section .rodata,"a"
.p2align 6
.amdhsa_kernel %s
  .amdhsa_next_free_vgpr %d
  .amdhsa_next_free_sgpr %d
  .amdhsa_accum_offset %d
  .amdhsa_group_segment_fixed_size 0
  .amdhsa_kernarg_size 104
  .amdhsa_user_sgpr_count 2
  .amdhsa_user_sgpr_kernarg_segment_ptr 1
  .amdhsa_system_sgpr_workgroup_id_x 1
.end_amdhsa_kernel
""" % (name, tot, sgprs, acc)
    return body, desc


import os
STAMPS = bool(int(os.environ.get("STAMPS", "0")))
WS_STAMP = 200 << 20
class Stamper:
    def __init__(self, p, vreg, sreg=100, kid=0):
        self.p, self.v, self.s, self.n, self.kid = p, vreg, sreg, 0, kid
    def ins(self, n=None):
        if not STAMPS:
            return []
        if n is None:
            n = self.n
            self.n += 1
        if n >= 31:
            self.n = 31
            return []
        return ["s_memtime s[%d:%d]" % (self.s, self.s + 1), "s_memrealtime s[%d:%d]" % (self.s - 2, self.s - 1), "s_waitcnt lgkmcnt(0)",
                "v_writelane_b32 v%d, s%d, %d" % (self.v, self.s, n), "v_writelane_b32 v%d, s%d, %d" % (self.v, self.s - 2, 32 + n)]
    def __call__(self, n=None):
        self.p.add(self.ins(n))
    def dump(self, vtmp=1):
        if not STAMPS:
            return
        p = self.p
        p("s_memrealtime s[%d:%d]\ns_waitcnt lgkmcnt(0)\nv_writelane_b32 v%d, s%d, %d" % (self.s, self.s + 1, self.v, self.s, self.n))
        p("s_load_dwordx2 s[96:97], s[0:1], 96\ns_waitcnt lgkmcnt(0) vmcnt(0)")
        p("s_add_u32 s96, s96, 0x%x\ns_addc_u32 s97, s97, 0\ns_mov_b32 s98, 0x100000\ns_mov_b32 s99, 0x20000" % (WS_STAMP + (self.kid << 20)))
        p("v_lshlrev_b32 v%d, 2, v0\ns_lshl_b32 s95, s2, 10" % vtmp)
        p("buffer_store_dword v%d, v%d, s[96:99], s95 offen" % (self.v, vtmp))


def cost(t):
    i = t if isinstance(t, I) else I(t)
    if i.kind in ("label", "dir"):
        return 0
    if i.kind == "trans":
        return 8
    if i.kind == "branch":
        return 8
    if i.mn == "s_barrier":
        return 16
    return 4

def isv(t):
    i = t if isinstance(t, I) else I(t)
    return i.kind in ("valu", "trans")

class Gaps:
    def __init__(self, n, budget=24):
        self.n, self.budget = n, budget
        self.nv = [[] for _ in range(n)]
        self.va = [[] for _ in range(n)]
        self.post = [[] for _ in range(n)]
    def load(self, g):
        c = sum(cost(t) for t in self.nv[g])
        c = max(0, c - 4)
        c += sum(cost(t) for t in self.va[g])
        if self.post[g]:
            c += sum(cost(t) for t in self.post[g]) + (8 if self.va[g] else 0)
        return c
    def put(self, g, items, post=False):
        if not isinstance(items, (list, tuple)):
            items = [items]
        for t in items:
            if post:
                self.post[g].append(t)
            elif isv(t):
                self.va[g].append(t)
            else:
                self.nv[g].append(t)
    def spread(self, items, lo, hi):
        n, w = len(items), hi - lo + 1
        for k, it in enumerate(items):
            self.put(lo + (k * w) // n, it)
    def lightest(self, items, lo, hi):
        g = min(range(lo, hi + 1), key=lambda x: (len(self.nv[x]), x))
        self.put(g, items)
        return g
    def stream(self, items, lo, hi):
        for b in range(4, 200, 4):
            g, plan, ld = lo, [], {x: self.load(x) for x in range(lo, hi + 1)}
            ok = True
            for t in items:
                c = cost(t)
                while g <= hi and ld[g] + c > b:
                    g += 1
                if g > hi:
                    ok = False
                    break
                ld[g] += c
                plan.append(g)
            if ok:
                for g, t in zip(plan, items):
                    self.va[g].append(t)
                return plan[-1] if plan else lo
        raise ValueError("stream does not fit")
    def gap(self, g):
        return self.nv[g] + self.va[g] + self.post[g]
    def emit(self, mfmas, lo=0, hi=None):
        out = []
        for k in range(lo, self.n if hi is None else hi):
            out.append(mfmas[k])
            out += self.gap(k)
        return out
    def report(self):
        return [self.load(g) for g in range(self.n)]


class Gaps16(Gaps):
    def __init__(self, n):
        Gaps.__init__(self, n, 8)
    def load(self, g):
        c, ns = 0, 0
        for t in self.nv[g] + self.post[g]:
            i = t if isinstance(t, I) else I(t)
            if i.kind in ("label", "dir"):
                continue
            if i.kind == "ds":
                c += 4
            elif i.kind in ("dma", "vmem"):
                c += 8
            elif i.kind == "branch":
                c += 10
            elif i.mn == "s_barrier":
                c += 8
            else:
                ns += 1
        c += 4 * max(0, ns - 1)
        return c + sum(cost(t) for t in self.va[g])
    def stream(self, items, lo, hi):
        n, cs = len(items), [cost(t) for t in items]
        base = [self.load(g) for g in range(lo, hi + 1)]
        INF = float("inf")
        m = hi - lo + 1
        best = [[INF] * (n + 1) for _ in range(m + 1)]
        prev = [[0] * (n + 1) for _ in range(m + 1)]
        best[0][0] = 0
        for g in range(m):
            for a in range(n + 1):
                if best[g][a] == INF:
                    continue
                ld = base[g]
                for b in range(a, n + 1):
                    if b > a:
                        ld += cs[b - 1]
                    ov = max(0, ld - self.budget)
                    v = best[g][a] + ov + 0.001 * ov * ov
                    if v < best[g + 1][b]:
                        best[g + 1][b] = v
                        prev[g + 1][b] = a
                    if ov > 64:
                        break
        b = n
        for g in range(m, 0, -1):
            a = prev[g][b]
            self.va[lo + g - 1] += items[a:b]
            b = a
```

```python
from asmlib import *
from layout import *
from k_p1 import srd, x_rd_addr, w_rd_addr, MF
import os, struct

def f2u(x):
    return struct.unpack("<I", struct.pack("<f", x))[0]

NEG = 0xF149F2CA
THRESH = int(os.environ.get("THRESH", "0x5F800000"), 0)
BIAS = float(os.environ.get("BIAS", "40"))
QSCALE = f2u((128 ** -0.5) * 1.4426950408889634)
LOG2E = f2u(1.4426950408889634)
WT = os.environ.get("WT", "sc1")
PREFETCH = int(os.environ.get("PREFETCH", "2"))
NTW = os.environ.get("NTW", "nt")
WE = int(os.environ.get("WE", "10"))
CODEPF = int(os.environ.get("CODEPF", "0"))
WBL2 = int(os.environ.get("WBL2", "0"))
VERB = int(os.environ.get("VERB", "0"))
U = 16384
M16 = "v_mfma_f32_16x16x32_bf16"
u32 = lambda x: x & 0xffffffff

def L(f, *a, **k):
    q = Prog()
    f(q, *a, **k)
    return q.ins

def build_main():
    p = Prog()
    sX, sW, sW2, sO, sD, sBO = 4, 8, 12, 16, 20, 24
    sBF, sPhi, sY, sC, sKV = sW2, sO, sX, sW, sBO
    sH, sI, sWave, sW4, sT, sT2, sOff, sXcd, sIdx, sTB, sCB, sHi, sLo = range(28, 41)
    sM, sS, sKo, sRet, sTT, sL2, sSpin, sBo = 41, 44, 47, 48, 50, 51, 52, 53
    sRd, sGv, sG, sIt, sNb, sTriA, sTriB, sThr, sCnt, sCb = range(37, 47)
    sMask, sNext, sKeep, sW2k, sNlo, sCont = 54, 92, 93, 94, 95, 82
    P = 56
    ptr = lambda off: P + off // 4
    vLane = 1
    vX, vW, vXr, vWr = 2, 6, 10, 14
    vL16, t0, t1, t2, vDum, vStamp, vA = 22, 23, 24, 25, 26, 27, 28
    vGo = vA + 1
    vDma, vLim, vNeg, vKV, vB, vL, vOne, vM, vPoll, vU = 2, 3, 4, 5, 6, 8, 12, 16, 20, 232
    vMp = vA + 2
    RA, RB, RC, RD = 32, 96, 160, 224
    TMP, AW = 224, 240
    S = lambda par, j: 32 + par * 32 + j * 8
    CI = lambda j: 96 + j * 8
    PP = lambda par, j: 128 + par * 16 + j * 4
    Q = lambda j, ds: 160 + j * 16 + ds * 4
    O = lambda j, d: j * 32 + d * 4
    FB = lambda j: 128 + j * 4
    aXF, aVF, aRAW, aPA, aPK = 128, 144, 96, 192, 192
    tail = []
    ret = "s_setpc_b64 s[%d:%d]" % (sRet, sRet + 1)
    call = lambda lab: "s_call_b64 s[%d:%d], %s" % (sRet, sRet + 1, lab)

    def x_voffs(pitch, wsh=5):
        return ["v_lshrrev_b32 v%d, 3, v%d" % (t0, vLane),
                "s_lshl_b32 s%d, s%d, %d" % (sT, sWave, wsh),
                "v_add_u32 v%d, s%d, v%d" % (t0, sT, t0),
                "v_mul_u32_u24 v%d, %d, v%d" % (t0, pitch, t0),
                "v_lshrrev_b32 v%d, 4, v%d" % (t1, vLane),
                "v_and_b32 v%d, 7, v%d" % (t2, vLane),
                "v_xor_b32 v%d, v%d, v%d" % (t2, t2, t1),
                "v_lshl_add_u32 v%d, v%d, 4, v%d" % (vX, t2, t0),
                "v_xor_b32 v%d, 4, v%d" % (t2, t2),
                "v_lshl_add_u32 v%d, v%d, 4, v%d" % (vX + 1, t2, t0),
                "v_add_u32 v%d, %d, v%d" % (vX + 1, 8 * pitch - 1024, vX + 1),
                "v_add_u32 v%d, %d, v%d" % (vX + 2, 2 * (8 * pitch - 1024), vX),
                "v_add_u32 v%d, %d, v%d" % (vX + 3, 2 * (8 * pitch - 1024), vX + 1)]
    def w_voffs(pitch, m16):
        r = ["v_lshrrev_b32 v%d, 4, v%d" % (t0, vLane),
             "v_lshlrev_b32 v%d, 2, v%d" % (t1, t0),
             "s_lshl_b32 s%d, s%d, 4" % (sT, sWave),
             "v_add_u32 v%d, s%d, v%d" % (t0, sT, t0),
             "v_mul_u32_u24 v%d, %d, v%d" % (t0, pitch, t0),
             "v_and_b32 v%d, 15, v%d" % (t2, vLane),
             "v_xor_b32 v%d, v%d, v%d" % (t2, t2, t1),
             "v_lshl_add_u32 v%d, v%d, 4, v%d" % (vW, t2, t0)] + \
            ["v_add_u32 v%d, %d, v%d" % (vW + k, k * (4 * pitch - 1024), vW) for k in range(1, 4)]
        if m16:
            r += ["v_xor_b32 v%d, 32, v%d" % (vW + k, vW + k) for k in (2, 3)]
        return r
    def x_rd16(dst):
        return ["v_and_b32 v%d, 15, v%d" % (t0, vLane), "v_bfe_u32 v%d, v%d, 1, 3" % (t1, vLane), "v_lshrrev_b32 v%d, 4, v%d" % (dst, vLane),
                "v_xor_b32 v%d, v%d, v%d" % (dst, dst, t1), "v_lshlrev_b32 v%d, 4, v%d" % (dst, dst), "v_lshl_add_u32 v%d, v%d, 7, v%d" % (dst, t0, dst)]
    def w_rd16(dst):
        return ["v_bfe_u32 v%d, v%d, 2, 2" % (t0, vLane), "v_lshrrev_b32 v%d, 4, v%d" % (t1, vLane),
                "v_lshlrev_b32 v%d, 11, v%d" % (dst, t1), "v_lshl_add_u32 v%d, v%d, 8, v%d" % (dst, t0, dst), "v_lshl_add_u32 v%d, v%d, 6, v%d" % (dst, t0, dst),
                "v_and_b32 v%d, 1, v%d" % (t1, t1), "v_lshl_add_u32 v%d, v%d, 5, v%d" % (dst, t1, dst),
                "v_and_b32 v%d, 3, v%d" % (t0, vLane), "v_lshl_add_u32 v%d, v%d, 3, v%d" % (dst, t0, dst)]
    def dma(i, srdn, fl=""):
        v = vX if srdn == sX else vW
        return [["s_mov_b32 m0, s%d" % (sM + i)]] + \
               ["buffer_load_dwordx4 v%d, s[%d:%d], s%d offen offset:%d %s lds" % (v + q, srdn, srdn + 3, sS + i, q * 1024, fl) for q in range(4)]
    def put_dma(G, i, srdn, lo, hi, fl=""):
        d = dma(i, srdn, fl)
        G.put(lo, d[0])
        G.spread(d[1:], lo + 1, hi)
    def w_srd(q, d, which, col_s, total):
        q("s_lshl_b32 s%d, s%d, 8" % (sT, col_s))
        srd(q, d, ptr(which), off_s=sT)
        q("s_sub_u32 s%d, %d, s%d" % (d + 2, total, sT))
    def sw_XB(q):
        q("s_mul_i32 s%d, s%d, %d" % (sT, sTB, 128 * 1280))
        srd(q, sX, ptr(B_X), off_s=sT)
        q("s_cmp_lt_u32 s2, 240\ns_cselect_b32 s%d, %d, 0" % (sX + 2, 128 * 1280))
        q.add(x_voffs(1280))
    def sw_WB(q):
        w_srd(q, sW, B_WQKV, sCB, 640 * 3840)
        q("s_cmp_lt_u32 s2, 240\ns_cselect_b32 s%d, s%d, 0" % (sW + 2, sW + 2))
        q("s_mov_b64 s[%d:%d], s[%d:%d]\ns_mov_b32 s%d, s%d" % (sW2, sW2 + 1, sW, sW + 1, sW2 + 2, sW + 2))
        q.add(w_voffs(3840, 0))
    def sw_XQ(q):
        srd(q, sX, ptr(A_X), nrec=2048 * 1280)
    def sw_WQ(q):
        w_srd(q, sW, A_WQ, sH, 640 * 8192)
        q.add(w_voffs(8192, 1))

    class Plan:
        def __init__(s):
            s.vm, s.unit, s.free, s.when, s.now = [], {}, [], {}, 0
            s.pend = {"X": [], "W": []}
            s.job = {"X": "KV", "W": "KV"}
            for st in range(8):
                for g in range(2):
                    s.pend["X"].append((("KX", st, g), "KV", st, str(g * 256 * 1024 + st * 128), ((2 * st) % 5) * 2 + g))
                    s.pend["W"].append((("KW", st, g), "KV", st, str(st * 64 * 8192), ((2 * st + 1) % 5) * 2 + g))
            for b in range(10):
                s.pend["X"].append((("BX", b), "B", 8 + b, str(b * 128), None))
                s.pend["W"].append((("BW", b), "B", 8 + b, str(b * 64 * 3840), None))
            for st in range(10):
                s.pend["X"].append((("QX", st, 0), "Q", 18 + st, (sHi, st * 128), None))
                s.pend["X"].append((("QX", st, 1), "Q", 18 + st, (sLo, st * 128), None))
                s.pend["W"].append((("QW", st), "Q", 18 + st, str(st * 64 * 8192), None))
            s.free = list(range(10))
        def copy(s):
            import copy
            return copy.deepcopy(s)
        def take(s, ty, i):
            oth = "W" if ty == "X" else "X"
            pre = []
            c = s.pend[ty][0] if s.pend[ty] else None
            if c is not None:
                if c[4] is not None:
                    ok = c[4] in s.free
                else:
                    resv = {g[4] for t in "XW" for g in s.pend[t] if g[4] is not None}
                    av = [x for x in s.free if x not in resv]
                    ok = len(av) - 1 >= sum(1 for g in s.pend[oth] if g[2] < c[2] and g[4] is None)
                if not ok:
                    c = None
            if c is None:
                return ["s_mov_b32 s%d, 0x30000" % (sM + i), "s_brev_b32 s%d, 1" % (sS + i)], None
            s.pend[ty].pop(0)
            un = c[4] if c[4] is not None else av[0]
            s.free.remove(un)
            s.unit[c[0]] = un
            s.when[c[0]] = s.now
            if c[1] != s.job[ty]:
                s.job[ty] = c[1]
                pre += L({"XB": sw_XB, "WB": sw_WB, "XQ": sw_XQ, "WQ": sw_WQ}[ty + c[1]])
            pre.append("s_add_u32 s%d, s%d, 0x%x" % (sM + i, sW4, un * U))
            if isinstance(c[3], tuple):
                pre.append("s_add_u32 s%d, s%d, %d" % (sS + i, c[3][0], c[3][1]))
            else:
                pre.append("s_mov_b32 s%d, %s" % (sS + i, c[3]))
            return pre, c[0]
        def issue(s, tag, n=4):
            s.vm += [tag] * n
        def hook(s, ins, tag="h"):
            for t in ins:
                i = t if isinstance(t, I) else I(t)
                if i.cnt == "vm":
                    s.vm.append(tag)
        def barrier(s, need, free, dt):
            last = max(max(k for k, t in enumerate(s.vm) if t == n) for n in need) if need else -1
            N = len(s.vm) - 1 - last
            if VERB:
                print("barrier need", need, "N", N, "flight", [s.now - s.when[n] for n in need if n in s.when])
            for f in free:
                s.free.append(s.unit[f])
            s.now += dt
            s.done = last
            return ["s_waitcnt %slgkmcnt(0)" % ("vmcnt(%d) " % min(N, 63) if need else ""), "s_barrier"]
        def complete(s, tag):
            return max(k for k, t in enumerate(s.vm) if t == tag) <= s.done
    pl = Plan()

    def pf_lin(which, total, k):
        share = total // 32
        return ["s_mul_i32 s%d, s%d, %d" % (sT, sIdx, share), "s_lshl_b32 s%d, s%d, 13" % (sT2, sWave), "s_add_u32 s%d, s%d, s%d" % (sT, sT, sT2),
                "s_add_u32 s%d, s%d, %d" % (sT, sT, k * 32768),
                "v_lshl_add_u32 v%d, v%d, 7, s%d" % (t0, vLane, sT), "v_min_u32 v%d, %d, v%d" % (t0, total - 128, t0),
                "global_load_dword v%d, v%d, s[%d:%d]" % (vDum, t0, ptr(which), ptr(which) + 1)]
    def pf_w(which, rows):
        share = rows // 32
        return ["s_mul_i32 s%d, s%d, %d" % (sT, sIdx, share), "s_lshl_b32 s%d, s%d, 3" % (sT2, sWave), "s_add_u32 s%d, s%d, s%d" % (sT, sT, sT2),
                "v_lshrrev_b32 v%d, 3, v%d" % (t0, vLane), "v_add_u32 v%d, s%d, v%d" % (t0, sT, t0), "v_min_u32 v%d, %d, v%d" % (t0, rows - 1, t0),
                "v_lshlrev_b32 v%d, 13, v%d" % (t0, t0), "v_and_b32 v%d, 7, v%d" % (t1, vLane), "v_lshl_add_u32 v%d, v%d, 7, v%d" % (t0, t1, t0),
                "s_lshl_b32 s%d, s%d, 10" % (sT, sXcd), "v_add_u32 v%d, s%d, v%d" % (t0, sT, t0),
                "global_load_dword v%d, v%d, s[%d:%d]" % (vDum, t0, ptr(which), ptr(which) + 1)]
    def pf_bx():
        return ["s_mul_i32 s%d, s%d, %d" % (sT, sXcd, 256 * 1280), "s_mul_i32 s%d, s%d, 10240" % (sT2, sIdx), "s_add_u32 s%d, s%d, s%d" % (sT, sT, sT2),
                "v_lshlrev_b32 v%d, 7, v0" % t0, "v_min_u32 v%d, %d, v%d" % (t0, 10240 - 128, t0), "v_add_u32 v%d, s%d, v%d" % (t0, sT, t0),
                "global_load_dword v%d, v%d, s[%d:%d]" % (vDum, t0, ptr(B_X), ptr(B_X) + 1)]

    def extra(ty, keep):
        if len(pl.free) <= keep:
            return []
        pre, tag = pl.take(ty, 2)
        if tag is None:
            return []
        pl.issue(tag)
        d = dma(2, sX if ty == "X" else sW)
        return pre + d[0] + d[1:]
    def skel(last_mf, bar, mf, custom, target, NP=2):
        if last_mf:
            p(last_mf)
        p.add(bar)
        n = len(custom)
        for k in range(NP):
            p.add([mf[k]] + custom[k * n // NP:(k + 1) * n // NP])
        p(call(target))
    def body(name, G, mf, entries=None, NP=2):
        out = ["%s:" % name]
        for k in range(NP, G.n - 1):
            if entries and k in entries:
                out.append("%s:" % entries[k])
            out += [mf[k]] + G.gap(k)
        assert not any(G.gap(k) for k in list(range(NP)) + [G.n - 1])
        tail.extend(out + [ret])
    def pack_tile(src, dst):
        return ["v_cvt_pk_bf16_f32 v%d, v%d, v%d" % (dst + k, src + 2 * k, src + 2 * k + 1) for k in range(8)]
    def publish(val):
        lab = p.newlabel("M_pub")
        return ["s_cmp_lg_u32 s%d, 0" % sWave, "s_cbranch_scc1 %s" % lab] + (["buffer_wbl2 sc1", "s_waitcnt vmcnt(0)"] if (WBL2 and val == 2) else []) + [
                "s_lshl_b32 s%d, s2, 7" % sT, "v_mov_b32 v%d, %d" % (t0, val), "s_mov_b64 exec, 1",
                "buffer_store_dword v%d, off, s[%d:%d], s%d sc1" % (t0, sD, sD + 3, sT),
                "s_mov_b64 exec, -1", "%s:" % lab]
    def poll_load(kind):
        if kind == "go":
            return ["v_mov_b32 v%d, 0" % t0, "global_load_dword v%d, v%d, s[%d:%d] sc1" % (vGo, t0, ptr(D_DBG), ptr(D_DBG) + 1)]
        if kind == 2:
            r = ["v_min_u32 v%d, 29, v%d" % (t0, vLane), "v_lshlrev_b32 v%d, 10, v%d" % (t0, t0), "s_lshl_b32 s%d, s%d, 7" % (sT, sXcd)]
        elif kind in (1, "KV"):
            r = ["v_and_b32 v%d, 7, v%d" % (t0, vLane), "v_lshlrev_b32 v%d, 10, v%d" % (t0, t0), "s_andn2_b32 s%d, s2, 0x38" % sT, "s_lshl_b32 s%d, s%d, 7" % (sT, sT)]
        elif kind in ("A", "B", 7, 3):
            return ["buffer_load_dword v%d, v%d, s[%d:%d], 0 offen sc1" % (vDum, vPoll, sD, sD + 3)]
        else:
            r = ["v_and_b32 v%d, 7, v%d" % (t0, vLane), "v_lshlrev_b32 v%d, 7, v%d" % (t0, t0), "s_lshl_b32 s%d, s%d, 10" % (sT, sIdx)]
        return r + ["buffer_load_dword v%d, v%d, s[%d:%d], s%d offen sc1" % (vKV if kind == "KV" else vDum, t0, sD, sD + 3, sT)]
    def poll_check(kind):
        lab = p.newlabel("M_poll")
        chk = ["v_cmp_gt_u32 vcc, %s, v%d" % (("1", vGo) if kind == "go" else (("v%d" % (vPoll + 1), vDum) if kind in ("A", "B") else (str(kind), vDum)))]
        if kind == "KV":
            chk = ["v_cmp_gt_u32 vcc, 3, v%d" % vKV]
        tail.extend(["%s:" % lab, "s_mov_b32 s%d, 0x40000" % sSpin, "%s_l:" % lab, "s_sleep 1"] + poll_load(kind) + ["s_waitcnt vmcnt(0)"] + chk +
                    ["s_cbranch_vccz %s_r" % lab, "s_sub_u32 s%d, s%d, 1" % (sSpin, sSpin), "s_cbranch_scc0 %s_l" % lab, "s_branch %s_r" % lab])
        if kind in ("KV", 3):
            c = I(chk[0])
            c.rd = set()
            chk = ["s_waitcnt vmcnt(8)", c]
        return chk + ["s_cbranch_vccnz %s" % lab, "%s_r:" % lab]
    def pf(which, total, first, nlines):
        return ["s_lshl_b32 s%d, s2, 2" % sT, "s_add_u32 s%d, s%d, s%d" % (sT, sT, sWave), "s_mul_i32 s%d, s%d, %d" % (sT, sT, nlines),
                "s_add_u32 s%d, s%d, %d" % (sT, sT, first), "v_min_u32 v%d, %d, v%d" % (t0, nlines - 1, vLane), "v_add_u32 v%d, s%d, v%d" % (t0, sT, t0),
                "v_min_u32 v%d, %d, v%d" % (t0, total // 128 - 1, t0), "v_lshlrev_b32 v%d, 7, v%d" % (t0, t0),
                "global_load_dword v%d, v%d, s[%d:%d]" % (vDum, t0, ptr(which), ptr(which) + 1)]

    sPC0 = 96
    def code_touch(dst, mode):
        if not (CODEPF & mode):
            return []
        return ["s_lshl_b32 s%d, s%d, 2" % (sT, sIdx), "s_add_u32 s%d, s%d, s%d" % (sT, sT, sWave), "s_lshl_b32 s%d, s%d, 9" % (sT, sT),
                "v_and_b32 v%d, 3, v%d" % (t0, vLane), "v_lshl_add_u32 v%d, v%d, 7, s%d" % (t0, t0, sT), "v_min_u32 v%d, M_codeend-M_pc0-4, v%d" % (t0, t0),
                "global_load_dword v%d, v%d, s[%d:%d]" % (dst, t0, sPC0, sPC0 + 1)]
    p("s_cmp_ge_u32 s2, 256\ns_cbranch_scc1 M_exit")
    p("s_getpc_b64 s[%d:%d]\nM_pc0:" % (sPC0, sPC0 + 1))
    p("s_load_dwordx16 s[%d:%d], s[0:1], 0" % (P, P + 15))
    p("s_load_dwordx8 s[%d:%d], s[0:1], 64" % (P + 16, P + 23))
    p("s_load_dwordx2 s[%d:%d], s[0:1], 96" % (P + 24, P + 25))
    st_ = Stamper(p, vStamp, kid=0)
    p("v_and_b32 v%d, 63, v0" % vLane)
    p("v_lshrrev_b32 v%d, 6, v0" % t0)
    p("v_readfirstlane_b32 s%d, v%d" % (sWave, t0))
    p("s_and_b32 s%d, s2, 7" % sXcd)
    p("s_lshr_b32 s%d, s2, 3" % sIdx)
    p("s_lshl_b32 s%d, s%d, 12" % (sW4, sWave))
    p("s_lshl_b32 s%d, s%d, 2" % (sH, sXcd))
    p("s_lshr_b32 s%d, s%d, 3" % (sT, sIdx))
    p("s_add_u32 s%d, s%d, s%d" % (sH, sH, sT))
    p("s_and_b32 s%d, s%d, 7" % (sI, sIdx))
    p.add(code_touch(vDum, 1))
    pl.hook(code_touch(vDum, 1))
    p.add(x_voffs(1024, 9))
    p.add(w_voffs(8192, 1))
    p("s_waitcnt lgkmcnt(0)")
    st_()
    srd(p, sD, ptr(D_WS), off_imm=WS_FL, nrec=32768)
    p("s_cmp_lg_u32 s2, 255\ns_cbranch_scc1 M_nolead")
    p("v_lshlrev_b32 v%d, 7, v0\nv_mov_b32 v%d, 0" % (t0, t1))
    p("buffer_store_dword v%d, v%d, s[%d:%d], 0 offen sc1" % (t1, t0, sD, sD + 3))
    p("M_nolead:")
    p("s_lshl_b32 s%d, s%d, 15" % (sT, sI))
    srd(p, sX, ptr(A_CKV), off_s=sT)
    p("s_sub_u32 s%d, 0x200000, s%d" % (sX + 2, sT))
    w_srd(p, sW, A_WUK, sH, 512 * 8192)
    w_srd(p, sW2, A_WUV, sH, 512 * 8192)
    for ty in "XWXW":
        for g in range(2):
            pre, tag = pl.take(ty, 0)
            p.add(pre + dma(0, sX if ty == "X" else (sW, sW2)[g], "" if ty == "X" else NTW))
            pl.issue(tag)
    p("s_mul_i32 s%d, s%d, 800" % (sT, sIdx))
    srd(p, sPhi, ptr(B_WPHI), off_s=sT, nrec=800)
    b1, b2 = vA, vA + 1
    p("s_and_b32 s%d, s%d, 3" % (sT, sIdx))
    p("s_mul_i32 s%d, s%d, 160" % (sT, sT))
    p("v_lshrrev_b32 v%d, 5, v%d" % (t0, vLane))
    p("v_mul_u32_u24 v%d, 160, v%d" % (t0, t0))
    p("v_subrev_u32 v%d, s%d, v%d" % (t0, sT, t0))
    p("v_and_b32 v%d, 3, v%d" % (t1, vLane))
    p("v_lshl_add_u32 v%d, v%d, 1, v%d" % (t0, t1, t0))
    p("v_bfe_u32 v%d, v%d, 3, 2" % (t1, vLane))
    p("v_lshl_add_u32 v%d, v%d, 3, v%d" % (b1, t1, t0))
    p("v_add_u32 v%d, 32, v%d" % (b2, t0))
    p("v_bfrev_b32 v%d, 1" % t2)
    p("v_cmp_eq_u32 vcc, 0, v%d" % t1)
    p("v_cndmask_b32 v%d, v%d, v%d, vcc" % (b2, t2, b2))
    p.add(x_rd16(vXr))
    p("s_lshr_b32 s%d, s%d, 1" % (sT, sWave))
    p("s_lshl_b32 s%d, s%d, 14" % (sT, sT))
    p("v_add_u32 v%d, s%d, v%d" % (vXr, sT, vXr))
    p("v_xor_b32 v%d, 64, v%d" % (vXr + 1, vXr))
    p("s_lshl_b32 s%d, s%d, 3" % (sKo, sT))
    p.add(w_rd16(vWr))
    p("s_and_b32 s%d, s%d, 1" % (sT, sWave))
    p("s_lshl_b32 s%d, s%d, 7" % (sT, sT))
    p("s_add_u32 s%d, s%d, 0x%x" % (sT, sT, 2 * U))
    p("v_xor_b32 v%d, s%d, v%d" % (vWr, sT, vWr))
    for c in range(1, 4):
        p("v_xor_b32 v%d, %d, v%d" % (vWr + c, c * 32, vWr))
    p("v_lshlrev_b32 v%d, 4, v%d" % (vL16, vLane))
    gath = []
    n = 0
    for tile in range(2):
        for u in range(2):
            for e in range(8):
                cw = 16 * u + 8 * (e >> 2) + (e & 3)
                t = (t0, t1, t2)[n % 3]
                gath += ["v_add_u32 v%d, %d, v%d" % (t, cw * 40, b2 if tile else b1),
                         "buffer_load_ushort a%d, v%d, s[%d:%d], 0 offen" % (aRAW + n, t, sPhi, sPhi + 3)]
                n += 1
    p("s_lshl_b32 s%d, s%d, 1" % (sTB, sXcd))
    p("s_cmp_ge_u32 s%d, 15" % sIdx)
    p("s_cselect_b32 s%d, 15, 0" % sT)
    p("s_addc_u32 s%d, s%d, 0" % (sTB, sTB))
    p("s_sub_u32 s%d, s%d, s%d" % (sCB, sIdx, sT))
    p("s_mul_i32 s%d, s%d, %d" % (sLo, sI, 128 * 1280))
    p("s_sub_u32 s%d, %d, s%d" % (sHi, 15 * 128 * 1280, sLo))

    sWp, vWt = 84, vA + 2
    WTOUCH = int(os.environ.get("WTOUCH", "0"))
    p("s_cmp_ge_u32 s%d, 2" % sWave)
    p("s_cselect_b64 s[%d:%d], s[%d:%d], s[%d:%d]" % (sWp, sWp + 1, ptr(A_WUV), ptr(A_WUV) + 1, ptr(A_WUK), ptr(A_WUK) + 1))
    p("s_and_b32 s%d, s%d, 1" % (sT, sWave))
    p("s_lshl_b32 s%d, s%d, 1" % (sT2, sIdx))
    p("s_add_u32 s%d, s%d, s%d" % (sT, sT, sT2))
    p("s_lshl_b32 s%d, s%d, 3" % (sT, sT))
    p("s_add_u32 s%d, s%d, s%d" % (sT, sT, sXcd))
    p("s_lshl_b32 s%d, s%d, 10" % (sT, sT))
    p("v_and_b32 v%d, 7, v%d" % (vWt, vLane))
    p("v_lshl_add_u32 v%d, v%d, 7, s%d" % (vWt, vWt, sT))
    p("v_add_u32 v%d, 0x%x, v%d" % (vWt, 64 * 8192, vWt))
    wtouch = ["v_add_u32 v%d, 0x%x, v%d" % (vWt, 64 * 8192, vWt), "global_load_dword v%d, v%d, s[%d:%d] %s" % (vDum, vWt, sWp, sWp + 1, NTW)] if WTOUCH else []
    p.add(wtouch + wtouch)
    pl.hook(wtouch + wtouch)
    fx = lambda st, i: 128 + st * 64 + i * 4
    fw = lambda st, i: 128 + st * 64 + 32 + i * 4
    def kvreg(mat, n):
        if mat == 0:
            return ("v", RB + 16 * n if n < 4 else RA + 16 * (n - 4))
        return ("v", RC + 16 * n) if n < 4 else (("v", RD + 16 * (n - 4)) if n < 6 else ("a", 16 * (n - 6)))
    def kv_reads(st):
        X = ["ds_read_b128 %s, v%d offset:%d" % (rr("a", fx(st, i), 4), vXr + st, i * 2048) for i in range(8)]
        W = ["ds_read_b64_tr_b16 %s, v%d offset:%d" % (rr("a", fw(st, i) + 2 * u, 2), vWr + (i & 3), (i >> 2) * U + st * 8192 + u * 1024) for i in range(8) for u in range(2)]
        return X[:2] + W[:8] + X[2:] + W[8:]
    def kv_mf(st, zero=False):
        r = []
        for mat in range(2):
            for n in range(8):
                f, b0 = kvreg(mat, n)
                for e in range(4):
                    a = rr(f, b0 + 4 * e, 4)
                    tt, cc = (e & 1, e >> 1) if mat else (e >> 1, e & 1)
                    X, W = rr("a", fx(st, 2 * (n >> 1) + tt), 4), rr("a", fw(st, mat * 4 + 2 * (n & 1) + cc), 4)
                    A, B = (X, W) if mat else (W, X)
                    r.append("%s %s, %s, %s, %s" % (M16, a, A, B, "0" if zero else a))
        return r
    WL = "s_waitcnt lgkmcnt(0)"
    mfA, mfB = kv_mf(1), kv_mf(0)
    NK = 8
    G = Gaps16(64)
    G.spread(kv_reads(0), NK, 55)
    put_dma(G, 0, sW, NK, 21, NTW); put_dma(G, 1, sW2, 22, 35, NTW)
    body("M_kvA", G, mfA, NP=NK)
    G = Gaps16(64)
    G.spread(kv_reads(1), NK, 55)
    put_dma(G, 0, sX, NK, 34); put_dma(G, 1, sX, 35, 61)
    body("M_kvB", G, mfB, NP=NK)
    KVs = lambda s: [("KX", s, 0), ("KX", s, 1), ("KW", s, 0), ("KW", s, 1)]
    st_()
    p.add(pl.barrier(KVs(0), [], 1024))
    st_()
    p.add(kv_reads(0))
    p("s_cmp_lg_u32 s2, 255\ns_cbranch_scc1 M_nolead2\ns_cmp_lg_u32 s%d, 0\ns_cbranch_scc1 M_nolead2" % sWave)
    p("v_mov_b32 v%d, 0\nv_mov_b32 v%d, 1\ns_mov_b64 exec, 1" % (t0, t1))
    p("global_store_dword v%d, v%d, s[%d:%d] sc1" % (t0, t1, ptr(D_DBG), ptr(D_DBG) + 1))
    p("s_mov_b64 exec, -1\nM_nolead2:")
    p(WL)
    G = Gaps16(64)
    G.spread(kv_reads(1), 0, 47)
    for i in range(2):
        pre, tag = pl.take("X", i)
        G.put(0, pre)
        pl.issue(tag)
        put_dma(G, i, sX, 1 + 13 * i, 13 + 13 * i)
    for k in range(32):
        G.put(28 + k, gath[2 * k:2 * k + 2], post=True)
    pl.hook(gath)
    z = kv_mf(0, zero=True)
    p.add(G.emit(z, 0, 63))
    last = z[63]
    if PREFETCH == 1:
        hooks = [gath[40:], pf_lin(B_WQKV, 640 * 3840, 0) + pf_bx(), pf_lin(B_WQKV, 640 * 3840, 1), pf_lin(B_WQKV, 640 * 3840, 2),
                 pf_w(A_WQ, 640), pf_lin(A_X, 2048 * 1280, 0), pf_lin(A_X, 2048 * 1280, 1), pf_lin(A_X, 2048 * 1280, 2)]
    elif PREFETCH == 2:
        hooks = [gath[40:], pf(B_WQKV, 640 * 3840, 0, 19), pf(B_X, 2048 * 1280, 0, 20), pf(A_X, 2048 * 1280, 0, 20),
                 pf(A_WQ, 640 * 8192, 0, 20), pf(A_WQ, 640 * 8192, 20480, 20), pf(A_WO, 4096 * 1280, 0, 20), pf(A_WO, 4096 * 1280, 20480, 20)]
    elif PREFETCH in (3, 4, 5):
        nt = lambda x: x[:-1] + [x[-1] + (" nt" if PREFETCH == 4 else "")]
        pfo = ["s_lshr_b32 s%d, s2, 1" % sT, "s_mul_i32 s%d, s%d, 40960" % (sT, sT), "s_and_b32 s%d, s2, 1" % sT2, "s_mul_i32 s%d, s%d, 640" % (sT2, sT2),
               "s_add_u32 s%d, s%d, s%d" % (sT, sT, sT2), "v_lshrrev_b32 v%d, 3, v0" % t0, "v_mul_u32_u24 v%d, 1280, v%d" % (t0, t0),
               "v_and_b32 v%d, 7, v0" % t1, "v_min_u32 v%d, 4, v%d" % (t1, t1), "v_lshl_add_u32 v%d, v%d, 7, v%d" % (t0, t1, t0), "v_add_u32 v%d, s%d, v%d" % (t0, sT, t0),
               "global_load_dword v%d, v%d, s[%d:%d]" % (vDum, t0, ptr(A_WO), ptr(A_WO) + 1)]
        def pf_wq(half):
            return ["s_mul_i32 s%d, s%d, 20" % (sT, sWave), "v_min_u32 v%d, 19, v%d" % (t0, vLane), "v_add_u32 v%d, s%d, v%d" % (t0, sT, t0),
                    "s_mul_i32 s%d, s%d, 10" % (sT, sIdx), "s_add_u32 s%d, s%d, %d" % (sT, sT, half * 320), "v_lshrrev_b32 v%d, 3, v%d" % (t1, t0), "v_add_u32 v%d, s%d, v%d" % (t1, sT, t1),
                    "v_and_b32 v%d, 7, v%d" % (t0, t0), "v_lshlrev_b32 v%d, 7, v%d" % (t0, t0), "v_lshl_add_u32 v%d, v%d, 13, v%d" % (t0, t1, t0),
                    "s_lshl_b32 s%d, s%d, 10" % (sT, sXcd), "v_add_u32 v%d, s%d, v%d" % (t0, sT, t0),
                    "global_load_dword v%d, v%d, s[%d:%d]" % (vDum, t0, ptr(A_WQ), ptr(A_WQ) + 1)]
        hooks = [[], pf(B_WQKV, 640 * 3840, 0, 19), nt(pf_bx()), pf(A_X, 2048 * 1280, 0, 20), nt(pf_wq(0)), nt(pf_wq(1)), [], [] if PREFETCH == 5 else nt(pfo)]
    else:
        hooks = [gath[40:]] + [[]] * 7
    hooks[0] = []
    hooks[6] = hooks[6] + poll_load("go")
    def upd(regs, d):
        return ["v_add_u32 v%d, 0x%x, v%d" % (r, u32(d), r) for r in regs]
    for s in range(1, 8):
        bar = pl.barrier(KVs(s), KVs(s - 1), 2048)
        cu = upd([vXr, vXr + 1], (pl.unit[("KX", s, 0)] - pl.unit[("KX", s - 1, 0)]) * U) + \
             upd([vWr + c for c in range(4)], (pl.unit[("KW", s, 0)] - pl.unit[("KW", s - 1, 0)]) * U)
        tags = []
        for i in range(2):
            pre, tag = pl.take("W", i)
            cu += pre
            tags.append(tag)
        for t in tags:
            pl.issue(t)
        skel(last, bar, mfA, cu, "M_kvA", NK)
        cu = (wtouch if s <= 4 else []) + list(hooks[s]) + (code_touch(vDum, 2) if s == 5 else [])
        pl.hook(cu)
        tags = []
        for i in range(2):
            pre, tag = pl.take("X", i)
            cu += pre
            tags.append(tag)
        for t in tags:
            pl.issue(t)
        skel(mfA[63], [WL], mfB, cu, "M_kvB", NK)
        last = mfB[63]
    st_()

    bfx = lambda st, k, i: 128 + st * 32 + k * 16 + i * 4
    bfw = lambda st, k, i: 128 + st * 32 + k * 16 + 8 + i * 4
    def b_reads(st):
        r = []
        for k in range(2):
            ks = st * 2 + k
            for i in range(2):
                r.append("ds_read_b128 %s, v%d offset:%d" % (rr("a", bfx(st, k, i), 4), vXr + ks, i * 4096))
                for u in range(2):
                    r.append("ds_read_b64_tr_b16 %s, v%d offset:%d" % (rr("a", bfw(st, k, i) + 2 * u, 2), vWr + i, ks * 4096 + u * 1024))
        return r
    def b_mf(var, st, zero=False):
        mf = []
        for k in range(2):
            for b in range(2):
                for c in range(2):
                    a = rr("v", RA + (b * 2 + c) * 16, 16)
                    X, W = rr("a", bfx(st, k, b), 4), rr("a", bfw(st, k, c), 4)
                    A, B = (X, W) if var else (W, X)
                    mf.append("%s %s, %s, %s, %s" % (MF, a, A, B, "0" if (zero and k == 0) else a))
        return mf
    def kv_pack(mat, n):
        f, b0 = kvreg(mat, n)
        dst = (RC if mat else RB) + 8 * n
        if f == "v":
            return pack_tile(b0, dst)
        return ["v_accvgpr_read_b32 v%d, a%d" % (RD + k, b0 + k) for k in range(16)] + pack_tile(RD, dst)
    def kv_store(mat, n):
        f, reg = ("v", (RC if mat else RB) + 8 * n) if n < 4 else ("a", aPK + (mat * 4 + n - 4) * 8)
        st = lambda m, so, imm: "buffer_store_dwordx4 %s, v%d, s[%d:%d], s%d offen offset:%d %s" % (rr(f, reg + 4 * m, 4), vL16, sO, sO + 3, so, imm, WT)
        if mat:
            return ["s_and_b32 s%d, s%d, 0x1000" % (sOff, sW4), "s_add_u32 s%d, s%d, s%d" % (sOff, sOff, sKo), "s_add_u32 s%d, s%d, 0x%x" % (sOff, sOff, (n >> 1) * 16 * U + 8192),
                    st(0, sOff, (n & 1) * 2048), st(1, sOff, (n & 1) * 2048 + 1024)]
        return ["s_lshr_b32 s%d, s%d, 1" % (sOff, sW4), "s_and_b32 s%d, s%d, 0x800" % (sOff, sOff), "s_add_u32 s%d, s%d, s%d" % (sOff, sOff, sKo), "s_add_u32 s%d, s%d, 0x%x" % (sOff, sOff, (n >> 1) * 16 * U),
                st(0, sOff, (n & 1) * 1024), "s_addk_i32 s%d, 0x1000" % sOff, st(1, sOff, (n & 1) * 1024)]
    def b_store(t):
        return ["s_add_u32 s%d, s%d, 0x%x" % (sOff, sBo, (t >> 1) * 120 * 1024)] + \
               ["buffer_store_dwordx4 %s, v%d, s[%d:%d], s%d offen offset:%d %s" % (rr("v", RD + 8 * t + 4 * m, 4), vL16, sBO, sBO + 3, sOff, (t & 1) * 2048 + m * 1024, WT) for m in range(2)]
    Bs = lambda b: [("BX", b), ("BW", b)]
    Qs = lambda s: [("QX", s, 0), ("QX", s, 1), ("QW", s)]
    p(last)
    p.add(pl.barrier(Bs(0), KVs(7), 1280))
    def baddr(q):
        x_rd_addr(q, vXr, vLane, t0, t1)
        q("s_lshr_b32 s%d, s%d, 1" % (sT, sWave))
        q("s_lshl_b32 s%d, s%d, 13" % (sT, sT))
        q("s_add_u32 s%d, s%d, 0x%x" % (sT, sT, pl.unit[("BX", 0)] * U))
        for ks in range(4):
            q("v_add_u32 v%d, s%d, v%d" % (vXr + ks, sT, vXr + ks))
        q("s_and_b32 s%d, s%d, 1" % (sT, sWave))
        q("s_lshl_b32 s%d, s%d, 1" % (sT, sT))
        q("v_mov_b32 v%d, s%d" % (t2, sT))
        w_rd_addr(q, vWr, vLane, t0, t1, t2)
        q("v_add_u32 v%d, 0x%x, v%d" % (vWr, pl.unit[("BW", 0)] * U, vWr))
        q("v_xor_b32 v%d, 64, v%d" % (vWr + 1, vWr))
        q("s_lshl_b32 s%d, s%d, 20" % (sT, sH))
        q("s_lshl_b32 s%d, s%d, 14" % (sT2, sI))
        q("s_add_u32 s%d, s%d, s%d" % (sT, sT, sT2))
        srd(q, sO, ptr(D_WS), off_s=sT, off_imm=WS_KV)
        q("s_sub_u32 s%d, 0x100000, s%d" % (sO + 2, sT2))
    G = Gaps16(64)
    ba = L(baddr)
    for k in range(16):
        G.put(k, ba[k * len(ba) // 16:(k + 1) * len(ba) // 16], post=True)
    for i, ty in enumerate("WWX"):
        pre, tag = pl.take(ty, i)
        assert len(pre) == 2
        G.put(0, pre)
        pl.issue(tag)
        put_dma(G, i, sW if ty == "W" else sX, 1 + 20 * i, 20 + 20 * i)
    G.spread(b_reads(0), 20, 56)
    G.stream([x for n in range(8) for x in kv_pack(0, n)], 16, 49)
    G.stream([x for n in range(3) for x in kv_pack(1, n)], 50, 63)
    p.add(G.emit(kv_mf(1)))
    p(WL)
    p("s_cmp_ge_u32 s%d, 10\ns_cbranch_scc1 M_bv" % sCB)
    pl0 = pl
    qfx = lambda st, i: st * 48 + i * 4
    qfw = lambda st, i: st * 48 + 16 + i * 4
    qacc = lambda j, d: RA + j * 32 + d * 4
    def q_reads(st):
        X = ["ds_read_b128 %s, v%d offset:%d" % (rr("a", qfx(st, j), 4), vXr + 2 * (j >> 1) + st, (j & 1) * 2048) for j in (2, 3, 0, 1)]
        W = ["ds_read_b64_tr_b16 %s, v%d offset:%d" % (rr("a", qfw(st, i) + 2 * u, 2), vWr + i, st * 8192 + u * 1024) for i in range(8) for u in range(2)]
        return X[:2] + W + X[2:]
    def q_derive():
        return ["v_xor_b32 v%d, 64, v%d" % (vXr + 1, vXr), "v_xor_b32 v%d, 64, v%d" % (vXr + 3, vXr + 2)] + \
               ["v_xor_b32 v%d, %d, v%d" % (vWr + c, c * 32, vWr) for c in range(1, 8)]
    for var in range(2):
        pl = pl0.copy()
        if var:
            p("M_bv:")
        mfb = b_mf(var, 1) + b_mf(var, 0)
        G = Gaps(16)
        G.spread(b_reads(0), 2, 6); G.put(7, WL); G.spread(b_reads(1), 8, 13)
        put_dma(G, 0, sW, 2, 8); put_dma(G, 1, sX, 9, 14)
        body("M_b%d" % var, G, mfb)
        G = Gaps(8)
        pre, tag = pl.take("X", 1)
        assert len(pre) == 2
        G.put(0, pre)
        pl.issue(tag)
        put_dma(G, 1, sX, 1, 6)
        G.spread(b_reads(1), 0, 5)
        G.stream([x for n in range(3, 8) for x in kv_pack(1, n)], 0, 6)
        z = b_mf(var, 0, zero=True)
        p.add(G.emit(z, 0, 7))
        last = z[7]
        park = ["v_accvgpr_write_b32 a%d, v%d" % (aPK + k, RB + 32 + k) for k in range(32)] + ["v_accvgpr_write_b32 a%d, v%d" % (aPK + 32 + k, RC + 32 + k) for k in range(32)]
        stores = [kv_store(0, 0), park[:12], kv_store(0, 1), park[12:24], kv_store(0, 2), park[24:36], kv_store(0, 3), park[36:50], park[50:]]
        for b in range(1, 10):
            bar = pl.barrier(Bs(b), Bs(b - 1), 512)
            cu = upd([vXr, vXr + 1, vXr + 2, vXr + 3], (pl.unit[("BX", b)] - pl.unit[("BX", b - 1)]) * U) + \
                 upd([vWr, vWr + 1], (pl.unit[("BW", b)] - pl.unit[("BW", b - 1)]) * U)
            cu += extra("X" if (b != 2) else "W", 2)
            tags = []
            for i, ty in enumerate("WX"):
                pre, tag = pl.take(ty, i)
                cu += pre
                tags.append(tag)
            cu += stores[b - 1]
            pl.hook(stores[b - 1], "kv")
            for t in tags:
                pl.issue(t)
            skel(last, bar, mfb, cu, "M_b%d" % var)
            if STAMPS and os.environ.get("FINE"):
                if var and b == 1:
                    st_.n -= 9
                st_()
            last = mfb[15]
        p(last)
        p.add(pl.barrier(Qs(0), Bs(9), 1024))
        G = Gaps(8)
        qa = x_rd16(vXr) + ["s_add_u32 s%d, s%d, 0x%x" % (sT, sW4, pl.unit[("QX", 0, 1)] * U), "v_add_u32 v%d, s%d, v%d" % (vXr + 2, sT, vXr),
                            "s_add_u32 s%d, s%d, 0x%x" % (sT, sW4, pl.unit[("QX", 0, 0)] * U), "v_add_u32 v%d, s%d, v%d" % (vXr, sT, vXr)] + \
             w_rd16(vWr) + upd([vWr], pl.unit[("QW", 0)] * U) + q_derive()
        for k in range(4):
            G.put(k, qa[k * len(qa) // 4:(k + 1) * len(qa) // 4], post=True)
        pre, tag = pl.take("X", 0)
        assert len(pre) == 2
        G.put(0, pre)
        pl.issue(tag)
        put_dma(G, 0, sX, 0, 7)
        G.spread(q_reads(0), 4, 7)
        p.add(G.emit(b_mf(var, 1)))
        if var == 0:
            p("s_branch M_bdone")
    p("M_bdone:")
    st_()

    qorder = [(j, d) for jj in (2, 0) for d in range(8) for j in (jj, jj + 1)]
    def q_mf(st, zero=False):
        return ["%s %s, %s, %s, %s" % (M16, rr("v", qacc(j, d), 4), rr("a", qfw(st, d), 4), rr("a", qfx(st, j), 4), "0" if zero else rr("v", qacc(j, d), 4)) for j, d in qorder]
    mfq = q_mf(1) + q_mf(0)
    NQ = 6
    G = Gaps16(64)
    G.spread(q_reads(0), NQ, 26)
    G.put(31, WL)
    G.spread(q_reads(1), 32, 56)
    put_dma(G, 0, sX, NQ, 24); put_dma(G, 1, sX, 25, 43); put_dma(G, 2, sW, 44, 62)
    body("M_q", G, mfq, NP=NQ)
    p("s_mul_i32 s%d, s%d, %d" % (sT, sTB, 4 * 120 * 1024))
    p("s_lshl_b32 s%d, s%d, 13" % (sT2, sCB))
    p("s_add_u32 s%d, s%d, s%d" % (sT, sT, sT2))
    srd(p, sBO, ptr(D_WS), off_s=sT, off_imm=WS_BF)
    p("s_cmp_lt_u32 s2, 240\ns_cselect_b32 s%d, %d, 0" % (sBO + 2, 4 * 120 * 1024))
    p("s_lshr_b32 s%d, s%d, 1" % (sBo, sWave))
    p("s_mul_i32 s%d, s%d, %d" % (sBo, sBo, 2 * 120 * 1024))
    p("s_and_b32 s%d, s%d, 0x1000" % (sT, sW4))
    p("s_add_u32 s%d, s%d, s%d" % (sBo, sBo, sT))
    G = Gaps16(32)
    for i, ty in ((1, "X"), (2, "W")):
        pre, tag = pl.take(ty, i)
        p.add(pre)
        pl.issue(tag)
        put_dma(G, i, sX if ty == "X" else sW, 15 * (i - 1), 15 * (i - 1) + 14)
    p(WL)
    G.spread(q_reads(1), 0, 24)
    G.stream([x for t in range(4) for x in pack_tile(RA + 16 * t, RD + 8 * t)], 0, 14)
    z = q_mf(0, zero=True)
    p.add(G.emit(z, 0, 31))
    last = z[31]
    def bm_frag_loads(q, fbase, aXF):
        q("s_lshl_b32 s%d, s%d, 3" % (sTT, sXcd))
        q("s_lshl_b32 s%d, s%d, 1" % (sT, sWave))
        q("s_add_u32 s%d, s%d, s%d" % (sTT, sTT, sT))
        q("s_mul_i32 s%d, s%d, %d" % (sT, sTT, 120 * 1024))
        srd(q, sBF, ptr(D_WS), off_s=sT, off_imm=WS_BF, nrec=2 * 120 * 1024)
        q("s_mul_i32 s%d, s%d, 5" % (sT, sIdx))
        q("s_lshr_b32 s%d, s%d, 2" % (sT, sT))
        q("s_add_u32 s%d, s%d, %d" % (sT, sT, fbase))
        q("s_lshl_b32 s%d, s%d, 10" % (sT, sT))
        for tt in range(2):
            for u in range(2):
                q("buffer_load_dwordx4 %s, v%d, s[%d:%d], s%d offen offset:%d %s" % (rr("a", aXF + (tt * 2 + u) * 4, 4), vL16, sBF, sBF + 3, sT, u * 1024, WT))
            if tt == 0:
                q("s_add_u32 s%d, s%d, %d" % (sT, sT, 120 * 1024))
    vV, vWa, vRd = vA + 2, vA + 3, vA
    def bm1_loads(q):
        bm_frag_loads(q, 40, aXF)
        q("s_mul_i32 s%d, s%d, 20" % (sT, sIdx))
        q("v_and_b32 v%d, 31, v%d" % (t2, vLane))
        q("v_add_u32 v%d, s%d, v%d" % (t1, sT, t2))
        q("v_lshrrev_b32 v%d, 5, v%d" % (vV, t1))
        q("v_lshlrev_b32 v%d, 11, v%d" % (vV, vV))
        q("v_and_b32 v%d, 31, v%d" % (t1, t1))
        q("v_lshl_add_u32 v%d, v%d, 4, v%d" % (vV, t1, vV))
        q("v_and_b32 v%d, 32, v%d" % (t1, vLane))
        q("v_lshl_add_u32 v%d, v%d, 4, v%d" % (vV, t1, vV))
        q("v_bfrev_b32 v%d, 1" % t1)
        q("v_cmp_gt_u32 vcc, 20, v%d" % t2)
        q("v_cndmask_b32 v%d, v%d, v%d, vcc" % (vV, t1, vV))
        for tt in range(2):
            q("s_mov_b32 s%d, %d" % (sT, (tt * 120 + 80) * 1024))
            for mm in range(2):
                q("buffer_load_dwordx4 %s, v%d, s[%d:%d], s%d offen offset:%d %s" % (rr("a", aVF + (tt * 2 + mm) * 4, 4), vV, sBF, sBF + 3, sT, mm * 1024, WT))
    qst = {1: [("kv", kv_store(1, 0)), ("kv", kv_store(1, 1))], 2: [("kv", kv_store(1, 2)), ("kv", kv_store(1, 3))],
           3: [("b", b_store(0)), ("b", b_store(1))], 4: [("b", b_store(2)), ("b", b_store(3))]}
    pubB = pubKV = None
    for s in range(1, 10):
        bar = pl.barrier(Qs(s), Qs(s - 1), 1024)
        cu = upd([vXr], (pl.unit[("QX", s, 0)] - pl.unit[("QX", s - 1, 0)]) * U) + upd([vXr + 2], (pl.unit[("QX", s, 1)] - pl.unit[("QX", s - 1, 1)]) * U) + \
             upd([vWr], (pl.unit[("QW", s)] - pl.unit[("QW", s - 1)]) * U) + q_derive()
        cu += extra("X", 3)
        tags = []
        for i, ty in enumerate("XXW"):
            pre, tag = pl.take(ty, i)
            cu += pre
            tags.append(tag)
        if s == 1:
            cu.append(poll_check("go"))
        if pubKV is None and s > 2 and pl.complete("kv"):
            pubKV = s
            cu.append(publish(1))
        if pubB is None and s > 4 and pl.complete("b"):
            pubB = s
            cu.append(publish(2))
        for tag, ins in qst.get(s, []):
            cu += ins
            pl.hook(ins, tag)
        if s == 5:
            ins = code_touch(vDum, 4)
            cu += ins
            pl.hook(ins)
        if s == 6:
            ins = poll_load(1)
            cu += ins
            pl.hook(ins, "poll")
        if s == 8:
            assert pl.complete("poll")
            cu.append(poll_check(1))
        if s == 9:
            ins = poll_load(2)
            cu += ins
            pl.hook(ins, "poll")
        for t in tags:
            pl.issue(t)
        skel(last, bar, mfq, cu, "M_q", NQ)
        last = mfq[63]
        if STAMPS and os.environ.get("FINE") and s in (1, 3, 5, 7):
            st_()
    if VERB:
        print("pubB", pubB, "pubKV", pubKV)
    assert pubB and pubKV and not pl.pend["X"] and not pl.pend["W"]
    C1, C2, PH, VF, KC, AF, RR = 48, 64, 80, 96, 112, TMP, 32
    def phi(xf):
        for tile, C in ((0, C1), (1, C2)):
            for u in range(2):
                p("%s %s, %s, %s, %s" % (MF, rr("v", C, 16), rr("v", AW + (tile * 2 + u) * 4, 4), rr("a", xf + u * 4, 4), rr("v", C, 16) if u else "0"))
        p(call("M_phi"))
    aXQ = 232
    q = Prog()
    q("M_phi:")
    x = [C1 + k for k in range(16)] + [C2 + k for k in range(4)]
    m = t1
    q("v_max3_f32 v%d, v%d, v%d, v%d" % (m, x[0], x[1], x[2]))
    for k in range(3, 19, 2):
        q("v_max3_f32 v%d, v%d, v%d, v%d" % (m, m, x[k], x[k + 1]))
    q("v_max_f32 v%d, v%d, v%d" % (m, m, x[19]))
    q("v_mul_f32 v%d, s%d, v%d" % (m, sL2, m))
    for k in range(20):
        q("v_fma_f32 v%d, v%d, s%d, -v%d" % (x[k], x[k], sL2, m))
    for k in range(20):
        q("v_exp_f32 v%d, v%d" % (x[k], x[k]))
    q("v_add_f32 v%d, v%d, v%d" % (m, x[0], x[1]))
    for k in range(2, 20):
        q("v_add_f32 v%d, v%d, v%d" % (m, m, x[k]))
    q("v_rcp_f32 v%d, v%d" % (m, m))
    for k in range(20):
        q("v_mul_f32 v%d, v%d, v%d" % (x[k], x[k], m))
    for k in range(10):
        q("v_cvt_pk_bf16_f32 v%d, v%d, v%d" % (PH + k, x[2 * k], x[2 * k + 1]))
    q(ret)
    tail += q.ins

    vWo = vA + 1
    def wo_src(which, un):
        p("s_lshr_b32 s%d, s%d, 1" % (sT, un))
        p("s_mul_i32 s%d, s%d, 40960" % (sT, sT))
        p("s_and_b32 s%d, s%d, 1" % (sT2, un))
        p("s_mul_i32 s%d, s%d, 640" % (sT2, sT2))
        p("s_add_u32 s%d, s%d, s%d" % (sT, sT, sT2))
        srd(p, sY, ptr(which), off_s=sT)
        p("s_sub_u32 s%d, 40960, s%d" % (sY + 2, sT2))
        p(call("M_wodma"))
    q = Prog()
    q("M_wodma:")
    q("s_mul_i32 s%d, s%d, 320" % (sT, sWave))
    q("s_mul_i32 s%d, s%d, 5120" % (sT2, sWave))
    q("s_add_u32 m0, s%d, 0x20000" % sT2)
    for k in range(5):
        q("v_add_u32 v%d, s%d, v%d" % (t0, sT, vLane))
        q("v_mul_u32_u24 v%d, 0x667, v%d" % (t1, t0))
        q("v_lshrrev_b32 v%d, 16, v%d" % (t1, t1))
        q("v_mul_u32_u24 v%d, 640, v%d" % (t1, t1))
        q("v_lshl_add_u32 v%d, v%d, 4, v%d" % (t0, t0, t1))
        q("buffer_load_dwordx4 v%d, s[%d:%d], 0 offen lds" % (t0, sY, sY + 3))
        if k < 4:
            q("s_add_u32 s%d, s%d, 64\ns_add_u32 m0, m0, 0x400" % (sT, sT))
    q(ret)
    tail += q.ins
    def wo_reads(isB, regs):
        p("v_lshrrev_b32 v%d, 4, v%d" % (t0, vLane))
        p("v_lshlrev_b32 v%d, %d, v%d" % (vWo, 3 if isB else 2, t0))
        p("v_bfe_u32 v%d, v%d, 2, 2" % (t0, vLane))
        p("v_add_u32 v%d, v%d, v%d" % (vWo, vWo, t0))
        p("v_mul_u32_u24 v%d, 640, v%d" % (vWo, vWo))
        p("v_and_b32 v%d, 3, v%d" % (t0, vLane))
        p("v_lshl_add_u32 v%d, v%d, 3, v%d" % (vWo, t0, vWo))
        p("s_mul_i32 s%d, s%d, 160" % (sT, sWave))
        p("s_add_u32 s%d, s%d, 0x20000" % (sT, sT))
        p("v_add_u32 v%d, s%d, v%d" % (vWo, sT, vWo))
        for n in range(5):
            for u in range(2):
                p("ds_read_b64_tr_b16 %s, v%d offset:%d" % (rr("v", regs[n] + 2 * u, 2), vWo, n * 32 + u * (4 if isB else 16) * 640))
    def wo_stores(isB, un, regs, sY):
        p("s_and_b32 s%d, s%d, 1" % (sT, un))
        p("s_lshl_b32 s%d, s%d, 2" % (sT, sT))
        p("s_add_u32 s%d, s%d, s%d" % (sT, sT, sWave))
        p("s_lshr_b32 s%d, s%d, 1" % (sT2, un))
        if isB:
            p("s_mul_i32 s%d, s%d, 20" % (sT, sT))
            p("s_add_u32 s%d, s%d, s%d" % (sT, sT, sT2))
        else:
            p("s_lshr_b32 s%d, s%d, 1" % (sT, sT))
            p("s_lshl_b32 s%d, s%d, 7" % (sT, sT))
            p("s_add_u32 s%d, s%d, s%d" % (sT, sT, sT2))
            p("s_lshl_b32 s%d, s%d, 1" % (sT, sT))
            p("s_and_b32 s%d, s%d, 1" % (sT2, sWave))
            p("s_add_u32 s%d, s%d, s%d" % (sT, sT, sT2))
        p("s_mul_i32 s%d, s%d, 5120" % (sT, sT))
        srd(p, sY, ptr(D_WS), off_s=sT, off_imm=WS_WOB if isB else WS_WOA, nrec=5120)
        p("s_movk_i32 s%d, 0x1000" % sT)
        for n in range(5):
            p("buffer_store_dwordx4 %s, v%d, s[%d:%d], %s offen offset:%d %s" % (rr("v", regs[n], 4), vL16, sY, sY + 3, "s%d" % sT if n == 4 else "0", (n & 3) * 1024, WT))
    p(last)
    p(WL + "\ns_barrier")
    sQs = sTB
    def kvsetup(q):
        q("s_mov_b32 s%d, 0x%x" % (sQs, QSCALE))
        q("s_mov_b32 s%d, 0x%x" % (sL2, LOG2E))
        q("s_lshl_b32 s%d, s%d, 20" % (sT, sH))
        srd(q, sKV, ptr(D_WS), off_s=sT, off_imm=WS_KV)
        q("s_lshl_b32 s%d, s%d, 16" % (sT, sI))
        q("s_sub_u32 s%d, 0x100000, s%d" % (sKV + 2, sT))
        q("s_lshl_b32 s%d, s%d, 11" % (sW2k, sWave))
        q("v_add_u32 v%d, s%d, v%d" % (vDma, sW2k, vL16))
    kvld = lambda so, k: "buffer_load_dwordx4 v%d, s[%d:%d], s%d offen offset:%d %s lds" % (vDma, sKV, sKV + 3, so, k * 1024, WT)
    def kv0(t, half):
        o = t * U + half * 8192
        return [["s_add_u32 m0, s%d, 0x%x" % (sW2k, o), "s_mov_b32 s%d, 0x%x" % (sOff, o), kvld(sOff, 0)], kvld(sOff, 1)]
    fl = L(kvsetup) + kv0(0, 0) + kv0(1, 0) + [poll_check(2)] + L(bm1_loads)
    mfl = q_mf(1)
    for k in range(32):
        p(mfl[k])
        p.add(fl[k * len(fl) // 32:(k + 1) * len(fl) // 32])
    st_()
    pp, p = p, Prog()
    wo_src(A_WO, 2)
    wo_chunk, p = p.ins, pp
    va = []
    for j in (2, 3, 0, 1):
        va += ["v_mul_f32 v%d, s%d, v%d" % (qacc(j, 0) + k, sQs, qacc(j, 0) + k) for k in range(32)]
        va += pack_tile(qacc(j, 0), Q(j, 0)) + pack_tile(qacc(j, 4), Q(j, 2))
    va += ["v_accvgpr_read_b32 v%d, a%d" % (RD + k, aRAW + k) for k in range(32)]
    va += ["v_bfe_u32 v%d, v%d, 2, 1" % (vWa, vLane), "v_mul_u32_u24 v%d, 0x8000, v%d" % (vWa, vWa), "v_lshl_or_b32 v%d, v%d, 16, v%d" % (vWa, vWa, vWa)]
    for k in range(15, -1, -1):
        va += ["v_lshl_or_b32 v%d, v%d, 16, v%d" % (AW + k, RD + 2 * k + 1, RD + 2 * k), "v_xor_b32 v%d, v%d, v%d" % (AW + k, AW + k, vWa)]
    vm = kv0(2, 0) + kv0(0, 1) + kv0(1, 1) + [wo_chunk] + kv0(3, 0) + kv0(4, 0) + kv0(5, 0) + kv0(2, 1) + kv0(3, 1)
    for k, x in enumerate(vm):
        p.add([x] + va[k * len(va) // len(vm):(k + 1) * len(va) // len(vm)])
    st_()
    phi(aXF)
    for k in range(4):
        p("v_mov_b32 v%d, 0" % (RR + k))
    zero_o = lambda k, z: "%s %s, %s, %s, 0" % (MF, rr("a", 16 * k, 16), rr("v", z, 4), rr("v", z, 4))
    p("v_and_b32 v%d, 31, v%d" % (t2, vLane))
    p("s_lshr_b32 s%d, s%d, 1" % (sT, sWave))
    p("s_lshl_b32 s%d, s%d, 13" % (sT, sT))
    p("s_add_u32 s%d, s%d, s%d" % (sT, sT, sW4))
    p("s_add_u32 s%d, s%d, %d" % (sT, sT, 4 * U + 8192))
    p("v_lshlrev_b32 v%d, 7, v%d" % (vWa, t2))
    p("v_lshrrev_b32 v%d, 5, v%d" % (t1, vLane))
    p("v_lshl_add_u32 v%d, v%d, 6, v%d" % (vWa, t1, vWa))
    p("v_add_u32 v%d, s%d, v%d" % (vWa, sT, vWa))
    p(zero_o(0, RR))
    p("v_lshlrev_b32 v%d, 9, v%d" % (vRd, t1))
    p("v_bfe_u32 v%d, v%d, 2, 2" % (t1, vLane))
    p("v_lshl_add_u32 v%d, v%d, 7, v%d" % (vRd, t1, vRd))
    p("v_bfe_u32 v%d, v%d, 4, 1" % (t1, vLane))
    p("v_lshl_add_u32 v%d, v%d, 5, v%d" % (vRd, t1, vRd))
    p("v_and_b32 v%d, 3, v%d" % (t1, vLane))
    p("v_lshl_add_u32 v%d, v%d, 3, v%d" % (vRd, t1, vRd))
    p("v_add_u32 v%d, s%d, v%d" % (vRd, sT, vRd))
    p(zero_o(1, RR))
    p("v_mov_b32 v%d, 0x3f803f80" % t0)
    p("v_cmp_eq_u32 vcc, 20, v%d" % t2)
    for tt in range(2):
        if tt:
            phi(aXF + 8)
        p("ds_write_b128 v%d, %s" % (vWa, rr("v", PH, 4)))
        p("ds_write_b128 v%d, %s offset:16" % (vWa, rr("v", PH + 4, 4)))
        p("ds_write_b64 v%d, %s offset:32" % (vWa, rr("v", PH + 8, 2)))
        for nn in range(2):
            for mm in range(2):
                for u in range(2):
                    p("ds_read_b64_tr_b16 %s, v%d offset:%d" % (rr("v", AF + (nn * 2 + mm) * 4 + 2 * u, 2), vRd, (16 * mm + 8 * u) * 128 + nn * 64))
        p(zero_o(2 + 3 * tt, RR))
        for k in range(8):
            p("v_accvgpr_read_b32 v%d, a%d" % (VF + k, aVF + tt * 8 + k))
        p(zero_o(3 + 3 * tt, RR))
        for k in range(8):
            p("v_cndmask_b32 v%d, v%d, v%d, vcc" % (VF + k, VF + k, t0))
        p(zero_o(4 + 3 * tt, RR))
        for mm in range(2):
            for nn in range(2):
                c = rr("v", KC + nn * 16, 16)
                p("%s %s, %s, %s, %s" % (MF, c, rr("v", AF + (nn * 2 + mm) * 4, 4), rr("v", VF + mm * 4, 4), "0" if (tt == 0 and mm == 0) else c))
    R0 = 6 * U
    p("s_mul_i32 s%d, s%d, 6144" % (sT, sWave))
    p("s_add_u32 s%d, s%d, %d" % (sT, sT, R0))
    p("v_add_u32 v%d, s%d, v%d" % (t1, sT, vL16))
    p("v_lshrrev_b32 v%d, 5, v%d" % (t0, vLane))
    p("v_lshlrev_b32 v%d, 10, v%d" % (vV, t0))
    p("v_lshl_add_u32 v%d, v%d, 4, v%d" % (vV, t2, vV))
    p("v_and_b32 v%d, 15, v%d" % (vLim, vLane))
    p("v_lshrrev_b32 v%d, 4, v%d" % (t0, vLane))
    p("v_lshlrev_b32 v%d, 2, v%d" % (t0, t0))
    p("v_sub_u32 v%d, v%d, v%d" % (vLim, vLim, t0))
    p("v_mov_b32 v%d, 0x%x" % (vNeg, NEG))
    for j in range(4):
        p("v_mov_b32 v%d, 0" % (vL + j))
        p("v_mov_b32 v%d, 0x3f803f80" % (vOne + j))
    for nn in range(2):
        for jj in range(3):
            p("ds_write_b128 v%d, %s offset:%d" % (t1, rr("v", KC + nn * 16 + jj * 4, 4), (nn * 3 + jj) * 1024))
    p("s_lshl_b32 s%d, s%d, 3" % (sT, sIdx))
    p("s_add_u32 s%d, s%d, s%d" % (sT, sT, sXcd))
    p("s_lshl_b32 s%d, s%d, 13" % (sT, sT))
    srd(p, sY, ptr(D_WS), off_s=sT, off_imm=WS_KVP, nrec=5120)
    srd(p, sC, ptr(D_WS), off_imm=WS_CTX, nrec=16 * MB)
    p("s_lshl_b32 s%d, s%d, 10" % (sT, sWave))
    p("s_add_u32 s%d, s%d, %d" % (sT, sT, R0))
    p("v_add_u32 v%d, s%d, v%d" % (t1, sT, vL16))
    p("v_mov_b32 v%d, v%d" % (vB, vL16))
    p("v_add_u32 v%d, 0x4000, v%d" % (vB + 1, vL16))
    p("s_waitcnt vmcnt(10) lgkmcnt(0)\ns_barrier")
    st_()
    for j in range(8):
        p("ds_read_b128 %s, v%d offset:%d" % (rr("a", FB(j), 4), vB, j * 1024))
    RS = 128
    woA = [S(1, 0) + 4 * n for n in range(5)]
    for k in range(2):
        for w in range(4):
            p("ds_read_b128 %s, v%d offset:%d" % (rr("v", RS + k * 16 + w * 4, 4), t1, w * 6144 + k * 4096))
    wo_reads(False, woA)
    wo_stores(False, 2, woA, sBF)
    p("s_lshl_b32 s%d, s%d, 11" % (sT, sWave))
    p("s_cmp_eq_u32 s%d, 3" % sWave)
    p("s_cselect_b32 s%d, 512, s%d" % (sT2, sT))
    p("s_add_u32 s%d, s%d, 2560" % (sOff, sT))
    p("s_mov_b32 s%d, 0x%x" % (sThr, THRESH))
    p("s_lshl_b32 s%d, s%d, 2" % (sT, sI))
    p("s_add_u32 s%d, s%d, s%d" % (sTriB, sT, sWave))
    p("s_sub_u32 s%d, 60, s%d" % (sTriA, sT))
    p("s_add_u32 s%d, s%d, s%d" % (sTriA, sTriA, sWave))
    p("s_add_u32 s%d, s%d, 4" % (sNlo, sT))
    p("s_mov_b32 s%d, 0\ns_mov_b32 s%d, 3" % (sMask, sMask + 1))
    p("s_bitset1_b64 s[%d:%d], s%d" % (sMask, sMask + 1, sNlo))
    p("s_bitset1_b64 s[%d:%d], s%d" % (sMask, sMask + 1, sTriB))
    p("s_add_u32 s%d, s%d, 1" % (sT, sTriB))
    p("s_bitset1_b64 s[%d:%d], s%d" % (sMask, sMask + 1, sT))
    if os.environ.get("X_NOHOOK"):
        p("s_mov_b64 s[%d:%d], 0" % (sMask, sMask + 1))
    p("s_and_b32 s%d, s%d, 1" % (sNb, sWave))
    p("s_sub_u32 s%d, s%d, s%d" % (sNb, sNb, sNlo))
    p("s_add_u32 s%d, s%d, 2" % (sNb, sNb))
    for k in range(32):
        p("v_mov_b32 v%d, 0" % (CI(0) + k))
    p("s_mov_b32 s%d, 0\ns_mov_b32 s%d, 0\ns_mov_b32 s%d, 1.0" % (sIt, sNext, sKeep))
    p("s_mov_b32 s%d, 0x%x\ns_mov_b32 s%d, 0x%x" % (sG, 6 * U, sGv, 4 * U + 8192))

    def mask_code(sl, tri):
        c = CI(2 * sl)
        r = ["s_sub_i32 s%d, s%d, s%d" % (sT, sNext, tri), "s_lshl_b32 s%d, s%d, 5" % (sT, sT), "v_subrev_u32 v%d, s%d, v%d" % (t0, sT, vLim)]
        for off, regs in ((0, (c, c + 12)), (16, (c + 4,)), (-16, (c + 8,))):
            r += ["v_cmp_gt_i32 s[%d:%d], %d, v%d" % (84 + 2 * k, 85 + 2 * k, off + k, t0) for k in range(4)]
            r += ["v_cndmask_b32 v%d, v%d, v%d, s[%d:%d]" % (b + k, b + k, vNeg, 84 + 2 * k, 85 + 2 * k) for b in regs for k in range(4)]
        return r
    xch = ["s_xor_b32 s%d, s%d, 1" % (sT, sWave), "s_lshl_b32 s%d, s%d, 13" % (sT, sT), "s_add_u32 s%d, s%d, 0x20000" % (sT, sT), "v_add_u32 v%d, s%d, v%d" % (t0, sT, vL16)] + \
          ["ds_read_b128 %s, v%d offset:%d" % (rr("v", Q(2, 0) + 4 * k, 4), t0, k * 1024) for k in range(8)] + \
          ["v_mov_b32 v%d, v%d" % (CI(2) + k, vMp + (k >> 3)) for k in range(16)] + \
          ["v_mov_b32 v%d, v%d" % (vM + 2, vMp), "v_mov_b32 v%d, v%d" % (vM + 3, vMp + 1), "s_xor_b32 s%d, s%d, 1" % (sTriB, sTriA), "s_mov_b32 s%d, 0" % sKeep, WL]
    def evt_check(kind):
        lab = p.newlabel("M_ev")
        back = "%s_r" % lab
        code = ["%s:" % lab]
        if kind == "x":
            code += ["s_cmp_eq_u32 s%d, s%d" % (sIt, sNlo), "s_cbranch_scc1 %s_x" % lab] + mask_code(1, sTriB) + ["s_branch " + back, "%s_x:" % lab] + xch + \
                    ["s_cmp_lt_u32 s%d, 32" % sIt, "s_cbranch_scc1 " + back]
        code += mask_code(1, sTriB)
        if kind == "l1":
            code += ["s_cmp_lt_u32 s%d, 32" % sIt, "s_cbranch_scc1 " + back]
        if kind != "lo":
            code += mask_code(0, sTriA)
        tail.extend(code + ["s_branch " + back])
        return ["s_bitcmp1_b64 s[%d:%d], s%d" % (sMask, sMask + 1, sIt), "s_cbranch_scc1 %s" % lab, "%s:" % back]
    qk_mf = lambda par: ["%s %s, %s, %s, %s" % (M16, rr("v", S(par, j) + 4 * (f >> 2), 4), rr("a", FB(f), 4), rr("v", Q(j, f & 3), 4),
                                                 rr("v", (CI(j) if (f & 3) == 0 else S(par, j)) + 4 * (f >> 2), 4)) for f in range(8) for j in range(4)]
    pv_mf = lambda par: ["%s %s, %s, %s, %s" % (M16, rr("a", O(j, d), 4), rr("a", FB(8 + d), 4), rr("v", PP(par, j), 4), rr("a", O(j, d), 4)) for d in range(8) for j in range(4)]
    def allg(op, dst, tmp):
        return ["v_mov_b32 v%d, v%d" % (tmp, dst), "v_permlane32_swap_b32 v%d, v%d" % (dst, tmp), "%s v%d, v%d, v%d" % (op, dst, dst, tmp),
                "v_mov_b32 v%d, v%d" % (tmp, dst), "v_permlane16_swap_b32 v%d, v%d" % (dst, tmp), "%s v%d, v%d, v%d" % (op, dst, dst, tmp)]
    def rowmax(par, j, dst, tmp):
        s = S(par, j)
        return ["v_max3_f32 v%d, v%d, v%d, v%d" % (dst, s, s + 1, s + 2), "v_max3_f32 v%d, v%d, v%d, v%d" % (dst, dst, s + 3, s + 4),
                "v_max3_f32 v%d, v%d, v%d, v%d" % (dst, dst, s + 5, s + 6), "v_max_f32 v%d, v%d, v%d" % (dst, dst, s + 7)] + allg("v_max_f32", dst, tmp) + \
               ["v_add_f32 v%d, 0x%x, v%d" % (dst, f2u(BIAS), dst)]
    NG1 = int(os.environ.get("NG1", "9"))
    def sm_stream(par, part):
        allg_ = [(j, k) for k in range(4) for j in range(4)]
        groups = allg_[:NG1] if part == 0 else (allg_[NG1:] if part == 1 else allg_)
        out = []
        tm = lambda n: (TMP + (n % 4) * 2, TMP + (n % 4) * 2 + 1)
        cv = lambda n: "v_cvt_pk_bf16_f32 v%d, v%d, v%d" % ((PP(par, groups[n][0]) + groups[n][1],) + tm(n))
        for n, (j, k) in enumerate(groups):
            a, b = tm(n)
            out += ["v_exp_f32 v%d, v%d" % (a, S(par, j) + 2 * k)] + ([cv(n - 1)] if n else []) + ["v_exp_f32 v%d, v%d" % (b, S(par, j) + 2 * k + 1)]
        return out + [cv(len(groups) - 1)]
    NE = 4
    def sm_place(G, par, part, lo, hi, ne=0):
        st = sm_stream(par, part)
        ex = [x for x in st if x.startswith("v_exp")]
        cv = [x for x in st if x.startswith("v_cvt")]
        nc = 0
        for g in range(lo, hi + 1):
            ready = ne // 2
            left = 8 - G.load(g)
            rest = sum(max(0, 8 - G.load(x)) for x in range(g + 1, hi + 1))
            while True:
                todo = 8 * (len(ex) - ne) + 4 * (len(cv) - nc)
                force = todo > rest + max(left, 0) - 4 and left > -4 and g < hi or g == hi and todo
                if ne < len(ex) and (left >= 8 or (force and nc >= ready)) and ne // 2 - nc < 4 and not (ready - nc >= 3 and left >= 8 and ne % 2 == 0):
                    G.va[g].append(ex[ne]); ne += 1; left -= 8
                elif nc < (ready if g < hi else ne // 2) and (left >= 4 or force):
                    G.va[g].append(cv[nc]); nc += 1; left -= 4
                else:
                    break
        assert ne == len(ex) and nc == len(cv), (ne, nc)
    LT = lambda par, j: PP(par ^ 1, j)
    sum_mf = lambda par: ["%s %s, %s, %s, 0" % (M16, rr("v", LT(par, j), 4), rr("v", vOne, 4), rr("v", PP(par, j), 4)) for j in range(4)]
    need = lambda js: I("need", xrd=[("a", FB(j) + e) for j in js for e in range(4)])
    fread = lambda f, par: "ds_read_b128 %s, v%d offset:%d" % (rr("a", FB(f), 4), vB + par, f * 1024)
    ALL = (0, 1, 2, 3)
    def slow_site(par):
        lab = p.newlabel("M_sl")
        tail.extend(["%s:" % lab, call("M_slow%d" % par), "s_branch %s_r" % lab])
        chk = ["v_max3_f32 v%d, v%d, v%d, v%d" % (vU, LT(par, 0), LT(par, 1), LT(par, 2)), "v_max_f32 v%d, v%d, v%d" % (vU, vU, LT(par, 3)), "v_cmp_lt_f32 vcc, s%d, v%d" % (sThr, vU)]
        return chk, ["s_cbranch_vccnz %s" % lab, "%s_r:" % lab]
    accl = lambda par: ["v_add_f32 v%d, v%d, v%d" % (vL + j, vL + j, LT(par, j)) for j in range(4)]
    def iteration(par, barrier, ntile, kind, endc=(), endb=()):
        qk = qk_mf(par ^ 1)
        SP = 24
        mf = qk[:SP] + sum_mf(par) + qk[SP:] + pv_mf(par)
        pos = lambda f: 4 * f + (4 if 4 * f >= SP else 0)
        G = Gaps16(68)
        LA = int(os.environ.get("LA", "14")); LV = int(os.environ.get("LV", "18")); BP = int(os.environ.get("BP", "53")); LG = ""
        for f in range(4, 16):
            G.put(pos(f) - (LA if f < 6 else LV), fread(f, (par ^ 1) if f < 8 else par))
        for f in range(2, 16, 2):
            G.nv[pos(f) - 1].insert(0, need([f, f + 1]))
        G.put(66, need([0, 1]))
        G.put(0, ["s_add_u32 s%d, s%d, 1" % (sIt, sIt)]); G.put(1, ["s_add_u32 s%d, s%d, 2" % (sNb, sNb)])
        G.put(3, ["s_max_i32 s%d, s%d, s%d" % (sNext, sIt, sNb)]); G.put(4, ["s_lshl_b32 s%d, s%d, 14" % (sRd, sNext)])
        G.put(5, ["s_and_b32 s%d, s%d, 0x1ffff" % (sRd, sRd)])
        G.put(64 - LV, "v_add_u32 v%d, s%d, v%d" % (vB + par, sRd, vL16))
        if barrier:
            G.put(BP, ["s_waitcnt vmcnt(%d)%s" % (4 + 4 * ntile, LG), "s_barrier"])
        for f in range(4):
            G.put(BP + 1 + 2 * f + (f >> 1) * 2, fread(f, par))
        slots = eval(os.environ.get("SL2", "[8, 16, 23, 28, 33, 40, 45, 50]")) if ntile == 2 else eval(os.environ.get("SL1", "[23, 28, 33, 45]"))
        for hh in range(2 * ntile):
            so = sGv if hh < ntile else sG
            g0, g1 = slots[2 * hh], slots[2 * hh + 1]
            G.put(g0 - 2, ["s_and_b32 s%d, s%d, 0x1ffff" % (sT, so)])
            G.put(g0 - 1, ["s_add_u32 m0, s%d, s%d" % (sT, sW2k)])
            G.put(g0, kvld(so, 0))
            G.put(g1, [kvld(so, 1), "s_add_u32 s%d, s%d, 0x4000" % (so, so)])
        chk, br = slow_site(par)
        G.put(35, br)
        G.put(64, evt_check(kind))
        G.put(67, list(endc))
        G.put(67, list(endb), post=True)
        sm_place(G, par, 1, 0, SP - 3)
        G.put(32, chk[:2]); G.put(34, chk[2])
        early = [x for x in sm_stream(par ^ 1, 0) if x.startswith("v_exp")][:NE]
        for g in range(SP - 2, 32):
            if early and G.load(g) == 0:
                G.put(g, early.pop(0))
        assert not early
        G.put(36, accl(par)[:2]); G.put(37, accl(par)[2:])
        sm_place(G, par ^ 1, 0, 38, 66, NE)
        if VERB:
            print("iteration", par, ntile, G.report(), sum(max(0, x - 8) for x in G.report()))
        out = [x if isinstance(x, I) else I(x) for x in G.emit(mf)]
        X = os.environ.get("X_DROP", "")
        if "d" in X: out = [x for x in out if x.kind != "dma"]
        if "b" in X: out = [x for x in out if x.mn != "s_barrier"]
        if "e" in X: out = [x for x in out if x.mn != "v_exp_f32"]
        if "c" in X: out = [x for x in out if x.mn != "v_cvt_pk_bf16_f32"]
        if "l" in X: out = [x for x in out if x.kind != "ds"]
        if "w" in X:
            for x in out:
                if x.kind == "ds": x.wr = set()
        if "v" in X: out = [x for x in out if not (x.kind == "branch" and (x.target.startswith("M_ev") or x.target.startswith("M_sl")))]
        p.add(out)

    p.add(evt_check("lo"))
    G = Gaps16(32)
    red = []
    for k in range(2):
        b = RS + k * 16
        for e in range(4):
            red += ["v_add_f32 v%d, v%d, v%d" % (b + e, b + e, b + 4 + e), "v_add_f32 v%d, v%d, v%d" % (b + 8 + e, b + 8 + e, b + 12 + e)]
        red += ["v_add_f32 v%d, v%d, v%d" % (b + e, b + e, b + 8 + e) for e in range(4)]
    G.stream(red, 2, 16)
    for k in range(2):
        G.put(18 + 2 * k, "buffer_store_dwordx4 %s, v%d, s[%d:%d], s%d offen %s" % (rr("v", RS + k * 16, 4), vV, sY, sY + 3, sOff if k else sT2, WT))
    G.spread([fread(f, 1) for f in range(4)], 22, 31)
    p.add(G.emit(qk_mf(0)))
    p("s_mov_b32 s%d, 1\ns_mov_b32 s%d, 1" % (sIt, sNext))
    p("s_lshl_b32 s%d, s%d, 9" % (sT, sWave))
    p("s_add_u32 s%d, s%d, %d" % (sT, sT, 7 * U + 8192))
    p("v_lshl_add_u32 v%d, v%d, 3, s%d" % (t2, vLane, sT))
    for j in range(4):
        p.add(rowmax(0, j, vU, vU + 1))
        p("v_sub_f32 v%d, 0, v%d" % (vM + j, vU))
        for k in range(8):
            p("v_sub_f32 v%d, v%d, v%d" % (S(0, j) + k, S(0, j) + k, vU))
            p("v_sub_f32 v%d, v%d, v%d" % (CI(j) + k, CI(j) + k, vU))
        if j == 1:
            p("ds_write_b64 v%d, %s" % (t2, rr("v", vM, 2)))
    p.add(evt_check("lo"))
    p.add(sm_stream(0, 0))
    p("s_lshr_b32 s%d, s%d, 1" % (sT, sXcd))
    p("s_lshl_b32 s%d, s%d, 6" % (sT, sT))
    p("s_lshr_b32 s%d, s%d, 4" % (sT2, sIdx))
    p("s_add_u32 s%d, s%d, s%d" % (sT, sT, sT2))
    p("v_and_b32 v%d, 31, v%d" % (t0, vLane))
    p("v_lshl_add_u32 v%d, v%d, 1, s%d" % (t0, t0, sT))
    p("s_lshl_b32 s%d, s%d, 3" % (sT, sIdx))
    p("v_and_b32 v%d, 7, v%d" % (t1, vLane))
    p("v_add_u32 v%d, s%d, v%d" % (t1, sT, t1))
    p("v_cmp_gt_u32 vcc, 32, v%d" % vLane)
    p("v_cndmask_b32 v%d, v%d, v%d, vcc" % (vPoll, t0, t1))
    p("v_lshlrev_b32 v%d, 7, v%d" % (vPoll, vPoll))
    p("v_xor_b32 v%d, 0x200, v%d" % (t2, t2))
    p("s_lshl_b32 s%d, s%d, 13" % (sT, sWave))
    p("s_add_u32 s%d, s%d, 0x20000" % (sT, sT))
    p("v_add_u32 v%d, s%d, v%d" % (t0, sT, vL16))
    p(WL + "\ns_barrier")
    p("ds_read_b64 %s, v%d" % (rr("v", vMp, 2), t2))
    for k in range(8):
        p("ds_write_b128 v%d, %s offset:%d" % (t0, rr("v", Q(0, 0) + 4 * k, 4), k * 1024))
    sUB = sBo
    p("s_andn2_b32 s%d, s%d, 7" % (sUB, sIdx))
    p("s_add_u32 s%d, s%d, s%d" % (sUB, sUB, sXcd))
    p("s_cmp_eq_u32 s%d, 7" % sI)
    p("s_cselect_b32 s%d, s%d, 64" % (sUB, sUB))
    p("s_add_u32 s%d, s%d, 32" % (sT, sXcd))
    p("s_cmp_eq_u32 s%d, 6" % sIdx)
    p("s_cselect_b32 s%d, s%d, s%d" % (sUB, sT, sUB))
    p("s_lshl_b32 s%d, s%d, 1" % (sCnt, sI))
    p("s_add_u32 s%d, s%d, 1" % (sCnt, sCnt))
    p(WL)
    st_()
    dec = ["s_sub_u32 s%d, s%d, 1" % (sCnt, sCnt)]
    HOOKS = (3, 5, 7, 11, 13, 15, 25, 29)
    hk = ["s_mov_b32 s%d, 0x%x" % (sT, 0 if os.environ.get("X_NOHOOK") else sum(1 << e for e in HOOKS)), "s_bitcmp1_b32 s%d, s%d" % (sT, sIt)]
    def setcont(lab):
        p("s_getpc_b64 s[%d:%d]\n%s_pc:" % (sCont, sCont + 1, lab))
        p("s_add_u32 s%d, s%d, %s-%s_pc\ns_addc_u32 s%d, s%d, 0" % (sCont, sCont, lab, lab, sCont + 1, sCont + 1))
    p.add(kv_store(0, 4) + kv_store(1, 4))
    setcont("M_l1c")
    p("M_l1:")
    iteration(0, False, 1, "x")
    iteration(1, True, 1, "l1", hk, ["s_cbranch_scc1 M_hook", "M_l1c:"] + dec + ["s_cbranch_scc0 M_l1"])
    st_()
    def ctx_base(sblk):
        p("s_lshl_b32 s%d, s%d, 20" % (sT, sblk))
        p("s_lshl_b32 s%d, s%d, 15" % (sT2, sH))
        p("s_add_u32 s%d, s%d, s%d" % (sT, sT, sT2))
        p("s_add_u32 s%d, s%d, s%d" % (sCb, sT, sW2k))
    ctx_store = lambda r, jj: "buffer_store_dwordx4 %s, v%d, s[%d:%d], s%d offen offset:%d %s" % (rr("v", r, 4), vL16, sC, sC + 3, sCb, jj * 1024, WT)
    ctx_base(sI)
    for jj in range(2):
        p("v_rcp_f32 v%d, v%d" % (vU + 2 + jj, vL + 2 + jj))
        p("v_mov_b32 v%d, 0" % (vL + 2 + jj))
    Z = PP(1, 0)
    for k in range(4):
        p("v_mov_b32 v%d, 0" % (Z + k))
    for ds in range(4):
        T = S(1, 0) + (ds & 1) * 16
        for jj in range(2):
            for k in range(8):
                p("v_accvgpr_read_b32 v%d, a%d" % (T + 8 * jj + k, O(2 + jj, 2 * ds) + k))
        if ds & 1:
            p(zero_o(4 + (ds >> 1), Z)); p(zero_o(6 + (ds >> 1), Z))
        for jj in range(2):
            for k in range(8):
                p("v_mul_f32 v%d, v%d, v%d" % (T + 8 * jj + k, T + 8 * jj + k, vU + 2 + jj))
        p.add(pack_tile(T, T))
        p(ctx_store(T, 0)); p(ctx_store(T + 4, 1))
        if ds < 3:
            p("s_add_u32 s%d, s%d, 0x2000" % (sCb, sCb))
    for hh in range(2):
        so = sG
        p.add(["s_and_b32 s%d, s%d, 0x1ffff" % (sT, so), "s_add_u32 m0, s%d, s%d" % (sT, sW2k), kvld(so, 0), kvld(so, 1), "s_add_u32 s%d, s%d, 0x4000" % (so, so)])
    p("s_mov_b32 s%d, 1.0" % sKeep)
    p("s_cmp_ge_u32 s%d, 40\ns_cbranch_scc1 M_nowob" % sUB)
    wo_src(B_WO, sUB)
    p("M_nowob:")
    p("s_lshl_b32 s%d, s%d, 1" % (sCnt, sI))
    p("s_sub_u32 s%d, 14, s%d" % (sCnt, sCnt))
    st_()
    setcont("M_l2")
    p("M_l2:")
    iteration(0, True, 2, "l2", dec, ["s_cbranch_scc1 M_l2x"])
    iteration(1, True, 2, "l2", hk, ["s_cbranch_scc0 M_l2"])
    back = jump("s_setpc_b64 s[%d:%d]" % (sCont, sCont + 1), ["M_l1c", "M_l2"])
    vP = vA
    def bm2_loads(q):
        bm_frag_loads(q, 0, aXQ)
        q("s_lshl_b32 s%d, s%d, 16" % (sT, sIdx))
        q("s_lshl_b32 s%d, s%d, 14" % (sT2, sWave))
        q("s_add_u32 s%d, s%d, s%d" % (sT, sT, sT2))
        srd(q, sO, ptr(D_WS), off_s=sT, off_imm=WS_KVP, nrec=16384)
        for j in range(2):
            for k in range(5):
                if k in (0, 4):
                    q("s_mov_b32 s%d, %d" % (sT, j * 8192 + k * 1024))
                q("buffer_load_dwordx4 %s, v%d, s[%d:%d], s%d offen offset:%d %s" % (rr("a", aPA + j * 20 + k * 4, 4), vL16, sO, sO + 3, sT, (k & 3) * 1024, WT))
    jobs = {3: kv_store(0, 5) + kv_store(1, 5), 5: kv_store(0, 6) + kv_store(1, 6), 7: kv_store(0, 7) + kv_store(1, 7),
            11: publish(3), 13: poll_load("KV"), 15: poll_check("KV"), 25: code_touch(vKV, 8) + poll_load(3), 29: poll_check(3) + L(bm2_loads)}
    p("M_hook:")
    for e in HOOKS[:-1]:
        p("s_cmp_eq_u32 s%d, %d\ns_cbranch_scc1 M_hook%d" % (sIt, e, e))
    for e in reversed(HOOKS):
        p("M_hook%d:" % e)
        ins = [x if isinstance(x, I) else I(x) for x in jobs[e]]
        for x in ins:
            if x.kind == "vmem":
                x.wr = set()
        p.add(ins + [back])
    p("M_l2x:")
    for f in range(8, 16):
        p(fread(f, 1))
    chk, br = slow_site(1)
    p.add(sm_stream(1, 1) + sum_mf(1) + chk + br + accl(1))
    p("s_waitcnt vmcnt(0) lgkmcnt(0)\ns_barrier")
    p.add(publish(4))
    mfl = pv_mf(1)
    mfl = [mfl[d * 4 + j] for jj in (2, 0) for d in range(8) for j in (jj, jj + 1)]
    p("s_mul_i32 s%d, s%d, 20480" % (sT, sWave))
    p("v_add_u32 v%d, s%d, v%d" % (t0, sT, vL16))
    p("v_mov_b32 v%d, v%d\nv_mov_b32 v%d, v%d" % (vOne, vM + 2, vOne + 1, vM + 3))
    G = Gaps16(32)
    G.put(2, "ds_write_b128 v%d, %s offset:16384" % (t0, rr("v", vL + 2, 4)))
    for k in range(16):
        G.put(16 + k, "ds_write_b128 v%d, %s offset:%d" % (t0, rr("a", O(2 + (k & 1), k >> 1), 4), k * 1024))
    p.add(G.emit(mfl))
    st_()
    Lr, SUM, KA, N = 96, 176, 200, 96
    for k in range(40):
        p("v_accvgpr_read_b32 v%d, a%d" % (Lr + k, aPA + k))
    for e in range(20):
        p("v_add_f32 v%d, v%d, v%d" % (Lr + e, Lr + e, Lr + 20 + e))
    p("v_add_u32 v%d, s%d, v%d" % (vDma, sW4, vL16))
    p("v_add_u32 v%d, 0x%x, v%d" % (t1, 6 * U, vDma))
    for k in range(5):
        p("ds_write_b128 v%d, %s offset:%d" % (t1, rr("v", Lr + 4 * k, 4), (k & 3) * 1024 + (k >> 2) * U))
    p("v_and_b32 v%d, 31, v%d" % (t2, vLane))
    p("v_min_u32 v%d, 20, v%d" % (t2, t2))
    p("v_and_b32 v%d, 32, v%d" % (t1, vLane))
    p("v_add_lshl_u32 v%d, v%d, v%d, 4" % (vP, t1, t2))
    p("v_add_u32 v%d, 0x%x, v%d" % (vP, 6 * U, vP))
    p("s_xor_b32 s%d, s%d, 1" % (sT, sWave))
    p("s_mul_i32 s%d, s%d, 20480" % (sT, sT))
    p("v_add_u32 v%d, s%d, v%d" % (t0, sT, vL16))
    p("s_sub_u32 s%d, 15, s%d" % (sCnt, sI))
    ctx_base(sCnt)
    p(WL + "\ns_barrier")
    XO = 160
    p("ds_read_b128 %s, v%d offset:16384" % (rr("v", TMP, 4), t0))
    for k in range(16):
        p("ds_read_b128 %s, v%d offset:%d" % (rr("v", XO + (k & 1) * 32 + (k >> 1) * 4, 4), t0, k * 1024))
    for jj in range(2):
        fa, fb = vU + 2 * jj, vU + 2 * jj + 1
        p("v_min_f32 v%d, v%d, v%d" % (t1, vM + jj, TMP + 2 + jj))
        p("v_sub_f32 v%d, v%d, v%d" % (fa, t1, vM + jj))
        p("v_sub_f32 v%d, v%d, v%d" % (fb, t1, TMP + 2 + jj))
        p("v_exp_f32 v%d, v%d" % (fa, fa))
        p("v_exp_f32 v%d, v%d" % (fb, fb))
        p("v_mul_f32 v%d, v%d, v%d" % (vL + jj, vL + jj, fa))
        p("v_fmac_f32 v%d, v%d, v%d" % (vL + jj, TMP + jj, fb))
        p("v_rcp_f32 v%d, v%d" % (t1, vL + jj))
        p("v_mul_f32 v%d, v%d, v%d" % (fa, fa, t1))
        p("v_mul_f32 v%d, v%d, v%d" % (fb, fb, t1))
    for ds in range(4):
        T = 32 + (ds & 1) * 16
        for jj in range(2):
            for k in range(8):
                p("v_accvgpr_read_b32 v%d, a%d" % (T + 8 * jj + k, O(jj, 2 * ds) + k))
        for jj in range(2):
            for k in range(8):
                p("v_mul_f32 v%d, v%d, v%d" % (T + 8 * jj + k, T + 8 * jj + k, vU + 2 * jj))
            for k in range(8):
                p("v_fmac_f32 v%d, v%d, v%d" % (T + 8 * jj + k, XO + jj * 32 + ds * 8 + k, vU + 2 * jj + 1))
        p.add(pack_tile(T, T))
        p(ctx_store(T, 0)); p(ctx_store(T + 4, 1))
        if ds < 3:
            p("s_add_u32 s%d, s%d, 0x2000" % (sCb, sCb))
    p("s_cmp_ge_u32 s%d, 40\ns_cbranch_scc1 M_nowob2" % sUB)
    woB = [XO + 4 * n for n in range(5)]
    wo_reads(True, woB)
    wo_stores(True, sUB, woB, sY)
    p("M_nowob2:")
    st_()
    for w in range(4):
        for k in range(5):
            p("ds_read_b128 %s, v%d offset:%d" % (rr("v", Lr + w * 20 + 4 * k, 4), vP, w * 4096 + (k & 3) * 1024 + (k >> 2) * U))
    phi(aXQ)
    p("s_waitcnt vmcnt(0) lgkmcnt(0)\ns_barrier")
    p.add(publish(5))
    sKq, sMb, sCc, sGc, sGw, sGw2, sWs, sRs, sW5, sDl = range(37, 47)
    sPC, sPW, sXO, sOut = sBO, sW, sO, sW2
    vDw, vC, vWf = 3, 4, 8
    SZ = 36864
    p("s_lshr_b32 s%d, s%d, 1" % (sKq, sXcd))
    p("s_lshr_b32 s%d, s%d, 3" % (sCc, sIdx))
    p("s_sub_u32 s%d, 15, s%d" % (sT, sI))
    p("s_bitcmp1_b32 s%d, 0" % sXcd)
    p("s_cselect_b32 s%d, s%d, s%d" % (sMb, sT, sI))
    p("s_cselect_b32 s%d, 5, 4" % sT2)
    p("v_mov_b32 v%d, s%d" % (vPoll + 1, sT2))
    p("s_and_b32 s%d, s2, 0x3e" % sT)
    p("v_bfe_u32 v%d, v%d, 1, 2" % (t1, vLane))
    p("v_lshl_add_u32 v%d, v%d, 6, s%d" % (t1, t1, sT))
    p("v_and_b32 v%d, 1, v%d" % (t2, vLane))
    p("v_add_lshl_u32 v%d, v%d, v%d, 7" % (vPoll, t1, t2))
    for e in range(20):
        p("v_add_f32 v%d, v%d, v%d" % (Lr + e, Lr + e, Lr + 20 + e))
        p("v_add_f32 v%d, v%d, v%d" % (Lr + 40 + e, Lr + 40 + e, Lr + 60 + e))
    for e in range(20):
        p("v_add_f32 v%d, v%d, v%d" % (SUM + e, Lr + e, Lr + 40 + e))
    for k in range(10):
        p("v_cvt_pk_bf16_f32 v%d, v%d, v%d" % (KA + k, SUM + 2 * k, SUM + 2 * k + 1))
    for r in (KA + 10, KA + 11, PH + 10, PH + 11):
        p("v_mov_b32 v%d, 0" % r)
    def num(N):
        for u in range(3):
            p("%s %s, %s, %s, %s" % (MF, rr("v", N, 16), rr("v", KA + 4 * u, 4), rr("v", PH + 4 * u, 4), rr("v", N, 16) if u else "0"))
    num(N)
    p("s_lshl_b32 s%d, s%d, 20" % (sT, sMb))
    p("s_lshl_b32 s%d, s%d, 18" % (sT2, sKq))
    p("s_add_u32 s%d, s%d, s%d" % (sT, sT, sT2))
    srd(p, sPC, ptr(D_WS), off_s=sT, off_imm=WS_CTX, nrec=32 * 8192)
    p("s_lshl_b32 s%d, s%d, 2" % (sT, sCc))
    p("s_add_u32 s%d, s%d, s%d" % (sT, sT, sKq))
    p("s_mul_i32 s%d, s%d, %d" % (sT, sT, 32 * 10240))
    srd(p, sPW, ptr(D_WS), off_s=sT, off_imm=WS_WOA, nrec=32 * 10240)
    p("s_mul_i32 s%d, s%d, 5120" % (sW5, sWave))
    p("v_add_u32 v%d, s%d, v%d" % (vDw, sW5, vL16))
    p("s_add_u32 s%d, s%d, 0x4000" % (sW5, sW5))
    p.add(poll_load("A"))
    phi(aXQ + 8)
    num(N + 32)
    p("s_mov_b32 s%d, 0\ns_mov_b32 s%d, 0\ns_movk_i32 s%d, 0x1000\ns_mov_b32 s%d, 0\ns_mov_b32 s%d, 0" % (sGc, sGw, sGw2, sWs, sRs))
    sIc, sIw = sKo, sL2
    p("s_movk_i32 s%d, 0x4000\ns_movk_i32 s%d, 0x5000" % (sIc, sIw))
    p.add(poll_check("A"))
    p("s_barrier")
    st_()
    dC = [["s_add_u32 m0, s%d, s%d" % (sWs, sW4)]] + \
         ["buffer_load_dwordx4 v%d, s[%d:%d], s%d offen offset:%d %s lds" % (vDma, sPC, sPC + 3, sGc, k * 1024, WT) for k in range(4)]
    dW = [["s_add_u32 m0, s%d, s%d" % (sWs, sW5)]] + \
         ["buffer_load_dwordx4 v%d, s[%d:%d], s%d offen offset:%d %s lds" % (vDw, sPW, sPW + 3, sGw, k * 1024, WT) for k in range(4)] + \
         [["s_add_u32 m0, m0, 0x1000"], "buffer_load_dwordx4 v%d, s[%d:%d], s%d offen %s lds" % (vDw, sPW, sPW + 3, sGw2, WT)]
    dAdv = ["s_add_u32 s%d, s%d, s%d" % (sGc, sGc, sIc), "s_add_u32 s%d, s%d, s%d" % (sGw, sGw, sIw), "s_add_u32 s%d, s%d, s%d" % (sGw2, sGw2, sIw),
            "s_add_u32 s%d, s%d, %d" % (sWs, sWs, SZ), "s_cmp_eq_u32 s%d, %d" % (sWs, 4 * SZ), "s_cselect_b32 s%d, 0, s%d" % (sWs, sWs)]
    p("s_mov_b32 s%d, 2\nM_p3pre:" % sSpin)
    p.add(dC + dW + dAdv)
    p("s_sub_u32 s%d, s%d, 1\ns_cbranch_scc0 M_p3pre" % (sSpin, sSpin))
    p("v_lshlrev_b32 v%d, 7, v0" % t0)
    p("s_lshl_b32 s%d, s%d, 16" % (sT, sCc))
    p("buffer_load_dword v%d, v%d, s[%d:%d], s%d offen %s" % (vDum, t0, sPC, sPC + 3, sT, WT))
    p("s_add_u32 s%d, s%d, 0x8000" % (sT, sT))
    p("buffer_load_dword v%d, v%d, s[%d:%d], s%d offen %s" % (vDum, t0, sPC, sPC + 3, sT, WT))
    p("s_lshr_b32 s%d, s%d, 1" % (sT, sTT))
    p("s_mul_i32 s%d, s%d, 81920" % (sT, sT))
    srd(p, sY, ptr(D_WS), off_s=sT, off_imm=WS_OB, nrec=81920)
    p("s_mul_i32 s%d, s%d, 20" % (sT, sIdx))
    vO = vA
    p("v_and_b32 v%d, 15, v%d" % (t0, vLane))
    p("v_lshlrev_b32 v%d, 4, v%d" % (t0, t0))
    p("v_bfe_u32 v%d, v%d, 4, 1" % (t2, vLane))
    p("v_lshl_add_u32 v%d, v%d, 10, v%d" % (t0, t2, t0))
    p("v_lshrrev_b32 v%d, 5, v%d" % (t1, vLane))
    p("v_lshl_add_u32 v%d, v%d, 2, s%d" % (t1, t1, sT))
    for jj in range(3):
        if jj:
            p("v_add_u32 v%d, 8, v%d" % (t1, t1))
        p("v_lshrrev_b32 v%d, 5, v%d" % (t2, t1))
        p("v_lshl_add_u32 v%d, v%d, 12, v%d" % (vO + jj, t2, t0))
        p("v_bfe_u32 v%d, v%d, 3, 2" % (t2, t1))
        p("v_lshl_add_u32 v%d, v%d, 8, v%d" % (vO + jj, t2, vO + jj))
        p("v_and_b32 v%d, 7, v%d" % (t2, t1))
        p("v_lshl_add_u32 v%d, v%d, 1, v%d" % (vO + jj, t2, vO + jj))
    p("v_bfrev_b32 v%d, 1" % t1)
    p("v_cmp_gt_u32 vcc, 32, v%d" % vLane)
    p("v_cndmask_b32 v%d, v%d, v%d, vcc" % (vO + 2, t1, vO + 2))
    for tt in range(2):
        n0 = N + 32 * tt
        p("v_add_f32 v%d, 0x%x, v%d" % (n0 + 12, f2u(1e-6), n0 + 12))
        p("v_rcp_f32 v%d, v%d" % (n0 + 12, n0 + 12))
        for k in range(12):
            p("v_mul_f32 v%d, v%d, v%d" % (n0 + k, n0 + k, n0 + 12))
        for k in range(6):
            p("v_cvt_pk_bf16_f32 v%d, v%d, v%d" % (n0 + 16 + k, n0 + 2 * k, n0 + 2 * k + 1))
        for jj in range(3):
            p("buffer_store_dwordx2 %s, v%d, s[%d:%d], 0 offen offset:%d %s" % (rr("v", n0 + 16 + 2 * jj, 2), vO + jj, sY, sY + 3, tt * 2048, WT))
    MF16 = "v_mfma_f32_16x16x32_bf16"
    PA = 160
    pacc = lambda q, n: PA + (q * 5 + n) * 4
    pfr = lambda st, i: st * 36 + i * 4
    aOB = 80
    p("s_lshr_b32 s%d, s%d, 1" % (sT, sWave))
    p("s_lshl_b32 s%d, s%d, 2" % (sT, sT))
    p("s_add_u32 s%d, s%d, s%d" % (sT, sT, sKq))
    p("s_lshl_b32 s%d, s%d, 10" % (sT, sT))
    p("v_add_u32 v%d, s%d, v%d" % (vC, sT, vL16))
    for qq in range(1, 4):
        p("v_xor_b32 v%d, 0x%x, v%d" % (vC + qq, qq << 10, vC))
    p("s_and_b32 s%d, s%d, 1" % (sT, sWave))
    p("s_mul_i32 s%d, s%d, 5120" % (sT, sT))
    p("s_add_u32 s%d, s%d, 0x4000" % (sT, sT))
    p("v_add_u32 v%d, s%d, v%d" % (vWf, sT, vL16))
    for k in range(80):
        p("v_mov_b32 v%d, 0" % (PA + k))
    def p_reads(st):
        c = ["ds_read_b128 %s, v%d offset:%d" % (rr("a", pfr(st, qq), 4), vC + qq, st * 8192) for qq in range(4)]
        w = ["ds_read_b128 %s, v%d offset:%d" % (rr("a", pfr(st, 4 + n), 4), vWf, st * 10240 + n * 1024) for n in range(5)]
        return [w[0]] + c + w[1:]
    p_mf = lambda st: ["%s %s, %s, %s, %s" % (MF16, rr("v", pacc(qq, n), 4), rr("a", pfr(st, 4 + n), 4), rr("a", pfr(st, qq), 4), rr("v", pacc(qq, n), 4)) for n in range(5) for qq in range(4)]
    G = Gaps(40)
    G.spread(p_reads(1), 0, 12)
    G.put(19, ["s_waitcnt vmcnt(13) lgkmcnt(0)", "s_barrier"])
    G.put(13, ["s_add_u32 s%d, s%d, 1" % (sRs, sRs), "s_and_b32 s%d, s%d, 3" % (sRs, sRs)])
    G.put(14, ["s_mov_b32 s%d, %d" % (sDl, SZ), "s_cselect_b32 s%d, s%d, 0x%x" % (sDl, sDl, u32(-3 * SZ))])
    G.spread(["v_add_u32 v%d, s%d, v%d" % (r, sDl, r) for r in (vWf, vC, vC + 1, vC + 2, vC + 3)], 15, 18)
    G.spread(p_reads(0), 20, 32)
    for k, x in enumerate(dC):
        G.put(max(0, 4 * k - 1) + (1 if k == 0 else 0), x)
    for k, x in zip((20, 21, 25, 29, 33, 36, 37), dW):
        G.put(k, x)
    G.put(34, dAdv[3:]); G.put(38, dAdv[:3]); G.put(39, ["s_sub_u32 s%d, s%d, 1" % (sNlo, sNlo), WL, "s_cbranch_scc0 M_p3"])
    tail.extend(["M_p3:"] + G.emit(p_mf(0) + p_mf(1)) + [ret])
    p("s_waitcnt vmcnt(26)\ns_barrier")
    st_()
    p.add(p_reads(0))
    p(WL)
    for s in range(16):
        if s == 3:
            p.add(publish(6))
        if s == 9:
            p("s_lshr_b32 s%d, s%d, 4" % (sT, sIdx))
            p("v_min_u32 v%d, 19, v%d" % (t0, vLane))
            p("v_lshl_add_u32 v%d, v%d, 1, s%d" % (t0, t0, sT))
            p("v_lshrrev_b32 v%d, 3, v%d" % (t1, t0))
            p("v_lshlrev_b32 v%d, 6, v%d" % (t1, t1))
            p("v_and_b32 v%d, 7, v%d" % (t2, t0))
            p("v_add3_u32 v%d, v%d, v%d, 56" % (t1, t1, t2))
            p("v_add_u32 v%d, 16, v%d" % (t2, t0))
            p("v_cmp_gt_u32 vcc, 32, v%d" % t0)
            p("v_cndmask_b32 v%d, v%d, v%d, vcc" % (t0, t2, t1))
            p("v_and_b32 v%d, 31, v%d" % (t1, vLane))
            p("v_lshl_add_u32 v%d, v%d, 3, s%d" % (t1, t1, sXcd))
            p("v_cmp_gt_u32 vcc, 32, v%d" % vLane)
            p("v_cndmask_b32 v%d, v%d, v%d, vcc" % (vPoll, t1, t0))
            p("v_lshlrev_b32 v%d, 7, v%d" % (vPoll, vPoll))
            p("v_cndmask_b32 v%d, 6, 5, vcc" % (vPoll + 1))
            p.add(poll_load("B"))
        if s == 13:
            p.add(poll_check("B"))
            p("s_lshr_b32 s%d, s%d, 2" % (sT, sIdx))
            p("s_mul_i32 s%d, s%d, 102400" % (sT, sT))
            srd(p, sPC, ptr(D_WS), off_s=sT, off_imm=WS_WOB, nrec=102400)
            p("s_mov_b64 s[%d:%d], s[%d:%d]\ns_mov_b32 s%d, s%d" % (sPW, sPW + 1, sPC, sPC + 1, sPW + 2, sPC + 2))
            p("s_mov_b32 s%d, 0\ns_movk_i32 s%d, 0x4000\ns_movk_i32 s%d, 0x5000\ns_mov_b32 s%d, %d\ns_mov_b32 s%d, %d" % (sGc, sGw, sGw2, sIc, SZ, sIw, SZ))
            p("s_lshl_b32 s%d, s%d, 2" % (sTT, sXcd))
            p("s_and_b32 s%d, s%d, 3" % (sT, sIdx))
            p("s_add_u32 s%d, s%d, s%d" % (sTT, sTT, sT))
            p("s_mul_i32 s%d, s%d, 81920" % (sT, sTT))
            srd(p, sY, ptr(D_WS), off_s=sT, off_imm=WS_OB, nrec=81920)
        if s >= 13:
            ks0 = (s - 13) * 7
            p("s_lshl_b32 s%d, s%d, 10" % (sT, sWave))
            if ks0:
                p("s_add_u32 s%d, s%d, %d" % (sT, sT, ks0 * 4096))
            for ks in range(ks0, min(ks0 + 7, 20)):
                p("buffer_load_dwordx4 %s, v%d, s[%d:%d], s%d offen %s" % (rr("a", aOB + 4 * ks, 4), vL16, sY, sY + 3, sT, WT))
                p("s_addk_i32 s%d, 0x1000" % sT)
        seg = {0: 3, 3: 6, 9: 4, 13: 1, 14: 1, 15: 1}
        if s in seg:
            p("s_mov_b32 s%d, %d" % (sNlo, seg[s] - 1))
            p(call("M_p3"))
    st_()
    XS = 4 * 2560
    p("s_and_b32 s%d, s%d, 1" % (sT, sXcd))
    p("s_lshl_b32 s%d, s%d, 5" % (sT, sT))
    p("s_add_u32 s%d, s%d, s%d" % (sT, sT, sIdx))
    p("s_mul_i32 s%d, s%d, %d" % (sT, sT, 16 * XS))
    srd(p, sXO, ptr(D_WS), off_s=sT, off_imm=WS_XB, nrec=16 * XS)
    p("s_mul_i32 s%d, s%d, 2560" % (sT, sWave))
    p("v_add_u32 v%d, s%d, v%d" % (vDw, sT, vL16))
    p("v_lshl_add_u32 v%d, v%d, 3, s%d" % (vC, vLane, sT))
    def xfer(op, qq):
        b = PA + qq * 20
        for k in range(2):
            p("buffer_%s_dwordx4 %s, v%d, s[%d:%d], s%d offen offset:%d %s" % (op, rr("v", b + 4 * k, 4), vDw, sXO, sXO + 3, sT, k * 1024, WT))
        p("buffer_%s_dwordx2 %s, v%d, s[%d:%d], s%d offen offset:2048 %s" % (op, rr("v", b + 8, 2), vC, sXO, sXO + 3, sT, WT))
    for qq in range(1, 4):
        p("s_xor_b32 s%d, s%d, %d" % (sT, sKq, qq))
        p("s_lshl_b32 s%d, s%d, 2" % (sT, sT))
        p("s_add_u32 s%d, s%d, s%d" % (sT, sT, sKq))
        p("s_mul_i32 s%d, s%d, %d" % (sT, sT, XS))
        for k in range(10):
            p("v_cvt_pk_bf16_f32 v%d, v%d, v%d" % (PA + qq * 20 + k, PA + qq * 20 + 2 * k, PA + qq * 20 + 2 * k + 1))
        xfer("store", qq)
    BA = 32
    p("v_add_u32 v%d, %d, v%d" % (vWf, 10 * 5120, vL16))
    p("s_waitcnt vmcnt(9)\ns_barrier")
    bfr = lambda k: (k % 15) * 4
    brd = lambda k: "ds_read_b128 %s, v%d offset:%d" % (rr("a", bfr(k), 4), vWf if k >= 50 else vL16, (k % 50) * 1024)
    for k in range(10):
        p(brd(k))
    for k in range(100):
        ks, n = divmod(k, 5)
        a = rr("v", BA + 4 * n, 4)
        if n == 0:
            p.add([I("need", xrd=[("a", bfr(k + 4) + e) for e in range(4)])])
        p("%s %s, %s, %s, %s" % (MF16, a, rr("a", bfr(k), 4), rr("a", aOB + 4 * ks, 4), a if ks else "0"))
        if k + 10 < 100:
            p(brd(k + 10))
        if k == 40:
            p("s_waitcnt vmcnt(0)\ns_barrier")
            p.add(publish(7))
    st_()
    srd(p, sOut, ptr(D_OUT), nrec=2048 * 2560)
    p("v_and_b32 v%d, 15, v%d" % (t0, vLane))
    p("v_mul_u32_u24 v%d, 2560, v%d" % (vWf, t0))
    p("v_lshrrev_b32 v%d, 4, v%d" % (t0, vLane))
    p("v_lshl_add_u32 v%d, v%d, 3, v%d" % (vWf, t0, vWf))
    p("s_andn2_b32 s%d, s2, 6" % sT)
    p("v_and_b32 v%d, 3, v%d" % (t0, vLane))
    p("v_lshl_add_u32 v%d, v%d, 1, s%d" % (vPoll, t0, sT))
    p("v_lshlrev_b32 v%d, 7, v%d" % (vPoll, vPoll))
    p.add(poll_load(7))
    p("s_lshl_b32 s%d, s%d, 2" % (sT, sTT))
    p("s_add_u32 s%d, s%d, s%d" % (sT, sT, sWave))
    p("s_mul_i32 s%d, s%d, %d" % (sT, sT, 16 * 2560))
    p("s_lshr_b32 s%d, s%d, 2" % (sT2, sIdx))
    p("s_mul_i32 s%d, s%d, 160" % (sT2, sT2))
    p("s_add_u32 s%d, s%d, s%d" % (sOff, sT, sT2))
    for n in range(5):
        b = BA + 4 * n
        p("v_cvt_pk_bf16_f32 v%d, v%d, v%d" % (b, b, b + 1))
        p("v_cvt_pk_bf16_f32 v%d, v%d, v%d" % (b + 1, b + 2, b + 3))
        p("buffer_store_dwordx2 %s, v%d, s[%d:%d], s%d offen offset:%d" % (rr("v", b, 2), vWf, sOut, sOut + 3, sOff, 1280 + n * 32))
    p.add(poll_check(7))
    for qq in range(1, 4):
        p("s_xor_b32 s%d, s%d, %d" % (sT, sKq, qq))
        p("s_lshl_b32 s%d, s%d, 2" % (sT2, sKq))
        p("s_add_u32 s%d, s%d, s%d" % (sT, sT, sT2))
        p("s_mul_i32 s%d, s%d, %d" % (sT, sT, XS))
        xfer("load", qq)
    p("s_lshl_b32 s%d, s%d, 3" % (sT, sMb))
    p("s_lshr_b32 s%d, s%d, 1" % (sT2, sWave))
    p("s_lshl_b32 s%d, s%d, 2" % (sT2, sT2))
    p("s_add_u32 s%d, s%d, s%d" % (sT, sT, sT2))
    p("s_add_u32 s%d, s%d, s%d" % (sT, sT, sKq))
    p("s_mul_i32 s%d, s%d, %d" % (sT, sT, 16 * 2560))
    p("s_lshl_b32 s%d, s%d, 1" % (sT2, sCc))
    p("s_and_b32 s%d, s%d, 1" % (sOff, sWave))
    p("s_add_u32 s%d, s%d, s%d" % (sT2, sT2, sOff))
    p("s_mul_i32 s%d, s%d, 160" % (sT2, sT2))
    p("s_add_u32 s%d, s%d, s%d" % (sOff, sT, sT2))
    for qq in range(1, 4):
        for k in range(10):
            r = PA + qq * 20 + k
            p("v_lshlrev_b32 v%d, 16, v%d" % (t0, r))
            p("v_and_b32 v%d, 0xffff0000, v%d" % (r, r))
            p("v_add_f32 v%d, v%d, v%d" % (PA + 2 * k, PA + 2 * k, t0))
            p("v_add_f32 v%d, v%d, v%d" % (PA + 2 * k + 1, PA + 2 * k + 1, r))
    for n in range(5):
        b = pacc(0, n)
        p("v_cvt_pk_bf16_f32 v%d, v%d, v%d" % (b, b, b + 1))
        p("v_cvt_pk_bf16_f32 v%d, v%d, v%d" % (b + 1, b + 2, b + 3))
        p("buffer_store_dwordx2 %s, v%d, s[%d:%d], s%d offen offset:%d" % (rr("v", b, 2), vWf, sOut, sOut + 3, sOff, n * 32))
    st_()
    st_.dump(vtmp=t0)
    p("M_exit:\ns_endpgm")
    p.add(tail)
    for par in range(2):
        p("M_slow%d:" % par)
        p("s_nop 15")
        for j in range(4):
            d, f, d2 = vU + 2, vU + 3, vU + 4
            p.add(rowmax(par, j, d, f))
            p("v_max_f32 v%d, 0, v%d" % (d, d))
            p("v_exp_f32 v%d, -v%d" % (f, d))
            if j >= 2:
                p("v_mul_f32 v%d, s%d, v%d" % (d2, sKeep, d))
            else:
                d2 = d
            for k in range(8):
                p("v_sub_f32 v%d, v%d, v%d" % (S(par, j) + k, S(par, j) + k, d))
                for b in (S(par ^ 1, j), CI(j)):
                    p("v_sub_f32 v%d, v%d, v%d" % (b + k, b + k, d2))
            p("v_sub_f32 v%d, v%d, v%d" % (vM + j, vM + j, d2))
            p("v_mul_f32 v%d, v%d, v%d" % (vL + j, vL + j, f))
            for k in range(0, 32, 8):
                for e in range(8):
                    p("v_accvgpr_read_b32 v%d, a%d" % (TMP + e, O(j, 0) + k + e))
                for e in range(8):
                    p("v_mul_f32 v%d, v%d, v%d" % (TMP + e, TMP + e, f))
                for e in range(8):
                    p("v_accvgpr_write_b32 a%d, v%d" % (O(j, 0) + k + e, TMP + e))
        p.add(sm_stream(par, 2) + sum_mf(par))
        p.add([x for x in sm_stream(par ^ 1, 0) if x.startswith("v_exp")][:NE])
        p("s_nop 3")
        p(ret)
    p("M_codeend:")
    p.finish()
    return p
```

```python
from asmlib import *
from layout import *
from k_p1 import srd, x_rd_addr, w_rd_addr, MF
import os, struct

def f2u(x):
    return struct.unpack("<I", struct.pack("<f", x))[0]

NEG = 0xF149F2CA
THRESH = int(os.environ.get("THRESH", "0x5F800000"), 0)
BIAS = float(os.environ.get("BIAS", "40"))
QSCALE = f2u((128 ** -0.5) * 1.4426950408889634)
LOG2E = f2u(1.4426950408889634)
WT = os.environ.get("WT", "sc1")
PREFETCH = int(os.environ.get("PREFETCH", "2"))
NTW = os.environ.get("NTW", "nt")
WE = int(os.environ.get("WE", "10"))
CODEPF = int(os.environ.get("CODEPF", "1"))
WBL2 = int(os.environ.get("WBL2", "0"))
VERB = int(os.environ.get("VERB", "0"))
U = 16384
M16 = "v_mfma_f32_16x16x32_bf16"
u32 = lambda x: x & 0xffffffff

def L(f, *a, **k):
    q = Prog()
    f(q, *a, **k)
    return q.ins

def build_main():
    p = Prog()
    sX, sW, sW2, sO, sD, sBO = 4, 8, 12, 16, 20, 24
    sBF, sPhi, sY, sC, sKV = sW2, sO, sX, sW, sBO
    sH, sI, sWave, sW4, sT, sT2, sOff, sXcd, sIdx, sTB, sCB, sHi, sLo = range(28, 41)
    sM, sS, sKo, sRet, sTT, sL2, sSpin, sBo = 41, 44, 47, 48, 50, 51, 52, 53
    sRd, sGv, sG, sIt, sNb, sTriA, sTriB, sThr, sCnt, sCb = range(37, 47)
    sMask, sNext, sKeep, sW2k, sNlo, sCont = 54, 92, 93, 94, 95, 82
    sDa, sDb, sDc = 86, 87, 88
    P = 56
    ptr = lambda off: P + off // 4
    vLane = 1
    vX, vW, vXr, vWr = 2, 6, 10, 14
    vL16, t0, t1, t2, vDum, vStamp, vA = 22, 23, 24, 25, 26, 27, 28
    vGo = vA + 1
    vDma, vLim, vNeg, vKV, vB, vL, vOne, vM, vPoll, vU = 2, 3, 4, 5, 6, 8, 12, 16, 20, 232
    vMp = vA + 2
    RA, RB, RC, RD = 32, 96, 160, 224
    TMP, AW = 224, 240
    S = lambda par, j: 32 + par * 32 + j * 8
    CI = lambda j: 96 + j * 8
    PP = lambda par, j: 128 + par * 16 + j * 4
    Q = lambda j, ds: 160 + j * 16 + ds * 4
    O = lambda j, d: j * 32 + d * 4
    FB = lambda j: 128 + j * 4
    aXF, aVF, aRAW, aPA, aPK = 128, 144, 96, 192, 192
    tail = []
    ret = "s_setpc_b64 s[%d:%d]" % (sRet, sRet + 1)
    call = lambda lab: "s_call_b64 s[%d:%d], %s" % (sRet, sRet + 1, lab)

    def x_voffs(pitch, wsh=5):
        return ["v_lshrrev_b32 v%d, 3, v%d" % (t0, vLane),
                "s_lshl_b32 s%d, s%d, %d" % (sT, sWave, wsh),
                "v_add_u32 v%d, s%d, v%d" % (t0, sT, t0),
                "v_mul_u32_u24 v%d, %d, v%d" % (t0, pitch, t0),
                "v_lshrrev_b32 v%d, 4, v%d" % (t1, vLane),
                "v_and_b32 v%d, 7, v%d" % (t2, vLane),
                "v_xor_b32 v%d, v%d, v%d" % (t2, t2, t1),
                "v_lshl_add_u32 v%d, v%d, 4, v%d" % (vX, t2, t0),
                "v_xor_b32 v%d, 4, v%d" % (t2, t2),
                "v_lshl_add_u32 v%d, v%d, 4, v%d" % (vX + 1, t2, t0),
                "v_add_u32 v%d, %d, v%d" % (vX + 1, 8 * pitch - 1024, vX + 1),
                "v_add_u32 v%d, %d, v%d" % (vX + 2, 2 * (8 * pitch - 1024), vX),
                "v_add_u32 v%d, %d, v%d" % (vX + 3, 2 * (8 * pitch - 1024), vX + 1)]
    def w_voffs(pitch, m16):
        r = ["v_lshrrev_b32 v%d, 4, v%d" % (t0, vLane),
             "v_lshlrev_b32 v%d, 2, v%d" % (t1, t0),
             "s_lshl_b32 s%d, s%d, 4" % (sT, sWave),
             "v_add_u32 v%d, s%d, v%d" % (t0, sT, t0),
             "v_mul_u32_u24 v%d, %d, v%d" % (t0, pitch, t0),
             "v_and_b32 v%d, 15, v%d" % (t2, vLane),
             "v_xor_b32 v%d, v%d, v%d" % (t2, t2, t1),
             "v_lshl_add_u32 v%d, v%d, 4, v%d" % (vW, t2, t0)] + \
            ["v_add_u32 v%d, %d, v%d" % (vW + k, k * (4 * pitch - 1024), vW) for k in range(1, 4)]
        if m16:
            r += ["v_xor_b32 v%d, 32, v%d" % (vW + k, vW + k) for k in (2, 3)]
        return r
    def x_rd16(dst):
        return ["v_and_b32 v%d, 15, v%d" % (t0, vLane), "v_bfe_u32 v%d, v%d, 1, 3" % (t1, vLane), "v_lshrrev_b32 v%d, 4, v%d" % (dst, vLane),
                "v_xor_b32 v%d, v%d, v%d" % (dst, dst, t1), "v_lshlrev_b32 v%d, 4, v%d" % (dst, dst), "v_lshl_add_u32 v%d, v%d, 7, v%d" % (dst, t0, dst)]
    def w_rd16(dst):
        return ["v_bfe_u32 v%d, v%d, 2, 2" % (t0, vLane), "v_lshrrev_b32 v%d, 4, v%d" % (t1, vLane),
                "v_lshlrev_b32 v%d, 11, v%d" % (dst, t1), "v_lshl_add_u32 v%d, v%d, 8, v%d" % (dst, t0, dst), "v_lshl_add_u32 v%d, v%d, 6, v%d" % (dst, t0, dst),
                "v_and_b32 v%d, 1, v%d" % (t1, t1), "v_lshl_add_u32 v%d, v%d, 5, v%d" % (dst, t1, dst),
                "v_and_b32 v%d, 3, v%d" % (t0, vLane), "v_lshl_add_u32 v%d, v%d, 3, v%d" % (dst, t0, dst)]
    def dma(i, srdn, fl=""):
        v = vX if srdn == sX else vW
        return [["s_mov_b32 m0, s%d" % (sM + i)]] + \
               ["buffer_load_dwordx4 v%d, s[%d:%d], s%d offen offset:%d %s lds" % (v + q, srdn, srdn + 3, sS + i, q * 1024, fl) for q in range(4)]
    def put_dma(G, i, srdn, lo, hi, fl=""):
        d = dma(i, srdn, fl)
        G.put(lo, d[0])
        G.spread(d[1:], lo + 1, hi)
    def w_srd(q, d, which, col_s, total):
        q("s_lshl_b32 s%d, s%d, 8" % (sT, col_s))
        srd(q, d, ptr(which), off_s=sT)
        q("s_sub_u32 s%d, %d, s%d" % (d + 2, total, sT))
    def sw_XB(q):
        q("s_mul_i32 s%d, s%d, %d" % (sT, sTB, 128 * 1280))
        srd(q, sX, ptr(B_X), off_s=sT)
        q("s_cmp_lt_u32 s2, 240\ns_cselect_b32 s%d, %d, 0" % (sX + 2, 128 * 1280))
        q.add(x_voffs(1280))
    def sw_WB(q):
        w_srd(q, sW, B_WQKV, sCB, 640 * 3840)
        q("s_cmp_lt_u32 s2, 240\ns_cselect_b32 s%d, s%d, 0" % (sW + 2, sW + 2))
        q("s_mov_b64 s[%d:%d], s[%d:%d]\ns_mov_b32 s%d, s%d" % (sW2, sW2 + 1, sW, sW + 1, sW2 + 2, sW + 2))
        q.add(w_voffs(3840, 0))
    def sw_XQ(q):
        srd(q, sX, ptr(A_X), nrec=2048 * 1280)
    def sw_WQ(q):
        w_srd(q, sW, A_WQ, sH, 640 * 8192)
        q.add(w_voffs(8192, 1))

    class Plan:
        def __init__(s):
            s.vm, s.unit, s.free, s.when, s.now = [], {}, [], {}, 0
            s.pend = {"X": [], "W": []}
            s.job = {"X": "KV", "W": "KV"}
            for st in range(8):
                for g in range(2):
                    s.pend["X"].append((("KX", st, g), "KV", st, str(g * 256 * 1024 + st * 128), ((2 * st) % 5) * 2 + g))
                    s.pend["W"].append((("KW", st, g), "KV", st, str(st * 64 * 8192), ((2 * st + 1) % 5) * 2 + g))
            for b in range(10):
                s.pend["X"].append((("BX", b), "B", 8 + b, str(b * 128), None))
                s.pend["W"].append((("BW", b), "B", 8 + b, str(b * 64 * 3840), None))
            for st in range(10):
                s.pend["X"].append((("QX", st, 0), "Q", 18 + st, (sHi, st * 128), None))
                s.pend["X"].append((("QX", st, 1), "Q", 18 + st, (sLo, st * 128), None))
                s.pend["W"].append((("QW", st), "Q", 18 + st, str(st * 64 * 8192), None))
            s.free = list(range(10))
        def copy(s):
            import copy
            return copy.deepcopy(s)
        def take(s, ty, i):
            oth = "W" if ty == "X" else "X"
            pre = []
            c = s.pend[ty][0] if s.pend[ty] else None
            if c is not None:
                if c[4] is not None:
                    ok = c[4] in s.free
                else:
                    resv = {g[4] for t in "XW" for g in s.pend[t] if g[4] is not None}
                    av = [x for x in s.free if x not in resv]
                    ok = len(av) - 1 >= sum(1 for g in s.pend[oth] if g[2] < c[2] and g[4] is None)
                if not ok:
                    c = None
            if c is None:
                return ["s_mov_b32 s%d, 0x30000" % (sM + i), "s_brev_b32 s%d, 1" % (sS + i)], None
            s.pend[ty].pop(0)
            un = c[4] if c[4] is not None else av[0]
            s.free.remove(un)
            s.unit[c[0]] = un
            s.when[c[0]] = s.now
            if c[1] != s.job[ty]:
                s.job[ty] = c[1]
                pre += L({"XB": sw_XB, "WB": sw_WB, "XQ": sw_XQ, "WQ": sw_WQ}[ty + c[1]])
            pre.append("s_add_u32 s%d, s%d, 0x%x" % (sM + i, sW4, un * U))
            if isinstance(c[3], tuple):
                pre.append("s_add_u32 s%d, s%d, %d" % (sS + i, c[3][0], c[3][1]))
            else:
                pre.append("s_mov_b32 s%d, %s" % (sS + i, c[3]))
            return pre, c[0]
        def issue(s, tag, n=4):
            s.vm += [tag] * n
        def hook(s, ins, tag="h"):
            for t in ins:
                i = t if isinstance(t, I) else I(t)
                if i.cnt == "vm":
                    s.vm.append(tag)
        def barrier(s, need, free, dt):
            last = max(max(k for k, t in enumerate(s.vm) if t == n) for n in need) if need else -1
            N = len(s.vm) - 1 - last
            if VERB:
                print("barrier need", need, "N", N, "flight", [s.now - s.when[n] for n in need if n in s.when])
            for f in free:
                s.free.append(s.unit[f])
            s.now += dt
            s.done = last
            return ["s_waitcnt %slgkmcnt(0)" % ("vmcnt(%d) " % min(N, 63) if need else ""), "s_barrier"]
        def complete(s, tag):
            return max(k for k, t in enumerate(s.vm) if t == tag) <= s.done
    pl = Plan()

    def pf_lin(which, total, k):
        share = total // 32
        return ["s_mul_i32 s%d, s%d, %d" % (sT, sIdx, share), "s_lshl_b32 s%d, s%d, 13" % (sT2, sWave), "s_add_u32 s%d, s%d, s%d" % (sT, sT, sT2),
                "s_add_u32 s%d, s%d, %d" % (sT, sT, k * 32768),
                "v_lshl_add_u32 v%d, v%d, 7, s%d" % (t0, vLane, sT), "v_min_u32 v%d, %d, v%d" % (t0, total - 128, t0),
                "global_load_dword v%d, v%d, s[%d:%d]" % (vDum, t0, ptr(which), ptr(which) + 1)]
    def pf_w(which, rows):
        share = rows // 32
        return ["s_mul_i32 s%d, s%d, %d" % (sT, sIdx, share), "s_lshl_b32 s%d, s%d, 3" % (sT2, sWave), "s_add_u32 s%d, s%d, s%d" % (sT, sT, sT2),
                "v_lshrrev_b32 v%d, 3, v%d" % (t0, vLane), "v_add_u32 v%d, s%d, v%d" % (t0, sT, t0), "v_min_u32 v%d, %d, v%d" % (t0, rows - 1, t0),
                "v_lshlrev_b32 v%d, 13, v%d" % (t0, t0), "v_and_b32 v%d, 7, v%d" % (t1, vLane), "v_lshl_add_u32 v%d, v%d, 7, v%d" % (t0, t1, t0),
                "s_lshl_b32 s%d, s%d, 10" % (sT, sXcd), "v_add_u32 v%d, s%d, v%d" % (t0, sT, t0),
                "global_load_dword v%d, v%d, s[%d:%d]" % (vDum, t0, ptr(which), ptr(which) + 1)]
    def pf_bx():
        return ["s_mul_i32 s%d, s%d, %d" % (sT, sXcd, 256 * 1280), "s_mul_i32 s%d, s%d, 10240" % (sT2, sIdx), "s_add_u32 s%d, s%d, s%d" % (sT, sT, sT2),
                "v_lshlrev_b32 v%d, 7, v0" % t0, "v_min_u32 v%d, %d, v%d" % (t0, 10240 - 128, t0), "v_add_u32 v%d, s%d, v%d" % (t0, sT, t0),
                "global_load_dword v%d, v%d, s[%d:%d]" % (vDum, t0, ptr(B_X), ptr(B_X) + 1)]

    def extra(ty, keep):
        if len(pl.free) <= keep:
            return []
        pre, tag = pl.take(ty, 2)
        if tag is None:
            return []
        pl.issue(tag)
        d = dma(2, sX if ty == "X" else sW)
        return pre + d[0] + d[1:]
    def skel(last_mf, bar, mf, custom, target, NP=2):
        if last_mf:
            p(last_mf)
        p.add(bar)
        n = len(custom)
        for k in range(NP):
            p.add([mf[k]] + custom[k * n // NP:(k + 1) * n // NP])
        p(call(target))
    def body(name, G, mf, entries=None, NP=2):
        out = ["%s:" % name]
        for k in range(NP, G.n - 1):
            if entries and k in entries:
                out.append("%s:" % entries[k])
            out += [mf[k]] + G.gap(k)
        assert not any(G.gap(k) for k in list(range(NP)) + [G.n - 1])
        tail.extend(out + [ret])
    def pack_tile(src, dst):
        return ["v_cvt_pk_bf16_f32 v%d, v%d, v%d" % (dst + k, src + 2 * k, src + 2 * k + 1) for k in range(8)]
    FULL = int(os.environ.get("FULL", "1"))
    def publish(val):
        lab = p.newlabel("M_pub")
        return ["s_cmp_lg_u32 s%d, 0" % sWave, "s_cbranch_scc1 %s" % lab,
                "s_lshl_b32 s%d, s2, 7" % sT, "v_mov_b32 v%d, %d" % (t0, val), "v_lshlrev_b32 v%d, 2, v%d" % (t1, vLane),
                "s_mov_b32 exec_hi, 0" if FULL else "s_mov_b64 exec, 1",
                "buffer_store_dword v%d, v%d, s[%d:%d], s%d offen sc1" % (t0, t1, sD, sD + 3, sT),
                "s_mov_b64 exec, -1", "%s:" % lab]
    def poll_load(kind):
        if kind == "go":
            return ["v_mov_b32 v%d, 0" % t0, "global_load_dword v%d, v%d, s[%d:%d] sc1" % (vGo, t0, ptr(D_DBG), ptr(D_DBG) + 1)]
        if kind == 2:
            r = ["v_min_u32 v%d, 29, v%d" % (t0, vLane), "v_lshlrev_b32 v%d, 10, v%d" % (t0, t0), "s_lshl_b32 s%d, s%d, 7" % (sT, sXcd)]
        elif kind in (1, "KV"):
            r = ["v_and_b32 v%d, 7, v%d" % (t0, vLane), "v_lshlrev_b32 v%d, 10, v%d" % (t0, t0), "s_andn2_b32 s%d, s2, 0x38" % sT, "s_lshl_b32 s%d, s%d, 7" % (sT, sT)]
        elif kind in ("A", "B", 7, 3):
            return ["buffer_load_dword v%d, v%d, s[%d:%d], 0 offen sc1" % (vDum, vPoll, sD, sD + 3)]
        else:
            r = ["v_and_b32 v%d, 7, v%d" % (t0, vLane), "v_lshlrev_b32 v%d, 7, v%d" % (t0, t0), "s_lshl_b32 s%d, s%d, 10" % (sT, sIdx)]
        return r + ["buffer_load_dword v%d, v%d, s[%d:%d], s%d offen sc1" % (vKV if kind == "KV" else vDum, t0, sD, sD + 3, sT)]
    def poll_check(kind):
        lab = p.newlabel("M_poll")
        chk = ["v_cmp_gt_u32 vcc, %s, v%d" % (("1", vGo) if kind == "go" else (("v%d" % (vPoll + 1), vDum) if kind in ("A", "B") else (str(kind), vDum)))]
        if kind == "KV":
            chk = ["v_cmp_gt_u32 vcc, 3, v%d" % vKV]
        tail.extend(["%s:" % lab, "s_mov_b32 s%d, 0x40000" % sSpin, "%s_l:" % lab, "s_sleep 1"] + poll_load(kind) + ["s_waitcnt vmcnt(0)"] + chk +
                    ["s_cbranch_vccz %s_r" % lab, "s_sub_u32 s%d, s%d, 1" % (sSpin, sSpin), "s_cbranch_scc0 %s_l" % lab, "s_branch %s_r" % lab])
        if kind in ("KV", 3):
            c = I(chk[0])
            c.rd = set()
            chk = ["s_waitcnt vmcnt(8)", c]
        return chk + ["s_cbranch_vccnz %s" % lab, "%s_r:" % lab]
    def pf(which, total, first, nlines):
        return ["s_lshl_b32 s%d, s2, 2" % sT, "s_add_u32 s%d, s%d, s%d" % (sT, sT, sWave), "s_mul_i32 s%d, s%d, %d" % (sT, sT, nlines),
                "s_add_u32 s%d, s%d, %d" % (sT, sT, first), "v_min_u32 v%d, %d, v%d" % (t0, nlines - 1, vLane), "v_add_u32 v%d, s%d, v%d" % (t0, sT, t0),
                "v_min_u32 v%d, %d, v%d" % (t0, total // 128 - 1, t0), "v_lshlrev_b32 v%d, 7, v%d" % (t0, t0),
                "global_load_dword v%d, v%d, s[%d:%d]" % (vDum, t0, ptr(which), ptr(which) + 1)]

    sPC0 = 96
    def code_touch(dst, mode):
        if not (CODEPF & mode):
            return []
        return ["s_lshl_b32 s%d, s%d, 2" % (sT, sIdx), "s_add_u32 s%d, s%d, s%d" % (sT, sT, sWave), "s_lshl_b32 s%d, s%d, 9" % (sT, sT),
                "v_and_b32 v%d, 3, v%d" % (t0, vLane), "v_lshl_add_u32 v%d, v%d, 7, s%d" % (t0, t0, sT), "v_min_u32 v%d, M_codeend-M_pc0-4, v%d" % (t0, t0),
                "global_load_dword v%d, v%d, s[%d:%d]" % (dst, t0, sPC0, sPC0 + 1)]
    p("s_cmp_ge_u32 s2, 256\ns_cbranch_scc1 M_exit")
    p("s_getpc_b64 s[%d:%d]\nM_pc0:" % (sPC0, sPC0 + 1))
    p("s_load_dwordx16 s[%d:%d], s[0:1], 0" % (P, P + 15))
    p("s_load_dwordx8 s[%d:%d], s[0:1], 64" % (P + 16, P + 23))
    p("s_load_dwordx2 s[%d:%d], s[0:1], 96" % (P + 24, P + 25))
    st_ = Stamper(p, vStamp, kid=0)
    p("v_and_b32 v%d, 63, v0" % vLane)
    p("v_lshrrev_b32 v%d, 6, v0" % t0)
    p("v_readfirstlane_b32 s%d, v%d" % (sWave, t0))
    p("s_and_b32 s%d, s2, 7" % sXcd)
    p("s_lshr_b32 s%d, s2, 3" % sIdx)
    p("s_lshl_b32 s%d, s%d, 12" % (sW4, sWave))
    p("s_lshl_b32 s%d, s%d, 2" % (sH, sXcd))
    p("s_lshr_b32 s%d, s%d, 3" % (sT, sIdx))
    p("s_add_u32 s%d, s%d, s%d" % (sH, sH, sT))
    p("s_and_b32 s%d, s%d, 7" % (sI, sIdx))
    p.add(code_touch(vDum, 1))
    pl.hook(code_touch(vDum, 1))
    p.add(x_voffs(1024, 9))
    p.add(w_voffs(8192, 1))
    p("s_waitcnt lgkmcnt(0)")
    st_()
    srd(p, sD, ptr(D_WS), off_imm=WS_FL, nrec=32768)
    p("s_cmp_lg_u32 s2, 255\ns_cbranch_scc1 M_nolead")
    p("v_lshlrev_b32 v%d, 7, v0\nv_mov_b32 v%d, 0" % (t0, t1))
    p("buffer_store_dword v%d, v%d, s[%d:%d], 0 offen sc1" % (t1, t0, sD, sD + 3))
    p("M_nolead:")
    p("s_lshl_b32 s%d, s%d, 15" % (sT, sI))
    srd(p, sX, ptr(A_CKV), off_s=sT)
    p("s_sub_u32 s%d, 0x200000, s%d" % (sX + 2, sT))
    w_srd(p, sW, A_WUK, sH, 512 * 8192)
    w_srd(p, sW2, A_WUV, sH, 512 * 8192)
    for ty in "XWXW":
        for g in range(2):
            pre, tag = pl.take(ty, 0)
            p.add(pre + dma(0, sX if ty == "X" else (sW, sW2)[g], "" if ty == "X" else NTW))
            pl.issue(tag)
    p("s_mul_i32 s%d, s%d, 800" % (sT, sIdx))
    srd(p, sPhi, ptr(B_WPHI), off_s=sT, nrec=800)
    b1, b2 = vA, vA + 1
    p("s_and_b32 s%d, s%d, 3" % (sT, sIdx))
    p("s_mul_i32 s%d, s%d, 160" % (sT, sT))
    p("v_lshrrev_b32 v%d, 5, v%d" % (t0, vLane))
    p("v_mul_u32_u24 v%d, 160, v%d" % (t0, t0))
    p("v_subrev_u32 v%d, s%d, v%d" % (t0, sT, t0))
    p("v_and_b32 v%d, 3, v%d" % (t1, vLane))
    p("v_lshl_add_u32 v%d, v%d, 1, v%d" % (t0, t1, t0))
    p("v_bfe_u32 v%d, v%d, 3, 2" % (t1, vLane))
    p("v_lshl_add_u32 v%d, v%d, 3, v%d" % (b1, t1, t0))
    p("v_add_u32 v%d, 32, v%d" % (b2, t0))
    p("v_bfrev_b32 v%d, 1" % t2)
    p("v_cmp_eq_u32 vcc, 0, v%d" % t1)
    p("v_cndmask_b32 v%d, v%d, v%d, vcc" % (b2, t2, b2))
    p.add(x_rd16(vXr))
    p("s_lshr_b32 s%d, s%d, 1" % (sT, sWave))
    p("s_lshl_b32 s%d, s%d, 14" % (sT, sT))
    p("v_add_u32 v%d, s%d, v%d" % (vXr, sT, vXr))
    p("v_xor_b32 v%d, 64, v%d" % (vXr + 1, vXr))
    p("s_lshl_b32 s%d, s%d, 3" % (sKo, sT))
    p.add(w_rd16(vWr))
    p("s_and_b32 s%d, s%d, 1" % (sT, sWave))
    p("s_lshl_b32 s%d, s%d, 7" % (sT, sT))
    p("s_add_u32 s%d, s%d, 0x%x" % (sT, sT, 2 * U))
    p("v_xor_b32 v%d, s%d, v%d" % (vWr, sT, vWr))
    for c in range(1, 4):
        p("v_xor_b32 v%d, %d, v%d" % (vWr + c, c * 32, vWr))
    p("v_lshlrev_b32 v%d, 4, v%d" % (vL16, vLane))
    gath = []
    n = 0
    for tile in range(2):
        for u in range(2):
            for e in range(8):
                cw = 16 * u + 8 * (e >> 2) + (e & 3)
                t = (t0, t1, t2)[n % 3]
                gath += ["v_add_u32 v%d, %d, v%d" % (t, cw * 40, b2 if tile else b1),
                         "buffer_load_ushort a%d, v%d, s[%d:%d], 0 offen" % (aRAW + n, t, sPhi, sPhi + 3)]
                n += 1
    p("s_lshl_b32 s%d, s%d, 1" % (sTB, sXcd))
    p("s_cmp_ge_u32 s%d, 15" % sIdx)
    p("s_cselect_b32 s%d, 15, 0" % sT)
    p("s_addc_u32 s%d, s%d, 0" % (sTB, sTB))
    p("s_sub_u32 s%d, s%d, s%d" % (sCB, sIdx, sT))
    p("s_mul_i32 s%d, s%d, %d" % (sLo, sI, 128 * 1280))
    p("s_sub_u32 s%d, %d, s%d" % (sHi, 15 * 128 * 1280, sLo))

    sWp, vWt = 84, vA + 2
    WTOUCH = int(os.environ.get("WTOUCH", "0"))
    p("s_cmp_ge_u32 s%d, 2" % sWave)
    p("s_cselect_b64 s[%d:%d], s[%d:%d], s[%d:%d]" % (sWp, sWp + 1, ptr(A_WUV), ptr(A_WUV) + 1, ptr(A_WUK), ptr(A_WUK) + 1))
    p("s_and_b32 s%d, s%d, 1" % (sT, sWave))
    p("s_lshl_b32 s%d, s%d, 1" % (sT2, sIdx))
    p("s_add_u32 s%d, s%d, s%d" % (sT, sT, sT2))
    p("s_lshl_b32 s%d, s%d, 3" % (sT, sT))
    p("s_add_u32 s%d, s%d, s%d" % (sT, sT, sXcd))
    p("s_lshl_b32 s%d, s%d, 10" % (sT, sT))
    p("v_and_b32 v%d, 7, v%d" % (vWt, vLane))
    p("v_lshl_add_u32 v%d, v%d, 7, s%d" % (vWt, vWt, sT))
    p("v_add_u32 v%d, 0x%x, v%d" % (vWt, 64 * 8192, vWt))
    wtouch = ["v_add_u32 v%d, 0x%x, v%d" % (vWt, 64 * 8192, vWt), "global_load_dword v%d, v%d, s[%d:%d] %s" % (vDum, vWt, sWp, sWp + 1, NTW)] if WTOUCH else []
    p.add(wtouch + wtouch)
    pl.hook(wtouch + wtouch)
    fx = lambda st, i: 128 + st * 64 + i * 4
    fw = lambda st, i: 128 + st * 64 + 32 + i * 4
    def kvreg(mat, n):
        if mat == 0:
            return ("v", RB + 16 * n if n < 4 else RA + 16 * (n - 4))
        return ("v", RC + 16 * n) if n < 4 else (("v", RD + 16 * (n - 4)) if n < 6 else ("a", 16 * (n - 6)))
    def kv_reads(st):
        X = ["ds_read_b128 %s, v%d offset:%d" % (rr("a", fx(st, i), 4), vXr + st, i * 2048) for i in range(8)]
        W = ["ds_read_b64_tr_b16 %s, v%d offset:%d" % (rr("a", fw(st, i) + 2 * u, 2), vWr + (i & 3), (i >> 2) * U + st * 8192 + u * 1024) for i in range(8) for u in range(2)]
        return X[:2] + W[:8] + X[2:] + W[8:]
    def kv_mf(st, zero=False):
        r = []
        for mat in range(2):
            for n in range(8):
                f, b0 = kvreg(mat, n)
                for e in range(4):
                    a = rr(f, b0 + 4 * e, 4)
                    tt, cc = (e & 1, e >> 1) if mat else (e >> 1, e & 1)
                    X, W = rr("a", fx(st, 2 * (n >> 1) + tt), 4), rr("a", fw(st, mat * 4 + 2 * (n & 1) + cc), 4)
                    A, B = (X, W) if mat else (W, X)
                    r.append("%s %s, %s, %s, %s" % (M16, a, A, B, "0" if zero else a))
        return r
    WL = "s_waitcnt lgkmcnt(0)"
    mfA, mfB = kv_mf(1), kv_mf(0)
    NK = 6
    G = Gaps16(64)
    G.spread(kv_reads(0), NK, 55)
    put_dma(G, 0, sW, NK, 21, NTW); put_dma(G, 1, sW2, 22, 35, NTW)
    body("M_kvA", G, mfA, NP=NK)
    G = Gaps16(64)
    G.spread(kv_reads(1), NK, 55)
    put_dma(G, 0, sX, NK, 32); put_dma(G, 1, sX, 33, 57)
    sadd = lambda regs, sd: ["v_add_u32 v%d, s%d, v%d" % (r, sd, r) for r in regs]
    kv_upd = sadd([vXr, vXr + 1], sDa) + sadd([vWr + c for c in range(4)], sDb)
    G.spread(kv_upd, 58, 62)
    kv_del = lambda s: ["s_mov_b32 s%d, 0x%x" % (sDa, u32((((2 * s) % 5) - ((2 * s - 2) % 5)) * 2 * U)), "s_mov_b32 s%d, 0x%x" % (sDb, u32((((2 * s + 1) % 5) - ((2 * s - 1) % 5)) * 2 * U))]
    body("M_kvB", G, mfB, NP=NK)
    KVs = lambda s: [("KX", s, 0), ("KX", s, 1), ("KW", s, 0), ("KW", s, 1)]
    st_()
    p.add(pl.barrier(KVs(0), [], 1024))
    st_()
    p.add(kv_reads(0))
    p("s_cmp_lg_u32 s2, 255\ns_cbranch_scc1 M_nolead2\ns_cmp_lg_u32 s%d, 0\ns_cbranch_scc1 M_nolead2" % sWave)
    p("v_mov_b32 v%d, 0\nv_mov_b32 v%d, 1\ns_mov_b64 exec, 1" % (t0, t1))
    p("global_store_dword v%d, v%d, s[%d:%d] sc1" % (t0, t1, ptr(D_DBG), ptr(D_DBG) + 1))
    p("s_mov_b64 exec, -1\nM_nolead2:")
    p(WL)
    G = Gaps16(64)
    G.spread(kv_reads(1), 0, 47)
    for i in range(2):
        pre, tag = pl.take("X", i)
        G.put(0, pre)
        pl.issue(tag)
        put_dma(G, i, sX, 1 + 13 * i, 13 + 13 * i)
    for k in range(32):
        G.put(28 + k, gath[2 * k:2 * k + 2], post=True)
    pl.hook(gath)
    G.put(50, kv_del(1))
    G.spread(kv_upd, 60, 62)
    z = kv_mf(0, zero=True)
    p.add(G.emit(z, 0, 63))
    last = z[63]
    if PREFETCH == 1:
        hooks = [gath[40:], pf_lin(B_WQKV, 640 * 3840, 0) + pf_bx(), pf_lin(B_WQKV, 640 * 3840, 1), pf_lin(B_WQKV, 640 * 3840, 2),
                 pf_w(A_WQ, 640), pf_lin(A_X, 2048 * 1280, 0), pf_lin(A_X, 2048 * 1280, 1), pf_lin(A_X, 2048 * 1280, 2)]
    elif PREFETCH == 2:
        hooks = [gath[40:], pf(B_WQKV, 640 * 3840, 0, 19), pf(B_X, 2048 * 1280, 0, 20), pf(A_X, 2048 * 1280, 0, 20),
                 pf(A_WQ, 640 * 8192, 0, 20), pf(A_WQ, 640 * 8192, 20480, 20), pf(A_WO, 4096 * 1280, 0, 20), pf(A_WO, 4096 * 1280, 20480, 20)]
    elif PREFETCH in (3, 4, 5):
        nt = lambda x: x[:-1] + [x[-1] + (" nt" if PREFETCH == 4 else "")]
        pfo = ["s_lshr_b32 s%d, s2, 1" % sT, "s_mul_i32 s%d, s%d, 40960" % (sT, sT), "s_and_b32 s%d, s2, 1" % sT2, "s_mul_i32 s%d, s%d, 640" % (sT2, sT2),
               "s_add_u32 s%d, s%d, s%d" % (sT, sT, sT2), "v_lshrrev_b32 v%d, 3, v0" % t0, "v_mul_u32_u24 v%d, 1280, v%d" % (t0, t0),
               "v_and_b32 v%d, 7, v0" % t1, "v_min_u32 v%d, 4, v%d" % (t1, t1), "v_lshl_add_u32 v%d, v%d, 7, v%d" % (t0, t1, t0), "v_add_u32 v%d, s%d, v%d" % (t0, sT, t0),
               "global_load_dword v%d, v%d, s[%d:%d]" % (vDum, t0, ptr(A_WO), ptr(A_WO) + 1)]
        def pf_wq(half):
            return ["s_mul_i32 s%d, s%d, 20" % (sT, sWave), "v_min_u32 v%d, 19, v%d" % (t0, vLane), "v_add_u32 v%d, s%d, v%d" % (t0, sT, t0),
                    "s_mul_i32 s%d, s%d, 10" % (sT, sIdx), "s_add_u32 s%d, s%d, %d" % (sT, sT, half * 320), "v_lshrrev_b32 v%d, 3, v%d" % (t1, t0), "v_add_u32 v%d, s%d, v%d" % (t1, sT, t1),
                    "v_and_b32 v%d, 7, v%d" % (t0, t0), "v_lshlrev_b32 v%d, 7, v%d" % (t0, t0), "v_lshl_add_u32 v%d, v%d, 13, v%d" % (t0, t1, t0),
                    "s_lshl_b32 s%d, s%d, 10" % (sT, sXcd), "v_add_u32 v%d, s%d, v%d" % (t0, sT, t0),
                    "global_load_dword v%d, v%d, s[%d:%d]" % (vDum, t0, ptr(A_WQ), ptr(A_WQ) + 1)]
        hooks = [[], pf(B_WQKV, 640 * 3840, 0, 19), nt(pf_bx()), pf(A_X, 2048 * 1280, 0, 20), nt(pf_wq(0)), nt(pf_wq(1)), [], [] if PREFETCH == 5 else nt(pfo)]
    else:
        hooks = [gath[40:]] + [[]] * 7
    hooks[0] = []
    hooks[6] = hooks[6] + poll_load("go")
    def upd(regs, d):
        return ["v_add_u32 v%d, 0x%x, v%d" % (r, u32(d), r) for r in regs]
    for s in range(1, 8):
        bar = pl.barrier(KVs(s), KVs(s - 1), 2048)
        cu = []
        tags = []
        for i in range(2):
            pre, tag = pl.take("W", i)
            cu += pre
            tags.append(tag)
        for t in tags:
            pl.issue(t)
        skel(last, bar, mfA, cu, "M_kvA", NK)
        cu = (wtouch if s <= 4 else []) + list(hooks[s]) + (code_touch(vDum, 2) if s == 5 else [])
        pl.hook(cu)
        tags = []
        for i in range(2):
            pre, tag = pl.take("X", i)
            cu += pre
            tags.append(tag)
        for t in tags:
            pl.issue(t)
        skel(mfA[63], [WL], mfB, cu + kv_del(s + 1), "M_kvB", NK)
        last = mfB[63]
    st_()

    bfx = lambda st, k, i: 128 + st * 32 + k * 16 + i * 4
    bfw = lambda st, k, i: 128 + st * 32 + k * 16 + 8 + i * 4
    def b_reads(st):
        r = []
        for k in range(2):
            ks = st * 2 + k
            for i in range(2):
                r.append("ds_read_b128 %s, v%d offset:%d" % (rr("a", bfx(st, k, i), 4), vXr + ks, i * 4096))
                for u in range(2):
                    r.append("ds_read_b64_tr_b16 %s, v%d offset:%d" % (rr("a", bfw(st, k, i) + 2 * u, 2), vWr + i, ks * 4096 + u * 1024))
        return r
    def b_mf(var, st, zero=False):
        mf = []
        for k in range(2):
            for b in range(2):
                for c in range(2):
                    a = rr("v", RA + (b * 2 + c) * 16, 16)
                    X, W = rr("a", bfx(st, k, b), 4), rr("a", bfw(st, k, c), 4)
                    A, B = (X, W) if var else (W, X)
                    mf.append("%s %s, %s, %s, %s" % (MF, a, A, B, "0" if (zero and k == 0) else a))
        return mf
    def kv_pack(mat, n):
        f, b0 = kvreg(mat, n)
        dst = (RC if mat else RB) + 8 * n
        if f == "v":
            return pack_tile(b0, dst)
        return ["v_accvgpr_read_b32 v%d, a%d" % (RD + k, b0 + k) for k in range(16)] + pack_tile(RD, dst)
    def kv_store(mat, n):
        f, reg = ("v", (RC if mat else RB) + 8 * n) if n < 4 else ("a", aPK + (mat * 4 + n - 4) * 8)
        st = lambda m, so, imm: "buffer_store_dwordx4 %s, v%d, s[%d:%d], s%d offen offset:%d %s" % (rr(f, reg + 4 * m, 4), vL16, sO, sO + 3, so, imm, WT)
        if mat:
            return ["s_and_b32 s%d, s%d, 0x1000" % (sOff, sW4), "s_add_u32 s%d, s%d, s%d" % (sOff, sOff, sKo), "s_add_u32 s%d, s%d, 0x%x" % (sOff, sOff, (n >> 1) * 16 * U + 8192),
                    st(0, sOff, (n & 1) * 2048), st(1, sOff, (n & 1) * 2048 + 1024)]
        return ["s_lshr_b32 s%d, s%d, 1" % (sOff, sW4), "s_and_b32 s%d, s%d, 0x800" % (sOff, sOff), "s_add_u32 s%d, s%d, s%d" % (sOff, sOff, sKo), "s_add_u32 s%d, s%d, 0x%x" % (sOff, sOff, (n >> 1) * 16 * U),
                st(0, sOff, (n & 1) * 1024), "s_addk_i32 s%d, 0x1000" % sOff, st(1, sOff, (n & 1) * 1024)]
    def b_store(t):
        return ["s_add_u32 s%d, s%d, 0x%x" % (sOff, sBo, (t >> 1) * 120 * 1024)] + \
               ["buffer_store_dwordx4 %s, v%d, s[%d:%d], s%d offen offset:%d %s" % (rr("v", RD + 8 * t + 4 * m, 4), vL16, sBO, sBO + 3, sOff, (t & 1) * 2048 + m * 1024, WT) for m in range(2)]
    Bs = lambda b: [("BX", b), ("BW", b)]
    Qs = lambda s: [("QX", s, 0), ("QX", s, 1), ("QW", s)]
    p(last)
    p.add(pl.barrier(Bs(0), KVs(7), 1280))
    def baddr(q):
        x_rd_addr(q, vXr, vLane, t0, t1)
        q("s_lshr_b32 s%d, s%d, 1" % (sT, sWave))
        q("s_lshl_b32 s%d, s%d, 13" % (sT, sT))
        q("s_add_u32 s%d, s%d, 0x%x" % (sT, sT, pl.unit[("BX", 0)] * U))
        for ks in range(4):
            q("v_add_u32 v%d, s%d, v%d" % (vXr + ks, sT, vXr + ks))
        q("s_and_b32 s%d, s%d, 1" % (sT, sWave))
        q("s_lshl_b32 s%d, s%d, 1" % (sT, sT))
        q("v_mov_b32 v%d, s%d" % (t2, sT))
        w_rd_addr(q, vWr, vLane, t0, t1, t2)
        q("v_add_u32 v%d, 0x%x, v%d" % (vWr, pl.unit[("BW", 0)] * U, vWr))
        q("v_xor_b32 v%d, 64, v%d" % (vWr + 1, vWr))
        q("s_lshl_b32 s%d, s%d, 20" % (sT, sH))
        q("s_lshl_b32 s%d, s%d, 14" % (sT2, sI))
        q("s_add_u32 s%d, s%d, s%d" % (sT, sT, sT2))
        srd(q, sO, ptr(D_WS), off_s=sT, off_imm=WS_KV)
        q("s_sub_u32 s%d, 0x100000, s%d" % (sO + 2, sT2))
    G = Gaps16(64)
    ba = L(baddr)
    for k in range(16):
        G.put(k, ba[k * len(ba) // 16:(k + 1) * len(ba) // 16], post=True)
    for i, ty in enumerate("WWX"):
        pre, tag = pl.take(ty, i)
        assert len(pre) == 2
        G.put(0, pre)
        pl.issue(tag)
        put_dma(G, i, sW if ty == "W" else sX, 1 + 20 * i, 20 + 20 * i)
    G.spread(b_reads(0), 20, 56)
    G.stream([x for n in range(8) for x in kv_pack(0, n)], 16, 49)
    G.stream([x for n in range(3) for x in kv_pack(1, n)], 50, 63)
    p.add(G.emit(kv_mf(1)))
    p(WL)
    p("s_cmp_ge_u32 s%d, 10\ns_cbranch_scc1 M_bv" % sCB)
    pl0 = pl
    qfx = lambda st, i: st * 48 + i * 4
    qfw = lambda st, i: st * 48 + 16 + i * 4
    qacc = lambda j, d: RA + j * 32 + d * 4
    def q_reads(st):
        X = ["ds_read_b128 %s, v%d offset:%d" % (rr("a", qfx(st, j), 4), vXr + 2 * (j >> 1) + st, (j & 1) * 2048) for j in (2, 3, 0, 1)]
        W = ["ds_read_b64_tr_b16 %s, v%d offset:%d" % (rr("a", qfw(st, i) + 2 * u, 2), vWr + i, st * 8192 + u * 1024) for i in range(8) for u in range(2)]
        return X[:2] + W + X[2:]
    def q_derive():
        return ["v_xor_b32 v%d, 64, v%d" % (vXr + 1, vXr), "v_xor_b32 v%d, 64, v%d" % (vXr + 3, vXr + 2)] + \
               ["v_xor_b32 v%d, %d, v%d" % (vWr + c, c * 32, vWr) for c in range(1, 8)]
    for var in range(2):
        pl = pl0.copy()
        if var:
            p("M_bv:")
        mfb = b_mf(var, 1) + b_mf(var, 0)
        G = Gaps(16)
        G.spread(b_reads(0), 2, 6); G.put(7, WL); G.spread(b_reads(1), 8, 13)
        put_dma(G, 0, sW, 2, 8); put_dma(G, 1, sX, 9, 14)
        body("M_b%d" % var, G, mfb)
        G = Gaps(8)
        pre, tag = pl.take("X", 1)
        assert len(pre) == 2
        G.put(0, pre)
        pl.issue(tag)
        put_dma(G, 1, sX, 1, 6)
        G.spread(b_reads(1), 0, 5)
        G.stream([x for n in range(3, 8) for x in kv_pack(1, n)], 0, 6)
        z = b_mf(var, 0, zero=True)
        p.add(G.emit(z, 0, 7))
        last = z[7]
        park = ["v_accvgpr_write_b32 a%d, v%d" % (aPK + k, RB + 32 + k) for k in range(32)] + ["v_accvgpr_write_b32 a%d, v%d" % (aPK + 32 + k, RC + 32 + k) for k in range(32)]
        stores = [kv_store(0, 0), park[:12], kv_store(0, 1), park[12:24], kv_store(0, 2), park[24:36], kv_store(0, 3), park[36:50], park[50:]]
        for b in range(1, 10):
            bar = pl.barrier(Bs(b), Bs(b - 1), 512)
            cu = upd([vXr, vXr + 1, vXr + 2, vXr + 3], (pl.unit[("BX", b)] - pl.unit[("BX", b - 1)]) * U) + \
                 upd([vWr, vWr + 1], (pl.unit[("BW", b)] - pl.unit[("BW", b - 1)]) * U)
            cu += extra("X" if (b != 2) else "W", 2)
            tags = []
            for i, ty in enumerate("WX"):
                pre, tag = pl.take(ty, i)
                cu += pre
                tags.append(tag)
            cu += stores[b - 1]
            pl.hook(stores[b - 1], "kv")
            for t in tags:
                pl.issue(t)
            skel(last, bar, mfb, cu, "M_b%d" % var)
            if STAMPS and os.environ.get("FINE"):
                if var and b == 1:
                    st_.n -= 9
                st_()
            last = mfb[15]
        p(last)
        p.add(pl.barrier(Qs(0), Bs(9), 1024))
        G = Gaps(8)
        qa = x_rd16(vXr) + ["s_add_u32 s%d, s%d, 0x%x" % (sT, sW4, pl.unit[("QX", 0, 1)] * U), "v_add_u32 v%d, s%d, v%d" % (vXr + 2, sT, vXr),
                            "s_add_u32 s%d, s%d, 0x%x" % (sT, sW4, pl.unit[("QX", 0, 0)] * U), "v_add_u32 v%d, s%d, v%d" % (vXr, sT, vXr)] + \
             w_rd16(vWr) + upd([vWr], pl.unit[("QW", 0)] * U) + q_derive()
        for k in range(4):
            G.put(k, qa[k * len(qa) // 4:(k + 1) * len(qa) // 4], post=True)
        pre, tag = pl.take("X", 0)
        assert len(pre) == 2
        G.put(0, pre)
        pl.issue(tag)
        put_dma(G, 0, sX, 0, 7)
        G.spread(q_reads(0), 4, 7)
        p.add(G.emit(b_mf(var, 1)))
        if var == 0:
            p("s_branch M_bdone")
    p("M_bdone:")
    st_()

    qorder = [(j, d) for jj in (2, 0) for d in range(8) for j in (jj, jj + 1)]
    def q_mf(st, zero=False):
        return ["%s %s, %s, %s, %s" % (M16, rr("v", qacc(j, d), 4), rr("a", qfw(st, d), 4), rr("a", qfx(st, j), 4), "0" if zero else rr("v", qacc(j, d), 4)) for j, d in qorder]
    mfq = q_mf(1) + q_mf(0)
    NQ = 5
    G = Gaps16(64)
    G.spread(q_reads(0), NQ, 26)
    G.put(31, WL)
    G.spread(q_reads(1), 32, 54)
    put_dma(G, 0, sX, NQ, 21); put_dma(G, 1, sX, 22, 38); put_dma(G, 2, sW, 39, 56)
    q_upd = sadd([vXr], sDa) + sadd([vXr + 2], sDb) + sadd([vWr], sDc) + q_derive()
    G.spread(q_upd, 57, 62)
    def q_del(s):
        if s > 9:
            return []
        return ["s_mov_b32 s%d, 0x%x" % (sd, u32((pl.unit[k(s)] - pl.unit[k(s - 1)]) * U))
                for sd, k in ((sDa, lambda x: ("QX", x, 0)), (sDb, lambda x: ("QX", x, 1)), (sDc, lambda x: ("QW", x)))]
    body("M_q", G, mfq, NP=NQ)
    p("s_mul_i32 s%d, s%d, %d" % (sT, sTB, 4 * 120 * 1024))
    p("s_lshl_b32 s%d, s%d, 13" % (sT2, sCB))
    p("s_add_u32 s%d, s%d, s%d" % (sT, sT, sT2))
    srd(p, sBO, ptr(D_WS), off_s=sT, off_imm=WS_BF)
    p("s_cmp_lt_u32 s2, 240\ns_cselect_b32 s%d, %d, 0" % (sBO + 2, 4 * 120 * 1024))
    p("s_lshr_b32 s%d, s%d, 1" % (sBo, sWave))
    p("s_mul_i32 s%d, s%d, %d" % (sBo, sBo, 2 * 120 * 1024))
    p("s_and_b32 s%d, s%d, 0x1000" % (sT, sW4))
    p("s_add_u32 s%d, s%d, s%d" % (sBo, sBo, sT))
    G = Gaps16(32)
    for i, ty in ((1, "X"), (2, "W")):
        pre, tag = pl.take(ty, i)
        p.add(pre)
        pl.issue(tag)
        put_dma(G, i, sX if ty == "X" else sW, 15 * (i - 1), 15 * (i - 1) + 14)
    p(WL)
    G.spread(q_reads(1), 0, 22)
    G.put(16, q_del(1))
    G.spread(q_upd, 25, 30)
    G.stream([x for t in range(4) for x in pack_tile(RA + 16 * t, RD + 8 * t)], 0, 14)
    z = q_mf(0, zero=True)
    p.add(G.emit(z, 0, 31))
    last = z[31]
    def bm_frag_loads(q, fbase, aXF):
        q("s_lshl_b32 s%d, s%d, 3" % (sTT, sXcd))
        q("s_lshl_b32 s%d, s%d, 1" % (sT, sWave))
        q("s_add_u32 s%d, s%d, s%d" % (sTT, sTT, sT))
        q("s_mul_i32 s%d, s%d, %d" % (sT, sTT, 120 * 1024))
        srd(q, sBF, ptr(D_WS), off_s=sT, off_imm=WS_BF, nrec=2 * 120 * 1024)
        q("s_mul_i32 s%d, s%d, 5" % (sT, sIdx))
        q("s_lshr_b32 s%d, s%d, 2" % (sT, sT))
        q("s_add_u32 s%d, s%d, %d" % (sT, sT, fbase))
        q("s_lshl_b32 s%d, s%d, 10" % (sT, sT))
        for tt in range(2):
            for u in range(2):
                q("buffer_load_dwordx4 %s, v%d, s[%d:%d], s%d offen offset:%d %s" % (rr("a", aXF + (tt * 2 + u) * 4, 4), vL16, sBF, sBF + 3, sT, u * 1024, WT))
            if tt == 0:
                q("s_add_u32 s%d, s%d, %d" % (sT, sT, 120 * 1024))
    vV, vWa, vRd = vA + 2, vA + 3, vA
    def bm1_loads(q):
        bm_frag_loads(q, 40, aXF)
        q("s_mul_i32 s%d, s%d, 20" % (sT, sIdx))
        q("v_and_b32 v%d, 31, v%d" % (t2, vLane))
        q("v_add_u32 v%d, s%d, v%d" % (t1, sT, t2))
        q("v_lshrrev_b32 v%d, 5, v%d" % (vV, t1))
        q("v_lshlrev_b32 v%d, 11, v%d" % (vV, vV))
        q("v_and_b32 v%d, 31, v%d" % (t1, t1))
        q("v_lshl_add_u32 v%d, v%d, 4, v%d" % (vV, t1, vV))
        q("v_and_b32 v%d, 32, v%d" % (t1, vLane))
        q("v_lshl_add_u32 v%d, v%d, 4, v%d" % (vV, t1, vV))
        q("v_bfrev_b32 v%d, 1" % t1)
        q("v_cmp_gt_u32 vcc, 20, v%d" % t2)
        q("v_cndmask_b32 v%d, v%d, v%d, vcc" % (vV, t1, vV))
        for tt in range(2):
            q("s_mov_b32 s%d, %d" % (sT, (tt * 120 + 80) * 1024))
            for mm in range(2):
                q("buffer_load_dwordx4 %s, v%d, s[%d:%d], s%d offen offset:%d %s" % (rr("a", aVF + (tt * 2 + mm) * 4, 4), vV, sBF, sBF + 3, sT, mm * 1024, WT))
    qst = {1: [("kv", kv_store(1, 0)), ("kv", kv_store(1, 1))], 2: [("kv", kv_store(1, 2)), ("kv", kv_store(1, 3))],
           3: [("b", b_store(0)), ("b", b_store(1))], 4: [("b", b_store(2)), ("b", b_store(3))]}
    pubB = pubKV = None
    for s in range(1, 10):
        bar = pl.barrier(Qs(s), Qs(s - 1), 1024)
        cu = q_del(s + 1)
        cu += extra("X", 3)
        tags = []
        for i, ty in enumerate("XXW"):
            pre, tag = pl.take(ty, i)
            cu += pre
            tags.append(tag)
        if s == 1:
            cu.append(poll_check("go"))
        if pubKV is None and s > 2 and pl.complete("kv"):
            pubKV = s
            cu.append(publish(1))
        if pubB is None and s > 4 and pl.complete("b"):
            pubB = s
            cu.append(publish(2))
        for tag, ins in qst.get(s, []):
            cu += ins
            pl.hook(ins, tag)
        if s == 5:
            ins = code_touch(vDum, 4)
            cu += ins
            pl.hook(ins)
        if s == 6:
            ins = poll_load(1)
            cu += ins
            pl.hook(ins, "poll")
        if s == 8:
            assert pl.complete("poll")
            cu.append(poll_check(1))
        if s == 9:
            ins = poll_load(2)
            cu += ins
            pl.hook(ins, "poll")
        for t in tags:
            pl.issue(t)
        skel(last, bar, mfq, cu, "M_q", NQ)
        last = mfq[63]
        if STAMPS and os.environ.get("FINE"):
            st_()
    if VERB:
        print("pubB", pubB, "pubKV", pubKV)
    assert pubB and pubKV and not pl.pend["X"] and not pl.pend["W"]
    C1, C2, PH, VF, KC, AF, RR = 48, 64, 80, 96, 112, TMP, 32
    def phi(xf):
        for tile, C in ((0, C1), (1, C2)):
            for u in range(2):
                p("%s %s, %s, %s, %s" % (MF, rr("v", C, 16), rr("v", AW + (tile * 2 + u) * 4, 4), rr("a", xf + u * 4, 4), rr("v", C, 16) if u else "0"))
        p(call("M_phi"))
    aXQ = 232
    q = Prog()
    q("M_phi:")
    x = [C1 + k for k in range(16)] + [C2 + k for k in range(4)]
    m = t1
    q("v_max3_f32 v%d, v%d, v%d, v%d" % (m, x[0], x[1], x[2]))
    for k in range(3, 19, 2):
        q("v_max3_f32 v%d, v%d, v%d, v%d" % (m, m, x[k], x[k + 1]))
    q("v_max_f32 v%d, v%d, v%d" % (m, m, x[19]))
    q("v_mul_f32 v%d, s%d, v%d" % (m, sL2, m))
    for k in range(20):
        q("v_fma_f32 v%d, v%d, s%d, -v%d" % (x[k], x[k], sL2, m))
    for k in range(20):
        q("v_exp_f32 v%d, v%d" % (x[k], x[k]))
    q("v_add_f32 v%d, v%d, v%d" % (m, x[0], x[1]))
    for k in range(2, 20):
        q("v_add_f32 v%d, v%d, v%d" % (m, m, x[k]))
    q("v_rcp_f32 v%d, v%d" % (m, m))
    for k in range(20):
        q("v_mul_f32 v%d, v%d, v%d" % (x[k], x[k], m))
    for k in range(10):
        q("v_cvt_pk_bf16_f32 v%d, v%d, v%d" % (PH + k, x[2 * k], x[2 * k + 1]))
    q(ret)
    tail += q.ins

    vWo = vA + 1
    def wo_src(which, un):
        p("s_lshr_b32 s%d, s%d, 1" % (sT, un))
        p("s_mul_i32 s%d, s%d, 40960" % (sT, sT))
        p("s_and_b32 s%d, s%d, 1" % (sT2, un))
        p("s_mul_i32 s%d, s%d, 640" % (sT2, sT2))
        p("s_add_u32 s%d, s%d, s%d" % (sT, sT, sT2))
        srd(p, sY, ptr(which), off_s=sT)
        p("s_sub_u32 s%d, 40960, s%d" % (sY + 2, sT2))
        p(call("M_wodma"))
    q = Prog()
    q("M_wodma:")
    q("s_mul_i32 s%d, s%d, 320" % (sT, sWave))
    q("s_mul_i32 s%d, s%d, 5120" % (sT2, sWave))
    q("s_add_u32 m0, s%d, 0x20000" % sT2)
    for k in range(5):
        q("v_add_u32 v%d, s%d, v%d" % (t0, sT, vLane))
        q("v_mul_u32_u24 v%d, 0x667, v%d" % (t1, t0))
        q("v_lshrrev_b32 v%d, 16, v%d" % (t1, t1))
        q("v_mul_u32_u24 v%d, 640, v%d" % (t1, t1))
        q("v_lshl_add_u32 v%d, v%d, 4, v%d" % (t0, t0, t1))
        q("buffer_load_dwordx4 v%d, s[%d:%d], 0 offen lds" % (t0, sY, sY + 3))
        if k < 4:
            q("s_add_u32 s%d, s%d, 64\ns_add_u32 m0, m0, 0x400" % (sT, sT))
    q(ret)
    tail += q.ins
    def wo_reads(isB, regs):
        p("v_lshrrev_b32 v%d, 4, v%d" % (t0, vLane))
        p("v_lshlrev_b32 v%d, %d, v%d" % (vWo, 3 if isB else 2, t0))
        p("v_bfe_u32 v%d, v%d, 2, 2" % (t0, vLane))
        p("v_add_u32 v%d, v%d, v%d" % (vWo, vWo, t0))
        p("v_mul_u32_u24 v%d, 640, v%d" % (vWo, vWo))
        p("v_and_b32 v%d, 3, v%d" % (t0, vLane))
        p("v_lshl_add_u32 v%d, v%d, 3, v%d" % (vWo, t0, vWo))
        p("s_mul_i32 s%d, s%d, 160" % (sT, sWave))
        p("s_add_u32 s%d, s%d, 0x20000" % (sT, sT))
        p("v_add_u32 v%d, s%d, v%d" % (vWo, sT, vWo))
        for n in range(5):
            for u in range(2):
                p("ds_read_b64_tr_b16 %s, v%d offset:%d" % (rr("v", regs[n] + 2 * u, 2), vWo, n * 32 + u * (4 if isB else 16) * 640))
    def wo_stores(isB, un, regs, sY):
        p("s_and_b32 s%d, s%d, 1" % (sT, un))
        p("s_lshl_b32 s%d, s%d, 2" % (sT, sT))
        p("s_add_u32 s%d, s%d, s%d" % (sT, sT, sWave))
        p("s_lshr_b32 s%d, s%d, 1" % (sT2, un))
        if isB:
            p("s_mul_i32 s%d, s%d, 20" % (sT, sT))
            p("s_add_u32 s%d, s%d, s%d" % (sT, sT, sT2))
        else:
            p("s_lshr_b32 s%d, s%d, 1" % (sT, sT))
            p("s_lshl_b32 s%d, s%d, 7" % (sT, sT))
            p("s_add_u32 s%d, s%d, s%d" % (sT, sT, sT2))
            p("s_lshl_b32 s%d, s%d, 1" % (sT, sT))
            p("s_and_b32 s%d, s%d, 1" % (sT2, sWave))
            p("s_add_u32 s%d, s%d, s%d" % (sT, sT, sT2))
        p("s_mul_i32 s%d, s%d, 5120" % (sT, sT))
        srd(p, sY, ptr(D_WS), off_s=sT, off_imm=WS_WOB if isB else WS_WOA, nrec=5120)
        p("s_movk_i32 s%d, 0x1000" % sT)
        for n in range(5):
            p("buffer_store_dwordx4 %s, v%d, s[%d:%d], %s offen offset:%d %s" % (rr("v", regs[n], 4), vL16, sY, sY + 3, "s%d" % sT if n == 4 else "0", (n & 3) * 1024, WT))
    p(last)
    p(WL + "\ns_barrier")
    sQs = sTB
    def kvsetup(q):
        q("s_mov_b32 s%d, 0x%x\ns_mov_b32 s%d, s%d" % (sDa, QSCALE, sDa + 1, sDa))
        q("s_mov_b32 s%d, 0x%x" % (sL2, LOG2E))
        q("s_lshl_b32 s%d, s%d, 20" % (sT, sH))
        srd(q, sKV, ptr(D_WS), off_s=sT, off_imm=WS_KV)
        q("s_lshl_b32 s%d, s%d, 16" % (sT, sI))
        q("s_sub_u32 s%d, 0x100000, s%d" % (sKV + 2, sT))
        q("s_lshl_b32 s%d, s%d, 11" % (sW2k, sWave))
        q("v_add_u32 v%d, s%d, v%d" % (vDma, sW2k, vL16))
    kvld = lambda so, k: "buffer_load_dwordx4 v%d, s[%d:%d], s%d offen offset:%d %s lds" % (vDma, sKV, sKV + 3, so, k * 1024, WT)
    def kv0(t, half):
        o = t * U + half * 8192
        return [["s_add_u32 m0, s%d, 0x%x" % (sW2k, o), "s_mov_b32 s%d, 0x%x" % (sOff, o), kvld(sOff, 0)], kvld(sOff, 1)]
    fl = L(kvsetup) + kv0(0, 0) + kv0(1, 0) + [poll_check(2)] + L(bm1_loads)
    mfl = q_mf(1)
    for k in range(32):
        p(mfl[k])
        p.add(fl[k * len(fl) // 32:(k + 1) * len(fl) // 32])
    st_()
    pp, p = p, Prog()
    wo_src(A_WO, 2)
    wo_chunk, p = p.ins, pp
    va = []
    for j in (2, 3, 0, 1):
        if os.environ.get("PKMUL", "1") == "1":
            va += ["v_pk_mul_f32 %s, %s, s[%d:%d]" % (rr("v", qacc(j, 0) + k, 2), rr("v", qacc(j, 0) + k, 2), sDa, sDa + 1) for k in range(0, 32, 2)]
        else:
            va += ["v_mul_f32 v%d, s%d, v%d" % (qacc(j, 0) + k, sDa, qacc(j, 0) + k) for k in range(32)]
        va += pack_tile(qacc(j, 0), Q(j, 0)) + pack_tile(qacc(j, 4), Q(j, 2))
    va += ["v_accvgpr_read_b32 v%d, a%d" % (RD + k, aRAW + k) for k in range(32)]
    va += ["v_bfe_u32 v%d, v%d, 2, 1" % (vWa, vLane), "v_mul_u32_u24 v%d, 0x8000, v%d" % (vWa, vWa), "v_lshl_or_b32 v%d, v%d, 16, v%d" % (vWa, vWa, vWa)]
    for k in range(15, -1, -1):
        va += ["v_lshl_or_b32 v%d, v%d, 16, v%d" % (AW + k, RD + 2 * k + 1, RD + 2 * k), "v_xor_b32 v%d, v%d, v%d" % (AW + k, AW + k, vWa)]
    vm = kv0(2, 0) + kv0(0, 1) + kv0(1, 1) + [wo_chunk] + kv0(3, 0) + kv0(4, 0) + kv0(5, 0) + kv0(2, 1) + kv0(3, 1)
    for k, x in enumerate(vm):
        p.add([x] + va[k * len(va) // len(vm):(k + 1) * len(va) // len(vm)])
    st_()
    phi(aXF)
    for k in range(4):
        p("v_mov_b32 v%d, 0" % (RR + k))
    zero_o = lambda k, z: "%s %s, %s, %s, 0" % (MF, rr("a", 16 * k, 16), rr("v", z, 4), rr("v", z, 4))
    p("v_and_b32 v%d, 31, v%d" % (t2, vLane))
    p("s_lshr_b32 s%d, s%d, 1" % (sT, sWave))
    p("s_lshl_b32 s%d, s%d, 13" % (sT, sT))
    p("s_add_u32 s%d, s%d, s%d" % (sT, sT, sW4))
    p("s_add_u32 s%d, s%d, %d" % (sT, sT, 4 * U + 8192))
    p("v_lshlrev_b32 v%d, 7, v%d" % (vWa, t2))
    p("v_lshrrev_b32 v%d, 5, v%d" % (t1, vLane))
    p("v_lshl_add_u32 v%d, v%d, 6, v%d" % (vWa, t1, vWa))
    p("v_add_u32 v%d, s%d, v%d" % (vWa, sT, vWa))
    p(zero_o(0, RR))
    p("v_lshlrev_b32 v%d, 9, v%d" % (vRd, t1))
    p("v_bfe_u32 v%d, v%d, 2, 2" % (t1, vLane))
    p("v_lshl_add_u32 v%d, v%d, 7, v%d" % (vRd, t1, vRd))
    p("v_bfe_u32 v%d, v%d, 4, 1" % (t1, vLane))
    p("v_lshl_add_u32 v%d, v%d, 5, v%d" % (vRd, t1, vRd))
    p("v_and_b32 v%d, 3, v%d" % (t1, vLane))
    p("v_lshl_add_u32 v%d, v%d, 3, v%d" % (vRd, t1, vRd))
    p("v_add_u32 v%d, s%d, v%d" % (vRd, sT, vRd))
    p(zero_o(1, RR))
    p("v_mov_b32 v%d, 0x3f803f80" % t0)
    p("v_cmp_eq_u32 vcc, 20, v%d" % t2)
    for tt in range(2):
        if tt:
            phi(aXF + 8)
        p("ds_write_b128 v%d, %s" % (vWa, rr("v", PH, 4)))
        p("ds_write_b128 v%d, %s offset:16" % (vWa, rr("v", PH + 4, 4)))
        p("ds_write_b64 v%d, %s offset:32" % (vWa, rr("v", PH + 8, 2)))
        for nn in range(2):
            for mm in range(2):
                for u in range(2):
                    p("ds_read_b64_tr_b16 %s, v%d offset:%d" % (rr("v", AF + (nn * 2 + mm) * 4 + 2 * u, 2), vRd, (16 * mm + 8 * u) * 128 + nn * 64))
        p(zero_o(2 + 3 * tt, RR))
        for k in range(8):
            p("v_accvgpr_read_b32 v%d, a%d" % (VF + k, aVF + tt * 8 + k))
        p(zero_o(3 + 3 * tt, RR))
        for k in range(8):
            p("v_cndmask_b32 v%d, v%d, v%d, vcc" % (VF + k, VF + k, t0))
        p(zero_o(4 + 3 * tt, RR))
        for mm in range(2):
            for nn in range(2):
                c = rr("v", KC + nn * 16, 16)
                p("%s %s, %s, %s, %s" % (MF, c, rr("v", AF + (nn * 2 + mm) * 4, 4), rr("v", VF + mm * 4, 4), "0" if (tt == 0 and mm == 0) else c))
    R0 = 6 * U
    p("s_mul_i32 s%d, s%d, 6144" % (sT, sWave))
    p("s_add_u32 s%d, s%d, %d" % (sT, sT, R0))
    p("v_add_u32 v%d, s%d, v%d" % (t1, sT, vL16))
    p("v_lshrrev_b32 v%d, 5, v%d" % (t0, vLane))
    p("v_lshlrev_b32 v%d, 10, v%d" % (vV, t0))
    p("v_lshl_add_u32 v%d, v%d, 4, v%d" % (vV, t2, vV))
    p("v_and_b32 v%d, 15, v%d" % (vLim, vLane))
    p("v_lshrrev_b32 v%d, 4, v%d" % (t0, vLane))
    p("v_lshlrev_b32 v%d, 2, v%d" % (t0, t0))
    p("v_sub_u32 v%d, v%d, v%d" % (vLim, vLim, t0))
    p("v_mov_b32 v%d, 0x%x" % (vNeg, NEG))
    for j in range(4):
        p("v_mov_b32 v%d, 0" % (vL + j))
        p("v_mov_b32 v%d, 0x3f803f80" % (vOne + j))
    for nn in range(2):
        for jj in range(3):
            p("ds_write_b128 v%d, %s offset:%d" % (t1, rr("v", KC + nn * 16 + jj * 4, 4), (nn * 3 + jj) * 1024))
    p("s_lshl_b32 s%d, s%d, 3" % (sT, sIdx))
    p("s_add_u32 s%d, s%d, s%d" % (sT, sT, sXcd))
    p("s_lshl_b32 s%d, s%d, 13" % (sT, sT))
    srd(p, sY, ptr(D_WS), off_s=sT, off_imm=WS_KVP, nrec=5120)
    srd(p, sC, ptr(D_WS), off_imm=WS_CTX, nrec=16 * MB)
    p("s_lshl_b32 s%d, s%d, 10" % (sT, sWave))
    p("s_add_u32 s%d, s%d, %d" % (sT, sT, R0))
    p("v_add_u32 v%d, s%d, v%d" % (t1, sT, vL16))
    p("v_mov_b32 v%d, v%d" % (vB, vL16))
    p("v_add_u32 v%d, 0x4000, v%d" % (vB + 1, vL16))
    p("s_waitcnt vmcnt(10) lgkmcnt(0)\ns_barrier")
    st_()
    for j in range(8):
        p("ds_read_b128 %s, v%d offset:%d" % (rr("a", FB(j), 4), vB, j * 1024))
    RS = 128
    woA = [S(1, 0) + 4 * n for n in range(5)]
    for k in range(2):
        for w in range(4):
            p("ds_read_b128 %s, v%d offset:%d" % (rr("v", RS + k * 16 + w * 4, 4), t1, w * 6144 + k * 4096))
    wo_reads(False, woA)
    wo_stores(False, 2, woA, sBF)
    p("s_lshl_b32 s%d, s%d, 11" % (sT, sWave))
    p("s_cmp_eq_u32 s%d, 3" % sWave)
    p("s_cselect_b32 s%d, 512, s%d" % (sT2, sT))
    p("s_add_u32 s%d, s%d, 2560" % (sOff, sT))
    p("s_mov_b32 s%d, 0x%x" % (sThr, THRESH))
    p("s_lshl_b32 s%d, s%d, 2" % (sT, sI))
    p("s_add_u32 s%d, s%d, s%d" % (sTriB, sT, sWave))
    p("s_sub_u32 s%d, 60, s%d" % (sTriA, sT))
    p("s_add_u32 s%d, s%d, s%d" % (sTriA, sTriA, sWave))
    p("s_add_u32 s%d, s%d, 4" % (sNlo, sT))
    p("s_mov_b32 s%d, 0\ns_mov_b32 s%d, 3" % (sMask, sMask + 1))
    p("s_bitset1_b64 s[%d:%d], s%d" % (sMask, sMask + 1, sNlo))
    p("s_bitset1_b64 s[%d:%d], s%d" % (sMask, sMask + 1, sTriB))
    p("s_add_u32 s%d, s%d, 1" % (sT, sTriB))
    p("s_bitset1_b64 s[%d:%d], s%d" % (sMask, sMask + 1, sT))
    if os.environ.get("X_NOHOOK"):
        p("s_mov_b64 s[%d:%d], 0" % (sMask, sMask + 1))
    p("s_and_b32 s%d, s%d, 1" % (sNb, sWave))
    p("s_sub_u32 s%d, s%d, s%d" % (sNb, sNb, sNlo))
    p("s_add_u32 s%d, s%d, 2" % (sNb, sNb))
    for k in range(32):
        p("v_mov_b32 v%d, 0" % (CI(0) + k))
    p("s_mov_b32 s%d, 0\ns_mov_b32 s%d, 0\ns_mov_b32 s%d, 1.0" % (sIt, sNext, sKeep))
    p("s_mov_b32 s%d, 0x%x\ns_mov_b32 s%d, 0x%x" % (sG, 6 * U, sGv, 4 * U + 8192))

    def mask_code(sl, tri):
        c = CI(2 * sl)
        r = ["s_sub_i32 s%d, s%d, s%d" % (sT, sNext, tri), "s_lshl_b32 s%d, s%d, 5" % (sT, sT), "v_subrev_u32 v%d, s%d, v%d" % (t0, sT, vLim)]
        for off, regs in ((0, (c, c + 12)), (16, (c + 4,)), (-16, (c + 8,))):
            r += ["v_cmp_gt_i32 s[%d:%d], %d, v%d" % (84 + 2 * k, 85 + 2 * k, off + k, t0) for k in range(4)]
            r += ["v_cndmask_b32 v%d, v%d, v%d, s[%d:%d]" % (b + k, b + k, vNeg, 84 + 2 * k, 85 + 2 * k) for b in regs for k in range(4)]
        return r
    xch = ["s_xor_b32 s%d, s%d, 1" % (sT, sWave), "s_lshl_b32 s%d, s%d, 13" % (sT, sT), "s_add_u32 s%d, s%d, 0x20000" % (sT, sT), "v_add_u32 v%d, s%d, v%d" % (t0, sT, vL16)] + \
          ["ds_read_b128 %s, v%d offset:%d" % (rr("v", Q(2, 0) + 4 * k, 4), t0, k * 1024) for k in range(8)] + \
          ["v_mov_b32 v%d, v%d" % (CI(2) + k, vMp + (k >> 3)) for k in range(16)] + \
          ["v_mov_b32 v%d, v%d" % (vM + 2, vMp), "v_mov_b32 v%d, v%d" % (vM + 3, vMp + 1), "s_xor_b32 s%d, s%d, 1" % (sTriB, sTriA), "s_mov_b32 s%d, 0" % sKeep, WL]
    def evt_check(kind):
        lab = p.newlabel("M_ev")
        back = "%s_r" % lab
        code = ["%s:" % lab]
        if kind == "x":
            code += ["s_cmp_eq_u32 s%d, s%d" % (sIt, sNlo), "s_cbranch_scc1 %s_x" % lab] + mask_code(1, sTriB) + ["s_branch " + back, "%s_x:" % lab] + xch + \
                    ["s_cmp_lt_u32 s%d, 32" % sIt, "s_cbranch_scc1 " + back]
        code += mask_code(1, sTriB)
        if kind == "l1":
            code += ["s_cmp_lt_u32 s%d, 32" % sIt, "s_cbranch_scc1 " + back]
        if kind != "lo":
            code += mask_code(0, sTriA)
        tail.extend(code + ["s_branch " + back])
        return ["s_bitcmp1_b64 s[%d:%d], s%d" % (sMask, sMask + 1, sIt), "s_cbranch_scc1 %s" % lab, "%s:" % back]
    qk_mf = lambda par: ["%s %s, %s, %s, %s" % (M16, rr("v", S(par, j) + 4 * (f >> 2), 4), rr("a", FB(f), 4), rr("v", Q(j, f & 3), 4),
                                                 rr("v", (CI(j) if (f & 3) == 0 else S(par, j)) + 4 * (f >> 2), 4)) for f in range(8) for j in range(4)]
    pv_mf = lambda par: ["%s %s, %s, %s, %s" % (M16, rr("a", O(j, d), 4), rr("a", FB(8 + d), 4), rr("v", PP(par, j), 4), rr("a", O(j, d), 4)) for d in range(8) for j in range(4)]
    def allg(op, dst, tmp):
        return ["v_mov_b32 v%d, v%d" % (tmp, dst), "v_permlane32_swap_b32 v%d, v%d" % (dst, tmp), "%s v%d, v%d, v%d" % (op, dst, dst, tmp),
                "v_mov_b32 v%d, v%d" % (tmp, dst), "v_permlane16_swap_b32 v%d, v%d" % (dst, tmp), "%s v%d, v%d, v%d" % (op, dst, dst, tmp)]
    def rowmax(par, j, dst, tmp):
        s = S(par, j)
        return ["v_max3_f32 v%d, v%d, v%d, v%d" % (dst, s, s + 1, s + 2), "v_max3_f32 v%d, v%d, v%d, v%d" % (dst, dst, s + 3, s + 4),
                "v_max3_f32 v%d, v%d, v%d, v%d" % (dst, dst, s + 5, s + 6), "v_max_f32 v%d, v%d, v%d" % (dst, dst, s + 7)] + allg("v_max_f32", dst, tmp) + \
               ["v_add_f32 v%d, 0x%x, v%d" % (dst, f2u(BIAS), dst)]
    NG1 = int(os.environ.get("NG1", "9"))
    def sm_stream(par, part):
        allg_ = [(j, k) for k in range(4) for j in range(4)]
        groups = allg_[:NG1] if part == 0 else (allg_[NG1:] if part == 1 else allg_)
        out = []
        tm = lambda n: (TMP + (n % 4) * 2, TMP + (n % 4) * 2 + 1)
        cv = lambda n: "v_cvt_pk_bf16_f32 v%d, v%d, v%d" % ((PP(par, groups[n][0]) + groups[n][1],) + tm(n))
        for n, (j, k) in enumerate(groups):
            a, b = tm(n)
            out += ["v_exp_f32 v%d, v%d" % (a, S(par, j) + 2 * k)] + ([cv(n - 1)] if n else []) + ["v_exp_f32 v%d, v%d" % (b, S(par, j) + 2 * k + 1)]
        return out + [cv(len(groups) - 1)]
    NE = 4
    def sm_place(G, par, part, lo, hi, ne=0):
        st = sm_stream(par, part)
        ex = [x for x in st if x.startswith("v_exp")]
        cv = [x for x in st if x.startswith("v_cvt")]
        nc = 0
        for g in range(lo, hi + 1):
            ready = ne // 2
            left = 8 - G.load(g)
            rest = sum(max(0, 8 - G.load(x)) for x in range(g + 1, hi + 1))
            while True:
                todo = 8 * (len(ex) - ne) + 4 * (len(cv) - nc)
                force = todo > rest + max(left, 0) - 4 and left > -4 and g < hi or g == hi and todo
                if ne < len(ex) and (left >= 8 or (force and nc >= ready)) and ne // 2 - nc < 4 and not (ready - nc >= 3 and left >= 8 and ne % 2 == 0):
                    G.va[g].append(ex[ne]); ne += 1; left -= 8
                elif nc < (ready if g < hi else ne // 2) and (left >= 4 or force):
                    G.va[g].append(cv[nc]); nc += 1; left -= 4
                else:
                    break
        assert ne == len(ex) and nc == len(cv), (ne, nc)
    LT = lambda par, j: PP(par ^ 1, j)
    sum_mf = lambda par: ["%s %s, %s, %s, 0" % (M16, rr("v", LT(par, j), 4), rr("v", vOne, 4), rr("v", PP(par, j), 4)) for j in range(4)]
    need = lambda js: I("need", xrd=[("a", FB(j) + e) for j in js for e in range(4)])
    fread = lambda f, par: "ds_read_b128 %s, v%d offset:%d" % (rr("a", FB(f), 4), vB + par, f * 1024)
    ALL = (0, 1, 2, 3)
    def slow_site(par):
        lab = p.newlabel("M_sl")
        tail.extend(["%s:" % lab, call("M_slow%d" % par), "s_branch %s_r" % lab])
        chk = ["v_max3_f32 v%d, v%d, v%d, v%d" % (vU, LT(par, 0), LT(par, 1), LT(par, 2)), "v_max_f32 v%d, v%d, v%d" % (vU, vU, LT(par, 3)), "v_cmp_lt_f32 vcc, s%d, v%d" % (sThr, vU)]
        return chk, ["s_cbranch_vccnz %s" % lab, "%s_r:" % lab]
    accl = lambda par: ["v_add_f32 v%d, v%d, v%d" % (vL + j, vL + j, LT(par, j)) for j in range(4)]
    def iteration(par, barrier, ntile, kind, endc=(), endb=()):
        qk = qk_mf(par ^ 1)
        SP = 24
        mf = qk[:SP] + sum_mf(par) + qk[SP:] + pv_mf(par)
        pos = lambda f: 4 * f + (4 if 4 * f >= SP else 0)
        G = Gaps16(68)
        LA = int(os.environ.get("LA", "14")); LV = int(os.environ.get("LV", "18")); BP = int(os.environ.get("BP", "53")); LG = ""
        for f in range(4, 16):
            G.put(pos(f) - (LA if f < 6 else LV), fread(f, (par ^ 1) if f < 8 else par))
        for f in range(2, 16, 2):
            G.nv[pos(f) - 1].insert(0, need([f, f + 1]))
        G.put(66, need([0, 1]))
        G.put(0, ["s_add_u32 s%d, s%d, 1" % (sIt, sIt)]); G.put(1, ["s_add_u32 s%d, s%d, 2" % (sNb, sNb)])
        G.put(3, ["s_max_i32 s%d, s%d, s%d" % (sNext, sIt, sNb)]); G.put(4, ["s_lshl_b32 s%d, s%d, 14" % (sRd, sNext)])
        G.put(5, ["s_and_b32 s%d, s%d, 0x1ffff" % (sRd, sRd)])
        G.put(64 - LV, "v_add_u32 v%d, s%d, v%d" % (vB + par, sRd, vL16))
        if barrier:
            G.put(BP, ["s_waitcnt vmcnt(%d)%s" % (4 + 4 * ntile, LG), "s_barrier"])
        for f in range(4):
            G.put(BP + 1 + 2 * f + (f >> 1) * 2, fread(f, par))
        slots = eval(os.environ.get("SL2", "[8, 16, 23, 28, 33, 40, 45, 50]")) if ntile == 2 else eval(os.environ.get("SL1", "[23, 28, 33, 45]"))
        for hh in range(2 * ntile):
            so = sGv if hh < ntile else sG
            g0, g1 = slots[2 * hh], slots[2 * hh + 1]
            G.put(g0 - 2, ["s_and_b32 s%d, s%d, 0x1ffff" % (sT, so)])
            G.put(g0 - 1, ["s_add_u32 m0, s%d, s%d" % (sT, sW2k)])
            G.put(g0, kvld(so, 0))
            G.put(g1, [kvld(so, 1), "s_add_u32 s%d, s%d, 0x4000" % (so, so)])
        chk, br = slow_site(par)
        G.put(35, br)
        G.put(64, evt_check(kind))
        G.put(67, list(endc))
        G.put(67, list(endb), post=True)
        sm_place(G, par, 1, 0, SP - 3)
        G.put(32, chk[:2]); G.put(34, chk[2])
        early = [x for x in sm_stream(par ^ 1, 0) if x.startswith("v_exp")][:NE]
        for g in range(SP - 2, 32):
            if early and G.load(g) == 0:
                G.put(g, early.pop(0))
        assert not early
        G.put(36, accl(par)[:2]); G.put(37, accl(par)[2:])
        sm_place(G, par ^ 1, 0, 38, 66, NE)
        if VERB:
            print("iteration", par, ntile, G.report(), sum(max(0, x - 8) for x in G.report()))
        out = [x if isinstance(x, I) else I(x) for x in G.emit(mf)]
        X = os.environ.get("X_DROP", "")
        if "d" in X: out = [x for x in out if x.kind != "dma"]
        if "b" in X: out = [x for x in out if x.mn != "s_barrier"]
        if "e" in X: out = [x for x in out if x.mn != "v_exp_f32"]
        if "c" in X: out = [x for x in out if x.mn != "v_cvt_pk_bf16_f32"]
        if "l" in X: out = [x for x in out if x.kind != "ds"]
        if "w" in X:
            for x in out:
                if x.kind == "ds": x.wr = set()
        if "v" in X: out = [x for x in out if not (x.kind == "branch" and (x.target.startswith("M_ev") or x.target.startswith("M_sl")))]
        p.add(out)

    p.add(evt_check("lo"))
    G = Gaps16(32)
    red = []
    for k in range(2):
        b = RS + k * 16
        for e in range(4):
            red += ["v_add_f32 v%d, v%d, v%d" % (b + e, b + e, b + 4 + e), "v_add_f32 v%d, v%d, v%d" % (b + 8 + e, b + 8 + e, b + 12 + e)]
        red += ["v_add_f32 v%d, v%d, v%d" % (b + e, b + e, b + 8 + e) for e in range(4)]
    G.stream(red, 2, 16)
    for k in range(2):
        G.put(18 + 2 * k, "buffer_store_dwordx4 %s, v%d, s[%d:%d], s%d offen %s" % (rr("v", RS + k * 16, 4), vV, sY, sY + 3, sOff if k else sT2, WT))
    G.spread([fread(f, 1) for f in range(4)], 22, 31)
    p.add(G.emit(qk_mf(0)))
    p("s_mov_b32 s%d, 1\ns_mov_b32 s%d, 1" % (sIt, sNext))
    p("s_lshl_b32 s%d, s%d, 9" % (sT, sWave))
    p("s_add_u32 s%d, s%d, %d" % (sT, sT, 7 * U + 8192))
    p("v_lshl_add_u32 v%d, v%d, 3, s%d" % (t2, vLane, sT))
    for j in range(4):
        p.add(rowmax(0, j, vU, vU + 1))
        p("v_sub_f32 v%d, 0, v%d" % (vM + j, vU))
        for k in range(8):
            p("v_sub_f32 v%d, v%d, v%d" % (S(0, j) + k, S(0, j) + k, vU))
            p("v_sub_f32 v%d, v%d, v%d" % (CI(j) + k, CI(j) + k, vU))
        if j == 1:
            p("ds_write_b64 v%d, %s" % (t2, rr("v", vM, 2)))
    p.add(evt_check("lo"))
    p.add(sm_stream(0, 0))
    p("s_lshr_b32 s%d, s%d, 1" % (sT, sXcd))
    p("s_lshl_b32 s%d, s%d, 6" % (sT, sT))
    p("s_lshr_b32 s%d, s%d, 4" % (sT2, sIdx))
    p("s_add_u32 s%d, s%d, s%d" % (sT, sT, sT2))
    p("v_and_b32 v%d, 31, v%d" % (t0, vLane))
    p("v_lshl_add_u32 v%d, v%d, 1, s%d" % (t0, t0, sT))
    p("s_lshl_b32 s%d, s%d, 3" % (sT, sIdx))
    p("v_and_b32 v%d, 7, v%d" % (t1, vLane))
    p("v_add_u32 v%d, s%d, v%d" % (t1, sT, t1))
    p("v_cmp_gt_u32 vcc, 32, v%d" % vLane)
    p("v_cndmask_b32 v%d, v%d, v%d, vcc" % (vPoll, t0, t1))
    p("v_lshlrev_b32 v%d, 7, v%d" % (vPoll, vPoll))
    p("v_xor_b32 v%d, 0x200, v%d" % (t2, t2))
    p("s_lshl_b32 s%d, s%d, 13" % (sT, sWave))
    p("s_add_u32 s%d, s%d, 0x20000" % (sT, sT))
    p("v_add_u32 v%d, s%d, v%d" % (t0, sT, vL16))
    p(WL + "\ns_barrier")
    p("ds_read_b64 %s, v%d" % (rr("v", vMp, 2), t2))
    for k in range(8):
        p("ds_write_b128 v%d, %s offset:%d" % (t0, rr("v", Q(0, 0) + 4 * k, 4), k * 1024))
    sUB = sBo
    p("s_andn2_b32 s%d, s%d, 7" % (sUB, sIdx))
    p("s_add_u32 s%d, s%d, s%d" % (sUB, sUB, sXcd))
    p("s_cmp_eq_u32 s%d, 7" % sI)
    p("s_cselect_b32 s%d, s%d, 64" % (sUB, sUB))
    p("s_add_u32 s%d, s%d, 32" % (sT, sXcd))
    p("s_cmp_eq_u32 s%d, 6" % sIdx)
    p("s_cselect_b32 s%d, s%d, s%d" % (sUB, sT, sUB))
    p("s_lshl_b32 s%d, s%d, 1" % (sCnt, sI))
    p("s_add_u32 s%d, s%d, 1" % (sCnt, sCnt))
    p(WL)
    st_()
    dec = ["s_sub_u32 s%d, s%d, 1" % (sCnt, sCnt)]
    HOOKS = (3, 5, 7, 9, 11, 13, 15, 25, 29)
    hk = ["s_mov_b32 s%d, 0x%x" % (sT, 0 if os.environ.get("X_NOHOOK") else sum(1 << e for e in HOOKS)), "s_bitcmp1_b32 s%d, s%d" % (sT, sIt)]
    def setcont(lab):
        p("s_getpc_b64 s[%d:%d]\n%s_pc:" % (sCont, sCont + 1, lab))
        p("s_add_u32 s%d, s%d, %s-%s_pc\ns_addc_u32 s%d, s%d, 0" % (sCont, sCont, lab, lab, sCont + 1, sCont + 1))
    p.add(kv_store(0, 4) + kv_store(1, 4))
    setcont("M_l1c")
    p("M_l1:")
    iteration(0, False, 1, "x")
    iteration(1, True, 1, "l1", hk, ["s_cbranch_scc1 M_hook", "M_l1c:"] + dec + ["s_cbranch_scc0 M_l1"])
    st_()
    def ctx_base(sblk):
        p("s_lshl_b32 s%d, s%d, 20" % (sT, sblk))
        p("s_lshl_b32 s%d, s%d, 15" % (sT2, sH))
        p("s_add_u32 s%d, s%d, s%d" % (sT, sT, sT2))
        p("s_add_u32 s%d, s%d, s%d" % (sCb, sT, sW2k))
    ctx_store = lambda r, jj: "buffer_store_dwordx4 %s, v%d, s[%d:%d], s%d offen offset:%d %s" % (rr("v", r, 4), vL16, sC, sC + 3, sCb, jj * 1024, WT)
    ctx_base(sI)
    for jj in range(2):
        p("v_rcp_f32 v%d, v%d" % (vU + 2 + jj, vL + 2 + jj))
        p("v_mov_b32 v%d, 0" % (vL + 2 + jj))
    Z = PP(1, 0)
    for k in range(4):
        p("v_mov_b32 v%d, 0" % (Z + k))
    for ds in range(4):
        T = S(1, 0) + (ds & 1) * 16
        for jj in range(2):
            for k in range(8):
                p("v_accvgpr_read_b32 v%d, a%d" % (T + 8 * jj + k, O(2 + jj, 2 * ds) + k))
        if ds & 1:
            p(zero_o(4 + (ds >> 1), Z)); p(zero_o(6 + (ds >> 1), Z))
        for jj in range(2):
            for k in range(8):
                p("v_mul_f32 v%d, v%d, v%d" % (T + 8 * jj + k, T + 8 * jj + k, vU + 2 + jj))
        p.add(pack_tile(T, T))
        p(ctx_store(T, 0)); p(ctx_store(T + 4, 1))
        if ds < 3:
            p("s_add_u32 s%d, s%d, 0x2000" % (sCb, sCb))
    for hh in range(2):
        so = sG
        p.add(["s_and_b32 s%d, s%d, 0x1ffff" % (sT, so), "s_add_u32 m0, s%d, s%d" % (sT, sW2k), kvld(so, 0), kvld(so, 1), "s_add_u32 s%d, s%d, 0x4000" % (so, so)])
    p("s_mov_b32 s%d, 1.0" % sKeep)
    p("s_cmp_ge_u32 s%d, 40\ns_cbranch_scc1 M_nowob" % sUB)
    wo_src(B_WO, sUB)
    p("M_nowob:")
    p("s_lshl_b32 s%d, s%d, 1" % (sCnt, sI))
    p("s_sub_u32 s%d, 14, s%d" % (sCnt, sCnt))
    st_()
    setcont("M_l2")
    p("M_l2:")
    iteration(0, True, 2, "l2", dec, ["s_cbranch_scc1 M_l2x"])
    iteration(1, True, 2, "l2", hk, ["s_cbranch_scc0 M_l2"])
    back = jump("s_setpc_b64 s[%d:%d]" % (sCont, sCont + 1), ["M_l1c", "M_l2"])
    vP = vA
    def bm2_loads(q):
        bm_frag_loads(q, 0, aXQ)
        q("s_lshl_b32 s%d, s%d, 16" % (sT, sIdx))
        q("s_lshl_b32 s%d, s%d, 14" % (sT2, sWave))
        q("s_add_u32 s%d, s%d, s%d" % (sT, sT, sT2))
        srd(q, sO, ptr(D_WS), off_s=sT, off_imm=WS_KVP, nrec=16384)
        for j in range(2):
            for k in range(5):
                if k in (0, 4):
                    q("s_mov_b32 s%d, %d" % (sT, j * 8192 + k * 1024))
                q("buffer_load_dwordx4 %s, v%d, s[%d:%d], s%d offen offset:%d %s" % (rr("a", aPA + j * 20 + k * 4, 4), vL16, sO, sO + 3, sT, (k & 3) * 1024, WT))
    XS = 4 * 2560
    def xsetup(q, srdn, va, vb):
        q("s_and_b32 s%d, s%d, 1" % (sT, sXcd))
        q("s_lshl_b32 s%d, s%d, 5" % (sT, sT))
        q("s_add_u32 s%d, s%d, s%d" % (sT, sT, sIdx))
        q("s_mul_i32 s%d, s%d, %d" % (sT, sT, 16 * XS))
        srd(q, srdn, ptr(D_WS), off_s=sT, off_imm=WS_XB, nrec=16 * XS)
        q("s_mul_i32 s%d, s%d, 2560" % (sT, sWave))
        q("v_add_u32 v%d, s%d, v%d" % (va, sT, vL16))
        q("v_lshl_add_u32 v%d, v%d, 3, s%d" % (vb, vLane, sT))
    def xfer(q, op, qq, srdn, va, vb, regs):
        q("s_lshr_b32 s%d, s%d, 1" % (sT2, sXcd))
        q("s_xor_b32 s%d, s%d, %d" % (sT, sT2, qq))
        q("s_lshl2_add_u32 s%d, s%d, s%d" % ((sT, sT, sT2) if op == "store" else (sT, sT2, sT)))
        q("s_mul_i32 s%d, s%d, %d" % (sT, sT, XS))
        for k in range(2):
            q("buffer_%s_dwordx4 %s, v%d, s[%d:%d], s%d offen offset:%d %s" % (op, rr("v", regs[k], 4), va, srdn, srdn + 3, sT, k * 1024, WT))
        q("buffer_%s_dwordx2 %s, v%d, s[%d:%d], s%d offen offset:2048 %s" % (op, rr("v", regs[2], 2), vb, srdn, srdn + 3, sT, WT))
    def xclear(q):
        z = S(1, 0)
        xsetup(q, sY, t0, t1)
        for k in range(4):
            q("v_mov_b32 v%d, -1" % (z + k))
        for qq in range(1, 4):
            xfer(q, "store", qq, sY, t0, t1, (z, z, z))
    def wo_touch(q):
        if not int(os.environ.get("WOT", "0")):
            return
        q("s_lshr_b32 s%d, s%d, 3" % (sT, sIdx))
        q("s_lshl_b32 s%d, s%d, 2" % (sT, sT))
        q("s_lshr_b32 s%d, s%d, 1" % (sT2, sXcd))
        q("s_add_u32 s%d, s%d, s%d" % (sT, sT, sT2))
        q("s_lshl_b32 s%d, s%d, 3" % (sT, sT))
        q("s_add_u32 s%d, s%d, s%d" % (sT, sT, sI))
        q("s_mul_i32 s%d, s%d, 40960" % (sT, sT))
        srd(q, sO, ptr(D_WS), off_s=sT, off_imm=WS_WOA, nrec=40960)
        q("v_lshlrev_b32 v%d, 7, v0" % t0)
        q("s_mov_b32 s%d, 0x8000" % sT)
        q("buffer_load_dword v%d, v%d, s[%d:%d], 0 offen %s" % (vDum, t0, sO, sO + 3, WT))
        q("buffer_load_dword v%d, v%d, s[%d:%d], s%d offen %s" % (vDum, t0, sO, sO + 3, sT, WT))
    jobs = {3: kv_store(0, 5) + kv_store(1, 5), 5: kv_store(0, 6) + kv_store(1, 6), 7: kv_store(0, 7) + kv_store(1, 7),
            9: L(xclear), 11: publish(3), 13: poll_load("KV"), 15: poll_check("KV"), 25: code_touch(vKV, 8) + poll_load(3), 29: poll_check(3) + L(bm2_loads) + L(wo_touch)}
    p("M_hook:")
    for e in HOOKS[:-1]:
        p("s_cmp_eq_u32 s%d, %d\ns_cbranch_scc1 M_hook%d" % (sIt, e, e))
    for e in reversed(HOOKS):
        p("M_hook%d:" % e)
        ins = [x if isinstance(x, I) else I(x) for x in jobs[e]]
        for x in ins:
            if x.kind == "vmem":
                x.wr = set()
        p.add(ins + [back])
    p("M_l2x:")
    for f in range(8, 16):
        p(fread(f, 1))
    chk, br = slow_site(1)
    p.add(sm_stream(1, 1) + sum_mf(1) + chk + br + accl(1))
    p("s_waitcnt vmcnt(0) lgkmcnt(0)\ns_barrier")
    p.add(publish(4))
    mfl = pv_mf(1)
    mfl = [mfl[d * 4 + j] for jj in (2, 0) for d in range(8) for j in (jj, jj + 1)]
    p("s_mul_i32 s%d, s%d, 20480" % (sT, sWave))
    p("v_add_u32 v%d, s%d, v%d" % (t0, sT, vL16))
    p("v_mov_b32 v%d, v%d\nv_mov_b32 v%d, v%d" % (vOne, vM + 2, vOne + 1, vM + 3))
    G = Gaps16(32)
    G.put(2, "ds_write_b128 v%d, %s offset:16384" % (t0, rr("v", vL + 2, 4)))
    for k in range(16):
        G.put(16 + k, "ds_write_b128 v%d, %s offset:%d" % (t0, rr("a", O(2 + (k & 1), k >> 1), 4), k * 1024))
    p.add(G.emit(mfl))
    st_()
    Lr, SUM, KA, N = 96, 176, 200, 96
    for k in range(40):
        p("v_accvgpr_read_b32 v%d, a%d" % (Lr + k, aPA + k))
    for e in range(20):
        p("v_add_f32 v%d, v%d, v%d" % (Lr + e, Lr + e, Lr + 20 + e))
    p("v_add_u32 v%d, s%d, v%d" % (vDma, sW4, vL16))
    p("v_add_u32 v%d, 0x%x, v%d" % (t1, 6 * U, vDma))
    for k in range(5):
        p("ds_write_b128 v%d, %s offset:%d" % (t1, rr("v", Lr + 4 * k, 4), (k & 3) * 1024 + (k >> 2) * U))
    p("v_and_b32 v%d, 31, v%d" % (t2, vLane))
    p("v_min_u32 v%d, 20, v%d" % (t2, t2))
    p("v_and_b32 v%d, 32, v%d" % (t1, vLane))
    p("v_add_lshl_u32 v%d, v%d, v%d, 4" % (vP, t1, t2))
    p("v_add_u32 v%d, 0x%x, v%d" % (vP, 6 * U, vP))
    p("s_xor_b32 s%d, s%d, 1" % (sT, sWave))
    p("s_mul_i32 s%d, s%d, 20480" % (sT, sT))
    p("v_add_u32 v%d, s%d, v%d" % (t0, sT, vL16))
    p("s_sub_u32 s%d, 15, s%d" % (sCnt, sI))
    ctx_base(sCnt)
    p(WL + "\ns_barrier")
    XO = 160
    p("ds_read_b128 %s, v%d offset:16384" % (rr("v", TMP, 4), t0))
    for k in range(16):
        p("ds_read_b128 %s, v%d offset:%d" % (rr("v", XO + (k & 1) * 32 + (k >> 1) * 4, 4), t0, k * 1024))
    for jj in range(2):
        fa, fb = vU + 2 * jj, vU + 2 * jj + 1
        p("v_min_f32 v%d, v%d, v%d" % (t1, vM + jj, TMP + 2 + jj))
        p("v_sub_f32 v%d, v%d, v%d" % (fa, t1, vM + jj))
        p("v_sub_f32 v%d, v%d, v%d" % (fb, t1, TMP + 2 + jj))
        p("v_exp_f32 v%d, v%d" % (fa, fa))
        p("v_exp_f32 v%d, v%d" % (fb, fb))
        p("v_mul_f32 v%d, v%d, v%d" % (vL + jj, vL + jj, fa))
        p("v_fmac_f32 v%d, v%d, v%d" % (vL + jj, TMP + jj, fb))
        p("v_rcp_f32 v%d, v%d" % (t1, vL + jj))
        p("v_mul_f32 v%d, v%d, v%d" % (fa, fa, t1))
        p("v_mul_f32 v%d, v%d, v%d" % (fb, fb, t1))
    for ds in range(4):
        T = 32 + (ds & 1) * 16
        for jj in range(2):
            for k in range(8):
                p("v_accvgpr_read_b32 v%d, a%d" % (T + 8 * jj + k, O(jj, 2 * ds) + k))
        for jj in range(2):
            for k in range(8):
                p("v_mul_f32 v%d, v%d, v%d" % (T + 8 * jj + k, T + 8 * jj + k, vU + 2 * jj))
            for k in range(8):
                p("v_fmac_f32 v%d, v%d, v%d" % (T + 8 * jj + k, XO + jj * 32 + ds * 8 + k, vU + 2 * jj + 1))
        p.add(pack_tile(T, T))
        p(ctx_store(T, 0)); p(ctx_store(T + 4, 1))
        if ds < 3:
            p("s_add_u32 s%d, s%d, 0x2000" % (sCb, sCb))
    p("s_cmp_ge_u32 s%d, 40\ns_cbranch_scc1 M_nowob2" % sUB)
    woB = [XO + 4 * n for n in range(5)]
    wo_reads(True, woB)
    wo_stores(True, sUB, woB, sY)
    p("M_nowob2:")
    st_()
    for w in range(4):
        for k in range(5):
            p("ds_read_b128 %s, v%d offset:%d" % (rr("v", Lr + w * 20 + 4 * k, 4), vP, w * 4096 + (k & 3) * 1024 + (k >> 2) * U))
    sKq, sMb, sCc, sGc, sGw, sGw2, sWs, sRs, sW5, sDl = range(37, 47)
    sPC, sPW, sXO, sOut = sBO, sW, sO, sW2
    sIc, sIw = sKo, sNext
    vDw, vC, vWf = 3, 4, 8
    SZ = 36864
    odd = "s_bitcmp1_b32 s%d, 0" % sXcd
    p("s_lshr_b32 s%d, s%d, 1" % (sKq, sXcd))
    p("s_lshr_b32 s%d, s%d, 3" % (sCc, sIdx))
    p("s_sub_u32 s%d, 15, s%d" % (sT, sI))
    p(odd)
    p("s_cselect_b32 s%d, s%d, s%d" % (sMb, sT, sI))
    p("s_cselect_b32 s%d, 5, 4" % sT2)
    p("v_mov_b32 v%d, s%d" % (vPoll + 1, sT2))
    p("s_and_b32 s%d, s2, 0x3e" % sT)
    p("v_bfe_u32 v%d, v%d, 1, 2" % (t1, vLane))
    p("v_lshl_add_u32 v%d, v%d, 6, s%d" % (t1, t1, sT))
    p("v_and_b32 v%d, 1, v%d" % (t2, vLane))
    p("v_add_lshl_u32 v%d, v%d, v%d, 7" % (vPoll, t1, t2))
    p.add(poll_load("A"))
    p("s_lshl_b32 s%d, s%d, 20" % (sT, sMb))
    p("s_lshl_b32 s%d, s%d, 18" % (sT2, sKq))
    p("s_add_u32 s%d, s%d, s%d" % (sT, sT, sT2))
    srd(p, sPC, ptr(D_WS), off_s=sT, off_imm=WS_CTX, nrec=32 * 8192)
    p("s_lshl_b32 s%d, s%d, 2" % (sT, sCc))
    p("s_add_u32 s%d, s%d, s%d" % (sT, sT, sKq))
    p("s_mul_i32 s%d, s%d, %d" % (sT, sT, 32 * 10240))
    srd(p, sPW, ptr(D_WS), off_s=sT, off_imm=WS_WOA, nrec=32 * 10240)
    p("s_mul_i32 s%d, s%d, 5120" % (sW5, sWave))
    p("v_add_u32 v%d, s%d, v%d" % (vDw, sW5, vL16))
    p("s_add_u32 s%d, s%d, 0x4000" % (sW5, sW5))
    p("s_movk_i32 s%d, 0x4000\ns_movk_i32 s%d, 0x5000" % (sIc, sIw))
    phi(aXQ)
    p("s_waitcnt vmcnt(0) lgkmcnt(0)\ns_barrier")
    p.add(publish(5))
    dC = [["s_add_u32 m0, s%d, s%d" % (sWs, sW4)]] + \
         ["buffer_load_dwordx4 v%d, s[%d:%d], s%d offen offset:%d %s lds" % (vDma, sPC, sPC + 3, sGc, k * 1024, WT) for k in range(4)]
    dW = [["s_add_u32 m0, s%d, s%d" % (sWs, sW5)]] + \
         ["buffer_load_dwordx4 v%d, s[%d:%d], s%d offen offset:%d %s lds" % (vDw, sPW, sPW + 3, sGw, k * 1024, WT) for k in range(4)] + \
         [["s_add_u32 m0, m0, 0x1000"], "buffer_load_dwordx4 v%d, s[%d:%d], s%d offen %s lds" % (vDw, sPW, sPW + 3, sGw2, WT)]
    dAdv = ["s_add_u32 s%d, s%d, s%d" % (sGc, sGc, sIc), "s_add_u32 s%d, s%d, s%d" % (sGw, sGw, sIw), "s_add_u32 s%d, s%d, s%d" % (sGw2, sGw2, sIw),
            "s_add_u32 s%d, s%d, %d" % (sWs, sWs, SZ), "s_cmp_eq_u32 s%d, %d" % (sWs, 4 * SZ), "s_cselect_b32 s%d, 0, s%d" % (sWs, sWs)]
    cpre = ["M_cpre:"] + poll_check("A")
    for k in range(3):
        cpre += ["s_mov_b32 s%d, %d" % (sWs, k * SZ), "s_mov_b32 s%d, 0x%x" % (sGc, k * 0x4000)] + dC[0] + dC[1:]
    tail.extend(cpre + [ret])
    p(odd + "\ns_cbranch_scc1 M_nocp1")
    p(call("M_cpre"))
    p("M_nocp1:")
    sums = []
    for e in range(20):
        sums += ["v_add_f32 v%d, v%d, v%d" % (Lr + e, Lr + e, Lr + 20 + e), "v_add_f32 v%d, v%d, v%d" % (Lr + 40 + e, Lr + 40 + e, Lr + 60 + e)]
    sums += ["v_add_f32 v%d, v%d, v%d" % (SUM + e, Lr + e, Lr + 40 + e) for e in range(20)]
    sums += ["v_cvt_pk_bf16_f32 v%d, v%d, v%d" % (KA + k, SUM + 2 * k, SUM + 2 * k + 1) for k in range(10)]
    sums += ["v_mov_b32 v%d, 0" % r for r in (KA + 10, KA + 11, PH + 10, PH + 11)]
    wpre = []
    for k in range(3):
        wpre += [["s_mov_b32 s%d, %d" % (sWs, k * SZ), "s_mov_b32 s%d, 0x%x" % (sGw, k * 0x5000), "s_mov_b32 s%d, 0x%x" % (sGw2, k * 0x5000 + 0x1000)] + dW[0]] + dW[1:]
    for k, x in enumerate(wpre):
        p.add([x] + sums[k * len(sums) // len(wpre):(k + 1) * len(sums) // len(wpre)])
    def num(N):
        for u in range(3):
            p("%s %s, %s, %s, %s" % (MF, rr("v", N, 16), rr("v", KA + 4 * u, 4), rr("v", PH + 4 * u, 4), rr("v", N, 16) if u else "0"))
    num(N)
    phi(aXQ + 8)
    p.add(poll_load("A"))
    num(N + 32)
    p("s_lshr_b32 s%d, s%d, 1" % (sT, sTT))
    p("s_mul_i32 s%d, s%d, 81920" % (sT, sT))
    srd(p, sY, ptr(D_WS), off_s=sT, off_imm=WS_OB, nrec=81920)
    p("s_mul_i32 s%d, s%d, 20" % (sT, sIdx))
    vO = vA
    p("v_and_b32 v%d, 15, v%d" % (t0, vLane))
    p("v_lshlrev_b32 v%d, 4, v%d" % (t0, t0))
    p("v_bfe_u32 v%d, v%d, 4, 1" % (t2, vLane))
    p("v_lshl_add_u32 v%d, v%d, 10, v%d" % (t0, t2, t0))
    p("v_lshrrev_b32 v%d, 5, v%d" % (t1, vLane))
    p("v_lshl_add_u32 v%d, v%d, 2, s%d" % (t1, t1, sT))
    for jj in range(3):
        if jj:
            p("v_add_u32 v%d, 8, v%d" % (t1, t1))
        p("v_lshrrev_b32 v%d, 5, v%d" % (t2, t1))
        p("v_lshl_add_u32 v%d, v%d, 12, v%d" % (vO + jj, t2, t0))
        p("v_bfe_u32 v%d, v%d, 3, 2" % (t2, t1))
        p("v_lshl_add_u32 v%d, v%d, 8, v%d" % (vO + jj, t2, vO + jj))
        p("v_and_b32 v%d, 7, v%d" % (t2, t1))
        p("v_lshl_add_u32 v%d, v%d, 1, v%d" % (vO + jj, t2, vO + jj))
    p("v_bfrev_b32 v%d, 1" % t1)
    p("v_cmp_gt_u32 vcc, 32, v%d" % vLane)
    p("v_cndmask_b32 v%d, v%d, v%d, vcc" % (vO + 2, t1, vO + 2))
    for tt in range(2):
        n0 = N + 32 * tt
        p("v_add_f32 v%d, 0x%x, v%d" % (n0 + 12, f2u(1e-6), n0 + 12))
        p("v_rcp_f32 v%d, v%d" % (n0 + 12, n0 + 12))
        for k in range(12):
            p("v_mul_f32 v%d, v%d, v%d" % (n0 + k, n0 + k, n0 + 12))
        for k in range(6):
            p("v_cvt_pk_bf16_f32 v%d, v%d, v%d" % (n0 + 16 + k, n0 + 2 * k, n0 + 2 * k + 1))
        for jj in range(3):
            p("buffer_store_dwordx2 %s, v%d, s[%d:%d], 0 offen offset:%d %s" % (rr("v", n0 + 16 + 2 * jj, 2), vO + jj, sY, sY + 3, tt * 2048, WT))
    MF16 = "v_mfma_f32_16x16x32_bf16"
    PA = 160
    pacc = lambda q, n: PA + (q * 5 + n) * 4
    pfr = lambda st, i: st * 36 + i * 4
    aOB = 80
    p("s_lshr_b32 s%d, s%d, 1" % (sT, sWave))
    p("s_lshl_b32 s%d, s%d, 2" % (sT, sT))
    p("s_add_u32 s%d, s%d, s%d" % (sT, sT, sKq))
    p("s_lshl_b32 s%d, s%d, 10" % (sT, sT))
    p("v_add_u32 v%d, s%d, v%d" % (vC, sT, vL16))
    for qq in range(1, 4):
        p("v_xor_b32 v%d, 0x%x, v%d" % (vC + qq, qq << 10, vC))
    p("s_and_b32 s%d, s%d, 1" % (sT, sWave))
    p("s_mul_i32 s%d, s%d, 5120" % (sT, sT))
    p("s_add_u32 s%d, s%d, 0x4000" % (sT, sT))
    p("v_add_u32 v%d, s%d, v%d" % (vWf, sT, vL16))
    st_()
    p(odd + "\ns_cbranch_scc0 M_nocp2")
    p(call("M_cpre"))
    p("M_nocp2:")
    p("s_mov_b32 s%d, 0x%x\ns_mov_b32 s%d, 0x%x\ns_mov_b32 s%d, 0x%x\ns_mov_b32 s%d, %d\ns_mov_b32 s%d, 0" % (sGc, 3 * 0x4000, sGw, 3 * 0x5000, sGw2, 3 * 0x5000 + 0x1000, sWs, 3 * SZ, sRs))
    for k in range(80):
        p("v_mov_b32 v%d, 0" % (PA + k))
    def p_reads(st):
        c = ["ds_read_b128 %s, v%d offset:%d" % (rr("a", pfr(st, qq), 4), vC + qq, st * 8192) for qq in range(4)]
        w = ["ds_read_b128 %s, v%d offset:%d" % (rr("a", pfr(st, 4 + n), 4), vWf, st * 10240 + n * 1024) for n in range(5)]
        return [w[0]] + c + w[1:]
    p_mf = lambda st: ["%s %s, %s, %s, %s" % (MF16, rr("v", pacc(qq, n), 4), rr("a", pfr(st, 4 + n), 4), rr("a", pfr(st, qq), 4), rr("v", pacc(qq, n), 4)) for n in range(5) for qq in range(4)]
    G = Gaps(40)
    G.spread(p_reads(1), 0, 12)
    G.put(19, ["s_waitcnt vmcnt(13) lgkmcnt(0)", "s_barrier"])
    G.put(13, ["s_add_u32 s%d, s%d, 1" % (sRs, sRs), "s_and_b32 s%d, s%d, 3" % (sRs, sRs)])
    G.put(14, ["s_mov_b32 s%d, %d" % (sDl, SZ), "s_cselect_b32 s%d, s%d, 0x%x" % (sDl, sDl, u32(-3 * SZ))])
    G.spread(["v_add_u32 v%d, s%d, v%d" % (r, sDl, r) for r in (vWf, vC, vC + 1, vC + 2, vC + 3)], 15, 18)
    G.spread(p_reads(0), 20, 32)
    for k, x in enumerate(dC):
        G.put(max(0, 4 * k - 1) + (1 if k == 0 else 0), x)
    for k, x in zip((20, 21, 25, 29, 33, 36, 37), dW):
        G.put(k, x)
    G.put(34, dAdv[3:]); G.put(38, dAdv[:3]); G.put(39, ["s_sub_u32 s%d, s%d, 1" % (sNlo, sNlo), WL, "s_cbranch_scc0 M_p3"])
    o3 = [x if isinstance(x, I) else I(x) for x in G.emit(p_mf(0) + p_mf(1))]
    X3 = os.environ.get("X_P3", "")
    if "m" in X3: o3 = [x for x in o3 if x.kind not in ("mfma", "ds")]
    if "d" in X3: o3 = [x for x in o3 if x.kind != "dma"]
    if "s" in X3: o3 = [I(x.text.replace(" sc1", "")) if x.kind == "dma" else x for x in o3]
    tail.extend(["M_p3:"] + o3 + [ret])
    p("s_waitcnt vmcnt(7)\n" + odd + "\ns_cbranch_scc0 M_w7\ns_waitcnt vmcnt(4)\nM_w7:\ns_barrier")
    st_()
    p.add(p_reads(0))
    p(WL)
    def run(n):
        p("s_mov_b32 s%d, %d" % (sNlo, n - 1))
        p(call("M_p3"))
        if os.environ.get("FINE3") and n != 14:
            st_()
    xr = lambda qq: (PA + qq * 20, PA + qq * 20 + 4, PA + qq * 20 + 8)
    def xsend(q):
        q("M_xsend:")
        xsetup(q, sXO, vDw, vC)
        for qq in range(1, 4):
            for k in range(10):
                q("v_cvt_pk_bf16_f32 v%d, v%d, v%d" % (PA + qq * 20 + k, PA + qq * 20 + 2 * k, PA + qq * 20 + 2 * k + 1))
            for k in range(10):
                q("v_min_u32 v%d, -2, v%d" % (PA + qq * 20 + k, PA + qq * 20 + k))
            xfer(q, "store", qq, sXO, vDw, vC, xr(qq))
        q(ret)
    def xrecv(q):
        for qq in range(1, 4):
            xfer(q, "load", qq, sXO, vDw, vC, xr(qq))
    tail.extend(L(xsend))
    run(2)
    p.add(publish(6))
    p(odd + "\ns_cbranch_scc0 M_even")
    run(14)
    st_(st_.n)
    p(call("M_xsend"))
    xrecv(p)
    st_(st_.n + 1)
    p("s_branch M_fin")
    p("M_even:")
    run(8)
    p("s_lshr_b32 s%d, s%d, 4" % (sT, sIdx))
    p("v_min_u32 v%d, 19, v%d" % (t0, vLane))
    p("v_lshl_add_u32 v%d, v%d, 1, s%d" % (t0, t0, sT))
    p("v_lshrrev_b32 v%d, 3, v%d" % (t1, t0))
    p("v_lshlrev_b32 v%d, 6, v%d" % (t1, t1))
    p("v_and_b32 v%d, 7, v%d" % (t2, t0))
    p("v_add3_u32 v%d, v%d, v%d, 56" % (t1, t1, t2))
    p("v_add_u32 v%d, 16, v%d" % (t2, t0))
    p("v_cmp_gt_u32 vcc, 32, v%d" % t0)
    p("v_cndmask_b32 v%d, v%d, v%d, vcc" % (vPoll, t2, t1))
    p("v_lshlrev_b32 v%d, 7, v%d" % (vPoll, vPoll))
    p("v_mov_b32 v%d, 5" % (vPoll + 1))
    p.add(poll_load("B"))
    run(1)
    p.add(poll_check("B"))
    p("v_lshrrev_b32 v%d, 1, v%d" % (t0, vLane))
    p("v_lshl_add_u32 v%d, v%d, 3, s%d" % (t0, t0, sXcd))
    p("v_and_b32 v%d, 1, v%d" % (t1, vLane))
    p("v_add_lshl_u32 v%d, v%d, v%d, 7" % (vPoll, t0, t1))
    p("v_mov_b32 v%d, 6" % (vPoll + 1))
    p.add(poll_load("B"))
    run(2)
    p.add(poll_check("B"))
    p("s_lshr_b32 s%d, s%d, 2" % (sT, sIdx))
    p("s_mul_i32 s%d, s%d, 102400" % (sT, sT))
    srd(p, sPC, ptr(D_WS), off_s=sT, off_imm=WS_WOB, nrec=102400)
    p("s_mov_b64 s[%d:%d], s[%d:%d]\ns_mov_b32 s%d, s%d" % (sPW, sPW + 1, sPC, sPC + 1, sPW + 2, sPC + 2))
    p("s_mov_b32 s%d, 0\ns_movk_i32 s%d, 0x4000\ns_movk_i32 s%d, 0x5000\ns_mov_b32 s%d, %d\ns_mov_b32 s%d, %d" % (sGc, sGw, sGw2, sIc, SZ, sIw, SZ))
    p("s_lshl_b32 s%d, s%d, 2" % (sTT, sXcd))
    p("s_and_b32 s%d, s%d, 3" % (sT, sIdx))
    p("s_add_u32 s%d, s%d, s%d" % (sTT, sTT, sT))
    p("s_mul_i32 s%d, s%d, 81920" % (sT, sTT))
    srd(p, sY, ptr(D_WS), off_s=sT, off_imm=WS_OB, nrec=5 * 81920)
    vO2 = 9
    p("v_add_u32 v%d, %d, v%d" % (vO2, 4 * 81920, vL16))
    p("s_lshl_b32 s%d, s%d, 10" % (sOff, sWave))
    def ob(ks):
        return ["buffer_load_dwordx4 %s, v%d, s[%d:%d], s%d offen %s" % (rr("a", aOB + 8 * ks + 4 * hh, 4), vO2 if hh else vL16, sY, sY + 3, sOff, WT) for hh in range(2)] + \
               ["s_addk_i32 s%d, 0x1000" % sOff]
    for s in range(3):
        for ks in range(3 * s, 3 * s + 3):
            p.add(ob(ks))
        run(1)
    st_()
    p(call("M_xsend"))
    BA = 32
    p("v_add_u32 v%d, %d, v%d" % (vWf, 10 * 5120, vL16))
    if os.environ.get("FINE3"): st_()
    p("s_waitcnt vmcnt(9)\ns_barrier")
    if os.environ.get("FINE3"): st_()
    bfr = lambda k: (k % 15) * 4
    brd = lambda k: "ds_read_b128 %s, v%d offset:%d" % (rr("a", bfr(k), 4), vWf if k >= 50 else vL16, (k % 50) * 1024)
    for k in range(10):
        p(brd(k))
    for k in range(100):
        ks, n = divmod(k, 5)
        if n == 0:
            p.add([I("need", xrd=[("a", bfr(k + 4) + e) for e in range(4)])])
        for hh in range(2):
            a = rr("v", BA + 20 * hh + 4 * n, 4)
            p("%s %s, %s, %s, %s" % (MF16, a, rr("a", bfr(k), 4), rr("a", aOB + 8 * ks + 4 * hh, 4), a if ks else "0"))
            if hh == 0 and k + 10 < 100:
                p(brd(k + 10))
            if hh == 1 and k % 3 == 0 and 9 + k // 3 < 20:
                p.add(ob(9 + k // 3))
        if k == 70:
            xrecv(p)
    st_()
    p("M_fin:")
    srd(p, sOut, ptr(D_OUT), nrec=2048 * 2560)
    p("v_and_b32 v%d, 15, v%d" % (t0, vLane))
    p("v_mul_u32_u24 v%d, 2560, v%d" % (vWf, t0))
    p("v_lshrrev_b32 v%d, 4, v%d" % (t0, vLane))
    p("v_lshl_add_u32 v%d, v%d, 3, v%d" % (vWf, t0, vWf))
    p(odd + "\ns_cbranch_scc1 M_nobst")
    p("s_lshl_b32 s%d, s%d, 2" % (sT, sTT))
    p("s_add_u32 s%d, s%d, s%d" % (sT, sT, sWave))
    p("s_mul_i32 s%d, s%d, %d" % (sT, sT, 16 * 2560))
    p("s_lshr_b32 s%d, s%d, 2" % (sT2, sIdx))
    p("s_mul_i32 s%d, s%d, 160" % (sT2, sT2))
    p("s_add_u32 s%d, s%d, s%d" % (sOff, sT, sT2))
    for hh in range(2):
        for n in range(5):
            b = BA + 20 * hh + 4 * n
            p("v_cvt_pk_bf16_f32 v%d, v%d, v%d" % (b, b, b + 1))
            p("v_cvt_pk_bf16_f32 v%d, v%d, v%d" % (b + 1, b + 2, b + 3))
            p("buffer_store_dwordx2 %s, v%d, s[%d:%d], s%d offen offset:%d" % (rr("v", b, 2), vWf, sOut, sOut + 3, sOff, 1280 + n * 32))
        if hh == 0:
            p("s_add_u32 s%d, s%d, %d" % (sOff, sOff, 256 * 2560))
    p("M_nobst:")
    p("s_lshl_b32 s%d, s%d, 3" % (sT, sMb))
    p("s_lshr_b32 s%d, s%d, 1" % (sT2, sWave))
    p("s_lshl_b32 s%d, s%d, 2" % (sT2, sT2))
    p("s_add_u32 s%d, s%d, s%d" % (sT, sT, sT2))
    p("s_add_u32 s%d, s%d, s%d" % (sT, sT, sKq))
    p("s_mul_i32 s%d, s%d, %d" % (sT, sT, 16 * 2560))
    p("s_lshl_b32 s%d, s%d, 1" % (sT2, sCc))
    p("s_and_b32 s%d, s%d, 1" % (sOff, sWave))
    p("s_add_u32 s%d, s%d, s%d" % (sT2, sT2, sOff))
    p("s_mul_i32 s%d, s%d, 160" % (sT2, sT2))
    p("s_add_u32 s%d, s%d, s%d" % (sOff, sT, sT2))
    if os.environ.get("FINE3"): st_()
    p("s_mov_b32 s%d, 0x40000\nM_xchk:" % sSpin)
    xs = [PA + qq * 20 + k for qq in range(1, 4) for k in range(10)]
    p("v_max_u32 v%d, v%d, v%d" % (t0, xs[0], xs[1]))
    for k in range(2, 30, 2):
        p("v_max3_u32 v%d, v%d, v%d, v%d" % (t0, t0, xs[k], xs[k + 1]))
    p("v_cmp_eq_u32 vcc, -1, v%d\ns_cbranch_vccz M_xok" % t0)
    xrecv(p)
    p("s_sub_u32 s%d, s%d, 1\ns_cbranch_scc0 M_xchk\nM_xok:" % (sSpin, sSpin))
    for qq in range(1, 4):
        for k in range(10):
            r = PA + qq * 20 + k
            p("v_lshlrev_b32 v%d, 16, v%d" % (t0, r))
            p("v_and_b32 v%d, 0xffff0000, v%d" % (r, r))
            p("v_add_f32 v%d, v%d, v%d" % (PA + 2 * k, PA + 2 * k, t0))
            p("v_add_f32 v%d, v%d, v%d" % (PA + 2 * k + 1, PA + 2 * k + 1, r))
    for n in range(5):
        b = pacc(0, n)
        p("v_cvt_pk_bf16_f32 v%d, v%d, v%d" % (b, b, b + 1))
        p("v_cvt_pk_bf16_f32 v%d, v%d, v%d" % (b + 1, b + 2, b + 3))
        p("buffer_store_dwordx2 %s, v%d, s[%d:%d], s%d offen offset:%d" % (rr("v", b, 2), vWf, sOut, sOut + 3, sOff, n * 32))
    st_()
    st_.dump(vtmp=t0)
    p("M_exit:\ns_endpgm")
    p.add(tail)
    for par in range(2):
        p("M_slow%d:" % par)
        p("s_nop 15")
        for j in range(4):
            d, f, d2 = vU + 2, vU + 3, vU + 4
            p.add(rowmax(par, j, d, f))
            p("v_max_f32 v%d, 0, v%d" % (d, d))
            p("v_exp_f32 v%d, -v%d" % (f, d))
            if j >= 2:
                p("v_mul_f32 v%d, s%d, v%d" % (d2, sKeep, d))
            else:
                d2 = d
            for k in range(8):
                p("v_sub_f32 v%d, v%d, v%d" % (S(par, j) + k, S(par, j) + k, d))
                for b in (S(par ^ 1, j), CI(j)):
                    p("v_sub_f32 v%d, v%d, v%d" % (b + k, b + k, d2))
            p("v_sub_f32 v%d, v%d, v%d" % (vM + j, vM + j, d2))
            p("v_mul_f32 v%d, v%d, v%d" % (vL + j, vL + j, f))
            for k in range(0, 32, 8):
                for e in range(8):
                    p("v_accvgpr_read_b32 v%d, a%d" % (TMP + e, O(j, 0) + k + e))
                for e in range(8):
                    p("v_mul_f32 v%d, v%d, v%d" % (TMP + e, TMP + e, f))
                for e in range(8):
                    p("v_accvgpr_write_b32 a%d, v%d" % (O(j, 0) + k + e, TMP + e))
        p.add(sm_stream(par, 2) + sum_mf(par))
        p.add([x for x in sm_stream(par ^ 1, 0) if x.startswith("v_exp")][:NE])
        p("s_nop 3")
        p(ret)
    p("M_codeend:")
    if os.environ.get("NOST"):
        p.ins = [I("buffer_load_dword v%d, off, s[%d:%d], 0" % (vA + 3, sD, sD + 3)) if (i.mn == "buffer_store_dwordx4" and ("s[16:19]" in i.text or "s[24:27]" in i.text) and i.ops[0][0] == "v") else i for i in p.ins]
    p.finish()
    return p
```

```python
from asmlib import *
from layout import *
from k_p1 import srd, x_rd_addr, w_rd_addr, MF
import os, struct

def f2u(x):
    return struct.unpack("<I", struct.pack("<f", x))[0]

NEG = 0xF149F2CA
THRESH = int(os.environ.get("THRESH", "0x5F800000"), 0)
BIAS = float(os.environ.get("BIAS", "40"))
QSCALE = f2u((128 ** -0.5) * 1.4426950408889634)
LOG2E = f2u(1.4426950408889634)
WT = os.environ.get("WT", "sc1")
PREFETCH = int(os.environ.get("PREFETCH", "2"))
NTW = os.environ.get("NTW", "nt")
WE = int(os.environ.get("WE", "10"))
CODEPF = int(os.environ.get("CODEPF", "1"))
WBL2 = int(os.environ.get("WBL2", "0"))
VERB = int(os.environ.get("VERB", "0"))
U = 16384
M16 = "v_mfma_f32_16x16x32_bf16"
u32 = lambda x: x & 0xffffffff

def L(f, *a, **k):
    q = Prog()
    f(q, *a, **k)
    return q.ins

def build_main():
    p = Prog()
    sX, sW, sW2, sO, sD, sBO = 4, 8, 12, 16, 20, 24
    sBF, sPhi, sY, sC, sKV = sW2, sO, sX, sW, sBO
    sH, sI, sWave, sW4, sT, sT2, sOff, sXcd, sIdx, sTB, sCB, sHi, sLo = range(28, 41)
    sM, sS, sKo, sRet, sTT, sL2, sSpin, sBo = 41, 44, 47, 48, 50, 51, 52, 53
    sRd, sGv, sG, sIt, sNb, sTriA, sTriB, sThr, sCnt, sCb = range(37, 47)
    sMask, sNext, sKeep, sW2k, sNlo, sCont = 54, 92, 93, 94, 95, 82
    sDa, sDb, sDc = 86, 87, 88
    P = 56
    ptr = lambda off: P + off // 4
    vLane = 1
    vX, vW, vXr, vWr = 2, 6, 10, 14
    vL16, t0, t1, t2, vDum, vStamp, vA = 22, 23, 24, 25, 26, 27, 28
    vGo = vA + 1
    vDma, vLim, vNeg, vKV, vB, vL, vOne, vM, vPoll, vU = 2, 3, 4, 5, 6, 8, 12, 16, 20, 232
    vMp = vA + 2
    RA, RB, RC, RD = 32, 96, 160, 224
    TMP, AW = 224, 240
    S = lambda par, j: 32 + par * 32 + j * 8
    CI = lambda j: 96 + j * 8
    PP = lambda par, j: 128 + par * 16 + j * 4
    Q = lambda j, ds: 160 + j * 16 + ds * 4
    O = lambda j, d: j * 32 + d * 4
    FB = lambda j: 128 + j * 4
    aXF, aVF, aRAW, aPA, aPK = 128, 144, 96, 192, 192
    tail = []
    ret = "s_setpc_b64 s[%d:%d]" % (sRet, sRet + 1)
    call = lambda lab: "s_call_b64 s[%d:%d], %s" % (sRet, sRet + 1, lab)

    def x_voffs(pitch, wsh=5):
        return ["v_lshrrev_b32 v%d, 3, v%d" % (t0, vLane),
                "s_lshl_b32 s%d, s%d, %d" % (sT, sWave, wsh),
                "v_add_u32 v%d, s%d, v%d" % (t0, sT, t0),
                "v_mul_u32_u24 v%d, %d, v%d" % (t0, pitch, t0),
                "v_lshrrev_b32 v%d, 4, v%d" % (t1, vLane),
                "v_and_b32 v%d, 7, v%d" % (t2, vLane),
                "v_xor_b32 v%d, v%d, v%d" % (t2, t2, t1),
                "v_lshl_add_u32 v%d, v%d, 4, v%d" % (vX, t2, t0),
                "v_xor_b32 v%d, 4, v%d" % (t2, t2),
                "v_lshl_add_u32 v%d, v%d, 4, v%d" % (vX + 1, t2, t0),
                "v_add_u32 v%d, %d, v%d" % (vX + 1, 8 * pitch - 1024, vX + 1),
                "v_add_u32 v%d, %d, v%d" % (vX + 2, 2 * (8 * pitch - 1024), vX),
                "v_add_u32 v%d, %d, v%d" % (vX + 3, 2 * (8 * pitch - 1024), vX + 1)]
    def w_voffs(pitch, m16):
        r = ["v_lshrrev_b32 v%d, 4, v%d" % (t0, vLane),
             "v_lshlrev_b32 v%d, 2, v%d" % (t1, t0),
             "s_lshl_b32 s%d, s%d, 4" % (sT, sWave),
             "v_add_u32 v%d, s%d, v%d" % (t0, sT, t0),
             "v_mul_u32_u24 v%d, %d, v%d" % (t0, pitch, t0),
             "v_and_b32 v%d, 15, v%d" % (t2, vLane),
             "v_xor_b32 v%d, v%d, v%d" % (t2, t2, t1),
             "v_lshl_add_u32 v%d, v%d, 4, v%d" % (vW, t2, t0)] + \
            ["v_add_u32 v%d, %d, v%d" % (vW + k, k * (4 * pitch - 1024), vW) for k in range(1, 4)]
        if m16:
            r += ["v_xor_b32 v%d, 32, v%d" % (vW + k, vW + k) for k in (2, 3)]
        return r
    def x_rd16(dst):
        return ["v_and_b32 v%d, 15, v%d" % (t0, vLane), "v_bfe_u32 v%d, v%d, 1, 3" % (t1, vLane), "v_lshrrev_b32 v%d, 4, v%d" % (dst, vLane),
                "v_xor_b32 v%d, v%d, v%d" % (dst, dst, t1), "v_lshlrev_b32 v%d, 4, v%d" % (dst, dst), "v_lshl_add_u32 v%d, v%d, 7, v%d" % (dst, t0, dst)]
    def w_rd16(dst):
        return ["v_bfe_u32 v%d, v%d, 2, 2" % (t0, vLane), "v_lshrrev_b32 v%d, 4, v%d" % (t1, vLane),
                "v_lshlrev_b32 v%d, 11, v%d" % (dst, t1), "v_lshl_add_u32 v%d, v%d, 8, v%d" % (dst, t0, dst), "v_lshl_add_u32 v%d, v%d, 6, v%d" % (dst, t0, dst),
                "v_and_b32 v%d, 1, v%d" % (t1, t1), "v_lshl_add_u32 v%d, v%d, 5, v%d" % (dst, t1, dst),
                "v_and_b32 v%d, 3, v%d" % (t0, vLane), "v_lshl_add_u32 v%d, v%d, 3, v%d" % (dst, t0, dst)]
    def dma(i, srdn, fl=""):
        v = vX if srdn == sX else vW
        return [["s_mov_b32 m0, s%d" % (sM + i)]] + \
               ["buffer_load_dwordx4 v%d, s[%d:%d], s%d offen offset:%d %s lds" % (v + q, srdn, srdn + 3, sS + i, q * 1024, fl) for q in range(4)]
    def put_dma(G, i, srdn, lo, hi, fl=""):
        d = dma(i, srdn, fl)
        G.put(lo, d[0])
        G.spread(d[1:], lo + 1, hi)
    def w_srd(q, d, which, col_s, total):
        q("s_lshl_b32 s%d, s%d, 8" % (sT, col_s))
        srd(q, d, ptr(which), off_s=sT)
        q("s_sub_u32 s%d, %d, s%d" % (d + 2, total, sT))
    def sw_XB(q):
        q("s_mul_i32 s%d, s%d, %d" % (sT, sTB, 128 * 1280))
        srd(q, sX, ptr(B_X), off_s=sT)
        q("s_cmp_lt_u32 s2, 240\ns_cselect_b32 s%d, %d, 0" % (sX + 2, 128 * 1280))
        q.add(x_voffs(1280))
    def sw_WB(q):
        w_srd(q, sW, B_WQKV, sCB, 640 * 3840)
        q("s_cmp_lt_u32 s2, 240\ns_cselect_b32 s%d, s%d, 0" % (sW + 2, sW + 2))
        q("s_mov_b64 s[%d:%d], s[%d:%d]\ns_mov_b32 s%d, s%d" % (sW2, sW2 + 1, sW, sW + 1, sW2 + 2, sW + 2))
        q.add(w_voffs(3840, 0))
    def sw_XQ(q):
        srd(q, sX, ptr(A_X), nrec=2048 * 1280)
    def sw_WQ(q):
        w_srd(q, sW, A_WQ, sH, 640 * 8192)
        q.add(w_voffs(8192, 1))

    class Plan:
        def __init__(s):
            s.vm, s.unit, s.free, s.when, s.now = [], {}, [], {}, 0
            s.pend = {"X": [], "W": []}
            s.job = {"X": "KV", "W": "KV"}
            for st in range(8):
                for g in range(2):
                    s.pend["X"].append((("KX", st, g), "KV", st, str(g * 256 * 1024 + st * 128), ((2 * st) % 5) * 2 + g))
                    s.pend["W"].append((("KW", st, g), "KV", st, str(st * 64 * 8192), ((2 * st + 1) % 5) * 2 + g))
            for b in range(10):
                s.pend["X"].append((("BX", b), "B", 8 + b, str(b * 128), None))
                s.pend["W"].append((("BW", b), "B", 8 + b, str(b * 64 * 3840), None))
            for st in range(10):
                s.pend["X"].append((("QX", st, 0), "Q", 18 + st, (sHi, st * 128), None))
                s.pend["X"].append((("QX", st, 1), "Q", 18 + st, (sLo, st * 128), None))
                s.pend["W"].append((("QW", st), "Q", 18 + st, str(st * 64 * 8192), None))
            s.free = list(range(10))
        def copy(s):
            import copy
            return copy.deepcopy(s)
        def take(s, ty, i):
            oth = "W" if ty == "X" else "X"
            pre = []
            c = s.pend[ty][0] if s.pend[ty] else None
            if c is not None:
                if c[4] is not None:
                    ok = c[4] in s.free
                else:
                    resv = {g[4] for t in "XW" for g in s.pend[t] if g[4] is not None}
                    av = [x for x in s.free if x not in resv]
                    ok = len(av) - 1 >= sum(1 for g in s.pend[oth] if g[2] < c[2] and g[4] is None)
                if not ok:
                    c = None
            if c is None:
                return ["s_mov_b32 s%d, 0x30000" % (sM + i), "s_brev_b32 s%d, 1" % (sS + i)], None
            s.pend[ty].pop(0)
            un = c[4] if c[4] is not None else av[0]
            s.free.remove(un)
            s.unit[c[0]] = un
            s.when[c[0]] = s.now
            if c[1] != s.job[ty]:
                s.job[ty] = c[1]
                pre += L({"XB": sw_XB, "WB": sw_WB, "XQ": sw_XQ, "WQ": sw_WQ}[ty + c[1]])
            pre.append("s_add_u32 s%d, s%d, 0x%x" % (sM + i, sW4, un * U))
            if isinstance(c[3], tuple):
                pre.append("s_add_u32 s%d, s%d, %d" % (sS + i, c[3][0], c[3][1]))
            else:
                pre.append("s_mov_b32 s%d, %s" % (sS + i, c[3]))
            return pre, c[0]
        def issue(s, tag, n=4):
            s.vm += [tag] * n
        def hook(s, ins, tag="h"):
            for t in ins:
                i = t if isinstance(t, I) else I(t)
                if i.cnt == "vm":
                    s.vm.append(tag)
        def barrier(s, need, free, dt):
            last = max(max(k for k, t in enumerate(s.vm) if t == n) for n in need) if need else -1
            N = len(s.vm) - 1 - last
            if VERB:
                print("barrier need", need, "N", N, "flight", [s.now - s.when[n] for n in need if n in s.when])
            for f in free:
                s.free.append(s.unit[f])
            s.now += dt
            s.done = last
            return ["s_waitcnt %slgkmcnt(0)" % ("vmcnt(%d) " % min(N, 63) if need else ""), "s_barrier"]
        def complete(s, tag):
            return max(k for k, t in enumerate(s.vm) if t == tag) <= s.done
    pl = Plan()

    def pf_lin(which, total, k):
        share = total // 32
        return ["s_mul_i32 s%d, s%d, %d" % (sT, sIdx, share), "s_lshl_b32 s%d, s%d, 13" % (sT2, sWave), "s_add_u32 s%d, s%d, s%d" % (sT, sT, sT2),
                "s_add_u32 s%d, s%d, %d" % (sT, sT, k * 32768),
                "v_lshl_add_u32 v%d, v%d, 7, s%d" % (t0, vLane, sT), "v_min_u32 v%d, %d, v%d" % (t0, total - 128, t0),
                "global_load_dword v%d, v%d, s[%d:%d]" % (vDum, t0, ptr(which), ptr(which) + 1)]
    def pf_w(which, rows):
        share = rows // 32
        return ["s_mul_i32 s%d, s%d, %d" % (sT, sIdx, share), "s_lshl_b32 s%d, s%d, 3" % (sT2, sWave), "s_add_u32 s%d, s%d, s%d" % (sT, sT, sT2),
                "v_lshrrev_b32 v%d, 3, v%d" % (t0, vLane), "v_add_u32 v%d, s%d, v%d" % (t0, sT, t0), "v_min_u32 v%d, %d, v%d" % (t0, rows - 1, t0),
                "v_lshlrev_b32 v%d, 13, v%d" % (t0, t0), "v_and_b32 v%d, 7, v%d" % (t1, vLane), "v_lshl_add_u32 v%d, v%d, 7, v%d" % (t0, t1, t0),
                "s_lshl_b32 s%d, s%d, 10" % (sT, sXcd), "v_add_u32 v%d, s%d, v%d" % (t0, sT, t0),
                "global_load_dword v%d, v%d, s[%d:%d]" % (vDum, t0, ptr(which), ptr(which) + 1)]
    def pf_bx():
        return ["s_mul_i32 s%d, s%d, %d" % (sT, sXcd, 256 * 1280), "s_mul_i32 s%d, s%d, 10240" % (sT2, sIdx), "s_add_u32 s%d, s%d, s%d" % (sT, sT, sT2),
                "v_lshlrev_b32 v%d, 7, v0" % t0, "v_min_u32 v%d, %d, v%d" % (t0, 10240 - 128, t0), "v_add_u32 v%d, s%d, v%d" % (t0, sT, t0),
                "global_load_dword v%d, v%d, s[%d:%d]" % (vDum, t0, ptr(B_X), ptr(B_X) + 1)]

    def extra(ty, keep):
        if len(pl.free) <= keep:
            return []
        pre, tag = pl.take(ty, 2)
        if tag is None:
            return []
        pl.issue(tag)
        d = dma(2, sX if ty == "X" else sW)
        return pre + d[0] + d[1:]
    def skel(last_mf, bar, mf, custom, target, NP=2):
        if last_mf:
            p(last_mf)
        p.add(bar)
        n = len(custom)
        for k in range(NP):
            p.add([mf[k]] + custom[k * n // NP:(k + 1) * n // NP])
        p(call(target))
    def body(name, G, mf, entries=None, NP=2):
        out = ["%s:" % name]
        for k in range(NP, G.n - 1):
            if entries and k in entries:
                out.append("%s:" % entries[k])
            out += [mf[k]] + G.gap(k)
        assert not any(G.gap(k) for k in list(range(NP)) + [G.n - 1])
        tail.extend(out + [ret])
    def pack_tile(src, dst):
        return ["v_cvt_pk_bf16_f32 v%d, v%d, v%d" % (dst + k, src + 2 * k, src + 2 * k + 1) for k in range(8)]
    FULL = int(os.environ.get("FULL", "1"))
    def publish(val):
        lab = p.newlabel("M_pub")
        return ["s_cmp_lg_u32 s%d, 0" % sWave, "s_cbranch_scc1 %s" % lab,
                "s_lshl_b32 s%d, s2, 7" % sT, "v_mov_b32 v%d, %d" % (t0, val), "v_lshlrev_b32 v%d, 2, v%d" % (t1, vLane),
                "s_mov_b32 exec_hi, 0" if FULL else "s_mov_b64 exec, 1",
                "buffer_store_dword v%d, v%d, s[%d:%d], s%d offen sc1" % (t0, t1, sD, sD + 3, sT),
                "s_mov_b64 exec, -1", "%s:" % lab]
    def poll_load(kind):
        if kind == "go":
            return ["v_mov_b32 v%d, 0" % t0, "global_load_dword v%d, v%d, s[%d:%d] sc1" % (vGo, t0, ptr(D_DBG), ptr(D_DBG) + 1)]
        if kind == 2:
            r = ["v_min_u32 v%d, 29, v%d" % (t0, vLane), "v_lshlrev_b32 v%d, 10, v%d" % (t0, t0), "s_lshl_b32 s%d, s%d, 7" % (sT, sXcd)]
        elif kind in (1, "KV"):
            r = ["v_and_b32 v%d, 7, v%d" % (t0, vLane), "v_lshlrev_b32 v%d, 10, v%d" % (t0, t0), "s_andn2_b32 s%d, s2, 0x38" % sT, "s_lshl_b32 s%d, s%d, 7" % (sT, sT)]
        elif kind in ("A", "B", 7, 3):
            return ["buffer_load_dword v%d, v%d, s[%d:%d], 0 offen sc1" % (vDum, vPoll, sD, sD + 3)]
        else:
            r = ["v_and_b32 v%d, 7, v%d" % (t0, vLane), "v_lshlrev_b32 v%d, 7, v%d" % (t0, t0), "s_lshl_b32 s%d, s%d, 10" % (sT, sIdx)]
        return r + ["buffer_load_dword v%d, v%d, s[%d:%d], s%d offen sc1" % (vKV if kind == "KV" else vDum, t0, sD, sD + 3, sT)]
    def poll_check(kind):
        lab = p.newlabel("M_poll")
        chk = ["v_cmp_gt_u32 vcc, %s, v%d" % (("1", vGo) if kind == "go" else (("v%d" % (vPoll + 1), vDum) if kind in ("A", "B") else (str(kind), vDum)))]
        if kind == "KV":
            chk = ["v_cmp_gt_u32 vcc, 3, v%d" % vKV]
        tail.extend(["%s:" % lab, "s_mov_b32 s%d, 0x40000" % sSpin, "%s_l:" % lab, "s_sleep 1"] + poll_load(kind) + ["s_waitcnt vmcnt(0)"] + chk +
                    ["s_cbranch_vccz %s_r" % lab, "s_sub_u32 s%d, s%d, 1" % (sSpin, sSpin), "s_cbranch_scc0 %s_l" % lab, "s_branch %s_r" % lab])
        if kind in ("KV", 3):
            c = I(chk[0])
            c.rd = set()
            chk = ["s_waitcnt vmcnt(8)", c]
        return chk + ["s_cbranch_vccnz %s" % lab, "%s_r:" % lab]
    def pf(which, total, first, nlines):
        return ["s_lshl_b32 s%d, s2, 2" % sT, "s_add_u32 s%d, s%d, s%d" % (sT, sT, sWave), "s_mul_i32 s%d, s%d, %d" % (sT, sT, nlines),
                "s_add_u32 s%d, s%d, %d" % (sT, sT, first), "v_min_u32 v%d, %d, v%d" % (t0, nlines - 1, vLane), "v_add_u32 v%d, s%d, v%d" % (t0, sT, t0),
                "v_min_u32 v%d, %d, v%d" % (t0, total // 128 - 1, t0), "v_lshlrev_b32 v%d, 7, v%d" % (t0, t0),
                "global_load_dword v%d, v%d, s[%d:%d]" % (vDum, t0, ptr(which), ptr(which) + 1)]

    sPC0 = 96
    def code_touch(dst, mode):
        if not (CODEPF & mode):
            return []
        return ["s_lshl_b32 s%d, s%d, 2" % (sT, sIdx), "s_add_u32 s%d, s%d, s%d" % (sT, sT, sWave), "s_lshl_b32 s%d, s%d, 9" % (sT, sT),
                "v_and_b32 v%d, 3, v%d" % (t0, vLane), "v_lshl_add_u32 v%d, v%d, 7, s%d" % (t0, t0, sT), "v_min_u32 v%d, M_codeend-M_pc0-4, v%d" % (t0, t0),
                "global_load_dword v%d, v%d, s[%d:%d]" % (dst, t0, sPC0, sPC0 + 1)]
    p("s_cmp_ge_u32 s2, 256\ns_cbranch_scc1 M_exit")
    p("s_getpc_b64 s[%d:%d]\nM_pc0:" % (sPC0, sPC0 + 1))
    p("s_load_dwordx16 s[%d:%d], s[0:1], 0" % (P, P + 15))
    p("s_load_dwordx8 s[%d:%d], s[0:1], 64" % (P + 16, P + 23))
    p("s_load_dwordx2 s[%d:%d], s[0:1], 96" % (P + 24, P + 25))
    st_ = Stamper(p, vStamp, kid=0)
    p("v_and_b32 v%d, 63, v0" % vLane)
    p("v_lshrrev_b32 v%d, 6, v0" % t0)
    p("v_readfirstlane_b32 s%d, v%d" % (sWave, t0))
    p("s_and_b32 s%d, s2, 7" % sXcd)
    p("s_lshr_b32 s%d, s2, 3" % sIdx)
    p("s_lshl_b32 s%d, s%d, 12" % (sW4, sWave))
    p("s_lshl_b32 s%d, s%d, 2" % (sH, sXcd))
    p("s_lshr_b32 s%d, s%d, 3" % (sT, sIdx))
    p("s_add_u32 s%d, s%d, s%d" % (sH, sH, sT))
    p("s_and_b32 s%d, s%d, 7" % (sI, sIdx))
    p.add(code_touch(vDum, 1))
    pl.hook(code_touch(vDum, 1))
    p.add(x_voffs(1024, 9))
    p.add(w_voffs(8192, 1))
    p("s_waitcnt lgkmcnt(0)")
    st_()
    srd(p, sD, ptr(D_WS), off_imm=WS_FL, nrec=32768)
    p("s_cmp_lg_u32 s2, 255\ns_cbranch_scc1 M_nolead")
    p("v_lshlrev_b32 v%d, 7, v0\nv_mov_b32 v%d, 0" % (t0, t1))
    p("buffer_store_dword v%d, v%d, s[%d:%d], 0 offen sc1" % (t1, t0, sD, sD + 3))
    p("M_nolead:")
    p("s_lshl_b32 s%d, s%d, 15" % (sT, sI))
    srd(p, sX, ptr(A_CKV), off_s=sT)
    p("s_sub_u32 s%d, 0x200000, s%d" % (sX + 2, sT))
    w_srd(p, sW, A_WUK, sH, 512 * 8192)
    w_srd(p, sW2, A_WUV, sH, 512 * 8192)
    for ty in "XWXW":
        for g in range(2):
            pre, tag = pl.take(ty, 0)
            p.add(pre + dma(0, sX if ty == "X" else (sW, sW2)[g], "" if ty == "X" else NTW))
            pl.issue(tag)
    p("s_mul_i32 s%d, s%d, 800" % (sT, sIdx))
    srd(p, sPhi, ptr(B_WPHI), off_s=sT, nrec=800)
    b1, b2 = vA, vA + 1
    p("s_and_b32 s%d, s%d, 3" % (sT, sIdx))
    p("s_mul_i32 s%d, s%d, 160" % (sT, sT))
    p("v_lshrrev_b32 v%d, 5, v%d" % (t0, vLane))
    p("v_mul_u32_u24 v%d, 160, v%d" % (t0, t0))
    p("v_subrev_u32 v%d, s%d, v%d" % (t0, sT, t0))
    p("v_and_b32 v%d, 3, v%d" % (t1, vLane))
    p("v_lshl_add_u32 v%d, v%d, 1, v%d" % (t0, t1, t0))
    p("v_bfe_u32 v%d, v%d, 3, 2" % (t1, vLane))
    p("v_lshl_add_u32 v%d, v%d, 3, v%d" % (b1, t1, t0))
    p("v_add_u32 v%d, 32, v%d" % (b2, t0))
    p("v_bfrev_b32 v%d, 1" % t2)
    p("v_cmp_eq_u32 vcc, 0, v%d" % t1)
    p("v_cndmask_b32 v%d, v%d, v%d, vcc" % (b2, t2, b2))
    p.add(x_rd16(vXr))
    p("s_lshr_b32 s%d, s%d, 1" % (sT, sWave))
    p("s_lshl_b32 s%d, s%d, 14" % (sT, sT))
    p("v_add_u32 v%d, s%d, v%d" % (vXr, sT, vXr))
    p("v_xor_b32 v%d, 64, v%d" % (vXr + 1, vXr))
    p("s_lshl_b32 s%d, s%d, 3" % (sKo, sT))
    p.add(w_rd16(vWr))
    p("s_and_b32 s%d, s%d, 1" % (sT, sWave))
    p("s_lshl_b32 s%d, s%d, 7" % (sT, sT))
    p("s_add_u32 s%d, s%d, 0x%x" % (sT, sT, 2 * U))
    p("v_xor_b32 v%d, s%d, v%d" % (vWr, sT, vWr))
    for c in range(1, 4):
        p("v_xor_b32 v%d, %d, v%d" % (vWr + c, c * 32, vWr))
    p("v_lshlrev_b32 v%d, 4, v%d" % (vL16, vLane))
    gath = []
    n = 0
    for tile in range(2):
        for u in range(2):
            for e in range(8):
                cw = 16 * u + 8 * (e >> 2) + (e & 3)
                t = (t0, t1, t2)[n % 3]
                gath += ["v_add_u32 v%d, %d, v%d" % (t, cw * 40, b2 if tile else b1),
                         "buffer_load_ushort a%d, v%d, s[%d:%d], 0 offen" % (aRAW + n, t, sPhi, sPhi + 3)]
                n += 1
    p("s_lshl_b32 s%d, s%d, 1" % (sTB, sXcd))
    p("s_cmp_ge_u32 s%d, 15" % sIdx)
    p("s_cselect_b32 s%d, 15, 0" % sT)
    p("s_addc_u32 s%d, s%d, 0" % (sTB, sTB))
    p("s_sub_u32 s%d, s%d, s%d" % (sCB, sIdx, sT))
    p("s_mul_i32 s%d, s%d, %d" % (sLo, sI, 128 * 1280))
    p("s_sub_u32 s%d, %d, s%d" % (sHi, 15 * 128 * 1280, sLo))

    sWp, vWt = 84, vA + 2
    WTOUCH = int(os.environ.get("WTOUCH", "0"))
    p("s_cmp_ge_u32 s%d, 2" % sWave)
    p("s_cselect_b64 s[%d:%d], s[%d:%d], s[%d:%d]" % (sWp, sWp + 1, ptr(A_WUV), ptr(A_WUV) + 1, ptr(A_WUK), ptr(A_WUK) + 1))
    p("s_and_b32 s%d, s%d, 1" % (sT, sWave))
    p("s_lshl_b32 s%d, s%d, 1" % (sT2, sIdx))
    p("s_add_u32 s%d, s%d, s%d" % (sT, sT, sT2))
    p("s_lshl_b32 s%d, s%d, 3" % (sT, sT))
    p("s_add_u32 s%d, s%d, s%d" % (sT, sT, sXcd))
    p("s_lshl_b32 s%d, s%d, 10" % (sT, sT))
    p("v_and_b32 v%d, 7, v%d" % (vWt, vLane))
    p("v_lshl_add_u32 v%d, v%d, 7, s%d" % (vWt, vWt, sT))
    p("v_add_u32 v%d, 0x%x, v%d" % (vWt, 64 * 8192, vWt))
    wtouch = ["v_add_u32 v%d, 0x%x, v%d" % (vWt, 64 * 8192, vWt), "global_load_dword v%d, v%d, s[%d:%d] %s" % (vDum, vWt, sWp, sWp + 1, NTW)] if WTOUCH else []
    p.add(wtouch + wtouch)
    pl.hook(wtouch + wtouch)
    fx = lambda st, i: 128 + st * 64 + i * 4
    fw = lambda st, i: 128 + st * 64 + 32 + i * 4
    def kvreg(mat, n):
        if mat == 0:
            return ("v", RB + 16 * n if n < 4 else RA + 16 * (n - 4))
        return ("v", RC + 16 * n) if n < 4 else (("v", RD + 16 * (n - 4)) if n < 6 else ("a", 16 * (n - 6)))
    def kv_reads(st):
        X = ["ds_read_b128 %s, v%d offset:%d" % (rr("a", fx(st, i), 4), vXr + st, i * 2048) for i in range(8)]
        W = ["ds_read_b64_tr_b16 %s, v%d offset:%d" % (rr("a", fw(st, i) + 2 * u, 2), vWr + (i & 3), (i >> 2) * U + st * 8192 + u * 1024) for i in range(8) for u in range(2)]
        return X[:2] + W[:8] + X[2:] + W[8:]
    def kv_mf(st, zero=False):
        r = []
        for mat in range(2):
            for n in range(8):
                f, b0 = kvreg(mat, n)
                for e in range(4):
                    a = rr(f, b0 + 4 * e, 4)
                    tt, cc = (e & 1, e >> 1) if mat else (e >> 1, e & 1)
                    X, W = rr("a", fx(st, 2 * (n >> 1) + tt), 4), rr("a", fw(st, mat * 4 + 2 * (n & 1) + cc), 4)
                    A, B = (X, W) if mat else (W, X)
                    r.append("%s %s, %s, %s, %s" % (M16, a, A, B, "0" if zero else a))
        return r
    WL = "s_waitcnt lgkmcnt(0)"
    mfA, mfB = kv_mf(1), kv_mf(0)
    NK = 6
    G = Gaps16(64)
    G.spread(kv_reads(0), NK, 55)
    put_dma(G, 0, sW, NK, 21, NTW); put_dma(G, 1, sW2, 22, 35, NTW)
    body("M_kvA", G, mfA, NP=NK)
    G = Gaps16(64)
    G.spread(kv_reads(1), NK, 55)
    put_dma(G, 0, sX, NK, 32); put_dma(G, 1, sX, 33, 57)
    sadd = lambda regs, sd: ["v_add_u32 v%d, s%d, v%d" % (r, sd, r) for r in regs]
    kv_upd = sadd([vXr, vXr + 1], sDa) + sadd([vWr + c for c in range(4)], sDb)
    G.spread(kv_upd, 58, 62)
    kv_del = lambda s: ["s_mov_b32 s%d, 0x%x" % (sDa, u32((((2 * s) % 5) - ((2 * s - 2) % 5)) * 2 * U)), "s_mov_b32 s%d, 0x%x" % (sDb, u32((((2 * s + 1) % 5) - ((2 * s - 1) % 5)) * 2 * U))]
    body("M_kvB", G, mfB, NP=NK)
    KVs = lambda s: [("KX", s, 0), ("KX", s, 1), ("KW", s, 0), ("KW", s, 1)]
    st_()
    p.add(pl.barrier(KVs(0), [], 1024))
    st_()
    p.add(kv_reads(0))
    p("s_cmp_lg_u32 s2, 255\ns_cbranch_scc1 M_nolead2\ns_cmp_lg_u32 s%d, 0\ns_cbranch_scc1 M_nolead2" % sWave)
    p("v_mov_b32 v%d, 0\nv_mov_b32 v%d, 1\ns_mov_b64 exec, 1" % (t0, t1))
    p("global_store_dword v%d, v%d, s[%d:%d] sc1" % (t0, t1, ptr(D_DBG), ptr(D_DBG) + 1))
    p("s_mov_b64 exec, -1\nM_nolead2:")
    p(WL)
    G = Gaps16(64)
    G.spread(kv_reads(1), 0, 47)
    for i in range(2):
        pre, tag = pl.take("X", i)
        G.put(0, pre)
        pl.issue(tag)
        put_dma(G, i, sX, 1 + 13 * i, 13 + 13 * i)
    for k in range(32):
        G.put(28 + k, gath[2 * k:2 * k + 2], post=True)
    pl.hook(gath)
    G.put(50, kv_del(1))
    G.spread(kv_upd, 60, 62)
    z = kv_mf(0, zero=True)
    p.add(G.emit(z, 0, 63))
    last = z[63]
    if PREFETCH == 1:
        hooks = [gath[40:], pf_lin(B_WQKV, 640 * 3840, 0) + pf_bx(), pf_lin(B_WQKV, 640 * 3840, 1), pf_lin(B_WQKV, 640 * 3840, 2),
                 pf_w(A_WQ, 640), pf_lin(A_X, 2048 * 1280, 0), pf_lin(A_X, 2048 * 1280, 1), pf_lin(A_X, 2048 * 1280, 2)]
    elif PREFETCH == 2:
        hooks = [gath[40:], pf(B_WQKV, 640 * 3840, 0, 19), pf(B_X, 2048 * 1280, 0, 20), pf(A_X, 2048 * 1280, 0, 20),
                 pf(A_WQ, 640 * 8192, 0, 20), pf(A_WQ, 640 * 8192, 20480, 20), pf(A_WO, 4096 * 1280, 0, 20), pf(A_WO, 4096 * 1280, 20480, 20)]
    elif PREFETCH in (3, 4, 5):
        nt = lambda x: x[:-1] + [x[-1] + (" nt" if PREFETCH == 4 else "")]
        pfo = ["s_lshr_b32 s%d, s2, 1" % sT, "s_mul_i32 s%d, s%d, 40960" % (sT, sT), "s_and_b32 s%d, s2, 1" % sT2, "s_mul_i32 s%d, s%d, 640" % (sT2, sT2),
               "s_add_u32 s%d, s%d, s%d" % (sT, sT, sT2), "v_lshrrev_b32 v%d, 3, v0" % t0, "v_mul_u32_u24 v%d, 1280, v%d" % (t0, t0),
               "v_and_b32 v%d, 7, v0" % t1, "v_min_u32 v%d, 4, v%d" % (t1, t1), "v_lshl_add_u32 v%d, v%d, 7, v%d" % (t0, t1, t0), "v_add_u32 v%d, s%d, v%d" % (t0, sT, t0),
               "global_load_dword v%d, v%d, s[%d:%d]" % (vDum, t0, ptr(A_WO), ptr(A_WO) + 1)]
        def pf_wq(half):
            return ["s_mul_i32 s%d, s%d, 20" % (sT, sWave), "v_min_u32 v%d, 19, v%d" % (t0, vLane), "v_add_u32 v%d, s%d, v%d" % (t0, sT, t0),
                    "s_mul_i32 s%d, s%d, 10" % (sT, sIdx), "s_add_u32 s%d, s%d, %d" % (sT, sT, half * 320), "v_lshrrev_b32 v%d, 3, v%d" % (t1, t0), "v_add_u32 v%d, s%d, v%d" % (t1, sT, t1),
                    "v_and_b32 v%d, 7, v%d" % (t0, t0), "v_lshlrev_b32 v%d, 7, v%d" % (t0, t0), "v_lshl_add_u32 v%d, v%d, 13, v%d" % (t0, t1, t0),
                    "s_lshl_b32 s%d, s%d, 10" % (sT, sXcd), "v_add_u32 v%d, s%d, v%d" % (t0, sT, t0),
                    "global_load_dword v%d, v%d, s[%d:%d]" % (vDum, t0, ptr(A_WQ), ptr(A_WQ) + 1)]
        hooks = [[], pf(B_WQKV, 640 * 3840, 0, 19), nt(pf_bx()), pf(A_X, 2048 * 1280, 0, 20), nt(pf_wq(0)), nt(pf_wq(1)), [], [] if PREFETCH == 5 else nt(pfo)]
    else:
        hooks = [gath[40:]] + [[]] * 7
    hooks[0] = []
    hooks[6] = hooks[6] + poll_load("go")
    def upd(regs, d):
        return ["v_add_u32 v%d, 0x%x, v%d" % (r, u32(d), r) for r in regs]
    for s in range(1, 8):
        bar = pl.barrier(KVs(s), KVs(s - 1), 2048)
        cu = []
        tags = []
        for i in range(2):
            pre, tag = pl.take("W", i)
            cu += pre
            tags.append(tag)
        for t in tags:
            pl.issue(t)
        skel(last, bar, mfA, cu, "M_kvA", NK)
        cu = (wtouch if s <= 4 else []) + list(hooks[s]) + (code_touch(vDum, 2) if s == 5 else [])
        pl.hook(cu)
        tags = []
        for i in range(2):
            pre, tag = pl.take("X", i)
            cu += pre
            tags.append(tag)
        for t in tags:
            pl.issue(t)
        skel(mfA[63], [WL], mfB, cu + kv_del(s + 1), "M_kvB", NK)
        last = mfB[63]
    st_()

    bfx = lambda st, k, i: 128 + st * 32 + k * 16 + i * 4
    bfw = lambda st, k, i: 128 + st * 32 + k * 16 + 8 + i * 4
    def b_reads(st):
        r = []
        for k in range(2):
            ks = st * 2 + k
            for i in range(2):
                r.append("ds_read_b128 %s, v%d offset:%d" % (rr("a", bfx(st, k, i), 4), vXr + ks, i * 4096))
                for u in range(2):
                    r.append("ds_read_b64_tr_b16 %s, v%d offset:%d" % (rr("a", bfw(st, k, i) + 2 * u, 2), vWr + i, ks * 4096 + u * 1024))
        return r
    def b_mf(var, st, zero=False):
        mf = []
        for k in range(2):
            for b in range(2):
                for c in range(2):
                    a = rr("v", RA + (b * 2 + c) * 16, 16)
                    X, W = rr("a", bfx(st, k, b), 4), rr("a", bfw(st, k, c), 4)
                    A, B = (X, W) if var else (W, X)
                    mf.append("%s %s, %s, %s, %s" % (MF, a, A, B, "0" if (zero and k == 0) else a))
        return mf
    def kv_pack(mat, n):
        f, b0 = kvreg(mat, n)
        dst = (RC if mat else RB) + 8 * n
        if f == "v":
            return pack_tile(b0, dst)
        return ["v_accvgpr_read_b32 v%d, a%d" % (RD + k, b0 + k) for k in range(16)] + pack_tile(RD, dst)
    def kv_store(mat, n):
        f, reg = ("v", (RC if mat else RB) + 8 * n) if n < 4 else ("a", aPK + (mat * 4 + n - 4) * 8)
        st = lambda m, so, imm: "buffer_store_dwordx4 %s, v%d, s[%d:%d], s%d offen offset:%d %s" % (rr(f, reg + 4 * m, 4), vL16, sO, sO + 3, so, imm, WT)
        if mat:
            return ["s_and_b32 s%d, s%d, 0x1000" % (sOff, sW4), "s_add_u32 s%d, s%d, s%d" % (sOff, sOff, sKo), "s_add_u32 s%d, s%d, 0x%x" % (sOff, sOff, (n >> 1) * 16 * U + 8192),
                    st(0, sOff, (n & 1) * 2048), st(1, sOff, (n & 1) * 2048 + 1024)]
        return ["s_lshr_b32 s%d, s%d, 1" % (sOff, sW4), "s_and_b32 s%d, s%d, 0x800" % (sOff, sOff), "s_add_u32 s%d, s%d, s%d" % (sOff, sOff, sKo), "s_add_u32 s%d, s%d, 0x%x" % (sOff, sOff, (n >> 1) * 16 * U),
                st(0, sOff, (n & 1) * 1024), "s_addk_i32 s%d, 0x1000" % sOff, st(1, sOff, (n & 1) * 1024)]
    def b_store(t):
        return ["s_add_u32 s%d, s%d, 0x%x" % (sOff, sBo, (t >> 1) * 120 * 1024)] + \
               ["buffer_store_dwordx4 %s, v%d, s[%d:%d], s%d offen offset:%d %s" % (rr("v", RD + 8 * t + 4 * m, 4), vL16, sBO, sBO + 3, sOff, (t & 1) * 2048 + m * 1024, WT) for m in range(2)]
    Bs = lambda b: [("BX", b), ("BW", b)]
    Qs = lambda s: [("QX", s, 0), ("QX", s, 1), ("QW", s)]
    p(last)
    p.add(pl.barrier(Bs(0), KVs(7), 1280))
    def baddr(q):
        x_rd_addr(q, vXr, vLane, t0, t1)
        q("s_lshr_b32 s%d, s%d, 1" % (sT, sWave))
        q("s_lshl_b32 s%d, s%d, 13" % (sT, sT))
        q("s_add_u32 s%d, s%d, 0x%x" % (sT, sT, pl.unit[("BX", 0)] * U))
        for ks in range(4):
            q("v_add_u32 v%d, s%d, v%d" % (vXr + ks, sT, vXr + ks))
        q("s_and_b32 s%d, s%d, 1" % (sT, sWave))
        q("s_lshl_b32 s%d, s%d, 1" % (sT, sT))
        q("v_mov_b32 v%d, s%d" % (t2, sT))
        w_rd_addr(q, vWr, vLane, t0, t1, t2)
        q("v_add_u32 v%d, 0x%x, v%d" % (vWr, pl.unit[("BW", 0)] * U, vWr))
        q("v_xor_b32 v%d, 64, v%d" % (vWr + 1, vWr))
        q("s_lshl_b32 s%d, s%d, 20" % (sT, sH))
        q("s_lshl_b32 s%d, s%d, 14" % (sT2, sI))
        q("s_add_u32 s%d, s%d, s%d" % (sT, sT, sT2))
        srd(q, sO, ptr(D_WS), off_s=sT, off_imm=WS_KV)
        q("s_sub_u32 s%d, 0x100000, s%d" % (sO + 2, sT2))
    G = Gaps16(64)
    ba = L(baddr)
    for k in range(16):
        G.put(k, ba[k * len(ba) // 16:(k + 1) * len(ba) // 16], post=True)
    for i, ty in enumerate("WWX"):
        pre, tag = pl.take(ty, i)
        assert len(pre) == 2
        G.put(0, pre)
        pl.issue(tag)
        put_dma(G, i, sW if ty == "W" else sX, 1 + 20 * i, 20 + 20 * i)
    G.spread(b_reads(0), 20, 56)
    G.stream([x for n in range(8) for x in kv_pack(0, n)], 16, 49)
    G.stream([x for n in range(3) for x in kv_pack(1, n)], 50, 63)
    p.add(G.emit(kv_mf(1)))
    p(WL)
    p("s_cmp_ge_u32 s%d, 10\ns_cbranch_scc1 M_bv" % sCB)
    pl0 = pl
    qfx = lambda st, i: st * 48 + i * 4
    qfw = lambda st, i: st * 48 + 16 + i * 4
    qacc = lambda j, d: RA + j * 32 + d * 4
    def q_reads(st):
        X = ["ds_read_b128 %s, v%d offset:%d" % (rr("a", qfx(st, j), 4), vXr + 2 * (j >> 1) + st, (j & 1) * 2048) for j in (2, 3, 0, 1)]
        W = ["ds_read_b64_tr_b16 %s, v%d offset:%d" % (rr("a", qfw(st, i) + 2 * u, 2), vWr + i, st * 8192 + u * 1024) for i in range(8) for u in range(2)]
        return X[:2] + W + X[2:]
    def q_derive():
        return ["v_xor_b32 v%d, 64, v%d" % (vXr + 1, vXr), "v_xor_b32 v%d, 64, v%d" % (vXr + 3, vXr + 2)] + \
               ["v_xor_b32 v%d, %d, v%d" % (vWr + c, c * 32, vWr) for c in range(1, 8)]
    for var in range(2):
        pl = pl0.copy()
        if var:
            p("M_bv:")
        mfb = b_mf(var, 1) + b_mf(var, 0)
        G = Gaps(16)
        G.spread(b_reads(0), 2, 6); G.put(7, WL); G.spread(b_reads(1), 8, 13)
        put_dma(G, 0, sW, 2, 8); put_dma(G, 1, sX, 9, 14)
        body("M_b%d" % var, G, mfb)
        G = Gaps(8)
        pre, tag = pl.take("X", 1)
        assert len(pre) == 2
        G.put(0, pre)
        pl.issue(tag)
        put_dma(G, 1, sX, 1, 6)
        G.spread(b_reads(1), 0, 5)
        G.stream([x for n in range(3, 8) for x in kv_pack(1, n)], 0, 6)
        z = b_mf(var, 0, zero=True)
        p.add(G.emit(z, 0, 7))
        last = z[7]
        park = ["v_accvgpr_write_b32 a%d, v%d" % (aPK + k, RB + 32 + k) for k in range(32)] + ["v_accvgpr_write_b32 a%d, v%d" % (aPK + 32 + k, RC + 32 + k) for k in range(32)]
        stores = [kv_store(0, 0), park[:12], kv_store(0, 1), park[12:24], kv_store(0, 2), park[24:36], kv_store(0, 3), park[36:50], park[50:]]
        for b in range(1, 10):
            bar = pl.barrier(Bs(b), Bs(b - 1), 512)
            cu = upd([vXr, vXr + 1, vXr + 2, vXr + 3], (pl.unit[("BX", b)] - pl.unit[("BX", b - 1)]) * U) + \
                 upd([vWr, vWr + 1], (pl.unit[("BW", b)] - pl.unit[("BW", b - 1)]) * U)
            cu += extra("X" if (b != 2) else "W", 2)
            tags = []
            for i, ty in enumerate("WX"):
                pre, tag = pl.take(ty, i)
                cu += pre
                tags.append(tag)
            cu += stores[b - 1]
            pl.hook(stores[b - 1], "kv")
            for t in tags:
                pl.issue(t)
            skel(last, bar, mfb, cu, "M_b%d" % var)
            if STAMPS and os.environ.get("FINE"):
                if var and b == 1:
                    st_.n -= 9
                st_()
            last = mfb[15]
        p(last)
        p.add(pl.barrier(Qs(0), Bs(9), 1024))
        G = Gaps(8)
        qa = x_rd16(vXr) + ["s_add_u32 s%d, s%d, 0x%x" % (sT, sW4, pl.unit[("QX", 0, 1)] * U), "v_add_u32 v%d, s%d, v%d" % (vXr + 2, sT, vXr),
                            "s_add_u32 s%d, s%d, 0x%x" % (sT, sW4, pl.unit[("QX", 0, 0)] * U), "v_add_u32 v%d, s%d, v%d" % (vXr, sT, vXr)] + \
             w_rd16(vWr) + upd([vWr], pl.unit[("QW", 0)] * U) + q_derive()
        for k in range(4):
            G.put(k, qa[k * len(qa) // 4:(k + 1) * len(qa) // 4], post=True)
        pre, tag = pl.take("X", 0)
        assert len(pre) == 2
        G.put(0, pre)
        pl.issue(tag)
        put_dma(G, 0, sX, 0, 7)
        G.spread(q_reads(0), 4, 7)
        p.add(G.emit(b_mf(var, 1)))
        if var == 0:
            p("s_branch M_bdone")
    p("M_bdone:")
    st_()

    qorder = [(j, d) for jj in (2, 0) for d in range(8) for j in (jj, jj + 1)]
    def q_mf(st, zero=False):
        return ["%s %s, %s, %s, %s" % (M16, rr("v", qacc(j, d), 4), rr("a", qfw(st, d), 4), rr("a", qfx(st, j), 4), "0" if zero else rr("v", qacc(j, d), 4)) for j, d in qorder]
    mfq = q_mf(1) + q_mf(0)
    NQ = 5
    G = Gaps16(64)
    G.spread(q_reads(0), NQ, 26)
    G.put(31, WL)
    G.spread(q_reads(1), 32, 54)
    put_dma(G, 0, sX, NQ, 21); put_dma(G, 1, sX, 22, 38); put_dma(G, 2, sW, 39, 56)
    q_upd = sadd([vXr], sDa) + sadd([vXr + 2], sDb) + sadd([vWr], sDc) + q_derive()
    G.spread(q_upd, 57, 62)
    def q_del(s):
        if s > 9:
            return []
        return ["s_mov_b32 s%d, 0x%x" % (sd, u32((pl.unit[k(s)] - pl.unit[k(s - 1)]) * U))
                for sd, k in ((sDa, lambda x: ("QX", x, 0)), (sDb, lambda x: ("QX", x, 1)), (sDc, lambda x: ("QW", x)))]
    body("M_q", G, mfq, NP=NQ)
    p("s_mul_i32 s%d, s%d, %d" % (sT, sTB, 4 * 120 * 1024))
    p("s_lshl_b32 s%d, s%d, 13" % (sT2, sCB))
    p("s_add_u32 s%d, s%d, s%d" % (sT, sT, sT2))
    srd(p, sBO, ptr(D_WS), off_s=sT, off_imm=WS_BF)
    p("s_cmp_lt_u32 s2, 240\ns_cselect_b32 s%d, %d, 0" % (sBO + 2, 4 * 120 * 1024))
    p("s_lshr_b32 s%d, s%d, 1" % (sBo, sWave))
    p("s_mul_i32 s%d, s%d, %d" % (sBo, sBo, 2 * 120 * 1024))
    p("s_and_b32 s%d, s%d, 0x1000" % (sT, sW4))
    p("s_add_u32 s%d, s%d, s%d" % (sBo, sBo, sT))
    G = Gaps16(32)
    for i, ty in ((1, "X"), (2, "W")):
        pre, tag = pl.take(ty, i)
        p.add(pre)
        pl.issue(tag)
        put_dma(G, i, sX if ty == "X" else sW, 15 * (i - 1), 15 * (i - 1) + 14)
    p(WL)
    G.spread(q_reads(1), 0, 22)
    G.put(16, q_del(1))
    G.spread(q_upd, 25, 30)
    G.stream([x for t in range(4) for x in pack_tile(RA + 16 * t, RD + 8 * t)], 0, 14)
    z = q_mf(0, zero=True)
    p.add(G.emit(z, 0, 31))
    last = z[31]
    def bm_frag_loads(q, fbase, aXF):
        q("s_lshl_b32 s%d, s%d, 3" % (sTT, sXcd))
        q("s_lshl_b32 s%d, s%d, 1" % (sT, sWave))
        q("s_add_u32 s%d, s%d, s%d" % (sTT, sTT, sT))
        q("s_mul_i32 s%d, s%d, %d" % (sT, sTT, 120 * 1024))
        srd(q, sBF, ptr(D_WS), off_s=sT, off_imm=WS_BF, nrec=2 * 120 * 1024)
        q("s_mul_i32 s%d, s%d, 5" % (sT, sIdx))
        q("s_lshr_b32 s%d, s%d, 2" % (sT, sT))
        q("s_add_u32 s%d, s%d, %d" % (sT, sT, fbase))
        q("s_lshl_b32 s%d, s%d, 10" % (sT, sT))
        for tt in range(2):
            for u in range(2):
                q("buffer_load_dwordx4 %s, v%d, s[%d:%d], s%d offen offset:%d %s" % (rr("a", aXF + (tt * 2 + u) * 4, 4), vL16, sBF, sBF + 3, sT, u * 1024, WT))
            if tt == 0:
                q("s_add_u32 s%d, s%d, %d" % (sT, sT, 120 * 1024))
    vV, vWa, vRd = vA + 2, vA + 3, vA
    def bm1_loads(q):
        bm_frag_loads(q, 40, aXF)
        q("s_mul_i32 s%d, s%d, 20" % (sT, sIdx))
        q("v_and_b32 v%d, 31, v%d" % (t2, vLane))
        q("v_add_u32 v%d, s%d, v%d" % (t1, sT, t2))
        q("v_lshrrev_b32 v%d, 5, v%d" % (vV, t1))
        q("v_lshlrev_b32 v%d, 11, v%d" % (vV, vV))
        q("v_and_b32 v%d, 31, v%d" % (t1, t1))
        q("v_lshl_add_u32 v%d, v%d, 4, v%d" % (vV, t1, vV))
        q("v_and_b32 v%d, 32, v%d" % (t1, vLane))
        q("v_lshl_add_u32 v%d, v%d, 4, v%d" % (vV, t1, vV))
        q("v_bfrev_b32 v%d, 1" % t1)
        q("v_cmp_gt_u32 vcc, 20, v%d" % t2)
        q("v_cndmask_b32 v%d, v%d, v%d, vcc" % (vV, t1, vV))
        for tt in range(2):
            q("s_mov_b32 s%d, %d" % (sT, (tt * 120 + 80) * 1024))
            for mm in range(2):
                q("buffer_load_dwordx4 %s, v%d, s[%d:%d], s%d offen offset:%d %s" % (rr("a", aVF + (tt * 2 + mm) * 4, 4), vV, sBF, sBF + 3, sT, mm * 1024, WT))
    qst = {1: [("kv", kv_store(1, 0)), ("kv", kv_store(1, 1))], 2: [("kv", kv_store(1, 2)), ("kv", kv_store(1, 3))],
           3: [("b", b_store(0)), ("b", b_store(1))], 4: [("b", b_store(2)), ("b", b_store(3))]}
    pubB = pubKV = None
    for s in range(1, 10):
        bar = pl.barrier(Qs(s), Qs(s - 1), 1024)
        cu = q_del(s + 1)
        cu += extra("X", 3)
        tags = []
        for i, ty in enumerate("XXW"):
            pre, tag = pl.take(ty, i)
            cu += pre
            tags.append(tag)
        if s == 1:
            cu.append(poll_check("go"))
        if pubKV is None and s > 2 and pl.complete("kv"):
            pubKV = s
            cu.append(publish(1))
        if pubB is None and s > 4 and pl.complete("b"):
            pubB = s
            cu.append(publish(2))
        for tag, ins in qst.get(s, []):
            cu += ins
            pl.hook(ins, tag)
        if s == 5:
            ins = code_touch(vDum, 4)
            cu += ins
            pl.hook(ins)
        if s == 6:
            ins = poll_load(1)
            cu += ins
            pl.hook(ins, "poll")
        if s == 8:
            assert pl.complete("poll")
            cu.append(poll_check(1))
        if s == 9:
            ins = poll_load(2)
            cu += ins
            pl.hook(ins, "poll")
        for t in tags:
            pl.issue(t)
        skel(last, bar, mfq, cu, "M_q", NQ)
        last = mfq[63]
        if STAMPS and os.environ.get("FINE"):
            st_()
    if VERB:
        print("pubB", pubB, "pubKV", pubKV)
    assert pubB and pubKV and not pl.pend["X"] and not pl.pend["W"]
    C1, C2, PH, VF, KC, AF, RR = 48, 64, 80, 96, 112, TMP, 32
    def phi(xf):
        for tile, C in ((0, C1), (1, C2)):
            for u in range(2):
                p("%s %s, %s, %s, %s" % (MF, rr("v", C, 16), rr("v", AW + (tile * 2 + u) * 4, 4), rr("a", xf + u * 4, 4), rr("v", C, 16) if u else "0"))
        p(call("M_phi"))
    aXQ = 232
    q = Prog()
    q("M_phi:")
    x = [C1 + k for k in range(16)] + [C2 + k for k in range(4)]
    m = t1
    q("v_max3_f32 v%d, v%d, v%d, v%d" % (m, x[0], x[1], x[2]))
    for k in range(3, 19, 2):
        q("v_max3_f32 v%d, v%d, v%d, v%d" % (m, m, x[k], x[k + 1]))
    q("v_max_f32 v%d, v%d, v%d" % (m, m, x[19]))
    q("v_mul_f32 v%d, s%d, v%d" % (m, sL2, m))
    for k in range(20):
        q("v_fma_f32 v%d, v%d, s%d, -v%d" % (x[k], x[k], sL2, m))
    for k in range(20):
        q("v_exp_f32 v%d, v%d" % (x[k], x[k]))
    q("v_add_f32 v%d, v%d, v%d" % (m, x[0], x[1]))
    for k in range(2, 20):
        q("v_add_f32 v%d, v%d, v%d" % (m, m, x[k]))
    q("v_rcp_f32 v%d, v%d" % (m, m))
    for k in range(20):
        q("v_mul_f32 v%d, v%d, v%d" % (x[k], x[k], m))
    for k in range(10):
        q("v_cvt_pk_bf16_f32 v%d, v%d, v%d" % (PH + k, x[2 * k], x[2 * k + 1]))
    q(ret)
    tail += q.ins

    vWo = vA + 1
    def wo_src(which, un):
        p("s_lshr_b32 s%d, s%d, 1" % (sT, un))
        p("s_mul_i32 s%d, s%d, 40960" % (sT, sT))
        p("s_and_b32 s%d, s%d, 1" % (sT2, un))
        p("s_mul_i32 s%d, s%d, 640" % (sT2, sT2))
        p("s_add_u32 s%d, s%d, s%d" % (sT, sT, sT2))
        srd(p, sY, ptr(which), off_s=sT)
        p("s_sub_u32 s%d, 40960, s%d" % (sY + 2, sT2))
        p(call("M_wodma"))
    q = Prog()
    q("M_wodma:")
    q("s_mul_i32 s%d, s%d, 320" % (sT, sWave))
    q("s_mul_i32 s%d, s%d, 5120" % (sT2, sWave))
    q("s_add_u32 m0, s%d, 0x20000" % sT2)
    for k in range(5):
        q("v_add_u32 v%d, s%d, v%d" % (t0, sT, vLane))
        q("v_mul_u32_u24 v%d, 0x667, v%d" % (t1, t0))
        q("v_lshrrev_b32 v%d, 16, v%d" % (t1, t1))
        q("v_mul_u32_u24 v%d, 640, v%d" % (t1, t1))
        q("v_lshl_add_u32 v%d, v%d, 4, v%d" % (t0, t0, t1))
        q("buffer_load_dwordx4 v%d, s[%d:%d], 0 offen lds" % (t0, sY, sY + 3))
        if k < 4:
            q("s_add_u32 s%d, s%d, 64\ns_add_u32 m0, m0, 0x400" % (sT, sT))
    q(ret)
    tail += q.ins
    def wo_reads(isB, regs):
        p("v_lshrrev_b32 v%d, 4, v%d" % (t0, vLane))
        p("v_lshlrev_b32 v%d, %d, v%d" % (vWo, 3 if isB else 2, t0))
        p("v_bfe_u32 v%d, v%d, 2, 2" % (t0, vLane))
        p("v_add_u32 v%d, v%d, v%d" % (vWo, vWo, t0))
        p("v_mul_u32_u24 v%d, 640, v%d" % (vWo, vWo))
        p("v_and_b32 v%d, 3, v%d" % (t0, vLane))
        p("v_lshl_add_u32 v%d, v%d, 3, v%d" % (vWo, t0, vWo))
        p("s_mul_i32 s%d, s%d, 160" % (sT, sWave))
        p("s_add_u32 s%d, s%d, 0x20000" % (sT, sT))
        p("v_add_u32 v%d, s%d, v%d" % (vWo, sT, vWo))
        for n in range(5):
            for u in range(2):
                p("ds_read_b64_tr_b16 %s, v%d offset:%d" % (rr("v", regs[n] + 2 * u, 2), vWo, n * 32 + u * (4 if isB else 16) * 640))
    def wo_stores(isB, un, regs, sY):
        p("s_and_b32 s%d, s%d, 1" % (sT, un))
        p("s_lshl_b32 s%d, s%d, 2" % (sT, sT))
        p("s_add_u32 s%d, s%d, s%d" % (sT, sT, sWave))
        p("s_lshr_b32 s%d, s%d, 1" % (sT2, un))
        if isB:
            p("s_mul_i32 s%d, s%d, 20" % (sT, sT))
            p("s_add_u32 s%d, s%d, s%d" % (sT, sT, sT2))
        else:
            p("s_lshr_b32 s%d, s%d, 1" % (sT, sT))
            p("s_lshl_b32 s%d, s%d, 7" % (sT, sT))
            p("s_add_u32 s%d, s%d, s%d" % (sT, sT, sT2))
            p("s_lshl_b32 s%d, s%d, 1" % (sT, sT))
            p("s_and_b32 s%d, s%d, 1" % (sT2, sWave))
            p("s_add_u32 s%d, s%d, s%d" % (sT, sT, sT2))
        p("s_mul_i32 s%d, s%d, 5120" % (sT, sT))
        srd(p, sY, ptr(D_WS), off_s=sT, off_imm=WS_WOB if isB else WS_WOA, nrec=5120)
        p("s_movk_i32 s%d, 0x1000" % sT)
        for n in range(5):
            p("buffer_store_dwordx4 %s, v%d, s[%d:%d], %s offen offset:%d %s" % (rr("v", regs[n], 4), vL16, sY, sY + 3, "s%d" % sT if n == 4 else "0", (n & 3) * 1024, WT))
    p(last)
    p(WL + "\ns_barrier")
    sQs = sTB
    def kvsetup(q):
        q("s_mov_b32 s%d, 0x%x\ns_mov_b32 s%d, s%d" % (sDa, QSCALE, sDa + 1, sDa))
        q("s_mov_b32 s%d, 0x%x" % (sL2, LOG2E))
        q("s_lshl_b32 s%d, s%d, 20" % (sT, sH))
        srd(q, sKV, ptr(D_WS), off_s=sT, off_imm=WS_KV)
        q("s_lshl_b32 s%d, s%d, 16" % (sT, sI))
        q("s_sub_u32 s%d, 0x100000, s%d" % (sKV + 2, sT))
        q("s_lshl_b32 s%d, s%d, 11" % (sW2k, sWave))
        q("v_add_u32 v%d, s%d, v%d" % (vDma, sW2k, vL16))
    kvld = lambda so, k: "buffer_load_dwordx4 v%d, s[%d:%d], s%d offen offset:%d %s lds" % (vDma, sKV, sKV + 3, so, k * 1024, WT)
    def kv0(t, half):
        o = t * U + half * 8192
        return [["s_add_u32 m0, s%d, 0x%x" % (sW2k, o), "s_mov_b32 s%d, 0x%x" % (sOff, o), kvld(sOff, 0)], kvld(sOff, 1)]
    fl = L(kvsetup) + kv0(0, 0) + kv0(1, 0) + [poll_check(2)] + L(bm1_loads)
    mfl = q_mf(1)
    for k in range(32):
        p(mfl[k])
        p.add(fl[k * len(fl) // 32:(k + 1) * len(fl) // 32])
    st_()
    pp, p = p, Prog()
    wo_src(A_WO, 2)
    wo_chunk, p = p.ins, pp
    va = []
    for j in (2, 3, 0, 1):
        if os.environ.get("PKMUL", "1") == "1":
            va += ["v_pk_mul_f32 %s, %s, s[%d:%d]" % (rr("v", qacc(j, 0) + k, 2), rr("v", qacc(j, 0) + k, 2), sDa, sDa + 1) for k in range(0, 32, 2)]
        else:
            va += ["v_mul_f32 v%d, s%d, v%d" % (qacc(j, 0) + k, sDa, qacc(j, 0) + k) for k in range(32)]
        va += pack_tile(qacc(j, 0), Q(j, 0)) + pack_tile(qacc(j, 4), Q(j, 2))
    va += ["v_accvgpr_read_b32 v%d, a%d" % (RD + k, aRAW + k) for k in range(32)]
    va += ["v_bfe_u32 v%d, v%d, 2, 1" % (vWa, vLane), "v_mul_u32_u24 v%d, 0x8000, v%d" % (vWa, vWa), "v_lshl_or_b32 v%d, v%d, 16, v%d" % (vWa, vWa, vWa)]
    for k in range(15, -1, -1):
        va += ["v_lshl_or_b32 v%d, v%d, 16, v%d" % (AW + k, RD + 2 * k + 1, RD + 2 * k), "v_xor_b32 v%d, v%d, v%d" % (AW + k, AW + k, vWa)]
    vm = kv0(2, 0) + kv0(0, 1) + kv0(1, 1) + [wo_chunk] + kv0(3, 0) + kv0(4, 0) + kv0(5, 0) + kv0(2, 1) + kv0(3, 1)
    for k, x in enumerate(vm):
        p.add([x] + va[k * len(va) // len(vm):(k + 1) * len(va) // len(vm)])
    st_()
    phi(aXF)
    for k in range(4):
        p("v_mov_b32 v%d, 0" % (RR + k))
    zero_o = lambda k, z: "%s %s, %s, %s, 0" % (MF, rr("a", 16 * k, 16), rr("v", z, 4), rr("v", z, 4))
    p("v_and_b32 v%d, 31, v%d" % (t2, vLane))
    p("s_lshr_b32 s%d, s%d, 1" % (sT, sWave))
    p("s_lshl_b32 s%d, s%d, 13" % (sT, sT))
    p("s_add_u32 s%d, s%d, s%d" % (sT, sT, sW4))
    p("s_add_u32 s%d, s%d, %d" % (sT, sT, 4 * U + 8192))
    p("v_lshlrev_b32 v%d, 7, v%d" % (vWa, t2))
    p("v_lshrrev_b32 v%d, 5, v%d" % (t1, vLane))
    p("v_lshl_add_u32 v%d, v%d, 6, v%d" % (vWa, t1, vWa))
    p("v_add_u32 v%d, s%d, v%d" % (vWa, sT, vWa))
    p(zero_o(0, RR))
    p("v_lshlrev_b32 v%d, 9, v%d" % (vRd, t1))
    p("v_bfe_u32 v%d, v%d, 2, 2" % (t1, vLane))
    p("v_lshl_add_u32 v%d, v%d, 7, v%d" % (vRd, t1, vRd))
    p("v_bfe_u32 v%d, v%d, 4, 1" % (t1, vLane))
    p("v_lshl_add_u32 v%d, v%d, 5, v%d" % (vRd, t1, vRd))
    p("v_and_b32 v%d, 3, v%d" % (t1, vLane))
    p("v_lshl_add_u32 v%d, v%d, 3, v%d" % (vRd, t1, vRd))
    p("v_add_u32 v%d, s%d, v%d" % (vRd, sT, vRd))
    p(zero_o(1, RR))
    p("v_mov_b32 v%d, 0x3f803f80" % t0)
    p("v_cmp_eq_u32 vcc, 20, v%d" % t2)
    for tt in range(2):
        if tt:
            phi(aXF + 8)
        p("ds_write_b128 v%d, %s" % (vWa, rr("v", PH, 4)))
        p("ds_write_b128 v%d, %s offset:16" % (vWa, rr("v", PH + 4, 4)))
        p("ds_write_b64 v%d, %s offset:32" % (vWa, rr("v", PH + 8, 2)))
        for nn in range(2):
            for mm in range(2):
                for u in range(2):
                    p("ds_read_b64_tr_b16 %s, v%d offset:%d" % (rr("v", AF + (nn * 2 + mm) * 4 + 2 * u, 2), vRd, (16 * mm + 8 * u) * 128 + nn * 64))
        p(zero_o(2 + 3 * tt, RR))
        for k in range(8):
            p("v_accvgpr_read_b32 v%d, a%d" % (VF + k, aVF + tt * 8 + k))
        p(zero_o(3 + 3 * tt, RR))
        for k in range(8):
            p("v_cndmask_b32 v%d, v%d, v%d, vcc" % (VF + k, VF + k, t0))
        p(zero_o(4 + 3 * tt, RR))
        for mm in range(2):
            for nn in range(2):
                c = rr("v", KC + nn * 16, 16)
                p("%s %s, %s, %s, %s" % (MF, c, rr("v", AF + (nn * 2 + mm) * 4, 4), rr("v", VF + mm * 4, 4), "0" if (tt == 0 and mm == 0) else c))
    R0 = 6 * U
    p("s_mul_i32 s%d, s%d, 6144" % (sT, sWave))
    p("s_add_u32 s%d, s%d, %d" % (sT, sT, R0))
    p("v_add_u32 v%d, s%d, v%d" % (t1, sT, vL16))
    p("v_lshrrev_b32 v%d, 5, v%d" % (t0, vLane))
    p("v_lshlrev_b32 v%d, 10, v%d" % (vV, t0))
    p("v_lshl_add_u32 v%d, v%d, 4, v%d" % (vV, t2, vV))
    p("v_and_b32 v%d, 15, v%d" % (vLim, vLane))
    p("v_lshrrev_b32 v%d, 4, v%d" % (t0, vLane))
    p("v_lshlrev_b32 v%d, 2, v%d" % (t0, t0))
    p("v_sub_u32 v%d, v%d, v%d" % (vLim, vLim, t0))
    p("v_mov_b32 v%d, 0x%x" % (vNeg, NEG))
    for j in range(4):
        p("v_mov_b32 v%d, 0" % (vL + j))
        p("v_mov_b32 v%d, 0x3f803f80" % (vOne + j))
    for nn in range(2):
        for jj in range(3):
            p("ds_write_b128 v%d, %s offset:%d" % (t1, rr("v", KC + nn * 16 + jj * 4, 4), (nn * 3 + jj) * 1024))
    p("s_lshl_b32 s%d, s%d, 3" % (sT, sIdx))
    p("s_add_u32 s%d, s%d, s%d" % (sT, sT, sXcd))
    p("s_lshl_b32 s%d, s%d, 13" % (sT, sT))
    srd(p, sY, ptr(D_WS), off_s=sT, off_imm=WS_KVP, nrec=5120)
    srd(p, sC, ptr(D_WS), off_imm=WS_CTX, nrec=16 * MB)
    p("s_lshl_b32 s%d, s%d, 10" % (sT, sWave))
    p("s_add_u32 s%d, s%d, %d" % (sT, sT, R0))
    p("v_add_u32 v%d, s%d, v%d" % (t1, sT, vL16))
    p("v_mov_b32 v%d, v%d" % (vB, vL16))
    p("v_add_u32 v%d, 0x4000, v%d" % (vB + 1, vL16))
    p("s_waitcnt vmcnt(10) lgkmcnt(0)\ns_barrier")
    st_()
    for j in range(8):
        p("ds_read_b128 %s, v%d offset:%d" % (rr("a", FB(j), 4), vB, j * 1024))
    RS = 128
    woA = [S(1, 0) + 4 * n for n in range(5)]
    for k in range(2):
        for w in range(4):
            p("ds_read_b128 %s, v%d offset:%d" % (rr("v", RS + k * 16 + w * 4, 4), t1, w * 6144 + k * 4096))
    wo_reads(False, woA)
    wo_stores(False, 2, woA, sBF)
    p("s_lshl_b32 s%d, s%d, 11" % (sT, sWave))
    p("s_cmp_eq_u32 s%d, 3" % sWave)
    p("s_cselect_b32 s%d, 512, s%d" % (sT2, sT))
    p("s_add_u32 s%d, s%d, 2560" % (sOff, sT))
    p("s_mov_b32 s%d, 0x%x" % (sThr, THRESH))
    p("s_lshl_b32 s%d, s%d, 2" % (sT, sI))
    p("s_add_u32 s%d, s%d, s%d" % (sTriB, sT, sWave))
    p("s_sub_u32 s%d, 60, s%d" % (sTriA, sT))
    p("s_add_u32 s%d, s%d, s%d" % (sTriA, sTriA, sWave))
    p("s_add_u32 s%d, s%d, 4" % (sNlo, sT))
    p("s_mov_b32 s%d, 0\ns_mov_b32 s%d, 3" % (sMask, sMask + 1))
    p("s_bitset1_b64 s[%d:%d], s%d" % (sMask, sMask + 1, sNlo))
    p("s_bitset1_b64 s[%d:%d], s%d" % (sMask, sMask + 1, sTriB))
    p("s_add_u32 s%d, s%d, 1" % (sT, sTriB))
    p("s_bitset1_b64 s[%d:%d], s%d" % (sMask, sMask + 1, sT))
    if os.environ.get("X_NOHOOK"):
        p("s_mov_b64 s[%d:%d], 0" % (sMask, sMask + 1))
    p("s_and_b32 s%d, s%d, 1" % (sNb, sWave))
    p("s_sub_u32 s%d, s%d, s%d" % (sNb, sNb, sNlo))
    p("s_add_u32 s%d, s%d, 2" % (sNb, sNb))
    for k in range(32):
        p("v_mov_b32 v%d, 0" % (CI(0) + k))
    p("s_mov_b32 s%d, 0\ns_mov_b32 s%d, 0\ns_mov_b32 s%d, 1.0" % (sIt, sNext, sKeep))
    p("s_mov_b32 s%d, 0x%x\ns_mov_b32 s%d, 0x%x" % (sG, 6 * U, sGv, 4 * U + 8192))

    def mask_code(sl, tri):
        c = CI(2 * sl)
        r = ["s_sub_i32 s%d, s%d, s%d" % (sT, sNext, tri), "s_lshl_b32 s%d, s%d, 5" % (sT, sT), "v_subrev_u32 v%d, s%d, v%d" % (t0, sT, vLim)]
        for off, regs in ((0, (c, c + 12)), (16, (c + 4,)), (-16, (c + 8,))):
            r += ["v_cmp_gt_i32 s[%d:%d], %d, v%d" % (84 + 2 * k, 85 + 2 * k, off + k, t0) for k in range(4)]
            r += ["v_cndmask_b32 v%d, v%d, v%d, s[%d:%d]" % (b + k, b + k, vNeg, 84 + 2 * k, 85 + 2 * k) for b in regs for k in range(4)]
        return r
    xch = ["s_xor_b32 s%d, s%d, 1" % (sT, sWave), "s_lshl_b32 s%d, s%d, 13" % (sT, sT), "s_add_u32 s%d, s%d, 0x20000" % (sT, sT), "v_add_u32 v%d, s%d, v%d" % (t0, sT, vL16)] + \
          ["ds_read_b128 %s, v%d offset:%d" % (rr("v", Q(2, 0) + 4 * k, 4), t0, k * 1024) for k in range(8)] + \
          ["v_mov_b32 v%d, v%d" % (CI(2) + k, vMp + (k >> 3)) for k in range(16)] + \
          ["v_mov_b32 v%d, v%d" % (vM + 2, vMp), "v_mov_b32 v%d, v%d" % (vM + 3, vMp + 1), "s_xor_b32 s%d, s%d, 1" % (sTriB, sTriA), "s_mov_b32 s%d, 0" % sKeep, WL]
    def evt_check(kind):
        lab = p.newlabel("M_ev")
        back = "%s_r" % lab
        code = ["%s:" % lab]
        if kind == "x":
            code += ["s_cmp_eq_u32 s%d, s%d" % (sIt, sNlo), "s_cbranch_scc1 %s_x" % lab] + mask_code(1, sTriB) + ["s_branch " + back, "%s_x:" % lab] + xch + \
                    ["s_cmp_lt_u32 s%d, 32" % sIt, "s_cbranch_scc1 " + back]
        code += mask_code(1, sTriB)
        if kind == "l1":
            code += ["s_cmp_lt_u32 s%d, 32" % sIt, "s_cbranch_scc1 " + back]
        if kind != "lo":
            code += mask_code(0, sTriA)
        tail.extend(code + ["s_branch " + back])
        return ["s_bitcmp1_b64 s[%d:%d], s%d" % (sMask, sMask + 1, sIt), "s_cbranch_scc1 %s" % lab, "%s:" % back]
    qk_mf = lambda par: ["%s %s, %s, %s, %s" % (M16, rr("v", S(par, j) + 4 * (f >> 2), 4), rr("a", FB(f), 4), rr("v", Q(j, f & 3), 4),
                                                 rr("v", (CI(j) if (f & 3) == 0 else S(par, j)) + 4 * (f >> 2), 4)) for f in range(8) for j in range(4)]
    pv_mf = lambda par: ["%s %s, %s, %s, %s" % (M16, rr("a", O(j, d), 4), rr("a", FB(8 + d), 4), rr("v", PP(par, j), 4), rr("a", O(j, d), 4)) for d in range(8) for j in range(4)]
    def allg(op, dst, tmp):
        return ["v_mov_b32 v%d, v%d" % (tmp, dst), "v_permlane32_swap_b32 v%d, v%d" % (dst, tmp), "%s v%d, v%d, v%d" % (op, dst, dst, tmp),
                "v_mov_b32 v%d, v%d" % (tmp, dst), "v_permlane16_swap_b32 v%d, v%d" % (dst, tmp), "%s v%d, v%d, v%d" % (op, dst, dst, tmp)]
    def rowmax(par, j, dst, tmp):
        s = S(par, j)
        return ["v_max3_f32 v%d, v%d, v%d, v%d" % (dst, s, s + 1, s + 2), "v_max3_f32 v%d, v%d, v%d, v%d" % (dst, dst, s + 3, s + 4),
                "v_max3_f32 v%d, v%d, v%d, v%d" % (dst, dst, s + 5, s + 6), "v_max_f32 v%d, v%d, v%d" % (dst, dst, s + 7)] + allg("v_max_f32", dst, tmp) + \
               ["v_add_f32 v%d, 0x%x, v%d" % (dst, f2u(BIAS), dst)]
    NG1 = int(os.environ.get("NG1", "9"))
    def sm_stream(par, part):
        allg_ = [(j, k) for k in range(4) for j in range(4)]
        groups = allg_[:NG1] if part == 0 else (allg_[NG1:] if part == 1 else allg_)
        out = []
        tm = lambda n: (TMP + (n % 4) * 2, TMP + (n % 4) * 2 + 1)
        cv = lambda n: "v_cvt_pk_bf16_f32 v%d, v%d, v%d" % ((PP(par, groups[n][0]) + groups[n][1],) + tm(n))
        for n, (j, k) in enumerate(groups):
            a, b = tm(n)
            out += ["v_exp_f32 v%d, v%d" % (a, S(par, j) + 2 * k)] + ([cv(n - 1)] if n else []) + ["v_exp_f32 v%d, v%d" % (b, S(par, j) + 2 * k + 1)]
        return out + [cv(len(groups) - 1)]
    NE = 4
    def sm_place(G, par, part, lo, hi, ne=0):
        st = sm_stream(par, part)
        ex = [x for x in st if x.startswith("v_exp")]
        cv = [x for x in st if x.startswith("v_cvt")]
        nc = 0
        for g in range(lo, hi + 1):
            ready = ne // 2
            left = 8 - G.load(g)
            rest = sum(max(0, 8 - G.load(x)) for x in range(g + 1, hi + 1))
            while True:
                todo = 8 * (len(ex) - ne) + 4 * (len(cv) - nc)
                force = todo > rest + max(left, 0) - 4 and left > -4 and g < hi or g == hi and todo
                if ne < len(ex) and (left >= 8 or (force and nc >= ready)) and ne // 2 - nc < 4 and not (ready - nc >= 3 and left >= 8 and ne % 2 == 0):
                    G.va[g].append(ex[ne]); ne += 1; left -= 8
                elif nc < (ready if g < hi else ne // 2) and (left >= 4 or force):
                    G.va[g].append(cv[nc]); nc += 1; left -= 4
                else:
                    break
        assert ne == len(ex) and nc == len(cv), (ne, nc)
    LT = lambda par, j: PP(par ^ 1, j)
    sum_mf = lambda par: ["%s %s, %s, %s, 0" % (M16, rr("v", LT(par, j), 4), rr("v", vOne, 4), rr("v", PP(par, j), 4)) for j in range(4)]
    need = lambda js: I("need", xrd=[("a", FB(j) + e) for j in js for e in range(4)])
    fread = lambda f, par: "ds_read_b128 %s, v%d offset:%d" % (rr("a", FB(f), 4), vB + par, f * 1024)
    ALL = (0, 1, 2, 3)
    def slow_site(par):
        lab = p.newlabel("M_sl")
        tail.extend(["%s:" % lab, call("M_slow%d" % par), "s_branch %s_r" % lab])
        chk = ["v_max3_f32 v%d, v%d, v%d, v%d" % (vU, LT(par, 0), LT(par, 1), LT(par, 2)), "v_max_f32 v%d, v%d, v%d" % (vU, vU, LT(par, 3)), "v_cmp_lt_f32 vcc, s%d, v%d" % (sThr, vU)]
        return chk, ["s_cbranch_vccnz %s" % lab, "%s_r:" % lab]
    accl = lambda par: ["v_add_f32 v%d, v%d, v%d" % (vL + j, vL + j, LT(par, j)) for j in range(4)]
    def iteration(par, barrier, ntile, kind, endc=(), endb=()):
        qk = qk_mf(par ^ 1)
        SP = 24
        mf = qk[:SP] + sum_mf(par) + qk[SP:] + pv_mf(par)
        pos = lambda f: 4 * f + (4 if 4 * f >= SP else 0)
        G = Gaps16(68)
        LA = int(os.environ.get("LA", "14")); LV = int(os.environ.get("LV", "18")); BP = int(os.environ.get("BP", "53")); LG = ""
        for f in range(4, 16):
            G.put(pos(f) - (LA if f < 6 else LV), fread(f, (par ^ 1) if f < 8 else par))
        for f in range(2, 16, 2):
            G.nv[pos(f) - 1].insert(0, need([f, f + 1]))
        G.put(66, need([0, 1]))
        G.put(0, ["s_add_u32 s%d, s%d, 1" % (sIt, sIt)]); G.put(1, ["s_add_u32 s%d, s%d, 2" % (sNb, sNb)])
        G.put(3, ["s_max_i32 s%d, s%d, s%d" % (sNext, sIt, sNb)]); G.put(4, ["s_lshl_b32 s%d, s%d, 14" % (sRd, sNext)])
        G.put(5, ["s_and_b32 s%d, s%d, 0x1ffff" % (sRd, sRd)])
        G.put(64 - LV, "v_add_u32 v%d, s%d, v%d" % (vB + par, sRd, vL16))
        if barrier:
            G.put(BP, ["s_waitcnt vmcnt(%d)%s" % (4 + 4 * ntile, LG), "s_barrier"])
        for f in range(4):
            G.put(BP + 1 + 2 * f + (f >> 1) * 2, fread(f, par))
        slots = eval(os.environ.get("SL2", "[8, 16, 23, 28, 33, 40, 45, 50]")) if ntile == 2 else eval(os.environ.get("SL1", "[23, 28, 33, 45]"))
        for hh in range(2 * ntile):
            so = sGv if hh < ntile else sG
            g0, g1 = slots[2 * hh], slots[2 * hh + 1]
            G.put(g0 - 2, ["s_and_b32 s%d, s%d, 0x1ffff" % (sT, so)])
            G.put(g0 - 1, ["s_add_u32 m0, s%d, s%d" % (sT, sW2k)])
            G.put(g0, kvld(so, 0))
            G.put(g1, [kvld(so, 1), "s_add_u32 s%d, s%d, 0x4000" % (so, so)])
        chk, br = slow_site(par)
        G.put(35, br)
        G.put(64, evt_check(kind))
        G.put(67, list(endc))
        G.put(67, list(endb), post=True)
        sm_place(G, par, 1, 0, SP - 3)
        G.put(32, chk[:2]); G.put(34, chk[2])
        early = [x for x in sm_stream(par ^ 1, 0) if x.startswith("v_exp")][:NE]
        for g in range(SP - 2, 32):
            if early and G.load(g) == 0:
                G.put(g, early.pop(0))
        assert not early
        G.put(36, accl(par)[:2]); G.put(37, accl(par)[2:])
        sm_place(G, par ^ 1, 0, 38, 66, NE)
        if VERB:
            print("iteration", par, ntile, G.report(), sum(max(0, x - 8) for x in G.report()))
        out = [x if isinstance(x, I) else I(x) for x in G.emit(mf)]
        X = os.environ.get("X_DROP", "")
        if "d" in X: out = [x for x in out if x.kind != "dma"]
        if "b" in X: out = [x for x in out if x.mn != "s_barrier"]
        if "e" in X: out = [x for x in out if x.mn != "v_exp_f32"]
        if "c" in X: out = [x for x in out if x.mn != "v_cvt_pk_bf16_f32"]
        if "l" in X: out = [x for x in out if x.kind != "ds"]
        if "w" in X:
            for x in out:
                if x.kind == "ds": x.wr = set()
        if "v" in X: out = [x for x in out if not (x.kind == "branch" and (x.target.startswith("M_ev") or x.target.startswith("M_sl")))]
        p.add(out)

    p.add(evt_check("lo"))
    G = Gaps16(32)
    red = []
    for k in range(2):
        b = RS + k * 16
        for e in range(4):
            red += ["v_add_f32 v%d, v%d, v%d" % (b + e, b + e, b + 4 + e), "v_add_f32 v%d, v%d, v%d" % (b + 8 + e, b + 8 + e, b + 12 + e)]
        red += ["v_add_f32 v%d, v%d, v%d" % (b + e, b + e, b + 8 + e) for e in range(4)]
    G.stream(red, 2, 16)
    for k in range(2):
        G.put(18 + 2 * k, "buffer_store_dwordx4 %s, v%d, s[%d:%d], s%d offen %s" % (rr("v", RS + k * 16, 4), vV, sY, sY + 3, sOff if k else sT2, WT))
    G.spread([fread(f, 1) for f in range(4)], 22, 31)
    p.add(G.emit(qk_mf(0)))
    p("s_mov_b32 s%d, 1\ns_mov_b32 s%d, 1" % (sIt, sNext))
    p("s_lshl_b32 s%d, s%d, 9" % (sT, sWave))
    p("s_add_u32 s%d, s%d, %d" % (sT, sT, 7 * U + 8192))
    p("v_lshl_add_u32 v%d, v%d, 3, s%d" % (t2, vLane, sT))
    for j in range(4):
        p.add(rowmax(0, j, vU, vU + 1))
        p("v_sub_f32 v%d, 0, v%d" % (vM + j, vU))
        for k in range(8):
            p("v_sub_f32 v%d, v%d, v%d" % (S(0, j) + k, S(0, j) + k, vU))
            p("v_sub_f32 v%d, v%d, v%d" % (CI(j) + k, CI(j) + k, vU))
        if j == 1:
            p("ds_write_b64 v%d, %s" % (t2, rr("v", vM, 2)))
    p.add(evt_check("lo"))
    p.add(sm_stream(0, 0))
    p("s_lshr_b32 s%d, s%d, 1" % (sT, sXcd))
    p("s_lshl_b32 s%d, s%d, 6" % (sT, sT))
    p("s_lshr_b32 s%d, s%d, 4" % (sT2, sIdx))
    p("s_add_u32 s%d, s%d, s%d" % (sT, sT, sT2))
    p("v_and_b32 v%d, 31, v%d" % (t0, vLane))
    p("v_lshl_add_u32 v%d, v%d, 1, s%d" % (t0, t0, sT))
    p("s_lshl_b32 s%d, s%d, 3" % (sT, sIdx))
    p("v_and_b32 v%d, 7, v%d" % (t1, vLane))
    p("v_add_u32 v%d, s%d, v%d" % (t1, sT, t1))
    p("v_cmp_gt_u32 vcc, 32, v%d" % vLane)
    p("v_cndmask_b32 v%d, v%d, v%d, vcc" % (vPoll, t0, t1))
    p("v_lshlrev_b32 v%d, 7, v%d" % (vPoll, vPoll))
    p("v_xor_b32 v%d, 0x200, v%d" % (t2, t2))
    p("s_lshl_b32 s%d, s%d, 13" % (sT, sWave))
    p("s_add_u32 s%d, s%d, 0x20000" % (sT, sT))
    p("v_add_u32 v%d, s%d, v%d" % (t0, sT, vL16))
    p(WL + "\ns_barrier")
    p("ds_read_b64 %s, v%d" % (rr("v", vMp, 2), t2))
    for k in range(8):
        p("ds_write_b128 v%d, %s offset:%d" % (t0, rr("v", Q(0, 0) + 4 * k, 4), k * 1024))
    sUB = sBo
    p("s_andn2_b32 s%d, s%d, 7" % (sUB, sIdx))
    p("s_add_u32 s%d, s%d, s%d" % (sUB, sUB, sXcd))
    p("s_cmp_eq_u32 s%d, 7" % sI)
    p("s_cselect_b32 s%d, s%d, 64" % (sUB, sUB))
    p("s_add_u32 s%d, s%d, 32" % (sT, sXcd))
    p("s_cmp_eq_u32 s%d, 6" % sIdx)
    p("s_cselect_b32 s%d, s%d, s%d" % (sUB, sT, sUB))
    p("s_lshl_b32 s%d, s%d, 1" % (sCnt, sI))
    p("s_add_u32 s%d, s%d, 1" % (sCnt, sCnt))
    p(WL)
    st_()
    dec = ["s_sub_u32 s%d, s%d, 1" % (sCnt, sCnt)]
    HOOKS = (3, 5, 7, 11, 13, 15, 25, 29)
    hk = ["s_mov_b32 s%d, 0x%x" % (sT, 0 if os.environ.get("X_NOHOOK") else sum(1 << e for e in HOOKS)), "s_bitcmp1_b32 s%d, s%d" % (sT, sIt)]
    def setcont(lab):
        p("s_getpc_b64 s[%d:%d]\n%s_pc:" % (sCont, sCont + 1, lab))
        p("s_add_u32 s%d, s%d, %s-%s_pc\ns_addc_u32 s%d, s%d, 0" % (sCont, sCont, lab, lab, sCont + 1, sCont + 1))
    p.add(kv_store(0, 4) + kv_store(1, 4))
    setcont("M_l1c")
    p("M_l1:")
    iteration(0, False, 1, "x")
    iteration(1, True, 1, "l1", hk, ["s_cbranch_scc1 M_hook", "M_l1c:"] + dec + ["s_cbranch_scc0 M_l1"])
    st_()
    def ctx_base(sblk):
        p("s_lshl_b32 s%d, s%d, 20" % (sT, sblk))
        p("s_lshl_b32 s%d, s%d, 15" % (sT2, sH))
        p("s_add_u32 s%d, s%d, s%d" % (sT, sT, sT2))
        p("s_add_u32 s%d, s%d, s%d" % (sCb, sT, sW2k))
    ctx_store = lambda r, jj: "buffer_store_dwordx4 %s, v%d, s[%d:%d], s%d offen offset:%d %s" % (rr("v", r, 4), vL16, sC, sC + 3, sCb, jj * 1024, WT)
    ctx_base(sI)
    for jj in range(2):
        p("v_rcp_f32 v%d, v%d" % (vU + 2 + jj, vL + 2 + jj))
        p("v_mov_b32 v%d, 0" % (vL + 2 + jj))
    Z = PP(1, 0)
    for k in range(4):
        p("v_mov_b32 v%d, 0" % (Z + k))
    for ds in range(4):
        T = S(1, 0) + (ds & 1) * 16
        for jj in range(2):
            for k in range(8):
                p("v_accvgpr_read_b32 v%d, a%d" % (T + 8 * jj + k, O(2 + jj, 2 * ds) + k))
        if ds & 1:
            p(zero_o(4 + (ds >> 1), Z)); p(zero_o(6 + (ds >> 1), Z))
        for jj in range(2):
            for k in range(8):
                p("v_mul_f32 v%d, v%d, v%d" % (T + 8 * jj + k, T + 8 * jj + k, vU + 2 + jj))
        p.add(pack_tile(T, T))
        p(ctx_store(T, 0)); p(ctx_store(T + 4, 1))
        if ds < 3:
            p("s_add_u32 s%d, s%d, 0x2000" % (sCb, sCb))
    for hh in range(2):
        so = sG
        p.add(["s_and_b32 s%d, s%d, 0x1ffff" % (sT, so), "s_add_u32 m0, s%d, s%d" % (sT, sW2k), kvld(so, 0), kvld(so, 1), "s_add_u32 s%d, s%d, 0x4000" % (so, so)])
    p("s_mov_b32 s%d, 1.0" % sKeep)
    p("s_cmp_ge_u32 s%d, 40\ns_cbranch_scc1 M_nowob" % sUB)
    wo_src(B_WO, sUB)
    p("M_nowob:")
    p("s_lshl_b32 s%d, s%d, 1" % (sCnt, sI))
    p("s_sub_u32 s%d, 14, s%d" % (sCnt, sCnt))
    st_()
    setcont("M_l2")
    p("M_l2:")
    iteration(0, True, 2, "l2", dec, ["s_cbranch_scc1 M_l2x"])
    iteration(1, True, 2, "l2", hk, ["s_cbranch_scc0 M_l2"])
    back = jump("s_setpc_b64 s[%d:%d]" % (sCont, sCont + 1), ["M_l1c", "M_l2"])
    vP = vA
    def bm2_loads(q):
        bm_frag_loads(q, 0, aXQ)
        q("s_lshl_b32 s%d, s%d, 16" % (sT, sIdx))
        q("s_lshl_b32 s%d, s%d, 14" % (sT2, sWave))
        q("s_add_u32 s%d, s%d, s%d" % (sT, sT, sT2))
        srd(q, sO, ptr(D_WS), off_s=sT, off_imm=WS_KVP, nrec=16384)
        for j in range(2):
            for k in range(5):
                if k in (0, 4):
                    q("s_mov_b32 s%d, %d" % (sT, j * 8192 + k * 1024))
                q("buffer_load_dwordx4 %s, v%d, s[%d:%d], s%d offen offset:%d %s" % (rr("a", aPA + j * 20 + k * 4, 4), vL16, sO, sO + 3, sT, (k & 3) * 1024, WT))
    def wo_touch(q):
        if not int(os.environ.get("WOT", "0")):
            return
        q("s_lshr_b32 s%d, s%d, 3" % (sT, sIdx))
        q("s_lshl_b32 s%d, s%d, 2" % (sT, sT))
        q("s_lshr_b32 s%d, s%d, 1" % (sT2, sXcd))
        q("s_add_u32 s%d, s%d, s%d" % (sT, sT, sT2))
        q("s_lshl_b32 s%d, s%d, 3" % (sT, sT))
        q("s_add_u32 s%d, s%d, s%d" % (sT, sT, sI))
        q("s_mul_i32 s%d, s%d, 40960" % (sT, sT))
        srd(q, sO, ptr(D_WS), off_s=sT, off_imm=WS_WOA, nrec=40960)
        q("v_lshlrev_b32 v%d, 7, v0" % t0)
        q("s_mov_b32 s%d, 0x8000" % sT)
        q("buffer_load_dword v%d, v%d, s[%d:%d], 0 offen %s" % (vDum, t0, sO, sO + 3, WT))
        q("buffer_load_dword v%d, v%d, s[%d:%d], s%d offen %s" % (vDum, t0, sO, sO + 3, sT, WT))
    jobs = {3: kv_store(0, 5) + kv_store(1, 5), 5: kv_store(0, 6) + kv_store(1, 6), 7: kv_store(0, 7) + kv_store(1, 7),
            11: publish(3), 13: poll_load("KV"), 15: poll_check("KV"), 25: code_touch(vKV, 8) + poll_load(3), 29: poll_check(3) + L(bm2_loads) + L(wo_touch)}
    p("M_hook:")
    for e in HOOKS[:-1]:
        p("s_cmp_eq_u32 s%d, %d\ns_cbranch_scc1 M_hook%d" % (sIt, e, e))
    for e in reversed(HOOKS):
        p("M_hook%d:" % e)
        ins = [x if isinstance(x, I) else I(x) for x in jobs[e]]
        for x in ins:
            if x.kind == "vmem":
                x.wr = set()
        p.add(ins + [back])
    p("M_l2x:")
    for f in range(8, 16):
        p(fread(f, 1))
    chk, br = slow_site(1)
    p.add(sm_stream(1, 1) + sum_mf(1) + chk + br + accl(1))
    p("s_waitcnt vmcnt(0) lgkmcnt(0)\ns_barrier")
    p.add(publish(4))
    mfl = pv_mf(1)
    mfl = [mfl[d * 4 + j] for jj in (2, 0) for d in range(8) for j in (jj, jj + 1)]
    p("s_mul_i32 s%d, s%d, 20480" % (sT, sWave))
    p("v_add_u32 v%d, s%d, v%d" % (t0, sT, vL16))
    p("v_mov_b32 v%d, v%d\nv_mov_b32 v%d, v%d" % (vOne, vM + 2, vOne + 1, vM + 3))
    G = Gaps16(32)
    G.put(2, "ds_write_b128 v%d, %s offset:16384" % (t0, rr("v", vL + 2, 4)))
    for k in range(16):
        G.put(16 + k, "ds_write_b128 v%d, %s offset:%d" % (t0, rr("a", O(2 + (k & 1), k >> 1), 4), k * 1024))
    p.add(G.emit(mfl))
    st_()
    Lr, SUM, KA, N = 96, 176, 200, 96
    for k in range(40):
        p("v_accvgpr_read_b32 v%d, a%d" % (Lr + k, aPA + k))
    for e in range(20):
        p("v_add_f32 v%d, v%d, v%d" % (Lr + e, Lr + e, Lr + 20 + e))
    p("v_add_u32 v%d, s%d, v%d" % (vDma, sW4, vL16))
    p("v_add_u32 v%d, 0x%x, v%d" % (t1, 6 * U, vDma))
    for k in range(5):
        p("ds_write_b128 v%d, %s offset:%d" % (t1, rr("v", Lr + 4 * k, 4), (k & 3) * 1024 + (k >> 2) * U))
    p("v_and_b32 v%d, 31, v%d" % (t2, vLane))
    p("v_min_u32 v%d, 20, v%d" % (t2, t2))
    p("v_and_b32 v%d, 32, v%d" % (t1, vLane))
    p("v_add_lshl_u32 v%d, v%d, v%d, 4" % (vP, t1, t2))
    p("v_add_u32 v%d, 0x%x, v%d" % (vP, 6 * U, vP))
    p("s_xor_b32 s%d, s%d, 1" % (sT, sWave))
    p("s_mul_i32 s%d, s%d, 20480" % (sT, sT))
    p("v_add_u32 v%d, s%d, v%d" % (t0, sT, vL16))
    p("s_sub_u32 s%d, 15, s%d" % (sCnt, sI))
    ctx_base(sCnt)
    p(WL + "\ns_barrier")
    XO = 160
    p("ds_read_b128 %s, v%d offset:16384" % (rr("v", TMP, 4), t0))
    for k in range(16):
        p("ds_read_b128 %s, v%d offset:%d" % (rr("v", XO + (k & 1) * 32 + (k >> 1) * 4, 4), t0, k * 1024))
    for jj in range(2):
        fa, fb = vU + 2 * jj, vU + 2 * jj + 1
        p("v_min_f32 v%d, v%d, v%d" % (t1, vM + jj, TMP + 2 + jj))
        p("v_sub_f32 v%d, v%d, v%d" % (fa, t1, vM + jj))
        p("v_sub_f32 v%d, v%d, v%d" % (fb, t1, TMP + 2 + jj))
        p("v_exp_f32 v%d, v%d" % (fa, fa))
        p("v_exp_f32 v%d, v%d" % (fb, fb))
        p("v_mul_f32 v%d, v%d, v%d" % (vL + jj, vL + jj, fa))
        p("v_fmac_f32 v%d, v%d, v%d" % (vL + jj, TMP + jj, fb))
        p("v_rcp_f32 v%d, v%d" % (t1, vL + jj))
        p("v_mul_f32 v%d, v%d, v%d" % (fa, fa, t1))
        p("v_mul_f32 v%d, v%d, v%d" % (fb, fb, t1))
    for ds in range(4):
        T = 32 + (ds & 1) * 16
        for jj in range(2):
            for k in range(8):
                p("v_accvgpr_read_b32 v%d, a%d" % (T + 8 * jj + k, O(jj, 2 * ds) + k))
        for jj in range(2):
            for k in range(8):
                p("v_mul_f32 v%d, v%d, v%d" % (T + 8 * jj + k, T + 8 * jj + k, vU + 2 * jj))
            for k in range(8):
                p("v_fmac_f32 v%d, v%d, v%d" % (T + 8 * jj + k, XO + jj * 32 + ds * 8 + k, vU + 2 * jj + 1))
        p.add(pack_tile(T, T))
        p(ctx_store(T, 0)); p(ctx_store(T + 4, 1))
        if ds < 3:
            p("s_add_u32 s%d, s%d, 0x2000" % (sCb, sCb))
    p("s_cmp_ge_u32 s%d, 40\ns_cbranch_scc1 M_nowob2" % sUB)
    woB = [XO + 4 * n for n in range(5)]
    wo_reads(True, woB)
    wo_stores(True, sUB, woB, sY)
    p("M_nowob2:")
    st_()
    for w in range(4):
        for k in range(5):
            p("ds_read_b128 %s, v%d offset:%d" % (rr("v", Lr + w * 20 + 4 * k, 4), vP, w * 4096 + (k & 3) * 1024 + (k >> 2) * U))
    phi(aXQ)
    p("s_waitcnt vmcnt(0) lgkmcnt(0)\ns_barrier")
    p.add(publish(5))
    sKq, sMb, sCc, sGc, sGw, sGw2, sWs, sRs, sW5, sDl = range(37, 47)
    sPC, sPW, sXO, sOut = sBO, sW, sO, sW2
    vDw, vC, vWf = 3, 4, 8
    SZ = 36864
    p("s_lshr_b32 s%d, s%d, 1" % (sKq, sXcd))
    p("s_lshr_b32 s%d, s%d, 3" % (sCc, sIdx))
    p("s_sub_u32 s%d, 15, s%d" % (sT, sI))
    p("s_bitcmp1_b32 s%d, 0" % sXcd)
    p("s_cselect_b32 s%d, s%d, s%d" % (sMb, sT, sI))
    p("s_cselect_b32 s%d, 5, 4" % sT2)
    p("v_mov_b32 v%d, s%d" % (vPoll + 1, sT2))
    p("s_and_b32 s%d, s2, 0x3e" % sT)
    p("v_bfe_u32 v%d, v%d, 1, 2" % (t1, vLane))
    p("v_lshl_add_u32 v%d, v%d, 6, s%d" % (t1, t1, sT))
    p("v_and_b32 v%d, 1, v%d" % (t2, vLane))
    p("v_add_lshl_u32 v%d, v%d, v%d, 7" % (vPoll, t1, t2))
    for e in range(20):
        p("v_add_f32 v%d, v%d, v%d" % (Lr + e, Lr + e, Lr + 20 + e))
        p("v_add_f32 v%d, v%d, v%d" % (Lr + 40 + e, Lr + 40 + e, Lr + 60 + e))
    for e in range(20):
        p("v_add_f32 v%d, v%d, v%d" % (SUM + e, Lr + e, Lr + 40 + e))
    for k in range(10):
        p("v_cvt_pk_bf16_f32 v%d, v%d, v%d" % (KA + k, SUM + 2 * k, SUM + 2 * k + 1))
    for r in (KA + 10, KA + 11, PH + 10, PH + 11):
        p("v_mov_b32 v%d, 0" % r)
    def num(N):
        for u in range(3):
            p("%s %s, %s, %s, %s" % (MF, rr("v", N, 16), rr("v", KA + 4 * u, 4), rr("v", PH + 4 * u, 4), rr("v", N, 16) if u else "0"))
    num(N)
    p("s_lshl_b32 s%d, s%d, 20" % (sT, sMb))
    p("s_lshl_b32 s%d, s%d, 18" % (sT2, sKq))
    p("s_add_u32 s%d, s%d, s%d" % (sT, sT, sT2))
    srd(p, sPC, ptr(D_WS), off_s=sT, off_imm=WS_CTX, nrec=32 * 8192)
    p("s_lshl_b32 s%d, s%d, 2" % (sT, sCc))
    p("s_add_u32 s%d, s%d, s%d" % (sT, sT, sKq))
    p("s_mul_i32 s%d, s%d, %d" % (sT, sT, 32 * 10240))
    srd(p, sPW, ptr(D_WS), off_s=sT, off_imm=WS_WOA, nrec=32 * 10240)
    p("s_mul_i32 s%d, s%d, 5120" % (sW5, sWave))
    p("v_add_u32 v%d, s%d, v%d" % (vDw, sW5, vL16))
    p("s_add_u32 s%d, s%d, 0x4000" % (sW5, sW5))
    p.add(poll_load("A"))
    phi(aXQ + 8)
    num(N + 32)
    p("s_mov_b32 s%d, 0\ns_mov_b32 s%d, 0\ns_movk_i32 s%d, 0x1000\ns_mov_b32 s%d, 0\ns_mov_b32 s%d, 0" % (sGc, sGw, sGw2, sWs, sRs))
    sIc, sIw = sKo, sL2
    p("s_movk_i32 s%d, 0x4000\ns_movk_i32 s%d, 0x5000" % (sIc, sIw))
    p.add(poll_check("A"))
    p("s_barrier")
    st_()
    dC = [["s_add_u32 m0, s%d, s%d" % (sWs, sW4)]] + \
         ["buffer_load_dwordx4 v%d, s[%d:%d], s%d offen offset:%d %s lds" % (vDma, sPC, sPC + 3, sGc, k * 1024, WT) for k in range(4)]
    dW = [["s_add_u32 m0, s%d, s%d" % (sWs, sW5)]] + \
         ["buffer_load_dwordx4 v%d, s[%d:%d], s%d offen offset:%d %s lds" % (vDw, sPW, sPW + 3, sGw, k * 1024, WT) for k in range(4)] + \
         [["s_add_u32 m0, m0, 0x1000"], "buffer_load_dwordx4 v%d, s[%d:%d], s%d offen %s lds" % (vDw, sPW, sPW + 3, sGw2, WT)]
    dAdv = ["s_add_u32 s%d, s%d, s%d" % (sGc, sGc, sIc), "s_add_u32 s%d, s%d, s%d" % (sGw, sGw, sIw), "s_add_u32 s%d, s%d, s%d" % (sGw2, sGw2, sIw),
            "s_add_u32 s%d, s%d, %d" % (sWs, sWs, SZ), "s_cmp_eq_u32 s%d, %d" % (sWs, 4 * SZ), "s_cselect_b32 s%d, 0, s%d" % (sWs, sWs)]
    p("s_mov_b32 s%d, 2\nM_p3pre:" % sSpin)
    p.add(dC + dW + dAdv)
    p("s_sub_u32 s%d, s%d, 1\ns_cbranch_scc0 M_p3pre" % (sSpin, sSpin))
    CT = int(os.environ.get("CT", "0"))
    if CT:
        p("v_lshlrev_b32 v%d, 7, v0" % t0)
        p("s_lshl_b32 s%d, s%d, 16" % (sT, sCc))
        p("buffer_load_dword v%d, v%d, s[%d:%d], s%d offen %s" % (vDum, t0, sPC, sPC + 3, sT, WT))
        p("s_add_u32 s%d, s%d, 0x8000" % (sT, sT))
        p("buffer_load_dword v%d, v%d, s[%d:%d], s%d offen %s" % (vDum, t0, sPC, sPC + 3, sT, WT))
    p("s_lshr_b32 s%d, s%d, 1" % (sT, sTT))
    p("s_mul_i32 s%d, s%d, 81920" % (sT, sT))
    srd(p, sY, ptr(D_WS), off_s=sT, off_imm=WS_OB, nrec=81920)
    p("s_mul_i32 s%d, s%d, 20" % (sT, sIdx))
    vO = vA
    p("v_and_b32 v%d, 15, v%d" % (t0, vLane))
    p("v_lshlrev_b32 v%d, 4, v%d" % (t0, t0))
    p("v_bfe_u32 v%d, v%d, 4, 1" % (t2, vLane))
    p("v_lshl_add_u32 v%d, v%d, 10, v%d" % (t0, t2, t0))
    p("v_lshrrev_b32 v%d, 5, v%d" % (t1, vLane))
    p("v_lshl_add_u32 v%d, v%d, 2, s%d" % (t1, t1, sT))
    for jj in range(3):
        if jj:
            p("v_add_u32 v%d, 8, v%d" % (t1, t1))
        p("v_lshrrev_b32 v%d, 5, v%d" % (t2, t1))
        p("v_lshl_add_u32 v%d, v%d, 12, v%d" % (vO + jj, t2, t0))
        p("v_bfe_u32 v%d, v%d, 3, 2" % (t2, t1))
        p("v_lshl_add_u32 v%d, v%d, 8, v%d" % (vO + jj, t2, vO + jj))
        p("v_and_b32 v%d, 7, v%d" % (t2, t1))
        p("v_lshl_add_u32 v%d, v%d, 1, v%d" % (vO + jj, t2, vO + jj))
    p("v_bfrev_b32 v%d, 1" % t1)
    p("v_cmp_gt_u32 vcc, 32, v%d" % vLane)
    p("v_cndmask_b32 v%d, v%d, v%d, vcc" % (vO + 2, t1, vO + 2))
    for tt in range(2):
        n0 = N + 32 * tt
        p("v_add_f32 v%d, 0x%x, v%d" % (n0 + 12, f2u(1e-6), n0 + 12))
        p("v_rcp_f32 v%d, v%d" % (n0 + 12, n0 + 12))
        for k in range(12):
            p("v_mul_f32 v%d, v%d, v%d" % (n0 + k, n0 + k, n0 + 12))
        for k in range(6):
            p("v_cvt_pk_bf16_f32 v%d, v%d, v%d" % (n0 + 16 + k, n0 + 2 * k, n0 + 2 * k + 1))
        for jj in range(3):
            p("buffer_store_dwordx2 %s, v%d, s[%d:%d], 0 offen offset:%d %s" % (rr("v", n0 + 16 + 2 * jj, 2), vO + jj, sY, sY + 3, tt * 2048, WT))
    MF16 = "v_mfma_f32_16x16x32_bf16"
    PA = 160
    pacc = lambda q, n: PA + (q * 5 + n) * 4
    pfr = lambda st, i: st * 36 + i * 4
    aOB = 80
    p("s_lshr_b32 s%d, s%d, 1" % (sT, sWave))
    p("s_lshl_b32 s%d, s%d, 2" % (sT, sT))
    p("s_add_u32 s%d, s%d, s%d" % (sT, sT, sKq))
    p("s_lshl_b32 s%d, s%d, 10" % (sT, sT))
    p("v_add_u32 v%d, s%d, v%d" % (vC, sT, vL16))
    for qq in range(1, 4):
        p("v_xor_b32 v%d, 0x%x, v%d" % (vC + qq, qq << 10, vC))
    p("s_and_b32 s%d, s%d, 1" % (sT, sWave))
    p("s_mul_i32 s%d, s%d, 5120" % (sT, sT))
    p("s_add_u32 s%d, s%d, 0x4000" % (sT, sT))
    p("v_add_u32 v%d, s%d, v%d" % (vWf, sT, vL16))
    vTc = 10
    p("s_lshl_b32 s%d, s%d, 2" % (sT, sCc))
    p("s_add_u32 s%d, s%d, s%d" % (sT, sT, sWave))
    p("s_lshl_b32 s%d, s%d, 10" % (sT, sT))
    p("s_add_u32 s%d, s%d, 0x%x" % (sT, sT, int(os.environ.get("CTL", "0")) * 0x4000))
    p("v_and_b32 v%d, 7, v%d" % (vTc, vLane))
    p("v_lshl_add_u32 v%d, v%d, 7, s%d" % (vTc, vTc, sT))
    for k in range(80):
        p("v_mov_b32 v%d, 0" % (PA + k))
    def p_reads(st):
        c = ["ds_read_b128 %s, v%d offset:%d" % (rr("a", pfr(st, qq), 4), vC + qq, st * 8192) for qq in range(4)]
        w = ["ds_read_b128 %s, v%d offset:%d" % (rr("a", pfr(st, 4 + n), 4), vWf, st * 10240 + n * 1024) for n in range(5)]
        return [w[0]] + c + w[1:]
    p_mf = lambda st: ["%s %s, %s, %s, %s" % (MF16, rr("v", pacc(qq, n), 4), rr("a", pfr(st, 4 + n), 4), rr("a", pfr(st, qq), 4), rr("v", pacc(qq, n), 4)) for n in range(5) for qq in range(4)]
    G = Gaps(40)
    G.spread(p_reads(1), 0, 12)
    G.put(19, ["s_waitcnt vmcnt(%d) lgkmcnt(0)" % (15 if int(os.environ.get("CTL", "0")) else 13), "s_barrier"])
    G.put(13, ["s_add_u32 s%d, s%d, 1" % (sRs, sRs), "s_and_b32 s%d, s%d, 3" % (sRs, sRs)])
    G.put(14, ["s_mov_b32 s%d, %d" % (sDl, SZ), "s_cselect_b32 s%d, s%d, 0x%x" % (sDl, sDl, u32(-3 * SZ))])
    G.spread(["v_add_u32 v%d, s%d, v%d" % (r, sDl, r) for r in (vWf, vC, vC + 1, vC + 2, vC + 3)], 15, 18)
    G.spread(p_reads(0), 20, 32)
    for k, x in enumerate(dC):
        G.put(max(0, 4 * k - 1) + (1 if k == 0 else 0), x)
    for k, x in zip((20, 21, 25, 29, 33, 36, 37), dW):
        G.put(k, x)
    CTL = int(os.environ.get("CTL", "0"))
    if CTL:
        G.put(17, "buffer_load_dword v%d, v%d, s[%d:%d], s%d offen %s" % (vKV + 4, vTc, sPC, sPC + 3, sGc, WT))
    G.put(34, dAdv[3:]); G.put(38, dAdv[:3]); G.put(39, ["s_sub_u32 s%d, s%d, 1" % (sNlo, sNlo), WL, "s_cbranch_scc0 M_p3"])
    o3 = [x if isinstance(x, I) else I(x) for x in G.emit(p_mf(0) + p_mf(1))]
    X3 = os.environ.get("X_P3", "")
    if "m" in X3: o3 = [x for x in o3 if x.kind not in ("mfma", "ds")]
    if "d" in X3: o3 = [x for x in o3 if x.kind != "dma"]
    if "s" in X3: o3 = [I(x.text.replace(" sc1", "")) if x.kind == "dma" else x for x in o3]
    tail.extend(["M_p3:"] + o3 + [ret])
    p("s_waitcnt vmcnt(%d)\ns_barrier" % (24 + 2 * CT))
    st_()
    p.add(p_reads(0))
    p(WL)
    for s in range(16):
        if s == 3:
            p.add(publish(6))
        if s == 9:
            p("s_lshr_b32 s%d, s%d, 4" % (sT, sIdx))
            p("v_min_u32 v%d, 19, v%d" % (t0, vLane))
            p("v_lshl_add_u32 v%d, v%d, 1, s%d" % (t0, t0, sT))
            p("v_lshrrev_b32 v%d, 3, v%d" % (t1, t0))
            p("v_lshlrev_b32 v%d, 6, v%d" % (t1, t1))
            p("v_and_b32 v%d, 7, v%d" % (t2, t0))
            p("v_add3_u32 v%d, v%d, v%d, 56" % (t1, t1, t2))
            p("v_add_u32 v%d, 16, v%d" % (t2, t0))
            p("v_cmp_gt_u32 vcc, 32, v%d" % t0)
            p("v_cndmask_b32 v%d, v%d, v%d, vcc" % (t0, t2, t1))
            p("v_and_b32 v%d, 31, v%d" % (t1, vLane))
            p("v_lshl_add_u32 v%d, v%d, 3, s%d" % (t1, t1, sXcd))
            p("v_cmp_gt_u32 vcc, 32, v%d" % vLane)
            p("v_cndmask_b32 v%d, v%d, v%d, vcc" % (vPoll, t1, t0))
            p("v_lshlrev_b32 v%d, 7, v%d" % (vPoll, vPoll))
            p("v_cndmask_b32 v%d, 6, 5, vcc" % (vPoll + 1))
            p.add(poll_load("B"))
        if s == 13:
            p.add(poll_check("B"))
            p("s_lshr_b32 s%d, s%d, 2" % (sT, sIdx))
            p("s_mul_i32 s%d, s%d, 102400" % (sT, sT))
            srd(p, sPC, ptr(D_WS), off_s=sT, off_imm=WS_WOB, nrec=102400)
            p("s_mov_b64 s[%d:%d], s[%d:%d]\ns_mov_b32 s%d, s%d" % (sPW, sPW + 1, sPC, sPC + 1, sPW + 2, sPC + 2))
            p("s_mov_b32 s%d, 0\ns_movk_i32 s%d, 0x4000\ns_movk_i32 s%d, 0x5000\ns_mov_b32 s%d, %d\ns_mov_b32 s%d, %d" % (sGc, sGw, sGw2, sIc, SZ, sIw, SZ))
            p("s_lshl_b32 s%d, s%d, 2" % (sTT, sXcd))
            p("s_and_b32 s%d, s%d, 3" % (sT, sIdx))
            p("s_add_u32 s%d, s%d, s%d" % (sTT, sTT, sT))
            p("s_mul_i32 s%d, s%d, 81920" % (sT, sTT))
            srd(p, sY, ptr(D_WS), off_s=sT, off_imm=WS_OB, nrec=81920)
        if s >= 13:
            ks0 = (s - 13) * 7
            p("s_lshl_b32 s%d, s%d, 10" % (sT, sWave))
            if ks0:
                p("s_add_u32 s%d, s%d, %d" % (sT, sT, ks0 * 4096))
            for ks in range(ks0, min(ks0 + 7, 20)):
                p("buffer_load_dwordx4 %s, v%d, s[%d:%d], s%d offen %s" % (rr("a", aOB + 4 * ks, 4), vL16, sY, sY + 3, sT, WT))
                p("s_addk_i32 s%d, 0x1000" % sT)
        seg = {0: 3, 3: 6, 9: 4, 13: 1, 14: 1, 15: 1}
        if s in seg:
            p("s_mov_b32 s%d, %d" % (sNlo, seg[s] - 1))
            p(call("M_p3"))
            if os.environ.get("FINE3") and s < 15:
                st_()
    st_()
    XS = 4 * 2560
    p("s_and_b32 s%d, s%d, 1" % (sT, sXcd))
    p("s_lshl_b32 s%d, s%d, 5" % (sT, sT))
    p("s_add_u32 s%d, s%d, s%d" % (sT, sT, sIdx))
    p("s_mul_i32 s%d, s%d, %d" % (sT, sT, 16 * XS))
    srd(p, sXO, ptr(D_WS), off_s=sT, off_imm=WS_XB, nrec=16 * XS)
    p("s_mul_i32 s%d, s%d, 2560" % (sT, sWave))
    p("v_add_u32 v%d, s%d, v%d" % (vDw, sT, vL16))
    p("v_lshl_add_u32 v%d, v%d, 3, s%d" % (vC, vLane, sT))
    def xfer(op, qq):
        b = PA + qq * 20
        for k in range(2):
            p("buffer_%s_dwordx4 %s, v%d, s[%d:%d], s%d offen offset:%d %s" % (op, rr("v", b + 4 * k, 4), vDw, sXO, sXO + 3, sT, k * 1024, WT))
        p("buffer_%s_dwordx2 %s, v%d, s[%d:%d], s%d offen offset:2048 %s" % (op, rr("v", b + 8, 2), vC, sXO, sXO + 3, sT, WT))
    for qq in range(1, 4):
        p("s_xor_b32 s%d, s%d, %d" % (sT, sKq, qq))
        p("s_lshl_b32 s%d, s%d, 2" % (sT, sT))
        p("s_add_u32 s%d, s%d, s%d" % (sT, sT, sKq))
        p("s_mul_i32 s%d, s%d, %d" % (sT, sT, XS))
        for k in range(10):
            p("v_cvt_pk_bf16_f32 v%d, v%d, v%d" % (PA + qq * 20 + k, PA + qq * 20 + 2 * k, PA + qq * 20 + 2 * k + 1))
        xfer("store", qq)
    BA = 32
    p("v_add_u32 v%d, %d, v%d" % (vWf, 10 * 5120, vL16))
    p("s_waitcnt vmcnt(9)\ns_barrier")
    bfr = lambda k: (k % 15) * 4
    brd = lambda k: "ds_read_b128 %s, v%d offset:%d" % (rr("a", bfr(k), 4), vWf if k >= 50 else vL16, (k % 50) * 1024)
    for k in range(10):
        p(brd(k))
    for k in range(100):
        ks, n = divmod(k, 5)
        a = rr("v", BA + 4 * n, 4)
        if n == 0:
            p.add([I("need", xrd=[("a", bfr(k + 4) + e) for e in range(4)])])
        p("%s %s, %s, %s, %s" % (MF16, a, rr("a", bfr(k), 4), rr("a", aOB + 4 * ks, 4), a if ks else "0"))
        if k + 10 < 100:
            p(brd(k + 10))
        if k == 40:
            p("s_waitcnt vmcnt(0)\ns_barrier")
            p.add(publish(7))
    st_()
    srd(p, sOut, ptr(D_OUT), nrec=2048 * 2560)
    p("v_and_b32 v%d, 15, v%d" % (t0, vLane))
    p("v_mul_u32_u24 v%d, 2560, v%d" % (vWf, t0))
    p("v_lshrrev_b32 v%d, 4, v%d" % (t0, vLane))
    p("v_lshl_add_u32 v%d, v%d, 3, v%d" % (vWf, t0, vWf))
    p("s_andn2_b32 s%d, s2, 6" % sT)
    p("v_and_b32 v%d, 3, v%d" % (t0, vLane))
    p("v_lshl_add_u32 v%d, v%d, 1, s%d" % (vPoll, t0, sT))
    p("v_lshlrev_b32 v%d, 7, v%d" % (vPoll, vPoll))
    p.add(poll_load(7))
    p("s_lshl_b32 s%d, s%d, 2" % (sT, sTT))
    p("s_add_u32 s%d, s%d, s%d" % (sT, sT, sWave))
    p("s_mul_i32 s%d, s%d, %d" % (sT, sT, 16 * 2560))
    p("s_lshr_b32 s%d, s%d, 2" % (sT2, sIdx))
    p("s_mul_i32 s%d, s%d, 160" % (sT2, sT2))
    p("s_add_u32 s%d, s%d, s%d" % (sOff, sT, sT2))
    for n in range(5):
        b = BA + 4 * n
        p("v_cvt_pk_bf16_f32 v%d, v%d, v%d" % (b, b, b + 1))
        p("v_cvt_pk_bf16_f32 v%d, v%d, v%d" % (b + 1, b + 2, b + 3))
        p("buffer_store_dwordx2 %s, v%d, s[%d:%d], s%d offen offset:%d" % (rr("v", b, 2), vWf, sOut, sOut + 3, sOff, 1280 + n * 32))
    p.add(poll_check(7))
    for qq in range(1, 4):
        p("s_xor_b32 s%d, s%d, %d" % (sT, sKq, qq))
        p("s_lshl_b32 s%d, s%d, 2" % (sT2, sKq))
        p("s_add_u32 s%d, s%d, s%d" % (sT, sT, sT2))
        p("s_mul_i32 s%d, s%d, %d" % (sT, sT, XS))
        xfer("load", qq)
    p("s_lshl_b32 s%d, s%d, 3" % (sT, sMb))
    p("s_lshr_b32 s%d, s%d, 1" % (sT2, sWave))
    p("s_lshl_b32 s%d, s%d, 2" % (sT2, sT2))
    p("s_add_u32 s%d, s%d, s%d" % (sT, sT, sT2))
    p("s_add_u32 s%d, s%d, s%d" % (sT, sT, sKq))
    p("s_mul_i32 s%d, s%d, %d" % (sT, sT, 16 * 2560))
    p("s_lshl_b32 s%d, s%d, 1" % (sT2, sCc))
    p("s_and_b32 s%d, s%d, 1" % (sOff, sWave))
    p("s_add_u32 s%d, s%d, s%d" % (sT2, sT2, sOff))
    p("s_mul_i32 s%d, s%d, 160" % (sT2, sT2))
    p("s_add_u32 s%d, s%d, s%d" % (sOff, sT, sT2))
    for qq in range(1, 4):
        for k in range(10):
            r = PA + qq * 20 + k
            p("v_lshlrev_b32 v%d, 16, v%d" % (t0, r))
            p("v_and_b32 v%d, 0xffff0000, v%d" % (r, r))
            p("v_add_f32 v%d, v%d, v%d" % (PA + 2 * k, PA + 2 * k, t0))
            p("v_add_f32 v%d, v%d, v%d" % (PA + 2 * k + 1, PA + 2 * k + 1, r))
    for n in range(5):
        b = pacc(0, n)
        p("v_cvt_pk_bf16_f32 v%d, v%d, v%d" % (b, b, b + 1))
        p("v_cvt_pk_bf16_f32 v%d, v%d, v%d" % (b + 1, b + 2, b + 3))
        p("buffer_store_dwordx2 %s, v%d, s[%d:%d], s%d offen offset:%d" % (rr("v", b, 2), vWf, sOut, sOut + 3, sOff, n * 32))
    st_()
    st_.dump(vtmp=t0)
    p("M_exit:\ns_endpgm")
    p.add(tail)
    for par in range(2):
        p("M_slow%d:" % par)
        p("s_nop 15")
        for j in range(4):
            d, f, d2 = vU + 2, vU + 3, vU + 4
            p.add(rowmax(par, j, d, f))
            p("v_max_f32 v%d, 0, v%d" % (d, d))
            p("v_exp_f32 v%d, -v%d" % (f, d))
            if j >= 2:
                p("v_mul_f32 v%d, s%d, v%d" % (d2, sKeep, d))
            else:
                d2 = d
            for k in range(8):
                p("v_sub_f32 v%d, v%d, v%d" % (S(par, j) + k, S(par, j) + k, d))
                for b in (S(par ^ 1, j), CI(j)):
                    p("v_sub_f32 v%d, v%d, v%d" % (b + k, b + k, d2))
            p("v_sub_f32 v%d, v%d, v%d" % (vM + j, vM + j, d2))
            p("v_mul_f32 v%d, v%d, v%d" % (vL + j, vL + j, f))
            for k in range(0, 32, 8):
                for e in range(8):
                    p("v_accvgpr_read_b32 v%d, a%d" % (TMP + e, O(j, 0) + k + e))
                for e in range(8):
                    p("v_mul_f32 v%d, v%d, v%d" % (TMP + e, TMP + e, f))
                for e in range(8):
                    p("v_accvgpr_write_b32 a%d, v%d" % (O(j, 0) + k + e, TMP + e))
        p.add(sm_stream(par, 2) + sum_mf(par))
        p.add([x for x in sm_stream(par ^ 1, 0) if x.startswith("v_exp")][:NE])
        p("s_nop 3")
        p(ret)
    p("M_codeend:")
    if os.environ.get("NOST"):
        p.ins = [I("buffer_load_dword v%d, off, s[%d:%d], 0" % (vA + 3, sD, sD + 3)) if (i.mn == "buffer_store_dwordx4" and ("s[16:19]" in i.text or "s[24:27]" in i.text) and i.ops[0][0] == "v") else i for i in p.ins]
    p.finish()
    return p
```

```python
from asmlib import *
from layout import *
from k_p1 import srd, x_rd_addr, w_rd_addr, MF
import os, struct

def f2u(x):
    return struct.unpack("<I", struct.pack("<f", x))[0]

NEG = 0xF149F2CA
THRESH = int(os.environ.get("THRESH", "0x5F800000"), 0)
BIAS = float(os.environ.get("BIAS", "40"))
QSCALE = f2u((128 ** -0.5) * 1.4426950408889634)
LOG2E = f2u(1.4426950408889634)
WT = os.environ.get("WT", "sc1")
PREFETCH = int(os.environ.get("PREFETCH", "3"))
NTW = os.environ.get("NTW", "nt")
WE = int(os.environ.get("WE", "10"))
CODEPF = int(os.environ.get("CODEPF", "1"))
WBL2 = int(os.environ.get("WBL2", "0"))
VERB = int(os.environ.get("VERB", "0"))
U = 16384
M16 = "v_mfma_f32_16x16x32_bf16"
u32 = lambda x: x & 0xffffffff

def L(f, *a, **k):
    q = Prog()
    f(q, *a, **k)
    return q.ins

def build_main():
    p = Prog()
    sX, sW, sW2, sO, sD, sBO = 4, 8, 12, 16, 20, 24
    sBF, sPhi, sY, sC, sKV = sW2, sO, sX, sW, sBO
    sH, sI, sWave, sW4, sT, sT2, sOff, sXcd, sIdx, sTB, sCB, sHi, sLo = range(28, 41)
    sM, sS, sKo, sRet, sTT, sL2, sSpin, sBo = 41, 44, 47, 48, 50, 51, 52, 53
    sRd, sGv, sG, sIt, sNb, sTriA, sTriB, sThr, sCnt, sCb = range(37, 47)
    sMask, sNext, sKeep, sW2k, sNlo, sCont = 54, 92, 93, 94, 95, 82
    sDa, sDb, sDc = 86, 87, 88
    P = 56
    ptr = lambda off: P + off // 4
    vLane = 1
    vX, vW, vXr, vWr = 2, 6, 10, 14
    vL16, t0, t1, t2, vDum, vStamp, vA = 22, 23, 24, 25, 26, 27, 28
    vGo = vA + 1
    vDma, vLim, vNeg, vKV, vB, vL, vOne, vM, vPoll, vU = 2, 3, 4, 5, 6, 8, 12, 16, 20, 232
    vMp = vA + 2
    RA, RB, RC, RD = 32, 96, 160, 224
    TMP, AW = 224, 240
    S = lambda par, j: 32 + par * 32 + j * 8
    CI = lambda j: 96 + j * 8
    PP = lambda par, j: 128 + par * 16 + j * 4
    Q = lambda j, ds: 160 + j * 16 + ds * 4
    O = lambda j, d: j * 32 + d * 4
    FB = lambda j: 128 + j * 4
    aXF, aVF, aRAW, aPA, aPK = 128, 144, 96, 192, 192
    tail = []
    ret = "s_setpc_b64 s[%d:%d]" % (sRet, sRet + 1)
    call = lambda lab: "s_call_b64 s[%d:%d], %s" % (sRet, sRet + 1, lab)

    def x_voffs(pitch, wsh=5):
        return ["v_lshrrev_b32 v%d, 3, v%d" % (t0, vLane),
                "s_lshl_b32 s%d, s%d, %d" % (sT, sWave, wsh),
                "v_add_u32 v%d, s%d, v%d" % (t0, sT, t0),
                "v_mul_u32_u24 v%d, %d, v%d" % (t0, pitch, t0),
                "v_lshrrev_b32 v%d, 4, v%d" % (t1, vLane),
                "v_and_b32 v%d, 7, v%d" % (t2, vLane),
                "v_xor_b32 v%d, v%d, v%d" % (t2, t2, t1),
                "v_lshl_add_u32 v%d, v%d, 4, v%d" % (vX, t2, t0),
                "v_xor_b32 v%d, 4, v%d" % (t2, t2),
                "v_lshl_add_u32 v%d, v%d, 4, v%d" % (vX + 1, t2, t0),
                "v_add_u32 v%d, %d, v%d" % (vX + 1, 8 * pitch - 1024, vX + 1),
                "v_add_u32 v%d, %d, v%d" % (vX + 2, 2 * (8 * pitch - 1024), vX),
                "v_add_u32 v%d, %d, v%d" % (vX + 3, 2 * (8 * pitch - 1024), vX + 1)]
    def w_voffs(pitch, m16):
        r = ["v_lshrrev_b32 v%d, 4, v%d" % (t0, vLane),
             "v_lshlrev_b32 v%d, 2, v%d" % (t1, t0),
             "s_lshl_b32 s%d, s%d, 4" % (sT, sWave),
             "v_add_u32 v%d, s%d, v%d" % (t0, sT, t0),
             "v_mul_u32_u24 v%d, %d, v%d" % (t0, pitch, t0),
             "v_and_b32 v%d, 15, v%d" % (t2, vLane),
             "v_xor_b32 v%d, v%d, v%d" % (t2, t2, t1),
             "v_lshl_add_u32 v%d, v%d, 4, v%d" % (vW, t2, t0)] + \
            ["v_add_u32 v%d, %d, v%d" % (vW + k, k * (4 * pitch - 1024), vW) for k in range(1, 4)]
        if m16:
            r += ["v_xor_b32 v%d, 32, v%d" % (vW + k, vW + k) for k in (2, 3)]
        return r
    def x_rd16(dst):
        return ["v_and_b32 v%d, 15, v%d" % (t0, vLane), "v_bfe_u32 v%d, v%d, 1, 3" % (t1, vLane), "v_lshrrev_b32 v%d, 4, v%d" % (dst, vLane),
                "v_xor_b32 v%d, v%d, v%d" % (dst, dst, t1), "v_lshlrev_b32 v%d, 4, v%d" % (dst, dst), "v_lshl_add_u32 v%d, v%d, 7, v%d" % (dst, t0, dst)]
    def w_rd16(dst):
        return ["v_bfe_u32 v%d, v%d, 2, 2" % (t0, vLane), "v_lshrrev_b32 v%d, 4, v%d" % (t1, vLane),
                "v_lshlrev_b32 v%d, 11, v%d" % (dst, t1), "v_lshl_add_u32 v%d, v%d, 8, v%d" % (dst, t0, dst), "v_lshl_add_u32 v%d, v%d, 6, v%d" % (dst, t0, dst),
                "v_and_b32 v%d, 1, v%d" % (t1, t1), "v_lshl_add_u32 v%d, v%d, 5, v%d" % (dst, t1, dst),
                "v_and_b32 v%d, 3, v%d" % (t0, vLane), "v_lshl_add_u32 v%d, v%d, 3, v%d" % (dst, t0, dst)]
    def dma(i, srdn, fl=""):
        v = vX if srdn == sX else vW
        return [["s_mov_b32 m0, s%d" % (sM + i)]] + \
               ["buffer_load_dwordx4 v%d, s[%d:%d], s%d offen offset:%d %s lds" % (v + q, srdn, srdn + 3, sS + i, q * 1024, fl) for q in range(4)]
    def put_dma(G, i, srdn, lo, hi, fl=""):
        d = dma(i, srdn, fl)
        G.put(lo, d[0])
        G.spread(d[1:], lo + 1, hi)
    def w_srd(q, d, which, col_s, total):
        q("s_lshl_b32 s%d, s%d, 8" % (sT, col_s))
        srd(q, d, ptr(which), off_s=sT)
        q("s_sub_u32 s%d, %d, s%d" % (d + 2, total, sT))
    def sw_XB(q):
        q("s_mul_i32 s%d, s%d, %d" % (sT, sTB, 128 * 1280))
        srd(q, sX, ptr(B_X), off_s=sT)
        q("s_cmp_lt_u32 s2, 240\ns_cselect_b32 s%d, %d, 0" % (sX + 2, 128 * 1280))
        q.add(x_voffs(1280))
    def sw_WB(q):
        w_srd(q, sW, B_WQKV, sCB, 640 * 3840)
        q("s_cmp_lt_u32 s2, 240\ns_cselect_b32 s%d, s%d, 0" % (sW + 2, sW + 2))
        q("s_mov_b64 s[%d:%d], s[%d:%d]\ns_mov_b32 s%d, s%d" % (sW2, sW2 + 1, sW, sW + 1, sW2 + 2, sW + 2))
        q.add(w_voffs(3840, 0))
    def sw_XQ(q):
        srd(q, sX, ptr(A_X), nrec=2048 * 1280)
    def sw_WQ(q):
        w_srd(q, sW, A_WQ, sH, 640 * 8192)
        q.add(w_voffs(8192, 1))

    class Plan:
        def __init__(s):
            s.vm, s.unit, s.free, s.when, s.now = [], {}, [], {}, 0
            s.pend = {"X": [], "W": []}
            s.job = {"X": "KV", "W": "KV"}
            for st in range(8):
                for g in range(2):
                    s.pend["X"].append((("KX", st, g), "KV", st, str(g * 256 * 1024 + st * 128), ((2 * st) % 5) * 2 + g))
                    s.pend["W"].append((("KW", st, g), "KV", st, str(st * 64 * 8192), ((2 * st + 1) % 5) * 2 + g))
            for b in range(10):
                s.pend["X"].append((("BX", b), "B", 8 + b, str(b * 128), None))
                s.pend["W"].append((("BW", b), "B", 8 + b, str(b * 64 * 3840), None))
            for st in range(10):
                s.pend["X"].append((("QX", st, 0), "Q", 18 + st, (sHi, st * 128), None))
                s.pend["X"].append((("QX", st, 1), "Q", 18 + st, (sLo, st * 128), None))
                s.pend["W"].append((("QW", st), "Q", 18 + st, str(st * 64 * 8192), None))
            s.free = list(range(10))
        def copy(s):
            import copy
            return copy.deepcopy(s)
        def take(s, ty, i):
            oth = "W" if ty == "X" else "X"
            pre = []
            c = s.pend[ty][0] if s.pend[ty] else None
            if c is not None:
                if c[4] is not None:
                    ok = c[4] in s.free
                else:
                    resv = {g[4] for t in "XW" for g in s.pend[t] if g[4] is not None}
                    av = [x for x in s.free if x not in resv]
                    ok = len(av) - 1 >= sum(1 for g in s.pend[oth] if g[2] < c[2] and g[4] is None)
                if not ok:
                    c = None
            if c is None:
                return ["s_mov_b32 s%d, 0x30000" % (sM + i), "s_brev_b32 s%d, 1" % (sS + i)], None
            s.pend[ty].pop(0)
            un = c[4] if c[4] is not None else av[0]
            s.free.remove(un)
            s.unit[c[0]] = un
            s.when[c[0]] = s.now
            if c[1] != s.job[ty]:
                s.job[ty] = c[1]
                pre += L({"XB": sw_XB, "WB": sw_WB, "XQ": sw_XQ, "WQ": sw_WQ}[ty + c[1]])
            pre.append("s_add_u32 s%d, s%d, 0x%x" % (sM + i, sW4, un * U))
            if isinstance(c[3], tuple):
                pre.append("s_add_u32 s%d, s%d, %d" % (sS + i, c[3][0], c[3][1]))
            else:
                pre.append("s_mov_b32 s%d, %s" % (sS + i, c[3]))
            return pre, c[0]
        def issue(s, tag, n=4):
            s.vm += [tag] * n
        def hook(s, ins, tag="h"):
            for t in ins:
                i = t if isinstance(t, I) else I(t)
                if i.cnt == "vm":
                    s.vm.append(tag)
        def barrier(s, need, free, dt):
            last = max(max(k for k, t in enumerate(s.vm) if t == n) for n in need) if need else -1
            N = len(s.vm) - 1 - last
            if VERB:
                print("barrier need", need, "N", N, "flight", [s.now - s.when[n] for n in need if n in s.when])
            for f in free:
                s.free.append(s.unit[f])
            s.now += dt
            s.done = last
            return ["s_waitcnt %slgkmcnt(0)" % ("vmcnt(%d) " % min(N, 63) if need else ""), "s_barrier"]
        def complete(s, tag):
            return max(k for k, t in enumerate(s.vm) if t == tag) <= s.done
    pl = Plan()

    def pf_lin(which, total, k):
        share = total // 32
        return ["s_mul_i32 s%d, s%d, %d" % (sT, sIdx, share), "s_lshl_b32 s%d, s%d, 13" % (sT2, sWave), "s_add_u32 s%d, s%d, s%d" % (sT, sT, sT2),
                "s_add_u32 s%d, s%d, %d" % (sT, sT, k * 32768),
                "v_lshl_add_u32 v%d, v%d, 7, s%d" % (t0, vLane, sT), "v_min_u32 v%d, %d, v%d" % (t0, total - 128, t0),
                "global_load_dword v%d, v%d, s[%d:%d]" % (vDum, t0, ptr(which), ptr(which) + 1)]
    def pf_w(which, rows):
        share = rows // 32
        return ["s_mul_i32 s%d, s%d, %d" % (sT, sIdx, share), "s_lshl_b32 s%d, s%d, 3" % (sT2, sWave), "s_add_u32 s%d, s%d, s%d" % (sT, sT, sT2),
                "v_lshrrev_b32 v%d, 3, v%d" % (t0, vLane), "v_add_u32 v%d, s%d, v%d" % (t0, sT, t0), "v_min_u32 v%d, %d, v%d" % (t0, rows - 1, t0),
                "v_lshlrev_b32 v%d, 13, v%d" % (t0, t0), "v_and_b32 v%d, 7, v%d" % (t1, vLane), "v_lshl_add_u32 v%d, v%d, 7, v%d" % (t0, t1, t0),
                "s_lshl_b32 s%d, s%d, 10" % (sT, sXcd), "v_add_u32 v%d, s%d, v%d" % (t0, sT, t0),
                "global_load_dword v%d, v%d, s[%d:%d]" % (vDum, t0, ptr(which), ptr(which) + 1)]
    def pf_bx():
        return ["s_mul_i32 s%d, s%d, %d" % (sT, sXcd, 256 * 1280), "s_mul_i32 s%d, s%d, 10240" % (sT2, sIdx), "s_add_u32 s%d, s%d, s%d" % (sT, sT, sT2),
                "v_lshlrev_b32 v%d, 7, v0" % t0, "v_min_u32 v%d, %d, v%d" % (t0, 10240 - 128, t0), "v_add_u32 v%d, s%d, v%d" % (t0, sT, t0),
                "global_load_dword v%d, v%d, s[%d:%d]" % (vDum, t0, ptr(B_X), ptr(B_X) + 1)]

    def extra(ty, keep):
        if len(pl.free) <= keep:
            return []
        pre, tag = pl.take(ty, 2)
        if tag is None:
            return []
        pl.issue(tag)
        d = dma(2, sX if ty == "X" else sW)
        return pre + d[0] + d[1:]
    def skel(last_mf, bar, mf, custom, target, NP=2):
        if last_mf:
            p(last_mf)
        p.add(bar)
        n = len(custom)
        for k in range(NP):
            p.add([mf[k]] + custom[k * n // NP:(k + 1) * n // NP])
        p(call(target))
    def body(name, G, mf, entries=None, NP=2):
        out = ["%s:" % name]
        for k in range(NP, G.n - 1):
            if entries and k in entries:
                out.append("%s:" % entries[k])
            out += [mf[k]] + G.gap(k)
        assert not any(G.gap(k) for k in list(range(NP)) + [G.n - 1])
        tail.extend(out + [ret])
    v2 = lambda r: rr("v", r, 2)
    bsel = lambda b, pos, n: "op_sel:[%s] op_sel_hi:[%s]" % (",".join(str(b & 1) if k == pos else "0" for k in range(n)), ",".join(str(b & 1) if k == pos else "1" for k in range(n)))
    pk_mulb = lambda d, a, b: "v_pk_mul_f32 %s, %s, %s %s" % (v2(d), v2(a), v2(b & ~1), bsel(b, 1, 2))
    pk_subb = lambda d, a, b: "v_pk_add_f32 %s, %s, %s %s neg_lo:[0,1] neg_hi:[0,1]" % (v2(d), v2(a), v2(b & ~1), bsel(b, 1, 2))
    pk_fmab = lambda d, a, b, c: "v_pk_fma_f32 %s, %s, %s, %s %s" % (v2(d), v2(a), v2(b & ~1), v2(c), bsel(b, 1, 3))
    pk_add = lambda d, a, b: "v_pk_add_f32 %s, %s, %s" % (v2(d), v2(a), v2(b))
    def pack_tile(src, dst):
        return ["v_cvt_pk_bf16_f32 v%d, v%d, v%d" % (dst + k, src + 2 * k, src + 2 * k + 1) for k in range(8)]
    FULL = int(os.environ.get("FULL", "1"))
    def publish(val):
        lab = p.newlabel("M_pub")
        return ["s_cmp_lg_u32 s%d, 0" % sWave, "s_cbranch_scc1 %s" % lab,
                "s_lshl_b32 s%d, s2, 7" % sT, "v_mov_b32 v%d, %d" % (t0, val), "v_lshlrev_b32 v%d, 2, v%d" % (t1, vLane),
                "s_mov_b32 exec_hi, 0" if FULL else "s_mov_b64 exec, 1",
                "buffer_store_dword v%d, v%d, s[%d:%d], s%d offen sc1" % (t0, t1, sD, sD + 3, sT),
                "s_mov_b64 exec, -1", "%s:" % lab]
    def poll_load(kind):
        if kind == "go":
            return ["v_mov_b32 v%d, 0" % t0, "global_load_dword v%d, v%d, s[%d:%d] sc1" % (vGo, t0, ptr(D_DBG), ptr(D_DBG) + 1)]
        if kind == 2:
            r = ["v_min_u32 v%d, 29, v%d" % (t0, vLane), "v_lshlrev_b32 v%d, 10, v%d" % (t0, t0), "s_lshl_b32 s%d, s%d, 7" % (sT, sXcd)]
        elif kind in (1, "KV"):
            r = ["v_and_b32 v%d, 7, v%d" % (t0, vLane), "v_lshlrev_b32 v%d, 10, v%d" % (t0, t0), "s_andn2_b32 s%d, s2, 0x38" % sT, "s_lshl_b32 s%d, s%d, 7" % (sT, sT)]
        elif kind in ("A", "B", 7, 3):
            return ["buffer_load_dword v%d, v%d, s[%d:%d], 0 offen sc1" % (vDum, vPoll, sD, sD + 3)]
        else:
            r = ["v_and_b32 v%d, 7, v%d" % (t0, vLane), "v_lshlrev_b32 v%d, 7, v%d" % (t0, t0), "s_lshl_b32 s%d, s%d, 10" % (sT, sIdx)]
        return r + ["buffer_load_dword v%d, v%d, s[%d:%d], s%d offen sc1" % (vKV if kind == "KV" else vDum, t0, sD, sD + 3, sT)]
    def poll_check(kind, lvl=None):
        lab = p.newlabel("M_poll")
        chk = ["v_cmp_gt_u32 vcc, %s, v%d" % (("1", vGo) if kind == "go" else (("v%d" % (vPoll + 1), vDum) if kind in ("A", "B") else (str(lvl or kind), vDum)))]
        if kind == "KV":
            chk = ["v_cmp_gt_u32 vcc, %d, v%d" % (lvl, vKV)]
        tail.extend(["%s:" % lab, "s_mov_b32 s%d, 0x40000" % sSpin, "%s_l:" % lab, "s_sleep 1"] + poll_load(kind) + ["s_waitcnt vmcnt(0)"] + chk +
                    ["s_cbranch_vccz %s_r" % lab, "s_sub_u32 s%d, s%d, 1" % (sSpin, sSpin), "s_cbranch_scc0 %s_l" % lab, "s_branch %s_r" % lab])
        if kind in ("KV", 3):
            c = I(chk[0])
            c.rd = set()
            chk = ["s_waitcnt vmcnt(8)", c]
        return chk + ["s_cbranch_vccnz %s" % lab, "%s_r:" % lab]
    def pf(which, total, first, nlines):
        return ["s_lshl_b32 s%d, s2, 2" % sT, "s_add_u32 s%d, s%d, s%d" % (sT, sT, sWave), "s_mul_i32 s%d, s%d, %d" % (sT, sT, nlines),
                "s_add_u32 s%d, s%d, %d" % (sT, sT, first), "v_min_u32 v%d, %d, v%d" % (t0, nlines - 1, vLane), "v_add_u32 v%d, s%d, v%d" % (t0, sT, t0),
                "v_min_u32 v%d, %d, v%d" % (t0, total // 128 - 1, t0), "v_lshlrev_b32 v%d, 7, v%d" % (t0, t0),
                "global_load_dword v%d, v%d, s[%d:%d]" % (vDum, t0, ptr(which), ptr(which) + 1)]

    sPC0 = 96
    def code_touch(dst, mode):
        if not (CODEPF & mode):
            return []
        return ["s_lshl_b32 s%d, s%d, 2" % (sT, sIdx), "s_add_u32 s%d, s%d, s%d" % (sT, sT, sWave), "s_lshl_b32 s%d, s%d, 9" % (sT, sT),
                "v_and_b32 v%d, 3, v%d" % (t0, vLane), "v_lshl_add_u32 v%d, v%d, 7, s%d" % (t0, t0, sT), "v_min_u32 v%d, M_codeend-M_pc0-4, v%d" % (t0, t0),
                "global_load_dword v%d, v%d, s[%d:%d]" % (dst, t0, sPC0, sPC0 + 1)]
    p("s_cmp_ge_u32 s2, 256\ns_cbranch_scc1 M_exit")
    p("s_getpc_b64 s[%d:%d]\nM_pc0:" % (sPC0, sPC0 + 1))
    p("s_load_dwordx16 s[%d:%d], s[0:1], 0" % (P, P + 15))
    p("s_load_dwordx8 s[%d:%d], s[0:1], 64" % (P + 16, P + 23))
    p("s_load_dwordx2 s[%d:%d], s[0:1], 96" % (P + 24, P + 25))
    st_ = Stamper(p, vStamp, kid=0)
    p("v_and_b32 v%d, 63, v0" % vLane)
    p("v_lshrrev_b32 v%d, 6, v0" % t0)
    p("v_readfirstlane_b32 s%d, v%d" % (sWave, t0))
    p("s_and_b32 s%d, s2, 7" % sXcd)
    p("s_lshr_b32 s%d, s2, 3" % sIdx)
    p("s_lshl_b32 s%d, s%d, 12" % (sW4, sWave))
    p("s_lshl_b32 s%d, s%d, 2" % (sH, sXcd))
    p("s_lshr_b32 s%d, s%d, 3" % (sT, sIdx))
    p("s_add_u32 s%d, s%d, s%d" % (sH, sH, sT))
    p("s_and_b32 s%d, s%d, 7" % (sI, sIdx))
    p.add(code_touch(vDum, 1))
    pl.hook(code_touch(vDum, 1))
    p.add(x_voffs(1024, 9))
    p.add(w_voffs(8192, 1))
    p("s_waitcnt lgkmcnt(0)")
    st_()
    srd(p, sD, ptr(D_WS), off_imm=WS_FL, nrec=32768)
    p("s_cmp_lg_u32 s2, 255\ns_cbranch_scc1 M_nolead")
    p("v_lshlrev_b32 v%d, 7, v0\nv_mov_b32 v%d, 0" % (t0, t1))
    p("buffer_store_dword v%d, v%d, s[%d:%d], 0 offen sc1" % (t1, t0, sD, sD + 3))
    p("M_nolead:")
    p("s_lshl_b32 s%d, s%d, 15" % (sT, sI))
    srd(p, sX, ptr(A_CKV), off_s=sT)
    p("s_sub_u32 s%d, 0x200000, s%d" % (sX + 2, sT))
    w_srd(p, sW, A_WUK, sH, 512 * 8192)
    w_srd(p, sW2, A_WUV, sH, 512 * 8192)
    for ty in "XWXW":
        for g in range(2):
            pre, tag = pl.take(ty, 0)
            p.add(pre + dma(0, sX if ty == "X" else (sW, sW2)[g], "" if ty == "X" else NTW))
            pl.issue(tag)
    p.add(x_rd16(vXr))
    p("s_lshr_b32 s%d, s%d, 1" % (sT, sWave))
    p("s_lshl_b32 s%d, s%d, 14" % (sT, sT))
    p("v_add_u32 v%d, s%d, v%d" % (vXr, sT, vXr))
    p("v_xor_b32 v%d, 64, v%d" % (vXr + 1, vXr))
    p("s_lshl_b32 s%d, s%d, 3" % (sKo, sT))
    p.add(w_rd16(vWr))
    p("s_and_b32 s%d, s%d, 1" % (sT, sWave))
    p("s_lshl_b32 s%d, s%d, 7" % (sT, sT))
    p("s_add_u32 s%d, s%d, 0x%x" % (sT, sT, 2 * U))
    p("v_xor_b32 v%d, s%d, v%d" % (vWr, sT, vWr))
    for c in range(1, 4):
        p("v_xor_b32 v%d, %d, v%d" % (vWr + c, c * 32, vWr))
    p("v_lshlrev_b32 v%d, 4, v%d" % (vL16, vLane))
    def phi_ld(q):
        q("s_mul_i32 s%d, s%d, 800" % (sT, sIdx))
        srd(q, sPhi, ptr(B_WPHI), off_s=sT, nrec=800)
        q("v_subrev_u32 v%d, 480, v%d" % (t0, vL16))
        q("buffer_load_dwordx4 %s, v%d, s[%d:%d], 0 offen" % (rr("a", aRAW, 4), t0, sPhi, sPhi + 3))
        q("buffer_load_dwordx4 %s, v%d, s[%d:%d], 0 offen offset:544" % (rr("a", aRAW + 4, 4), vL16, sPhi, sPhi + 3))
    p("s_lshl_b32 s%d, s%d, 1" % (sTB, sXcd))
    p("s_cmp_ge_u32 s%d, 15" % sIdx)
    p("s_cselect_b32 s%d, 15, 0" % sT)
    p("s_addc_u32 s%d, s%d, 0" % (sTB, sTB))
    p("s_sub_u32 s%d, s%d, s%d" % (sCB, sIdx, sT))
    p("s_mul_i32 s%d, s%d, %d" % (sLo, sI, 128 * 1280))
    p("s_sub_u32 s%d, %d, s%d" % (sHi, 15 * 128 * 1280, sLo))

    fx = lambda st, i: 128 + st * 64 + i * 4
    fw = lambda st, i: 128 + st * 64 + 32 + i * 4
    def kvreg(mat, n):
        if mat == 0:
            return ("v", RB + 16 * n if n < 4 else RA + 16 * (n - 4))
        return ("v", RC + 16 * n) if n < 4 else (("v", RD + 16 * (n - 4)) if n < 6 else ("a", 16 * (n - 6)))
    def kv_reads(st):
        X = ["ds_read_b128 %s, v%d offset:%d" % (rr("a", fx(st, i), 4), vXr + st, i * 2048) for i in range(8)]
        W = ["ds_read_b64_tr_b16 %s, v%d offset:%d" % (rr("a", fw(st, i) + 2 * u, 2), vWr + (i & 3), (i >> 2) * U + st * 8192 + u * 1024) for i in range(8) for u in range(2)]
        return X[:2] + W[:8] + X[2:] + W[8:]
    def kv_mf(st, zero=False):
        r = []
        for mat in range(2):
            for n in range(8):
                f, b0 = kvreg(mat, n)
                for e in range(4):
                    a = rr(f, b0 + 4 * e, 4)
                    tt, cc = (e & 1, e >> 1) if mat else (e >> 1, e & 1)
                    X, W = rr("a", fx(st, 2 * (n >> 1) + tt), 4), rr("a", fw(st, mat * 4 + 2 * (n & 1) + cc), 4)
                    A, B = (X, W) if mat else (W, X)
                    r.append("%s %s, %s, %s, %s" % (M16, a, A, B, "0" if zero else a))
        return r
    WL = "s_waitcnt lgkmcnt(0)"
    mfA, mfB = kv_mf(1), kv_mf(0)
    NK = 6
    G = Gaps16(64)
    G.spread(kv_reads(0), NK, 55)
    put_dma(G, 0, sW, NK, 21, NTW); put_dma(G, 1, sW2, 22, 35, NTW)
    body("M_kvA", G, mfA, NP=NK)
    G = Gaps16(64)
    G.spread(kv_reads(1), NK, 55)
    put_dma(G, 0, sX, NK, 32); put_dma(G, 1, sX, 33, 57)
    sadd = lambda regs, sd: ["v_add_u32 v%d, s%d, v%d" % (r, sd, r) for r in regs]
    kv_upd = sadd([vXr, vXr + 1], sDa) + sadd([vWr + c for c in range(4)], sDb)
    G.spread(kv_upd, 58, 62)
    kv_del = lambda s: ["s_mov_b32 s%d, 0x%x" % (sDa, u32((((2 * s) % 5) - ((2 * s - 2) % 5)) * 2 * U)), "s_mov_b32 s%d, 0x%x" % (sDb, u32((((2 * s + 1) % 5) - ((2 * s - 1) % 5)) * 2 * U))]
    body("M_kvB", G, mfB, NP=NK)
    KVs = lambda s: [("KX", s, 0), ("KX", s, 1), ("KW", s, 0), ("KW", s, 1)]
    st_()
    p.add(pl.barrier(KVs(0), [], 1024))
    st_()
    p.add(kv_reads(0))
    p("s_cmp_lg_u32 s2, 255\ns_cbranch_scc1 M_nolead2\ns_cmp_lg_u32 s%d, 0\ns_cbranch_scc1 M_nolead2" % sWave)
    p("v_mov_b32 v%d, 0\nv_mov_b32 v%d, 1\ns_mov_b64 exec, 1" % (t0, t1))
    p("global_store_dword v%d, v%d, s[%d:%d] sc1" % (t0, t1, ptr(D_DBG), ptr(D_DBG) + 1))
    p("s_mov_b64 exec, -1\nM_nolead2:")
    p(WL)
    G = Gaps16(64)
    G.spread(kv_reads(1), 0, 47)
    for i in range(2):
        pre, tag = pl.take("X", i)
        G.put(0, pre)
        pl.issue(tag)
        put_dma(G, i, sX, 1 + 13 * i, 13 + 13 * i)
    G.put(50, kv_del(1))
    G.spread(kv_upd, 60, 62)
    z = kv_mf(0, zero=True)
    p.add(G.emit(z, 0, 63))
    last = z[63]
    PN = int(os.environ.get("PN", "2"))
    arrs = [(B_WQKV, 640 * 3840, 0), (B_X, 2048 * 1280, 0), (A_X, 2048 * 1280, 0), (A_WQ, 640 * 8192, 0), (A_WQ, 640 * 8192, 20480)]
    if PREFETCH == 2:
        arrs += [(A_WO, 4096 * 1280, 0), (A_WO, 4096 * 1280, 20480)]
    hooks = [[] for _ in range(8)]
    hooksA = [[] for _ in range(9)]
    if PREFETCH:
        for k, (w_, tot, first) in enumerate(arrs):
            if PN == 1:
                hooks[k + 1] = pf(w_, tot, first, 20)
            else:
                hooks[k + 1] = pf(w_, tot, first, 10)
                hooksA[k + 2] = pf(w_, tot, first + 10240, 10)
    if PREFETCH == 5:
        hooks = [[] for _ in range(8)]
        hooksA = [[] for _ in range(9)]
        seq = [(B_WQKV, 640 * 3840, 0, 10), (B_X, 2048 * 1280, 0, 10), (B_WQKV, 640 * 3840, 10240, 10), (B_X, 2048 * 1280, 10240, 10), (A_X, 2048 * 1280, 0, 10),
               (A_WQ, 640 * 8192, 0, 10), (A_WQ, 640 * 8192, 10240, 10), (A_X, 2048 * 1280, 10240, 10), (A_WQ, 640 * 8192, 20480, 10), (A_WQ, 640 * 8192, 30720, 10),
               (A_WO, 4096 * 1280, 0, 14), (A_WO, 4096 * 1280, 14336, 13), (A_WO, 4096 * 1280, 27648, 13)]
        for k, x in enumerate(seq):
            (hooks if k & 1 else hooksA)[k // 2 + 1] = pf(*x)
    hooks[7 if PREFETCH != 2 else 6] += L(phi_ld)
    hooks[6] = hooks[6] + poll_load("go")
    def upd(regs, d):
        return ["v_add_u32 v%d, 0x%x, v%d" % (r, u32(d), r) for r in regs]
    for s in range(1, 8):
        bar = pl.barrier(KVs(s), KVs(s - 1), 2048)
        cu = list(hooksA[s])
        pl.hook(cu)
        tags = []
        for i in range(2):
            pre, tag = pl.take("W", i)
            cu += pre
            tags.append(tag)
        for t in tags:
            pl.issue(t)
        if os.environ.get("FINEK"): st_()
        skel(last, bar, mfA, cu, "M_kvA", NK)
        if os.environ.get("FINEK"): st_()
        cu = list(hooks[s])
        pl.hook(cu)
        tags = []
        for i in range(2):
            pre, tag = pl.take("X", i)
            cu += pre
            tags.append(tag)
        for t in tags:
            pl.issue(t)
        skel(mfA[63], [WL], mfB, cu + kv_del(s + 1), "M_kvB", NK)
        last = mfB[63]
    st_()

    bfx = lambda st, k, i: 128 + st * 32 + k * 16 + i * 4
    bfw = lambda st, k, i: 128 + st * 32 + k * 16 + 8 + i * 4
    def b_reads(st):
        r = []
        for k in range(2):
            ks = st * 2 + k
            for i in range(2):
                r.append("ds_read_b128 %s, v%d offset:%d" % (rr("a", bfx(st, k, i), 4), vXr + ks, i * 4096))
                for u in range(2):
                    r.append("ds_read_b64_tr_b16 %s, v%d offset:%d" % (rr("a", bfw(st, k, i) + 2 * u, 2), vWr + i, ks * 4096 + u * 1024))
        return r
    def b_mf(var, st, zero=False):
        mf = []
        for k in range(2):
            for b in range(2):
                for c in range(2):
                    a = rr("v", RA + (b * 2 + c) * 16, 16)
                    X, W = rr("a", bfx(st, k, b), 4), rr("a", bfw(st, k, c), 4)
                    A, B = (X, W) if var else (W, X)
                    mf.append("%s %s, %s, %s, %s" % (MF, a, A, B, "0" if (zero and k == 0) else a))
        return mf
    def kv_pack(mat, n):
        f, b0 = kvreg(mat, n)
        dst = (RC if mat else RB) + 8 * n
        if f == "v":
            return pack_tile(b0, dst)
        return ["v_accvgpr_read_b32 v%d, a%d" % (RD + k, b0 + k) for k in range(16)] + pack_tile(RD, dst)
    def kv_store(mat, n):
        f, reg = ("v", (RC if mat else RB) + 8 * n) if n < 4 else ("a", aPK + (mat * 4 + n - 4) * 8)
        if mat == 0 and n in (2, 3):
            f, reg = "a", 104 + 8 * (n - 2)
        st = lambda m, so, imm: "buffer_store_dwordx4 %s, v%d, s[%d:%d], s%d offen offset:%d %s" % (rr(f, reg + 4 * m, 4), vL16, sO, sO + 3, so, imm, WT)
        if mat:
            return ["s_and_b32 s%d, s%d, 0x1000" % (sOff, sW4), "s_add_u32 s%d, s%d, s%d" % (sOff, sOff, sKo), "s_add_u32 s%d, s%d, 0x%x" % (sOff, sOff, (n >> 1) * 16 * U + 8192),
                    st(0, sOff, (n & 1) * 2048), st(1, sOff, (n & 1) * 2048 + 1024)]
        return ["s_lshr_b32 s%d, s%d, 1" % (sOff, sW4), "s_and_b32 s%d, s%d, 0x800" % (sOff, sOff), "s_add_u32 s%d, s%d, s%d" % (sOff, sOff, sKo), "s_add_u32 s%d, s%d, 0x%x" % (sOff, sOff, (n >> 1) * 16 * U),
                st(0, sOff, (n & 1) * 1024), "s_addk_i32 s%d, 0x1000" % sOff, st(1, sOff, (n & 1) * 1024)]
    def b_store(t):
        return ["s_add_u32 s%d, s%d, 0x%x" % (sOff, sBo, (t >> 1) * 120 * 1024)] + \
               ["buffer_store_dwordx4 %s, v%d, s[%d:%d], s%d offen offset:%d %s" % (rr("v", RD + 8 * t + 4 * m, 4), vL16, sBO, sBO + 3, sOff, (t & 1) * 2048 + m * 1024, WT) for m in range(2)]
    Bs = lambda b: [("BX", b), ("BW", b)]
    Qs = lambda s: [("QX", s, 0), ("QX", s, 1), ("QW", s)]
    p(last)
    p.add(pl.barrier(Bs(0), KVs(7), 1280))
    def baddr(q):
        x_rd_addr(q, vXr, vLane, t0, t1)
        q("s_lshr_b32 s%d, s%d, 1" % (sT, sWave))
        q("s_lshl_b32 s%d, s%d, 13" % (sT, sT))
        q("s_add_u32 s%d, s%d, 0x%x" % (sT, sT, pl.unit[("BX", 0)] * U))
        for ks in range(4):
            q("v_add_u32 v%d, s%d, v%d" % (vXr + ks, sT, vXr + ks))
        q("s_and_b32 s%d, s%d, 1" % (sT, sWave))
        q("s_lshl_b32 s%d, s%d, 1" % (sT, sT))
        q("v_mov_b32 v%d, s%d" % (t2, sT))
        w_rd_addr(q, vWr, vLane, t0, t1, t2)
        q("v_add_u32 v%d, 0x%x, v%d" % (vWr, pl.unit[("BW", 0)] * U, vWr))
        q("v_xor_b32 v%d, 64, v%d" % (vWr + 1, vWr))
        q("s_lshl_b32 s%d, s%d, 20" % (sT, sH))
        q("s_lshl_b32 s%d, s%d, 14" % (sT2, sI))
        q("s_add_u32 s%d, s%d, s%d" % (sT, sT, sT2))
        srd(q, sO, ptr(D_WS), off_s=sT, off_imm=WS_KV)
        q("s_sub_u32 s%d, 0x100000, s%d" % (sO + 2, sT2))
    G = Gaps16(64)
    ba = L(baddr)
    for k in range(16):
        G.put(k, ba[k * len(ba) // 16:(k + 1) * len(ba) // 16], post=True)
    for i, ty in enumerate("WWX"):
        pre, tag = pl.take(ty, i)
        assert len(pre) == 2
        G.put(0, pre)
        pl.issue(tag)
        put_dma(G, i, sW if ty == "W" else sX, 1 + 20 * i, 20 + 20 * i)
    G.spread(b_reads(0), 20, 56)
    G.stream([x for n in range(8) for x in kv_pack(0, n)], 16, 49)
    G.stream([x for n in range(3) for x in kv_pack(1, n)], 50, 63)
    p.add(G.emit(kv_mf(1)))
    p(WL)
    p("s_cmp_ge_u32 s%d, 10\ns_cbranch_scc1 M_bv" % sCB)
    pl0 = pl
    qfx = lambda st, i: st * 48 + i * 4
    qfw = lambda st, i: st * 48 + 16 + i * 4
    qacc = lambda j, d: RA + j * 32 + d * 4
    def q_reads(st):
        X = ["ds_read_b128 %s, v%d offset:%d" % (rr("a", qfx(st, j), 4), vXr + 2 * (j >> 1) + st, (j & 1) * 2048) for j in (2, 3, 0, 1)]
        W = ["ds_read_b64_tr_b16 %s, v%d offset:%d" % (rr("a", qfw(st, i) + 2 * u, 2), vWr + i, st * 8192 + u * 1024) for i in range(8) for u in range(2)]
        return X[:2] + W + X[2:]
    def q_derive():
        return ["v_xor_b32 v%d, 64, v%d" % (vXr + 1, vXr), "v_xor_b32 v%d, 64, v%d" % (vXr + 3, vXr + 2)] + \
               ["v_xor_b32 v%d, %d, v%d" % (vWr + c, c * 32, vWr) for c in range(1, 8)]
    for var in range(2):
        pl = pl0.copy()
        if var:
            p("M_bv:")
        mfb = b_mf(var, 1) + b_mf(var, 0)
        G = Gaps(16)
        G.spread(b_reads(0), 2, 6); G.put(7, WL); G.spread(b_reads(1), 8, 13)
        put_dma(G, 0, sW, 2, 8); put_dma(G, 1, sX, 9, 14)
        body("M_b%d" % var, G, mfb)
        G = Gaps(8)
        pre, tag = pl.take("X", 1)
        assert len(pre) == 2
        G.put(0, pre)
        pl.issue(tag)
        put_dma(G, 1, sX, 1, 6)
        G.spread(b_reads(1), 0, 5)
        G.stream([x for n in range(3, 8) for x in kv_pack(1, n)], 0, 6)
        z = b_mf(var, 0, zero=True)
        p.add(G.emit(z, 0, 7))
        last = z[7]
        park = ["v_accvgpr_write_b32 a%d, v%d" % (aPK + k, RB + 32 + k) for k in range(32)] + ["v_accvgpr_write_b32 a%d, v%d" % (aPK + 32 + k, RC + 32 + k) for k in range(32)]
        park += ["v_accvgpr_write_b32 a%d, v%d" % (104 + k, RB + 16 + k) for k in range(16)]
        stores = [kv_store(0, 0), park[:14], kv_store(0, 1), park[14:28], kv_store(1, 0), park[28:42], kv_store(1, 1) + park[42:50], park[50:65], park[65:]]
        for b in range(1, 10):
            bar = pl.barrier(Bs(b), Bs(b - 1), 512)
            cu = upd([vXr, vXr + 1, vXr + 2, vXr + 3], (pl.unit[("BX", b)] - pl.unit[("BX", b - 1)]) * U) + \
                 upd([vWr, vWr + 1], (pl.unit[("BW", b)] - pl.unit[("BW", b - 1)]) * U)
            cu += extra("X" if (b != 2) else "W", 2)
            tags = []
            for i, ty in enumerate("WX"):
                pre, tag = pl.take(ty, i)
                cu += pre
                tags.append(tag)
            cu += stores[b - 1]
            pl.hook(stores[b - 1], "kv")
            for t in tags:
                pl.issue(t)
            skel(last, bar, mfb, cu, "M_b%d" % var)
            if STAMPS and os.environ.get("FINE"):
                if var and b == 1:
                    st_.n -= 9
                st_()
            last = mfb[15]
        p(last)
        p.add(pl.barrier(Qs(0), Bs(9), 1024))
        G = Gaps(8)
        qa = x_rd16(vXr) + ["s_add_u32 s%d, s%d, 0x%x" % (sT, sW4, pl.unit[("QX", 0, 1)] * U), "v_add_u32 v%d, s%d, v%d" % (vXr + 2, sT, vXr),
                            "s_add_u32 s%d, s%d, 0x%x" % (sT, sW4, pl.unit[("QX", 0, 0)] * U), "v_add_u32 v%d, s%d, v%d" % (vXr, sT, vXr)] + \
             w_rd16(vWr) + upd([vWr], pl.unit[("QW", 0)] * U) + q_derive()
        for k in range(4):
            G.put(k, qa[k * len(qa) // 4:(k + 1) * len(qa) // 4], post=True)
        pre, tag = pl.take("X", 0)
        assert len(pre) == 2
        G.put(0, pre)
        pl.issue(tag)
        put_dma(G, 0, sX, 0, 7)
        G.spread(q_reads(0), 4, 7)
        p.add(G.emit(b_mf(var, 1)))
        if var == 0:
            p("s_branch M_bdone")
    p("M_bdone:")
    st_()

    qorder = [(j, d) for jj in (2, 0) for d in range(8) for j in (jj, jj + 1)]
    def q_mf(st, zero=False):
        return ["%s %s, %s, %s, %s" % (M16, rr("v", qacc(j, d), 4), rr("a", qfw(st, d), 4), rr("a", qfx(st, j), 4), "0" if zero else rr("v", qacc(j, d), 4)) for j, d in qorder]
    mfq = q_mf(1) + q_mf(0)
    NQ = 5
    G = Gaps16(64)
    G.spread(q_reads(0), NQ, int(os.environ.get('QE', '26')))
    G.put(31, WL)
    G.spread(q_reads(1), 32, 54)
    put_dma(G, 0, sX, NQ, 21); put_dma(G, 1, sX, 22, 38); put_dma(G, 2, sW, 39, 56)
    q_upd = sadd([vXr], sDa) + sadd([vXr + 2], sDb) + sadd([vWr], sDc) + q_derive()
    G.spread(q_upd, 57, 62)
    def q_del(s):
        if s > 9:
            return []
        return ["s_mov_b32 s%d, 0x%x" % (sd, u32((pl.unit[k(s)] - pl.unit[k(s - 1)]) * U))
                for sd, k in ((sDa, lambda x: ("QX", x, 0)), (sDb, lambda x: ("QX", x, 1)), (sDc, lambda x: ("QW", x)))]
    body("M_q", G, mfq, NP=NQ)
    p("s_mul_i32 s%d, s%d, %d" % (sT, sTB, 4 * 120 * 1024))
    p("s_lshl_b32 s%d, s%d, 13" % (sT2, sCB))
    p("s_add_u32 s%d, s%d, s%d" % (sT, sT, sT2))
    srd(p, sBO, ptr(D_WS), off_s=sT, off_imm=WS_BF)
    p("s_cmp_lt_u32 s2, 240\ns_cselect_b32 s%d, %d, 0" % (sBO + 2, 4 * 120 * 1024))
    p("s_lshr_b32 s%d, s%d, 1" % (sBo, sWave))
    p("s_mul_i32 s%d, s%d, %d" % (sBo, sBo, 2 * 120 * 1024))
    p("s_and_b32 s%d, s%d, 0x1000" % (sT, sW4))
    p("s_add_u32 s%d, s%d, s%d" % (sBo, sBo, sT))
    G = Gaps16(32)
    for i, ty in ((1, "X"), (2, "W")):
        pre, tag = pl.take(ty, i)
        p.add(pre)
        pl.issue(tag)
        put_dma(G, i, sX if ty == "X" else sW, 15 * (i - 1), 15 * (i - 1) + 14)
    p(WL)
    G.spread(q_reads(1), 0, 22)
    G.put(16, q_del(1))
    G.spread(q_upd, 25, 30)
    G.stream([x for t in range(4) for x in pack_tile(RA + 16 * t, RD + 8 * t)], 0, 14)
    z = q_mf(0, zero=True)
    p.add(G.emit(z, 0, 31))
    last = z[31]
    def bm_frag_loads(q, fbase, aXF):
        q("s_lshl_b32 s%d, s%d, 3" % (sTT, sXcd))
        q("s_lshl_b32 s%d, s%d, 1" % (sT, sWave))
        q("s_add_u32 s%d, s%d, s%d" % (sTT, sTT, sT))
        q("s_mul_i32 s%d, s%d, %d" % (sT, sTT, 120 * 1024))
        srd(q, sBF, ptr(D_WS), off_s=sT, off_imm=WS_BF, nrec=2 * 120 * 1024)
        q("s_mul_i32 s%d, s%d, 5" % (sT, sIdx))
        q("s_lshr_b32 s%d, s%d, 2" % (sT, sT))
        q("s_add_u32 s%d, s%d, %d" % (sT, sT, fbase))
        q("s_lshl_b32 s%d, s%d, 10" % (sT, sT))
        for tt in range(2):
            for u in range(2):
                q("buffer_load_dwordx4 %s, v%d, s[%d:%d], s%d offen offset:%d %s" % (rr("a", aXF + (tt * 2 + u) * 4, 4), vL16, sBF, sBF + 3, sT, u * 1024, WT))
            if tt == 0:
                q("s_add_u32 s%d, s%d, %d" % (sT, sT, 120 * 1024))
    vV, vWa, vRd = vA + 2, vA + 3, vA
    def bm1_loads(q):
        bm_frag_loads(q, 40, aXF)
        q("s_mul_i32 s%d, s%d, 20" % (sT, sIdx))
        q("v_and_b32 v%d, 31, v%d" % (t2, vLane))
        q("v_add_u32 v%d, s%d, v%d" % (t1, sT, t2))
        q("v_lshrrev_b32 v%d, 5, v%d" % (vV, t1))
        q("v_lshlrev_b32 v%d, 11, v%d" % (vV, vV))
        q("v_and_b32 v%d, 31, v%d" % (t1, t1))
        q("v_lshl_add_u32 v%d, v%d, 4, v%d" % (vV, t1, vV))
        q("v_and_b32 v%d, 32, v%d" % (t1, vLane))
        q("v_lshl_add_u32 v%d, v%d, 4, v%d" % (vV, t1, vV))
        q("v_bfrev_b32 v%d, 1" % t1)
        q("v_cmp_gt_u32 vcc, 20, v%d" % t2)
        q("v_cndmask_b32 v%d, v%d, v%d, vcc" % (vV, t1, vV))
        for tt in range(2):
            q("s_mov_b32 s%d, %d" % (sT, (tt * 120 + 80) * 1024))
            for mm in range(2):
                q("buffer_load_dwordx4 %s, v%d, s[%d:%d], s%d offen offset:%d %s" % (rr("a", aVF + (tt * 2 + mm) * 4, 4), vV, sBF, sBF + 3, sT, mm * 1024, WT))
    qst = {k + 1: [("b", b_store(k))] for k in range(4)}
    qst.update({7: [("k2", kv_store(0, 2))], 8: [("k2", kv_store(0, 3)), ("k2", kv_store(1, 2))], 9: [("k2", kv_store(1, 3))]})
    pubB = pubKV = None
    for s in range(1, 10):
        bar = pl.barrier(Qs(s), Qs(s - 1), 1024)
        cu = q_del(s + 1)
        cu += extra("X", 3)
        tags = []
        for i, ty in enumerate("XXW"):
            pre, tag = pl.take(ty, i)
            cu += pre
            tags.append(tag)
        if s == 1:
            cu.append(poll_check("go"))
        if pubKV is None and pl.complete("kv"):
            pubKV = s
            cu.append(publish(1))
        if pubB is None and s > 4 and pl.complete("b"):
            pubB = s
            cu.append(publish(2))
        if PREFETCH == 4 and s in (5, 6, 7, 8):
            ins = [x.replace("global_load_dword v%d" % vDum, "global_load_dword v%d" % vA) for x in pf(A_WO, 4096 * 1280, (s - 5) * 10240, 10)]
            cu += ins
            pl.hook(ins)
        if s == 5:
            ins = poll_load(1)
            cu += ins
            pl.hook(ins, "poll")
        if s == 7:
            assert pl.complete("poll")
            cu.append(poll_check(1))
        if s == 8:
            ins = poll_load(2)
            cu += ins
            pl.hook(ins, "poll")
        for tag, ins in qst.get(s, []):
            cu += ins
            pl.hook(ins, tag)
        for t in tags:
            pl.issue(t)
        skel(last, bar, mfq, cu, "M_q", NQ)
        last = mfq[63]
        if STAMPS and os.environ.get("FINE"):
            st_()
    if VERB:
        print("pubB", pubB, "pubKV", pubKV)
    assert pubB and pubKV and not pl.pend["X"] and not pl.pend["W"]
    C1, C2, PH, VF, KC, AF, RR = 48, 64, 80, 96, 112, TMP, 32
    def phi(xf):
        for tile, C in ((0, C1), (1, C2)):
            for u in range(2):
                p("%s %s, %s, %s, %s" % (MF, rr("v", C, 16), rr("v", AW + (tile * 2 + u) * 4, 4), rr("a", xf + u * 4, 4), rr("v", C, 16) if u else "0"))
        p(call("M_phi"))
    aXQ = 232
    q = Prog()
    q("M_phi:")
    x = [C1 + k for k in range(16)] + [C2 + k for k in range(4)]
    m = t1
    q("v_max3_f32 v%d, v%d, v%d, v%d" % (m, x[0], x[1], x[2]))
    for k in range(3, 19, 2):
        q("v_max3_f32 v%d, v%d, v%d, v%d" % (m, m, x[k], x[k + 1]))
    q("v_max_f32 v%d, v%d, v%d" % (m, m, x[19]))
    q("v_mul_f32 v%d, s%d, v%d" % (m, sL2, m))
    for k in range(0, 20, 2):
        q("v_pk_fma_f32 %s, %s, s[%d:%d], %s op_sel:[0,1,0] op_sel_hi:[1,1,0] neg_lo:[0,0,1] neg_hi:[0,0,1]" % (v2(x[k]), v2(x[k]), sL2 - 1, sL2, v2(m)))
    for k in range(20):
        q("v_exp_f32 v%d, v%d" % (x[k], x[k]))
    y = C2 + 4
    q(pk_add(y, x[0], x[2]))
    for k in range(4, 20, 2):
        q(pk_add(y, y, x[k]))
    q("v_add_f32 v%d, v%d, v%d" % (m, y, y + 1))
    q("v_rcp_f32 v%d, v%d" % (m, m))
    for k in range(0, 20, 2):
        q(pk_mulb(x[k], x[k], m))
    for k in range(10):
        q("v_cvt_pk_bf16_f32 v%d, v%d, v%d" % (PH + k, x[2 * k], x[2 * k + 1]))
    q(ret)
    tail += q.ins

    vWo = vA + 1
    def wo_src(which, un):
        p("s_lshr_b32 s%d, s%d, 1" % (sT, un))
        p("s_and_b32 s%d, s%d, 1" % (sT2, un))
        p("s_mul_i32 s%d, s%d, 640" % (sT2, sT2))
        isB = which == B_WO
        if isB:
            p("s_mul_i32 s%d, s%d, 0x3334" % (sOff, sT))
            p("s_lshr_b32 s%d, s%d, 16" % (sOff, sOff))
            p("s_mul_i32 s%d, s%d, 5" % (sSpin, sOff))
            p("s_sub_u32 s%d, s%d, s%d" % (sSpin, sT, sSpin))
            p("s_mul_i32 s%d, s%d, 160" % (sOff, sOff))
            p("s_mul_i32 s%d, s%d, 40" % (sT, sSpin))
            p("s_cmp_eq_u32 s%d, 4" % sSpin)
            p("s_cselect_b32 s%d, 16, s%d" % (sT, sT))
            p("s_cselect_b64 vcc, -1, 0")
            p("s_add_u32 s%d, s%d, s%d" % (sT, sT, sOff))
            p("s_mul_i32 s%d, s%d, 1280" % (sT, sT))
        else:
            p("s_mul_i32 s%d, s%d, 40960" % (sT, sT))
        p("s_add_u32 s%d, s%d, s%d" % (sT, sT, sT2))
        srd(p, sY, ptr(which), off_s=sT)
        p("s_sub_u32 s%d, %d, s%d" % (sY + 2, (640 if isB else 4096) * 1280, sT))
        p("s_mul_i32 s%d, s%d, 320" % (sT, sWave))
        p("s_mul_i32 s%d, s%d, 5120" % (sT2, sWave))
        p("s_add_u32 m0, s%d, 0x20000" % sT2)
        for k in range(5):
            p("v_add_u32 v%d, s%d, v%d" % (t0, sT, vLane))
            p("v_mul_u32_u24 v%d, 0x667, v%d" % (t1, t0))
            p("v_lshrrev_b32 v%d, 16, v%d" % (t1, t1))
            if isB:
                a, b = vWo, t2
                p("v_mul_u32_u24 v%d, 640, v%d" % (a, t1))
                p("v_lshlrev_b32 v%d, 4, v%d" % (t0, t0))
                p("v_sub_u32 v%d, v%d, v%d" % (t0, t0, a))
                p("v_lshrrev_b32 v%d, 4, v%d" % (a, t1))
                p("v_mul_u32_u24 v%d, 20, v%d" % (a, a))
                p("v_bfe_u32 v%d, v%d, 2, 1" % (b, t1))
                p("v_lshl_add_u32 v%d, v%d, 3, v%d" % (a, b, a))
                p("v_bfe_u32 v%d, v%d, 3, 1" % (b, t1))
                p("v_lshl_add_u32 v%d, v%d, 2, v%d" % (a, b, a))
                p("v_lshrrev_b32 v%d, 2, v%d" % (b, t1))
                p("v_mul_u32_u24 v%d, 20, v%d" % (b, b))
                p("v_cndmask_b32 v%d, v%d, v%d, vcc" % (a, a, b))
                p("v_and_b32 v%d, 3, v%d" % (t1, t1))
                p("v_add_u32 v%d, v%d, v%d" % (a, a, t1))
                p("v_mul_u32_u24 v%d, 1280, v%d" % (a, a))
                p("v_add_u32 v%d, v%d, v%d" % (t0, t0, a))
            else:
                p("v_mul_u32_u24 v%d, 640, v%d" % (t1, t1))
                p("v_lshl_add_u32 v%d, v%d, 4, v%d" % (t0, t0, t1))
            p("buffer_load_dwordx4 v%d, s[%d:%d], 0 offen lds" % (t0, sY, sY + 3))
            if k < 4:
                p("s_add_u32 s%d, s%d, 64\ns_add_u32 m0, m0, 0x400" % (sT, sT))
    def wo_reads(isB, regs):
        p("v_lshrrev_b32 v%d, 4, v%d" % (t0, vLane))
        p("v_lshlrev_b32 v%d, %d, v%d" % (vWo, 3 if isB else 2, t0))
        p("v_bfe_u32 v%d, v%d, 2, 2" % (t0, vLane))
        p("v_add_u32 v%d, v%d, v%d" % (vWo, vWo, t0))
        p("v_mul_u32_u24 v%d, 640, v%d" % (vWo, vWo))
        p("v_and_b32 v%d, 3, v%d" % (t0, vLane))
        p("v_lshl_add_u32 v%d, v%d, 3, v%d" % (vWo, t0, vWo))
        p("s_mul_i32 s%d, s%d, 160" % (sT, sWave))
        p("s_add_u32 s%d, s%d, 0x20000" % (sT, sT))
        p("v_add_u32 v%d, s%d, v%d" % (vWo, sT, vWo))
        for n in range(5):
            for u in range(2):
                p("ds_read_b64_tr_b16 %s, v%d offset:%d" % (rr("v", regs[n] + 2 * u, 2), vWo, n * 32 + u * (4 if isB else 16) * 640))
    def wo_stores(isB, un, regs, sY):
        p("s_and_b32 s%d, s%d, 1" % (sT, un))
        p("s_lshl_b32 s%d, s%d, 2" % (sT, sT))
        p("s_add_u32 s%d, s%d, s%d" % (sT, sT, sWave))
        p("s_lshr_b32 s%d, s%d, 1" % (sT2, un))
        if isB:
            p("s_mul_i32 s%d, s%d, 20" % (sT, sT))
            p("s_add_u32 s%d, s%d, s%d" % (sT, sT, sT2))
        else:
            p("s_lshr_b32 s%d, s%d, 1" % (sT, sT))
            p("s_lshl_b32 s%d, s%d, 7" % (sT, sT))
            p("s_add_u32 s%d, s%d, s%d" % (sT, sT, sT2))
            p("s_lshl_b32 s%d, s%d, 1" % (sT, sT))
            p("s_and_b32 s%d, s%d, 1" % (sT2, sWave))
            p("s_add_u32 s%d, s%d, s%d" % (sT, sT, sT2))
        p("s_mul_i32 s%d, s%d, 5120" % (sT, sT))
        srd(p, sY, ptr(D_WS), off_s=sT, off_imm=WS_WOB if isB else WS_WOA, nrec=5120)
        p("s_movk_i32 s%d, 0x1000" % sT)
        for n in range(5):
            p("buffer_store_dwordx4 %s, v%d, s[%d:%d], %s offen offset:%d %s" % (rr("v", regs[n], 4), vL16, sY, sY + 3, "s%d" % sT if n == 4 else "0", (n & 3) * 1024, WT))
    p(last)
    p(WL + "\ns_barrier")
    sQs = sTB
    def kvsetup(q):
        q("s_mov_b32 s%d, 0x%x\ns_mov_b32 s%d, s%d" % (sDa, QSCALE, sDa + 1, sDa))
        q("s_mov_b32 s%d, 0x%x" % (sL2, LOG2E))
        q("s_lshl_b32 s%d, s%d, 20" % (sT, sH))
        srd(q, sKV, ptr(D_WS), off_s=sT, off_imm=WS_KV)
        q("s_lshl_b32 s%d, s%d, 16" % (sT, sI))
        q("s_sub_u32 s%d, 0x100000, s%d" % (sKV + 2, sT))
        q("s_lshl_b32 s%d, s%d, 11" % (sW2k, sWave))
        q("v_add_u32 v%d, s%d, v%d" % (vDma, sW2k, vL16))
    kvld = lambda so, k: "buffer_load_dwordx4 v%d, s[%d:%d], s%d offen offset:%d %s lds" % (vDma, sKV, sKV + 3, so, k * 1024, WT)
    def kv0(t, half):
        o = t * U + half * 8192
        return [["s_add_u32 m0, s%d, 0x%x" % (sW2k, o), "s_mov_b32 s%d, 0x%x" % (sOff, o), kvld(sOff, 0)], kvld(sOff, 1)]
    sSc = sCB
    def aw_prep(q):
        q("s_lshr_b32 s%d, s%d, 1" % (sSc, sWave))
        q("s_lshl_b32 s%d, s%d, 13" % (sSc, sSc))
        q("s_add_u32 s%d, s%d, s%d" % (sSc, sSc, sW4))
        q("s_add_u32 s%d, s%d, %d" % (sSc, sSc, 4 * U + 8192))
        q("v_add_u32 v%d, s%d, v%d" % (t0, sSc, vL16))
        q("ds_write_b128 v%d, %s" % (t0, rr("a", aRAW, 4)))
        q("ds_write_b128 v%d, %s offset:1024" % (t0, rr("a", aRAW + 4, 4)))
        q("s_and_b32 s%d, s%d, 3" % (sT, sIdx))
        q("s_mul_i32 s%d, s%d, 160" % (sT, sT))
        q("s_sub_u32 s%d, s%d, s%d" % (sT, sSc, sT))
        q("s_addk_i32 s%d, 480" % sT)
        q("v_lshrrev_b32 v%d, 5, v%d" % (t0, vLane))
        q("v_bfe_u32 v%d, v%d, 2, 2" % (t1, vLane))
        q("v_lshl_add_u32 v%d, v%d, 2, v%d" % (t0, t0, t1))
        q("v_mul_u32_u24 v%d, 40, v%d" % (t0, t0))
        q("v_add_u32 v%d, s%d, v%d" % (t0, sT, t0))
        q("v_bfe_u32 v%d, v%d, 4, 1" % (t1, vLane))
        q("v_lshl_add_u32 v%d, v%d, 4, v%d" % (t2, t1, t0))
        q("v_bfe_u32 v%d, v%d, 1, 1" % (t1, vLane))
        q("v_lshl_add_u32 v%d, v%d, 3, v%d" % (t2, t1, t2))
        for tile in range(2):
            for u in range(4):
                q("ds_read_b64_tr_b16 %s, v%d offset:%d" % (rr("v", AW + tile * 8 + 2 * u, 2), t0 if tile else t2, u * 320 + tile * 32))
        q("v_bfe_u32 v%d, v%d, 2, 1" % (vWa, vLane))
        q("v_mul_u32_u24 v%d, 0x8000, v%d" % (vWa, vWa))
        q("v_lshl_or_b32 v%d, v%d, 16, v%d" % (vWa, vWa, vWa))
    fl = L(kvsetup) + kv0(0, 0) + kv0(1, 0) + [poll_check(2)] + L(bm1_loads) + L(aw_prep)
    mfl = q_mf(1)
    for k in range(32):
        p(mfl[k])
        p.add(fl[k * len(fl) // 32:(k + 1) * len(fl) // 32])
    st_()
    pp, p = p, Prog()
    wo_src(A_WO, 2)
    wo_chunk, p = p.ins, pp
    va = []
    for j in (2, 3, 0, 1):
        if os.environ.get("PKMUL", "1") == "1":
            va += ["v_pk_mul_f32 %s, %s, s[%d:%d]" % (rr("v", qacc(j, 0) + k, 2), rr("v", qacc(j, 0) + k, 2), sDa, sDa + 1) for k in range(0, 32, 2)]
        else:
            va += ["v_mul_f32 v%d, s%d, v%d" % (qacc(j, 0) + k, sDa, qacc(j, 0) + k) for k in range(32)]
        va += pack_tile(qacc(j, 0), Q(j, 0)) + pack_tile(qacc(j, 4), Q(j, 2))
    va += ["v_xor_b32 v%d, v%d, v%d" % (AW + k, AW + k, vWa) for k in range(16)]
    vm = kv0(2, 0) + kv0(0, 1) + kv0(1, 1) + kv0(3, 0) + kv0(4, 0) + kv0(5, 0) + kv0(2, 1) + kv0(3, 1) + [wo_chunk]
    for k, x in enumerate(vm):
        p.add([x] + va[k * len(va) // len(vm):(k + 1) * len(va) // len(vm)])
    st_()
    phi(aXF)
    fb = (lambda: st_()) if os.environ.get("FINEB") else (lambda: None)
    fb()
    for k in range(4):
        p("v_mov_b32 v%d, 0" % (RR + k))
    zero_o = lambda k, z: "%s %s, %s, %s, 0" % (MF, rr("a", 16 * k, 16), rr("v", z, 4), rr("v", z, 4))
    p("v_and_b32 v%d, 31, v%d" % (t2, vLane))
    p("s_mov_b32 s%d, s%d" % (sT, sSc))
    p("v_mul_u32_u24 v%d, 48, v%d" % (vWa, vLane))
    p("v_add_u32 v%d, s%d, v%d" % (vWa, sT, vWa))
    p("v_lshrrev_b32 v%d, 5, v%d" % (t1, vLane))
    p(zero_o(0, RR))
    p("v_bfe_u32 v%d, v%d, 2, 2" % (vRd, vLane))
    p("v_lshl_add_u32 v%d, v%d, 2, v%d" % (vRd, t1, vRd))
    p("v_mul_u32_u24 v%d, 48, v%d" % (vRd, vRd))
    p("v_bfe_u32 v%d, v%d, 4, 1" % (t1, vLane))
    p("v_lshl_add_u32 v%d, v%d, 5, v%d" % (vRd, t1, vRd))
    p("v_and_b32 v%d, 3, v%d" % (t1, vLane))
    p("v_lshl_add_u32 v%d, v%d, 3, v%d" % (vRd, t1, vRd))
    p("v_add_u32 v%d, s%d, v%d" % (vRd, sT, vRd))
    p(zero_o(1, RR))
    p("v_mov_b32 v%d, 0x3f803f80" % t0)
    p("v_cmp_eq_u32 vcc, 20, v%d" % t2)
    for tt in range(2):
        fb()
        if tt:
            phi(aXF + 8)
            fb()
        p("ds_write_b128 v%d, %s" % (vWa, rr("v", PH, 4)))
        p("ds_write_b128 v%d, %s offset:16" % (vWa, rr("v", PH + 4, 4)))
        p("ds_write_b64 v%d, %s offset:32" % (vWa, rr("v", PH + 8, 2)))
        for nn in range(2):
            for mm in range(2):
                for u in range(2):
                    p("ds_read_b64_tr_b16 %s, v%d offset:%d" % (rr("v", AF + (nn * 2 + mm) * 4 + 2 * u, 2), vRd, (16 * mm + 8 * u) * 48 + nn * 1536))
        p(zero_o(2 + 3 * tt, RR))
        for k in range(8):
            p("v_accvgpr_read_b32 v%d, a%d" % (VF + k, aVF + tt * 8 + k))
        p(zero_o(3 + 3 * tt, RR))
        for k in range(8):
            p("v_cndmask_b32 v%d, v%d, v%d, vcc" % (VF + k, VF + k, t0))
        p(zero_o(4 + 3 * tt, RR))
        for mm in range(2):
            for nn in range(2):
                c = rr("v", KC + nn * 16, 16)
                p("%s %s, %s, %s, %s" % (MF, c, rr("v", AF + (nn * 2 + mm) * 4, 4), rr("v", VF + mm * 4, 4), "0" if (tt == 0 and mm == 0) else c))
    fb()
    R0 = 6 * U
    p("s_mul_i32 s%d, s%d, 6144" % (sT, sWave))
    p("s_add_u32 s%d, s%d, %d" % (sT, sT, R0))
    p("v_add_u32 v%d, s%d, v%d" % (t1, sT, vL16))
    p("v_lshrrev_b32 v%d, 5, v%d" % (t0, vLane))
    p("v_lshlrev_b32 v%d, 10, v%d" % (vV, t0))
    p("v_lshl_add_u32 v%d, v%d, 4, v%d" % (vV, t2, vV))
    p("v_and_b32 v%d, 15, v%d" % (vLim, vLane))
    p("v_lshrrev_b32 v%d, 4, v%d" % (t0, vLane))
    p("v_lshlrev_b32 v%d, 2, v%d" % (t0, t0))
    p("v_sub_u32 v%d, v%d, v%d" % (vLim, vLim, t0))
    p("v_mov_b32 v%d, 0x%x" % (vNeg, NEG))
    for j in range(4):
        p("v_mov_b32 v%d, 0" % (vL + j))
        p("v_mov_b32 v%d, 0x3f803f80" % (vOne + j))
    for nn in range(2):
        for jj in range(3):
            p("ds_write_b128 v%d, %s offset:%d" % (t1, rr("v", KC + nn * 16 + jj * 4, 4), (nn * 3 + jj) * 1024))
    p("s_lshl_b32 s%d, s%d, 3" % (sT, sIdx))
    p("s_add_u32 s%d, s%d, s%d" % (sT, sT, sXcd))
    p("s_lshl_b32 s%d, s%d, 13" % (sT, sT))
    srd(p, sY, ptr(D_WS), off_s=sT, off_imm=WS_KVP, nrec=5120)
    srd(p, sC, ptr(D_WS), off_imm=WS_CTX, nrec=16 * MB)
    p("s_lshl_b32 s%d, s%d, 10" % (sT, sWave))
    p("s_add_u32 s%d, s%d, %d" % (sT, sT, R0))
    p("v_add_u32 v%d, s%d, v%d" % (t1, sT, vL16))
    p("v_mov_b32 v%d, v%d" % (vB, vL16))
    p("v_add_u32 v%d, 0x4000, v%d" % (vB + 1, vL16))
    fb()
    p("s_waitcnt vmcnt(0) lgkmcnt(0)\ns_barrier")
    st_()
    for j in range(8):
        p("ds_read_b128 %s, v%d offset:%d" % (rr("a", FB(j), 4), vB, j * 1024))
    RS = 128
    woA = [S(1, 0) + 4 * n for n in range(5)]
    for k in range(2):
        for w in range(4):
            p("ds_read_b128 %s, v%d offset:%d" % (rr("v", RS + k * 16 + w * 4, 4), t1, w * 6144 + k * 4096))
    wo_reads(False, woA)
    pp, p = p, Prog()
    wo_stores(False, 2, woA, sBF)
    wo_st, p = p.ins, pp
    p("s_cmp_eq_u32 s%d, 3" % sWave)
    p("s_cselect_b32 s%d, 512, s%d" % (sSpin, sW2k))
    p("s_add_u32 s%d, s%d, 2560" % (sOff, sW2k))
    p("s_mov_b32 s%d, 0x%x" % (sThr, THRESH))
    p("s_lshl_b32 s%d, s%d, 2" % (sT, sI))
    p("s_add_u32 s%d, s%d, s%d" % (sTriB, sT, sWave))
    p("s_sub_u32 s%d, 60, s%d" % (sTriA, sT))
    p("s_add_u32 s%d, s%d, s%d" % (sTriA, sTriA, sWave))
    p("s_add_u32 s%d, s%d, 4" % (sNlo, sT))
    p("s_mov_b32 s%d, 0\ns_mov_b32 s%d, 3" % (sMask, sMask + 1))
    p("s_bitset1_b64 s[%d:%d], s%d" % (sMask, sMask + 1, sNlo))
    p("s_bitset1_b64 s[%d:%d], s%d" % (sMask, sMask + 1, sTriB))
    p("s_add_u32 s%d, s%d, 1" % (sT, sTriB))
    p("s_bitset1_b64 s[%d:%d], s%d" % (sMask, sMask + 1, sT))
    if os.environ.get("X_NOHOOK"):
        p("s_mov_b64 s[%d:%d], 0" % (sMask, sMask + 1))
    p("s_and_b32 s%d, s%d, 1" % (sNb, sWave))
    p("s_sub_u32 s%d, s%d, s%d" % (sNb, sNb, sNlo))
    p("s_add_u32 s%d, s%d, 2" % (sNb, sNb))
    for k in range(32):
        p("v_mov_b32 v%d, 0" % (CI(0) + k))
    p("s_mov_b32 s%d, 0\ns_mov_b32 s%d, 0\ns_mov_b32 s%d, 1.0" % (sIt, sNext, sKeep))
    p("s_mov_b32 s%d, 0x%x\ns_mov_b32 s%d, 0x%x" % (sG, 6 * U, sGv, 4 * U + 8192))

    def mask_code(sl, tri):
        c = CI(2 * sl)
        r = ["s_sub_i32 s%d, s%d, s%d" % (sT, sNext, tri), "s_lshl_b32 s%d, s%d, 5" % (sT, sT), "v_subrev_u32 v%d, s%d, v%d" % (t0, sT, vLim)]
        for off, regs in ((0, (c, c + 12)), (16, (c + 4,)), (-16, (c + 8,))):
            r += ["v_cmp_gt_i32 s[%d:%d], %d, v%d" % (84 + 2 * k, 85 + 2 * k, off + k, t0) for k in range(4)]
            r += ["v_cndmask_b32 v%d, v%d, v%d, s[%d:%d]" % (b + k, b + k, vNeg, 84 + 2 * k, 85 + 2 * k) for b in regs for k in range(4)]
        return r
    xch = ["s_xor_b32 s%d, s%d, 1" % (sT, sWave), "s_lshl_b32 s%d, s%d, 13" % (sT, sT), "s_add_u32 s%d, s%d, 0x20000" % (sT, sT), "v_add_u32 v%d, s%d, v%d" % (t0, sT, vL16)] + \
          ["ds_read_b128 %s, v%d offset:%d" % (rr("v", Q(2, 0) + 4 * k, 4), t0, k * 1024) for k in range(8)] + \
          ["v_mov_b32 v%d, v%d" % (CI(2) + k, vMp + (k >> 3)) for k in range(16)] + \
          ["v_mov_b32 v%d, v%d" % (vM + 2, vMp), "v_mov_b32 v%d, v%d" % (vM + 3, vMp + 1), "s_xor_b32 s%d, s%d, 1" % (sTriB, sTriA), "s_mov_b32 s%d, 0" % sKeep, WL]
    def evt_check(kind):
        lab = p.newlabel("M_ev")
        back = "%s_r" % lab
        code = ["%s:" % lab]
        if kind == "x":
            code += ["s_cmp_eq_u32 s%d, s%d" % (sIt, sNlo), "s_cbranch_scc1 %s_x" % lab] + mask_code(1, sTriB) + ["s_branch " + back, "%s_x:" % lab] + xch + \
                    ["s_cmp_lt_u32 s%d, 32" % sIt, "s_cbranch_scc1 " + back]
        code += mask_code(1, sTriB)
        if kind == "l1":
            code += ["s_cmp_lt_u32 s%d, 32" % sIt, "s_cbranch_scc1 " + back]
        if kind != "lo":
            code += mask_code(0, sTriA)
        tail.extend(code + ["s_branch " + back])
        return ["s_bitcmp1_b64 s[%d:%d], s%d" % (sMask, sMask + 1, sIt), "s_cbranch_scc1 %s" % lab, "%s:" % back]
    qk_mf = lambda par: ["%s %s, %s, %s, %s" % (M16, rr("v", S(par, j) + 4 * (f >> 2), 4), rr("a", FB(f), 4), rr("v", Q(j, f & 3), 4),
                                                 rr("v", (CI(j) if (f & 3) == 0 else S(par, j)) + 4 * (f >> 2), 4)) for f in range(8) for j in range(4)]
    pv_mf = lambda par: ["%s %s, %s, %s, %s" % (M16, rr("a", O(j, d), 4), rr("a", FB(8 + d), 4), rr("v", PP(par, j), 4), rr("a", O(j, d), 4)) for d in range(8) for j in range(4)]
    def allg(op, dst, tmp):
        return ["v_mov_b32 v%d, v%d" % (tmp, dst), "v_permlane32_swap_b32 v%d, v%d" % (dst, tmp), "%s v%d, v%d, v%d" % (op, dst, dst, tmp),
                "v_mov_b32 v%d, v%d" % (tmp, dst), "v_permlane16_swap_b32 v%d, v%d" % (dst, tmp), "%s v%d, v%d, v%d" % (op, dst, dst, tmp)]
    def rowmax(par, j, dst, tmp):
        s = S(par, j)
        return ["v_max3_f32 v%d, v%d, v%d, v%d" % (dst, s, s + 1, s + 2), "v_max3_f32 v%d, v%d, v%d, v%d" % (dst, dst, s + 3, s + 4),
                "v_max3_f32 v%d, v%d, v%d, v%d" % (dst, dst, s + 5, s + 6), "v_max_f32 v%d, v%d, v%d" % (dst, dst, s + 7)] + allg("v_max_f32", dst, tmp) + \
               ["v_add_f32 v%d, 0x%x, v%d" % (dst, f2u(BIAS), dst)]
    NG1 = int(os.environ.get("NG1", "9"))
    def sm_stream(par, part):
        allg_ = [(j, k) for k in range(4) for j in range(4)]
        groups = allg_[:NG1] if part == 0 else (allg_[NG1:] if part == 1 else allg_)
        out = []
        tm = lambda n: (TMP + (n % 4) * 2, TMP + (n % 4) * 2 + 1)
        cv = lambda n: "v_cvt_pk_bf16_f32 v%d, v%d, v%d" % ((PP(par, groups[n][0]) + groups[n][1],) + tm(n))
        for n, (j, k) in enumerate(groups):
            a, b = tm(n)
            out += ["v_exp_f32 v%d, v%d" % (a, S(par, j) + 2 * k)] + ([cv(n - 1)] if n else []) + ["v_exp_f32 v%d, v%d" % (b, S(par, j) + 2 * k + 1)]
        return out + [cv(len(groups) - 1)]
    NE = 4
    def sm_place(G, par, part, lo, hi, ne=0):
        st = sm_stream(par, part)
        ex = [x for x in st if x.startswith("v_exp")]
        cv = [x for x in st if x.startswith("v_cvt")]
        nc = 0
        for g in range(lo, hi + 1):
            ready = ne // 2
            left = 8 - G.load(g)
            rest = sum(max(0, 8 - G.load(x)) for x in range(g + 1, hi + 1))
            while True:
                todo = 8 * (len(ex) - ne) + 4 * (len(cv) - nc)
                force = todo > rest + max(left, 0) - 4 and left > -4 and g < hi or g == hi and todo
                if ne < len(ex) and (left >= 8 or (force and nc >= ready)) and ne // 2 - nc < 4 and not (ready - nc >= 3 and left >= 8 and ne % 2 == 0):
                    G.va[g].append(ex[ne]); ne += 1; left -= 8
                elif nc < (ready if g < hi else ne // 2) and (left >= 4 or force):
                    G.va[g].append(cv[nc]); nc += 1; left -= 4
                else:
                    break
        assert ne == len(ex) and nc == len(cv), (ne, nc)
    LT = lambda par, j: PP(par ^ 1, j)
    sum_mf = lambda par: ["%s %s, %s, %s, 0" % (M16, rr("v", LT(par, j), 4), rr("v", vOne, 4), rr("v", PP(par, j), 4)) for j in range(4)]
    need = lambda js: I("need", xrd=[("a", FB(j) + e) for j in js for e in range(4)])
    fread = lambda f, par: "ds_read_b128 %s, v%d offset:%d" % (rr("a", FB(f), 4), vB + par, f * 1024)
    ALL = (0, 1, 2, 3)
    def slow_site(par):
        lab = p.newlabel("M_sl")
        tail.extend(["%s:" % lab, call("M_slow%d" % par), "s_branch %s_r" % lab])
        chk = ["v_max3_f32 v%d, v%d, v%d, v%d" % (vU, LT(par, 0), LT(par, 1), LT(par, 2)), "v_max_f32 v%d, v%d, v%d" % (vU, vU, LT(par, 3)), "v_cmp_lt_f32 vcc, s%d, v%d" % (sThr, vU)]
        return chk, ["s_cbranch_vccnz %s" % lab, "%s_r:" % lab]
    accl = lambda par: ["v_add_f32 v%d, v%d, v%d" % (vL + j, vL + j, LT(par, j)) for j in range(4)]
    def iteration(par, barrier, ntile, kind, endc=(), endb=()):
        qk = qk_mf(par ^ 1)
        SP = 24
        mf = qk[:SP] + sum_mf(par) + qk[SP:] + pv_mf(par)
        pos = lambda f: 4 * f + (4 if 4 * f >= SP else 0)
        G = Gaps16(68)
        LA = int(os.environ.get("LA", "14")); LV = int(os.environ.get("LV", "18")); BP = int(os.environ.get("BP", "53")); LG = ""
        for f in range(4, 16):
            G.put(pos(f) - (LA if f < 6 else LV), fread(f, (par ^ 1) if f < 8 else par))
        for f in range(2, 16, 2):
            G.nv[pos(f) - 1].insert(0, need([f, f + 1]))
        G.put(66, need([0, 1]))
        G.put(0, ["s_add_u32 s%d, s%d, 1" % (sIt, sIt)]); G.put(1, ["s_add_u32 s%d, s%d, 2" % (sNb, sNb)])
        G.put(3, ["s_max_i32 s%d, s%d, s%d" % (sNext, sIt, sNb)]); G.put(4, ["s_lshl_b32 s%d, s%d, 14" % (sRd, sNext)])
        G.put(5, ["s_and_b32 s%d, s%d, 0x1ffff" % (sRd, sRd)])
        G.put(64 - LV, "v_add_u32 v%d, s%d, v%d" % (vB + par, sRd, vL16))
        if barrier:
            G.put(BP, ["s_waitcnt vmcnt(%d)%s" % (4 + 4 * ntile, LG), "s_barrier"])
        for f in range(4):
            G.put(BP + 1 + 2 * f + (f >> 1) * 2, fread(f, par))
        slots = eval(os.environ.get("SL2", "[8, 16, 23, 28, 33, 40, 45, 50]")) if ntile == 2 else eval(os.environ.get("SL1", "[23, 28, 33, 45]"))
        for hh in range(2 * ntile):
            so = sGv if hh < ntile else sG
            g0, g1 = slots[2 * hh], slots[2 * hh + 1]
            G.put(g0 - 2, ["s_and_b32 s%d, s%d, 0x1ffff" % (sT, so)])
            G.put(g0 - 1, ["s_add_u32 m0, s%d, s%d" % (sT, sW2k)])
            G.put(g0, kvld(so, 0))
            G.put(g1, [kvld(so, 1), "s_add_u32 s%d, s%d, 0x4000" % (so, so)])
        chk, br = slow_site(par)
        G.put(35, br)
        G.put(64, evt_check(kind))
        G.put(67, list(endc))
        G.put(67, list(endb), post=True)
        sm_place(G, par, 1, 0, SP - 3)
        G.put(32, chk[:2]); G.put(34, chk[2])
        early = [x for x in sm_stream(par ^ 1, 0) if x.startswith("v_exp")][:NE]
        for g in range(SP - 2, 32):
            if early and G.load(g) == 0:
                G.put(g, early.pop(0))
        assert not early
        G.put(36, accl(par)[:2]); G.put(37, accl(par)[2:])
        sm_place(G, par ^ 1, 0, 38, 66, NE)
        if VERB:
            print("iteration", par, ntile, G.report(), sum(max(0, x - 8) for x in G.report()))
        out = [x if isinstance(x, I) else I(x) for x in G.emit(mf)]
        X = os.environ.get("X_DROP", "")
        if "d" in X: out = [x for x in out if x.kind != "dma"]
        if "b" in X: out = [x for x in out if x.mn != "s_barrier"]
        if "e" in X: out = [x for x in out if x.mn != "v_exp_f32"]
        if "c" in X: out = [x for x in out if x.mn != "v_cvt_pk_bf16_f32"]
        if "l" in X: out = [x for x in out if x.kind != "ds"]
        if "w" in X:
            for x in out:
                if x.kind == "ds": x.wr = set()
        if "v" in X: out = [x for x in out if not (x.kind == "branch" and (x.target.startswith("M_ev") or x.target.startswith("M_sl")))]
        p.add(out)

    fb()
    p.add(evt_check("lo"))
    G = Gaps16(32)
    red = []
    for k in range(2):
        b = RS + k * 16
        for e in range(4):
            red += ["v_add_f32 v%d, v%d, v%d" % (b + e, b + e, b + 4 + e), "v_add_f32 v%d, v%d, v%d" % (b + 8 + e, b + 8 + e, b + 12 + e)]
        red += ["v_add_f32 v%d, v%d, v%d" % (b + e, b + e, b + 8 + e) for e in range(4)]
    G.stream(red, 2, 16)
    for k in range(2):
        G.put(18 + 2 * k, "buffer_store_dwordx4 %s, v%d, s[%d:%d], s%d offen %s" % (rr("v", RS + k * 16, 4), vV, sY, sY + 3, sOff if k else sSpin, WT))
    G.spread(wo_st, 4, 31)
    G.spread([fread(f, 1) for f in range(4)], 22, 31)
    p.add(G.emit(qk_mf(0)))
    fb()
    p("s_mov_b32 s%d, 1\ns_mov_b32 s%d, 1" % (sIt, sNext))
    p("s_lshl_b32 s%d, s%d, 9" % (sT, sWave))
    p("s_add_u32 s%d, s%d, %d" % (sT, sT, 7 * U + 8192))
    p("v_lshl_add_u32 v%d, v%d, 3, s%d" % (t2, vLane, sT))
    for j in range(4):
        p.add(rowmax(0, j, vU, vU + 1))
        p("v_sub_f32 v%d, 0, v%d" % (vM + j, vU))
        for k in range(0, 8, 2):
            p(pk_subb(S(0, j) + k, S(0, j) + k, vU))
            p(pk_subb(CI(j) + k, CI(j) + k, vU))
        if j == 1:
            p("ds_write_b64 v%d, %s" % (t2, rr("v", vM, 2)))
    fb()
    p.add(evt_check("lo"))
    p.add(sm_stream(0, 0))
    fb()
    p("s_lshr_b32 s%d, s%d, 1" % (sT, sXcd))
    p("s_lshl_b32 s%d, s%d, 6" % (sT, sT))
    p("s_lshr_b32 s%d, s%d, 4" % (sT2, sIdx))
    p("s_add_u32 s%d, s%d, s%d" % (sT, sT, sT2))
    p("v_and_b32 v%d, 31, v%d" % (t0, vLane))
    p("v_lshl_add_u32 v%d, v%d, 1, s%d" % (t0, t0, sT))
    p("s_lshl_b32 s%d, s%d, 3" % (sT, sIdx))
    p("v_and_b32 v%d, 7, v%d" % (t1, vLane))
    p("v_add_u32 v%d, s%d, v%d" % (t1, sT, t1))
    p("v_cmp_gt_u32 vcc, 32, v%d" % vLane)
    p("v_cndmask_b32 v%d, v%d, v%d, vcc" % (vPoll, t0, t1))
    p("v_lshlrev_b32 v%d, 7, v%d" % (vPoll, vPoll))
    p("v_xor_b32 v%d, 0x200, v%d" % (t2, t2))
    p("s_lshl_b32 s%d, s%d, 13" % (sT, sWave))
    p("s_add_u32 s%d, s%d, 0x20000" % (sT, sT))
    p("v_add_u32 v%d, s%d, v%d" % (t0, sT, vL16))
    p(WL + "\ns_barrier")
    p("ds_read_b64 %s, v%d" % (rr("v", vMp, 2), t2))
    for k in range(8):
        p("ds_write_b128 v%d, %s offset:%d" % (t0, rr("v", Q(0, 0) + 4 * k, 4), k * 1024))
    sUB = sBo
    p("s_andn2_b32 s%d, s%d, 7" % (sUB, sIdx))
    p("s_add_u32 s%d, s%d, s%d" % (sUB, sUB, sXcd))
    p("s_cmp_eq_u32 s%d, 0" % sI)
    p("s_cselect_b32 s%d, s%d, 64" % (sUB, sUB))
    p("s_add_u32 s%d, s%d, 32" % (sT, sXcd))
    p("s_cmp_eq_u32 s%d, 1" % sIdx)
    p("s_cselect_b32 s%d, s%d, s%d" % (sUB, sT, sUB))
    p("s_lshl_b32 s%d, s%d, 1" % (sCnt, sI))
    p("s_add_u32 s%d, s%d, 1" % (sCnt, sCnt))
    p(WL)
    st_()
    dec = ["s_sub_u32 s%d, s%d, 1" % (sCnt, sCnt)]
    HOOKS = (3, 5, 7, 9, 11, 13, 15, 25, 29)
    hk = ["s_mov_b32 s%d, 0x%x" % (sT, 0 if os.environ.get("X_NOHOOK") else sum(1 << e for e in HOOKS)), "s_bitcmp1_b32 s%d, s%d" % (sT, sIt)]
    def setcont(lab):
        p("s_getpc_b64 s[%d:%d]\n%s_pc:" % (sCont, sCont + 1, lab))
        p("s_add_u32 s%d, s%d, %s-%s_pc\ns_addc_u32 s%d, s%d, 0" % (sCont, sCont, lab, lab, sCont + 1, sCont + 1))
    p.add(kv_store(0, 4) + kv_store(1, 4))
    setcont("M_l1c")
    p("M_l1:")
    iteration(0, False, 1, "x")
    iteration(1, True, 1, "l1", hk, ["s_cbranch_scc1 M_hook", "M_l1c:"] + dec + ["s_cbranch_scc0 M_l1"])
    st_()
    def ctx_base(sblk):
        p("s_lshl_b32 s%d, s%d, 20" % (sT, sblk))
        p("s_lshl_b32 s%d, s%d, 15" % (sT2, sH))
        p("s_add_u32 s%d, s%d, s%d" % (sT, sT, sT2))
        p("s_add_u32 s%d, s%d, s%d" % (sCb, sT, sW2k))
    ctx_store = lambda r, jj: "buffer_store_dwordx4 %s, v%d, s[%d:%d], s%d offen offset:%d %s" % (rr("v", r, 4), vL16, sC, sC + 3, sCb, jj * 1024, WT)
    ctx_base(sI)
    for jj in range(2):
        p("v_rcp_f32 v%d, v%d" % (vU + 2 + jj, vL + 2 + jj))
        p("v_mov_b32 v%d, 0" % (vL + 2 + jj))
    Z = PP(1, 0)
    for k in range(4):
        p("v_mov_b32 v%d, 0" % (Z + k))
    for ds in range(4):
        T = S(1, 0) + (ds & 1) * 16
        for jj in range(2):
            for k in range(8):
                p("v_accvgpr_read_b32 v%d, a%d" % (T + 8 * jj + k, O(2 + jj, 2 * ds) + k))
        for jj in range(2):
            for k in range(0, 8, 2):
                p(pk_mulb(T + 8 * jj + k, T + 8 * jj + k, vU + 2 + jj))
        p.add(pack_tile(T, T))
        if ds & 1:
            p(zero_o(4 + (ds >> 1), Z)); p(zero_o(6 + (ds >> 1), Z))
        p(ctx_store(T, 0)); p(ctx_store(T + 4, 1))
        if ds < 3:
            p("s_add_u32 s%d, s%d, 0x2000" % (sCb, sCb))
    for hh in range(2):
        so = sG
        p.add(["s_and_b32 s%d, s%d, 0x1ffff" % (sT, so), "s_add_u32 m0, s%d, s%d" % (sT, sW2k), kvld(so, 0), kvld(so, 1), "s_add_u32 s%d, s%d, 0x4000" % (so, so)])
    p("s_mov_b32 s%d, 1.0" % sKeep)
    p("s_cmp_ge_u32 s%d, 40\ns_cbranch_scc1 M_nowob" % sUB)
    wo_src(B_WO, sUB)
    p("M_nowob:")
    p("s_lshl_b32 s%d, s%d, 1" % (sCnt, sI))
    p("s_sub_u32 s%d, 14, s%d" % (sCnt, sCnt))
    st_()
    setcont("M_l2")
    p("M_l2:")
    iteration(0, True, 2, "l2", dec, ["s_cbranch_scc1 M_l2x"])
    iteration(1, True, 2, "l2", hk, ["s_cbranch_scc0 M_l2"])
    back = jump("s_setpc_b64 s[%d:%d]" % (sCont, sCont + 1), ["M_l1c", "M_l2"])
    vP = vA
    def bm2_loads(q):
        bm_frag_loads(q, 0, aXQ)
        q("s_lshl_b32 s%d, s%d, 16" % (sT, sIdx))
        q("s_lshl_b32 s%d, s%d, 14" % (sT2, sWave))
        q("s_add_u32 s%d, s%d, s%d" % (sT, sT, sT2))
        srd(q, sO, ptr(D_WS), off_s=sT, off_imm=WS_KVP, nrec=16384)
        for j in range(2):
            for k in range(5):
                if k in (0, 4):
                    q("s_mov_b32 s%d, %d" % (sT, j * 8192 + k * 1024))
                q("buffer_load_dwordx4 %s, v%d, s[%d:%d], s%d offen offset:%d %s" % (rr("a", aPA + j * 20 + k * 4, 4), vL16, sO, sO + 3, sT, (k & 3) * 1024, WT))
    XS = 4 * 2560
    def xsetup(q, srdn, va, vb):
        q("s_and_b32 s%d, s%d, 1" % (sT, sXcd))
        q("s_lshl_b32 s%d, s%d, 5" % (sT, sT))
        q("s_add_u32 s%d, s%d, s%d" % (sT, sT, sIdx))
        q("s_mul_i32 s%d, s%d, %d" % (sT, sT, 16 * XS))
        srd(q, srdn, ptr(D_WS), off_s=sT, off_imm=WS_XB, nrec=16 * XS)
        q("s_mul_i32 s%d, s%d, 2560" % (sT, sWave))
        q("v_add_u32 v%d, s%d, v%d" % (va, sT, vL16))
        q("v_lshl_add_u32 v%d, v%d, 3, s%d" % (vb, vLane, sT))
    def xfer(q, op, qq, srdn, va, vb, regs):
        q("s_lshr_b32 s%d, s%d, 1" % (sT2, sXcd))
        q("s_xor_b32 s%d, s%d, %d" % (sT, sT2, qq))
        q("s_lshl2_add_u32 s%d, s%d, s%d" % ((sT, sT, sT2) if op == "store" else (sT, sT2, sT)))
        q("s_mul_i32 s%d, s%d, %d" % (sT, sT, XS))
        for k in range(2):
            q("buffer_%s_dwordx4 %s, v%d, s[%d:%d], s%d offen offset:%d %s" % (op, rr("v", regs[k], 4), va, srdn, srdn + 3, sT, k * 1024, WT))
        q("buffer_%s_dwordx2 %s, v%d, s[%d:%d], s%d offen offset:2048 %s" % (op, rr("v", regs[2], 2), vb, srdn, srdn + 3, sT, WT))
    def xclear(q):
        z = S(1, 0)
        xsetup(q, sY, t0, t1)
        for k in range(4):
            q("v_mov_b32 v%d, -1" % (z + k))
        for qq in range(1, 4):
            xfer(q, "store", qq, sY, t0, t1, (z, z, z))
    def wo_touch(q):
        if not int(os.environ.get("WOT", "0")):
            return
        q("s_lshr_b32 s%d, s%d, 3" % (sT, sIdx))
        q("s_lshl_b32 s%d, s%d, 2" % (sT, sT))
        q("s_lshr_b32 s%d, s%d, 1" % (sT2, sXcd))
        q("s_add_u32 s%d, s%d, s%d" % (sT, sT, sT2))
        q("s_lshl_b32 s%d, s%d, 3" % (sT, sT))
        q("s_add_u32 s%d, s%d, s%d" % (sT, sT, sI))
        q("s_mul_i32 s%d, s%d, 40960" % (sT, sT))
        srd(q, sO, ptr(D_WS), off_s=sT, off_imm=WS_WOA, nrec=40960)
        q("v_lshlrev_b32 v%d, 7, v0" % t0)
        q("s_mov_b32 s%d, 0x8000" % sT)
        q("buffer_load_dword v%d, v%d, s[%d:%d], 0 offen %s" % (vDum, t0, sO, sO + 3, WT))
        q("buffer_load_dword v%d, v%d, s[%d:%d], s%d offen %s" % (vDum, t0, sO, sO + 3, sT, WT))
    pp, p = p, Prog()
    p("s_cmp_ge_u32 s%d, 40\ns_cbranch_scc1 M_nowob2" % sUB)
    wo_reads(True, woA)
    p(WL)
    wo_stores(True, sUB, woA, sY)
    p("M_nowob2:")
    wob_job, p = p.ins, pp
    jobs = {3: publish(3) + kv_store(0, 5) + kv_store(1, 5), 5: poll_load("KV") + kv_store(0, 6) + kv_store(1, 6), 7: poll_check("KV", 3) + kv_store(0, 7) + kv_store(1, 7),
            9: L(xclear), 11: publish(4), 13: poll_load("KV"), 15: poll_check("KV", 4), 25: poll_load(3) + wob_job, 29: poll_check(3, 4) + L(bm2_loads)}
    p("M_hook:")
    for e in HOOKS[:-1]:
        p("s_cmp_eq_u32 s%d, %d\ns_cbranch_scc1 M_hook%d" % (sIt, e, e))
    for e in reversed(HOOKS):
        p("M_hook%d:" % e)
        ins = [x if isinstance(x, I) else I(x) for x in jobs[e]]
        for x in ins:
            if x.kind == "vmem":
                x.wr = set()
        p.add(ins + [back])
    p("M_l2x:")
    for f in range(8, 16):
        p(fread(f, 1))
    chk, br = slow_site(1)
    p.add(sm_stream(1, 1) + sum_mf(1) + chk + br + accl(1))
    p("s_waitcnt vmcnt(0) lgkmcnt(0)\ns_barrier")
    p.add(publish(5))
    mfl = pv_mf(1)
    mfl = [mfl[d * 4 + j] for jj in (2, 0) for d in range(8) for j in (jj, jj + 1)]
    sKq, sMb, sCc, sGc, sGw, sGw2, sWs, sRs, sW5, sDl = range(37, 47)
    sPC, sPW, sXO, sOut = sBO, sW2, sO, sW
    sIc, sIw = sKo, sNext
    vDw, vC, vWf = 3, 4, 8
    SZ = 36864
    odd = "s_bitcmp1_b32 s%d, 0" % sXcd
    pp, p = p, Prog()
    p("s_lshr_b32 s%d, s%d, 1" % (sKq, sXcd))
    p("s_lshr_b32 s%d, s%d, 3" % (sCc, sIdx))
    p("s_sub_u32 s%d, 15, s%d" % (sT, sI))
    p(odd)
    p("s_cselect_b32 s%d, s%d, s%d" % (sMb, sT, sI))
    p("s_cselect_b32 s%d, 6, 5" % sT2)
    p("v_mov_b32 v%d, s%d" % (vPoll + 1, sT2))
    p("s_and_b32 s%d, s2, 0x3e" % sT)
    p("v_bfe_u32 v%d, v%d, 1, 2" % (t1, vLane))
    p("v_lshl_add_u32 v%d, v%d, 6, s%d" % (t1, t1, sT))
    p("v_and_b32 v%d, 1, v%d" % (t2, vLane))
    p("v_add_lshl_u32 v%d, v%d, v%d, 7" % (vPoll, t1, t2))
    p("s_lshl_b32 s%d, s%d, 20" % (sT, sMb))
    p("s_lshl_b32 s%d, s%d, 18" % (sT2, sKq))
    p("s_add_u32 s%d, s%d, s%d" % (sT, sT, sT2))
    srd(p, sPC, ptr(D_WS), off_s=sT, off_imm=WS_CTX, nrec=32 * 8192)
    p("s_lshl_b32 s%d, s%d, 2" % (sT, sCc))
    p("s_add_u32 s%d, s%d, s%d" % (sT, sT, sKq))
    p("s_mul_i32 s%d, s%d, %d" % (sT, sT, 32 * 10240))
    srd(p, sPW, ptr(D_WS), off_s=sT, off_imm=WS_WOA, nrec=32 * 10240)
    p("s_mul_i32 s%d, s%d, 5120" % (sW5, sWave))
    p("v_add_u32 v%d, s%d, v%d" % (vDw, sW5, vL16))
    p("s_add_u32 s%d, s%d, 0x4000" % (sW5, sW5))
    p("s_movk_i32 s%d, 0x4000\ns_movk_i32 s%d, 0x5000" % (sIc, sIw))
    ldc = lambda k: "buffer_load_dwordx4 v%d, s[%d:%d], s%d offen offset:%d %s lds" % (vDma, sPC, sPC + 3, sGc, k * 1024, WT)
    ldw = lambda so, k: "buffer_load_dwordx4 v%d, s[%d:%d], s%d offen offset:%d %s lds" % (vDw, sPW, sPW + 3, so, k * 1024, WT)
    sSt, sBw = sDa, sDb
    dPos = ["s_mul_i32 s%d, s%d, s%d" % (sGc, sSt, sIc), "s_mul_i32 s%d, s%d, s%d" % (sGw, sSt, sIw), "s_add_u32 s%d, s%d, s%d" % (sGw, sGw, sBw),
            "s_add_u32 s%d, s%d, 0x1000" % (sGw2, sGw)]
    dC = [["s_add_u32 m0, s%d, s%d" % (sWs, sW4)]] + [ldc(k) for k in range(4)]
    dW = [["s_add_u32 m0, s%d, s%d" % (sWs, sW5)]] + [ldw(sGw, k) for k in range(4)] + [["s_add_u32 m0, m0, 0x1000"], ldw(sGw2, 0)]
    dAdv = ["s_add_u32 s%d, s%d, 1" % (sSt, sSt), "s_and_b32 s%d, s%d, 15" % (sSt, sSt),
            "s_add_u32 s%d, s%d, %d" % (sWs, sWs, SZ), "s_cmp_eq_u32 s%d, %d" % (sWs, 4 * SZ), "s_cselect_b32 s%d, 0, s%d" % (sWs, sWs)]
    p("s_and_b32 s%d, s%d, 7" % (sSt, sH))
    p("s_lshl_b32 s%d, s%d, 1" % (sSt, sSt))
    p("s_mov_b32 s%d, 0\ns_mov_b32 s%d, 0" % (sWs, sBw))
    p("v_add_u32 v%d, 0x20000, v%d" % (vKV, vDw))
    setup, p = p.ins, pp
    wpre = []
    for k in range(3):
        wpre += [(dAdv if k else []) + dPos + dW[0]] + dW[1:]
    Lr, SUM, KA, N = 96, 176, 200, 96
    vMw, vLw = vB, vB + 1
    p("s_mul_i32 s%d, s%d, %d" % (sT, sWave, SZ))
    p("v_add_u32 v%d, s%d, v%d" % (vMw, sT, vL16))
    p("v_lshlrev_b32 v%d, 4, v0" % vLw)
    p("v_add_u32 v%d, 0x%x, v%d" % (vLw, 124 * 1024, vLw))
    p("v_mov_b32 v%d, v%d\nv_mov_b32 v%d, v%d" % (vOne, vM + 2, vOne + 1, vM + 3))
    G = Gaps16(32)
    G.put(0, "ds_write_b128 v%d, %s" % (vLw, rr("v", vL + 2, 4)))
    for k in range(16):
        G.put(16 + k, "ds_write_b128 v%d, %s offset:%d" % (vMw, rr("a", O(2 + (k & 1), k >> 1), 4), k * 1024))
    for k in range(30):
        G.put(k, setup[k * len(setup) // 30:(k + 1) * len(setup) // 30], post=True)
    G.stream(["v_accvgpr_read_b32 v%d, a%d" % (Lr + k, aPA + k) for k in range(40)] + ["v_add_f32 v%d, v%d, v%d" % (Lr + e, Lr + e, Lr + 20 + e) for e in range(20)], 0, 31)
    p.add(G.emit(mfl))
    st_()
    for k in range(5):
        p("ds_write_b128 v%d, %s offset:%d" % (vKV, rr("v", Lr + 4 * k, 4), k * 1024))
    p("v_add_u32 v%d, s%d, v%d" % (vDma, sW4, vL16))
    p("v_and_b32 v%d, 31, v%d" % (t2, vLane))
    p("v_min_u32 v%d, 20, v%d" % (t2, t2))
    p("v_and_b32 v%d, 32, v%d" % (t1, vLane))
    p("v_add_lshl_u32 v%d, v%d, v%d, 4" % (vP, t1, t2))
    p("v_add_u32 v%d, 0x20000, v%d" % (vP, vP))
    p("s_xor_b32 s%d, s%d, 1" % (sT, sWave))
    p("s_mul_i32 s%d, s%d, %d" % (sT, sT, SZ))
    p("v_add_u32 v%d, s%d, v%d" % (t0, sT, vL16))
    p("v_xor_b32 v%d, 0x400, v%d" % (vLw, vLw))
    p("s_sub_u32 s%d, 15, s%d" % (sOff, sI))
    ctx_base(sOff)
    p(WL + "\ns_barrier")
    XO = 144
    p("ds_read_b128 %s, v%d" % (rr("v", TMP, 4), vLw))
    for k in range(16):
        p("ds_read_b128 %s, v%d offset:%d" % (rr("v", XO + (k >> 2) * 16 + (k & 1) * 8 + ((k >> 1) & 1) * 4, 4), t0, k * 1024))
    pp, p = p, Prog()
    for jj in range(2):
        fa, fb = vU + 2 * jj, vU + 2 * jj + 1
        p("v_min_f32 v%d, v%d, v%d" % (t1, vM + jj, TMP + 2 + jj))
        p("v_sub_f32 v%d, v%d, v%d" % (fa, t1, vM + jj))
        p("v_sub_f32 v%d, v%d, v%d" % (fb, t1, TMP + 2 + jj))
        p("v_exp_f32 v%d, v%d" % (fa, fa))
        p("v_exp_f32 v%d, v%d" % (fb, fb))
        p("v_mul_f32 v%d, v%d, v%d" % (vL + jj, vL + jj, fa))
        p("v_fmac_f32 v%d, v%d, v%d" % (vL + jj, TMP + jj, fb))
        p("v_rcp_f32 v%d, v%d" % (t1, vL + jj))
        p("v_mul_f32 v%d, v%d, v%d" % (fa, fa, t1))
        p("v_mul_f32 v%d, v%d, v%d" % (fb, fb, t1))
    KP = lambda ds: (32, 40, 212, 220)[ds]
    for ds in range(4):
        T = 48 + (ds & 1) * 16
        for jj in range(2):
            for k in range(8):
                p("v_accvgpr_read_b32 v%d, a%d" % (T + 8 * jj + k, O(jj, 2 * ds) + k))
        for jj in range(2):
            for k in range(0, 8, 2):
                p(pk_mulb(T + 8 * jj + k, T + 8 * jj + k, vU + 2 * jj))
            for k in range(0, 8, 2):
                p(pk_fmab(T + 8 * jj + k, XO + ds * 16 + jj * 8 + k, vU + 2 * jj + 1, T + 8 * jj + k))
        p.add(pack_tile(T, KP(ds)))
        p(ctx_store(KP(ds), 0)); p(ctx_store(KP(ds) + 4, 1))
        if ds < 3:
            p("s_addk_i32 s%d, 0x2000" % sCb)
    epi, p = p.ins, pp
    n1 = len(epi) * 2 // 3
    for k, x in enumerate(wpre):
        p.add([x] + epi[k * n1 // len(wpre):(k + 1) * n1 // len(wpre)])
    p.add(epi[n1:])
    st_()
    for w in range(4):
        for k in range(5):
            p("ds_read_b128 %s, v%d offset:%d" % (rr("v", Lr + w * 20 + 4 * k, 4), vP, w * 5120 + k * 1024))
    phi(aXQ)
    p("s_waitcnt vmcnt(0) lgkmcnt(0)\ns_barrier")
    p.add(publish(6))
    p(odd + "\ns_cbranch_scc0 M_own0")
    p("v_add_u32 v%d, s%d, v%d" % (t2, sW2k, vL16))
    for ds in range(4):
        for jj in range(2):
            p("ds_write_b128 v%d, %s offset:%d" % (t2, rr("v", KP(ds) + 4 * jj, 4), (ds >> 1) * SZ + (ds & 1) * 8192 + jj * 1024))
    p("s_branch M_own1\nM_own0:")
    p("s_and_b32 s%d, s%d, 7" % (sGc, sH))
    p("s_lshl_b32 s%d, s%d, 15" % (sGc, sGc))
    p.add(["s_mov_b32 m0, s%d" % sW4] + dC[1:] + ["s_add_u32 m0, m0, %d" % SZ, "s_addk_i32 s%d, 0x4000" % sGc] + dC[1:] + dPos[:1])
    p("M_own1:")
    sums = []
    for e in range(0, 20, 2):
        sums += [pk_add(Lr + e, Lr + e, Lr + 20 + e), pk_add(Lr + 40 + e, Lr + 40 + e, Lr + 60 + e)]
    sums += [pk_add(SUM + e, Lr + e, Lr + 40 + e) for e in range(0, 20, 2)]
    sums += ["v_cvt_pk_bf16_f32 v%d, v%d, v%d" % (KA + k, SUM + 2 * k, SUM + 2 * k + 1) for k in range(10)]
    sums += ["v_mov_b32 v%d, 0" % r for r in (KA + 10, KA + 11, PH + 10, PH + 11)]
    p.add(sums)
    def num(N):
        for u in range(3):
            p("%s %s, %s, %s, %s" % (MF, rr("v", N, 16), rr("v", KA + 4 * u, 4), rr("v", PH + 4 * u, 4), rr("v", N, 16) if u else "0"))
    num(N)
    p.add(poll_load("A"))
    phi(aXQ + 8)
    num(N + 32)
    p.add(poll_check("A"))
    p.add(dC + dAdv + dPos)
    p("s_lshr_b32 s%d, s%d, 1" % (sT, sTT))
    p("s_mul_i32 s%d, s%d, 81920" % (sT, sT))
    srd(p, sY, ptr(D_WS), off_s=sT, off_imm=WS_OB, nrec=81920)
    vO = vA
    p("v_and_b32 v%d, 15, v%d" % (t0, vLane))
    p("v_bfe_u32 v%d, v%d, 4, 1" % (t2, vLane))
    p("v_lshlrev_b32 v%d, 10, v%d" % (t2, t2))
    p("v_lshrrev_b32 v%d, 5, v%d" % (t1, vLane))
    p("v_lshl_add_u32 v%d, v%d, 4, v%d" % (vO, t0, t2))
    p("v_lshl_add_u32 v%d, v%d, 8, v%d" % (vO, t1, vO))
    p("v_lshl_add_u32 v%d, v%d, 3, v%d" % (vO + 1, t0, t2))
    p("v_lshl_add_u32 v%d, v%d, 31, v%d" % (vO + 1, t1, vO + 1))
    p("s_lshr_b32 s%d, s%d, 3" % (sT, sIdx))
    p("s_mul_i32 s%d, s%d, 20480" % (sT, sT))
    p("s_bfe_u32 s%d, s%d, 0x20001" % (sT2, sIdx))
    p("s_and_b32 s%d, s%d, 1" % (sSpin, sIdx))
    p("s_lshl_b32 s%d, s%d, 7" % (sOff, sI))
    p("s_add_u32 s%d, s%d, s%d" % (sOff, sOff, sT))
    p("s_addk_i32 s%d, 0x4000" % sOff)
    p("s_lshl_b32 s%d, s%d, 12" % (sT2, sT2))
    p("s_lshl_b32 s%d, s%d, 9" % (sSpin, sSpin))
    p("s_add_u32 s%d, s%d, s%d" % (sT, sT, sT2))
    p("s_add_u32 s%d, s%d, s%d" % (sT, sT, sSpin))
    for tt in range(2):
        n0 = N + 32 * tt
        p("v_add_f32 v%d, 0x%x, v%d" % (n0 + 12, f2u(1e-6), n0 + 12))
        p("v_rcp_f32 v%d, v%d" % (n0 + 12, n0 + 12))
        for k in range(0, 12, 2):
            p(pk_mulb(n0 + k, n0 + k, n0 + 12))
        for k in range(6):
            p("v_cvt_pk_bf16_f32 v%d, v%d, v%d" % (n0 + 16 + k, n0 + 2 * k, n0 + 2 * k + 1))
        p("buffer_store_dwordx4 %s, v%d, s[%d:%d], s%d offen offset:%d %s" % (rr("v", n0 + 16, 4), vO, sY, sY + 3, sT, tt * 2048, WT))
        if os.environ.get("X_OB") == "1":
            p("buffer_store_dwordx4 %s, v%d, s[%d:%d], s%d offen offset:%d %s" % (rr("v", n0 + 16, 4), vO, sY, sY + 3, sT, tt * 2048, WT))
        else:
            p("buffer_store_dwordx2 %s, v%d, s[%d:%d], s%d offen offset:%d %s" % (rr("v", n0 + 20, 2), vO + 1, sY, sY + 3, sOff, tt * 2048, WT))
    MF16 = "v_mfma_f32_16x16x32_bf16"
    PA = 160
    pacc = lambda q, n: PA + (q * 5 + n) * 4
    pfr = lambda st, i: st * 36 + i * 4
    aOB = 80
    p("s_lshr_b32 s%d, s%d, 1" % (sT, sWave))
    p("s_lshl_b32 s%d, s%d, 2" % (sT, sT))
    p("s_add_u32 s%d, s%d, s%d" % (sT, sT, sKq))
    p("s_lshl_b32 s%d, s%d, 10" % (sT, sT))
    p("v_add_u32 v%d, s%d, v%d" % (vC, sT, vL16))
    for qq in range(1, 4):
        p("v_xor_b32 v%d, 0x%x, v%d" % (vC + qq, qq << 10, vC))
    p("s_and_b32 s%d, s%d, 1" % (sT, sWave))
    p("s_mul_i32 s%d, s%d, 5120" % (sT, sT))
    p("s_add_u32 s%d, s%d, 0x4000" % (sT, sT))
    p("v_add_u32 v%d, s%d, v%d" % (vWf, sT, vL16))
    p("s_mov_b32 s%d, 0" % sRs)
    for k in range(4):
        p("v_mov_b32 v%d, 0" % (32 + k))
    for k in range(5):
        p("%s %s, v[32:35], v[32:35], 0" % (MF, rr("v", PA + 16 * k, 16)))
    def p_reads(st):
        c = ["ds_read_b128 %s, v%d offset:%d" % (rr("a", pfr(st, qq), 4), vC + qq, st * 8192) for qq in range(4)]
        w = ["ds_read_b128 %s, v%d offset:%d" % (rr("a", pfr(st, 4 + n), 4), vWf, st * 10240 + n * 1024) for n in range(5)]
        return [w[0]] + c + w[1:]
    p_mf = lambda st: ["%s %s, %s, %s, %s" % (MF16, rr("v", pacc(qq, n), 4), rr("a", pfr(st, 4 + n), 4), rr("a", pfr(st, qq), 4), rr("v", pacc(qq, n), 4)) for n in range(5) for qq in range(4)]
    G = Gaps(40)
    G.spread(p_reads(1), 0, 12)
    G.put(19, ["s_waitcnt vmcnt(13) lgkmcnt(0)", "s_barrier"])
    G.put(13, ["s_add_u32 s%d, s%d, 1" % (sRs, sRs), "s_and_b32 s%d, s%d, 3" % (sRs, sRs)])
    G.put(14, ["s_mov_b32 s%d, %d" % (sDl, SZ), "s_cselect_b32 s%d, s%d, 0x%x" % (sDl, sDl, u32(-3 * SZ))])
    G.spread(["v_add_u32 v%d, s%d, v%d" % (r, sDl, r) for r in (vWf, vC, vC + 1, vC + 2, vC + 3)], 15, 18)
    G.spread(p_reads(0), 20, 32)
    for k, x in enumerate(dC):
        G.put(max(0, 4 * k - 1) + (1 if k == 0 else 0), x)
    for k, x in zip((20, 21, 25, 29, 33, 36, 37), dW):
        G.put(k, x)
    G.spread(dAdv, 30, 35); G.put(38, dPos); G.put(39, ["s_sub_u32 s%d, s%d, 1" % (sNlo, sNlo), WL, "s_cbranch_scc0 M_p3"])
    o3 = [x if isinstance(x, I) else I(x) for x in G.emit(p_mf(0) + p_mf(1))]
    X3 = os.environ.get("X_P3", "")
    if "m" in X3: o3 = [x for x in o3 if x.kind not in ("mfma", "ds")]
    if "d" in X3: o3 = [x for x in o3 if x.kind != "dma"]
    if "s" in X3: o3 = [I(x.text.replace(" sc1", "")) if x.kind == "dma" else x for x in o3]
    tail.extend(["M_p3:"] + o3 + [ret])
    st_()
    p("s_waitcnt vmcnt(8) lgkmcnt(0)\ns_barrier")
    st_()
    p.add(p_reads(0))
    p(WL)
    def run(n):
        p("s_mov_b32 s%d, %d" % (sNlo, n - 1))
        p(call("M_p3"))
        if os.environ.get("FINE3") and n != 14:
            st_()
    xr = lambda qq: (PA + qq * 20, PA + qq * 20 + 4, PA + qq * 20 + 8)
    def xrecv(q):
        for qq in range(1, 4):
            xfer(q, "load", qq, sXO, vDw, vC, xr(qq))
    for _ in range(3 if os.environ.get("FINE3") else 1):
        run(1 if os.environ.get("FINE3") else 3)
    p.add(publish(7))
    run(5)
    p("s_lshr_b32 s%d, s%d, 4" % (sT, sIdx))
    p("v_min_u32 v%d, 19, v%d" % (t0, vLane))
    p("v_lshl_add_u32 v%d, v%d, 1, s%d" % (t0, t0, sT))
    p("v_lshrrev_b32 v%d, 3, v%d" % (t1, t0))
    p("v_lshlrev_b32 v%d, 6, v%d" % (t1, t1))
    p("v_and_b32 v%d, 7, v%d" % (t2, t0))
    p("v_add_u32 v%d, v%d, v%d" % (t1, t1, t2))
    p("v_subrev_u32 v%d, 24, v%d" % (t2, t0))
    p("v_cmp_gt_u32 vcc, 32, v%d" % t0)
    p("v_cndmask_b32 v%d, v%d, v%d, vcc" % (t0, t2, t1))
    p("v_and_b32 v%d, 31, v%d" % (t1, vLane))
    p("v_lshl_add_u32 v%d, v%d, 3, s%d" % (t1, t1, sXcd))
    p("v_cmp_gt_u32 vcc, 32, v%d" % vLane)
    p("v_cndmask_b32 v%d, v%d, v%d, vcc" % (vPoll, t1, t0))
    p("v_lshlrev_b32 v%d, 7, v%d" % (vPoll, vPoll))
    p("v_cndmask_b32 v%d, 7, 5, vcc" % (vPoll + 1))
    p.add(poll_load("B"))
    p("s_lshl_b32 s%d, s%d, 2" % (sTT, sXcd))
    p("s_and_b32 s%d, s%d, 3" % (sT, sIdx))
    p("s_add_u32 s%d, s%d, s%d" % (sTT, sTT, sT))
    p("s_mul_i32 s%d, s%d, 81920" % (sT, sTT))
    srd(p, sY, ptr(D_WS), off_s=sT, off_imm=WS_OB, nrec=81920)
    p("s_lshl_b32 s%d, s%d, 10" % (sOff, sWave))
    p("v_and_b32 v%d, 15, v%d" % (t0, vLane))
    p("v_lshlrev_b32 v%d, 3, v%d" % (t0, t0))
    p("v_sub_u32 v%d, v%d, v%d" % (vO, vL16, t0))
    run(2)
    p.add(poll_check("B"))
    for s in range(10, 16):
        if s == 13:
            p("s_lshr_b32 s%d, s%d, 2" % (sT, sIdx))
            p("s_mul_i32 s%d, s%d, 102400" % (sT, sT))
            srd(p, sPC, ptr(D_WS), off_s=sT, off_imm=WS_WOB, nrec=102400)
            p("s_mov_b64 s[%d:%d], s[%d:%d]\ns_mov_b32 s%d, s%d" % (sPW, sPW + 1, sPC, sPC + 1, sPW + 2, sPC + 2))
            p("s_mov_b32 s%d, 0\ns_mov_b32 s%d, %d\ns_mov_b32 s%d, %d\ns_movk_i32 s%d, 0x4000" % (sSt, sIc, SZ, sIw, SZ, sBw))
            p.add(dPos)
        for ks in range(20)[(s - 10) * 20 // 6:(s - 9) * 20 // 6]:
            if ks % 5 == 4:
                for u in range(2):
                    p("buffer_load_dwordx2 %s, v%d, s[%d:%d], s%d offen offset:%d %s" % (rr("a", aOB + 4 * ks + 2 * u, 2), vO, sY, sY + 3, sOff, u * 128, WT))
            else:
                p("buffer_load_dwordx4 %s, v%d, s[%d:%d], s%d offen %s" % (rr("a", aOB + 4 * ks, 4), vL16, sY, sY + 3, sOff, WT))
            p("s_addk_i32 s%d, 0x1000" % sOff)
        run(1)
    st_()
    xsetup(p, sXO, vDw, vC)
    for qq in range(1, 4):
        for k in range(10):
            p("v_cvt_pk_bf16_f32 v%d, v%d, v%d" % (PA + qq * 20 + k, PA + qq * 20 + 2 * k, PA + qq * 20 + 2 * k + 1))
        for k in range(10):
            p("v_min_u32 v%d, -2, v%d" % (PA + qq * 20 + k, PA + qq * 20 + k))
        xfer(p, "store", qq, sXO, vDw, vC, xr(qq))
    BA = 32
    p("v_add_u32 v%d, %d, v%d" % (vWf, 10 * 5120, vL16))
    p("s_waitcnt vmcnt(9)\ns_barrier")
    bfr = lambda k: (k % 15) * 4
    brd = lambda k: "ds_read_b128 %s, v%d offset:%d" % (rr("a", bfr(k), 4), vWf if k >= 50 else vL16, (k % 50) * 1024)
    for k in range(10):
        p(brd(k))
    for k in range(100):
        ks, n = divmod(k, 5)
        a = rr("v", BA + 4 * n, 4)
        if n == 0:
            p.add([I("need", xrd=[("a", bfr(k + 4) + e) for e in range(4)])])
        p("%s %s, %s, %s, %s" % (MF16, a, rr("a", bfr(k), 4), rr("a", aOB + 4 * ks, 4), a if ks else "0"))
        if k + 10 < 100:
            p(brd(k + 10))
        if k == int(os.environ.get("XK", "80")):
            xrecv(p)
    st_()
    srd(p, sOut, ptr(D_OUT), nrec=2048 * 2560)
    p("v_and_b32 v%d, 15, v%d" % (t0, vLane))
    p("v_mul_u32_u24 v%d, 2560, v%d" % (vWf, t0))
    p("v_lshrrev_b32 v%d, 4, v%d" % (t0, vLane))
    p("v_lshl_add_u32 v%d, v%d, 3, v%d" % (vWf, t0, vWf))
    p("s_lshl_b32 s%d, s%d, 2" % (sT, sTT))
    p("s_add_u32 s%d, s%d, s%d" % (sT, sT, sWave))
    p("s_mul_i32 s%d, s%d, %d" % (sT, sT, 16 * 2560))
    p("s_lshr_b32 s%d, s%d, 2" % (sT2, sIdx))
    p("s_mul_i32 s%d, s%d, 160" % (sT2, sT2))
    p("s_add_u32 s%d, s%d, s%d" % (sOff, sT, sT2))
    for n in range(5):
        b = BA + 4 * n
        p("v_cvt_pk_bf16_f32 v%d, v%d, v%d" % (b, b, b + 1))
        p("v_cvt_pk_bf16_f32 v%d, v%d, v%d" % (b + 1, b + 2, b + 3))
        p("buffer_store_dwordx2 %s, v%d, s[%d:%d], s%d offen offset:%d" % (rr("v", b, 2), vWf, sOut, sOut + 3, sOff, 1280 + n * 32))
    p("s_lshl_b32 s%d, s%d, 3" % (sT, sMb))
    p("s_lshr_b32 s%d, s%d, 1" % (sT2, sWave))
    p("s_lshl_b32 s%d, s%d, 2" % (sT2, sT2))
    p("s_add_u32 s%d, s%d, s%d" % (sT, sT, sT2))
    p("s_add_u32 s%d, s%d, s%d" % (sT, sT, sKq))
    p("s_mul_i32 s%d, s%d, %d" % (sT, sT, 16 * 2560))
    p("s_lshl_b32 s%d, s%d, 1" % (sT2, sCc))
    p("s_and_b32 s%d, s%d, 1" % (sOff, sWave))
    p("s_add_u32 s%d, s%d, s%d" % (sT2, sT2, sOff))
    p("s_mul_i32 s%d, s%d, 160" % (sT2, sT2))
    p("s_add_u32 s%d, s%d, s%d" % (sOff, sT, sT2))
    if os.environ.get("FINE3"): st_()
    p("s_mov_b32 s%d, 0x40000\nM_xchk:" % sSpin)
    xs = [PA + qq * 20 + k for qq in range(1, 4) for k in range(10)]
    p("v_max_u32 v%d, v%d, v%d" % (t0, xs[0], xs[1]))
    for k in range(2, 30, 2):
        p("v_max3_u32 v%d, v%d, v%d, v%d" % (t0, t0, xs[k], xs[k + 1]))
    p("v_cmp_eq_u32 vcc, -1, v%d\ns_cbranch_vccnz M_xagain\nM_xok:" % t0)
    p("s_mov_b32 s%d, 0xffff0000" % sT)
    tail.extend(["M_xagain:"] + L(xrecv) + ["s_waitcnt vmcnt(0)", "s_sub_u32 s%d, s%d, 1" % (sSpin, sSpin), "s_cbranch_scc0 M_xchk", "s_branch M_xok"])
    for qq in range(1, 4):
        for k in range(10):
            r = PA + qq * 20 + k
            u = 96 + 2 * (k & 3)
            p("v_lshlrev_b32 v%d, 16, v%d" % (u, r))
            p("v_and_b32 v%d, s%d, v%d" % (u + 1, sT, r))
            p(pk_add(PA + 2 * k, PA + 2 * k, u))
    for n in range(5):
        b = pacc(0, n)
        p("v_cvt_pk_bf16_f32 v%d, v%d, v%d" % (b, b, b + 1))
        p("v_cvt_pk_bf16_f32 v%d, v%d, v%d" % (b + 1, b + 2, b + 3))
        p("buffer_store_dwordx2 %s, v%d, s[%d:%d], s%d offen offset:%d" % (rr("v", b, 2), vWf, sOut, sOut + 3, sOff, n * 32))
    st_()
    st_.dump(vtmp=t0)
    p("M_exit:\ns_endpgm")
    p.add(tail)
    for par in range(2):
        p("M_slow%d:" % par)
        p("s_nop 15")
        for j in range(4):
            d, f, d2 = vU + 2, vU + 3, vU + 4
            p.add(rowmax(par, j, d, f))
            p("v_max_f32 v%d, 0, v%d" % (d, d))
            p("v_exp_f32 v%d, -v%d" % (f, d))
            if j >= 2:
                p("v_mul_f32 v%d, s%d, v%d" % (d2, sKeep, d))
            else:
                d2 = d
            for k in range(8):
                p("v_sub_f32 v%d, v%d, v%d" % (S(par, j) + k, S(par, j) + k, d))
                for b in (S(par ^ 1, j), CI(j)):
                    p("v_sub_f32 v%d, v%d, v%d" % (b + k, b + k, d2))
            p("v_sub_f32 v%d, v%d, v%d" % (vM + j, vM + j, d2))
            p("v_mul_f32 v%d, v%d, v%d" % (vL + j, vL + j, f))
            for k in range(0, 32, 8):
                for e in range(8):
                    p("v_accvgpr_read_b32 v%d, a%d" % (TMP + e, O(j, 0) + k + e))
                for e in range(8):
                    p("v_mul_f32 v%d, v%d, v%d" % (TMP + e, TMP + e, f))
                for e in range(8):
                    p("v_accvgpr_write_b32 a%d, v%d" % (O(j, 0) + k + e, TMP + e))
        p.add(sm_stream(par, 2) + sum_mf(par))
        p.add([x for x in sm_stream(par ^ 1, 0) if x.startswith("v_exp")][:NE])
        p("s_nop 3")
        p(ret)
    p("M_codeend:")
    if os.environ.get("NOST"):
        p.ins = [I("buffer_load_dword v%d, off, s[%d:%d], 0" % (vA + 3, sD, sD + 3)) if (i.mn == "buffer_store_dwordx4" and ("s[16:19]" in i.text or "s[24:27]" in i.text) and i.ops[0][0] == "v") else i for i in p.ins]
    p.finish()
    return p
```

```python
import re

TRANS = ("v_exp_f32", "v_log_f32", "v_rcp_f32", "v_rsq_f32", "v_sqrt_f32", "v_sin_f32", "v_cos_f32")
_REG = re.compile(r"^(-|abs\()?([sva])(?:(\d+)|\[(\d+):(\d+)\])\)?$")


def regs_of(tok):
    tok = tok.strip()
    if tok in ("vcc", "exec", "m0", "scc"):
        return [tok]
    if tok in ("vcc_lo", "vcc_hi"):
        return ["vcc"]
    if tok in ("exec_lo", "exec_hi"):
        return ["exec"]
    m = _REG.match(tok)
    if not m:
        return []
    f = m.group(2)
    if m.group(3) is not None:
        return [(f, int(m.group(3)))]
    return [(f, i) for i in range(int(m.group(4)), int(m.group(5)) + 1)]


def split_ops(s):
    out, cur, d = [], "", 0
    for ch in s:
        if ch in "[(":
            d += 1
        if ch in "])":
            d -= 1
        if ch == "," and d == 0:
            out.append(cur.strip())
            cur = ""
        else:
            cur += ch
    if cur.strip():
        out.append(cur.strip())
    return out


class I:
    __slots__ = ("text", "mn", "kind", "rd", "wr", "ops", "mods", "label", "target", "passes",
                 "srcc", "srcab", "data", "cnt", "auto", "note", "xrd")

    def __init__(self, text, note=None, xrd=()):
        self.text = text.strip()
        self.note = note
        self.label = None
        self.target = None
        self.passes = 0
        self.srcc = []
        self.srcab = []
        self.data = []
        self.cnt = None
        self.auto = False
        self.rd, self.wr = set(), set()
        self.mods = []
        self.ops = []
        if self.text.endswith(":"):
            self.kind = "label"
            self.label = self.text[:-1]
            self.mn = ""
            return
        if self.text == "need":
            self.kind = "need"
            self.mn = ""
            self.text = "; need"
            self.rd = set(xrd)
            return
        if self.text.startswith(".") or self.text.startswith(";"):
            self.kind = "dir"
            self.mn = ""
            return
        p = self.text.split(None, 1)
        self.mn = mn = p[0]
        rest = p[1] if len(p) > 1 else ""
        ops = split_ops(rest)
        if ops:
            w = ops[-1].split()
            ops[-1] = w[0]
            self.mods = w[1:]
        self.ops = ops
        R = [regs_of(o) for o in ops]
        flat = lambda xs: [r for x in xs for r in x]
        rd, wr = [], []
        if mn.startswith("v_mfma"):
            self.kind = "mfma"
            self.passes = 8 if "32x32x16" in mn else 4
            wr = R[0]
            rd = flat(R[1:])
            self.srcab = R[1] + R[2]
            self.srcc = R[3]
        elif mn.startswith("v_cmp"):
            self.kind = "valu"
            wr = R[0]
            rd = flat(R[1:])
        elif mn.startswith("v_permlane32_swap") or mn.startswith("v_permlane16_swap") or mn == "v_swap_b32":
            self.kind = "valu"
            wr = flat(R)
            rd = flat(R)
        elif mn in ("v_add_co_u32", "v_sub_co_u32", "v_addc_co_u32", "v_subb_co_u32"):
            self.kind = "valu"
            wr = R[0] + R[1]
            rd = flat(R[2:])
        elif mn.startswith("v_"):
            self.kind = "trans" if mn in TRANS else "valu"
            wr = R[0] if R else []
            rd = flat(R[1:])
            if mn.startswith("v_fmac") or mn.startswith("v_writelane") or mn.startswith("v_dot2c"):
                rd += R[0]
        elif mn.startswith("ds_read") or mn.startswith("ds_bpermute") or mn.startswith("ds_swizzle") or mn.startswith("ds_permute"):
            self.kind = "ds"
            self.cnt = "lgkm"
            wr = R[0]
            rd = flat(R[1:])
        elif mn.startswith("ds_"):
            self.kind = "ds"
            self.cnt = "lgkm"
            rd = flat(R)
        elif mn.startswith("buffer_load") or mn.startswith("global_load"):
            self.kind = "vmem"
            self.cnt = "vm"
            if "lds" in self.mods:
                rd = flat(R) + ["m0"]
                self.kind = "dma"
            else:
                wr = R[0]
                rd = flat(R[1:])
        elif mn.startswith("buffer_store"):
            self.kind = "vmem"
            self.cnt = "vm"
            rd = flat(R)
            self.data = R[0]
        elif mn.startswith("global_store"):
            self.kind = "vmem"
            self.cnt = "vm"
            rd = flat(R)
            self.data = R[1]
        elif mn.startswith("buffer_atomic"):
            self.kind = "vmem"
            self.cnt = "vm"
            rd = flat(R)
            if "sc0" in self.mods:
                wr = R[0]
        elif mn.startswith("buffer_wbl2") or mn.startswith("buffer_inv"):
            self.kind = "vmem"
            self.cnt = "vm"
        elif mn.startswith("s_load") or mn.startswith("s_buffer_load") or mn in ("s_memtime", "s_memrealtime"):
            self.kind = "smem"
            self.cnt = "smem"
            wr = R[0]
            rd = flat(R[1:])
        elif mn in ("s_branch",) or mn.startswith("s_cbranch"):
            self.kind = "branch"
            self.target = ops[0]
            if "scc" in mn:
                rd = ["scc"]
            elif "vcc" in mn:
                rd = ["vcc"]
            elif "exec" in mn:
                rd = ["exec"]
        elif mn == "s_call_b64":
            self.kind = "call"
            self.target = ops[1]
            wr = R[0]
        elif mn == "s_setpc_b64":
            self.kind = "ret"
            rd = R[0]
        elif mn == "s_endpgm":
            self.kind = "end"
        elif mn == "s_waitcnt":
            self.kind = "wait"
        elif mn == "s_nop":
            self.kind = "nop"
        elif mn in ("s_barrier", "s_sleep", "s_setprio"):
            self.kind = "salu"
        elif mn.startswith("s_cmp") or mn.startswith("s_bitcmp"):
            self.kind = "salu"
            rd = flat(R)
            wr = ["scc"]
        elif mn.startswith("s_"):
            self.kind = "salu"
            wr = list(R[0]) if R else []
            rd = flat(R[1:])
            if "saveexec" in mn:
                wr += ["exec"]
                rd += ["exec"]
            if mn.startswith("s_cselect") or mn.startswith("s_addc") or mn.startswith("s_subb"):
                rd += ["scc"]
            if mn in ("s_addk_i32", "s_mulk_i32") or mn.startswith("s_bitset"):
                rd += R[0]
            if not (mn.startswith("s_mov") or mn.startswith("s_cselect") or mn.startswith("s_mul") or mn.startswith("s_getreg") or mn.startswith("s_getpc")):
                wr += ["scc"]
        else:
            raise ValueError("unknown instruction: " + text)
        self.rd, self.wr = set(rd) | set(xrd), set(wr)

    def states(self):
        if self.kind in ("label", "dir", "need"):
            return 0
        if self.kind == "nop":
            return int(self.ops[0], 0) + 1
        return 1


def jump(text, targets):
    i = I(text)
    i.kind = "jump"
    i.target = list(targets)
    return i


def is_valu(i):
    return i.kind in ("valu", "trans")


def vec(rs):
    return {r for r in rs if isinstance(r, tuple) and r[0] in "va"}


def sca(rs):
    return {r for r in rs if r == "vcc" or (isinstance(r, tuple) and r[0] == "s")}


def need_states(p, c):
    n = 0
    if p.mn.startswith("v_pk_") and c.kind == "mfma":
        n = 5
    if is_valu(p):
        pw = vec(p.wr)
        if c.kind == "mfma" and pw & c.rd:
            n = max(n, 2)
        if p.kind == "trans" and c.kind in ("valu", "mfma", "vmem", "ds", "dma") and pw & c.rd:
            n = max(n, 1)
        if (c.mn.startswith("v_readfirstlane") or c.mn.startswith("v_readlane")) and pw & c.rd:
            n = max(n, 1)
        if c.mn.startswith("v_permlane") and pw & c.rd:
            n = max(n, 2)
        if is_valu(c) and any(m.startswith("row_") or m.startswith("quad_perm") or m.startswith("wave_") for m in c.mods) and pw & c.rd:
            n = max(n, 2)
        ps = sca(p.wr)
        if ps & c.rd:
            if is_valu(c):
                n = max(n, 4 if (c.mn.startswith("v_readlane") or c.mn.startswith("v_writelane")) else 2)
            if c.kind in ("vmem", "dma"):
                n = max(n, 5)
            if c.kind in ("salu", "branch", "smem"):
                n = max(n, 1)
        if "exec" in p.wr:
            n = max(n, 5)
    if p.kind == "mfma":
        big = p.passes == 8
        D = p.wr
        if c.kind == "mfma":
            if D & set(c.srcab):
                n = max(n, 12 if big else 8)
            cc = set(c.srcc)
            if D & cc and not (cc == D and c.passes == p.passes):
                n = max(n, 10 if big else 6)
            if D & c.wr and not (c.wr == D and cc == D):
                n = max(n, 10 if big else 6) if c.wr != D else n
        elif is_valu(c) or c.kind in ("vmem", "ds", "dma"):
            if D & (c.rd | c.wr):
                n = max(n, 12 if big else 8)
        if is_valu(c) and set(p.srcc) & c.wr:
            n = max(n, 7 if big else 3)
    if p.kind == "salu" and "m0" in p.wr and c.kind == "dma":
        n = max(n, 1)
    if p.kind == "vmem" and len(p.data) >= 3 and set(p.data) & c.wr:
        n = max(n, 2 if is_valu(c) else 1)
    return n


class Prog:
    def __init__(self):
        self.ins = []
        self._lab = 0

    def __call__(self, text, **kw):
        for line in text.split("\n"):
            line = line.split(";")[0].strip() if not line.strip().startswith(";") else line.strip()
            if line:
                self.ins.append(I(line, **kw))

    def add(self, items):
        for x in items:
            if isinstance(x, I):
                self.ins.append(x)
            elif isinstance(x, (list, tuple)):
                self.add(x)
            else:
                self(x)

    def newlabel(self, base="L"):
        self._lab += 1
        return "%s_%d" % (base, self._lab)

    def _cfg(self):
        ins = self.ins
        lab = {i.label: k for k, i in enumerate(ins) if i.kind == "label"}
        succ = [[] for _ in ins]
        calls = {}
        for k, i in enumerate(ins):
            if i.kind == "call":
                calls.setdefault(i.target, []).append(k + 1)
        cur = []
        for k, i in enumerate(ins):
            if i.kind == "label" and i.label in calls:
                pv = ins[k - 1]
                if pv.kind in ("ret", "end", "jump") or pv.mn == "s_branch":
                    cur = []
                cur = cur + [i.label]
            if i.kind == "end":
                continue
            if i.kind == "jump":
                succ[k] = [lab[t] for t in i.target]
                continue
            if i.kind == "ret":
                succ[k] = [t for c in cur for t in calls[c]]
                continue
            if i.kind == "call":
                succ[k] = [lab[i.target]]
                continue
            if i.kind == "branch":
                succ[k].append(lab[i.target])
                if i.mn == "s_branch":
                    continue
            if k + 1 < len(ins):
                succ[k].append(k + 1)
        pred = [[] for _ in ins]
        for k, s in enumerate(succ):
            for t in s:
                pred[t].append(k)
        return succ, pred

    @staticmethod
    def _parse_wait(i):
        vm = re.search(r"vmcnt\((\d+)\)", i.text)
        lg = re.search(r"lgkmcnt\((\d+)\)", i.text)
        return (int(vm.group(1)) if vm else None, int(lg.group(1)) if lg else None)

    def insert_waits(self):
        while True:
            succ, pred = self._cfg()
            ins = self.ins
            n = len(ins)
            IN = {(0, None): {}}
            work = [(0, None)]
            needc = {}

            def want(i, st):
                vm = lg = None
                for r in (i.rd | i.wr):
                    e = st.get(r)
                    if e is None:
                        continue
                    if e[0] == "vm":
                        if i.cnt == "vm" and r in i.wr and r not in i.rd:
                            continue
                        vm = e[1] if vm is None else min(vm, e[1])
                    elif e[0] == "lgkm":
                        if i.cnt == "lgkm" and r in i.wr and r not in i.rd:
                            continue
                        lg = e[1] if lg is None else min(lg, e[1])
                    else:
                        lg = 0
                if lg is not None and any(e[0] == "smem" for e in st.values()):
                    lg = 0
                if vm is not None:
                    vm = min(vm, 63)
                if lg is not None:
                    lg = min(lg, 15)
                return vm, lg

            def apply_wait(st, vm, lg):
                out = {}
                for r, e in st.items():
                    if e[0] == "vm" and vm is not None and e[1] >= vm:
                        continue
                    if e[0] == "lgkm" and lg is not None and e[1] >= lg:
                        continue
                    if e[0] == "smem" and lg == 0:
                        continue
                    out[r] = e
                return out

            while work:
                key = work.pop()
                k, ctx = key
                i = ins[k]
                st = IN[key]
                if i.kind == "wait":
                    st = apply_wait(st, *self._parse_wait(i))
                elif i.kind not in ("label", "dir"):
                    vm, lg = want(i, st)
                    if vm is not None or lg is not None:
                        needc[key] = (vm, lg)
                        st = apply_wait(st, vm, lg)
                    elif key in needc:
                        del needc[key]
                    if i.cnt:
                        cls = ("vm",) if i.cnt == "vm" else ("lgkm",)
                        st = {r: ((e[0], min(e[1] + 1, 99)) if e[0] in cls else e) for r, e in st.items()}
                        for r in i.wr:
                            st[r] = (i.cnt, 0)
                if i.kind == "call":
                    assert ctx is None, "nested call"
                    nxt = [(succ[k][0], k + 1)]
                elif i.kind == "ret":
                    nxt = [(ctx, None)]
                else:
                    nxt = [(t, ctx) for t in succ[k]]
                for t in nxt:
                    old = IN.get(t)
                    if old is None:
                        IN[t] = dict(st)
                        work.append(t)
                    else:
                        ch = False
                        for r, e in st.items():
                            o = old.get(r)
                            if o is None or (o[0] == e[0] and e[1] < o[1]):
                                old[r] = e
                                ch = True
                            elif o[0] != e[0]:
                                raise ValueError("mixed counters on %s at %s" % (r, ins[t[0]].text))
                        if ch:
                            work.append(t)
            need = {}
            mn = lambda x, y: y if x is None else (x if y is None else min(x, y))
            for (k, ctx), (vm, lg) in needc.items():
                o = need.get(k, (None, None))
                need[k] = (mn(o[0], vm), mn(o[1], lg))
            if not need:
                return
            out = []
            for k, i in enumerate(ins):
                if k in need:
                    vm, lg = need[k]
                    t = "s_waitcnt" + (" vmcnt(%d)" % vm if vm is not None else "") + (" lgkmcnt(%d)" % lg if lg is not None else "")
                    w = I(t)
                    w.auto = True
                    out.append(w)
                out.append(i)
            self.ins = out

    def insert_nops(self, verbose=False):
        total = 0
        while True:
            succ, pred = self._cfg()
            ins = self.ins
            add = {}
            for k, c in enumerate(ins):
                if c.kind in ("label", "dir", "nop", "wait", "end", "need"):
                    continue
                worst = 0
                stack = [(p, 0) for p in pred[k]]
                seen = {}
                while stack:
                    p, d = stack.pop()
                    if d >= 12 or seen.get(p, 99) <= d:
                        continue
                    seen[p] = d
                    pi = ins[p]
                    if pi.kind not in ("label", "dir", "nop", "wait", "need"):
                        worst = max(worst, need_states(pi, c) - d)
                    d2 = d + pi.states() + add.get(p, 0)
                    for q in pred[p]:
                        stack.append((q, d2))
                if worst > 0:
                    add[k] = worst
            if not add:
                return total
            out = []
            for k, i in enumerate(ins):
                if k in add:
                    w = I("s_nop %d" % (add[k] - 1))
                    w.auto = True
                    out.append(w)
                    total += 1
                    if verbose:
                        print("nop %d before %s" % (add[k], i.text))
                out.append(i)
            self.ins = out

    def finish(self, verbose=False):
        self.insert_waits()
        self.insert_nops(verbose)

    def text(self):
        out = []
        for i in self.ins:
            if i.kind == "need":
                continue
            if i.kind == "label" or i.kind == "dir":
                out.append(i.text)
            else:
                out.append("  " + i.text + (" ; auto" if i.auto else "") + (" ; " + i.note if i.note else ""))
        return "\n".join(out) + "\n"

    def maxreg(self, f):
        m = -1
        for i in self.ins:
            for r in (i.rd | i.wr):
                if isinstance(r, tuple) and r[0] == f:
                    m = max(m, r[1])
        return m


def rr(f, lo, n=1):
    return "%s%d" % (f, lo) if n == 1 else "%s[%d:%d]" % (f, lo, lo + n - 1)


def interleave(mfmas, slots):
    out = list(slots.get(-1, []))
    for k, m in enumerate(mfmas):
        out.append(m)
        out += slots.get(k, [])
    return out


def spread(items, lo, hi, slots):
    n = len(items)
    w = hi - lo + 1
    for k, it in enumerate(items):
        s = lo + (k * w) // n
        slots.setdefault(s, [])
        if isinstance(it, (list, tuple)):
            slots[s] += list(it)
        else:
            slots[s].append(it)


def kernel_text(name, prog, sgprs=102, force_vgpr=None):
    nv = prog.maxreg("v") + 1
    na = prog.maxreg("a") + 1
    acc = max(4, (nv + 3) // 4 * 4)
    tot = acc + na if na else nv
    if force_vgpr:
        tot = max(tot, force_vgpr)
    body = ".text\n.globl %s\n.p2align 8\n.type %s,@function\n%s:\n" % (name, name, name) + prog.text()
    desc = """.section .rodata,"a"
.p2align 6
.amdhsa_kernel %s
  .amdhsa_next_free_vgpr %d
  .amdhsa_next_free_sgpr %d
  .amdhsa_accum_offset %d
  .amdhsa_group_segment_fixed_size 0
  .amdhsa_kernarg_size 104
  .amdhsa_user_sgpr_count 2
  .amdhsa_user_sgpr_kernarg_segment_ptr 1
  .amdhsa_system_sgpr_workgroup_id_x 1
.end_amdhsa_kernel
""" % (name, tot, sgprs, acc)
    return body, desc


import os
STAMPS = bool(int(os.environ.get("STAMPS", "0")))
WS_STAMP = 200 << 20
class Stamper:
    def __init__(self, p, vreg, sreg=100, kid=0):
        self.p, self.v, self.s, self.n, self.kid = p, vreg, sreg, 0, kid
    def ins(self, n=None):
        if not STAMPS:
            return []
        if n is None:
            n = self.n
            self.n += 1
        if n >= 31:
            self.n = 31
            return []
        return ["s_memtime s[%d:%d]" % (self.s, self.s + 1), "s_memrealtime s[%d:%d]" % (self.s - 2, self.s - 1), "s_waitcnt lgkmcnt(0)",
                "v_writelane_b32 v%d, s%d, %d" % (self.v, self.s, n), "v_writelane_b32 v%d, s%d, %d" % (self.v, self.s - 2, 32 + n)]
    def __call__(self, n=None):
        self.p.add(self.ins(n))
    def dump(self, vtmp=1):
        if not STAMPS:
            return
        p = self.p
        if os.environ.get("DBGOUT"):
            sel = [0, 2, 3, 4, 5, 6, 7, 8, 10, 11, 12, 14, 15, 16, 17]
            p("s_cmp_lg_u32 s2, %s\ns_cbranch_scc1 L_nodbg" % os.environ["DBGOUT"])
            p("s_load_dwordx2 s[96:97], s[0:1], 88\ns_waitcnt lgkmcnt(0)\ns_mov_b32 s98, 256\ns_mov_b32 s99, 0x20000")
            p("v_readlane_b32 s94, v%d, 32" % self.v)
            for k, n in enumerate(sel):
                p("v_readlane_b32 s95, v%d, %d\ns_nop 3\ns_sub_u32 s95, s95, s94\nv_mov_b32 v%d, s95" % (self.v, 32 + n, vtmp))
                p("buffer_store_dword v%d, off, s[96:99], 0 offset:%d" % (vtmp, 4 + 4 * k))
            p("L_nodbg:")
            return
        p("s_memrealtime s[%d:%d]\ns_waitcnt lgkmcnt(0)\nv_writelane_b32 v%d, s%d, %d" % (self.s, self.s + 1, self.v, self.s, self.n))
        p("s_load_dwordx2 s[96:97], s[0:1], 96\ns_waitcnt lgkmcnt(0) vmcnt(0)")
        p("s_add_u32 s96, s96, 0x%x\ns_addc_u32 s97, s97, 0\ns_mov_b32 s98, 0x100000\ns_mov_b32 s99, 0x20000" % (WS_STAMP + (self.kid << 20)))
        p("v_lshlrev_b32 v%d, 2, v0\ns_lshl_b32 s95, s2, 10" % vtmp)
        p("buffer_store_dword v%d, v%d, s[96:99], s95 offen" % (self.v, vtmp))


def cost(t):
    i = t if isinstance(t, I) else I(t)
    if i.kind in ("label", "dir"):
        return 0
    if i.kind == "trans":
        return 8
    if i.kind == "branch":
        return 8
    if i.mn == "s_barrier":
        return 16
    return 4

def isv(t):
    i = t if isinstance(t, I) else I(t)
    return i.kind in ("valu", "trans")

class Gaps:
    def __init__(self, n, budget=24):
        self.n, self.budget = n, budget
        self.nv = [[] for _ in range(n)]
        self.va = [[] for _ in range(n)]
        self.post = [[] for _ in range(n)]
    def load(self, g):
        c = sum(cost(t) for t in self.nv[g])
        c = max(0, c - 4)
        c += sum(cost(t) for t in self.va[g])
        if self.post[g]:
            c += sum(cost(t) for t in self.post[g]) + (8 if self.va[g] else 0)
        return c
    def put(self, g, items, post=False):
        if not isinstance(items, (list, tuple)):
            items = [items]
        for t in items:
            if post:
                self.post[g].append(t)
            elif isv(t):
                self.va[g].append(t)
            else:
                self.nv[g].append(t)
    def spread(self, items, lo, hi):
        n, w = len(items), hi - lo + 1
        for k, it in enumerate(items):
            self.put(lo + (k * w) // n, it)
    def lightest(self, items, lo, hi):
        g = min(range(lo, hi + 1), key=lambda x: (len(self.nv[x]), x))
        self.put(g, items)
        return g
    def stream(self, items, lo, hi):
        for b in range(4, 200, 4):
            g, plan, ld = lo, [], {x: self.load(x) for x in range(lo, hi + 1)}
            ok = True
            for t in items:
                c = cost(t)
                while g <= hi and ld[g] + c > b:
                    g += 1
                if g > hi:
                    ok = False
                    break
                ld[g] += c
                plan.append(g)
            if ok:
                for g, t in zip(plan, items):
                    self.va[g].append(t)
                return plan[-1] if plan else lo
        raise ValueError("stream does not fit")
    def gap(self, g):
        return self.nv[g] + self.va[g] + self.post[g]
    def emit(self, mfmas, lo=0, hi=None):
        out = []
        for k in range(lo, self.n if hi is None else hi):
            out.append(mfmas[k])
            out += self.gap(k)
        return out
    def report(self):
        return [self.load(g) for g in range(self.n)]


class Gaps16(Gaps):
    def __init__(self, n):
        Gaps.__init__(self, n, 8)
    def load(self, g):
        c, ns = 0, 0
        for t in self.nv[g] + self.post[g]:
            i = t if isinstance(t, I) else I(t)
            if i.kind in ("label", "dir"):
                continue
            if i.kind == "ds":
                c += 4
            elif i.kind in ("dma", "vmem"):
                c += 8
            elif i.kind == "branch":
                c += 10
            elif i.mn == "s_barrier":
                c += 8
            else:
                ns += 1
        c += 4 * max(0, ns - 1)
        return c + sum(cost(t) for t in self.va[g])
    def stream(self, items, lo, hi):
        n, cs = len(items), [cost(t) for t in items]
        base = [self.load(g) for g in range(lo, hi + 1)]
        INF = float("inf")
        m = hi - lo + 1
        best = [[INF] * (n + 1) for _ in range(m + 1)]
        prev = [[0] * (n + 1) for _ in range(m + 1)]
        best[0][0] = 0
        for g in range(m):
            for a in range(n + 1):
                if best[g][a] == INF:
                    continue
                ld = base[g]
                for b in range(a, n + 1):
                    if b > a:
                        ld += cs[b - 1]
                    ov = max(0, ld - self.budget)
                    v = best[g][a] + ov + 0.001 * ov * ov
                    if v < best[g + 1][b]:
                        best[g + 1][b] = v
                        prev[g + 1][b] = a
                    if ov > 64:
                        break
        b = n
        for g in range(m, 0, -1):
            a = prev[g][b]
            self.va[lo + g - 1] += items[a:b]
            b = a
```

```python
from asmlib import *
from layout import *
from k_p1 import srd, x_rd_addr, w_rd_addr, MF
import os, struct

def f2u(x):
    return struct.unpack("<I", struct.pack("<f", x))[0]

NEG = 0xF149F2CA
THRESH = int(os.environ.get("THRESH", "0x5F800000"), 0)
BIAS = float(os.environ.get("BIAS", "40"))
QSCALE = f2u((128 ** -0.5) * 1.4426950408889634)
LOG2E = f2u(1.4426950408889634)
WT = os.environ.get("WT", "sc1")
PREFETCH = int(os.environ.get("PREFETCH", "3"))
NTW = os.environ.get("NTW", "nt")
WE = int(os.environ.get("WE", "10"))
CODEPF = int(os.environ.get("CODEPF", "1"))
WBL2 = int(os.environ.get("WBL2", "0"))
VERB = int(os.environ.get("VERB", "0"))
U = 16384
M16 = "v_mfma_f32_16x16x32_bf16"
u32 = lambda x: x & 0xffffffff

def L(f, *a, **k):
    q = Prog()
    f(q, *a, **k)
    return q.ins

def build_main():
    p = Prog()
    sX, sW, sW2, sO, sD, sBO = 4, 8, 12, 16, 20, 24
    sBF, sPhi, sY, sC, sKV = sW2, sO, sX, sW, sBO
    sH, sI, sWave, sW4, sT, sT2, sOff, sXcd, sIdx, sTB, sCB, sHi, sLo = range(28, 41)
    sM, sS, sKo, sRet, sTT, sL2, sSpin, sBo = 41, 44, 47, 48, 50, 51, 52, 53
    sRd, sGv, sG, sIt, sNb, sTriA, sTriB, sThr, sCnt, sCb = range(37, 47)
    sMask, sNext, sKeep, sW2k, sNlo, sCont = 54, 92, 93, 94, 95, 82
    sDa, sDb, sDc = 86, 87, 88
    P = 56
    ptr = lambda off: P + off // 4
    vLane = 1
    vX, vW, vXr, vWr = 2, 6, 10, 14
    vL16, t0, t1, t2, vDum, vStamp, vA = 22, 23, 24, 25, 26, 27, 28
    vGo = vA + 1
    vDma, vLim, vNeg, vKV, vB, vL, vOne, vM, vPoll, vU = 2, 3, 4, 5, 6, 8, 12, 16, 20, 232
    vMp = vA + 2
    RA, RB, RC, RD = 32, 96, 160, 224
    TMP, AW = 224, 240
    S = lambda par, j: 32 + par * 32 + j * 8
    CI = lambda j: 96 + j * 8
    PP = lambda par, j: 128 + par * 16 + j * 4
    Q = lambda j, ds: 160 + j * 16 + ds * 4
    O = lambda j, d: j * 32 + d * 4
    FB = lambda j: 128 + j * 4
    aXF, aVF, aRAW, aPA, aPK = 128, 144, 96, 192, 192
    tail = []
    ret = "s_setpc_b64 s[%d:%d]" % (sRet, sRet + 1)
    call = lambda lab: "s_call_b64 s[%d:%d], %s" % (sRet, sRet + 1, lab)

    def x_voffs(pitch, wsh=5):
        return ["v_lshrrev_b32 v%d, 3, v%d" % (t0, vLane),
                "s_lshl_b32 s%d, s%d, %d" % (sT, sWave, wsh),
                "v_add_u32 v%d, s%d, v%d" % (t0, sT, t0),
                "v_mul_u32_u24 v%d, %d, v%d" % (t0, pitch, t0),
                "v_lshrrev_b32 v%d, 4, v%d" % (t1, vLane),
                "v_and_b32 v%d, 7, v%d" % (t2, vLane),
                "v_xor_b32 v%d, v%d, v%d" % (t2, t2, t1),
                "v_lshl_add_u32 v%d, v%d, 4, v%d" % (vX, t2, t0),
                "v_xor_b32 v%d, 4, v%d" % (t2, t2),
                "v_lshl_add_u32 v%d, v%d, 4, v%d" % (vX + 1, t2, t0),
                "v_add_u32 v%d, %d, v%d" % (vX + 1, 8 * pitch - 1024, vX + 1),
                "v_add_u32 v%d, %d, v%d" % (vX + 2, 2 * (8 * pitch - 1024), vX),
                "v_add_u32 v%d, %d, v%d" % (vX + 3, 2 * (8 * pitch - 1024), vX + 1)]
    def w_voffs(pitch, m16):
        r = ["v_lshrrev_b32 v%d, 4, v%d" % (t0, vLane),
             "v_lshlrev_b32 v%d, 2, v%d" % (t1, t0),
             "s_lshl_b32 s%d, s%d, 4" % (sT, sWave),
             "v_add_u32 v%d, s%d, v%d" % (t0, sT, t0),
             "v_mul_u32_u24 v%d, %d, v%d" % (t0, pitch, t0),
             "v_and_b32 v%d, 15, v%d" % (t2, vLane),
             "v_xor_b32 v%d, v%d, v%d" % (t2, t2, t1),
             "v_lshl_add_u32 v%d, v%d, 4, v%d" % (vW, t2, t0)] + \
            ["v_add_u32 v%d, %d, v%d" % (vW + k, k * (4 * pitch - 1024), vW) for k in range(1, 4)]
        if m16:
            r += ["v_xor_b32 v%d, 32, v%d" % (vW + k, vW + k) for k in (2, 3)]
        return r
    def x_rd16(dst):
        return ["v_and_b32 v%d, 15, v%d" % (t0, vLane), "v_bfe_u32 v%d, v%d, 1, 3" % (t1, vLane), "v_lshrrev_b32 v%d, 4, v%d" % (dst, vLane),
                "v_xor_b32 v%d, v%d, v%d" % (dst, dst, t1), "v_lshlrev_b32 v%d, 4, v%d" % (dst, dst), "v_lshl_add_u32 v%d, v%d, 7, v%d" % (dst, t0, dst)]
    def w_rd16(dst):
        return ["v_bfe_u32 v%d, v%d, 2, 2" % (t0, vLane), "v_lshrrev_b32 v%d, 4, v%d" % (t1, vLane),
                "v_lshlrev_b32 v%d, 11, v%d" % (dst, t1), "v_lshl_add_u32 v%d, v%d, 8, v%d" % (dst, t0, dst), "v_lshl_add_u32 v%d, v%d, 6, v%d" % (dst, t0, dst),
                "v_and_b32 v%d, 1, v%d" % (t1, t1), "v_lshl_add_u32 v%d, v%d, 5, v%d" % (dst, t1, dst),
                "v_and_b32 v%d, 3, v%d" % (t0, vLane), "v_lshl_add_u32 v%d, v%d, 3, v%d" % (dst, t0, dst)]
    def dma(i, srdn, fl=""):
        v = vX if srdn == sX else vW
        return [["s_mov_b32 m0, s%d" % (sM + i)]] + \
               ["buffer_load_dwordx4 v%d, s[%d:%d], s%d offen offset:%d %s lds" % (v + q, srdn, srdn + 3, sS + i, q * 1024, fl) for q in range(4)]
    def put_dma(G, i, srdn, lo, hi, fl=""):
        d = dma(i, srdn, fl)
        G.put(lo, d[0])
        G.spread(d[1:], lo + 1, hi)
    def w_srd(q, d, which, col_s, total):
        q("s_lshl_b32 s%d, s%d, 8" % (sT, col_s))
        srd(q, d, ptr(which), off_s=sT)
        q("s_sub_u32 s%d, %d, s%d" % (d + 2, total, sT))
    def sw_XB(q):
        q("s_mul_i32 s%d, s%d, %d" % (sT, sTB, 128 * 1280))
        srd(q, sX, ptr(B_X), off_s=sT)
        q("s_cmp_lt_u32 s2, 240\ns_cselect_b32 s%d, %d, 0" % (sX + 2, 128 * 1280))
        q.add(x_voffs(1280))
    def sw_WB(q):
        w_srd(q, sW, B_WQKV, sCB, 640 * 3840)
        q("s_cmp_lt_u32 s2, 240\ns_cselect_b32 s%d, s%d, 0" % (sW + 2, sW + 2))
        q("s_mov_b64 s[%d:%d], s[%d:%d]\ns_mov_b32 s%d, s%d" % (sW2, sW2 + 1, sW, sW + 1, sW2 + 2, sW + 2))
        q.add(w_voffs(3840, 0))
    def sw_XQ(q):
        srd(q, sX, ptr(A_X), nrec=2048 * 1280)
    def sw_WQ(q):
        w_srd(q, sW, A_WQ, sH, 640 * 8192)
        q.add(w_voffs(8192, 1))

    class Plan:
        def __init__(s):
            s.vm, s.unit, s.free, s.when, s.now = [], {}, [], {}, 0
            s.pend = {"X": [], "W": []}
            s.job = {"X": "KV", "W": "KV"}
            for st in range(8):
                for g in range(2):
                    s.pend["X"].append((("KX", st, g), "KV", st, str(g * 256 * 1024 + st * 128), ((2 * st) % 5) * 2 + g))
                    s.pend["W"].append((("KW", st, g), "KV", st, str(st * 64 * 8192), ((2 * st + 1) % 5) * 2 + g))
            for b in range(10):
                s.pend["X"].append((("BX", b), "B", 8 + b, str(b * 128), None))
                s.pend["W"].append((("BW", b), "B", 8 + b, str(b * 64 * 3840), None))
            for st in range(10):
                s.pend["X"].append((("QX", st, 0), "Q", 18 + st, (sHi, st * 128), None))
                s.pend["X"].append((("QX", st, 1), "Q", 18 + st, (sLo, st * 128), None))
                s.pend["W"].append((("QW", st), "Q", 18 + st, str(st * 64 * 8192), None))
            s.free = list(range(10))
        def copy(s):
            import copy
            return copy.deepcopy(s)
        def take(s, ty, i):
            oth = "W" if ty == "X" else "X"
            pre = []
            c = s.pend[ty][0] if s.pend[ty] else None
            if c is not None:
                if c[4] is not None:
                    ok = c[4] in s.free
                else:
                    resv = {g[4] for t in "XW" for g in s.pend[t] if g[4] is not None}
                    av = [x for x in s.free if x not in resv]
                    ok = len(av) - 1 >= sum(1 for g in s.pend[oth] if g[2] < c[2] and g[4] is None)
                if not ok:
                    c = None
            if c is None:
                return ["s_mov_b32 s%d, 0x30000" % (sM + i), "s_brev_b32 s%d, 1" % (sS + i)], None
            s.pend[ty].pop(0)
            un = c[4] if c[4] is not None else av[0]
            s.free.remove(un)
            s.unit[c[0]] = un
            s.when[c[0]] = s.now
            if c[1] != s.job[ty]:
                s.job[ty] = c[1]
                pre += L({"XB": sw_XB, "WB": sw_WB, "XQ": sw_XQ, "WQ": sw_WQ}[ty + c[1]])
            pre.append("s_add_u32 s%d, s%d, 0x%x" % (sM + i, sW4, un * U))
            if isinstance(c[3], tuple):
                pre.append("s_add_u32 s%d, s%d, %d" % (sS + i, c[3][0], c[3][1]))
            else:
                pre.append("s_mov_b32 s%d, %s" % (sS + i, c[3]))
            return pre, c[0]
        def issue(s, tag, n=4):
            s.vm += [tag] * n
        def hook(s, ins, tag="h"):
            for t in ins:
                i = t if isinstance(t, I) else I(t)
                if i.cnt == "vm":
                    s.vm.append(tag)
        def barrier(s, need, free, dt):
            last = max(max(k for k, t in enumerate(s.vm) if t == n) for n in need) if need else -1
            N = len(s.vm) - 1 - last
            if VERB:
                print("barrier need", need, "N", N, "flight", [s.now - s.when[n] for n in need if n in s.when])
            for f in free:
                s.free.append(s.unit[f])
            s.now += dt
            s.done = last
            return ["s_waitcnt %slgkmcnt(0)" % ("vmcnt(%d) " % min(N, 63) if need else ""), "s_barrier"]
        def complete(s, tag):
            return max(k for k, t in enumerate(s.vm) if t == tag) <= s.done
    pl = Plan()

    def pf_lin(which, total, k):
        share = total // 32
        return ["s_mul_i32 s%d, s%d, %d" % (sT, sIdx, share), "s_lshl_b32 s%d, s%d, 13" % (sT2, sWave), "s_add_u32 s%d, s%d, s%d" % (sT, sT, sT2),
                "s_add_u32 s%d, s%d, %d" % (sT, sT, k * 32768),
                "v_lshl_add_u32 v%d, v%d, 7, s%d" % (t0, vLane, sT), "v_min_u32 v%d, %d, v%d" % (t0, total - 128, t0),
                "global_load_dword v%d, v%d, s[%d:%d]" % (vDum, t0, ptr(which), ptr(which) + 1)]
    def pf_w(which, rows):
        share = rows // 32
        return ["s_mul_i32 s%d, s%d, %d" % (sT, sIdx, share), "s_lshl_b32 s%d, s%d, 3" % (sT2, sWave), "s_add_u32 s%d, s%d, s%d" % (sT, sT, sT2),
                "v_lshrrev_b32 v%d, 3, v%d" % (t0, vLane), "v_add_u32 v%d, s%d, v%d" % (t0, sT, t0), "v_min_u32 v%d, %d, v%d" % (t0, rows - 1, t0),
                "v_lshlrev_b32 v%d, 13, v%d" % (t0, t0), "v_and_b32 v%d, 7, v%d" % (t1, vLane), "v_lshl_add_u32 v%d, v%d, 7, v%d" % (t0, t1, t0),
                "s_lshl_b32 s%d, s%d, 10" % (sT, sXcd), "v_add_u32 v%d, s%d, v%d" % (t0, sT, t0),
                "global_load_dword v%d, v%d, s[%d:%d]" % (vDum, t0, ptr(which), ptr(which) + 1)]
    def pf_bx():
        return ["s_mul_i32 s%d, s%d, %d" % (sT, sXcd, 256 * 1280), "s_mul_i32 s%d, s%d, 10240" % (sT2, sIdx), "s_add_u32 s%d, s%d, s%d" % (sT, sT, sT2),
                "v_lshlrev_b32 v%d, 7, v0" % t0, "v_min_u32 v%d, %d, v%d" % (t0, 10240 - 128, t0), "v_add_u32 v%d, s%d, v%d" % (t0, sT, t0),
                "global_load_dword v%d, v%d, s[%d:%d]" % (vDum, t0, ptr(B_X), ptr(B_X) + 1)]

    def extra(ty, keep):
        if len(pl.free) <= keep:
            return []
        pre, tag = pl.take(ty, 2)
        if tag is None:
            return []
        pl.issue(tag)
        d = dma(2, sX if ty == "X" else sW)
        return pre + d[0] + d[1:]
    def skel(last_mf, bar, mf, custom, target, NP=2):
        if last_mf:
            p(last_mf)
        p.add(bar)
        n = len(custom)
        for k in range(NP):
            p.add([mf[k]] + custom[k * n // NP:(k + 1) * n // NP])
        p(call(target))
    def body(name, G, mf, entries=None, NP=2):
        out = ["%s:" % name]
        for k in range(NP, G.n - 1):
            if entries and k in entries:
                out.append("%s:" % entries[k])
            out += [mf[k]] + G.gap(k)
        assert not any(G.gap(k) for k in list(range(NP)) + [G.n - 1])
        tail.extend(out + [ret])
    v2 = lambda r: rr("v", r, 2)
    bsel = lambda b, pos, n: "op_sel:[%s] op_sel_hi:[%s]" % (",".join(str(b & 1) if k == pos else "0" for k in range(n)), ",".join(str(b & 1) if k == pos else "1" for k in range(n)))
    pk_mulb = lambda d, a, b: "v_pk_mul_f32 %s, %s, %s %s" % (v2(d), v2(a), v2(b & ~1), bsel(b, 1, 2))
    pk_subb = lambda d, a, b: "v_pk_add_f32 %s, %s, %s %s neg_lo:[0,1] neg_hi:[0,1]" % (v2(d), v2(a), v2(b & ~1), bsel(b, 1, 2))
    pk_fmab = lambda d, a, b, c: "v_pk_fma_f32 %s, %s, %s, %s %s" % (v2(d), v2(a), v2(b & ~1), v2(c), bsel(b, 1, 3))
    pk_add = lambda d, a, b: "v_pk_add_f32 %s, %s, %s" % (v2(d), v2(a), v2(b))
    def pack_tile(src, dst):
        return ["v_cvt_pk_bf16_f32 v%d, v%d, v%d" % (dst + k, src + 2 * k, src + 2 * k + 1) for k in range(8)]
    FULL = int(os.environ.get("FULL", "1"))
    def publish(val):
        lab = p.newlabel("M_pub")
        return ["s_cmp_lg_u32 s%d, 0" % sWave, "s_cbranch_scc1 %s" % lab,
                "s_lshl_b32 s%d, s2, 7" % sT, "v_mov_b32 v%d, %d" % (t0, val), "v_lshlrev_b32 v%d, 2, v%d" % (t1, vLane),
                "s_mov_b32 exec_hi, 0" if FULL else "s_mov_b64 exec, 1",
                "buffer_store_dword v%d, v%d, s[%d:%d], s%d offen sc1" % (t0, t1, sD, sD + 3, sT),
                "s_mov_b64 exec, -1", "%s:" % lab]
    def poll_load(kind):
        if kind == "go":
            return ["v_mov_b32 v%d, 0" % t0, "global_load_dword v%d, v%d, s[%d:%d] sc1" % (vGo, t0, ptr(D_DBG), ptr(D_DBG) + 1)]
        if kind == 2:
            r = ["v_min_u32 v%d, 29, v%d" % (t0, vLane), "v_lshlrev_b32 v%d, 10, v%d" % (t0, t0), "s_lshl_b32 s%d, s%d, 7" % (sT, sXcd)]
        elif kind in (1, "KV"):
            r = ["v_and_b32 v%d, 7, v%d" % (t0, vLane), "v_lshlrev_b32 v%d, 10, v%d" % (t0, t0), "s_andn2_b32 s%d, s2, 0x38" % sT, "s_lshl_b32 s%d, s%d, 7" % (sT, sT)]
        elif kind in ("A", "B", 7, 3):
            return ["buffer_load_dword v%d, v%d, s[%d:%d], 0 offen sc1" % (vDum, vPoll, sD, sD + 3)]
        else:
            r = ["v_and_b32 v%d, 7, v%d" % (t0, vLane), "v_lshlrev_b32 v%d, 7, v%d" % (t0, t0), "s_lshl_b32 s%d, s%d, 10" % (sT, sIdx)]
        return r + ["buffer_load_dword v%d, v%d, s[%d:%d], s%d offen sc1" % (vKV if kind == "KV" else vDum, t0, sD, sD + 3, sT)]
    def poll_check(kind, lvl=None):
        lab = p.newlabel("M_poll")
        chk = ["v_cmp_gt_u32 vcc, %s, v%d" % (("1", vGo) if kind == "go" else (("v%d" % (vPoll + 1), vDum) if kind in ("A", "B", 3) else (str(lvl or kind), vDum)))]
        if kind == "KV":
            chk = ["v_cmp_gt_u32 vcc, %d, v%d" % (lvl, vKV)]
        tail.extend(["%s:" % lab, "s_mov_b32 s%d, 0x40000" % sSpin, "%s_l:" % lab, "s_sleep 1"] + poll_load(kind) + ["s_waitcnt vmcnt(0)"] + chk +
                    ["s_cbranch_vccz %s_r" % lab, "s_sub_u32 s%d, s%d, 1" % (sSpin, sSpin), "s_cbranch_scc0 %s_l" % lab, "s_branch %s_r" % lab])
        if kind in ("KV", 3):
            c = I(chk[0])
            c.rd = set()
            chk = ["s_waitcnt vmcnt(8)", c]
        return chk + ["s_cbranch_vccnz %s" % lab, "%s_r:" % lab]
    def pf(which, total, first, nlines):
        return ["s_lshl_b32 s%d, s2, 2" % sT, "s_add_u32 s%d, s%d, s%d" % (sT, sT, sWave), "s_mul_i32 s%d, s%d, %d" % (sT, sT, nlines),
                "s_add_u32 s%d, s%d, %d" % (sT, sT, first), "v_min_u32 v%d, %d, v%d" % (t0, nlines - 1, vLane), "v_add_u32 v%d, s%d, v%d" % (t0, sT, t0),
                "v_min_u32 v%d, %d, v%d" % (t0, total // 128 - 1, t0), "v_lshlrev_b32 v%d, 7, v%d" % (t0, t0),
                "global_load_dword v%d, v%d, s[%d:%d]" % (vDum, t0, ptr(which), ptr(which) + 1)]

    sPC0 = 96
    def code_touch(dst, mode):
        if not (CODEPF & mode):
            return []
        return ["s_lshl_b32 s%d, s%d, 2" % (sT, sIdx), "s_add_u32 s%d, s%d, s%d" % (sT, sT, sWave), "s_lshl_b32 s%d, s%d, 9" % (sT, sT),
                "v_and_b32 v%d, 3, v%d" % (t0, vLane), "v_lshl_add_u32 v%d, v%d, 7, s%d" % (t0, t0, sT), "v_min_u32 v%d, M_codeend-M_pc0-4, v%d" % (t0, t0),
                "global_load_dword v%d, v%d, s[%d:%d]" % (dst, t0, sPC0, sPC0 + 1)]
    p("s_cmp_ge_u32 s2, 256\ns_cbranch_scc1 M_exit")
    p("s_getpc_b64 s[%d:%d]\nM_pc0:" % (sPC0, sPC0 + 1))
    p("s_load_dwordx16 s[%d:%d], s[0:1], 0" % (P, P + 15))
    p("s_load_dwordx8 s[%d:%d], s[0:1], 64" % (P + 16, P + 23))
    p("s_load_dwordx2 s[%d:%d], s[0:1], 96" % (P + 24, P + 25))
    st_ = Stamper(p, vStamp, kid=0)
    p("v_and_b32 v%d, 63, v0" % vLane)
    p("v_lshrrev_b32 v%d, 6, v0" % t0)
    p("v_readfirstlane_b32 s%d, v%d" % (sWave, t0))
    p("s_and_b32 s%d, s2, 7" % sXcd)
    p("s_lshr_b32 s%d, s2, 3" % sIdx)
    p("s_lshl_b32 s%d, s%d, 12" % (sW4, sWave))
    p("s_lshl_b32 s%d, s%d, 2" % (sH, sXcd))
    p("s_lshr_b32 s%d, s%d, 3" % (sT, sIdx))
    p("s_add_u32 s%d, s%d, s%d" % (sH, sH, sT))
    p("s_and_b32 s%d, s%d, 7" % (sI, sIdx))
    p.add(code_touch(vDum, 1))
    pl.hook(code_touch(vDum, 1))
    p.add(x_voffs(1024, 9))
    p.add(w_voffs(8192, 1))
    p("s_waitcnt lgkmcnt(0)")
    st_()
    srd(p, sD, ptr(D_WS), off_imm=WS_FL, nrec=32768)
    p("s_cmp_lg_u32 s2, 255\ns_cbranch_scc1 M_nolead")
    p("v_lshlrev_b32 v%d, 7, v0\nv_mov_b32 v%d, 0" % (t0, t1))
    p("buffer_store_dword v%d, v%d, s[%d:%d], 0 offen sc1" % (t1, t0, sD, sD + 3))
    p("M_nolead:")
    p("s_lshl_b32 s%d, s%d, 15" % (sT, sI))
    srd(p, sX, ptr(A_CKV), off_s=sT)
    p("s_sub_u32 s%d, 0x200000, s%d" % (sX + 2, sT))
    w_srd(p, sW, A_WUK, sH, 512 * 8192)
    w_srd(p, sW2, A_WUV, sH, 512 * 8192)
    for ty in "XWXW":
        for g in range(2):
            pre, tag = pl.take(ty, 0)
            p.add(pre + dma(0, sX if ty == "X" else (sW, sW2)[g], "" if ty == "X" else NTW))
            pl.issue(tag)
    p.add(x_rd16(vXr))
    p("s_lshr_b32 s%d, s%d, 1" % (sT, sWave))
    p("s_lshl_b32 s%d, s%d, 14" % (sT, sT))
    p("v_add_u32 v%d, s%d, v%d" % (vXr, sT, vXr))
    p("v_xor_b32 v%d, 64, v%d" % (vXr + 1, vXr))
    p("s_lshl_b32 s%d, s%d, 3" % (sKo, sT))
    p.add(w_rd16(vWr))
    p("s_and_b32 s%d, s%d, 1" % (sT, sWave))
    p("s_lshl_b32 s%d, s%d, 7" % (sT, sT))
    p("s_add_u32 s%d, s%d, 0x%x" % (sT, sT, 2 * U))
    p("v_xor_b32 v%d, s%d, v%d" % (vWr, sT, vWr))
    for c in range(1, 4):
        p("v_xor_b32 v%d, %d, v%d" % (vWr + c, c * 32, vWr))
    p("v_lshlrev_b32 v%d, 4, v%d" % (vL16, vLane))
    def phi_ld(q):
        q("s_mul_i32 s%d, s%d, 800" % (sT, sIdx))
        srd(q, sPhi, ptr(B_WPHI), off_s=sT, nrec=800)
        q("v_subrev_u32 v%d, 480, v%d" % (t0, vL16))
        q("buffer_load_dwordx4 %s, v%d, s[%d:%d], 0 offen" % (rr("a", aRAW, 4), t0, sPhi, sPhi + 3))
        q("buffer_load_dwordx4 %s, v%d, s[%d:%d], 0 offen offset:544" % (rr("a", aRAW + 4, 4), vL16, sPhi, sPhi + 3))
    p("s_lshl_b32 s%d, s%d, 1" % (sTB, sXcd))
    p("s_cmp_ge_u32 s%d, 15" % sIdx)
    p("s_cselect_b32 s%d, 15, 0" % sT)
    p("s_addc_u32 s%d, s%d, 0" % (sTB, sTB))
    p("s_sub_u32 s%d, s%d, s%d" % (sCB, sIdx, sT))
    p("s_mul_i32 s%d, s%d, %d" % (sLo, sI, 128 * 1280))
    p("s_sub_u32 s%d, %d, s%d" % (sHi, 15 * 128 * 1280, sLo))

    fx = lambda st, i: 128 + st * 64 + i * 4
    fw = lambda st, i: 128 + st * 64 + 32 + i * 4
    def kvreg(mat, n):
        if mat == 0:
            return ("v", RB + 16 * n if n < 4 else RA + 16 * (n - 4))
        return ("v", RC + 16 * n) if n < 4 else (("v", RD + 16 * (n - 4)) if n < 6 else ("a", 16 * (n - 6)))
    def kv_reads(st):
        X = ["ds_read_b128 %s, v%d offset:%d" % (rr("a", fx(st, i), 4), vXr + st, i * 2048) for i in range(8)]
        W = ["ds_read_b64_tr_b16 %s, v%d offset:%d" % (rr("a", fw(st, i) + 2 * u, 2), vWr + (i & 3), (i >> 2) * U + st * 8192 + u * 1024) for i in range(8) for u in range(2)]
        return X[:2] + W[:8] + X[2:] + W[8:]
    def kv_mf(st, zero=False):
        r = []
        for mat in range(2):
            for n in range(8):
                f, b0 = kvreg(mat, n)
                for e in range(4):
                    a = rr(f, b0 + 4 * e, 4)
                    tt, cc = (e & 1, e >> 1) if mat else (e >> 1, e & 1)
                    X, W = rr("a", fx(st, 2 * (n >> 1) + tt), 4), rr("a", fw(st, mat * 4 + 2 * (n & 1) + cc), 4)
                    A, B = (X, W) if mat else (W, X)
                    r.append("%s %s, %s, %s, %s" % (M16, a, A, B, "0" if zero else a))
        return r
    WL = "s_waitcnt lgkmcnt(0)"
    mfA, mfB = kv_mf(1), kv_mf(0)
    NK = 6
    G = Gaps16(64)
    G.spread(kv_reads(0), NK, 55)
    put_dma(G, 0, sW, NK, 21, NTW); put_dma(G, 1, sW2, 22, 35, NTW)
    body("M_kvA", G, mfA, NP=NK)
    G = Gaps16(64)
    G.spread(kv_reads(1), NK, 55)
    put_dma(G, 0, sX, NK, 32); put_dma(G, 1, sX, 33, 57)
    sadd = lambda regs, sd: ["v_add_u32 v%d, s%d, v%d" % (r, sd, r) for r in regs]
    kv_upd = sadd([vXr, vXr + 1], sDa) + sadd([vWr + c for c in range(4)], sDb)
    G.spread(kv_upd, 58, 62)
    kv_del = lambda s: ["s_mov_b32 s%d, 0x%x" % (sDa, u32((((2 * s) % 5) - ((2 * s - 2) % 5)) * 2 * U)), "s_mov_b32 s%d, 0x%x" % (sDb, u32((((2 * s + 1) % 5) - ((2 * s - 1) % 5)) * 2 * U))]
    body("M_kvB", G, mfB, NP=NK)
    KVs = lambda s: [("KX", s, 0), ("KX", s, 1), ("KW", s, 0), ("KW", s, 1)]
    st_()
    p.add(pl.barrier(KVs(0), [], 1024))
    st_()
    p.add(kv_reads(0))
    p("s_cmp_lg_u32 s2, 255\ns_cbranch_scc1 M_nolead2\ns_cmp_lg_u32 s%d, 0\ns_cbranch_scc1 M_nolead2" % sWave)
    p("v_mov_b32 v%d, 0\nv_mov_b32 v%d, 1\ns_mov_b64 exec, 1" % (t0, t1))
    p("global_store_dword v%d, v%d, s[%d:%d] sc1" % (t0, t1, ptr(D_DBG), ptr(D_DBG) + 1))
    p("s_mov_b64 exec, -1\nM_nolead2:")
    p(WL)
    G = Gaps16(64)
    G.spread(kv_reads(1), 0, 47)
    for i in range(2):
        pre, tag = pl.take("X", i)
        G.put(0, pre)
        pl.issue(tag)
        put_dma(G, i, sX, 1 + 13 * i, 13 + 13 * i)
    G.put(50, kv_del(1))
    G.spread(kv_upd, 60, 62)
    z = kv_mf(0, zero=True)
    p.add(G.emit(z, 0, 63))
    last = z[63]
    PN = int(os.environ.get("PN", "2"))
    arrs = [(B_WQKV, 640 * 3840, 0), (B_X, 2048 * 1280, 0), (A_X, 2048 * 1280, 0), (A_WQ, 640 * 8192, 0), (A_WQ, 640 * 8192, 20480)]
    if PREFETCH == 2:
        arrs += [(A_WO, 4096 * 1280, 0), (A_WO, 4096 * 1280, 20480)]
    hooks = [[] for _ in range(8)]
    hooksA = [[] for _ in range(9)]
    if PREFETCH:
        for k, (w_, tot, first) in enumerate(arrs):
            if PN == 1:
                hooks[k + 1] = pf(w_, tot, first, 20)
            else:
                hooks[k + 1] = pf(w_, tot, first, 10)
                hooksA[k + 2] = pf(w_, tot, first + 10240, 10)
    if PREFETCH == 5:
        hooks = [[] for _ in range(8)]
        hooksA = [[] for _ in range(9)]
        seq = [(B_WQKV, 640 * 3840, 0, 10), (B_X, 2048 * 1280, 0, 10), (B_WQKV, 640 * 3840, 10240, 10), (B_X, 2048 * 1280, 10240, 10), (A_X, 2048 * 1280, 0, 10),
               (A_WQ, 640 * 8192, 0, 10), (A_WQ, 640 * 8192, 10240, 10), (A_X, 2048 * 1280, 10240, 10), (A_WQ, 640 * 8192, 20480, 10), (A_WQ, 640 * 8192, 30720, 10),
               (A_WO, 4096 * 1280, 0, 14), (A_WO, 4096 * 1280, 14336, 13), (A_WO, 4096 * 1280, 27648, 13)]
        for k, x in enumerate(seq):
            (hooks if k & 1 else hooksA)[k // 2 + 1] = pf(*x)
    XS = 4 * 2560
    def xsetup(q, srdn, va, vb):
        q("s_and_b32 s%d, s%d, 1" % (sT, sXcd))
        q("s_lshl_b32 s%d, s%d, 5" % (sT, sT))
        q("s_add_u32 s%d, s%d, s%d" % (sT, sT, sIdx))
        q("s_mul_i32 s%d, s%d, %d" % (sT, sT, 16 * XS))
        srd(q, srdn, ptr(D_WS), off_s=sT, off_imm=WS_XB, nrec=16 * XS)
        q("s_mul_i32 s%d, s%d, 2560" % (sT, sWave))
        q("v_add_u32 v%d, s%d, v%d" % (va, sT, vL16))
        q("v_lshl_add_u32 v%d, v%d, 3, s%d" % (vb, vLane, sT))
    def xfer(q, op, qq, srdn, va, vb, regs, f="v"):
        q("s_lshr_b32 s%d, s%d, 1" % (sT2, sXcd))
        q("s_xor_b32 s%d, s%d, %d" % (sT, sT2, qq))
        q("s_lshl2_add_u32 s%d, s%d, s%d" % ((sT, sT, sT2) if op == "store" else (sT, sT2, sT)))
        q("s_mul_i32 s%d, s%d, %d" % (sT, sT, XS))
        for k in range(2):
            q("buffer_%s_dwordx4 %s, v%d, s[%d:%d], s%d offen offset:%d %s" % (op, rr(f, regs[k], 4), va, srdn, srdn + 3, sT, k * 1024, WT))
        q("buffer_%s_dwordx2 %s, v%d, s[%d:%d], s%d offen offset:2048 %s" % (op, rr(f, regs[2], 2), vb, srdn, srdn + 3, sT, WT))
    def xclear0(q):
        xsetup(q, sO, vKV, vA)
        for k in range(4):
            q("v_accvgpr_write_b32 a%d, -1" % (248 + k))
    xclear = lambda qq: L(xfer, "store", qq, sO, vKV, vA, (248, 248, 248), "a")
    hooks[7 if PREFETCH != 2 else 6] += L(phi_ld)
    hooks[6] = hooks[6] + poll_load("go")
    def upd(regs, d):
        return ["v_add_u32 v%d, 0x%x, v%d" % (r, u32(d), r) for r in regs]
    for s in range(1, 8):
        bar = pl.barrier(KVs(s), KVs(s - 1), 2048)
        cu = list(hooksA[s])
        pl.hook(cu)
        tags = []
        for i in range(2):
            pre, tag = pl.take("W", i)
            cu += pre
            tags.append(tag)
        for t in tags:
            pl.issue(t)
        if os.environ.get("FINEK"): st_()
        skel(last, bar, mfA, cu, "M_kvA", NK)
        if os.environ.get("FINEK"): st_()
        cu = list(hooks[s])
        pl.hook(cu)
        tags = []
        for i in range(2):
            pre, tag = pl.take("X", i)
            cu += pre
            tags.append(tag)
        for t in tags:
            pl.issue(t)
        skel(mfA[63], [WL], mfB, cu + kv_del(s + 1), "M_kvB", NK)
        last = mfB[63]
    st_()

    bfx = lambda st, k, i: 128 + st * 32 + k * 16 + i * 4
    bfw = lambda st, k, i: 128 + st * 32 + k * 16 + 8 + i * 4
    def b_reads(st):
        r = []
        for k in range(2):
            ks = st * 2 + k
            for i in range(2):
                r.append("ds_read_b128 %s, v%d offset:%d" % (rr("a", bfx(st, k, i), 4), vXr + ks, i * 4096))
                for u in range(2):
                    r.append("ds_read_b64_tr_b16 %s, v%d offset:%d" % (rr("a", bfw(st, k, i) + 2 * u, 2), vWr + i, ks * 4096 + u * 1024))
        return r
    def b_mf(var, st, zero=False):
        mf = []
        for k in range(2):
            for b in range(2):
                for c in range(2):
                    a = rr("v", RA + (b * 2 + c) * 16, 16)
                    X, W = rr("a", bfx(st, k, b), 4), rr("a", bfw(st, k, c), 4)
                    A, B = (X, W) if var else (W, X)
                    mf.append("%s %s, %s, %s, %s" % (MF, a, A, B, "0" if (zero and k == 0) else a))
        return mf
    def kv_pack(mat, n):
        f, b0 = kvreg(mat, n)
        dst = (RC if mat else RB) + 8 * n
        if f == "v":
            return pack_tile(b0, dst)
        return ["v_accvgpr_read_b32 v%d, a%d" % (RD + k, b0 + k) for k in range(16)] + pack_tile(RD, dst)
    def kv_store(mat, n):
        f, reg = ("v", (RC if mat else RB) + 8 * n) if n < 4 else ("a", aPK + (mat * 4 + n - 4) * 8)
        if mat == 0 and n in (2, 3):
            f, reg = "a", 104 + 8 * (n - 2)
        st = lambda m, so, imm: "buffer_store_dwordx4 %s, v%d, s[%d:%d], s%d offen offset:%d %s" % (rr(f, reg + 4 * m, 4), vL16, sO, sO + 3, so, imm, WT)
        if mat:
            return ["s_and_b32 s%d, s%d, 0x1000" % (sOff, sW4), "s_add_u32 s%d, s%d, s%d" % (sOff, sOff, sKo), "s_add_u32 s%d, s%d, 0x%x" % (sOff, sOff, (n >> 1) * 16 * U + 8192),
                    st(0, sOff, (n & 1) * 2048), st(1, sOff, (n & 1) * 2048 + 1024)]
        return ["s_lshr_b32 s%d, s%d, 1" % (sOff, sW4), "s_and_b32 s%d, s%d, 0x800" % (sOff, sOff), "s_add_u32 s%d, s%d, s%d" % (sOff, sOff, sKo), "s_add_u32 s%d, s%d, 0x%x" % (sOff, sOff, (n >> 1) * 16 * U),
                st(0, sOff, (n & 1) * 1024), "s_addk_i32 s%d, 0x1000" % sOff, st(1, sOff, (n & 1) * 1024)]
    def b_store(t):
        return ["s_add_u32 s%d, s%d, 0x%x" % (sOff, sBo, (t >> 1) * 120 * 1024)] + \
               ["buffer_store_dwordx4 %s, v%d, s[%d:%d], s%d offen offset:%d %s" % (rr("v", RD + 8 * t + 4 * m, 4), vL16, sBO, sBO + 3, sOff, (t & 1) * 2048 + m * 1024, WT) for m in range(2)]
    Bs = lambda b: [("BX", b), ("BW", b)]
    Qs = lambda s: [("QX", s, 0), ("QX", s, 1), ("QW", s)]
    p(last)
    p.add(pl.barrier(Bs(0), KVs(7), 1280))
    def baddr(q):
        x_rd_addr(q, vXr, vLane, t0, t1)
        q("s_lshr_b32 s%d, s%d, 1" % (sT, sWave))
        q("s_lshl_b32 s%d, s%d, 13" % (sT, sT))
        q("s_add_u32 s%d, s%d, 0x%x" % (sT, sT, pl.unit[("BX", 0)] * U))
        for ks in range(4):
            q("v_add_u32 v%d, s%d, v%d" % (vXr + ks, sT, vXr + ks))
        q("s_and_b32 s%d, s%d, 1" % (sT, sWave))
        q("s_lshl_b32 s%d, s%d, 1" % (sT, sT))
        q("v_mov_b32 v%d, s%d" % (t2, sT))
        w_rd_addr(q, vWr, vLane, t0, t1, t2)
        q("v_add_u32 v%d, 0x%x, v%d" % (vWr, pl.unit[("BW", 0)] * U, vWr))
        q("v_xor_b32 v%d, 64, v%d" % (vWr + 1, vWr))
        q("s_lshl_b32 s%d, s%d, 20" % (sT, sH))
        q("s_lshl_b32 s%d, s%d, 14" % (sT2, sI))
        q("s_add_u32 s%d, s%d, s%d" % (sT, sT, sT2))
        srd(q, sO, ptr(D_WS), off_s=sT, off_imm=WS_KV)
        q("s_sub_u32 s%d, 0x100000, s%d" % (sO + 2, sT2))
    G = Gaps16(64)
    ba = L(baddr)
    for k in range(16):
        G.put(k, ba[k * len(ba) // 16:(k + 1) * len(ba) // 16], post=True)
    for i, ty in enumerate("WWX"):
        pre, tag = pl.take(ty, i)
        assert len(pre) == 2
        G.put(0, pre)
        pl.issue(tag)
        put_dma(G, i, sW if ty == "W" else sX, 1 + 20 * i, 20 + 20 * i)
    G.spread(b_reads(0), 20, 56)
    G.stream([x for n in range(8) for x in kv_pack(0, n)], 16, 49)
    G.stream([x for n in range(3) for x in kv_pack(1, n)], 50, 63)
    p.add(G.emit(kv_mf(1)))
    p(WL)
    p("s_cmp_ge_u32 s%d, 10\ns_cbranch_scc1 M_bv" % sCB)
    pl0 = pl
    qfx = lambda st, i: st * 48 + i * 4
    qfw = lambda st, i: st * 48 + 16 + i * 4
    qacc = lambda j, d: RA + j * 32 + d * 4
    def q_reads(st):
        X = ["ds_read_b128 %s, v%d offset:%d" % (rr("a", qfx(st, j), 4), vXr + 2 * (j >> 1) + st, (j & 1) * 2048) for j in (2, 3, 0, 1)]
        W = ["ds_read_b64_tr_b16 %s, v%d offset:%d" % (rr("a", qfw(st, i) + 2 * u, 2), vWr + i, st * 8192 + u * 1024) for i in range(8) for u in range(2)]
        return X[:2] + W + X[2:]
    def q_derive():
        return ["v_xor_b32 v%d, 64, v%d" % (vXr + 1, vXr), "v_xor_b32 v%d, 64, v%d" % (vXr + 3, vXr + 2)] + \
               ["v_xor_b32 v%d, %d, v%d" % (vWr + c, c * 32, vWr) for c in range(1, 8)]
    for var in range(2):
        pl = pl0.copy()
        if var:
            p("M_bv:")
        mfb = b_mf(var, 1) + b_mf(var, 0)
        G = Gaps(16)
        G.spread(b_reads(0), 2, 6); G.put(7, WL); G.spread(b_reads(1), 8, 13)
        put_dma(G, 0, sW, 2, 8); put_dma(G, 1, sX, 9, 14)
        body("M_b%d" % var, G, mfb)
        G = Gaps(8)
        pre, tag = pl.take("X", 1)
        assert len(pre) == 2
        G.put(0, pre)
        pl.issue(tag)
        put_dma(G, 1, sX, 1, 6)
        G.spread(b_reads(1), 0, 5)
        G.stream([x for n in range(3, 8) for x in kv_pack(1, n)], 0, 6)
        z = b_mf(var, 0, zero=True)
        p.add(G.emit(z, 0, 7))
        last = z[7]
        park = ["v_accvgpr_write_b32 a%d, v%d" % (aPK + k, RB + 32 + k) for k in range(32)] + ["v_accvgpr_write_b32 a%d, v%d" % (aPK + 32 + k, RC + 32 + k) for k in range(32)]
        park += ["v_accvgpr_write_b32 a%d, v%d" % (104 + k, RB + 16 + k) for k in range(16)]
        stores = [kv_store(0, 0), park[:14], kv_store(0, 1), park[14:28], kv_store(1, 0), park[28:42], kv_store(1, 1) + park[42:50], park[50:65], park[65:]]
        for b in range(1, 10):
            bar = pl.barrier(Bs(b), Bs(b - 1), 512)
            cu = upd([vXr, vXr + 1, vXr + 2, vXr + 3], (pl.unit[("BX", b)] - pl.unit[("BX", b - 1)]) * U) + \
                 upd([vWr, vWr + 1], (pl.unit[("BW", b)] - pl.unit[("BW", b - 1)]) * U)
            cu += extra("X" if (b != 2) else "W", 2)
            tags = []
            for i, ty in enumerate("WX"):
                pre, tag = pl.take(ty, i)
                cu += pre
                tags.append(tag)
            cu += stores[b - 1]
            pl.hook(stores[b - 1], "kv")
            for t in tags:
                pl.issue(t)
            skel(last, bar, mfb, cu, "M_b%d" % var)
            if STAMPS and os.environ.get("FINE"):
                if var and b == 1:
                    st_.n -= 9
                st_()
            last = mfb[15]
        p(last)
        p.add(pl.barrier(Qs(0), Bs(9), 1024))
        G = Gaps(8)
        qa = x_rd16(vXr) + ["s_add_u32 s%d, s%d, 0x%x" % (sT, sW4, pl.unit[("QX", 0, 1)] * U), "v_add_u32 v%d, s%d, v%d" % (vXr + 2, sT, vXr),
                            "s_add_u32 s%d, s%d, 0x%x" % (sT, sW4, pl.unit[("QX", 0, 0)] * U), "v_add_u32 v%d, s%d, v%d" % (vXr, sT, vXr)] + \
             w_rd16(vWr) + upd([vWr], pl.unit[("QW", 0)] * U) + q_derive()
        for k in range(4):
            G.put(k, qa[k * len(qa) // 4:(k + 1) * len(qa) // 4], post=True)
        pre, tag = pl.take("X", 0)
        assert len(pre) == 2
        G.put(0, pre)
        pl.issue(tag)
        put_dma(G, 0, sX, 0, 7)
        G.spread(q_reads(0), 4, 7)
        p.add(G.emit(b_mf(var, 1)))
        if var == 0:
            p("s_branch M_bdone")
    p("M_bdone:")
    st_()

    qorder = [(j, d) for jj in (2, 0) for d in range(8) for j in (jj, jj + 1)]
    def q_mf(st, zero=False):
        return ["%s %s, %s, %s, %s" % (M16, rr("v", qacc(j, d), 4), rr("a", qfw(st, d), 4), rr("a", qfx(st, j), 4), "0" if zero else rr("v", qacc(j, d), 4)) for j, d in qorder]
    mfq = q_mf(1) + q_mf(0)
    NQ = 5
    G = Gaps16(64)
    G.spread(q_reads(0), NQ, int(os.environ.get('QE', '26')))
    G.put(31, WL)
    G.spread(q_reads(1), 32, 54)
    put_dma(G, 0, sX, NQ, 21); put_dma(G, 1, sX, 22, 38); put_dma(G, 2, sW, 39, 56)
    q_upd = sadd([vXr], sDa) + sadd([vXr + 2], sDb) + sadd([vWr], sDc) + q_derive()
    G.spread(q_upd, 57, 62)
    def q_del(s):
        if s > 9:
            return []
        return ["s_mov_b32 s%d, 0x%x" % (sd, u32((pl.unit[k(s)] - pl.unit[k(s - 1)]) * U))
                for sd, k in ((sDa, lambda x: ("QX", x, 0)), (sDb, lambda x: ("QX", x, 1)), (sDc, lambda x: ("QW", x)))]
    body("M_q", G, mfq, NP=NQ)
    p("s_mul_i32 s%d, s%d, %d" % (sT, sTB, 4 * 120 * 1024))
    p("s_lshl_b32 s%d, s%d, 13" % (sT2, sCB))
    p("s_add_u32 s%d, s%d, s%d" % (sT, sT, sT2))
    srd(p, sBO, ptr(D_WS), off_s=sT, off_imm=WS_BF)
    p("s_cmp_lt_u32 s2, 240\ns_cselect_b32 s%d, %d, 0" % (sBO + 2, 4 * 120 * 1024))
    p("s_lshr_b32 s%d, s%d, 1" % (sBo, sWave))
    p("s_mul_i32 s%d, s%d, %d" % (sBo, sBo, 2 * 120 * 1024))
    p("s_and_b32 s%d, s%d, 0x1000" % (sT, sW4))
    p("s_add_u32 s%d, s%d, s%d" % (sBo, sBo, sT))
    G = Gaps16(32)
    for i, ty in ((1, "X"), (2, "W")):
        pre, tag = pl.take(ty, i)
        p.add(pre)
        pl.issue(tag)
        put_dma(G, i, sX if ty == "X" else sW, 15 * (i - 1), 15 * (i - 1) + 14)
    p(WL)
    G.spread(q_reads(1), 0, 22)
    G.put(16, q_del(1))
    G.spread(q_upd, 25, 30)
    G.stream([x for t in range(4) for x in pack_tile(RA + 16 * t, RD + 8 * t)], 0, 14)
    z = q_mf(0, zero=True)
    p.add(G.emit(z, 0, 31))
    last = z[31]
    def bm_frag_loads(q, fbase, aXF):
        q("s_lshl_b32 s%d, s%d, 3" % (sTT, sXcd))
        q("s_lshl_b32 s%d, s%d, 1" % (sT, sWave))
        q("s_add_u32 s%d, s%d, s%d" % (sTT, sTT, sT))
        q("s_mul_i32 s%d, s%d, %d" % (sT, sTT, 120 * 1024))
        srd(q, sBF, ptr(D_WS), off_s=sT, off_imm=WS_BF, nrec=2 * 120 * 1024)
        q("s_mul_i32 s%d, s%d, 5" % (sT, sIdx))
        q("s_lshr_b32 s%d, s%d, 2" % (sT, sT))
        q("s_add_u32 s%d, s%d, %d" % (sT, sT, fbase))
        q("s_lshl_b32 s%d, s%d, 10" % (sT, sT))
        for tt in range(2):
            for u in range(2):
                q("buffer_load_dwordx4 %s, v%d, s[%d:%d], s%d offen offset:%d %s" % (rr("a", aXF + (tt * 2 + u) * 4, 4), vL16, sBF, sBF + 3, sT, u * 1024, WT))
            if tt == 0:
                q("s_add_u32 s%d, s%d, %d" % (sT, sT, 120 * 1024))
    vV, vWa, vRd = vA + 2, vA + 3, vA
    def bm1_loads(q):
        bm_frag_loads(q, 40, aXF)
        q("s_mul_i32 s%d, s%d, 20" % (sT, sIdx))
        q("v_and_b32 v%d, 31, v%d" % (t2, vLane))
        q("v_add_u32 v%d, s%d, v%d" % (t1, sT, t2))
        q("v_lshrrev_b32 v%d, 5, v%d" % (vV, t1))
        q("v_lshlrev_b32 v%d, 11, v%d" % (vV, vV))
        q("v_and_b32 v%d, 31, v%d" % (t1, t1))
        q("v_lshl_add_u32 v%d, v%d, 4, v%d" % (vV, t1, vV))
        q("v_and_b32 v%d, 32, v%d" % (t1, vLane))
        q("v_lshl_add_u32 v%d, v%d, 4, v%d" % (vV, t1, vV))
        q("v_bfrev_b32 v%d, 1" % t1)
        q("v_cmp_gt_u32 vcc, 20, v%d" % t2)
        q("v_cndmask_b32 v%d, v%d, v%d, vcc" % (vV, t1, vV))
        for tt in range(2):
            q("s_mov_b32 s%d, %d" % (sT, (tt * 120 + 80) * 1024))
            for mm in range(2):
                q("buffer_load_dwordx4 %s, v%d, s[%d:%d], s%d offen offset:%d %s" % (rr("a", aVF + (tt * 2 + mm) * 4, 4), vV, sBF, sBF + 3, sT, mm * 1024, WT))
    qst = {k + 1: [("b", b_store(k))] for k in range(4)}
    qst.update({7: [("k2", kv_store(0, 2))], 8: [("k2", kv_store(0, 3)), ("k2", kv_store(1, 2))], 9: [("k2", kv_store(1, 3))]})
    pubB = pubKV = None
    for s in range(1, 10):
        bar = pl.barrier(Qs(s), Qs(s - 1), 1024)
        cu = q_del(s + 1)
        cu += extra("X", 3)
        tags = []
        for i, ty in enumerate("XXW"):
            pre, tag = pl.take(ty, i)
            cu += pre
            tags.append(tag)
        if s == 1:
            cu.append(poll_check("go"))
        if pubKV is None and pl.complete("kv"):
            pubKV = s
            cu.append(publish(1))
        if pubB is None and s > 4 and pl.complete("b"):
            pubB = s
            cu.append(publish(2))
        if PREFETCH == 4 and s in (5, 6, 7, 8):
            ins = [x.replace("global_load_dword v%d" % vDum, "global_load_dword v%d" % vA) for x in pf(A_WO, 4096 * 1280, (s - 5) * 10240, 10)]
            cu += ins
            pl.hook(ins)
        if s == 5:
            ins = poll_load(1)
            cu += ins
            pl.hook(ins, "poll")
        if s == 7:
            assert pl.complete("poll")
            cu.append(poll_check(1))
        if s == 8:
            ins = poll_load(2)
            cu += ins
            pl.hook(ins, "poll")
        for tag, ins in qst.get(s, []):
            cu += ins
            pl.hook(ins, tag)
        for t in tags:
            pl.issue(t)
        skel(last, bar, mfq, cu, "M_q", NQ)
        last = mfq[63]
        if STAMPS and os.environ.get("FINE"):
            st_()
    if VERB:
        print("pubB", pubB, "pubKV", pubKV)
    assert pubB and pubKV and not pl.pend["X"] and not pl.pend["W"]
    C1, C2, PH, VF, KC, AF, RR = 48, 64, 80, 96, 112, TMP, 32
    def phi(xf):
        for tile, C in ((0, C1), (1, C2)):
            for u in range(2):
                p("%s %s, %s, %s, %s" % (MF, rr("v", C, 16), rr("v", AW + (tile * 2 + u) * 4, 4), rr("a", xf + u * 4, 4), rr("v", C, 16) if u else "0"))
        p(call("M_phi"))
    aXQ = 232
    q = Prog()
    q("M_phi:")
    x = [C1 + k for k in range(16)] + [C2 + k for k in range(4)]
    m = t1
    q("v_max3_f32 v%d, v%d, v%d, v%d" % (m, x[0], x[1], x[2]))
    for k in range(3, 19, 2):
        q("v_max3_f32 v%d, v%d, v%d, v%d" % (m, m, x[k], x[k + 1]))
    q("v_max_f32 v%d, v%d, v%d" % (m, m, x[19]))
    q("v_mul_f32 v%d, s%d, v%d" % (m, sL2, m))
    for k in range(0, 20, 2):
        q("v_pk_fma_f32 %s, %s, s[%d:%d], %s op_sel:[0,1,0] op_sel_hi:[1,1,0] neg_lo:[0,0,1] neg_hi:[0,0,1]" % (v2(x[k]), v2(x[k]), sL2 - 1, sL2, v2(m)))
    for k in range(20):
        q("v_exp_f32 v%d, v%d" % (x[k], x[k]))
    y = C2 + 4
    q(pk_add(y, x[0], x[2]))
    for k in range(4, 20, 2):
        q(pk_add(y, y, x[k]))
    q("v_add_f32 v%d, v%d, v%d" % (m, y, y + 1))
    q("v_rcp_f32 v%d, v%d" % (m, m))
    for k in range(0, 20, 2):
        q(pk_mulb(x[k], x[k], m))
    for k in range(10):
        q("v_cvt_pk_bf16_f32 v%d, v%d, v%d" % (PH + k, x[2 * k], x[2 * k + 1]))
    q(ret)
    tail += q.ins

    vWo = vA + 1
    def wo_src(which, un):
        p("s_lshr_b32 s%d, s%d, 1" % (sT, un))
        p("s_and_b32 s%d, s%d, 1" % (sT2, un))
        p("s_mul_i32 s%d, s%d, 640" % (sT2, sT2))
        isB = which == B_WO
        if isB:
            p("s_mul_i32 s%d, s%d, 0x3334" % (sOff, sT))
            p("s_lshr_b32 s%d, s%d, 16" % (sOff, sOff))
            p("s_mul_i32 s%d, s%d, 5" % (sSpin, sOff))
            p("s_sub_u32 s%d, s%d, s%d" % (sSpin, sT, sSpin))
            p("s_mul_i32 s%d, s%d, 160" % (sOff, sOff))
            p("s_mul_i32 s%d, s%d, 40" % (sT, sSpin))
            p("s_cmp_eq_u32 s%d, 4" % sSpin)
            p("s_cselect_b32 s%d, 16, s%d" % (sT, sT))
            p("s_cselect_b64 vcc, -1, 0")
            p("s_add_u32 s%d, s%d, s%d" % (sT, sT, sOff))
            p("s_mul_i32 s%d, s%d, 1280" % (sT, sT))
        else:
            p("s_mul_i32 s%d, s%d, 40960" % (sT, sT))
        p("s_add_u32 s%d, s%d, s%d" % (sT, sT, sT2))
        srd(p, sY, ptr(which), off_s=sT)
        p("s_sub_u32 s%d, %d, s%d" % (sY + 2, (640 if isB else 4096) * 1280, sT))
        p("s_mul_i32 s%d, s%d, 320" % (sT, sWave))
        p("s_mul_i32 s%d, s%d, 5120" % (sT2, sWave))
        p("s_add_u32 m0, s%d, 0x20000" % sT2)
        for k in range(5):
            p("v_add_u32 v%d, s%d, v%d" % (t0, sT, vLane))
            p("v_mul_u32_u24 v%d, 0x667, v%d" % (t1, t0))
            p("v_lshrrev_b32 v%d, 16, v%d" % (t1, t1))
            if isB:
                a, b = vWo, t2
                p("v_mul_u32_u24 v%d, 640, v%d" % (a, t1))
                p("v_lshlrev_b32 v%d, 4, v%d" % (t0, t0))
                p("v_sub_u32 v%d, v%d, v%d" % (t0, t0, a))
                p("v_lshrrev_b32 v%d, 4, v%d" % (a, t1))
                p("v_mul_u32_u24 v%d, 20, v%d" % (a, a))
                p("v_bfe_u32 v%d, v%d, 2, 1" % (b, t1))
                p("v_lshl_add_u32 v%d, v%d, 3, v%d" % (a, b, a))
                p("v_bfe_u32 v%d, v%d, 3, 1" % (b, t1))
                p("v_lshl_add_u32 v%d, v%d, 2, v%d" % (a, b, a))
                p("v_lshrrev_b32 v%d, 2, v%d" % (b, t1))
                p("v_mul_u32_u24 v%d, 20, v%d" % (b, b))
                p("v_cndmask_b32 v%d, v%d, v%d, vcc" % (a, a, b))
                p("v_and_b32 v%d, 3, v%d" % (t1, t1))
                p("v_add_u32 v%d, v%d, v%d" % (a, a, t1))
                p("v_mul_u32_u24 v%d, 1280, v%d" % (a, a))
                p("v_add_u32 v%d, v%d, v%d" % (t0, t0, a))
            else:
                p("v_mul_u32_u24 v%d, 640, v%d" % (t1, t1))
                p("v_lshl_add_u32 v%d, v%d, 4, v%d" % (t0, t0, t1))
            p("buffer_load_dwordx4 v%d, s[%d:%d], 0 offen lds" % (t0, sY, sY + 3))
            if k < 4:
                p("s_add_u32 s%d, s%d, 64\ns_add_u32 m0, m0, 0x400" % (sT, sT))
    def wo_reads(isB, regs):
        p("v_lshrrev_b32 v%d, 4, v%d" % (t0, vLane))
        p("v_lshlrev_b32 v%d, %d, v%d" % (vWo, 3 if isB else 2, t0))
        p("v_bfe_u32 v%d, v%d, 2, 2" % (t0, vLane))
        p("v_add_u32 v%d, v%d, v%d" % (vWo, vWo, t0))
        p("v_mul_u32_u24 v%d, 640, v%d" % (vWo, vWo))
        p("v_and_b32 v%d, 3, v%d" % (t0, vLane))
        p("v_lshl_add_u32 v%d, v%d, 3, v%d" % (vWo, t0, vWo))
        p("s_mul_i32 s%d, s%d, 160" % (sT, sWave))
        p("s_add_u32 s%d, s%d, 0x20000" % (sT, sT))
        p("v_add_u32 v%d, s%d, v%d" % (vWo, sT, vWo))
        for n in range(5):
            for u in range(2):
                p("ds_read_b64_tr_b16 %s, v%d offset:%d" % (rr("v", regs[n] + 2 * u, 2), vWo, n * 32 + u * (4 if isB else 16) * 640))
    def wo_stores(isB, un, regs, sY):
        p("s_and_b32 s%d, s%d, 1" % (sT, un))
        p("s_lshl_b32 s%d, s%d, 2" % (sT, sT))
        p("s_add_u32 s%d, s%d, s%d" % (sT, sT, sWave))
        p("s_lshr_b32 s%d, s%d, 1" % (sT2, un))
        if isB:
            p("s_mul_i32 s%d, s%d, 20" % (sT, sT))
            p("s_add_u32 s%d, s%d, s%d" % (sT, sT, sT2))
        else:
            p("s_lshr_b32 s%d, s%d, 1" % (sT, sT))
            p("s_lshl_b32 s%d, s%d, 7" % (sT, sT))
            p("s_add_u32 s%d, s%d, s%d" % (sT, sT, sT2))
            p("s_lshl_b32 s%d, s%d, 1" % (sT, sT))
            p("s_and_b32 s%d, s%d, 1" % (sT2, sWave))
            p("s_add_u32 s%d, s%d, s%d" % (sT, sT, sT2))
        p("s_mul_i32 s%d, s%d, 5120" % (sT, sT))
        srd(p, sY, ptr(D_WS), off_s=sT, off_imm=WS_WOB if isB else WS_WOA, nrec=5120)
        p("s_movk_i32 s%d, 0x1000" % sT)
        for n in range(5):
            p("buffer_store_dwordx4 %s, v%d, s[%d:%d], %s offen offset:%d %s" % (rr("v", regs[n], 4), vL16, sY, sY + 3, "s%d" % sT if n == 4 else "0", (n & 3) * 1024, WT))
    p(last)
    p(WL + "\ns_barrier")
    sQs = sTB
    def kvsetup(q):
        q("s_mov_b32 s%d, 0x%x\ns_mov_b32 s%d, s%d" % (sDa, QSCALE, sDa + 1, sDa))
        q("s_mov_b32 s%d, 0x%x" % (sL2, LOG2E))
        q("s_lshl_b32 s%d, s%d, 20" % (sT, sH))
        srd(q, sKV, ptr(D_WS), off_s=sT, off_imm=WS_KV)
        q("s_lshl_b32 s%d, s%d, 16" % (sT, sI))
        q("s_sub_u32 s%d, 0x100000, s%d" % (sKV + 2, sT))
        q("s_lshl_b32 s%d, s%d, 11" % (sW2k, sWave))
        q("v_add_u32 v%d, s%d, v%d" % (vDma, sW2k, vL16))
    kvld = lambda so, k: "buffer_load_dwordx4 v%d, s[%d:%d], s%d offen offset:%d %s lds" % (vDma, sKV, sKV + 3, so, k * 1024, WT)
    def kv0(t, half):
        o = t * U + half * 8192
        return [["s_add_u32 m0, s%d, 0x%x" % (sW2k, o), "s_mov_b32 s%d, 0x%x" % (sOff, o), kvld(sOff, 0)], kvld(sOff, 1)]
    sSc = sCB
    def aw_prep(q):
        q("s_lshr_b32 s%d, s%d, 1" % (sSc, sWave))
        q("s_lshl_b32 s%d, s%d, 13" % (sSc, sSc))
        q("s_add_u32 s%d, s%d, s%d" % (sSc, sSc, sW4))
        q("s_add_u32 s%d, s%d, %d" % (sSc, sSc, 4 * U + 8192))
        q("v_add_u32 v%d, s%d, v%d" % (t0, sSc, vL16))
        q("ds_write_b128 v%d, %s" % (t0, rr("a", aRAW, 4)))
        q("ds_write_b128 v%d, %s offset:1024" % (t0, rr("a", aRAW + 4, 4)))
        q("s_and_b32 s%d, s%d, 3" % (sT, sIdx))
        q("s_mul_i32 s%d, s%d, 160" % (sT, sT))
        q("s_sub_u32 s%d, s%d, s%d" % (sT, sSc, sT))
        q("s_addk_i32 s%d, 480" % sT)
        q("v_lshrrev_b32 v%d, 5, v%d" % (t0, vLane))
        q("v_bfe_u32 v%d, v%d, 2, 2" % (t1, vLane))
        q("v_lshl_add_u32 v%d, v%d, 2, v%d" % (t0, t0, t1))
        q("v_mul_u32_u24 v%d, 40, v%d" % (t0, t0))
        q("v_add_u32 v%d, s%d, v%d" % (t0, sT, t0))
        q("v_bfe_u32 v%d, v%d, 4, 1" % (t1, vLane))
        q("v_lshl_add_u32 v%d, v%d, 4, v%d" % (t2, t1, t0))
        q("v_bfe_u32 v%d, v%d, 1, 1" % (t1, vLane))
        q("v_lshl_add_u32 v%d, v%d, 3, v%d" % (t2, t1, t2))
        for tile in range(2):
            for u in range(4):
                q("ds_read_b64_tr_b16 %s, v%d offset:%d" % (rr("v", AW + tile * 8 + 2 * u, 2), t0 if tile else t2, u * 320 + tile * 32))
        q("v_bfe_u32 v%d, v%d, 2, 1" % (vWa, vLane))
        q("v_mul_u32_u24 v%d, 0x8000, v%d" % (vWa, vWa))
        q("v_lshl_or_b32 v%d, v%d, 16, v%d" % (vWa, vWa, vWa))
    fl = L(kvsetup) + kv0(0, 0) + kv0(1, 0) + [poll_check(2)] + L(bm1_loads) + L(aw_prep)
    mfl = q_mf(1)
    for k in range(32):
        p(mfl[k])
        p.add(fl[k * len(fl) // 32:(k + 1) * len(fl) // 32])
    st_()
    pp, p = p, Prog()
    wo_src(A_WO, 2)
    wo_chunk, p = p.ins, pp
    va = []
    for j in (2, 3, 0, 1):
        if os.environ.get("PKMUL", "1") == "1":
            va += ["v_pk_mul_f32 %s, %s, s[%d:%d]" % (rr("v", qacc(j, 0) + k, 2), rr("v", qacc(j, 0) + k, 2), sDa, sDa + 1) for k in range(0, 32, 2)]
        else:
            va += ["v_mul_f32 v%d, s%d, v%d" % (qacc(j, 0) + k, sDa, qacc(j, 0) + k) for k in range(32)]
        va += pack_tile(qacc(j, 0), Q(j, 0)) + pack_tile(qacc(j, 4), Q(j, 2))
    va += ["v_xor_b32 v%d, v%d, v%d" % (AW + k, AW + k, vWa) for k in range(16)]
    vm = kv0(2, 0) + kv0(0, 1) + kv0(1, 1) + kv0(3, 0) + kv0(4, 0) + kv0(5, 0) + kv0(2, 1) + kv0(3, 1) + [wo_chunk]
    for k, x in enumerate(vm):
        p.add([x] + va[k * len(va) // len(vm):(k + 1) * len(va) // len(vm)])
    st_()
    phi(aXF)
    fb = (lambda: st_()) if os.environ.get("FINEB") else (lambda: None)
    fb()
    for k in range(4):
        p("v_mov_b32 v%d, 0" % (RR + k))
    zero_o = lambda k, z: "%s %s, %s, %s, 0" % (MF, rr("a", 16 * k, 16), rr("v", z, 4), rr("v", z, 4))
    p("v_and_b32 v%d, 31, v%d" % (t2, vLane))
    p("s_mov_b32 s%d, s%d" % (sT, sSc))
    p("v_mul_u32_u24 v%d, 48, v%d" % (vWa, vLane))
    p("v_add_u32 v%d, s%d, v%d" % (vWa, sT, vWa))
    p("v_lshrrev_b32 v%d, 5, v%d" % (t1, vLane))
    p(zero_o(0, RR))
    p("v_bfe_u32 v%d, v%d, 2, 2" % (vRd, vLane))
    p("v_lshl_add_u32 v%d, v%d, 2, v%d" % (vRd, t1, vRd))
    p("v_mul_u32_u24 v%d, 48, v%d" % (vRd, vRd))
    p("v_bfe_u32 v%d, v%d, 4, 1" % (t1, vLane))
    p("v_lshl_add_u32 v%d, v%d, 5, v%d" % (vRd, t1, vRd))
    p("v_and_b32 v%d, 3, v%d" % (t1, vLane))
    p("v_lshl_add_u32 v%d, v%d, 3, v%d" % (vRd, t1, vRd))
    p("v_add_u32 v%d, s%d, v%d" % (vRd, sT, vRd))
    p(zero_o(1, RR))
    p("v_mov_b32 v%d, 0x3f803f80" % t0)
    p("v_cmp_eq_u32 vcc, 20, v%d" % t2)
    for tt in range(2):
        fb()
        if tt:
            phi(aXF + 8)
            fb()
        p("ds_write_b128 v%d, %s" % (vWa, rr("v", PH, 4)))
        p("ds_write_b128 v%d, %s offset:16" % (vWa, rr("v", PH + 4, 4)))
        p("ds_write_b64 v%d, %s offset:32" % (vWa, rr("v", PH + 8, 2)))
        for nn in range(2):
            for mm in range(2):
                for u in range(2):
                    p("ds_read_b64_tr_b16 %s, v%d offset:%d" % (rr("v", AF + (nn * 2 + mm) * 4 + 2 * u, 2), vRd, (16 * mm + 8 * u) * 48 + nn * 1536))
        p(zero_o(2 + 3 * tt, RR))
        for k in range(8):
            p("v_accvgpr_read_b32 v%d, a%d" % (VF + k, aVF + tt * 8 + k))
        p(zero_o(3 + 3 * tt, RR))
        for k in range(8):
            p("v_cndmask_b32 v%d, v%d, v%d, vcc" % (VF + k, VF + k, t0))
        p(zero_o(4 + 3 * tt, RR))
        for mm in range(2):
            for nn in range(2):
                c = rr("v", KC + nn * 16, 16)
                p("%s %s, %s, %s, %s" % (MF, c, rr("v", AF + (nn * 2 + mm) * 4, 4), rr("v", VF + mm * 4, 4), "0" if (tt == 0 and mm == 0) else c))
    fb()
    R0 = 6 * U
    p("s_mul_i32 s%d, s%d, 6144" % (sT, sWave))
    p("s_add_u32 s%d, s%d, %d" % (sT, sT, R0))
    p("v_add_u32 v%d, s%d, v%d" % (t1, sT, vL16))
    p("v_lshrrev_b32 v%d, 5, v%d" % (t0, vLane))
    p("v_lshlrev_b32 v%d, 10, v%d" % (vV, t0))
    p("v_lshl_add_u32 v%d, v%d, 4, v%d" % (vV, t2, vV))
    p("v_and_b32 v%d, 15, v%d" % (vLim, vLane))
    p("v_lshrrev_b32 v%d, 4, v%d" % (t0, vLane))
    p("v_lshlrev_b32 v%d, 2, v%d" % (t0, t0))
    p("v_sub_u32 v%d, v%d, v%d" % (vLim, vLim, t0))
    p("v_mov_b32 v%d, 0x%x" % (vNeg, NEG))
    for j in range(4):
        p("v_mov_b32 v%d, 0" % (vL + j))
        p("v_mov_b32 v%d, 0x3f803f80" % (vOne + j))
    for nn in range(2):
        for jj in range(3):
            p("ds_write_b128 v%d, %s offset:%d" % (t1, rr("v", KC + nn * 16 + jj * 4, 4), (nn * 3 + jj) * 1024))
    p("s_lshl_b32 s%d, s%d, 3" % (sT, sIdx))
    p("s_add_u32 s%d, s%d, s%d" % (sT, sT, sXcd))
    p("s_lshl_b32 s%d, s%d, 13" % (sT, sT))
    srd(p, sY, ptr(D_WS), off_s=sT, off_imm=WS_KVP, nrec=5120)
    srd(p, sC, ptr(D_WS), off_imm=WS_CTX, nrec=16 * MB)
    p("s_lshl_b32 s%d, s%d, 10" % (sT, sWave))
    p("s_add_u32 s%d, s%d, %d" % (sT, sT, R0))
    p("v_add_u32 v%d, s%d, v%d" % (t1, sT, vL16))
    p("v_mov_b32 v%d, v%d" % (vB, vL16))
    p("v_add_u32 v%d, 0x4000, v%d" % (vB + 1, vL16))
    fb()
    p("s_waitcnt vmcnt(0) lgkmcnt(0)\ns_barrier")
    st_()
    for j in range(8):
        p("ds_read_b128 %s, v%d offset:%d" % (rr("a", FB(j), 4), vB, j * 1024))
    RS = 128
    woA = [S(1, 0) + 4 * n for n in range(5)]
    for k in range(2):
        for w in range(4):
            p("ds_read_b128 %s, v%d offset:%d" % (rr("v", RS + k * 16 + w * 4, 4), t1, w * 6144 + k * 4096))
    wo_reads(False, woA)
    pp, p = p, Prog()
    wo_stores(False, 2, woA, sBF)
    wo_st, p = p.ins, pp
    p("s_cmp_eq_u32 s%d, 3" % sWave)
    p("s_cselect_b32 s%d, 512, s%d" % (sSpin, sW2k))
    p("s_add_u32 s%d, s%d, 2560" % (sOff, sW2k))
    p("s_mov_b32 s%d, 0x%x" % (sThr, THRESH))
    p("s_lshl_b32 s%d, s%d, 2" % (sT, sI))
    p("s_add_u32 s%d, s%d, s%d" % (sTriB, sT, sWave))
    p("s_sub_u32 s%d, 60, s%d" % (sTriA, sT))
    p("s_add_u32 s%d, s%d, s%d" % (sTriA, sTriA, sWave))
    p("s_add_u32 s%d, s%d, 4" % (sNlo, sT))
    p("s_mov_b32 s%d, 0\ns_mov_b32 s%d, 3" % (sMask, sMask + 1))
    p("s_bitset1_b64 s[%d:%d], s%d" % (sMask, sMask + 1, sNlo))
    p("s_bitset1_b64 s[%d:%d], s%d" % (sMask, sMask + 1, sTriB))
    p("s_add_u32 s%d, s%d, 1" % (sT, sTriB))
    p("s_bitset1_b64 s[%d:%d], s%d" % (sMask, sMask + 1, sT))
    if os.environ.get("X_NOHOOK"):
        p("s_mov_b64 s[%d:%d], 0" % (sMask, sMask + 1))
    p("s_and_b32 s%d, s%d, 1" % (sNb, sWave))
    p("s_sub_u32 s%d, s%d, s%d" % (sNb, sNb, sNlo))
    p("s_add_u32 s%d, s%d, 2" % (sNb, sNb))
    for k in range(32):
        p("v_mov_b32 v%d, 0" % (CI(0) + k))
    p("s_mov_b32 s%d, 0\ns_mov_b32 s%d, 0\ns_mov_b32 s%d, 1.0" % (sIt, sNext, sKeep))
    p("s_mov_b32 s%d, 0x%x\ns_mov_b32 s%d, 0x%x" % (sG, 6 * U, sGv, 4 * U + 8192))

    def mask_code(sl, tri):
        c = CI(2 * sl)
        r = ["s_sub_i32 s%d, s%d, s%d" % (sT, sNext, tri), "s_lshl_b32 s%d, s%d, 5" % (sT, sT), "v_subrev_u32 v%d, s%d, v%d" % (t0, sT, vLim)]
        for off, regs in ((0, (c, c + 12)), (16, (c + 4,)), (-16, (c + 8,))):
            r += ["v_cmp_gt_i32 s[%d:%d], %d, v%d" % (84 + 2 * k, 85 + 2 * k, off + k, t0) for k in range(4)]
            r += ["v_cndmask_b32 v%d, v%d, v%d, s[%d:%d]" % (b + k, b + k, vNeg, 84 + 2 * k, 85 + 2 * k) for b in regs for k in range(4)]
        return r
    xch = ["s_xor_b32 s%d, s%d, 1" % (sT, sWave), "s_lshl_b32 s%d, s%d, 13" % (sT, sT), "s_add_u32 s%d, s%d, 0x20000" % (sT, sT), "v_add_u32 v%d, s%d, v%d" % (t0, sT, vL16)] + \
          ["ds_read_b128 %s, v%d offset:%d" % (rr("v", Q(2, 0) + 4 * k, 4), t0, k * 1024) for k in range(8)] + \
          ["v_mov_b32 v%d, v%d" % (CI(2) + k, vMp + (k >> 3)) for k in range(16)] + \
          ["v_mov_b32 v%d, v%d" % (vM + 2, vMp), "v_mov_b32 v%d, v%d" % (vM + 3, vMp + 1), "s_xor_b32 s%d, s%d, 1" % (sTriB, sTriA), "s_mov_b32 s%d, 0" % sKeep, WL]
    def evt_check(kind):
        lab = p.newlabel("M_ev")
        back = "%s_r" % lab
        code = ["%s:" % lab]
        if kind == "x":
            code += ["s_cmp_eq_u32 s%d, s%d" % (sIt, sNlo), "s_cbranch_scc1 %s_x" % lab] + mask_code(1, sTriB) + ["s_branch " + back, "%s_x:" % lab] + xch + \
                    ["s_cmp_lt_u32 s%d, 32" % sIt, "s_cbranch_scc1 " + back]
        code += mask_code(1, sTriB)
        if kind == "l1":
            code += ["s_cmp_lt_u32 s%d, 32" % sIt, "s_cbranch_scc1 " + back]
        if kind != "lo":
            code += mask_code(0, sTriA)
        tail.extend(code + ["s_branch " + back])
        return ["s_bitcmp1_b64 s[%d:%d], s%d" % (sMask, sMask + 1, sIt), "s_cbranch_scc1 %s" % lab, "%s:" % back]
    qk_mf = lambda par: ["%s %s, %s, %s, %s" % (M16, rr("v", S(par, j) + 4 * (f >> 2), 4), rr("a", FB(f), 4), rr("v", Q(j, f & 3), 4),
                                                 rr("v", (CI(j) if (f & 3) == 0 else S(par, j)) + 4 * (f >> 2), 4)) for f in range(8) for j in range(4)]
    pv_mf = lambda par: ["%s %s, %s, %s, %s" % (M16, rr("a", O(j, d), 4), rr("a", FB(8 + d), 4), rr("v", PP(par, j), 4), rr("a", O(j, d), 4)) for d in range(8) for j in range(4)]
    def allg(op, dst, tmp):
        return ["v_mov_b32 v%d, v%d" % (tmp, dst), "v_permlane32_swap_b32 v%d, v%d" % (dst, tmp), "%s v%d, v%d, v%d" % (op, dst, dst, tmp),
                "v_mov_b32 v%d, v%d" % (tmp, dst), "v_permlane16_swap_b32 v%d, v%d" % (dst, tmp), "%s v%d, v%d, v%d" % (op, dst, dst, tmp)]
    def rowmax(par, j, dst, tmp):
        s = S(par, j)
        return ["v_max3_f32 v%d, v%d, v%d, v%d" % (dst, s, s + 1, s + 2), "v_max3_f32 v%d, v%d, v%d, v%d" % (dst, dst, s + 3, s + 4),
                "v_max3_f32 v%d, v%d, v%d, v%d" % (dst, dst, s + 5, s + 6), "v_max_f32 v%d, v%d, v%d" % (dst, dst, s + 7)] + allg("v_max_f32", dst, tmp) + \
               ["v_add_f32 v%d, 0x%x, v%d" % (dst, f2u(BIAS), dst)]
    NG1 = int(os.environ.get("NG1", "9"))
    def sm_stream(par, part):
        allg_ = [(j, k) for k in range(4) for j in range(4)]
        groups = allg_[:NG1] if part == 0 else (allg_[NG1:] if part == 1 else allg_)
        out = []
        tm = lambda n: (TMP + (n % 4) * 2, TMP + (n % 4) * 2 + 1)
        cv = lambda n: "v_cvt_pk_bf16_f32 v%d, v%d, v%d" % ((PP(par, groups[n][0]) + groups[n][1],) + tm(n))
        for n, (j, k) in enumerate(groups):
            a, b = tm(n)
            out += ["v_exp_f32 v%d, v%d" % (a, S(par, j) + 2 * k)] + ([cv(n - 1)] if n else []) + ["v_exp_f32 v%d, v%d" % (b, S(par, j) + 2 * k + 1)]
        return out + [cv(len(groups) - 1)]
    NE = 4
    def sm_place(G, par, part, lo, hi, ne=0):
        st = sm_stream(par, part)
        ex = [x for x in st if x.startswith("v_exp")]
        cv = [x for x in st if x.startswith("v_cvt")]
        nc = 0
        for g in range(lo, hi + 1):
            ready = ne // 2
            left = 8 - G.load(g)
            rest = sum(max(0, 8 - G.load(x)) for x in range(g + 1, hi + 1))
            while True:
                todo = 8 * (len(ex) - ne) + 4 * (len(cv) - nc)
                force = todo > rest + max(left, 0) - 4 and left > -4 and g < hi or g == hi and todo
                if ne < len(ex) and (left >= 8 or (force and nc >= ready)) and ne // 2 - nc < 4 and not (ready - nc >= 3 and left >= 8 and ne % 2 == 0):
                    G.va[g].append(ex[ne]); ne += 1; left -= 8
                elif nc < (ready if g < hi else ne // 2) and (left >= 4 or force):
                    G.va[g].append(cv[nc]); nc += 1; left -= 4
                else:
                    break
        assert ne == len(ex) and nc == len(cv), (ne, nc)
    LT = lambda par, j: PP(par ^ 1, j)
    sum_mf = lambda par: ["%s %s, %s, %s, 0" % (M16, rr("v", LT(par, j), 4), rr("v", vOne, 4), rr("v", PP(par, j), 4)) for j in range(4)]
    need = lambda js: I("need", xrd=[("a", FB(j) + e) for j in js for e in range(4)])
    fread = lambda f, par: "ds_read_b128 %s, v%d offset:%d" % (rr("a", FB(f), 4), vB + par, f * 1024)
    ALL = (0, 1, 2, 3)
    def slow_site(par):
        lab = p.newlabel("M_sl")
        tail.extend(["%s:" % lab, call("M_slow%d" % par), "s_branch %s_r" % lab])
        chk = ["v_max3_f32 v%d, v%d, v%d, v%d" % (vU, LT(par, 0), LT(par, 1), LT(par, 2)), "v_max_f32 v%d, v%d, v%d" % (vU, vU, LT(par, 3)), "v_cmp_lt_f32 vcc, s%d, v%d" % (sThr, vU)]
        return chk, ["s_cbranch_vccnz %s" % lab, "%s_r:" % lab]
    accl = lambda par: ["v_add_f32 v%d, v%d, v%d" % (vL + j, vL + j, LT(par, j)) for j in range(4)]
    def iteration(par, barrier, ntile, kind, endc=(), endb=(), mid=()):
        qk = qk_mf(par ^ 1)
        SP = 24
        mf = qk[:SP] + sum_mf(par) + qk[SP:] + pv_mf(par)
        pos = lambda f: 4 * f + (4 if 4 * f >= SP else 0)
        G = Gaps16(68)
        LA = int(os.environ.get("LA", "14")); LV = int(os.environ.get("LV", "18")); BP = int(os.environ.get("BP", "53")); LG = ""
        for f in range(4, 16):
            G.put(pos(f) - (LA if f < 6 else LV), fread(f, (par ^ 1) if f < 8 else par))
        for f in range(2, 16, 2):
            G.nv[pos(f) - 1].insert(0, need([f, f + 1]))
        G.put(66, need([0, 1]))
        G.put(0, ["s_add_u32 s%d, s%d, 1" % (sIt, sIt)]); G.put(1, ["s_add_u32 s%d, s%d, 2" % (sNb, sNb)])
        G.put(3, ["s_max_i32 s%d, s%d, s%d" % (sNext, sIt, sNb)]); G.put(4, ["s_lshl_b32 s%d, s%d, 14" % (sRd, sNext)])
        G.put(5, ["s_and_b32 s%d, s%d, 0x1ffff" % (sRd, sRd)])
        G.put(64 - LV, "v_add_u32 v%d, s%d, v%d" % (vB + par, sRd, vL16))
        if barrier:
            G.put(BP, ["s_waitcnt vmcnt(%d)%s" % (4 + 4 * ntile, LG), "s_barrier"])
        for f in range(4):
            G.put(BP + 1 + 2 * f + (f >> 1) * 2, fread(f, par))
        slots = eval(os.environ.get("SL2", "[8, 16, 23, 28, 33, 40, 45, 50]")) if ntile == 2 else eval(os.environ.get("SL1", "[23, 28, 33, 45]"))
        for hh in range(2 * ntile):
            so = sGv if hh < ntile else sG
            g0, g1 = slots[2 * hh], slots[2 * hh + 1]
            G.put(g0 - 2, ["s_and_b32 s%d, s%d, 0x1ffff" % (sT, so)])
            G.put(g0 - 1, ["s_add_u32 m0, s%d, s%d" % (sT, sW2k)])
            G.put(g0, kvld(so, 0))
            G.put(g1, [kvld(so, 1), "s_add_u32 s%d, s%d, 0x4000" % (so, so)])
        chk, br = slow_site(par)
        G.put(35, br)
        G.put(64, evt_check(kind))
        for k, x in enumerate(mid):
            G.put(55 + k, x)
        G.put(67, list(endc))
        G.put(67, list(endb), post=True)
        sm_place(G, par, 1, 0, SP - 3)
        G.put(32, chk[:2]); G.put(34, chk[2])
        early = [x for x in sm_stream(par ^ 1, 0) if x.startswith("v_exp")][:NE]
        for g in range(SP - 2, 32):
            if early and G.load(g) == 0:
                G.put(g, early.pop(0))
        assert not early
        G.put(36, accl(par)[:2]); G.put(37, accl(par)[2:])
        sm_place(G, par ^ 1, 0, 38, 66, NE)
        if VERB:
            print("iteration", par, ntile, G.report(), sum(max(0, x - 8) for x in G.report()))
        out = [x if isinstance(x, I) else I(x) for x in G.emit(mf)]
        X = os.environ.get("X_DROP", "")
        if "d" in X: out = [x for x in out if x.kind != "dma"]
        if "b" in X: out = [x for x in out if x.mn != "s_barrier"]
        if "e" in X: out = [x for x in out if x.mn != "v_exp_f32"]
        if "c" in X: out = [x for x in out if x.mn != "v_cvt_pk_bf16_f32"]
        if "l" in X: out = [x for x in out if x.kind != "ds"]
        if "w" in X:
            for x in out:
                if x.kind == "ds": x.wr = set()
        if "v" in X: out = [x for x in out if not (x.kind == "branch" and (x.target.startswith("M_ev") or x.target.startswith("M_sl")))]
        p.add(out)

    fb()
    p.add(evt_check("lo"))
    G = Gaps16(32)
    red = []
    for k in range(2):
        b = RS + k * 16
        for e in range(4):
            red += ["v_add_f32 v%d, v%d, v%d" % (b + e, b + e, b + 4 + e), "v_add_f32 v%d, v%d, v%d" % (b + 8 + e, b + 8 + e, b + 12 + e)]
        red += ["v_add_f32 v%d, v%d, v%d" % (b + e, b + e, b + 8 + e) for e in range(4)]
    G.stream(red, 2, 16)
    for k in range(2):
        G.put(18 + 2 * k, "buffer_store_dwordx4 %s, v%d, s[%d:%d], s%d offen %s" % (rr("v", RS + k * 16, 4), vV, sY, sY + 3, sOff if k else sSpin, WT))
    G.spread(wo_st, 4, 31)
    G.spread([fread(f, 1) for f in range(4)], 22, 31)
    p.add(G.emit(qk_mf(0)))
    fb()
    p("s_mov_b32 s%d, 1\ns_mov_b32 s%d, 1" % (sIt, sNext))
    p("s_lshl_b32 s%d, s%d, 9" % (sT, sWave))
    p("s_add_u32 s%d, s%d, %d" % (sT, sT, 7 * U + 8192))
    p("v_lshl_add_u32 v%d, v%d, 3, s%d" % (t2, vLane, sT))
    for j in range(4):
        p.add(rowmax(0, j, vU, vU + 1))
        p("v_sub_f32 v%d, 0, v%d" % (vM + j, vU))
        for k in range(0, 8, 2):
            p(pk_subb(S(0, j) + k, S(0, j) + k, vU))
            p(pk_subb(CI(j) + k, CI(j) + k, vU))
        if j == 1:
            p("ds_write_b64 v%d, %s" % (t2, rr("v", vM, 2)))
    fb()
    p.add(evt_check("lo"))
    p.add(sm_stream(0, 0))
    fb()
    p("s_lshr_b32 s%d, s%d, 1" % (sT, sXcd))
    p("s_lshl_b32 s%d, s%d, 6" % (sT, sT))
    p("s_lshr_b32 s%d, s%d, 4" % (sT2, sIdx))
    p("s_add_u32 s%d, s%d, s%d" % (sT, sT, sT2))
    p("v_and_b32 v%d, 31, v%d" % (t0, vLane))
    p("v_lshl_add_u32 v%d, v%d, 1, s%d" % (t0, t0, sT))
    p("s_lshl_b32 s%d, s%d, 3" % (sT, sIdx))
    p("v_and_b32 v%d, 7, v%d" % (t1, vLane))
    p("v_add_u32 v%d, s%d, v%d" % (t1, sT, t1))
    p("v_cmp_gt_u32 vcc, 32, v%d" % vLane)
    p("v_cndmask_b32 v%d, v%d, v%d, vcc" % (vPoll, t0, t1))
    p("s_andn2_b32 s%d, s2, 0x38" % sT)
    p("v_and_b32 v%d, 7, v%d" % (t1, vLane))
    p("v_lshl_add_u32 v%d, v%d, 3, s%d" % (t1, t1, sT))
    p("v_lshrrev_b32 v%d, 4, v%d" % (t0, vLane))
    p("v_cmp_eq_u32 vcc, 1, v%d" % t0)
    p("v_cndmask_b32 v%d, v%d, v%d, vcc" % (vPoll, vPoll, t1))
    p("v_cndmask_b32 v%d, 3, 4, vcc" % (vPoll + 1))
    p("v_lshlrev_b32 v%d, 7, v%d" % (vPoll, vPoll))
    p("v_xor_b32 v%d, 0x200, v%d" % (t2, t2))
    p("s_lshl_b32 s%d, s%d, 13" % (sT, sWave))
    p("s_add_u32 s%d, s%d, 0x20000" % (sT, sT))
    p("v_add_u32 v%d, s%d, v%d" % (t0, sT, vL16))
    p(WL + "\ns_barrier")
    p("ds_read_b64 %s, v%d" % (rr("v", vMp, 2), t2))
    for k in range(8):
        p("ds_write_b128 v%d, %s offset:%d" % (t0, rr("v", Q(0, 0) + 4 * k, 4), k * 1024))
    sUB = sBo
    p("s_andn2_b32 s%d, s%d, 7" % (sUB, sIdx))
    p("s_add_u32 s%d, s%d, s%d" % (sUB, sUB, sXcd))
    p("s_cmp_eq_u32 s%d, 0" % sI)
    p("s_cselect_b32 s%d, s%d, 64" % (sUB, sUB))
    p("s_add_u32 s%d, s%d, 32" % (sT, sXcd))
    p("s_cmp_eq_u32 s%d, 1" % sIdx)
    p("s_cselect_b32 s%d, s%d, s%d" % (sUB, sT, sUB))
    p("s_lshl_b32 s%d, s%d, 1" % (sCnt, sI))
    p("s_add_u32 s%d, s%d, 1" % (sCnt, sCnt))
    p(WL)
    st_()
    dec = ["s_sub_u32 s%d, s%d, 1" % (sCnt, sCnt)]
    HOOKS = (3, 5, 7, 9, 13, 15)
    HM = sum(1 << e for e in HOOKS)
    hk = ["s_mov_b32 s%d, 0x%x" % (sT, HM), "s_bitcmp1_b32 s%d, s%d" % (sT, sIt)]
    chain = lambda hs: [x for e in hs for x in ("s_cmp_eq_u32 s%d, %d" % (sIt, e), "s_cbranch_scc1 M_hook%d" % e)]
    def setcont(lab):
        p("s_getpc_b64 s[%d:%d]\n%s_pc:" % (sCont, sCont + 1, lab))
        p("s_add_u32 s%d, s%d, %s-%s_pc\ns_addc_u32 s%d, s%d, 0" % (sCont, sCont, lab, lab, sCont + 1, sCont + 1))
    p.add(kv_store(0, 4) + kv_store(1, 4))
    setcont("M_l1")
    p("M_l1:")
    iteration(0, False, 1, "x")
    e1 = dec + ["s_cselect_b32 s%d, M_l1x-M_l1, 0" % sT, "s_cselect_b32 s%d, -1, 0x%x" % (sT2, HM),
                "s_add_u32 s%d, s%d, s%d" % (sCont, sCont, sT), "s_addc_u32 s%d, s%d, 0" % (sCont + 1, sCont + 1)]
    iteration(1, True, 1, "l1", ["s_bitcmp1_b32 s%d, s%d" % (sT2, sIt)], ["s_cbranch_scc0 M_l1"], mid=e1)
    p.add(chain(HOOKS))
    p("M_l1x:")
    st_()
    def ctx_base(sblk):
        p("s_lshl_b32 s%d, s%d, 20" % (sT, sblk))
        p("s_lshl_b32 s%d, s%d, 15" % (sT2, sH))
        p("s_add_u32 s%d, s%d, s%d" % (sT, sT, sT2))
        p("s_add_u32 s%d, s%d, s%d" % (sCb, sT, sW2k))
    ctx_store = lambda r, jj: "buffer_store_dwordx4 %s, v%d, s[%d:%d], s%d offen offset:%d %s" % (rr("v", r, 4), vL16, sC, sC + 3, sCb, jj * 1024, WT)
    ctx_base(sI)
    for jj in range(2):
        p("v_rcp_f32 v%d, v%d" % (vU + 2 + jj, vL + 2 + jj))
        p("v_mov_b32 v%d, 0" % (vL + 2 + jj))
    Z = PP(1, 0)
    for k in range(4):
        p("v_mov_b32 v%d, 0" % (Z + k))
    for ds in range(4):
        T = S(1, 0) + (ds & 1) * 16
        for jj in range(2):
            for k in range(8):
                p("v_accvgpr_read_b32 v%d, a%d" % (T + 8 * jj + k, O(2 + jj, 2 * ds) + k))
        for jj in range(2):
            for k in range(0, 8, 2):
                p(pk_mulb(T + 8 * jj + k, T + 8 * jj + k, vU + 2 + jj))
        p.add(pack_tile(T, T))
        if ds & 1:
            p(zero_o(4 + (ds >> 1), Z)); p(zero_o(6 + (ds >> 1), Z))
        p(ctx_store(T, 0)); p(ctx_store(T + 4, 1))
        if ds < 3:
            p("s_add_u32 s%d, s%d, 0x2000" % (sCb, sCb))
    for hh in range(2):
        so = sG
        p.add(["s_and_b32 s%d, s%d, 0x1ffff" % (sT, so), "s_add_u32 m0, s%d, s%d" % (sT, sW2k), kvld(so, 0), kvld(so, 1), "s_add_u32 s%d, s%d, 0x4000" % (so, so)])
    p("s_mov_b32 s%d, 1.0" % sKeep)
    p("s_cmp_ge_u32 s%d, 40\ns_cbranch_scc1 M_nowob" % sUB)
    wo_src(B_WO, sUB)
    p("M_nowob:")
    p("s_lshl_b32 s%d, s%d, 1" % (sCnt, sI))
    p("s_sub_u32 s%d, 14, s%d" % (sCnt, sCnt))
    st_()
    setcont("M_l2")
    p("M_l2:")
    iteration(0, True, 2, "l2", dec, ["s_cbranch_scc1 M_l2x"])
    iteration(1, True, 2, "l2", hk, ["s_cbranch_scc0 M_l2"])
    back = jump("s_setpc_b64 s[%d:%d]" % (sCont, sCont + 1), ["M_l1", "M_l1x", "M_l2"])
    vP = vA
    def bm2_loads(q):
        bm_frag_loads(q, 0, aXQ)
        q("s_lshl_b32 s%d, s%d, 16" % (sT, sIdx))
        q("s_lshl_b32 s%d, s%d, 14" % (sT2, sWave))
        q("s_add_u32 s%d, s%d, s%d" % (sT, sT, sT2))
        srd(q, sO, ptr(D_WS), off_s=sT, off_imm=WS_KVP, nrec=16384)
        for j in range(2):
            for k in range(5):
                if k in (0, 4):
                    q("s_mov_b32 s%d, %d" % (sT, j * 8192 + k * 1024))
                q("buffer_load_dwordx4 %s, v%d, s[%d:%d], s%d offen offset:%d %s" % (rr("a", aPA + j * 20 + k * 4, 4), vL16, sO, sO + 3, sT, (k & 3) * 1024, WT))
    pp, p = p, Prog()
    p("s_cmp_ge_u32 s%d, 40\ns_cbranch_scc1 M_nowob2" % sUB)
    wo_reads(True, woA)
    p(WL)
    wo_stores(True, sUB, woA, sY)
    p("M_nowob2:")
    wob_job, p = p.ins, pp
    jobs = {3: publish(3) + kv_store(0, 5) + kv_store(1, 5), 5: poll_load("KV") + kv_store(0, 6) + kv_store(1, 6), 7: poll_check("KV", 3) + kv_store(0, 7) + kv_store(1, 7),
            9: publish(4) + L(xclear0) + xclear(1), 13: poll_load(3) + xclear(2) + wob_job, 15: poll_check(3) + xclear(3) + L(bm2_loads)}
    p.add(chain(HOOKS[:-1]))
    for e in reversed(HOOKS):
        p("M_hook%d:" % e)
        ins = [x if isinstance(x, I) else I(x) for x in jobs[e]]
        for x in ins:
            if x.kind == "vmem":
                x.wr = set()
        p.add(ins + [back])
    p("M_l2x:")
    for f in range(8, 16):
        p(fread(f, 1))
    chk, br = slow_site(1)
    p.add(sm_stream(1, 1) + sum_mf(1) + chk + br + accl(1))
    p("s_waitcnt vmcnt(0) lgkmcnt(0)\ns_barrier")
    p.add(publish(5))
    mfl = pv_mf(1)
    mfl = [mfl[d * 4 + j] for jj in (2, 0) for d in range(8) for j in (jj, jj + 1)]
    sKq, sMb, sCc, sGc, sGw, sGw2, sWs, sRs, sW5, sDl = range(37, 47)
    sPC, sPW, sXO, sOut = sBO, sW2, sO, sW
    sIc, sIw = sKo, sNext
    vDw, vC, vWf = 3, 4, 8
    SZ = 36864
    odd = "s_bitcmp1_b32 s%d, 0" % sXcd
    pp, p = p, Prog()
    p("s_lshr_b32 s%d, s%d, 1" % (sKq, sXcd))
    p("s_lshr_b32 s%d, s%d, 3" % (sCc, sIdx))
    p("s_sub_u32 s%d, 15, s%d" % (sT, sI))
    p(odd)
    p("s_cselect_b32 s%d, s%d, s%d" % (sMb, sT, sI))
    p("s_cselect_b32 s%d, 6, 5" % sT2)
    p("v_mov_b32 v%d, s%d" % (vPoll + 1, sT2))
    p("s_and_b32 s%d, s2, 0x3e" % sT)
    p("v_bfe_u32 v%d, v%d, 1, 2" % (t1, vLane))
    p("v_lshl_add_u32 v%d, v%d, 6, s%d" % (t1, t1, sT))
    p("v_and_b32 v%d, 1, v%d" % (t2, vLane))
    p("v_add_lshl_u32 v%d, v%d, v%d, 7" % (vPoll, t1, t2))
    p("s_lshl_b32 s%d, s%d, 20" % (sT, sMb))
    p("s_lshl_b32 s%d, s%d, 18" % (sT2, sKq))
    p("s_add_u32 s%d, s%d, s%d" % (sT, sT, sT2))
    srd(p, sPC, ptr(D_WS), off_s=sT, off_imm=WS_CTX, nrec=32 * 8192)
    p("s_lshl_b32 s%d, s%d, 2" % (sT, sCc))
    p("s_add_u32 s%d, s%d, s%d" % (sT, sT, sKq))
    p("s_mul_i32 s%d, s%d, %d" % (sT, sT, 32 * 10240))
    srd(p, sPW, ptr(D_WS), off_s=sT, off_imm=WS_WOA, nrec=32 * 10240)
    p("s_mul_i32 s%d, s%d, 5120" % (sW5, sWave))
    p("v_add_u32 v%d, s%d, v%d" % (vDw, sW5, vL16))
    p("s_add_u32 s%d, s%d, 0x4000" % (sW5, sW5))
    p("s_movk_i32 s%d, 0x4000\ns_movk_i32 s%d, 0x5000" % (sIc, sIw))
    ldc = lambda k: "buffer_load_dwordx4 v%d, s[%d:%d], s%d offen offset:%d %s lds" % (vDma, sPC, sPC + 3, sGc, k * 1024, WT)
    ldw = lambda so, k: "buffer_load_dwordx4 v%d, s[%d:%d], s%d offen offset:%d %s lds" % (vDw, sPW, sPW + 3, so, k * 1024, WT)
    sSt, sBw = sDa, sDb
    dPos = ["s_mul_i32 s%d, s%d, s%d" % (sGc, sSt, sIc), "s_mul_i32 s%d, s%d, s%d" % (sGw, sSt, sIw), "s_add_u32 s%d, s%d, s%d" % (sGw, sGw, sBw),
            "s_add_u32 s%d, s%d, 0x1000" % (sGw2, sGw)]
    dC = [["s_add_u32 m0, s%d, s%d" % (sWs, sW4)]] + [ldc(k) for k in range(4)]
    dW = [["s_add_u32 m0, s%d, s%d" % (sWs, sW5)]] + [ldw(sGw, k) for k in range(4)] + [["s_add_u32 m0, m0, 0x1000"], ldw(sGw2, 0)]
    dAdv = ["s_add_u32 s%d, s%d, 1" % (sSt, sSt), "s_and_b32 s%d, s%d, 15" % (sSt, sSt),
            "s_add_u32 s%d, s%d, %d" % (sWs, sWs, SZ), "s_cmp_eq_u32 s%d, %d" % (sWs, 4 * SZ), "s_cselect_b32 s%d, 0, s%d" % (sWs, sWs)]
    p("s_and_b32 s%d, s%d, 7" % (sSt, sH))
    p("s_lshl_b32 s%d, s%d, 1" % (sSt, sSt))
    p("s_mov_b32 s%d, 0\ns_mov_b32 s%d, 0" % (sWs, sBw))
    p("v_add_u32 v%d, 0x20000, v%d" % (vKV, vDw))
    setup, p = p.ins, pp
    wpre = []
    for k in range(3):
        wpre += [(dAdv if k else []) + dPos + dW[0]] + dW[1:]
    Lr, SUM, KA, N = 96, 176, 200, 96
    vMw, vLw = vB, vB + 1
    p("s_mul_i32 s%d, s%d, %d" % (sT, sWave, SZ))
    p("v_add_u32 v%d, s%d, v%d" % (vMw, sT, vL16))
    p("v_lshlrev_b32 v%d, 4, v0" % vLw)
    p("v_add_u32 v%d, 0x%x, v%d" % (vLw, 124 * 1024, vLw))
    p("v_mov_b32 v%d, v%d\nv_mov_b32 v%d, v%d" % (vOne, vM + 2, vOne + 1, vM + 3))
    G = Gaps16(32)
    G.put(0, "ds_write_b128 v%d, %s" % (vLw, rr("v", vL + 2, 4)))
    for k in range(16):
        G.put(16 + k, "ds_write_b128 v%d, %s offset:%d" % (vMw, rr("a", O(2 + (k & 1), k >> 1), 4), k * 1024))
    for k in range(30):
        G.put(k, setup[k * len(setup) // 30:(k + 1) * len(setup) // 30], post=True)
    G.stream(["v_accvgpr_read_b32 v%d, a%d" % (Lr + k, aPA + k) for k in range(40)] + ["v_add_f32 v%d, v%d, v%d" % (Lr + e, Lr + e, Lr + 20 + e) for e in range(20)], 0, 31)
    p.add(G.emit(mfl))
    st_()
    for k in range(5):
        p("ds_write_b128 v%d, %s offset:%d" % (vKV, rr("v", Lr + 4 * k, 4), k * 1024))
    p("v_add_u32 v%d, s%d, v%d" % (vDma, sW4, vL16))
    p("v_and_b32 v%d, 31, v%d" % (t2, vLane))
    p("v_min_u32 v%d, 20, v%d" % (t2, t2))
    p("v_and_b32 v%d, 32, v%d" % (t1, vLane))
    p("v_add_lshl_u32 v%d, v%d, v%d, 4" % (vP, t1, t2))
    p("v_add_u32 v%d, 0x20000, v%d" % (vP, vP))
    p("s_xor_b32 s%d, s%d, 1" % (sT, sWave))
    p("s_mul_i32 s%d, s%d, %d" % (sT, sT, SZ))
    p("v_add_u32 v%d, s%d, v%d" % (t0, sT, vL16))
    p("v_xor_b32 v%d, 0x400, v%d" % (vLw, vLw))
    p("s_sub_u32 s%d, 15, s%d" % (sOff, sI))
    ctx_base(sOff)
    p(WL + "\ns_barrier")
    XO = 144
    p("ds_read_b128 %s, v%d" % (rr("v", TMP, 4), vLw))
    for k in range(16):
        p("ds_read_b128 %s, v%d offset:%d" % (rr("v", XO + (k >> 2) * 16 + (k & 1) * 8 + ((k >> 1) & 1) * 4, 4), t0, k * 1024))
    pp, p = p, Prog()
    for jj in range(2):
        fa, fb = vU + 2 * jj, vU + 2 * jj + 1
        p("v_min_f32 v%d, v%d, v%d" % (t1, vM + jj, TMP + 2 + jj))
        p("v_sub_f32 v%d, v%d, v%d" % (fa, t1, vM + jj))
        p("v_sub_f32 v%d, v%d, v%d" % (fb, t1, TMP + 2 + jj))
        p("v_exp_f32 v%d, v%d" % (fa, fa))
        p("v_exp_f32 v%d, v%d" % (fb, fb))
        p("v_mul_f32 v%d, v%d, v%d" % (vL + jj, vL + jj, fa))
        p("v_fmac_f32 v%d, v%d, v%d" % (vL + jj, TMP + jj, fb))
        p("v_rcp_f32 v%d, v%d" % (t1, vL + jj))
        p("v_mul_f32 v%d, v%d, v%d" % (fa, fa, t1))
        p("v_mul_f32 v%d, v%d, v%d" % (fb, fb, t1))
    KP = lambda ds: (32, 40, 212, 220)[ds]
    for ds in range(4):
        T = 48 + (ds & 1) * 16
        for jj in range(2):
            for k in range(8):
                p("v_accvgpr_read_b32 v%d, a%d" % (T + 8 * jj + k, O(jj, 2 * ds) + k))
        for jj in range(2):
            for k in range(0, 8, 2):
                p(pk_mulb(T + 8 * jj + k, T + 8 * jj + k, vU + 2 * jj))
            for k in range(0, 8, 2):
                p(pk_fmab(T + 8 * jj + k, XO + ds * 16 + jj * 8 + k, vU + 2 * jj + 1, T + 8 * jj + k))
        p.add(pack_tile(T, KP(ds)))
        p(ctx_store(KP(ds), 0)); p(ctx_store(KP(ds) + 4, 1))
        if ds < 3:
            p("s_addk_i32 s%d, 0x2000" % sCb)
    epi, p = p.ins, pp
    n1 = len(epi) * 2 // 3
    for k, x in enumerate(wpre):
        p.add([x] + epi[k * n1 // len(wpre):(k + 1) * n1 // len(wpre)])
    p.add(epi[n1:])
    st_()
    for w in range(4):
        for k in range(5):
            p("ds_read_b128 %s, v%d offset:%d" % (rr("v", Lr + w * 20 + 4 * k, 4), vP, w * 5120 + k * 1024))
    phi(aXQ)
    p("s_waitcnt vmcnt(0) lgkmcnt(0)\ns_barrier")
    p.add(publish(6))
    p(odd + "\ns_cbranch_scc0 M_own0")
    p("v_add_u32 v%d, s%d, v%d" % (t2, sW2k, vL16))
    for ds in range(4):
        for jj in range(2):
            p("ds_write_b128 v%d, %s offset:%d" % (t2, rr("v", KP(ds) + 4 * jj, 4), (ds >> 1) * SZ + (ds & 1) * 8192 + jj * 1024))
    p("s_branch M_own1\nM_own0:")
    p("s_and_b32 s%d, s%d, 7" % (sGc, sH))
    p("s_lshl_b32 s%d, s%d, 15" % (sGc, sGc))
    p.add(["s_mov_b32 m0, s%d" % sW4] + dC[1:] + ["s_add_u32 m0, m0, %d" % SZ, "s_addk_i32 s%d, 0x4000" % sGc] + dC[1:] + dPos[:1])
    p("M_own1:")
    sums = []
    for e in range(0, 20, 2):
        sums += [pk_add(Lr + e, Lr + e, Lr + 20 + e), pk_add(Lr + 40 + e, Lr + 40 + e, Lr + 60 + e)]
    sums += [pk_add(SUM + e, Lr + e, Lr + 40 + e) for e in range(0, 20, 2)]
    sums += ["v_cvt_pk_bf16_f32 v%d, v%d, v%d" % (KA + k, SUM + 2 * k, SUM + 2 * k + 1) for k in range(10)]
    sums += ["v_mov_b32 v%d, 0" % r for r in (KA + 10, KA + 11, PH + 10, PH + 11)]
    p.add(sums)
    def num(N):
        for u in range(3):
            p("%s %s, %s, %s, %s" % (MF, rr("v", N, 16), rr("v", KA + 4 * u, 4), rr("v", PH + 4 * u, 4), rr("v", N, 16) if u else "0"))
    num(N)
    p.add(poll_load("A"))
    phi(aXQ + 8)
    num(N + 32)
    p.add(poll_check("A"))
    p.add(dC + dAdv + dPos)
    p("s_lshr_b32 s%d, s%d, 1" % (sT, sTT))
    p("s_mul_i32 s%d, s%d, 81920" % (sT, sT))
    srd(p, sY, ptr(D_WS), off_s=sT, off_imm=WS_OB, nrec=81920)
    vO = vA
    p("v_and_b32 v%d, 15, v%d" % (t0, vLane))
    p("v_bfe_u32 v%d, v%d, 4, 1" % (t2, vLane))
    p("v_lshlrev_b32 v%d, 10, v%d" % (t2, t2))
    p("v_lshrrev_b32 v%d, 5, v%d" % (t1, vLane))
    p("v_lshl_add_u32 v%d, v%d, 4, v%d" % (vO, t0, t2))
    p("v_lshl_add_u32 v%d, v%d, 8, v%d" % (vO, t1, vO))
    p("v_lshl_add_u32 v%d, v%d, 3, v%d" % (vO + 1, t0, t2))
    p("v_lshl_add_u32 v%d, v%d, 31, v%d" % (vO + 1, t1, vO + 1))
    p("s_lshr_b32 s%d, s%d, 3" % (sT, sIdx))
    p("s_mul_i32 s%d, s%d, 20480" % (sT, sT))
    p("s_bfe_u32 s%d, s%d, 0x20001" % (sT2, sIdx))
    p("s_and_b32 s%d, s%d, 1" % (sSpin, sIdx))
    p("s_lshl_b32 s%d, s%d, 7" % (sOff, sI))
    p("s_add_u32 s%d, s%d, s%d" % (sOff, sOff, sT))
    p("s_addk_i32 s%d, 0x4000" % sOff)
    p("s_lshl_b32 s%d, s%d, 12" % (sT2, sT2))
    p("s_lshl_b32 s%d, s%d, 9" % (sSpin, sSpin))
    p("s_add_u32 s%d, s%d, s%d" % (sT, sT, sT2))
    p("s_add_u32 s%d, s%d, s%d" % (sT, sT, sSpin))
    for tt in range(2):
        n0 = N + 32 * tt
        p("v_add_f32 v%d, 0x%x, v%d" % (n0 + 12, f2u(1e-6), n0 + 12))
        p("v_rcp_f32 v%d, v%d" % (n0 + 12, n0 + 12))
        for k in range(0, 12, 2):
            p(pk_mulb(n0 + k, n0 + k, n0 + 12))
        for k in range(6):
            p("v_cvt_pk_bf16_f32 v%d, v%d, v%d" % (n0 + 16 + k, n0 + 2 * k, n0 + 2 * k + 1))
        p("buffer_store_dwordx4 %s, v%d, s[%d:%d], s%d offen offset:%d %s" % (rr("v", n0 + 16, 4), vO, sY, sY + 3, sT, tt * 2048, WT))
        if os.environ.get("X_OB") == "1":
            p("buffer_store_dwordx4 %s, v%d, s[%d:%d], s%d offen offset:%d %s" % (rr("v", n0 + 16, 4), vO, sY, sY + 3, sT, tt * 2048, WT))
        else:
            p("buffer_store_dwordx2 %s, v%d, s[%d:%d], s%d offen offset:%d %s" % (rr("v", n0 + 20, 2), vO + 1, sY, sY + 3, sOff, tt * 2048, WT))
    MF16 = "v_mfma_f32_16x16x32_bf16"
    PA = 160
    pacc = lambda q, n: PA + (q * 5 + n) * 4
    pfr = lambda st, i: st * 36 + i * 4
    aOB = 80
    p("s_lshr_b32 s%d, s%d, 1" % (sT, sWave))
    p("s_lshl_b32 s%d, s%d, 2" % (sT, sT))
    p("s_add_u32 s%d, s%d, s%d" % (sT, sT, sKq))
    p("s_lshl_b32 s%d, s%d, 10" % (sT, sT))
    p("v_add_u32 v%d, s%d, v%d" % (vC, sT, vL16))
    for qq in range(1, 4):
        p("v_xor_b32 v%d, 0x%x, v%d" % (vC + qq, qq << 10, vC))
    p("s_and_b32 s%d, s%d, 1" % (sT, sWave))
    p("s_mul_i32 s%d, s%d, 5120" % (sT, sT))
    p("s_add_u32 s%d, s%d, 0x4000" % (sT, sT))
    p("v_add_u32 v%d, s%d, v%d" % (vWf, sT, vL16))
    p("s_mov_b32 s%d, 0" % sRs)
    for k in range(4):
        p("v_mov_b32 v%d, 0" % (32 + k))
    for k in range(5):
        p("%s %s, v[32:35], v[32:35], 0" % (MF, rr("v", PA + 16 * k, 16)))
    def p_reads(st):
        c = ["ds_read_b128 %s, v%d offset:%d" % (rr("a", pfr(st, qq), 4), vC + qq, st * 8192) for qq in range(4)]
        w = ["ds_read_b128 %s, v%d offset:%d" % (rr("a", pfr(st, 4 + n), 4), vWf, st * 10240 + n * 1024) for n in range(5)]
        return [w[0]] + c + w[1:]
    p_mf = lambda st: ["%s %s, %s, %s, %s" % (MF16, rr("v", pacc(qq, n), 4), rr("a", pfr(st, 4 + n), 4), rr("a", pfr(st, qq), 4), rr("v", pacc(qq, n), 4)) for n in range(5) for qq in range(4)]
    G = Gaps(40)
    G.spread(p_reads(1), 0, 12)
    G.put(19, ["s_waitcnt vmcnt(13) lgkmcnt(0)", "s_barrier"])
    G.put(13, ["s_add_u32 s%d, s%d, 1" % (sRs, sRs), "s_and_b32 s%d, s%d, 3" % (sRs, sRs)])
    G.put(14, ["s_mov_b32 s%d, %d" % (sDl, SZ), "s_cselect_b32 s%d, s%d, 0x%x" % (sDl, sDl, u32(-3 * SZ))])
    G.spread(["v_add_u32 v%d, s%d, v%d" % (r, sDl, r) for r in (vWf, vC, vC + 1, vC + 2, vC + 3)], 15, 18)
    G.spread(p_reads(0), 20, 32)
    for k, x in enumerate(dC):
        G.put(max(0, 4 * k - 1) + (1 if k == 0 else 0), x)
    for k, x in zip((20, 21, 25, 29, 33, 36, 37), dW):
        G.put(k, x)
    G.spread(dAdv, 30, 35); G.put(38, dPos); G.put(39, ["s_sub_u32 s%d, s%d, 1" % (sNlo, sNlo), WL, "s_cbranch_scc0 M_p3"])
    o3 = [x if isinstance(x, I) else I(x) for x in G.emit(p_mf(0) + p_mf(1))]
    X3 = os.environ.get("X_P3", "")
    if "m" in X3: o3 = [x for x in o3 if x.kind not in ("mfma", "ds")]
    if "d" in X3: o3 = [x for x in o3 if x.kind != "dma"]
    if "s" in X3: o3 = [I(x.text.replace(" sc1", "")) if x.kind == "dma" else x for x in o3]
    tail.extend(["M_p3:"] + o3 + [ret])
    st_()
    p("s_waitcnt vmcnt(8) lgkmcnt(0)\ns_barrier")
    st_()
    p.add(p_reads(0))
    p(WL)
    def run(n):
        p("s_mov_b32 s%d, %d" % (sNlo, n - 1))
        p(call("M_p3"))
        if os.environ.get("FINE3") and n != 14:
            st_()
    xr = lambda qq: (PA + qq * 20, PA + qq * 20 + 4, PA + qq * 20 + 8)
    def xrecv(q):
        for qq in range(1, 4):
            xfer(q, "load", qq, sXO, vDw, vC, xr(qq))
    for _ in range(3 if os.environ.get("FINE3") else 1):
        run(1 if os.environ.get("FINE3") else 3)
    p.add(publish(7))
    run(5)
    p("s_lshr_b32 s%d, s%d, 4" % (sT, sIdx))
    p("v_min_u32 v%d, 19, v%d" % (t0, vLane))
    p("v_lshl_add_u32 v%d, v%d, 1, s%d" % (t0, t0, sT))
    p("v_lshrrev_b32 v%d, 3, v%d" % (t1, t0))
    p("v_lshlrev_b32 v%d, 6, v%d" % (t1, t1))
    p("v_and_b32 v%d, 7, v%d" % (t2, t0))
    p("v_add_u32 v%d, v%d, v%d" % (t1, t1, t2))
    p("v_subrev_u32 v%d, 24, v%d" % (t2, t0))
    p("v_cmp_gt_u32 vcc, 32, v%d" % t0)
    p("v_cndmask_b32 v%d, v%d, v%d, vcc" % (t0, t2, t1))
    p("s_andn2_b32 s%d, s2, 6" % sT)
    p("v_and_b32 v%d, 6, v%d" % (t1, vLane))
    p("v_add_u32 v%d, s%d, v%d" % (t1, sT, t1))
    p("v_cmp_gt_u32 vcc, 20, v%d" % vLane)
    p("v_cndmask_b32 v%d, v%d, v%d, vcc" % (t0, t1, t0))
    p("v_and_b32 v%d, 31, v%d" % (t1, vLane))
    p("v_lshl_add_u32 v%d, v%d, 3, s%d" % (t1, t1, sXcd))
    p("v_cmp_gt_u32 vcc, 32, v%d" % vLane)
    p("v_cndmask_b32 v%d, v%d, v%d, vcc" % (vPoll, t1, t0))
    p("v_lshlrev_b32 v%d, 7, v%d" % (vPoll, vPoll))
    p("v_cndmask_b32 v%d, 7, 5, vcc" % (vPoll + 1))
    p.add(poll_load("B"))
    p("s_lshl_b32 s%d, s%d, 2" % (sTT, sXcd))
    p("s_and_b32 s%d, s%d, 3" % (sT, sIdx))
    p("s_add_u32 s%d, s%d, s%d" % (sTT, sTT, sT))
    p("s_mul_i32 s%d, s%d, 81920" % (sT, sTT))
    srd(p, sY, ptr(D_WS), off_s=sT, off_imm=WS_OB, nrec=81920)
    p("s_lshl_b32 s%d, s%d, 10" % (sOff, sWave))
    p("v_and_b32 v%d, 15, v%d" % (t0, vLane))
    p("v_lshlrev_b32 v%d, 3, v%d" % (t0, t0))
    p("v_sub_u32 v%d, v%d, v%d" % (vO, vL16, t0))
    run(2)
    p.add(poll_check("B"))
    for s in range(10, 16):
        if s == 13:
            p("s_lshr_b32 s%d, s%d, 2" % (sT, sIdx))
            p("s_mul_i32 s%d, s%d, 102400" % (sT, sT))
            srd(p, sPC, ptr(D_WS), off_s=sT, off_imm=WS_WOB, nrec=102400)
            p("s_mov_b64 s[%d:%d], s[%d:%d]\ns_mov_b32 s%d, s%d" % (sPW, sPW + 1, sPC, sPC + 1, sPW + 2, sPC + 2))
            p("s_mov_b32 s%d, 0\ns_mov_b32 s%d, %d\ns_mov_b32 s%d, %d\ns_movk_i32 s%d, 0x4000" % (sSt, sIc, SZ, sIw, SZ, sBw))
            p.add(dPos)
        for ks in range(20)[(s - 10) * 20 // 6:(s - 9) * 20 // 6]:
            if ks % 5 == 4:
                for u in range(2):
                    p("buffer_load_dwordx2 %s, v%d, s[%d:%d], s%d offen offset:%d %s" % (rr("a", aOB + 4 * ks + 2 * u, 2), vO, sY, sY + 3, sOff, u * 128, WT))
            else:
                p("buffer_load_dwordx4 %s, v%d, s[%d:%d], s%d offen %s" % (rr("a", aOB + 4 * ks, 4), vL16, sY, sY + 3, sOff, WT))
            p("s_addk_i32 s%d, 0x1000" % sOff)
        run(1)
    st_()
    xsetup(p, sXO, vDw, vC)
    for qq in range(1, 4):
        for k in range(10):
            p("v_cvt_pk_bf16_f32 v%d, v%d, v%d" % (PA + qq * 20 + k, PA + qq * 20 + 2 * k, PA + qq * 20 + 2 * k + 1))
        for k in range(10):
            p("v_min_u32 v%d, -2, v%d" % (PA + qq * 20 + k, PA + qq * 20 + k))
        xfer(p, "store", qq, sXO, vDw, vC, xr(qq))
    BA = 32
    p("v_add_u32 v%d, %d, v%d" % (vWf, 10 * 5120, vL16))
    p("s_waitcnt vmcnt(9)\ns_barrier")
    bfr = lambda k: (k % 15) * 4
    brd = lambda k: "ds_read_b128 %s, v%d offset:%d" % (rr("a", bfr(k), 4), vWf if k >= 50 else vL16, (k % 50) * 1024)
    for k in range(10):
        p(brd(k))
    for k in range(100):
        ks, n = divmod(k, 5)
        a = rr("v", BA + 4 * n, 4)
        if n == 0:
            p.add([I("need", xrd=[("a", bfr(k + 4) + e) for e in range(4)])])
        p("%s %s, %s, %s, %s" % (MF16, a, rr("a", bfr(k), 4), rr("a", aOB + 4 * ks, 4), a if ks else "0"))
        if k + 10 < 100:
            p(brd(k + 10))
        if k == int(os.environ.get("XK", "80")):
            xrecv(p)
    st_()
    srd(p, sOut, ptr(D_OUT), nrec=2048 * 2560)
    p("v_and_b32 v%d, 15, v%d" % (t0, vLane))
    p("v_mul_u32_u24 v%d, 2560, v%d" % (vWf, t0))
    p("v_lshrrev_b32 v%d, 4, v%d" % (t0, vLane))
    p("v_lshl_add_u32 v%d, v%d, 3, v%d" % (vWf, t0, vWf))
    p("s_lshl_b32 s%d, s%d, 2" % (sT, sTT))
    p("s_add_u32 s%d, s%d, s%d" % (sT, sT, sWave))
    p("s_mul_i32 s%d, s%d, %d" % (sT, sT, 16 * 2560))
    p("s_lshr_b32 s%d, s%d, 2" % (sT2, sIdx))
    p("s_mul_i32 s%d, s%d, 160" % (sT2, sT2))
    p("s_add_u32 s%d, s%d, s%d" % (sOff, sT, sT2))
    for n in range(5):
        b = BA + 4 * n
        p("v_cvt_pk_bf16_f32 v%d, v%d, v%d" % (b, b, b + 1))
        p("v_cvt_pk_bf16_f32 v%d, v%d, v%d" % (b + 1, b + 2, b + 3))
        p("buffer_store_dwordx2 %s, v%d, s[%d:%d], s%d offen offset:%d" % (rr("v", b, 2), vWf, sOut, sOut + 3, sOff, 1280 + n * 32))
    p("s_lshl_b32 s%d, s%d, 3" % (sT, sMb))
    p("s_lshr_b32 s%d, s%d, 1" % (sT2, sWave))
    p("s_lshl_b32 s%d, s%d, 2" % (sT2, sT2))
    p("s_add_u32 s%d, s%d, s%d" % (sT, sT, sT2))
    p("s_add_u32 s%d, s%d, s%d" % (sT, sT, sKq))
    p("s_mul_i32 s%d, s%d, %d" % (sT, sT, 16 * 2560))
    p("s_lshl_b32 s%d, s%d, 1" % (sT2, sCc))
    p("s_and_b32 s%d, s%d, 1" % (sOff, sWave))
    p("s_add_u32 s%d, s%d, s%d" % (sT2, sT2, sOff))
    p("s_mul_i32 s%d, s%d, 160" % (sT2, sT2))
    p("s_add_u32 s%d, s%d, s%d" % (sOff, sT, sT2))
    if os.environ.get("FINE3"): st_()
    p("s_mov_b32 s%d, 0x40000\nM_xchk:" % sSpin)
    xs = [PA + qq * 20 + k for qq in range(1, 4) for k in range(10)]
    p("v_max_u32 v%d, v%d, v%d" % (t0, xs[0], xs[1]))
    for k in range(2, 30, 2):
        p("v_max3_u32 v%d, v%d, v%d, v%d" % (t0, t0, xs[k], xs[k + 1]))
    p("v_cmp_eq_u32 vcc, -1, v%d\ns_cbranch_vccnz M_xagain\nM_xok:" % t0)
    p("s_mov_b32 s%d, 0xffff0000" % sT)
    tail.extend(["M_xagain:"] + L(xrecv) + ["s_waitcnt vmcnt(0)", "s_sub_u32 s%d, s%d, 1" % (sSpin, sSpin), "s_cbranch_scc0 M_xchk", "s_branch M_xok"])
    for qq in range(1, 4):
        for k in range(10):
            r = PA + qq * 20 + k
            u = 96 + 2 * (k & 3)
            p("v_lshlrev_b32 v%d, 16, v%d" % (u, r))
            p("v_and_b32 v%d, s%d, v%d" % (u + 1, sT, r))
            p(pk_add(PA + 2 * k, PA + 2 * k, u))
    for n in range(5):
        b = pacc(0, n)
        p("v_cvt_pk_bf16_f32 v%d, v%d, v%d" % (b, b, b + 1))
        p("v_cvt_pk_bf16_f32 v%d, v%d, v%d" % (b + 1, b + 2, b + 3))
        p("buffer_store_dwordx2 %s, v%d, s[%d:%d], s%d offen offset:%d" % (rr("v", b, 2), vWf, sOut, sOut + 3, sOff, n * 32))
    st_()
    st_.dump(vtmp=t0)
    p("M_exit:\ns_endpgm")
    p.add(tail)
    for par in range(2):
        p("M_slow%d:" % par)
        p("s_nop 15")
        for j in range(4):
            d, f, d2 = vU + 2, vU + 3, vU + 4
            p.add(rowmax(par, j, d, f))
            p("v_max_f32 v%d, 0, v%d" % (d, d))
            p("v_exp_f32 v%d, -v%d" % (f, d))
            if j >= 2:
                p("v_mul_f32 v%d, s%d, v%d" % (d2, sKeep, d))
            else:
                d2 = d
            for k in range(8):
                p("v_sub_f32 v%d, v%d, v%d" % (S(par, j) + k, S(par, j) + k, d))
                for b in (S(par ^ 1, j), CI(j)):
                    p("v_sub_f32 v%d, v%d, v%d" % (b + k, b + k, d2))
            p("v_sub_f32 v%d, v%d, v%d" % (vM + j, vM + j, d2))
            p("v_mul_f32 v%d, v%d, v%d" % (vL + j, vL + j, f))
            for k in range(0, 32, 8):
                for e in range(8):
                    p("v_accvgpr_read_b32 v%d, a%d" % (TMP + e, O(j, 0) + k + e))
                for e in range(8):
                    p("v_mul_f32 v%d, v%d, v%d" % (TMP + e, TMP + e, f))
                for e in range(8):
                    p("v_accvgpr_write_b32 a%d, v%d" % (O(j, 0) + k + e, TMP + e))
        p.add(sm_stream(par, 2) + sum_mf(par))
        p.add([x for x in sm_stream(par ^ 1, 0) if x.startswith("v_exp")][:NE])
        p("s_nop 3")
        p(ret)
    p("M_codeend:")
    if os.environ.get("NOST"):
        p.ins = [I("buffer_load_dword v%d, off, s[%d:%d], 0" % (vA + 3, sD, sD + 3)) if (i.mn == "buffer_store_dwordx4" and ("s[16:19]" in i.text or "s[24:27]" in i.text) and i.ops[0][0] == "v") else i for i in p.ins]
    p.finish()
    return p
```

```python
from asmlib import *
from layout import *
from k_p1 import srd, x_rd_addr, w_rd_addr, MF
import os, struct

def f2u(x):
    return struct.unpack("<I", struct.pack("<f", x))[0]

NEG = 0xF149F2CA
THRESH = int(os.environ.get("THRESH", "0x5F800000"), 0)
BIAS = float(os.environ.get("BIAS", "40"))
QSCALE = f2u((128 ** -0.5) * 1.4426950408889634)
LOG2E = f2u(1.4426950408889634)
WT = os.environ.get("WT", "sc1")
PREFETCH = int(os.environ.get("PREFETCH", "3"))
NTW = os.environ.get("NTW", "nt")
WE = int(os.environ.get("WE", "10"))
CODEPF = int(os.environ.get("CODEPF", "1"))
WBL2 = int(os.environ.get("WBL2", "0"))
VERB = int(os.environ.get("VERB", "0"))
U = 16384
M16 = "v_mfma_f32_16x16x32_bf16"
u32 = lambda x: x & 0xffffffff

def L(f, *a, **k):
    q = Prog()
    f(q, *a, **k)
    return q.ins

def build_main():
    p = Prog()
    sX, sW, sW2, sO, sD, sBO = 4, 8, 12, 16, 20, 24
    sBF, sPhi, sY, sC, sKV = sW2, sO, sX, sW, sBO
    sH, sI, sWave, sW4, sT, sT2, sOff, sXcd, sIdx, sTB, sCB, sHi, sLo = range(28, 41)
    sM, sS, sKo, sRet, sTT, sL2, sSpin, sBo = 41, 44, 47, 48, 50, 51, 52, 53
    sRd, sGv, sG, sIt, sNb, sTriA, sTriB, sThr, sCnt, sCb = range(37, 47)
    sMask, sNext, sKeep, sW2k, sNlo, sCont = 54, 92, 93, 94, 95, 82
    sDa, sDb, sDc = 86, 87, 83
    P = 56
    ptr = lambda off: P + off // 4
    vLane = 1
    vX, vW, vXr, vWr = 2, 6, 10, 14
    vL16, t0, t1, t2, vDum, vStamp, vA = 22, 23, 24, 25, 26, 27, 28
    vGo = vA + 1
    vDma, vLim, vNeg, vKV, vB, vL, vOne, vM, vPoll, vU = 2, 3, 4, 5, 6, 8, 12, 16, 20, 232
    vMp = vA + 2
    RA, RB, RC, RD = 32, 96, 160, 224
    TMP, AW = 224, 240
    S = lambda par, j: 32 + par * 32 + j * 8
    CI = lambda j: 96 + j * 8
    PP = lambda par, j: 128 + par * 16 + j * 4
    Q = lambda j, ds: 160 + j * 16 + ds * 4
    O = lambda j, d: j * 32 + d * 4
    FB = lambda j: 128 + j * 4
    aXF, aVF, aRAW, aPA, aPK = 128, 144, 96, 192, 192
    tail = []
    ret = "s_setpc_b64 s[%d:%d]" % (sRet, sRet + 1)
    call = lambda lab: "s_call_b64 s[%d:%d], %s" % (sRet, sRet + 1, lab)

    def x_voffs(pitch, wsh=5):
        return ["v_lshrrev_b32 v%d, 3, v%d" % (t0, vLane),
                "s_lshl_b32 s%d, s%d, %d" % (sT, sWave, wsh),
                "v_add_u32 v%d, s%d, v%d" % (t0, sT, t0),
                "v_mul_u32_u24 v%d, %d, v%d" % (t0, pitch, t0),
                "v_lshrrev_b32 v%d, 4, v%d" % (t1, vLane),
                "v_and_b32 v%d, 7, v%d" % (t2, vLane),
                "v_xor_b32 v%d, v%d, v%d" % (t2, t2, t1),
                "v_lshl_add_u32 v%d, v%d, 4, v%d" % (vX, t2, t0),
                "v_xor_b32 v%d, 4, v%d" % (t2, t2),
                "v_lshl_add_u32 v%d, v%d, 4, v%d" % (vX + 1, t2, t0),
                "v_add_u32 v%d, %d, v%d" % (vX + 1, 8 * pitch - 1024, vX + 1),
                "v_add_u32 v%d, %d, v%d" % (vX + 2, 2 * (8 * pitch - 1024), vX),
                "v_add_u32 v%d, %d, v%d" % (vX + 3, 2 * (8 * pitch - 1024), vX + 1)]
    def w_voffs(pitch, m16):
        r = ["v_lshrrev_b32 v%d, 4, v%d" % (t0, vLane),
             "v_lshlrev_b32 v%d, 2, v%d" % (t1, t0),
             "s_lshl_b32 s%d, s%d, 4" % (sT, sWave),
             "v_add_u32 v%d, s%d, v%d" % (t0, sT, t0),
             "v_mul_u32_u24 v%d, %d, v%d" % (t0, pitch, t0),
             "v_and_b32 v%d, 15, v%d" % (t2, vLane),
             "v_xor_b32 v%d, v%d, v%d" % (t2, t2, t1),
             "v_lshl_add_u32 v%d, v%d, 4, v%d" % (vW, t2, t0)] + \
            ["v_add_u32 v%d, %d, v%d" % (vW + k, k * (4 * pitch - 1024), vW) for k in range(1, 4)]
        if m16:
            r += ["v_xor_b32 v%d, 32, v%d" % (vW + k, vW + k) for k in (2, 3)]
        return r
    def x_rd16(dst):
        return ["v_and_b32 v%d, 15, v%d" % (t0, vLane), "v_bfe_u32 v%d, v%d, 1, 3" % (t1, vLane), "v_lshrrev_b32 v%d, 4, v%d" % (dst, vLane),
                "v_xor_b32 v%d, v%d, v%d" % (dst, dst, t1), "v_lshlrev_b32 v%d, 4, v%d" % (dst, dst), "v_lshl_add_u32 v%d, v%d, 7, v%d" % (dst, t0, dst)]
    def w_rd16(dst):
        return ["v_bfe_u32 v%d, v%d, 2, 2" % (t0, vLane), "v_lshrrev_b32 v%d, 4, v%d" % (t1, vLane),
                "v_lshlrev_b32 v%d, 11, v%d" % (dst, t1), "v_lshl_add_u32 v%d, v%d, 8, v%d" % (dst, t0, dst), "v_lshl_add_u32 v%d, v%d, 6, v%d" % (dst, t0, dst),
                "v_and_b32 v%d, 1, v%d" % (t1, t1), "v_lshl_add_u32 v%d, v%d, 5, v%d" % (dst, t1, dst),
                "v_and_b32 v%d, 3, v%d" % (t0, vLane), "v_lshl_add_u32 v%d, v%d, 3, v%d" % (dst, t0, dst)]
    def dma(i, srdn, fl=""):
        v = vX if srdn == sX else vW
        return [["s_mov_b32 m0, s%d" % (sM + i)]] + \
               ["buffer_load_dwordx4 v%d, s[%d:%d], s%d offen offset:%d %s lds" % (v + q, srdn, srdn + 3, sS + i, q * 1024, fl) for q in range(4)]
    def put_dma(G, i, srdn, lo, hi, fl=""):
        d = dma(i, srdn, fl)
        G.put(lo, d[0])
        G.spread(d[1:], lo + 1, hi)
    def w_srd(q, d, which, col_s, total):
        q("s_lshl_b32 s%d, s%d, 8" % (sT, col_s))
        srd(q, d, ptr(which), off_s=sT)
        q("s_sub_u32 s%d, %d, s%d" % (d + 2, total, sT))
    def sw_XB(q):
        q("s_mul_i32 s%d, s%d, %d" % (sT, sTB, 128 * 1280))
        srd(q, sX, ptr(B_X), off_s=sT)
        q("s_cmp_lt_u32 s2, 240\ns_cselect_b32 s%d, %d, 0" % (sX + 2, 128 * 1280))
        q.add(x_voffs(1280))
    def sw_WB(q):
        w_srd(q, sW, B_WQKV, sCB, 640 * 3840)
        q("s_cmp_lt_u32 s2, 240\ns_cselect_b32 s%d, s%d, 0" % (sW + 2, sW + 2))
        q("s_mov_b64 s[%d:%d], s[%d:%d]\ns_mov_b32 s%d, s%d" % (sW2, sW2 + 1, sW, sW + 1, sW2 + 2, sW + 2))
        q.add(w_voffs(3840, 0))
    def sw_XQ(q):
        srd(q, sX, ptr(A_X), nrec=2048 * 1280)
    def sw_WQ(q):
        w_srd(q, sW, A_WQ, sH, 640 * 8192)
        q.add(w_voffs(8192, 1))

    class Plan:
        def __init__(s):
            s.vm, s.unit, s.free, s.when, s.now = [], {}, [], {}, 0
            s.pend = {"X": [], "W": []}
            s.job = {"X": "KV", "W": "KV"}
            for st in range(8):
                for g in range(2):
                    s.pend["X"].append((("KX", st, g), "KV", st, str(g * 256 * 1024 + st * 128), ((2 * st) % 5) * 2 + g))
                    s.pend["W"].append((("KW", st, g), "KV", st, str(st * 64 * 8192), ((2 * st + 1) % 5) * 2 + g))
            for b in range(10):
                s.pend["X"].append((("BX", b), "B", 8 + b, str(b * 128), None))
                s.pend["W"].append((("BW", b), "B", 8 + b, str(b * 64 * 3840), None))
            for st in range(10):
                s.pend["X"].append((("QX", st, 0), "Q", 18 + st, (sHi, st * 128), None))
                s.pend["X"].append((("QX", st, 1), "Q", 18 + st, (sLo, st * 128), None))
                s.pend["W"].append((("QW", st), "Q", 18 + st, str(st * 64 * 8192), None))
            s.free = list(range(10))
        def copy(s):
            import copy
            return copy.deepcopy(s)
        def take(s, ty, i):
            oth = "W" if ty == "X" else "X"
            pre = []
            c = s.pend[ty][0] if s.pend[ty] else None
            if c is not None:
                if c[4] is not None:
                    ok = c[4] in s.free
                else:
                    resv = {g[4] for t in "XW" for g in s.pend[t] if g[4] is not None}
                    av = [x for x in s.free if x not in resv]
                    ok = len(av) - 1 >= sum(1 for g in s.pend[oth] if g[2] < c[2] and g[4] is None)
                if not ok:
                    c = None
            if c is None:
                return ["s_mov_b32 s%d, 0x30000" % (sM + i), "s_brev_b32 s%d, 1" % (sS + i)], None
            s.pend[ty].pop(0)
            un = c[4] if c[4] is not None else av[0]
            s.free.remove(un)
            s.unit[c[0]] = un
            s.when[c[0]] = s.now
            if c[1] != s.job[ty]:
                s.job[ty] = c[1]
                pre += L({"XB": sw_XB, "WB": sw_WB, "XQ": sw_XQ, "WQ": sw_WQ}[ty + c[1]])
            pre.append("s_add_u32 s%d, s%d, 0x%x" % (sM + i, sW4, un * U))
            if isinstance(c[3], tuple):
                pre.append("s_add_u32 s%d, s%d, %d" % (sS + i, c[3][0], c[3][1]))
            else:
                pre.append("s_mov_b32 s%d, %s" % (sS + i, c[3]))
            return pre, c[0]
        def issue(s, tag, n=4):
            s.vm += [tag] * n
        def hook(s, ins, tag="h"):
            for t in ins:
                i = t if isinstance(t, I) else I(t)
                if i.cnt == "vm":
                    s.vm.append(tag)
        def barrier(s, need, free, dt):
            last = max(max(k for k, t in enumerate(s.vm) if t == n) for n in need) if need else -1
            N = len(s.vm) - 1 - last
            if VERB:
                print("barrier need", need, "N", N, "flight", [s.now - s.when[n] for n in need if n in s.when])
            for f in free:
                s.free.append(s.unit[f])
            s.now += dt
            s.done = last
            return ["s_waitcnt %slgkmcnt(0)" % ("vmcnt(%d) " % min(N, 63) if need else ""), "s_barrier"]
        def complete(s, tag):
            return max(k for k, t in enumerate(s.vm) if t == tag) <= s.done
    pl = Plan()

    def pf_lin(which, total, k):
        share = total // 32
        return ["s_mul_i32 s%d, s%d, %d" % (sT, sIdx, share), "s_lshl_b32 s%d, s%d, 13" % (sT2, sWave), "s_add_u32 s%d, s%d, s%d" % (sT, sT, sT2),
                "s_add_u32 s%d, s%d, %d" % (sT, sT, k * 32768),
                "v_lshl_add_u32 v%d, v%d, 7, s%d" % (t0, vLane, sT), "v_min_u32 v%d, %d, v%d" % (t0, total - 128, t0),
                "global_load_dword v%d, v%d, s[%d:%d]" % (vDum, t0, ptr(which), ptr(which) + 1)]
    def pf_w(which, rows):
        share = rows // 32
        return ["s_mul_i32 s%d, s%d, %d" % (sT, sIdx, share), "s_lshl_b32 s%d, s%d, 3" % (sT2, sWave), "s_add_u32 s%d, s%d, s%d" % (sT, sT, sT2),
                "v_lshrrev_b32 v%d, 3, v%d" % (t0, vLane), "v_add_u32 v%d, s%d, v%d" % (t0, sT, t0), "v_min_u32 v%d, %d, v%d" % (t0, rows - 1, t0),
                "v_lshlrev_b32 v%d, 13, v%d" % (t0, t0), "v_and_b32 v%d, 7, v%d" % (t1, vLane), "v_lshl_add_u32 v%d, v%d, 7, v%d" % (t0, t1, t0),
                "s_lshl_b32 s%d, s%d, 10" % (sT, sXcd), "v_add_u32 v%d, s%d, v%d" % (t0, sT, t0),
                "global_load_dword v%d, v%d, s[%d:%d]" % (vDum, t0, ptr(which), ptr(which) + 1)]
    def pf_bx():
        return ["s_mul_i32 s%d, s%d, %d" % (sT, sXcd, 256 * 1280), "s_mul_i32 s%d, s%d, 10240" % (sT2, sIdx), "s_add_u32 s%d, s%d, s%d" % (sT, sT, sT2),
                "v_lshlrev_b32 v%d, 7, v0" % t0, "v_min_u32 v%d, %d, v%d" % (t0, 10240 - 128, t0), "v_add_u32 v%d, s%d, v%d" % (t0, sT, t0),
                "global_load_dword v%d, v%d, s[%d:%d]" % (vDum, t0, ptr(B_X), ptr(B_X) + 1)]

    def extra(ty, keep):
        if len(pl.free) <= keep:
            return []
        pre, tag = pl.take(ty, 2)
        if tag is None:
            return []
        pl.issue(tag)
        d = dma(2, sX if ty == "X" else sW)
        return pre + d[0] + d[1:]
    def skel(last_mf, bar, mf, custom, target, NP=2):
        if last_mf:
            p(last_mf)
        p.add(bar)
        n = len(custom)
        for k in range(NP):
            p.add([mf[k]] + custom[k * n // NP:(k + 1) * n // NP])
        p(call(target))
    def body(name, G, mf, entries=None, NP=2):
        out = ["%s:" % name]
        for k in range(NP, G.n - 1):
            if entries and k in entries:
                out.append("%s:" % entries[k])
            out += [mf[k]] + G.gap(k)
        assert not any(G.gap(k) for k in list(range(NP)) + [G.n - 1])
        tail.extend(out + [ret])
    v2 = lambda r: rr("v", r, 2)
    bsel = lambda b, pos, n: "op_sel:[%s] op_sel_hi:[%s]" % (",".join(str(b & 1) if k == pos else "0" for k in range(n)), ",".join(str(b & 1) if k == pos else "1" for k in range(n)))
    pk_mulb = lambda d, a, b: "v_pk_mul_f32 %s, %s, %s %s" % (v2(d), v2(a), v2(b & ~1), bsel(b, 1, 2))
    pk_subb = lambda d, a, b: "v_pk_add_f32 %s, %s, %s %s neg_lo:[0,1] neg_hi:[0,1]" % (v2(d), v2(a), v2(b & ~1), bsel(b, 1, 2))
    pk_fmab = lambda d, a, b, c: "v_pk_fma_f32 %s, %s, %s, %s %s" % (v2(d), v2(a), v2(b & ~1), v2(c), bsel(b, 1, 3))
    pk_add = lambda d, a, b: "v_pk_add_f32 %s, %s, %s" % (v2(d), v2(a), v2(b))
    def pack_tile(src, dst):
        return ["v_cvt_pk_bf16_f32 v%d, v%d, v%d" % (dst + k, src + 2 * k, src + 2 * k + 1) for k in range(8)]
    FULL = int(os.environ.get("FULL", "1"))
    def publish(val):
        lab = p.newlabel("M_pub")
        return ["s_cmp_lg_u32 s%d, 0" % sWave, "s_cbranch_scc1 %s" % lab,
                "s_lshl_b32 s%d, s2, 7" % sT, "v_mov_b32 v%d, %d" % (t0, val), "v_lshlrev_b32 v%d, 2, v%d" % (t1, vLane),
                "s_mov_b32 exec_hi, 0" if FULL else "s_mov_b64 exec, 1",
                "buffer_store_dword v%d, v%d, s[%d:%d], s%d offen sc1" % (t0, t1, sD, sD + 3, sT),
                "s_mov_b64 exec, -1", "%s:" % lab]
    def poll_load(kind):
        if kind == "go":
            return ["v_mov_b32 v%d, 0" % t0, "global_load_dword v%d, v%d, s[%d:%d] sc1" % (vGo, t0, ptr(D_DBG), ptr(D_DBG) + 1)]
        if kind == 2:
            r = ["v_min_u32 v%d, 29, v%d" % (t0, vLane), "v_lshlrev_b32 v%d, 10, v%d" % (t0, t0), "s_lshl_b32 s%d, s%d, 7" % (sT, sXcd)]
        elif kind in (1, "KV"):
            r = ["v_and_b32 v%d, 7, v%d" % (t0, vLane), "v_lshlrev_b32 v%d, 10, v%d" % (t0, t0), "s_andn2_b32 s%d, s2, 0x38" % sT, "s_lshl_b32 s%d, s%d, 7" % (sT, sT)]
        elif kind in ("A", "B", 7, 3):
            return ["buffer_load_dword v%d, v%d, s[%d:%d], 0 offen sc1" % (vDum, vPoll, sD, sD + 3)]
        else:
            r = ["v_and_b32 v%d, 7, v%d" % (t0, vLane), "v_lshlrev_b32 v%d, 7, v%d" % (t0, t0), "s_lshl_b32 s%d, s%d, 10" % (sT, sIdx)]
        return r + ["buffer_load_dword v%d, v%d, s[%d:%d], s%d offen sc1" % (vKV if kind == "KV" else vDum, t0, sD, sD + 3, sT)]
    def poll_check(kind, lvl=None):
        lab = p.newlabel("M_poll")
        chk = ["v_cmp_gt_u32 vcc, %s, v%d" % (("1", vGo) if kind == "go" else (("v%d" % (vPoll + 1), vDum) if kind in ("A", "B", 3) else (str(lvl or kind), vDum)))]
        if kind == "KV":
            chk = ["v_cmp_gt_u32 vcc, %d, v%d" % (lvl, vKV)]
        tail.extend(["%s:" % lab, "s_mov_b32 s%d, 0x40000" % sSpin, "%s_l:" % lab, "s_sleep 1"] + poll_load(kind) + ["s_waitcnt vmcnt(0)"] + chk +
                    ["s_cbranch_vccz %s_r" % lab, "s_sub_u32 s%d, s%d, 1" % (sSpin, sSpin), "s_cbranch_scc0 %s_l" % lab, "s_branch %s_r" % lab])
        if kind in ("KV", 3):
            c = I(chk[0])
            c.rd = set()
            chk = ["s_waitcnt vmcnt(8)", c]
        return chk + ["s_cbranch_vccnz %s" % lab, "%s_r:" % lab]
    def pf(which, total, first, nlines):
        return ["s_lshl_b32 s%d, s2, 2" % sT, "s_add_u32 s%d, s%d, s%d" % (sT, sT, sWave), "s_mul_i32 s%d, s%d, %d" % (sT, sT, nlines),
                "s_add_u32 s%d, s%d, %d" % (sT, sT, first), "v_min_u32 v%d, %d, v%d" % (t0, nlines - 1, vLane), "v_add_u32 v%d, s%d, v%d" % (t0, sT, t0),
                "v_min_u32 v%d, %d, v%d" % (t0, total // 128 - 1, t0), "v_lshlrev_b32 v%d, 7, v%d" % (t0, t0),
                "global_load_dword v%d, v%d, s[%d:%d]" % (vDum, t0, ptr(which), ptr(which) + 1)]

    sPC0 = 96
    def code_touch(dst, mode):
        if not (CODEPF & mode):
            return []
        return ["s_lshl_b32 s%d, s%d, 2" % (sT, sIdx), "s_add_u32 s%d, s%d, s%d" % (sT, sT, sWave), "s_lshl_b32 s%d, s%d, 9" % (sT, sT),
                "v_and_b32 v%d, 3, v%d" % (t0, vLane), "v_lshl_add_u32 v%d, v%d, 7, s%d" % (t0, t0, sT), "v_min_u32 v%d, M_codeend-M_pc0-4, v%d" % (t0, t0),
                "global_load_dword v%d, v%d, s[%d:%d]" % (dst, t0, sPC0, sPC0 + 1)]
    p("s_cmp_ge_u32 s2, 256\ns_cbranch_scc1 M_exit")
    p("s_getpc_b64 s[%d:%d]\nM_pc0:" % (sPC0, sPC0 + 1))
    p("s_load_dwordx16 s[%d:%d], s[0:1], 0" % (P, P + 15))
    p("s_load_dwordx8 s[%d:%d], s[0:1], 64" % (P + 16, P + 23))
    p("s_load_dwordx2 s[%d:%d], s[0:1], 96" % (P + 24, P + 25))
    st_ = Stamper(p, vStamp, kid=0)
    p("v_and_b32 v%d, 63, v0" % vLane)
    p("v_lshrrev_b32 v%d, 6, v0" % t0)
    p("v_readfirstlane_b32 s%d, v%d" % (sWave, t0))
    p("s_and_b32 s%d, s2, 7" % sXcd)
    p("s_lshr_b32 s%d, s2, 3" % sIdx)
    p("s_lshl_b32 s%d, s%d, 12" % (sW4, sWave))
    p("s_lshl_b32 s%d, s%d, 2" % (sH, sXcd))
    p("s_lshr_b32 s%d, s%d, 3" % (sT, sIdx))
    p("s_add_u32 s%d, s%d, s%d" % (sH, sH, sT))
    p("s_and_b32 s%d, s%d, 7" % (sI, sIdx))
    p.add(code_touch(vDum, 1))
    pl.hook(code_touch(vDum, 1))
    p.add(x_voffs(1024, 9))
    p.add(w_voffs(8192, 1))
    p("s_waitcnt lgkmcnt(0)")
    st_()
    srd(p, sD, ptr(D_WS), off_imm=WS_FL, nrec=32768)
    p("s_cmp_lg_u32 s2, 255\ns_cbranch_scc1 M_nolead")
    p("v_lshlrev_b32 v%d, 7, v0\nv_mov_b32 v%d, 0" % (t0, t1))
    p("buffer_store_dword v%d, v%d, s[%d:%d], 0 offen sc1" % (t1, t0, sD, sD + 3))
    p("M_nolead:")
    p("s_lshl_b32 s%d, s%d, 15" % (sT, sI))
    srd(p, sX, ptr(A_CKV), off_s=sT)
    p("s_sub_u32 s%d, 0x200000, s%d" % (sX + 2, sT))
    w_srd(p, sW, A_WUK, sH, 512 * 8192)
    w_srd(p, sW2, A_WUV, sH, 512 * 8192)
    for ty in "XWXW":
        for g in range(2):
            pre, tag = pl.take(ty, 0)
            p.add(pre + dma(0, sX if ty == "X" else (sW, sW2)[g], "" if ty == "X" else NTW))
            pl.issue(tag)
    p.add(x_rd16(vXr))
    p("s_lshr_b32 s%d, s%d, 1" % (sT, sWave))
    p("s_lshl_b32 s%d, s%d, 14" % (sT, sT))
    p("v_add_u32 v%d, s%d, v%d" % (vXr, sT, vXr))
    p("v_xor_b32 v%d, 64, v%d" % (vXr + 1, vXr))
    p("s_lshl_b32 s%d, s%d, 3" % (sKo, sT))
    p.add(w_rd16(vWr))
    p("s_and_b32 s%d, s%d, 1" % (sT, sWave))
    p("s_lshl_b32 s%d, s%d, 7" % (sT, sT))
    p("s_add_u32 s%d, s%d, 0x%x" % (sT, sT, 2 * U))
    p("v_xor_b32 v%d, s%d, v%d" % (vWr, sT, vWr))
    for c in range(1, 4):
        p("v_xor_b32 v%d, %d, v%d" % (vWr + c, c * 32, vWr))
    p("v_lshlrev_b32 v%d, 4, v%d" % (vL16, vLane))
    def phi_ld(q):
        q("s_mul_i32 s%d, s%d, 800" % (sT, sIdx))
        srd(q, sPhi, ptr(B_WPHI), off_s=sT, nrec=800)
        q("v_subrev_u32 v%d, 480, v%d" % (t0, vL16))
        q("buffer_load_dwordx4 %s, v%d, s[%d:%d], 0 offen" % (rr("a", aRAW, 4), t0, sPhi, sPhi + 3))
        q("buffer_load_dwordx4 %s, v%d, s[%d:%d], 0 offen offset:544" % (rr("a", aRAW + 4, 4), vL16, sPhi, sPhi + 3))
    p("s_lshl_b32 s%d, s%d, 1" % (sTB, sXcd))
    p("s_cmp_ge_u32 s%d, 15" % sIdx)
    p("s_cselect_b32 s%d, 15, 0" % sT)
    p("s_addc_u32 s%d, s%d, 0" % (sTB, sTB))
    p("s_sub_u32 s%d, s%d, s%d" % (sCB, sIdx, sT))
    p("s_mul_i32 s%d, s%d, %d" % (sLo, sI, 128 * 1280))
    p("s_sub_u32 s%d, %d, s%d" % (sHi, 15 * 128 * 1280, sLo))

    fx = lambda st, i: 128 + st * 64 + i * 4
    fw = lambda st, i: 128 + st * 64 + 32 + i * 4
    def kvreg(mat, n):
        if mat == 0:
            return ("v", RB + 16 * n if n < 4 else RA + 16 * (n - 4))
        return ("v", RC + 16 * n) if n < 4 else (("v", RD + 16 * (n - 4)) if n < 6 else ("a", 16 * (n - 6)))
    def kv_reads(st):
        X = ["ds_read_b128 %s, v%d offset:%d" % (rr("a", fx(st, i), 4), vXr + st, i * 2048) for i in range(8)]
        W = ["ds_read_b64_tr_b16 %s, v%d offset:%d" % (rr("a", fw(st, i) + 2 * u, 2), vWr + (i & 3), (i >> 2) * U + st * 8192 + u * 1024) for i in range(8) for u in range(2)]
        return X[:2] + W[:8] + X[2:] + W[8:]
    def kv_mf(st, zero=False):
        r = []
        for mat in range(2):
            for n in range(8):
                f, b0 = kvreg(mat, n)
                for e in range(4):
                    a = rr(f, b0 + 4 * e, 4)
                    tt, cc = (e & 1, e >> 1) if mat else (e >> 1, e & 1)
                    X, W = rr("a", fx(st, 2 * (n >> 1) + tt), 4), rr("a", fw(st, mat * 4 + 2 * (n & 1) + cc), 4)
                    A, B = (X, W) if mat else (W, X)
                    r.append("%s %s, %s, %s, %s" % (M16, a, A, B, "0" if zero else a))
        return r
    WL = "s_waitcnt lgkmcnt(0)"
    mfA, mfB = kv_mf(1), kv_mf(0)
    NK = 6
    G = Gaps16(64)
    G.spread(kv_reads(0), NK, 55)
    put_dma(G, 0, sW, NK, 21, NTW); put_dma(G, 1, sW2, 22, 35, NTW)
    body("M_kvA", G, mfA, NP=NK)
    G = Gaps16(64)
    G.spread(kv_reads(1), NK, 55)
    put_dma(G, 0, sX, NK, 32); put_dma(G, 1, sX, 33, 57)
    sadd = lambda regs, sd: ["v_add_u32 v%d, s%d, v%d" % (r, sd, r) for r in regs]
    kv_upd = sadd([vXr, vXr + 1], sDa) + sadd([vWr + c for c in range(4)], sDb)
    G.spread(kv_upd, 58, 62)
    kv_del = lambda s: ["s_mov_b32 s%d, 0x%x" % (sDa, u32((((2 * s) % 5) - ((2 * s - 2) % 5)) * 2 * U)), "s_mov_b32 s%d, 0x%x" % (sDb, u32((((2 * s + 1) % 5) - ((2 * s - 1) % 5)) * 2 * U))]
    body("M_kvB", G, mfB, NP=NK)
    KVs = lambda s: [("KX", s, 0), ("KX", s, 1), ("KW", s, 0), ("KW", s, 1)]
    st_()
    p.add(pl.barrier(KVs(0), [], 1024))
    st_()
    p.add(kv_reads(0))
    p("s_cmp_lg_u32 s2, 255\ns_cbranch_scc1 M_nolead2\ns_cmp_lg_u32 s%d, 0\ns_cbranch_scc1 M_nolead2" % sWave)
    p("v_mov_b32 v%d, 0\nv_mov_b32 v%d, 1\ns_mov_b64 exec, 1" % (t0, t1))
    p("global_store_dword v%d, v%d, s[%d:%d] sc1" % (t0, t1, ptr(D_DBG), ptr(D_DBG) + 1))
    p("s_mov_b64 exec, -1\nM_nolead2:")
    p(WL)
    G = Gaps16(64)
    G.spread(kv_reads(1), 0, 47)
    for i in range(2):
        pre, tag = pl.take("X", i)
        G.put(0, pre)
        pl.issue(tag)
        put_dma(G, i, sX, 1 + 13 * i, 13 + 13 * i)
    G.put(50, kv_del(1))
    G.spread(kv_upd, 60, 62)
    z = kv_mf(0, zero=True)
    p.add(G.emit(z, 0, 63))
    last = z[63]
    PN = int(os.environ.get("PN", "2"))
    arrs = [(B_WQKV, 640 * 3840, 0), (B_X, 2048 * 1280, 0), (A_X, 2048 * 1280, 0), (A_WQ, 640 * 8192, 0), (A_WQ, 640 * 8192, 20480)]
    if PREFETCH == 2:
        arrs += [(A_WO, 4096 * 1280, 0), (A_WO, 4096 * 1280, 20480)]
    hooks = [[] for _ in range(8)]
    hooksA = [[] for _ in range(9)]
    if PREFETCH:
        for k, (w_, tot, first) in enumerate(arrs):
            if PN == 1:
                hooks[k + 1] = pf(w_, tot, first, 20)
            else:
                hooks[k + 1] = pf(w_, tot, first, 10)
                hooksA[k + 2] = pf(w_, tot, first + 10240, 10)
    if PREFETCH == 5:
        hooks = [[] for _ in range(8)]
        hooksA = [[] for _ in range(9)]
        seq = [(B_WQKV, 640 * 3840, 0, 10), (B_X, 2048 * 1280, 0, 10), (B_WQKV, 640 * 3840, 10240, 10), (B_X, 2048 * 1280, 10240, 10), (A_X, 2048 * 1280, 0, 10),
               (A_WQ, 640 * 8192, 0, 10), (A_WQ, 640 * 8192, 10240, 10), (A_X, 2048 * 1280, 10240, 10), (A_WQ, 640 * 8192, 20480, 10), (A_WQ, 640 * 8192, 30720, 10),
               (A_WO, 4096 * 1280, 0, 14), (A_WO, 4096 * 1280, 14336, 13), (A_WO, 4096 * 1280, 27648, 13)]
        for k, x in enumerate(seq):
            (hooks if k & 1 else hooksA)[k // 2 + 1] = pf(*x)
    XS = 4 * 2560
    def xsetup(q, srdn, va, vb):
        q("s_and_b32 s%d, s%d, 1" % (sT, sXcd))
        q("s_lshl_b32 s%d, s%d, 5" % (sT, sT))
        q("s_add_u32 s%d, s%d, s%d" % (sT, sT, sIdx))
        q("s_mul_i32 s%d, s%d, %d" % (sT, sT, 16 * XS))
        srd(q, srdn, ptr(D_WS), off_s=sT, off_imm=WS_XB, nrec=16 * XS)
        q("s_mul_i32 s%d, s%d, 2560" % (sT, sWave))
        q("v_add_u32 v%d, s%d, v%d" % (va, sT, vL16))
        q("v_lshl_add_u32 v%d, v%d, 3, s%d" % (vb, vLane, sT))
    def xfer(q, op, qq, srdn, va, vb, regs, f="v"):
        q("s_lshr_b32 s%d, s%d, 1" % (sT2, sXcd))
        q("s_xor_b32 s%d, s%d, %d" % (sT, sT2, qq))
        q("s_lshl2_add_u32 s%d, s%d, s%d" % ((sT, sT, sT2) if op == "store" else (sT, sT2, sT)))
        q("s_mul_i32 s%d, s%d, %d" % (sT, sT, XS))
        for k in range(2):
            q("buffer_%s_dwordx4 %s, v%d, s[%d:%d], s%d offen offset:%d %s" % (op, rr(f, regs[k], 4), va, srdn, srdn + 3, sT, k * 1024, WT))
        q("buffer_%s_dwordx2 %s, v%d, s[%d:%d], s%d offen offset:2048 %s" % (op, rr(f, regs[2], 2), vb, srdn, srdn + 3, sT, WT))
    def xclear0(q):
        xsetup(q, sO, vKV, vA)
        for k in range(4):
            q("v_accvgpr_write_b32 a%d, -1" % (248 + k))
    xclear = lambda qq: L(xfer, "store", qq, sO, vKV, vA, (248, 248, 248), "a")
    hooks[7 if PREFETCH != 2 else 6] += L(phi_ld)
    hooks[6] = hooks[6] + poll_load("go")
    def upd(regs, d):
        return ["v_add_u32 v%d, 0x%x, v%d" % (r, u32(d), r) for r in regs]
    for s in range(1, 8):
        bar = pl.barrier(KVs(s), KVs(s - 1), 2048)
        cu = list(hooksA[s])
        pl.hook(cu)
        tags = []
        for i in range(2):
            pre, tag = pl.take("W", i)
            cu += pre
            tags.append(tag)
        for t in tags:
            pl.issue(t)
        if os.environ.get("FINEK"): st_()
        skel(last, bar, mfA, cu, "M_kvA", NK)
        if os.environ.get("FINEK"): st_()
        cu = list(hooks[s])
        pl.hook(cu)
        tags = []
        for i in range(2):
            pre, tag = pl.take("X", i)
            cu += pre
            tags.append(tag)
        for t in tags:
            pl.issue(t)
        skel(mfA[63], [WL], mfB, cu + kv_del(s + 1), "M_kvB", NK)
        last = mfB[63]
    st_()

    bfx = lambda st, k, i: 128 + st * 32 + k * 16 + i * 4
    bfw = lambda st, k, i: 128 + st * 32 + k * 16 + 8 + i * 4
    def b_reads(st):
        r = []
        for k in range(2):
            ks = st * 2 + k
            for i in range(2):
                r.append("ds_read_b128 %s, v%d offset:%d" % (rr("a", bfx(st, k, i), 4), vXr + ks, i * 4096))
                for u in range(2):
                    r.append("ds_read_b64_tr_b16 %s, v%d offset:%d" % (rr("a", bfw(st, k, i) + 2 * u, 2), vWr + i, ks * 4096 + u * 1024))
        return r
    def b_mf(var, st, zero=False):
        mf = []
        for k in range(2):
            for b in range(2):
                for c in range(2):
                    a = rr("v", RA + (b * 2 + c) * 16, 16)
                    X, W = rr("a", bfx(st, k, b), 4), rr("a", bfw(st, k, c), 4)
                    A, B = (X, W) if var else (W, X)
                    mf.append("%s %s, %s, %s, %s" % (MF, a, A, B, "0" if (zero and k == 0) else a))
        return mf
    def kv_pack(mat, n):
        f, b0 = kvreg(mat, n)
        dst = (RC if mat else RB) + 8 * n
        if f == "v":
            return pack_tile(b0, dst)
        return ["v_accvgpr_read_b32 v%d, a%d" % (RD + k, b0 + k) for k in range(16)] + pack_tile(RD, dst)
    def kv_store(mat, n):
        f, reg = ("v", (RC if mat else RB) + 8 * n) if n < 4 else ("a", aPK + (mat * 4 + n - 4) * 8)
        if mat == 0 and n in (2, 3):
            f, reg = "a", 104 + 8 * (n - 2)
        st = lambda m, so, imm: "buffer_store_dwordx4 %s, v%d, s[%d:%d], s%d offen offset:%d %s" % (rr(f, reg + 4 * m, 4), vL16, sO, sO + 3, so, imm, WT)
        if mat:
            return ["s_and_b32 s%d, s%d, 0x1000" % (sOff, sW4), "s_add_u32 s%d, s%d, s%d" % (sOff, sOff, sKo), "s_add_u32 s%d, s%d, 0x%x" % (sOff, sOff, (n >> 1) * 16 * U + 8192),
                    st(0, sOff, (n & 1) * 2048), st(1, sOff, (n & 1) * 2048 + 1024)]
        return ["s_lshr_b32 s%d, s%d, 1" % (sOff, sW4), "s_and_b32 s%d, s%d, 0x800" % (sOff, sOff), "s_add_u32 s%d, s%d, s%d" % (sOff, sOff, sKo), "s_add_u32 s%d, s%d, 0x%x" % (sOff, sOff, (n >> 1) * 16 * U),
                st(0, sOff, (n & 1) * 1024), "s_addk_i32 s%d, 0x1000" % sOff, st(1, sOff, (n & 1) * 1024)]
    def b_store(t):
        return ["s_add_u32 s%d, s%d, 0x%x" % (sOff, sBo, (t >> 1) * 120 * 1024)] + \
               ["buffer_store_dwordx4 %s, v%d, s[%d:%d], s%d offen offset:%d %s" % (rr("v", RD + 8 * t + 4 * m, 4), vL16, sBO, sBO + 3, sOff, (t & 1) * 2048 + m * 1024, WT) for m in range(2)]
    Bs = lambda b: [("BX", b), ("BW", b)]
    Qs = lambda s: [("QX", s, 0), ("QX", s, 1), ("QW", s)]
    p(last)
    p.add(pl.barrier(Bs(0), KVs(7), 1280))
    def baddr(q):
        x_rd_addr(q, vXr, vLane, t0, t1)
        q("s_lshr_b32 s%d, s%d, 1" % (sT, sWave))
        q("s_lshl_b32 s%d, s%d, 13" % (sT, sT))
        q("s_add_u32 s%d, s%d, 0x%x" % (sT, sT, pl.unit[("BX", 0)] * U))
        for ks in range(4):
            q("v_add_u32 v%d, s%d, v%d" % (vXr + ks, sT, vXr + ks))
        q("s_and_b32 s%d, s%d, 1" % (sT, sWave))
        q("s_lshl_b32 s%d, s%d, 1" % (sT, sT))
        q("v_mov_b32 v%d, s%d" % (t2, sT))
        w_rd_addr(q, vWr, vLane, t0, t1, t2)
        q("v_add_u32 v%d, 0x%x, v%d" % (vWr, pl.unit[("BW", 0)] * U, vWr))
        q("v_xor_b32 v%d, 64, v%d" % (vWr + 1, vWr))
        q("s_lshl_b32 s%d, s%d, 20" % (sT, sH))
        q("s_lshl_b32 s%d, s%d, 14" % (sT2, sI))
        q("s_add_u32 s%d, s%d, s%d" % (sT, sT, sT2))
        srd(q, sO, ptr(D_WS), off_s=sT, off_imm=WS_KV)
        q("s_sub_u32 s%d, 0x100000, s%d" % (sO + 2, sT2))
    G = Gaps16(64)
    ba = L(baddr)
    for k in range(16):
        G.put(k, ba[k * len(ba) // 16:(k + 1) * len(ba) // 16], post=True)
    for i, ty in enumerate("WWX"):
        pre, tag = pl.take(ty, i)
        assert len(pre) == 2
        G.put(0, pre)
        pl.issue(tag)
        put_dma(G, i, sW if ty == "W" else sX, 1 + 20 * i, 20 + 20 * i)
    G.spread(b_reads(0), 20, 56)
    G.stream([x for n in range(8) for x in kv_pack(0, n)], 16, 49)
    G.stream([x for n in range(3) for x in kv_pack(1, n)], 50, 63)
    p.add(G.emit(kv_mf(1)))
    p(WL)
    p("s_cmp_ge_u32 s%d, 10\ns_cbranch_scc1 M_bv" % sCB)
    pl0 = pl
    qfx = lambda st, i: st * 48 + i * 4
    qfw = lambda st, i: st * 48 + 16 + i * 4
    qacc = lambda j, d: RA + j * 32 + d * 4
    def q_reads(st):
        X = ["ds_read_b128 %s, v%d offset:%d" % (rr("a", qfx(st, j), 4), vXr + 2 * (j >> 1) + st, (j & 1) * 2048) for j in (2, 3, 0, 1)]
        W = ["ds_read_b64_tr_b16 %s, v%d offset:%d" % (rr("a", qfw(st, i) + 2 * u, 2), vWr + i, st * 8192 + u * 1024) for i in range(8) for u in range(2)]
        return X[:2] + W + X[2:]
    def q_derive():
        return ["v_xor_b32 v%d, 64, v%d" % (vXr + 1, vXr), "v_xor_b32 v%d, 64, v%d" % (vXr + 3, vXr + 2)] + \
               ["v_xor_b32 v%d, %d, v%d" % (vWr + c, c * 32, vWr) for c in range(1, 8)]
    for var in range(2):
        pl = pl0.copy()
        if var:
            p("M_bv:")
        mfb = b_mf(var, 1) + b_mf(var, 0)
        G = Gaps(16)
        G.spread(b_reads(0), 2, 6); G.put(7, WL); G.spread(b_reads(1), 8, 13)
        put_dma(G, 0, sW, 2, 8); put_dma(G, 1, sX, 9, 14)
        body("M_b%d" % var, G, mfb)
        G = Gaps(8)
        pre, tag = pl.take("X", 1)
        assert len(pre) == 2
        G.put(0, pre)
        pl.issue(tag)
        put_dma(G, 1, sX, 1, 6)
        G.spread(b_reads(1), 0, 5)
        G.stream([x for n in range(3, 8) for x in kv_pack(1, n)], 0, 6)
        z = b_mf(var, 0, zero=True)
        p.add(G.emit(z, 0, 7))
        last = z[7]
        park = ["v_accvgpr_write_b32 a%d, v%d" % (aPK + k, RB + 32 + k) for k in range(32)] + ["v_accvgpr_write_b32 a%d, v%d" % (aPK + 32 + k, RC + 32 + k) for k in range(32)]
        park += ["v_accvgpr_write_b32 a%d, v%d" % (104 + k, RB + 16 + k) for k in range(16)]
        stores = [kv_store(0, 0), park[:14], kv_store(0, 1), park[14:28], kv_store(1, 0), park[28:42], kv_store(1, 1) + park[42:50], park[50:65], park[65:]]
        for b in range(1, 10):
            bar = pl.barrier(Bs(b), Bs(b - 1), 512)
            cu = upd([vXr, vXr + 1, vXr + 2, vXr + 3], (pl.unit[("BX", b)] - pl.unit[("BX", b - 1)]) * U) + \
                 upd([vWr, vWr + 1], (pl.unit[("BW", b)] - pl.unit[("BW", b - 1)]) * U)
            cu += extra("X" if (b != 2) else "W", 2)
            tags = []
            for i, ty in enumerate("WX"):
                pre, tag = pl.take(ty, i)
                cu += pre
                tags.append(tag)
            cu += stores[b - 1]
            pl.hook(stores[b - 1], "kv")
            for t in tags:
                pl.issue(t)
            skel(last, bar, mfb, cu, "M_b%d" % var)
            if STAMPS and os.environ.get("FINE"):
                if var and b == 1:
                    st_.n -= 9
                st_()
            last = mfb[15]
        p(last)
        p.add(pl.barrier(Qs(0), Bs(9), 1024))
        G = Gaps(8)
        qa = x_rd16(vXr) + ["s_add_u32 s%d, s%d, 0x%x" % (sT, sW4, pl.unit[("QX", 0, 1)] * U), "v_add_u32 v%d, s%d, v%d" % (vXr + 2, sT, vXr),
                            "s_add_u32 s%d, s%d, 0x%x" % (sT, sW4, pl.unit[("QX", 0, 0)] * U), "v_add_u32 v%d, s%d, v%d" % (vXr, sT, vXr)] + \
             w_rd16(vWr) + upd([vWr], pl.unit[("QW", 0)] * U) + q_derive()
        for k in range(4):
            G.put(k, qa[k * len(qa) // 4:(k + 1) * len(qa) // 4], post=True)
        pre, tag = pl.take("X", 0)
        assert len(pre) == 2
        G.put(0, pre)
        pl.issue(tag)
        put_dma(G, 0, sX, 0, 7)
        G.spread(q_reads(0), 4, 7)
        p.add(G.emit(b_mf(var, 1)))
        if var == 0:
            p("s_branch M_bdone")
    p("M_bdone:")
    st_()

    qorder = [(j, d) for jj in (2, 0) for d in range(8) for j in (jj, jj + 1)]
    def q_mf(st, zero=False):
        return ["%s %s, %s, %s, %s" % (M16, rr("v", qacc(j, d), 4), rr("a", qfw(st, d), 4), rr("a", qfx(st, j), 4), "0" if zero else rr("v", qacc(j, d), 4)) for j, d in qorder]
    mfq = q_mf(1) + q_mf(0)
    NQ = 5
    G = Gaps16(64)
    G.spread(q_reads(0), NQ, int(os.environ.get('QE', '26')))
    G.put(31, WL)
    G.spread(q_reads(1), 32, 54)
    put_dma(G, 0, sX, NQ, 21); put_dma(G, 1, sX, 22, 38); put_dma(G, 2, sW, 39, 56)
    q_upd = sadd([vXr], sDa) + sadd([vXr + 2], sDb) + sadd([vWr], sDc) + q_derive()
    G.spread(q_upd, 57, 62)
    def q_del(s):
        if s > 9:
            return []
        return ["s_mov_b32 s%d, 0x%x" % (sd, u32((pl.unit[k(s)] - pl.unit[k(s - 1)]) * U))
                for sd, k in ((sDa, lambda x: ("QX", x, 0)), (sDb, lambda x: ("QX", x, 1)), (sDc, lambda x: ("QW", x)))]
    body("M_q", G, mfq, NP=NQ)
    p("s_mul_i32 s%d, s%d, %d" % (sT, sTB, 4 * 120 * 1024))
    p("s_lshl_b32 s%d, s%d, 13" % (sT2, sCB))
    p("s_add_u32 s%d, s%d, s%d" % (sT, sT, sT2))
    srd(p, sBO, ptr(D_WS), off_s=sT, off_imm=WS_BF)
    p("s_cmp_lt_u32 s2, 240\ns_cselect_b32 s%d, %d, 0" % (sBO + 2, 4 * 120 * 1024))
    p("s_lshr_b32 s%d, s%d, 1" % (sBo, sWave))
    p("s_mul_i32 s%d, s%d, %d" % (sBo, sBo, 2 * 120 * 1024))
    p("s_and_b32 s%d, s%d, 0x1000" % (sT, sW4))
    p("s_add_u32 s%d, s%d, s%d" % (sBo, sBo, sT))
    G = Gaps16(32)
    for i, ty in ((1, "X"), (2, "W")):
        pre, tag = pl.take(ty, i)
        p.add(pre)
        pl.issue(tag)
        put_dma(G, i, sX if ty == "X" else sW, 15 * (i - 1), 15 * (i - 1) + 14)
    p(WL)
    G.spread(q_reads(1), 0, 22)
    G.put(16, q_del(1))
    G.spread(q_upd, 25, 30)
    G.stream([x for t in range(4) for x in pack_tile(RA + 16 * t, RD + 8 * t)], 0, 14)
    z = q_mf(0, zero=True)
    p.add(G.emit(z, 0, 31))
    last = z[31]
    def bm_frag_loads(q, fbase, aXF):
        q("s_lshl_b32 s%d, s%d, 3" % (sTT, sXcd))
        q("s_lshl_b32 s%d, s%d, 1" % (sT, sWave))
        q("s_add_u32 s%d, s%d, s%d" % (sTT, sTT, sT))
        q("s_mul_i32 s%d, s%d, %d" % (sT, sTT, 120 * 1024))
        srd(q, sBF, ptr(D_WS), off_s=sT, off_imm=WS_BF, nrec=2 * 120 * 1024)
        q("s_mul_i32 s%d, s%d, 5" % (sT, sIdx))
        q("s_lshr_b32 s%d, s%d, 2" % (sT, sT))
        q("s_add_u32 s%d, s%d, %d" % (sT, sT, fbase))
        q("s_lshl_b32 s%d, s%d, 10" % (sT, sT))
        for tt in range(2):
            for u in range(2):
                q("buffer_load_dwordx4 %s, v%d, s[%d:%d], s%d offen offset:%d %s" % (rr("a", aXF + (tt * 2 + u) * 4, 4), vL16, sBF, sBF + 3, sT, u * 1024, WT))
            if tt == 0:
                q("s_add_u32 s%d, s%d, %d" % (sT, sT, 120 * 1024))
    vV, vWa, vRd = vA + 2, vA + 3, vA
    def bm1_loads(q):
        bm_frag_loads(q, 40, aXF)
        q("s_mul_i32 s%d, s%d, 20" % (sT, sIdx))
        q("v_and_b32 v%d, 31, v%d" % (t2, vLane))
        q("v_add_u32 v%d, s%d, v%d" % (t1, sT, t2))
        q("v_lshrrev_b32 v%d, 5, v%d" % (vV, t1))
        q("v_lshlrev_b32 v%d, 11, v%d" % (vV, vV))
        q("v_and_b32 v%d, 31, v%d" % (t1, t1))
        q("v_lshl_add_u32 v%d, v%d, 4, v%d" % (vV, t1, vV))
        q("v_and_b32 v%d, 32, v%d" % (t1, vLane))
        q("v_lshl_add_u32 v%d, v%d, 4, v%d" % (vV, t1, vV))
        q("v_bfrev_b32 v%d, 1" % t1)
        q("v_cmp_gt_u32 vcc, 20, v%d" % t2)
        q("v_cndmask_b32 v%d, v%d, v%d, vcc" % (vV, t1, vV))
        for tt in range(2):
            q("s_mov_b32 s%d, %d" % (sT, (tt * 120 + 80) * 1024))
            for mm in range(2):
                q("buffer_load_dwordx4 %s, v%d, s[%d:%d], s%d offen offset:%d %s" % (rr("a", aVF + (tt * 2 + mm) * 4, 4), vV, sBF, sBF + 3, sT, mm * 1024, WT))
    qst = {k + 1: [("b", b_store(k))] for k in range(4)}
    qst.update({7: [("k2", kv_store(0, 2))], 8: [("k2", kv_store(0, 3)), ("k2", kv_store(1, 2))], 9: [("k2", kv_store(1, 3))]})
    pubB = pubKV = None
    for s in range(1, 10):
        bar = pl.barrier(Qs(s), Qs(s - 1), 1024)
        cu = q_del(s + 1)
        cu += extra("X", 3)
        tags = []
        for i, ty in enumerate("XXW"):
            pre, tag = pl.take(ty, i)
            cu += pre
            tags.append(tag)
        if s == 1:
            cu.append(poll_check("go"))
        if pubKV is None and pl.complete("kv"):
            pubKV = s
            cu.append(publish(1))
        if pubB is None and s > 4 and pl.complete("b"):
            pubB = s
            cu.append(publish(2))
        if PREFETCH == 4 and s in (5, 6, 7, 8):
            ins = [x.replace("global_load_dword v%d" % vDum, "global_load_dword v%d" % vA) for x in pf(A_WO, 4096 * 1280, (s - 5) * 10240, 10)]
            cu += ins
            pl.hook(ins)
        if s == 5:
            ins = poll_load(1)
            cu += ins
            pl.hook(ins, "poll")
        if s == 7:
            assert pl.complete("poll")
            cu.append(poll_check(1))
        if s == 8:
            ins = poll_load(2)
            cu += ins
            pl.hook(ins, "poll")
        for tag, ins in qst.get(s, []):
            cu += ins
            pl.hook(ins, tag)
        for t in tags:
            pl.issue(t)
        skel(last, bar, mfq, cu, "M_q", NQ)
        last = mfq[63]
        if STAMPS and os.environ.get("FINE"):
            st_()
    if VERB:
        print("pubB", pubB, "pubKV", pubKV)
    assert pubB and pubKV and not pl.pend["X"] and not pl.pend["W"]
    C1, C2, PH, VF, KC, AF, RR = 48, 64, 80, 96, 112, TMP, 32
    def phi(xf):
        for tile, C in ((0, C1), (1, C2)):
            for u in range(2):
                p("%s %s, %s, %s, %s" % (MF, rr("v", C, 16), rr("v", AW + (tile * 2 + u) * 4, 4), rr("a", xf + u * 4, 4), rr("v", C, 16) if u else "0"))
        p(call("M_phi"))
    aXQ = 232
    q = Prog()
    q("M_phi:")
    x = [C1 + k for k in range(16)] + [C2 + k for k in range(4)]
    m = t1
    q("v_max3_f32 v%d, v%d, v%d, v%d" % (m, x[0], x[1], x[2]))
    for k in range(3, 19, 2):
        q("v_max3_f32 v%d, v%d, v%d, v%d" % (m, m, x[k], x[k + 1]))
    q("v_max_f32 v%d, v%d, v%d" % (m, m, x[19]))
    q("v_mul_f32 v%d, s%d, v%d" % (m, sL2, m))
    for k in range(0, 20, 2):
        q("v_pk_fma_f32 %s, %s, s[%d:%d], %s op_sel:[0,1,0] op_sel_hi:[1,1,0] neg_lo:[0,0,1] neg_hi:[0,0,1]" % (v2(x[k]), v2(x[k]), sL2 - 1, sL2, v2(m)))
    for k in range(20):
        q("v_exp_f32 v%d, v%d" % (x[k], x[k]))
    y = C2 + 4
    q(pk_add(y, x[0], x[2]))
    for k in range(4, 20, 2):
        q(pk_add(y, y, x[k]))
    q("v_add_f32 v%d, v%d, v%d" % (m, y, y + 1))
    q("v_rcp_f32 v%d, v%d" % (m, m))
    for k in range(0, 20, 2):
        q(pk_mulb(x[k], x[k], m))
    for k in range(10):
        q("v_cvt_pk_bf16_f32 v%d, v%d, v%d" % (PH + k, x[2 * k], x[2 * k + 1]))
    q(ret)
    tail += q.ins

    vWo = vA + 1
    sKb, sNt = sHi, sLo
    def wo_src(q):
        q("s_lshr_b32 s%d, s2, 1" % sT)
        q("s_mul_i32 s%d, s%d, 40960" % (sT, sT))
        q("s_and_b32 s%d, s2, 1" % sT2)
        q("s_lshl2_add_u32 s%d, s%d, s%d" % (sT2, sT2, sWave))
        q("s_mul_i32 s%d, s%d, 160" % (sT2, sT2))
        q("s_add_u32 s%d, s%d, s%d" % (sT, sT, sT2))
        srd(q, sY, ptr(A_WO), off_s=sT)
        q("s_sub_u32 s%d, %d, s%d" % (sY + 2, 4096 * 1280, sT))
        q("s_lshl_b32 s%d, s%d, 13" % (sT2, sWave))
        q("s_add_u32 m0, s%d, 0x20000" % sT2)
        for k in range(5):
            q("v_add_u32 v%d, %d, v%d" % (t0, 64 * k, vLane))
            q("v_mul_u32_u24 v%d, 0x199a, v%d" % (t1, t0))
            q("v_lshrrev_b32 v%d, 16, v%d" % (t1, t1))
            q("v_mul_u32_u24 v%d, 1120, v%d" % (t1, t1))
            q("v_lshl_add_u32 v%d, v%d, 4, v%d" % (t0, t0, t1))
            q("buffer_load_dwordx4 v%d, s[%d:%d], 0 offen lds" % (t0, sY, sY + 3))
            q("s_add_u32 m0, m0, 0x400")
        q("s_mul_i32 s%d, s2, 0x667" % sKb)
        q("s_lshr_b32 s%d, s%d, 16" % (sKb, sKb))
        q("s_mul_i32 s%d, s%d, 40" % (sT, sKb))
        q("s_sub_u32 s%d, s2, s%d" % (sNt, sT))
        q("s_lshl2_add_u32 s%d, s%d, s%d" % (sKb, sKb, sWave))
        q("s_mul_i32 s%d, s%d, 0x3334" % (sOff, sKb))
        q("s_lshr_b32 s%d, s%d, 16" % (sOff, sOff))
        q("s_mul_i32 s%d, s%d, 5" % (sT2, sOff))
        q("s_sub_u32 s%d, s%d, s%d" % (sT2, sKb, sT2))
        q("s_mul_i32 s%d, s%d, 160" % (sOff, sOff))
        q("s_mul_i32 s%d, s%d, 40" % (sT, sT2))
        q("s_cmp_eq_u32 s%d, 4" % sT2)
        q("s_cselect_b32 s%d, 16, s%d" % (sT, sT))
        q("s_cselect_b64 vcc, -1, 0")
        q("s_add_u32 s%d, s%d, s%d" % (sT, sT, sOff))
        q("s_mul_i32 s%d, s%d, 40" % (sT, sT))
        q("s_add_u32 s%d, s%d, s%d" % (sT, sT, sNt))
        q("s_lshl_b32 s%d, s%d, 5" % (sT, sT))
        srd(q, sY, ptr(B_WO), nrec=640 * 1280)
        q("v_lshrrev_b32 v%d, 5, v%d" % (t0, vLane))
        q("v_mul_u32_u24 v%d, 20, v%d" % (t0, t0))
        q("v_bfe_u32 v%d, v%d, 3, 1" % (t1, vLane))
        q("v_lshl_add_u32 v%d, v%d, 3, v%d" % (t0, t1, t0))
        q("v_bfe_u32 v%d, v%d, 4, 1" % (t1, vLane))
        q("v_lshl_add_u32 v%d, v%d, 2, v%d" % (t0, t1, t0))
        q("v_lshrrev_b32 v%d, 3, v%d" % (t1, vLane))
        q("v_mul_u32_u24 v%d, 20, v%d" % (t1, t1))
        q("v_cndmask_b32 v%d, v%d, v%d, vcc" % (t0, t0, t1))
        q("v_bfe_u32 v%d, v%d, 1, 2" % (t1, vLane))
        q("v_add_u32 v%d, v%d, v%d" % (t0, t0, t1))
        q("v_mul_u32_u24 v%d, 1280, v%d" % (t0, t0))
        q("v_and_b32 v%d, 1, v%d" % (t1, vLane))
        q("v_lshl_add_u32 v%d, v%d, 4, v%d" % (t0, t1, t0))
        q("buffer_load_dwordx4 v%d, s[%d:%d], s%d offen lds" % (t0, sY, sY + 3, sT))
        q("s_mul_i32 s%d, s%d, 0x3334" % (sT, sNt))
        q("s_lshr_b32 s%d, s%d, 16" % (sT, sT))
        q("s_mul_i32 s%d, s%d, 95" % (sT, sT))
        q("s_add_u32 s%d, s%d, s%d" % (sT, sT, sNt))
        q("s_mul_i32 s%d, s%d, 5" % (sKb, sKb))
        q("s_add_u32 s%d, s%d, s%d" % (sT, sT, sKb))
        q("s_lshl_b32 s%d, s%d, 10" % (sT, sT))
        q("s_add_u32 s%d, s%d, 0x%x" % (sT, sT, WS_WOB - WS_WOA))
        q("s_cmp_lt_u32 s2, 200")
        q("s_cselect_b32 s%d, s%d, 0x10000000" % (sBo, sT))
        q("s_and_b32 s%d, s2, 1" % sT)
        q("s_lshl_b32 s%d, s%d, 1" % (sT, sT))
        q("s_lshr_b32 s%d, s%d, 1" % (sT2, sWave))
        q("s_add_u32 s%d, s%d, s%d" % (sT, sT, sT2))
        q("s_lshl_b32 s%d, s%d, 8" % (sT, sT))
        q("s_andn2_b32 s%d, s2, 1" % sT2)
        q("s_add_u32 s%d, s%d, s%d" % (sT, sT, sT2))
        q("s_and_b32 s%d, s%d, 1" % (sT2, sWave))
        q("s_add_u32 s%d, s%d, s%d" % (sT, sT, sT2))
        q("s_mul_i32 s%d, s%d, 5120" % (sDc, sT))
    WR = S(1, 0)
    def wo_out(q):
        q("v_lshrrev_b32 v%d, 2, v%d" % (t0, vLane))
        q("v_mul_u32_u24 v%d, 160, v%d" % (vWo, t0))
        q("v_and_b32 v%d, 3, v%d" % (t1, vLane))
        q("s_lshl_b32 s%d, s%d, 13" % (sT, sWave))
        q("s_add_u32 s%d, s%d, 0x20000" % (sT, sT))
        q("v_lshl_add_u32 v%d, v%d, 3, s%d" % (t1, t1, sT))
        q("v_add_u32 v%d, v%d, v%d" % (vWo, vWo, t1))
        for n in range(5):
            for u in range(2):
                q("ds_read_b64_tr_b16 %s, v%d offset:%d" % (rr("v", WR + 4 * n + 2 * u, 2), vWo, n * 32 + u * 16 * 160))
        q("v_lshl_add_u32 v%d, v%d, 5, v%d" % (t1, t0, t1))
        q("v_lshrrev_b32 v%d, 4, v%d" % (t0, vLane))
        q("v_lshl_add_u32 v%d, v%d, 7, v%d" % (t1, t0, t1))
        for u in range(2):
            q("ds_read_b64_tr_b16 %s, v%d offset:%d" % (rr("v", WR + 20 + 2 * u, 2), t1, 5120 + u * 128))
        srd(q, sBF, ptr(D_WS), off_imm=WS_WOA, nrec=WS_OB - WS_WOA)
    def wo_st(q):
        for n in range(5):
            if n == 4:
                q("s_addk_i32 s%d, 0x1000" % sDc)
            q("buffer_store_dwordx4 %s, v%d, s[%d:%d], s%d offen offset:%d %s" % (rr("v", WR + 4 * n, 4), vL16, sBF, sBF + 3, sDc, (n & 3) * 1024, WT))
        q("buffer_store_dwordx4 %s, v%d, s[%d:%d], s%d offen %s" % (rr("v", WR + 20, 4), vL16, sBF, sBF + 3, sBo, WT))
    p(last)
    p(WL + "\ns_barrier")
    sQs = sTB
    def kvsetup(q):
        q("s_mov_b32 s%d, 0x%x\ns_mov_b32 s%d, s%d" % (sDa, QSCALE, sDa + 1, sDa))
        q("s_mov_b32 s%d, 0x%x" % (sL2, LOG2E))
        q("s_lshl_b32 s%d, s%d, 20" % (sT, sH))
        srd(q, sKV, ptr(D_WS), off_s=sT, off_imm=WS_KV)
        q("s_lshl_b32 s%d, s%d, 16" % (sT, sI))
        q("s_sub_u32 s%d, 0x100000, s%d" % (sKV + 2, sT))
        q("s_lshl_b32 s%d, s%d, 11" % (sW2k, sWave))
        q("v_add_u32 v%d, s%d, v%d" % (vDma, sW2k, vL16))
    kvld = lambda so, k: "buffer_load_dwordx4 v%d, s[%d:%d], s%d offen offset:%d %s lds" % (vDma, sKV, sKV + 3, so, k * 1024, WT)
    def kv0(t, half):
        o = t * U + half * 8192
        return [["s_add_u32 m0, s%d, 0x%x" % (sW2k, o), "s_mov_b32 s%d, 0x%x" % (sOff, o), kvld(sOff, 0)], kvld(sOff, 1)]
    sSc = sCB
    def aw_prep(q):
        q("s_lshr_b32 s%d, s%d, 1" % (sSc, sWave))
        q("s_lshl_b32 s%d, s%d, 13" % (sSc, sSc))
        q("s_add_u32 s%d, s%d, s%d" % (sSc, sSc, sW4))
        q("s_add_u32 s%d, s%d, %d" % (sSc, sSc, 4 * U + 8192))
        q("v_add_u32 v%d, s%d, v%d" % (t0, sSc, vL16))
        q("ds_write_b128 v%d, %s" % (t0, rr("a", aRAW, 4)))
        q("ds_write_b128 v%d, %s offset:1024" % (t0, rr("a", aRAW + 4, 4)))
        q("s_and_b32 s%d, s%d, 3" % (sT, sIdx))
        q("s_mul_i32 s%d, s%d, 160" % (sT, sT))
        q("s_sub_u32 s%d, s%d, s%d" % (sT, sSc, sT))
        q("s_addk_i32 s%d, 480" % sT)
        q("v_lshrrev_b32 v%d, 5, v%d" % (t0, vLane))
        q("v_bfe_u32 v%d, v%d, 2, 2" % (t1, vLane))
        q("v_lshl_add_u32 v%d, v%d, 2, v%d" % (t0, t0, t1))
        q("v_mul_u32_u24 v%d, 40, v%d" % (t0, t0))
        q("v_add_u32 v%d, s%d, v%d" % (t0, sT, t0))
        q("v_bfe_u32 v%d, v%d, 4, 1" % (t1, vLane))
        q("v_lshl_add_u32 v%d, v%d, 4, v%d" % (t2, t1, t0))
        q("v_bfe_u32 v%d, v%d, 1, 1" % (t1, vLane))
        q("v_lshl_add_u32 v%d, v%d, 3, v%d" % (t2, t1, t2))
        for tile in range(2):
            for u in range(4):
                q("ds_read_b64_tr_b16 %s, v%d offset:%d" % (rr("v", AW + tile * 8 + 2 * u, 2), t0 if tile else t2, u * 320 + tile * 32))
        q("v_bfe_u32 v%d, v%d, 2, 1" % (vWa, vLane))
        q("v_mul_u32_u24 v%d, 0x8000, v%d" % (vWa, vWa))
        q("v_lshl_or_b32 v%d, v%d, 16, v%d" % (vWa, vWa, vWa))
    fl = L(kvsetup) + kv0(0, 0) + kv0(1, 0) + [poll_check(2)] + L(bm1_loads) + L(aw_prep)
    mfl = q_mf(1)
    for k in range(32):
        p(mfl[k])
        p.add(fl[k * len(fl) // 32:(k + 1) * len(fl) // 32])
    st_()
    wo_chunk = L(wo_src)
    va = []
    for j in (2, 3, 0, 1):
        if os.environ.get("PKMUL", "1") == "1":
            va += ["v_pk_mul_f32 %s, %s, s[%d:%d]" % (rr("v", qacc(j, 0) + k, 2), rr("v", qacc(j, 0) + k, 2), sDa, sDa + 1) for k in range(0, 32, 2)]
        else:
            va += ["v_mul_f32 v%d, s%d, v%d" % (qacc(j, 0) + k, sDa, qacc(j, 0) + k) for k in range(32)]
        va += pack_tile(qacc(j, 0), Q(j, 0)) + pack_tile(qacc(j, 4), Q(j, 2))
    va += ["v_xor_b32 v%d, v%d, v%d" % (AW + k, AW + k, vWa) for k in range(16)]
    vm = kv0(2, 0) + kv0(0, 1) + kv0(1, 1) + kv0(3, 0) + kv0(4, 0) + kv0(5, 0) + kv0(2, 1) + kv0(3, 1) + [wo_chunk]
    for k, x in enumerate(vm):
        p.add([x] + va[k * len(va) // len(vm):(k + 1) * len(va) // len(vm)])
    st_()
    phi(aXF)
    fb = (lambda: st_()) if os.environ.get("FINEB") else (lambda: None)
    fb()
    for k in range(4):
        p("v_mov_b32 v%d, 0" % (RR + k))
    zero_o = lambda k, z: "%s %s, %s, %s, 0" % (MF, rr("a", 16 * k, 16), rr("v", z, 4), rr("v", z, 4))
    p("v_and_b32 v%d, 31, v%d" % (t2, vLane))
    p("s_mov_b32 s%d, s%d" % (sT, sSc))
    p("v_mul_u32_u24 v%d, 48, v%d" % (vWa, vLane))
    p("v_add_u32 v%d, s%d, v%d" % (vWa, sT, vWa))
    p("v_lshrrev_b32 v%d, 5, v%d" % (t1, vLane))
    p(zero_o(0, RR))
    p("v_bfe_u32 v%d, v%d, 2, 2" % (vRd, vLane))
    p("v_lshl_add_u32 v%d, v%d, 2, v%d" % (vRd, t1, vRd))
    p("v_mul_u32_u24 v%d, 48, v%d" % (vRd, vRd))
    p("v_bfe_u32 v%d, v%d, 4, 1" % (t1, vLane))
    p("v_lshl_add_u32 v%d, v%d, 5, v%d" % (vRd, t1, vRd))
    p("v_and_b32 v%d, 3, v%d" % (t1, vLane))
    p("v_lshl_add_u32 v%d, v%d, 3, v%d" % (vRd, t1, vRd))
    p("v_add_u32 v%d, s%d, v%d" % (vRd, sT, vRd))
    p(zero_o(1, RR))
    p("v_mov_b32 v%d, 0x3f803f80" % t0)
    p("v_cmp_eq_u32 vcc, 20, v%d" % t2)
    for tt in range(2):
        fb()
        if tt:
            phi(aXF + 8)
            fb()
        p("ds_write_b128 v%d, %s" % (vWa, rr("v", PH, 4)))
        p("ds_write_b128 v%d, %s offset:16" % (vWa, rr("v", PH + 4, 4)))
        p("ds_write_b64 v%d, %s offset:32" % (vWa, rr("v", PH + 8, 2)))
        for nn in range(2):
            for mm in range(2):
                for u in range(2):
                    p("ds_read_b64_tr_b16 %s, v%d offset:%d" % (rr("v", AF + (nn * 2 + mm) * 4 + 2 * u, 2), vRd, (16 * mm + 8 * u) * 48 + nn * 1536))
        p(zero_o(2 + 3 * tt, RR))
        for k in range(8):
            p("v_accvgpr_read_b32 v%d, a%d" % (VF + k, aVF + tt * 8 + k))
        p(zero_o(3 + 3 * tt, RR))
        for k in range(8):
            p("v_cndmask_b32 v%d, v%d, v%d, vcc" % (VF + k, VF + k, t0))
        p(zero_o(4 + 3 * tt, RR))
        for mm in range(2):
            for nn in range(2):
                c = rr("v", KC + nn * 16, 16)
                p("%s %s, %s, %s, %s" % (MF, c, rr("v", AF + (nn * 2 + mm) * 4, 4), rr("v", VF + mm * 4, 4), "0" if (tt == 0 and mm == 0) else c))
    fb()
    R0 = 6 * U
    p("s_mul_i32 s%d, s%d, 6144" % (sT, sWave))
    p("s_add_u32 s%d, s%d, %d" % (sT, sT, R0))
    p("v_add_u32 v%d, s%d, v%d" % (t1, sT, vL16))
    p("v_lshrrev_b32 v%d, 5, v%d" % (t0, vLane))
    p("v_lshlrev_b32 v%d, 10, v%d" % (vV, t0))
    p("v_lshl_add_u32 v%d, v%d, 4, v%d" % (vV, t2, vV))
    p("v_and_b32 v%d, 15, v%d" % (vLim, vLane))
    p("v_lshrrev_b32 v%d, 4, v%d" % (t0, vLane))
    p("v_lshlrev_b32 v%d, 2, v%d" % (t0, t0))
    p("v_sub_u32 v%d, v%d, v%d" % (vLim, vLim, t0))
    p("v_mov_b32 v%d, 0x%x" % (vNeg, NEG))
    for j in range(4):
        p("v_mov_b32 v%d, 0" % (vL + j))
        p("v_mov_b32 v%d, 0x3f803f80" % (vOne + j))
    for nn in range(2):
        for jj in range(3):
            p("ds_write_b128 v%d, %s offset:%d" % (t1, rr("v", KC + nn * 16 + jj * 4, 4), (nn * 3 + jj) * 1024))
    p("s_lshl_b32 s%d, s%d, 3" % (sT, sIdx))
    p("s_add_u32 s%d, s%d, s%d" % (sT, sT, sXcd))
    p("s_lshl_b32 s%d, s%d, 13" % (sT, sT))
    srd(p, sY, ptr(D_WS), off_s=sT, off_imm=WS_KVP, nrec=5120)
    srd(p, sC, ptr(D_WS), off_imm=WS_CTX, nrec=16 * MB)
    p("s_lshl_b32 s%d, s%d, 10" % (sT, sWave))
    p("s_add_u32 s%d, s%d, %d" % (sT, sT, R0))
    p("v_add_u32 v%d, s%d, v%d" % (t1, sT, vL16))
    p("v_mov_b32 v%d, v%d" % (vB, vL16))
    p("v_add_u32 v%d, 0x4000, v%d" % (vB + 1, vL16))
    fb()
    p("s_waitcnt vmcnt(16) lgkmcnt(0)\ns_barrier")
    st_()
    for j in range(8):
        p("ds_read_b128 %s, v%d offset:%d" % (rr("a", FB(j), 4), vB, j * 1024))
    RS = 128
    for k in range(2):
        for w in range(4):
            p("ds_read_b128 %s, v%d offset:%d" % (rr("v", RS + k * 16 + w * 4, 4), t1, w * 6144 + k * 4096))
    p("s_cmp_eq_u32 s%d, 3" % sWave)
    p("s_cselect_b32 s%d, 512, s%d" % (sSpin, sW2k))
    p("s_add_u32 s%d, s%d, 2560" % (sOff, sW2k))
    p("s_mov_b32 s%d, 0x%x" % (sThr, THRESH))
    p("s_lshl_b32 s%d, s%d, 2" % (sT, sI))
    p("s_add_u32 s%d, s%d, s%d" % (sTriB, sT, sWave))
    p("s_sub_u32 s%d, 60, s%d" % (sTriA, sT))
    p("s_add_u32 s%d, s%d, s%d" % (sTriA, sTriA, sWave))
    p("s_add_u32 s%d, s%d, 4" % (sNlo, sT))
    p("s_mov_b32 s%d, 0\ns_mov_b32 s%d, 3" % (sMask, sMask + 1))
    p("s_bitset1_b64 s[%d:%d], s%d" % (sMask, sMask + 1, sNlo))
    p("s_bitset1_b64 s[%d:%d], s%d" % (sMask, sMask + 1, sTriB))
    p("s_add_u32 s%d, s%d, 1" % (sT, sTriB))
    p("s_bitset1_b64 s[%d:%d], s%d" % (sMask, sMask + 1, sT))
    if os.environ.get("X_NOHOOK"):
        p("s_mov_b64 s[%d:%d], 0" % (sMask, sMask + 1))
    p("s_and_b32 s%d, s%d, 1" % (sNb, sWave))
    p("s_sub_u32 s%d, s%d, s%d" % (sNb, sNb, sNlo))
    p("s_add_u32 s%d, s%d, 2" % (sNb, sNb))
    for k in range(32):
        p("v_mov_b32 v%d, 0" % (CI(0) + k))
    p("s_mov_b32 s%d, 0\ns_mov_b32 s%d, 0\ns_mov_b32 s%d, 1.0" % (sIt, sNext, sKeep))
    p("s_mov_b32 s%d, 0x%x\ns_mov_b32 s%d, 0x%x" % (sG, 6 * U, sGv, 4 * U + 8192))

    def mask_code(sl, tri):
        c = CI(2 * sl)
        r = ["s_sub_i32 s%d, s%d, s%d" % (sT, sNext, tri), "s_lshl_b32 s%d, s%d, 5" % (sT, sT), "v_subrev_u32 v%d, s%d, v%d" % (t0, sT, vLim)]
        for off, regs in ((0, (c, c + 12)), (16, (c + 4,)), (-16, (c + 8,))):
            r += ["v_cmp_gt_i32 s[%d:%d], %d, v%d" % (84 + 2 * k, 85 + 2 * k, off + k, t0) for k in range(4)]
            r += ["v_cndmask_b32 v%d, v%d, v%d, s[%d:%d]" % (b + k, b + k, vNeg, 84 + 2 * k, 85 + 2 * k) for b in regs for k in range(4)]
        return r
    xch = ["s_xor_b32 s%d, s%d, 1" % (sT, sWave), "s_lshl_b32 s%d, s%d, 13" % (sT, sT), "s_add_u32 s%d, s%d, 0x20000" % (sT, sT), "v_add_u32 v%d, s%d, v%d" % (t0, sT, vL16)] + \
          ["ds_read_b128 %s, v%d offset:%d" % (rr("v", Q(2, 0) + 4 * k, 4), t0, k * 1024) for k in range(8)] + \
          ["v_mov_b32 v%d, v%d" % (CI(2) + k, vMp + (k >> 3)) for k in range(16)] + \
          ["v_mov_b32 v%d, v%d" % (vM + 2, vMp), "v_mov_b32 v%d, v%d" % (vM + 3, vMp + 1), "s_xor_b32 s%d, s%d, 1" % (sTriB, sTriA), "s_mov_b32 s%d, 0" % sKeep, WL]
    def evt_check(kind):
        lab = p.newlabel("M_ev")
        back = "%s_r" % lab
        code = ["%s:" % lab]
        if kind == "x":
            code += ["s_cmp_eq_u32 s%d, s%d" % (sIt, sNlo), "s_cbranch_scc1 %s_x" % lab] + mask_code(1, sTriB) + ["s_branch " + back, "%s_x:" % lab] + xch + \
                    ["s_cmp_lt_u32 s%d, 32" % sIt, "s_cbranch_scc1 " + back]
        code += mask_code(1, sTriB)
        if kind == "l1":
            code += ["s_cmp_lt_u32 s%d, 32" % sIt, "s_cbranch_scc1 " + back]
        if kind != "lo":
            code += mask_code(0, sTriA)
        tail.extend(code + ["s_branch " + back])
        return ["s_bitcmp1_b64 s[%d:%d], s%d" % (sMask, sMask + 1, sIt), "s_cbranch_scc1 %s" % lab, "%s:" % back]
    qk_mf = lambda par: ["%s %s, %s, %s, %s" % (M16, rr("v", S(par, j) + 4 * (f >> 2), 4), rr("a", FB(f), 4), rr("v", Q(j, f & 3), 4),
                                                 rr("v", (CI(j) if (f & 3) == 0 else S(par, j)) + 4 * (f >> 2), 4)) for f in range(8) for j in range(4)]
    pv_mf = lambda par: ["%s %s, %s, %s, %s" % (M16, rr("a", O(j, d), 4), rr("a", FB(8 + d), 4), rr("v", PP(par, j), 4), rr("a", O(j, d), 4)) for d in range(8) for j in range(4)]
    def allg(op, dst, tmp):
        return ["v_mov_b32 v%d, v%d" % (tmp, dst), "v_permlane32_swap_b32 v%d, v%d" % (dst, tmp), "%s v%d, v%d, v%d" % (op, dst, dst, tmp),
                "v_mov_b32 v%d, v%d" % (tmp, dst), "v_permlane16_swap_b32 v%d, v%d" % (dst, tmp), "%s v%d, v%d, v%d" % (op, dst, dst, tmp)]
    def rowmax(par, j, dst, tmp):
        s = S(par, j)
        return ["v_max3_f32 v%d, v%d, v%d, v%d" % (dst, s, s + 1, s + 2), "v_max3_f32 v%d, v%d, v%d, v%d" % (dst, dst, s + 3, s + 4),
                "v_max3_f32 v%d, v%d, v%d, v%d" % (dst, dst, s + 5, s + 6), "v_max_f32 v%d, v%d, v%d" % (dst, dst, s + 7)] + allg("v_max_f32", dst, tmp) + \
               ["v_add_f32 v%d, 0x%x, v%d" % (dst, f2u(BIAS), dst)]
    NG1 = int(os.environ.get("NG1", "9"))
    def sm_stream(par, part):
        allg_ = [(j, k) for k in range(4) for j in range(4)]
        groups = allg_[:NG1] if part == 0 else (allg_[NG1:] if part == 1 else allg_)
        out = []
        tm = lambda n: (TMP + (n % 4) * 2, TMP + (n % 4) * 2 + 1)
        cv = lambda n: "v_cvt_pk_bf16_f32 v%d, v%d, v%d" % ((PP(par, groups[n][0]) + groups[n][1],) + tm(n))
        for n, (j, k) in enumerate(groups):
            a, b = tm(n)
            out += ["v_exp_f32 v%d, v%d" % (a, S(par, j) + 2 * k)] + ([cv(n - 1)] if n else []) + ["v_exp_f32 v%d, v%d" % (b, S(par, j) + 2 * k + 1)]
        return out + [cv(len(groups) - 1)]
    NE = 4
    def sm_place(G, par, part, lo, hi, ne=0):
        st = sm_stream(par, part)
        ex = [x for x in st if x.startswith("v_exp")]
        cv = [x for x in st if x.startswith("v_cvt")]
        nc = 0
        for g in range(lo, hi + 1):
            ready = ne // 2
            left = 8 - G.load(g)
            rest = sum(max(0, 8 - G.load(x)) for x in range(g + 1, hi + 1))
            while True:
                todo = 8 * (len(ex) - ne) + 4 * (len(cv) - nc)
                force = todo > rest + max(left, 0) - 4 and left > -4 and g < hi or g == hi and todo
                if ne < len(ex) and (left >= 8 or (force and nc >= ready)) and ne // 2 - nc < 4 and not (ready - nc >= 3 and left >= 8 and ne % 2 == 0):
                    G.va[g].append(ex[ne]); ne += 1; left -= 8
                elif nc < (ready if g < hi else ne // 2) and (left >= 4 or force):
                    G.va[g].append(cv[nc]); nc += 1; left -= 4
                else:
                    break
        assert ne == len(ex) and nc == len(cv), (ne, nc)
    LT = lambda par, j: PP(par ^ 1, j)
    sum_mf = lambda par: ["%s %s, %s, %s, 0" % (M16, rr("v", LT(par, j), 4), rr("v", vOne, 4), rr("v", PP(par, j), 4)) for j in range(4)]
    need = lambda js: I("need", xrd=[("a", FB(j) + e) for j in js for e in range(4)])
    fread = lambda f, par: "ds_read_b128 %s, v%d offset:%d" % (rr("a", FB(f), 4), vB + par, f * 1024)
    ALL = (0, 1, 2, 3)
    def slow_site(par):
        lab = p.newlabel("M_sl")
        tail.extend(["%s:" % lab, call("M_slow%d" % par), "s_branch %s_r" % lab])
        chk = ["v_max3_f32 v%d, v%d, v%d, v%d" % (vU, LT(par, 0), LT(par, 1), LT(par, 2)), "v_max_f32 v%d, v%d, v%d" % (vU, vU, LT(par, 3)), "v_cmp_lt_f32 vcc, s%d, v%d" % (sThr, vU)]
        return chk, ["s_cbranch_vccnz %s" % lab, "%s_r:" % lab]
    accl = lambda par: ["v_add_f32 v%d, v%d, v%d" % (vL + j, vL + j, LT(par, j)) for j in range(4)]
    def iteration(par, barrier, ntile, kind, endc=(), endb=(), mid=()):
        qk = qk_mf(par ^ 1)
        SP = 24
        mf = qk[:SP] + sum_mf(par) + qk[SP:] + pv_mf(par)
        pos = lambda f: 4 * f + (4 if 4 * f >= SP else 0)
        G = Gaps16(68)
        LA = int(os.environ.get("LA", "14")); LV = int(os.environ.get("LV", "18")); BP = int(os.environ.get("BP", "53")); LG = ""
        for f in range(4, 16):
            G.put(pos(f) - (LA if f < 6 else LV), fread(f, (par ^ 1) if f < 8 else par))
        for f in range(2, 16, 2):
            G.nv[pos(f) - 1].insert(0, need([f, f + 1]))
        G.put(66, need([0, 1]))
        G.put(0, ["s_add_u32 s%d, s%d, 1" % (sIt, sIt)]); G.put(1, ["s_add_u32 s%d, s%d, 2" % (sNb, sNb)])
        G.put(3, ["s_max_i32 s%d, s%d, s%d" % (sNext, sIt, sNb)]); G.put(4, ["s_lshl_b32 s%d, s%d, 14" % (sRd, sNext)])
        G.put(5, ["s_and_b32 s%d, s%d, 0x1ffff" % (sRd, sRd)])
        G.put(64 - LV, "v_add_u32 v%d, s%d, v%d" % (vB + par, sRd, vL16))
        if barrier:
            G.put(BP, ["s_waitcnt vmcnt(%d)%s" % (4 + 4 * ntile, LG), "s_barrier"])
        for f in range(4):
            G.put(BP + 1 + 2 * f + (f >> 1) * 2, fread(f, par))
        slots = eval(os.environ.get("SL2", "[8, 16, 23, 28, 33, 40, 45, 50]")) if ntile == 2 else eval(os.environ.get("SL1", "[23, 28, 33, 45]"))
        for hh in range(2 * ntile):
            so = sGv if hh < ntile else sG
            g0, g1 = slots[2 * hh], slots[2 * hh + 1]
            G.put(g0 - 2, ["s_and_b32 s%d, s%d, 0x1ffff" % (sT, so)])
            G.put(g0 - 1, ["s_add_u32 m0, s%d, s%d" % (sT, sW2k)])
            G.put(g0, kvld(so, 0))
            G.put(g1, [kvld(so, 1), "s_add_u32 s%d, s%d, 0x4000" % (so, so)])
        chk, br = slow_site(par)
        G.put(35, br)
        G.put(64, evt_check(kind))
        for k, x in enumerate(mid):
            G.put(55 + k, x)
        G.put(67, list(endc))
        G.put(67, list(endb), post=True)
        sm_place(G, par, 1, 0, SP - 3)
        G.put(32, chk[:2]); G.put(34, chk[2])
        early = [x for x in sm_stream(par ^ 1, 0) if x.startswith("v_exp")][:NE]
        for g in range(SP - 2, 32):
            if early and G.load(g) == 0:
                G.put(g, early.pop(0))
        assert not early
        G.put(36, accl(par)[:2]); G.put(37, accl(par)[2:])
        sm_place(G, par ^ 1, 0, 38, 66, NE)
        if VERB:
            print("iteration", par, ntile, G.report(), sum(max(0, x - 8) for x in G.report()))
        out = [x if isinstance(x, I) else I(x) for x in G.emit(mf)]
        X = os.environ.get("X_DROP", "")
        if "d" in X: out = [x for x in out if x.kind != "dma"]
        if "b" in X: out = [x for x in out if x.mn != "s_barrier"]
        if "e" in X: out = [x for x in out if x.mn != "v_exp_f32"]
        if "c" in X: out = [x for x in out if x.mn != "v_cvt_pk_bf16_f32"]
        if "l" in X: out = [x for x in out if x.kind != "ds"]
        if "w" in X:
            for x in out:
                if x.kind == "ds": x.wr = set()
        if "v" in X: out = [x for x in out if not (x.kind == "branch" and (x.target.startswith("M_ev") or x.target.startswith("M_sl")))]
        p.add(out)

    fb()
    p.add(evt_check("lo"))
    G = Gaps16(32)
    red = []
    for k in range(2):
        b = RS + k * 16
        for e in range(4):
            red += ["v_add_f32 v%d, v%d, v%d" % (b + e, b + e, b + 4 + e), "v_add_f32 v%d, v%d, v%d" % (b + 8 + e, b + 8 + e, b + 12 + e)]
        red += ["v_add_f32 v%d, v%d, v%d" % (b + e, b + e, b + 8 + e) for e in range(4)]
    G.stream(red, 2, 16)
    for k in range(2):
        G.put(18 + 2 * k, "buffer_store_dwordx4 %s, v%d, s[%d:%d], s%d offen %s" % (rr("v", RS + k * 16, 4), vV, sY, sY + 3, sOff if k else sSpin, WT))
    G.spread([fread(f, 1) for f in range(4)], 22, 31)
    p.add(G.emit(qk_mf(0)))
    fb()
    p("s_mov_b32 s%d, 1\ns_mov_b32 s%d, 1" % (sIt, sNext))
    p("s_lshl_b32 s%d, s%d, 9" % (sT, sWave))
    p("s_add_u32 s%d, s%d, %d" % (sT, sT, 7 * U + 8192))
    p("v_lshl_add_u32 v%d, v%d, 3, s%d" % (t2, vLane, sT))
    for j in range(4):
        p.add(rowmax(0, j, vU, vU + 1))
        p("v_sub_f32 v%d, 0, v%d" % (vM + j, vU))
        for k in range(0, 8, 2):
            p(pk_subb(S(0, j) + k, S(0, j) + k, vU))
            p(pk_subb(CI(j) + k, CI(j) + k, vU))
        if j == 1:
            p("ds_write_b64 v%d, %s" % (t2, rr("v", vM, 2)))
    fb()
    p.add(evt_check("lo"))
    p("s_waitcnt vmcnt(2)")
    wo_out(p)
    p.add(sm_stream(0, 0))
    wo_st(p)
    fb()
    p("s_lshr_b32 s%d, s%d, 1" % (sT, sXcd))
    p("s_lshl_b32 s%d, s%d, 6" % (sT, sT))
    p("s_lshr_b32 s%d, s%d, 4" % (sT2, sIdx))
    p("s_add_u32 s%d, s%d, s%d" % (sT, sT, sT2))
    p("v_and_b32 v%d, 31, v%d" % (t0, vLane))
    p("v_lshl_add_u32 v%d, v%d, 1, s%d" % (t0, t0, sT))
    p("s_lshl_b32 s%d, s%d, 3" % (sT, sIdx))
    p("v_and_b32 v%d, 7, v%d" % (t1, vLane))
    p("v_add_u32 v%d, s%d, v%d" % (t1, sT, t1))
    p("v_cmp_gt_u32 vcc, 32, v%d" % vLane)
    p("v_cndmask_b32 v%d, v%d, v%d, vcc" % (vPoll, t0, t1))
    p("s_andn2_b32 s%d, s2, 0x38" % sT)
    p("v_and_b32 v%d, 7, v%d" % (t1, vLane))
    p("v_lshl_add_u32 v%d, v%d, 3, s%d" % (t1, t1, sT))
    p("v_lshrrev_b32 v%d, 4, v%d" % (t0, vLane))
    p("v_cmp_eq_u32 vcc, 1, v%d" % t0)
    p("v_cndmask_b32 v%d, v%d, v%d, vcc" % (vPoll, vPoll, t1))
    p("v_cndmask_b32 v%d, 3, 4, vcc" % (vPoll + 1))
    p("v_lshlrev_b32 v%d, 7, v%d" % (vPoll, vPoll))
    p("v_xor_b32 v%d, 0x200, v%d" % (t2, t2))
    p("s_lshl_b32 s%d, s%d, 13" % (sT, sWave))
    p("s_add_u32 s%d, s%d, 0x20000" % (sT, sT))
    p("v_add_u32 v%d, s%d, v%d" % (t0, sT, vL16))
    p(WL + "\ns_barrier")
    p("ds_read_b64 %s, v%d" % (rr("v", vMp, 2), t2))
    for k in range(8):
        p("ds_write_b128 v%d, %s offset:%d" % (t0, rr("v", Q(0, 0) + 4 * k, 4), k * 1024))
    p("s_lshl_b32 s%d, s%d, 1" % (sCnt, sI))
    p("s_add_u32 s%d, s%d, 1" % (sCnt, sCnt))
    p(WL)
    st_()
    dec = ["s_sub_u32 s%d, s%d, 1" % (sCnt, sCnt)]
    HOOKS = (3, 5, 7, 9, 13, 15)
    HM = sum(1 << e for e in HOOKS)
    hk = ["s_mov_b32 s%d, 0x%x" % (sT, HM), "s_bitcmp1_b32 s%d, s%d" % (sT, sIt)]
    chain = lambda hs: [x for e in hs for x in ("s_cmp_eq_u32 s%d, %d" % (sIt, e), "s_cbranch_scc1 M_hook%d" % e)]
    def setcont(lab):
        p("s_getpc_b64 s[%d:%d]\n%s_pc:" % (sCont, sCont + 1, lab))
        p("s_add_u32 s%d, s%d, %s-%s_pc\ns_addc_u32 s%d, s%d, 0" % (sCont, sCont, lab, lab, sCont + 1, sCont + 1))
    p.add(kv_store(0, 4) + kv_store(1, 4))
    setcont("M_l1")
    p("M_l1:")
    iteration(0, False, 1, "x")
    e1 = dec + ["s_cselect_b32 s%d, M_l1x-M_l1, 0" % sT, "s_cselect_b32 s%d, -1, 0x%x" % (sT2, HM),
                "s_add_u32 s%d, s%d, s%d" % (sCont, sCont, sT), "s_addc_u32 s%d, s%d, 0" % (sCont + 1, sCont + 1)]
    iteration(1, True, 1, "l1", ["s_bitcmp1_b32 s%d, s%d" % (sT2, sIt)], ["s_cbranch_scc0 M_l1"], mid=e1)
    p.add(chain(HOOKS))
    p("M_l1x:")
    st_()
    def ctx_base(sblk):
        p("s_lshl_b32 s%d, s%d, 20" % (sT, sblk))
        p("s_lshl_b32 s%d, s%d, 15" % (sT2, sH))
        p("s_add_u32 s%d, s%d, s%d" % (sT, sT, sT2))
        p("s_add_u32 s%d, s%d, s%d" % (sCb, sT, sW2k))
    ctx_store = lambda r, jj: "buffer_store_dwordx4 %s, v%d, s[%d:%d], s%d offen offset:%d %s" % (rr("v", r, 4), vL16, sC, sC + 3, sCb, jj * 1024, WT)
    ctx_base(sI)
    for jj in range(2):
        p("v_rcp_f32 v%d, v%d" % (vU + 2 + jj, vL + 2 + jj))
        p("v_mov_b32 v%d, 0" % (vL + 2 + jj))
    Z = PP(1, 0)
    for k in range(4):
        p("v_mov_b32 v%d, 0" % (Z + k))
    for ds in range(4):
        T = S(1, 0) + (ds & 1) * 16
        for jj in range(2):
            for k in range(8):
                p("v_accvgpr_read_b32 v%d, a%d" % (T + 8 * jj + k, O(2 + jj, 2 * ds) + k))
        for jj in range(2):
            for k in range(0, 8, 2):
                p(pk_mulb(T + 8 * jj + k, T + 8 * jj + k, vU + 2 + jj))
        p.add(pack_tile(T, T))
        if ds & 1:
            p(zero_o(4 + (ds >> 1), Z)); p(zero_o(6 + (ds >> 1), Z))
        p(ctx_store(T, 0)); p(ctx_store(T + 4, 1))
        if ds < 3:
            p("s_add_u32 s%d, s%d, 0x2000" % (sCb, sCb))
    for hh in range(2):
        so = sG
        p.add(["s_and_b32 s%d, s%d, 0x1ffff" % (sT, so), "s_add_u32 m0, s%d, s%d" % (sT, sW2k), kvld(so, 0), kvld(so, 1), "s_add_u32 s%d, s%d, 0x4000" % (so, so)])
    p("s_mov_b32 s%d, 1.0" % sKeep)
    p("s_lshl_b32 s%d, s%d, 1" % (sCnt, sI))
    p("s_sub_u32 s%d, 14, s%d" % (sCnt, sCnt))
    st_()
    setcont("M_l2")
    p("M_l2:")
    iteration(0, True, 2, "l2", dec, ["s_cbranch_scc1 M_l2x"])
    iteration(1, True, 2, "l2", hk, ["s_cbranch_scc0 M_l2"])
    back = jump("s_setpc_b64 s[%d:%d]" % (sCont, sCont + 1), ["M_l1", "M_l1x", "M_l2"])
    vP = vA
    def bm2_loads(q):
        bm_frag_loads(q, 0, aXQ)
        q("s_lshl_b32 s%d, s%d, 16" % (sT, sIdx))
        q("s_lshl_b32 s%d, s%d, 14" % (sT2, sWave))
        q("s_add_u32 s%d, s%d, s%d" % (sT, sT, sT2))
        srd(q, sO, ptr(D_WS), off_s=sT, off_imm=WS_KVP, nrec=16384)
        for j in range(2):
            for k in range(5):
                if k in (0, 4):
                    q("s_mov_b32 s%d, %d" % (sT, j * 8192 + k * 1024))
                q("buffer_load_dwordx4 %s, v%d, s[%d:%d], s%d offen offset:%d %s" % (rr("a", aPA + j * 20 + k * 4, 4), vL16, sO, sO + 3, sT, (k & 3) * 1024, WT))
    jobs = {3: publish(3) + kv_store(0, 5) + kv_store(1, 5), 5: poll_load("KV") + kv_store(0, 6) + kv_store(1, 6), 7: poll_check("KV", 3) + kv_store(0, 7) + kv_store(1, 7),
            9: publish(4) + L(xclear0) + xclear(1), 13: poll_load(3) + xclear(2), 15: poll_check(3) + xclear(3) + L(bm2_loads)}
    p.add(chain(HOOKS[:-1]))
    for e in reversed(HOOKS):
        p("M_hook%d:" % e)
        ins = [x if isinstance(x, I) else I(x) for x in jobs[e]]
        for x in ins:
            if x.kind == "vmem":
                x.wr = set()
        p.add(ins + [back])
    p("M_l2x:")
    for f in range(8, 16):
        p(fread(f, 1))
    chk, br = slow_site(1)
    p.add(sm_stream(1, 1) + sum_mf(1) + chk + br + accl(1))
    p("s_waitcnt vmcnt(0) lgkmcnt(0)\ns_barrier")
    p.add(publish(5))
    mfl = pv_mf(1)
    mfl = [mfl[d * 4 + j] for jj in (2, 0) for d in range(8) for j in (jj, jj + 1)]
    sKq, sMb, sCc, sGc, sGw, sGw2, sWs, sRs, sW5, sDl = range(37, 47)
    sPC, sPW, sXO, sOut = sBO, sW2, sO, sW
    sIc, sIw = sKo, sNext
    vDw, vC, vWf = 3, 4, 8
    SZ = 36864
    odd = "s_bitcmp1_b32 s%d, 0" % sXcd
    pp, p = p, Prog()
    p("s_lshr_b32 s%d, s%d, 1" % (sKq, sXcd))
    p("s_lshr_b32 s%d, s%d, 3" % (sCc, sIdx))
    p("s_sub_u32 s%d, 15, s%d" % (sT, sI))
    p(odd)
    p("s_cselect_b32 s%d, s%d, s%d" % (sMb, sT, sI))
    p("s_cselect_b32 s%d, 6, 5" % sT2)
    p("v_mov_b32 v%d, s%d" % (vPoll + 1, sT2))
    p("s_and_b32 s%d, s2, 0x3e" % sT)
    p("v_bfe_u32 v%d, v%d, 1, 2" % (t1, vLane))
    p("v_lshl_add_u32 v%d, v%d, 6, s%d" % (t1, t1, sT))
    p("v_and_b32 v%d, 1, v%d" % (t2, vLane))
    p("v_add_lshl_u32 v%d, v%d, v%d, 7" % (vPoll, t1, t2))
    p("s_lshl_b32 s%d, s%d, 20" % (sT, sMb))
    p("s_lshl_b32 s%d, s%d, 18" % (sT2, sKq))
    p("s_add_u32 s%d, s%d, s%d" % (sT, sT, sT2))
    srd(p, sPC, ptr(D_WS), off_s=sT, off_imm=WS_CTX, nrec=32 * 8192)
    p("s_lshl_b32 s%d, s%d, 2" % (sT, sCc))
    p("s_add_u32 s%d, s%d, s%d" % (sT, sT, sKq))
    p("s_mul_i32 s%d, s%d, %d" % (sT, sT, 32 * 10240))
    srd(p, sPW, ptr(D_WS), off_s=sT, off_imm=WS_WOA, nrec=32 * 10240)
    p("s_mul_i32 s%d, s%d, 5120" % (sW5, sWave))
    p("v_add_u32 v%d, s%d, v%d" % (vDw, sW5, vL16))
    p("s_add_u32 s%d, s%d, 0x4000" % (sW5, sW5))
    p("s_movk_i32 s%d, 0x4000\ns_movk_i32 s%d, 0x5000" % (sIc, sIw))
    ldc = lambda k: "buffer_load_dwordx4 v%d, s[%d:%d], s%d offen offset:%d %s lds" % (vDma, sPC, sPC + 3, sGc, k * 1024, WT)
    ldw = lambda so, k: "buffer_load_dwordx4 v%d, s[%d:%d], s%d offen offset:%d %s lds" % (vDw, sPW, sPW + 3, so, k * 1024, WT)
    sSt, sBw = sDa, sDb
    dPos = ["s_mul_i32 s%d, s%d, s%d" % (sGc, sSt, sIc), "s_mul_i32 s%d, s%d, s%d" % (sGw, sSt, sIw), "s_add_u32 s%d, s%d, s%d" % (sGw, sGw, sBw),
            "s_add_u32 s%d, s%d, 0x1000" % (sGw2, sGw)]
    dC = [["s_add_u32 m0, s%d, s%d" % (sWs, sW4)]] + [ldc(k) for k in range(4)]
    dW = [["s_add_u32 m0, s%d, s%d" % (sWs, sW5)]] + [ldw(sGw, k) for k in range(4)] + [["s_add_u32 m0, m0, 0x1000"], ldw(sGw2, 0)]
    dAdv = ["s_add_u32 s%d, s%d, 1" % (sSt, sSt), "s_and_b32 s%d, s%d, 15" % (sSt, sSt),
            "s_add_u32 s%d, s%d, %d" % (sWs, sWs, SZ), "s_cmp_eq_u32 s%d, %d" % (sWs, 4 * SZ), "s_cselect_b32 s%d, 0, s%d" % (sWs, sWs)]
    p("s_and_b32 s%d, s%d, 7" % (sSt, sH))
    p("s_lshl_b32 s%d, s%d, 1" % (sSt, sSt))
    p("s_mov_b32 s%d, 0\ns_mov_b32 s%d, 0" % (sWs, sBw))
    p("v_add_u32 v%d, 0x20000, v%d" % (vKV, vDw))
    setup, p = p.ins, pp
    wpre = []
    for k in range(3):
        wpre += [(dAdv if k else []) + dPos + dW[0]] + dW[1:]
    Lr, SUM, KA, N = 96, 176, 200, 96
    vMw, vLw = vB, vB + 1
    p("s_mul_i32 s%d, s%d, %d" % (sT, sWave, SZ))
    p("v_add_u32 v%d, s%d, v%d" % (vMw, sT, vL16))
    p("v_lshlrev_b32 v%d, 4, v0" % vLw)
    p("v_add_u32 v%d, 0x%x, v%d" % (vLw, 124 * 1024, vLw))
    p("v_mov_b32 v%d, v%d\nv_mov_b32 v%d, v%d" % (vOne, vM + 2, vOne + 1, vM + 3))
    G = Gaps16(32)
    G.put(0, "ds_write_b128 v%d, %s" % (vLw, rr("v", vL + 2, 4)))
    for k in range(16):
        G.put(16 + k, "ds_write_b128 v%d, %s offset:%d" % (vMw, rr("a", O(2 + (k & 1), k >> 1), 4), k * 1024))
    for k in range(30):
        G.put(k, setup[k * len(setup) // 30:(k + 1) * len(setup) // 30], post=True)
    G.stream(["v_accvgpr_read_b32 v%d, a%d" % (Lr + k, aPA + k) for k in range(40)] + ["v_add_f32 v%d, v%d, v%d" % (Lr + e, Lr + e, Lr + 20 + e) for e in range(20)], 0, 31)
    p.add(G.emit(mfl))
    st_()
    for k in range(5):
        p("ds_write_b128 v%d, %s offset:%d" % (vKV, rr("v", Lr + 4 * k, 4), k * 1024))
    p("v_add_u32 v%d, s%d, v%d" % (vDma, sW4, vL16))
    p("v_and_b32 v%d, 31, v%d" % (t2, vLane))
    p("v_min_u32 v%d, 20, v%d" % (t2, t2))
    p("v_and_b32 v%d, 32, v%d" % (t1, vLane))
    p("v_add_lshl_u32 v%d, v%d, v%d, 4" % (vP, t1, t2))
    p("v_add_u32 v%d, 0x20000, v%d" % (vP, vP))
    p("s_xor_b32 s%d, s%d, 1" % (sT, sWave))
    p("s_mul_i32 s%d, s%d, %d" % (sT, sT, SZ))
    p("v_add_u32 v%d, s%d, v%d" % (t0, sT, vL16))
    p("v_xor_b32 v%d, 0x400, v%d" % (vLw, vLw))
    p("s_sub_u32 s%d, 15, s%d" % (sOff, sI))
    ctx_base(sOff)
    p(WL + "\ns_barrier")
    XO = 144
    p("ds_read_b128 %s, v%d" % (rr("v", TMP, 4), vLw))
    for k in range(16):
        p("ds_read_b128 %s, v%d offset:%d" % (rr("v", XO + (k >> 2) * 16 + (k & 1) * 8 + ((k >> 1) & 1) * 4, 4), t0, k * 1024))
    pp, p = p, Prog()
    for jj in range(2):
        fa, fb = vU + 2 * jj, vU + 2 * jj + 1
        p("v_min_f32 v%d, v%d, v%d" % (t1, vM + jj, TMP + 2 + jj))
        p("v_sub_f32 v%d, v%d, v%d" % (fa, t1, vM + jj))
        p("v_sub_f32 v%d, v%d, v%d" % (fb, t1, TMP + 2 + jj))
        p("v_exp_f32 v%d, v%d" % (fa, fa))
        p("v_exp_f32 v%d, v%d" % (fb, fb))
        p("v_mul_f32 v%d, v%d, v%d" % (vL + jj, vL + jj, fa))
        p("v_fmac_f32 v%d, v%d, v%d" % (vL + jj, TMP + jj, fb))
        p("v_rcp_f32 v%d, v%d" % (t1, vL + jj))
        p("v_mul_f32 v%d, v%d, v%d" % (fa, fa, t1))
        p("v_mul_f32 v%d, v%d, v%d" % (fb, fb, t1))
    KP = lambda ds: (32, 40, 212, 220)[ds]
    for ds in range(4):
        T = 48 + (ds & 1) * 16
        for jj in range(2):
            for k in range(8):
                p("v_accvgpr_read_b32 v%d, a%d" % (T + 8 * jj + k, O(jj, 2 * ds) + k))
        for jj in range(2):
            for k in range(0, 8, 2):
                p(pk_mulb(T + 8 * jj + k, T + 8 * jj + k, vU + 2 * jj))
            for k in range(0, 8, 2):
                p(pk_fmab(T + 8 * jj + k, XO + ds * 16 + jj * 8 + k, vU + 2 * jj + 1, T + 8 * jj + k))
        p.add(pack_tile(T, KP(ds)))
        p(ctx_store(KP(ds), 0)); p(ctx_store(KP(ds) + 4, 1))
        if ds < 3:
            p("s_addk_i32 s%d, 0x2000" % sCb)
    epi, p = p.ins, pp
    n1 = len(epi) * 2 // 3
    for k, x in enumerate(wpre):
        p.add([x] + epi[k * n1 // len(wpre):(k + 1) * n1 // len(wpre)])
    p.add(epi[n1:])
    st_()
    for w in range(4):
        for k in range(5):
            p("ds_read_b128 %s, v%d offset:%d" % (rr("v", Lr + w * 20 + 4 * k, 4), vP, w * 5120 + k * 1024))
    phi(aXQ)
    p("s_waitcnt vmcnt(0) lgkmcnt(0)\ns_barrier")
    p.add(publish(6))
    p(odd + "\ns_cbranch_scc0 M_own0")
    p("v_add_u32 v%d, s%d, v%d" % (t2, sW2k, vL16))
    for ds in range(4):
        for jj in range(2):
            p("ds_write_b128 v%d, %s offset:%d" % (t2, rr("v", KP(ds) + 4 * jj, 4), (ds >> 1) * SZ + (ds & 1) * 8192 + jj * 1024))
    p("s_branch M_own1\nM_own0:")
    p("s_and_b32 s%d, s%d, 7" % (sGc, sH))
    p("s_lshl_b32 s%d, s%d, 15" % (sGc, sGc))
    p.add(["s_mov_b32 m0, s%d" % sW4] + dC[1:] + ["s_add_u32 m0, m0, %d" % SZ, "s_addk_i32 s%d, 0x4000" % sGc] + dC[1:] + dPos[:1])
    p("M_own1:")
    sums = []
    for e in range(0, 20, 2):
        sums += [pk_add(Lr + e, Lr + e, Lr + 20 + e), pk_add(Lr + 40 + e, Lr + 40 + e, Lr + 60 + e)]
    sums += [pk_add(SUM + e, Lr + e, Lr + 40 + e) for e in range(0, 20, 2)]
    sums += ["v_cvt_pk_bf16_f32 v%d, v%d, v%d" % (KA + k, SUM + 2 * k, SUM + 2 * k + 1) for k in range(10)]
    sums += ["v_mov_b32 v%d, 0" % r for r in (KA + 10, KA + 11, PH + 10, PH + 11)]
    p.add(sums)
    def num(N):
        for u in range(3):
            p("%s %s, %s, %s, %s" % (MF, rr("v", N, 16), rr("v", KA + 4 * u, 4), rr("v", PH + 4 * u, 4), rr("v", N, 16) if u else "0"))
    num(N)
    p.add(poll_load("A"))
    phi(aXQ + 8)
    num(N + 32)
    p.add(poll_check("A"))
    p.add(dC + dAdv + dPos)
    p("s_lshr_b32 s%d, s%d, 1" % (sT, sTT))
    p("s_mul_i32 s%d, s%d, 81920" % (sT, sT))
    srd(p, sY, ptr(D_WS), off_s=sT, off_imm=WS_OB, nrec=81920)
    vO = vA
    p("v_and_b32 v%d, 15, v%d" % (t0, vLane))
    p("v_bfe_u32 v%d, v%d, 4, 1" % (t2, vLane))
    p("v_lshlrev_b32 v%d, 10, v%d" % (t2, t2))
    p("v_lshrrev_b32 v%d, 5, v%d" % (t1, vLane))
    p("v_lshl_add_u32 v%d, v%d, 4, v%d" % (vO, t0, t2))
    p("v_lshl_add_u32 v%d, v%d, 8, v%d" % (vO, t1, vO))
    p("v_lshl_add_u32 v%d, v%d, 3, v%d" % (vO + 1, t0, t2))
    p("v_lshl_add_u32 v%d, v%d, 31, v%d" % (vO + 1, t1, vO + 1))
    p("s_lshr_b32 s%d, s%d, 3" % (sT, sIdx))
    p("s_mul_i32 s%d, s%d, 20480" % (sT, sT))
    p("s_bfe_u32 s%d, s%d, 0x20001" % (sT2, sIdx))
    p("s_and_b32 s%d, s%d, 1" % (sSpin, sIdx))
    p("s_lshl_b32 s%d, s%d, 7" % (sOff, sI))
    p("s_add_u32 s%d, s%d, s%d" % (sOff, sOff, sT))
    p("s_addk_i32 s%d, 0x4000" % sOff)
    p("s_lshl_b32 s%d, s%d, 12" % (sT2, sT2))
    p("s_lshl_b32 s%d, s%d, 9" % (sSpin, sSpin))
    p("s_add_u32 s%d, s%d, s%d" % (sT, sT, sT2))
    p("s_add_u32 s%d, s%d, s%d" % (sT, sT, sSpin))
    for tt in range(2):
        n0 = N + 32 * tt
        p("v_add_f32 v%d, 0x%x, v%d" % (n0 + 12, f2u(1e-6), n0 + 12))
        p("v_rcp_f32 v%d, v%d" % (n0 + 12, n0 + 12))
        for k in range(0, 12, 2):
            p(pk_mulb(n0 + k, n0 + k, n0 + 12))
        for k in range(6):
            p("v_cvt_pk_bf16_f32 v%d, v%d, v%d" % (n0 + 16 + k, n0 + 2 * k, n0 + 2 * k + 1))
        p("buffer_store_dwordx4 %s, v%d, s[%d:%d], s%d offen offset:%d %s" % (rr("v", n0 + 16, 4), vO, sY, sY + 3, sT, tt * 2048, WT))
        if os.environ.get("X_OB") == "1":
            p("buffer_store_dwordx4 %s, v%d, s[%d:%d], s%d offen offset:%d %s" % (rr("v", n0 + 16, 4), vO, sY, sY + 3, sT, tt * 2048, WT))
        else:
            p("buffer_store_dwordx2 %s, v%d, s[%d:%d], s%d offen offset:%d %s" % (rr("v", n0 + 20, 2), vO + 1, sY, sY + 3, sOff, tt * 2048, WT))
    MF16 = "v_mfma_f32_16x16x32_bf16"
    PA = 160
    pacc = lambda q, n: PA + (q * 5 + n) * 4
    pfr = lambda st, i: st * 36 + i * 4
    aOB = 80
    p("s_lshr_b32 s%d, s%d, 1" % (sT, sWave))
    p("s_lshl_b32 s%d, s%d, 2" % (sT, sT))
    p("s_add_u32 s%d, s%d, s%d" % (sT, sT, sKq))
    p("s_lshl_b32 s%d, s%d, 10" % (sT, sT))
    p("v_add_u32 v%d, s%d, v%d" % (vC, sT, vL16))
    for qq in range(1, 4):
        p("v_xor_b32 v%d, 0x%x, v%d" % (vC + qq, qq << 10, vC))
    p("s_and_b32 s%d, s%d, 1" % (sT, sWave))
    p("s_mul_i32 s%d, s%d, 5120" % (sT, sT))
    p("s_add_u32 s%d, s%d, 0x4000" % (sT, sT))
    p("v_add_u32 v%d, s%d, v%d" % (vWf, sT, vL16))
    p("s_mov_b32 s%d, 0" % sRs)
    for k in range(4):
        p("v_mov_b32 v%d, 0" % (32 + k))
    for k in range(5):
        p("%s %s, v[32:35], v[32:35], 0" % (MF, rr("v", PA + 16 * k, 16)))
    def p_reads(st):
        c = ["ds_read_b128 %s, v%d offset:%d" % (rr("a", pfr(st, qq), 4), vC + qq, st * 8192) for qq in range(4)]
        w = ["ds_read_b128 %s, v%d offset:%d" % (rr("a", pfr(st, 4 + n), 4), vWf, st * 10240 + n * 1024) for n in range(5)]
        return [w[0]] + c + w[1:]
    p_mf = lambda st: ["%s %s, %s, %s, %s" % (MF16, rr("v", pacc(qq, n), 4), rr("a", pfr(st, 4 + n), 4), rr("a", pfr(st, qq), 4), rr("v", pacc(qq, n), 4)) for n in range(5) for qq in range(4)]
    G = Gaps(40)
    G.spread(p_reads(1), 0, 12)
    G.put(19, ["s_waitcnt vmcnt(13) lgkmcnt(0)", "s_barrier"])
    G.put(13, ["s_add_u32 s%d, s%d, 1" % (sRs, sRs), "s_and_b32 s%d, s%d, 3" % (sRs, sRs)])
    G.put(14, ["s_mov_b32 s%d, %d" % (sDl, SZ), "s_cselect_b32 s%d, s%d, 0x%x" % (sDl, sDl, u32(-3 * SZ))])
    G.spread(["v_add_u32 v%d, s%d, v%d" % (r, sDl, r) for r in (vWf, vC, vC + 1, vC + 2, vC + 3)], 15, 18)
    G.spread(p_reads(0), 20, 32)
    for k, x in enumerate(dC):
        G.put(max(0, 4 * k - 1) + (1 if k == 0 else 0), x)
    for k, x in zip((20, 21, 25, 29, 33, 36, 37), dW):
        G.put(k, x)
    G.spread(dAdv, 30, 35); G.put(38, dPos); G.put(39, ["s_sub_u32 s%d, s%d, 1" % (sNlo, sNlo), WL, "s_cbranch_scc0 M_p3"])
    o3 = [x if isinstance(x, I) else I(x) for x in G.emit(p_mf(0) + p_mf(1))]
    X3 = os.environ.get("X_P3", "")
    if "m" in X3: o3 = [x for x in o3 if x.kind not in ("mfma", "ds")]
    if "d" in X3: o3 = [x for x in o3 if x.kind != "dma"]
    if "s" in X3: o3 = [I(x.text.replace(" sc1", "")) if x.kind == "dma" else x for x in o3]
    tail.extend(["M_p3:"] + o3 + [ret])
    st_()
    p("s_waitcnt vmcnt(8) lgkmcnt(0)\ns_barrier")
    st_()
    p.add(p_reads(0))
    p(WL)
    def run(n):
        p("s_mov_b32 s%d, %d" % (sNlo, n - 1))
        p(call("M_p3"))
        if os.environ.get("FINE3") and n != 14:
            st_()
    xr = lambda qq: (PA + qq * 20, PA + qq * 20 + 4, PA + qq * 20 + 8)
    def xrecv(q):
        for qq in range(1, 4):
            xfer(q, "load", qq, sXO, vDw, vC, xr(qq))
    for _ in range(3 if os.environ.get("FINE3") else 1):
        run(1 if os.environ.get("FINE3") else 3)
    p.add(publish(7))
    run(5)
    p("s_lshr_b32 s%d, s%d, 2" % (sT, sIdx))
    p("s_mul_i32 s%d, s%d, 5" % (sT, sT))
    p("v_mul_u32_u24 v%d, 0x3334, v%d" % (t1, vLane))
    p("v_lshrrev_b32 v%d, 16, v%d" % (t1, t1))
    p("v_mul_u32_u24 v%d, 35, v%d" % (t1, t1))
    p("v_add3_u32 v%d, v%d, v%d, s%d" % (t0, t1, vLane, sT))
    p("s_andn2_b32 s%d, s2, 6" % sT)
    p("v_and_b32 v%d, 3, v%d" % (t1, vLane))
    p("v_lshl_add_u32 v%d, v%d, 1, s%d" % (t1, t1, sT))
    p("v_cmp_gt_u32 vcc, 25, v%d" % vLane)
    p("v_cndmask_b32 v%d, v%d, v%d, vcc" % (t0, t1, t0))
    p("v_and_b32 v%d, 31, v%d" % (t1, vLane))
    p("v_lshl_add_u32 v%d, v%d, 3, s%d" % (t1, t1, sXcd))
    p("v_cmp_gt_u32 vcc, 32, v%d" % vLane)
    p("v_cndmask_b32 v%d, v%d, v%d, vcc" % (vPoll, t1, t0))
    p("v_lshlrev_b32 v%d, 7, v%d" % (vPoll, vPoll))
    p("v_cndmask_b32 v%d, 7, 5, vcc" % (vPoll + 1))
    p.add(poll_load("B"))
    p("s_lshl_b32 s%d, s%d, 2" % (sTT, sXcd))
    p("s_and_b32 s%d, s%d, 3" % (sT, sIdx))
    p("s_add_u32 s%d, s%d, s%d" % (sTT, sTT, sT))
    p("s_mul_i32 s%d, s%d, 81920" % (sT, sTT))
    srd(p, sY, ptr(D_WS), off_s=sT, off_imm=WS_OB, nrec=81920)
    p("s_lshl_b32 s%d, s%d, 10" % (sOff, sWave))
    p("v_and_b32 v%d, 15, v%d" % (t0, vLane))
    p("v_lshlrev_b32 v%d, 3, v%d" % (t0, t0))
    p("v_sub_u32 v%d, v%d, v%d" % (vO, vL16, t0))
    run(2)
    p.add(poll_check("B"))
    for s in range(10, 16):
        if s == 13:
            p("s_lshr_b32 s%d, s%d, 2" % (sT, sIdx))
            p("s_mul_i32 s%d, s%d, 102400" % (sT, sT))
            srd(p, sPC, ptr(D_WS), off_s=sT, off_imm=WS_WOB, nrec=102400)
            p("s_mov_b64 s[%d:%d], s[%d:%d]\ns_mov_b32 s%d, s%d" % (sPW, sPW + 1, sPC, sPC + 1, sPW + 2, sPC + 2))
            p("s_mov_b32 s%d, 0\ns_mov_b32 s%d, %d\ns_mov_b32 s%d, %d\ns_movk_i32 s%d, 0x4000" % (sSt, sIc, SZ, sIw, SZ, sBw))
            p.add(dPos)
        for ks in range(20)[(s - 10) * 20 // 6:(s - 9) * 20 // 6]:
            if ks % 5 == 4:
                for u in range(2):
                    p("buffer_load_dwordx2 %s, v%d, s[%d:%d], s%d offen offset:%d %s" % (rr("a", aOB + 4 * ks + 2 * u, 2), vO, sY, sY + 3, sOff, u * 128, WT))
            else:
                p("buffer_load_dwordx4 %s, v%d, s[%d:%d], s%d offen %s" % (rr("a", aOB + 4 * ks, 4), vL16, sY, sY + 3, sOff, WT))
            p("s_addk_i32 s%d, 0x1000" % sOff)
        run(1)
    st_()
    xsetup(p, sXO, vDw, vC)
    for qq in range(1, 4):
        for k in range(10):
            p("v_cvt_pk_bf16_f32 v%d, v%d, v%d" % (PA + qq * 20 + k, PA + qq * 20 + 2 * k, PA + qq * 20 + 2 * k + 1))
        for k in range(10):
            p("v_min_u32 v%d, -2, v%d" % (PA + qq * 20 + k, PA + qq * 20 + k))
        xfer(p, "store", qq, sXO, vDw, vC, xr(qq))
    BA = 32
    p("v_add_u32 v%d, %d, v%d" % (vWf, 10 * 5120, vL16))
    p("s_waitcnt vmcnt(9)\ns_barrier")
    bfr = lambda k: (k % 15) * 4
    brd = lambda k: "ds_read_b128 %s, v%d offset:%d" % (rr("a", bfr(k), 4), vWf if k >= 50 else vL16, (k % 50) * 1024)
    for k in range(10):
        p(brd(k))
    for k in range(100):
        ks, n = divmod(k, 5)
        a = rr("v", BA + 4 * n, 4)
        if n == 0:
            p.add([I("need", xrd=[("a", bfr(k + 4) + e) for e in range(4)])])
        p("%s %s, %s, %s, %s" % (MF16, a, rr("a", bfr(k), 4), rr("a", aOB + 4 * ks, 4), a if ks else "0"))
        if k + 10 < 100:
            p(brd(k + 10))
        if k == int(os.environ.get("XK", "80")):
            xrecv(p)
    st_()
    srd(p, sOut, ptr(D_OUT), nrec=2048 * 2560)
    p("v_and_b32 v%d, 15, v%d" % (t0, vLane))
    p("v_mul_u32_u24 v%d, 2560, v%d" % (vWf, t0))
    p("v_lshrrev_b32 v%d, 4, v%d" % (t0, vLane))
    p("v_lshl_add_u32 v%d, v%d, 3, v%d" % (vWf, t0, vWf))
    p("s_lshl_b32 s%d, s%d, 2" % (sT, sTT))
    p("s_add_u32 s%d, s%d, s%d" % (sT, sT, sWave))
    p("s_mul_i32 s%d, s%d, %d" % (sT, sT, 16 * 2560))
    p("s_lshr_b32 s%d, s%d, 2" % (sT2, sIdx))
    p("s_mul_i32 s%d, s%d, 160" % (sT2, sT2))
    p("s_add_u32 s%d, s%d, s%d" % (sOff, sT, sT2))
    for n in range(5):
        b = BA + 4 * n
        p("v_cvt_pk_bf16_f32 v%d, v%d, v%d" % (b, b, b + 1))
        p("v_cvt_pk_bf16_f32 v%d, v%d, v%d" % (b + 1, b + 2, b + 3))
        p("buffer_store_dwordx2 %s, v%d, s[%d:%d], s%d offen offset:%d" % (rr("v", b, 2), vWf, sOut, sOut + 3, sOff, 1280 + n * 32))
    p("s_lshl_b32 s%d, s%d, 3" % (sT, sMb))
    p("s_lshr_b32 s%d, s%d, 1" % (sT2, sWave))
    p("s_lshl_b32 s%d, s%d, 2" % (sT2, sT2))
    p("s_add_u32 s%d, s%d, s%d" % (sT, sT, sT2))
    p("s_add_u32 s%d, s%d, s%d" % (sT, sT, sKq))
    p("s_mul_i32 s%d, s%d, %d" % (sT, sT, 16 * 2560))
    p("s_lshl_b32 s%d, s%d, 1" % (sT2, sCc))
    p("s_and_b32 s%d, s%d, 1" % (sOff, sWave))
    p("s_add_u32 s%d, s%d, s%d" % (sT2, sT2, sOff))
    p("s_mul_i32 s%d, s%d, 160" % (sT2, sT2))
    p("s_add_u32 s%d, s%d, s%d" % (sOff, sT, sT2))
    if os.environ.get("FINE3"): st_()
    p("s_mov_b32 s%d, 0x40000\nM_xchk:" % sSpin)
    xs = [PA + qq * 20 + k for qq in range(1, 4) for k in range(10)]
    p("v_max_u32 v%d, v%d, v%d" % (t0, xs[0], xs[1]))
    for k in range(2, 30, 2):
        p("v_max3_u32 v%d, v%d, v%d, v%d" % (t0, t0, xs[k], xs[k + 1]))
    p("v_cmp_eq_u32 vcc, -1, v%d\ns_cbranch_vccnz M_xagain\nM_xok:" % t0)
    p("s_mov_b32 s%d, 0xffff0000" % sT)
    tail.extend(["M_xagain:"] + L(xrecv) + ["s_waitcnt vmcnt(0)", "s_sub_u32 s%d, s%d, 1" % (sSpin, sSpin), "s_cbranch_scc0 M_xchk", "s_branch M_xok"])
    for qq in range(1, 4):
        for k in range(10):
            r = PA + qq * 20 + k
            u = 96 + 2 * (k & 3)
            p("v_lshlrev_b32 v%d, 16, v%d" % (u, r))
            p("v_and_b32 v%d, s%d, v%d" % (u + 1, sT, r))
            p(pk_add(PA + 2 * k, PA + 2 * k, u))
    for n in range(5):
        b = pacc(0, n)
        p("v_cvt_pk_bf16_f32 v%d, v%d, v%d" % (b, b, b + 1))
        p("v_cvt_pk_bf16_f32 v%d, v%d, v%d" % (b + 1, b + 2, b + 3))
        p("buffer_store_dwordx2 %s, v%d, s[%d:%d], s%d offen offset:%d" % (rr("v", b, 2), vWf, sOut, sOut + 3, sOff, n * 32))
    st_()
    st_.dump(vtmp=t0)
    p("M_exit:\ns_endpgm")
    p.add(tail)
    for par in range(2):
        p("M_slow%d:" % par)
        p("s_nop 15")
        for j in range(4):
            d, f, d2 = vU + 2, vU + 3, vU + 4
            p.add(rowmax(par, j, d, f))
            p("v_max_f32 v%d, 0, v%d" % (d, d))
            p("v_exp_f32 v%d, -v%d" % (f, d))
            if j >= 2:
                p("v_mul_f32 v%d, s%d, v%d" % (d2, sKeep, d))
            else:
                d2 = d
            for k in range(8):
                p("v_sub_f32 v%d, v%d, v%d" % (S(par, j) + k, S(par, j) + k, d))
                for b in (S(par ^ 1, j), CI(j)):
                    p("v_sub_f32 v%d, v%d, v%d" % (b + k, b + k, d2))
            p("v_sub_f32 v%d, v%d, v%d" % (vM + j, vM + j, d2))
            p("v_mul_f32 v%d, v%d, v%d" % (vL + j, vL + j, f))
            for k in range(0, 32, 8):
                for e in range(8):
                    p("v_accvgpr_read_b32 v%d, a%d" % (TMP + e, O(j, 0) + k + e))
                for e in range(8):
                    p("v_mul_f32 v%d, v%d, v%d" % (TMP + e, TMP + e, f))
                for e in range(8):
                    p("v_accvgpr_write_b32 a%d, v%d" % (O(j, 0) + k + e, TMP + e))
        p.add(sm_stream(par, 2) + sum_mf(par))
        p.add([x for x in sm_stream(par ^ 1, 0) if x.startswith("v_exp")][:NE])
        p("s_nop 3")
        p(ret)
    p("M_codeend:")
    if os.environ.get("NOST"):
        p.ins = [I("buffer_load_dword v%d, off, s[%d:%d], 0" % (vA + 3, sD, sD + 3)) if (i.mn == "buffer_store_dwordx4" and ("s[16:19]" in i.text or "s[24:27]" in i.text) and i.ops[0][0] == "v") else i for i in p.ins]
    p.finish()
    return p
```

```python
import re

TRANS = ("v_exp_f32", "v_log_f32", "v_rcp_f32", "v_rsq_f32", "v_sqrt_f32", "v_sin_f32", "v_cos_f32")
_REG = re.compile(r"^(-|abs\()?([sva])(?:(\d+)|\[(\d+):(\d+)\])\)?$")


def regs_of(tok):
    tok = tok.strip()
    if tok in ("vcc", "exec", "m0", "scc"):
        return [tok]
    if tok in ("vcc_lo", "vcc_hi"):
        return ["vcc"]
    if tok in ("exec_lo", "exec_hi"):
        return ["exec"]
    m = _REG.match(tok)
    if not m:
        return []
    f = m.group(2)
    if m.group(3) is not None:
        return [(f, int(m.group(3)))]
    return [(f, i) for i in range(int(m.group(4)), int(m.group(5)) + 1)]


def split_ops(s):
    out, cur, d = [], "", 0
    for ch in s:
        if ch in "[(":
            d += 1
        if ch in "])":
            d -= 1
        if ch == "," and d == 0:
            out.append(cur.strip())
            cur = ""
        else:
            cur += ch
    if cur.strip():
        out.append(cur.strip())
    return out


class I:
    __slots__ = ("text", "mn", "kind", "rd", "wr", "ops", "mods", "label", "target", "passes",
                 "srcc", "srcab", "data", "cnt", "auto", "note", "xrd")

    def __init__(self, text, note=None, xrd=()):
        self.text = text.strip()
        self.note = note
        self.label = None
        self.target = None
        self.passes = 0
        self.srcc = []
        self.srcab = []
        self.data = []
        self.cnt = None
        self.auto = False
        self.rd, self.wr = set(), set()
        self.mods = []
        self.ops = []
        if self.text.endswith(":"):
            self.kind = "label"
            self.label = self.text[:-1]
            self.mn = ""
            return
        if self.text == "need":
            self.kind = "need"
            self.mn = ""
            self.text = "; need"
            self.rd = set(xrd)
            return
        if self.text.startswith(".") or self.text.startswith(";"):
            self.kind = "dir"
            self.mn = ""
            return
        p = self.text.split(None, 1)
        self.mn = mn = p[0]
        rest = p[1] if len(p) > 1 else ""
        ops = split_ops(rest)
        if ops:
            w = ops[-1].split()
            ops[-1] = w[0]
            self.mods = w[1:]
        self.ops = ops
        R = [regs_of(o) for o in ops]
        flat = lambda xs: [r for x in xs for r in x]
        rd, wr = [], []
        if mn.startswith("v_mfma"):
            self.kind = "mfma"
            self.passes = 8 if "32x32x16" in mn else 4
            wr = R[0]
            rd = flat(R[1:])
            self.srcab = R[1] + R[2]
            self.srcc = R[3]
        elif mn.startswith("v_cmp"):
            self.kind = "valu"
            wr = R[0]
            rd = flat(R[1:])
        elif mn.startswith("v_permlane32_swap") or mn.startswith("v_permlane16_swap") or mn == "v_swap_b32":
            self.kind = "valu"
            wr = flat(R)
            rd = flat(R)
        elif mn in ("v_add_co_u32", "v_sub_co_u32", "v_addc_co_u32", "v_subb_co_u32"):
            self.kind = "valu"
            wr = R[0] + R[1]
            rd = flat(R[2:])
        elif mn.startswith("v_"):
            self.kind = "trans" if mn in TRANS else "valu"
            wr = R[0] if R else []
            rd = flat(R[1:])
            if mn.startswith("v_fmac") or mn.startswith("v_writelane") or mn.startswith("v_dot2c"):
                rd += R[0]
        elif mn.startswith("ds_read") or mn.startswith("ds_bpermute") or mn.startswith("ds_swizzle") or mn.startswith("ds_permute"):
            self.kind = "ds"
            self.cnt = "lgkm"
            wr = R[0]
            rd = flat(R[1:])
        elif mn.startswith("ds_"):
            self.kind = "ds"
            self.cnt = "lgkm"
            rd = flat(R)
        elif mn.startswith("buffer_load") or mn.startswith("global_load"):
            self.kind = "vmem"
            self.cnt = "vm"
            if "lds" in self.mods:
                rd = flat(R) + ["m0"]
                self.kind = "dma"
            else:
                wr = R[0]
                rd = flat(R[1:])
        elif mn.startswith("buffer_store"):
            self.kind = "vmem"
            self.cnt = "vm"
            rd = flat(R)
            self.data = R[0]
        elif mn.startswith("global_store"):
            self.kind = "vmem"
            self.cnt = "vm"
            rd = flat(R)
            self.data = R[1]
        elif mn.startswith("buffer_atomic"):
            self.kind = "vmem"
            self.cnt = "vm"
            rd = flat(R)
            if "sc0" in self.mods:
                wr = R[0]
        elif mn.startswith("buffer_wbl2") or mn.startswith("buffer_inv"):
            self.kind = "vmem"
            self.cnt = "vm"
        elif mn.startswith("s_load") or mn.startswith("s_buffer_load") or mn in ("s_memtime", "s_memrealtime"):
            self.kind = "smem"
            self.cnt = "smem"
            wr = R[0]
            rd = flat(R[1:])
        elif mn in ("s_branch",) or mn.startswith("s_cbranch"):
            self.kind = "branch"
            self.target = ops[0]
            if "scc" in mn:
                rd = ["scc"]
            elif "vcc" in mn:
                rd = ["vcc"]
            elif "exec" in mn:
                rd = ["exec"]
        elif mn == "s_call_b64":
            self.kind = "call"
            self.target = ops[1]
            wr = R[0]
        elif mn == "s_setpc_b64":
            self.kind = "ret"
            rd = R[0]
        elif mn == "s_endpgm":
            self.kind = "end"
        elif mn == "s_waitcnt":
            self.kind = "wait"
        elif mn == "s_nop":
            self.kind = "nop"
        elif mn in ("s_barrier", "s_sleep", "s_setprio"):
            self.kind = "salu"
        elif mn.startswith("s_cmp") or mn.startswith("s_bitcmp"):
            self.kind = "salu"
            rd = flat(R)
            wr = ["scc"]
        elif mn.startswith("s_"):
            self.kind = "salu"
            wr = list(R[0]) if R else []
            rd = flat(R[1:])
            if "saveexec" in mn:
                wr += ["exec"]
                rd += ["exec"]
            if mn.startswith("s_cselect") or mn.startswith("s_addc") or mn.startswith("s_subb"):
                rd += ["scc"]
            if mn in ("s_addk_i32", "s_mulk_i32") or mn.startswith("s_bitset"):
                rd += R[0]
            if not (mn.startswith("s_mov") or mn.startswith("s_cselect") or mn.startswith("s_mul") or mn.startswith("s_getreg") or mn.startswith("s_getpc")):
                wr += ["scc"]
        else:
            raise ValueError("unknown instruction: " + text)
        self.rd, self.wr = set(rd) | set(xrd), set(wr)

    def states(self):
        if self.kind in ("label", "dir", "need"):
            return 0
        if self.kind == "nop":
            return int(self.ops[0], 0) + 1
        return 1


def jump(text, targets):
    i = I(text)
    i.kind = "jump"
    i.target = list(targets)
    return i


def is_valu(i):
    return i.kind in ("valu", "trans")


def vec(rs):
    return {r for r in rs if isinstance(r, tuple) and r[0] in "va"}


def sca(rs):
    return {r for r in rs if r == "vcc" or (isinstance(r, tuple) and r[0] == "s")}


def need_states(p, c):
    n = 0
    if p.mn.startswith("v_pk_") and c.kind == "mfma":
        n = 5
    if is_valu(p):
        pw = vec(p.wr)
        if c.kind == "mfma" and pw & c.rd:
            n = max(n, 2)
        if p.kind == "trans" and c.kind in ("valu", "mfma", "vmem", "ds", "dma") and pw & c.rd:
            n = max(n, 1)
        if (c.mn.startswith("v_readfirstlane") or c.mn.startswith("v_readlane")) and pw & c.rd:
            n = max(n, 1)
        if c.mn.startswith("v_permlane") and pw & c.rd:
            n = max(n, 2)
        if is_valu(c) and any(m.startswith("row_") or m.startswith("quad_perm") or m.startswith("wave_") for m in c.mods) and pw & c.rd:
            n = max(n, 2)
        ps = sca(p.wr)
        if ps & c.rd:
            if is_valu(c):
                n = max(n, 4 if (c.mn.startswith("v_readlane") or c.mn.startswith("v_writelane")) else 2)
            if c.kind in ("vmem", "dma"):
                n = max(n, 5)
            if c.kind in ("salu", "branch", "smem"):
                n = max(n, 1)
        if "exec" in p.wr:
            n = max(n, 5)
    if p.kind == "mfma":
        big = p.passes == 8
        D = p.wr
        if c.kind == "mfma":
            if D & set(c.srcab):
                n = max(n, 12 if big else 8)
            cc = set(c.srcc)
            if D & cc and not (cc == D and c.passes == p.passes):
                n = max(n, 10 if big else 6)
            if D & c.wr and not (c.wr == D and cc == D):
                n = max(n, 10 if big else 6) if c.wr != D else n
        elif is_valu(c) or c.kind in ("vmem", "ds", "dma"):
            if D & (c.rd | c.wr):
                n = max(n, 12 if big else 8)
        if is_valu(c) and set(p.srcc) & c.wr:
            n = max(n, 7 if big else 3)
    if p.kind == "salu" and "m0" in p.wr and c.kind == "dma":
        n = max(n, 1)
    if p.kind == "vmem" and len(p.data) >= 3 and set(p.data) & c.wr:
        n = max(n, 2 if is_valu(c) else 1)
    return n


class Prog:
    def __init__(self):
        self.ins = []
        self._lab = 0

    def __call__(self, text, **kw):
        for line in text.split("\n"):
            line = line.split(";")[0].strip() if not line.strip().startswith(";") else line.strip()
            if line:
                self.ins.append(I(line, **kw))

    def add(self, items):
        for x in items:
            if isinstance(x, I):
                self.ins.append(x)
            elif isinstance(x, (list, tuple)):
                self.add(x)
            else:
                self(x)

    def newlabel(self, base="L"):
        self._lab += 1
        return "%s_%d" % (base, self._lab)

    def _cfg(self):
        ins = self.ins
        lab = {i.label: k for k, i in enumerate(ins) if i.kind == "label"}
        succ = [[] for _ in ins]
        calls = {}
        for k, i in enumerate(ins):
            if i.kind == "call":
                calls.setdefault(i.target, []).append(k + 1)
        cur = []
        for k, i in enumerate(ins):
            if i.kind == "label" and i.label in calls:
                pv = ins[k - 1] if ins[k - 1].kind != "dir" else ins[k - 2]
                if pv.kind in ("ret", "end", "jump") or pv.mn == "s_branch":
                    cur = []
                cur = cur + [i.label]
            if i.kind == "end":
                continue
            if i.kind == "jump":
                succ[k] = [lab[t] for t in i.target]
                continue
            if i.kind == "ret":
                succ[k] = [t for c in cur for t in calls[c]]
                continue
            if i.kind == "call":
                succ[k] = [lab[i.target]]
                continue
            if i.kind == "branch":
                succ[k].append(lab[i.target])
                if i.mn == "s_branch":
                    continue
            if k + 1 < len(ins):
                succ[k].append(k + 1)
        pred = [[] for _ in ins]
        for k, s in enumerate(succ):
            for t in s:
                pred[t].append(k)
        return succ, pred

    @staticmethod
    def _parse_wait(i):
        vm = re.search(r"vmcnt\((\d+)\)", i.text)
        lg = re.search(r"lgkmcnt\((\d+)\)", i.text)
        return (int(vm.group(1)) if vm else None, int(lg.group(1)) if lg else None)

    def insert_waits(self):
        while True:
            succ, pred = self._cfg()
            ins = self.ins
            n = len(ins)
            IN = {(0, None): {}}
            work = [(0, None)]
            needc = {}

            def want(i, st):
                vm = lg = None
                for r in (i.rd | i.wr):
                    e = st.get(r)
                    if e is None:
                        continue
                    if e[0] == "vm":
                        if i.cnt == "vm" and r in i.wr and r not in i.rd:
                            continue
                        vm = e[1] if vm is None else min(vm, e[1])
                    elif e[0] == "lgkm":
                        if i.cnt == "lgkm" and r in i.wr and r not in i.rd:
                            continue
                        lg = e[1] if lg is None else min(lg, e[1])
                    else:
                        lg = 0
                if lg is not None and any(e[0] == "smem" for e in st.values()):
                    lg = 0
                if vm is not None:
                    vm = min(vm, 63)
                if lg is not None:
                    lg = min(lg, 15)
                return vm, lg

            def apply_wait(st, vm, lg):
                out = {}
                for r, e in st.items():
                    if e[0] == "vm" and vm is not None and e[1] >= vm:
                        continue
                    if e[0] == "lgkm" and lg is not None and e[1] >= lg:
                        continue
                    if e[0] == "smem" and lg == 0:
                        continue
                    out[r] = e
                return out

            while work:
                key = work.pop()
                k, ctx = key
                i = ins[k]
                st = IN[key]
                if i.kind == "wait":
                    st = apply_wait(st, *self._parse_wait(i))
                elif i.kind not in ("label", "dir"):
                    vm, lg = want(i, st)
                    if vm is not None or lg is not None:
                        needc[key] = (vm, lg)
                        st = apply_wait(st, vm, lg)
                    elif key in needc:
                        del needc[key]
                    if i.cnt:
                        cls = ("vm",) if i.cnt == "vm" else ("lgkm",)
                        st = {r: ((e[0], min(e[1] + 1, 99)) if e[0] in cls else e) for r, e in st.items()}
                        for r in i.wr:
                            st[r] = (i.cnt, 0)
                if i.kind == "call":
                    assert ctx is None, "nested call"
                    nxt = [(succ[k][0], k + 1)]
                elif i.kind == "ret":
                    nxt = [(ctx, None)]
                else:
                    nxt = [(t, ctx) for t in succ[k]]
                for t in nxt:
                    old = IN.get(t)
                    if old is None:
                        IN[t] = dict(st)
                        work.append(t)
                    else:
                        ch = False
                        for r, e in st.items():
                            o = old.get(r)
                            if o is None or (o[0] == e[0] and e[1] < o[1]):
                                old[r] = e
                                ch = True
                            elif o[0] != e[0]:
                                raise ValueError("mixed counters on %s at %s" % (r, ins[t[0]].text))
                        if ch:
                            work.append(t)
            need = {}
            mn = lambda x, y: y if x is None else (x if y is None else min(x, y))
            for (k, ctx), (vm, lg) in needc.items():
                o = need.get(k, (None, None))
                need[k] = (mn(o[0], vm), mn(o[1], lg))
            if not need:
                return
            out = []
            for k, i in enumerate(ins):
                if k in need:
                    vm, lg = need[k]
                    t = "s_waitcnt" + (" vmcnt(%d)" % vm if vm is not None else "") + (" lgkmcnt(%d)" % lg if lg is not None else "")
                    w = I(t)
                    w.auto = True
                    out.append(w)
                out.append(i)
            self.ins = out

    def insert_nops(self, verbose=False):
        total = 0
        while True:
            succ, pred = self._cfg()
            ins = self.ins
            add = {}
            for k, c in enumerate(ins):
                if c.kind in ("label", "dir", "nop", "wait", "end", "need"):
                    continue
                worst = 0
                stack = [(p, 0) for p in pred[k]]
                seen = {}
                while stack:
                    p, d = stack.pop()
                    if d >= 12 or seen.get(p, 99) <= d:
                        continue
                    seen[p] = d
                    pi = ins[p]
                    if pi.kind not in ("label", "dir", "nop", "wait", "need"):
                        worst = max(worst, need_states(pi, c) - d)
                    d2 = d + pi.states() + add.get(p, 0)
                    for q in pred[p]:
                        stack.append((q, d2))
                if worst > 0:
                    add[k] = worst
            if not add:
                return total
            out = []
            for k, i in enumerate(ins):
                if k in add:
                    w = I("s_nop %d" % (add[k] - 1))
                    w.auto = True
                    out.append(w)
                    total += 1
                    if verbose:
                        print("nop %d before %s" % (add[k], i.text))
                out.append(i)
            self.ins = out

    def finish(self, verbose=False):
        self.insert_waits()
        self.insert_nops(verbose)

    def text(self):
        out = []
        for i in self.ins:
            if i.kind == "need":
                continue
            if i.kind == "label" or i.kind == "dir":
                out.append(i.text)
            else:
                out.append("  " + i.text + (" ; auto" if i.auto else "") + (" ; " + i.note if i.note else ""))
        return "\n".join(out) + "\n"

    def maxreg(self, f):
        m = -1
        for i in self.ins:
            for r in (i.rd | i.wr):
                if isinstance(r, tuple) and r[0] == f:
                    m = max(m, r[1])
        return m


def rr(f, lo, n=1):
    return "%s%d" % (f, lo) if n == 1 else "%s[%d:%d]" % (f, lo, lo + n - 1)


def interleave(mfmas, slots):
    out = list(slots.get(-1, []))
    for k, m in enumerate(mfmas):
        out.append(m)
        out += slots.get(k, [])
    return out


def spread(items, lo, hi, slots):
    n = len(items)
    w = hi - lo + 1
    for k, it in enumerate(items):
        s = lo + (k * w) // n
        slots.setdefault(s, [])
        if isinstance(it, (list, tuple)):
            slots[s] += list(it)
        else:
            slots[s].append(it)


def kernel_text(name, prog, sgprs=102, force_vgpr=None):
    nv = prog.maxreg("v") + 1
    na = prog.maxreg("a") + 1
    acc = max(4, (nv + 3) // 4 * 4)
    tot = acc + na if na else nv
    if force_vgpr:
        tot = max(tot, force_vgpr)
    body = ".text\n.globl %s\n.p2align 8\n.type %s,@function\n%s:\n" % (name, name, name) + prog.text()
    desc = """.section .rodata,"a"
.p2align 6
.amdhsa_kernel %s
  .amdhsa_next_free_vgpr %d
  .amdhsa_next_free_sgpr %d
  .amdhsa_accum_offset %d
  .amdhsa_group_segment_fixed_size 0
  .amdhsa_kernarg_size 104
  .amdhsa_user_sgpr_count 2
  .amdhsa_user_sgpr_kernarg_segment_ptr 1
  .amdhsa_system_sgpr_workgroup_id_x 1
.end_amdhsa_kernel
""" % (name, tot, sgprs, acc)
    return body, desc


import os
STAMPS = bool(int(os.environ.get("STAMPS", "0")))
WS_STAMP = 200 << 20
class Stamper:
    def __init__(self, p, vreg, sreg=100, kid=0):
        self.p, self.v, self.s, self.n, self.kid = p, vreg, sreg, 0, kid
    def ins(self, n=None):
        if not STAMPS:
            return []
        if n is None:
            n = self.n
            self.n += 1
        if n >= 31:
            self.n = 31
            return []
        return ["s_memtime s[%d:%d]" % (self.s, self.s + 1), "s_memrealtime s[%d:%d]" % (self.s - 2, self.s - 1), "s_waitcnt lgkmcnt(0)",
                "v_writelane_b32 v%d, s%d, %d" % (self.v, self.s, n), "v_writelane_b32 v%d, s%d, %d" % (self.v, self.s - 2, 32 + n)]
    def __call__(self, n=None):
        self.p.add(self.ins(n))
    def dump(self, vtmp=1):
        if not STAMPS:
            return
        p = self.p
        if os.environ.get("DBGOUT"):
            sel = [0, 2, 3, 4, 5, 6, 7, 8, 10, 11, 12, 14, 15, 16, 17]
            p("s_cmp_lg_u32 s2, %s\ns_cbranch_scc1 L_nodbg" % os.environ["DBGOUT"])
            p("s_load_dwordx2 s[96:97], s[0:1], 88\ns_waitcnt lgkmcnt(0)\ns_mov_b32 s98, 256\ns_mov_b32 s99, 0x20000")
            p("v_readlane_b32 s94, v%d, 32" % self.v)
            for k, n in enumerate(sel):
                p("v_readlane_b32 s95, v%d, %d\ns_nop 3\ns_sub_u32 s95, s95, s94\nv_mov_b32 v%d, s95" % (self.v, 32 + n, vtmp))
                p("buffer_store_dword v%d, off, s[96:99], 0 offset:%d" % (vtmp, 4 + 4 * k))
            p("L_nodbg:")
            return
        p("s_memrealtime s[%d:%d]\ns_waitcnt lgkmcnt(0)\nv_writelane_b32 v%d, s%d, %d" % (self.s, self.s + 1, self.v, self.s, self.n))
        p("s_load_dwordx2 s[96:97], s[0:1], 96\ns_waitcnt lgkmcnt(0) vmcnt(0)")
        p("s_add_u32 s96, s96, 0x%x\ns_addc_u32 s97, s97, 0\ns_mov_b32 s98, 0x100000\ns_mov_b32 s99, 0x20000" % (WS_STAMP + (self.kid << 20)))
        p("v_lshlrev_b32 v%d, 2, v0\ns_lshl_b32 s95, s2, 10" % vtmp)
        p("buffer_store_dword v%d, v%d, s[96:99], s95 offen" % (self.v, vtmp))


def cost(t):
    i = t if isinstance(t, I) else I(t)
    if i.kind in ("label", "dir"):
        return 0
    if i.kind == "trans":
        return 8
    if i.kind == "branch":
        return 8
    if i.mn == "s_barrier":
        return 16
    return 4

def isv(t):
    i = t if isinstance(t, I) else I(t)
    return i.kind in ("valu", "trans")

class Gaps:
    def __init__(self, n, budget=24):
        self.n, self.budget = n, budget
        self.nv = [[] for _ in range(n)]
        self.va = [[] for _ in range(n)]
        self.post = [[] for _ in range(n)]
    def load(self, g):
        c = sum(cost(t) for t in self.nv[g])
        c = max(0, c - 4)
        c += sum(cost(t) for t in self.va[g])
        if self.post[g]:
            c += sum(cost(t) for t in self.post[g]) + (8 if self.va[g] else 0)
        return c
    def put(self, g, items, post=False):
        if not isinstance(items, (list, tuple)):
            items = [items]
        for t in items:
            if post:
                self.post[g].append(t)
            elif isv(t):
                self.va[g].append(t)
            else:
                self.nv[g].append(t)
    def spread(self, items, lo, hi):
        n, w = len(items), hi - lo + 1
        for k, it in enumerate(items):
            self.put(lo + (k * w) // n, it)
    def lightest(self, items, lo, hi):
        g = min(range(lo, hi + 1), key=lambda x: (len(self.nv[x]), x))
        self.put(g, items)
        return g
    def stream(self, items, lo, hi):
        for b in range(4, 200, 4):
            g, plan, ld = lo, [], {x: self.load(x) for x in range(lo, hi + 1)}
            ok = True
            for t in items:
                c = cost(t)
                while g <= hi and ld[g] + c > b:
                    g += 1
                if g > hi:
                    ok = False
                    break
                ld[g] += c
                plan.append(g)
            if ok:
                for g, t in zip(plan, items):
                    self.va[g].append(t)
                return plan[-1] if plan else lo
        raise ValueError("stream does not fit")
    def gap(self, g):
        return self.nv[g] + self.va[g] + self.post[g]
    def emit(self, mfmas, lo=0, hi=None):
        out = []
        for k in range(lo, self.n if hi is None else hi):
            out.append(mfmas[k])
            out += self.gap(k)
        return out
    def report(self):
        return [self.load(g) for g in range(self.n)]


class Gaps16(Gaps):
    def __init__(self, n):
        Gaps.__init__(self, n, 8)
    def load(self, g):
        c, ns = 0, 0
        for t in self.nv[g] + self.post[g]:
            i = t if isinstance(t, I) else I(t)
            if i.kind in ("label", "dir"):
                continue
            if i.kind == "ds":
                c += 4
            elif i.kind in ("dma", "vmem"):
                c += 8
            elif i.kind == "branch":
                c += 10
            elif i.mn == "s_barrier":
                c += 8
            else:
                ns += 1
        c += 4 * max(0, ns - 1)
        return c + sum(cost(t) for t in self.va[g])
    def stream(self, items, lo, hi):
        n, cs = len(items), [cost(t) for t in items]
        base = [self.load(g) for g in range(lo, hi + 1)]
        INF = float("inf")
        m = hi - lo + 1
        best = [[INF] * (n + 1) for _ in range(m + 1)]
        prev = [[0] * (n + 1) for _ in range(m + 1)]
        best[0][0] = 0
        for g in range(m):
            for a in range(n + 1):
                if best[g][a] == INF:
                    continue
                ld = base[g]
                for b in range(a, n + 1):
                    if b > a:
                        ld += cs[b - 1]
                    ov = max(0, ld - self.budget)
                    v = best[g][a] + ov + 0.001 * ov * ov
                    if v < best[g + 1][b]:
                        best[g + 1][b] = v
                        prev[g + 1][b] = a
                    if ov > 64:
                        break
        b = n
        for g in range(m, 0, -1):
            a = prev[g][b]
            self.va[lo + g - 1] += items[a:b]
            b = a


def side_stream(G, items, lo, hi):
    def c1(t):
        i = t if isinstance(t, I) else I(t)
        return {"label": 0, "dir": 0, "need": 0, "trans": 8, "salu": 1.5, "wait": 1.5, "mfma": 4, "branch": 10, "dma": 8, "vmem": 8}.get(i.kind, 4)
    cst = lambda x: sum(c1(t) for t in x) if isinstance(x, list) else c1(x)
    for b in range(8, 400):
        g, ld, plan, ok = lo, {x: G.load(x) for x in range(lo, hi + 1)}, [], True
        for x in items:
            if isinstance(x, tuple):
                g = max(g, x[1]) if x[0] == "at" else g + x[1]
                continue
            c = cst(x)
            while g <= hi and ld[g] + min(c, b - 4) > b:
                g += 1
            if g > hi:
                ok = False
                break
            ld[g] += c
            plan.append((g, x))
        if ok:
            for g, x in plan:
                G.put(g, x, post=True)
            return b
    raise ValueError("side stream does not fit")
```

```python
from asmlib import *
from layout import *
from k_p1 import srd, x_rd_addr, w_rd_addr, MF
import os, struct

def f2u(x):
    return struct.unpack("<I", struct.pack("<f", x))[0]

NEG = 0xF149F2CA
THRESH = int(os.environ.get("THRESH", "0x5F800000"), 0)
BIAS = float(os.environ.get("BIAS", "40"))
QSCALE = f2u((128 ** -0.5) * 1.4426950408889634)
LOG2E = f2u(1.4426950408889634)
WT = os.environ.get("WT", "sc1")
PREFETCH = int(os.environ.get("PREFETCH", "3"))
NTW = os.environ.get("NTW", "nt")
WE = int(os.environ.get("WE", "10"))
CODEPF = int(os.environ.get("CODEPF", "13"))
WBL2 = int(os.environ.get("WBL2", "0"))
VERB = int(os.environ.get("VERB", "0"))
U = 16384
M16 = "v_mfma_f32_16x16x32_bf16"
u32 = lambda x: x & 0xffffffff

def L(f, *a, **k):
    q = Prog()
    f(q, *a, **k)
    return q.ins

def build_main():
    p = Prog()
    sX, sW, sW2, sO, sD, sBO = 4, 8, 12, 16, 20, 24
    sBF, sPhi, sY, sC, sKV = sW2, sO, sX, sW, sBO
    sH, sI, sWave, sW4, sT, sT2, sOff, sXcd, sIdx, sTB, sCB, sHi, sLo = range(28, 41)
    sM, sS, sKo, sRet, sTT, sL2, sSpin, sBo = 41, 44, 47, 48, 50, 51, 52, 53
    sRd, sGv, sG, sIt, sNb, sTriA, sTriB, sThr, sCnt, sCb = range(37, 47)
    sMask, sNext, sKeep, sW2k, sNlo, sCont = 54, 92, 93, 94, 95, 82
    sDa, sDb, sDc = 86, 87, 83
    P = 56
    ptr = lambda off: P + off // 4
    vLane = 1
    vX, vW, vXr, vWr = 2, 6, 10, 14
    vL16, t0, t1, t2, vDum, vStamp, vA = 22, 23, 24, 25, 26, 27, 28
    vGo = vA + 1
    vDma, vLim, vNeg, vKV, vB, vL, vOne, vM, vPoll, vU = 2, 3, 4, 5, 6, 8, 12, 16, 20, 232
    vMp = vA + 2
    RA, RB, RC, RD = 32, 96, 160, 224
    TMP, AW = 224, 240
    S = lambda par, j: 32 + par * 32 + j * 8
    CI = lambda j: 96 + j * 8
    PP = lambda par, j: 128 + par * 16 + j * 4
    Q = lambda j, ds: 160 + j * 16 + ds * 4
    O = lambda j, d: j * 32 + d * 4
    FB = lambda j: 128 + j * 4
    aXF, aVF, aRAW, aPA, aPK = 128, 144, 96, 192, 192
    tail = []
    ret = "s_setpc_b64 s[%d:%d]" % (sRet, sRet + 1)
    call = lambda lab: "s_call_b64 s[%d:%d], %s" % (sRet, sRet + 1, lab)

    def x_voffs(pitch, wsh=5):
        return ["v_lshrrev_b32 v%d, 3, v%d" % (t0, vLane),
                "s_lshl_b32 s%d, s%d, %d" % (sT, sWave, wsh),
                "v_add_u32 v%d, s%d, v%d" % (t0, sT, t0),
                "v_mul_u32_u24 v%d, %d, v%d" % (t0, pitch, t0),
                "v_lshrrev_b32 v%d, 4, v%d" % (t1, vLane),
                "v_and_b32 v%d, 7, v%d" % (t2, vLane),
                "v_xor_b32 v%d, v%d, v%d" % (t2, t2, t1),
                "v_lshl_add_u32 v%d, v%d, 4, v%d" % (vX, t2, t0),
                "v_xor_b32 v%d, 4, v%d" % (t2, t2),
                "v_lshl_add_u32 v%d, v%d, 4, v%d" % (vX + 1, t2, t0),
                "v_add_u32 v%d, %d, v%d" % (vX + 1, 8 * pitch - 1024, vX + 1),
                "v_add_u32 v%d, %d, v%d" % (vX + 2, 2 * (8 * pitch - 1024), vX),
                "v_add_u32 v%d, %d, v%d" % (vX + 3, 2 * (8 * pitch - 1024), vX + 1)]
    def w_voffs(pitch, m16):
        r = ["v_lshrrev_b32 v%d, 4, v%d" % (t0, vLane),
             "v_lshlrev_b32 v%d, 2, v%d" % (t1, t0),
             "s_lshl_b32 s%d, s%d, 4" % (sT, sWave),
             "v_add_u32 v%d, s%d, v%d" % (t0, sT, t0),
             "v_mul_u32_u24 v%d, %d, v%d" % (t0, pitch, t0),
             "v_and_b32 v%d, 15, v%d" % (t2, vLane),
             "v_xor_b32 v%d, v%d, v%d" % (t2, t2, t1),
             "v_lshl_add_u32 v%d, v%d, 4, v%d" % (vW, t2, t0)] + \
            ["v_add_u32 v%d, %d, v%d" % (vW + k, k * (4 * pitch - 1024), vW) for k in range(1, 4)]
        if m16:
            r += ["v_xor_b32 v%d, 32, v%d" % (vW + k, vW + k) for k in (2, 3)]
        return r
    def x_rd16(dst):
        return ["v_and_b32 v%d, 15, v%d" % (t0, vLane), "v_bfe_u32 v%d, v%d, 1, 3" % (t1, vLane), "v_lshrrev_b32 v%d, 4, v%d" % (dst, vLane),
                "v_xor_b32 v%d, v%d, v%d" % (dst, dst, t1), "v_lshlrev_b32 v%d, 4, v%d" % (dst, dst), "v_lshl_add_u32 v%d, v%d, 7, v%d" % (dst, t0, dst)]
    def w_rd16(dst):
        return ["v_bfe_u32 v%d, v%d, 2, 2" % (t0, vLane), "v_lshrrev_b32 v%d, 4, v%d" % (t1, vLane),
                "v_lshlrev_b32 v%d, 11, v%d" % (dst, t1), "v_lshl_add_u32 v%d, v%d, 8, v%d" % (dst, t0, dst), "v_lshl_add_u32 v%d, v%d, 6, v%d" % (dst, t0, dst),
                "v_and_b32 v%d, 1, v%d" % (t1, t1), "v_lshl_add_u32 v%d, v%d, 5, v%d" % (dst, t1, dst),
                "v_and_b32 v%d, 3, v%d" % (t0, vLane), "v_lshl_add_u32 v%d, v%d, 3, v%d" % (dst, t0, dst)]
    def dma(i, srdn, fl=""):
        v = vX if srdn == sX else vW
        return [["s_mov_b32 m0, s%d" % (sM + i)]] + \
               ["buffer_load_dwordx4 v%d, s[%d:%d], s%d offen offset:%d %s lds" % (v + q, srdn, srdn + 3, sS + i, q * 1024, fl) for q in range(4)]
    def put_dma(G, i, srdn, lo, hi, fl=""):
        d = dma(i, srdn, fl)
        G.put(lo, d[0])
        G.spread(d[1:], lo + 1, hi)
    def w_srd(q, d, which, col_s, total):
        q("s_lshl_b32 s%d, s%d, 8" % (sT, col_s))
        srd(q, d, ptr(which), off_s=sT)
        q("s_sub_u32 s%d, %d, s%d" % (d + 2, total, sT))
    def sw_XB(q):
        q("s_mul_i32 s%d, s%d, %d" % (sT, sTB, 128 * 1280))
        srd(q, sX, ptr(B_X), off_s=sT)
        q("s_cmp_lt_u32 s2, 240\ns_cselect_b32 s%d, %d, 0" % (sX + 2, 128 * 1280))
        q.add(x_voffs(1280))
    def sw_WB(q):
        w_srd(q, sW, B_WQKV, sCB, 640 * 3840)
        q("s_cmp_lt_u32 s2, 240\ns_cselect_b32 s%d, s%d, 0" % (sW + 2, sW + 2))
        q("s_mov_b64 s[%d:%d], s[%d:%d]\ns_mov_b32 s%d, s%d" % (sW2, sW2 + 1, sW, sW + 1, sW2 + 2, sW + 2))
        q.add(w_voffs(3840, 0))
    def sw_XQ(q):
        srd(q, sX, ptr(A_X), nrec=2048 * 1280)
    def sw_WQ(q):
        w_srd(q, sW, A_WQ, sH, 640 * 8192)
        q.add(w_voffs(8192, 1))

    class Plan:
        def __init__(s):
            s.vm, s.unit, s.free, s.when, s.now = [], {}, [], {}, 0
            s.pend = {"X": [], "W": []}
            s.job = {"X": "KV", "W": "KV"}
            for st in range(8):
                for g in range(2):
                    s.pend["X"].append((("KX", st, g), "KV", st, str(g * 256 * 1024 + st * 128), ((2 * st) % 5) * 2 + g))
                    s.pend["W"].append((("KW", st, g), "KV", st, str(st * 64 * 8192), ((2 * st + 1) % 5) * 2 + g))
            for b in range(10):
                s.pend["X"].append((("BX", b), "B", 8 + b, str(b * 128), None))
                s.pend["W"].append((("BW", b), "B", 8 + b, str(b * 64 * 3840), None))
            for st in range(10):
                s.pend["X"].append((("QX", st, 0), "Q", 18 + st, (sHi, st * 128), None))
                s.pend["X"].append((("QX", st, 1), "Q", 18 + st, (sLo, st * 128), None))
                s.pend["W"].append((("QW", st), "Q", 18 + st, str(st * 64 * 8192), None))
            s.free = list(range(10))
        def copy(s):
            import copy
            return copy.deepcopy(s)
        def take(s, ty, i):
            oth = "W" if ty == "X" else "X"
            pre = []
            c = s.pend[ty][0] if s.pend[ty] else None
            if c is not None:
                if c[4] is not None:
                    ok = c[4] in s.free
                else:
                    resv = {g[4] for t in "XW" for g in s.pend[t] if g[4] is not None}
                    av = [x for x in s.free if x not in resv]
                    ok = len(av) - 1 >= sum(1 for g in s.pend[oth] if g[2] < c[2] and g[4] is None)
                if not ok:
                    c = None
            if c is None:
                return ["s_mov_b32 s%d, 0x30000" % (sM + i), "s_brev_b32 s%d, 1" % (sS + i)], None
            s.pend[ty].pop(0)
            un = c[4] if c[4] is not None else av[0]
            s.free.remove(un)
            s.unit[c[0]] = un
            s.when[c[0]] = s.now
            if c[1] != s.job[ty]:
                s.job[ty] = c[1]
                pre += L({"XB": sw_XB, "WB": sw_WB, "XQ": sw_XQ, "WQ": sw_WQ}[ty + c[1]])
            pre.append("s_add_u32 s%d, s%d, 0x%x" % (sM + i, sW4, un * U))
            if isinstance(c[3], tuple):
                pre.append("s_add_u32 s%d, s%d, %d" % (sS + i, c[3][0], c[3][1]))
            else:
                pre.append("s_mov_b32 s%d, %s" % (sS + i, c[3]))
            return pre, c[0]
        def issue(s, tag, n=4):
            s.vm += [tag] * n
        def hook(s, ins, tag="h"):
            for t in ins:
                i = t if isinstance(t, I) else I(t)
                if i.cnt == "vm":
                    s.vm.append(tag)
        def barrier(s, need, free, dt):
            last = max(max(k for k, t in enumerate(s.vm) if t == n) for n in need) if need else -1
            N = len(s.vm) - 1 - last
            if VERB:
                print("barrier need", need, "N", N, "flight", [s.now - s.when[n] for n in need if n in s.when])
            for f in free:
                s.free.append(s.unit[f])
            s.now += dt
            s.done = last
            return ["s_waitcnt %slgkmcnt(0)" % ("vmcnt(%d) " % min(N, 63) if need else ""), "s_barrier"]
        def complete(s, tag):
            return max(k for k, t in enumerate(s.vm) if t == tag) <= s.done
    pl = Plan()

    def pf_lin(which, total, k):
        share = total // 32
        return ["s_mul_i32 s%d, s%d, %d" % (sT, sIdx, share), "s_lshl_b32 s%d, s%d, 13" % (sT2, sWave), "s_add_u32 s%d, s%d, s%d" % (sT, sT, sT2),
                "s_add_u32 s%d, s%d, %d" % (sT, sT, k * 32768),
                "v_lshl_add_u32 v%d, v%d, 7, s%d" % (t0, vLane, sT), "v_min_u32 v%d, %d, v%d" % (t0, total - 128, t0),
                "global_load_dword v%d, v%d, s[%d:%d]" % (vDum, t0, ptr(which), ptr(which) + 1)]
    def pf_w(which, rows):
        share = rows // 32
        return ["s_mul_i32 s%d, s%d, %d" % (sT, sIdx, share), "s_lshl_b32 s%d, s%d, 3" % (sT2, sWave), "s_add_u32 s%d, s%d, s%d" % (sT, sT, sT2),
                "v_lshrrev_b32 v%d, 3, v%d" % (t0, vLane), "v_add_u32 v%d, s%d, v%d" % (t0, sT, t0), "v_min_u32 v%d, %d, v%d" % (t0, rows - 1, t0),
                "v_lshlrev_b32 v%d, 13, v%d" % (t0, t0), "v_and_b32 v%d, 7, v%d" % (t1, vLane), "v_lshl_add_u32 v%d, v%d, 7, v%d" % (t0, t1, t0),
                "s_lshl_b32 s%d, s%d, 10" % (sT, sXcd), "v_add_u32 v%d, s%d, v%d" % (t0, sT, t0),
                "global_load_dword v%d, v%d, s[%d:%d]" % (vDum, t0, ptr(which), ptr(which) + 1)]
    def pf_bx():
        return ["s_mul_i32 s%d, s%d, %d" % (sT, sXcd, 256 * 1280), "s_mul_i32 s%d, s%d, 10240" % (sT2, sIdx), "s_add_u32 s%d, s%d, s%d" % (sT, sT, sT2),
                "v_lshlrev_b32 v%d, 7, v0" % t0, "v_min_u32 v%d, %d, v%d" % (t0, 10240 - 128, t0), "v_add_u32 v%d, s%d, v%d" % (t0, sT, t0),
                "global_load_dword v%d, v%d, s[%d:%d]" % (vDum, t0, ptr(B_X), ptr(B_X) + 1)]

    def extra(ty, keep):
        if len(pl.free) <= keep:
            return []
        pre, tag = pl.take(ty, 2)
        if tag is None:
            return []
        pl.issue(tag)
        d = dma(2, sX if ty == "X" else sW)
        return pre + d[0] + d[1:]
    def skel(last_mf, bar, mf, custom, target, NP=2):
        if last_mf:
            p(last_mf)
        p.add(bar)
        n = len(custom)
        for k in range(NP):
            p.add([mf[k]] + custom[k * n // NP:(k + 1) * n // NP])
        p(call(target))
    def body(name, G, mf, entries=None, NP=2):
        out = ["%s:" % name]
        for k in range(NP, G.n - 1):
            if entries and k in entries:
                out.append("%s:" % entries[k])
            out += [mf[k]] + G.gap(k)
        assert not any(G.gap(k) for k in list(range(NP)) + [G.n - 1])
        X = os.environ.get("X_" + name[2], "")
        out = [x if isinstance(x, I) else I(x) for x in out]
        if "d" in X: out = [x for x in out if x.kind != "dma"]
        if "m" in X: out = [x for x in out if x.kind != "mfma"]
        if "l" in X: out = [x for x in out if x.kind != "ds"]
        tail.extend(out + [ret])
    v2 = lambda r: rr("v", r, 2)
    bsel = lambda b, pos, n: "op_sel:[%s] op_sel_hi:[%s]" % (",".join(str(b & 1) if k == pos else "0" for k in range(n)), ",".join(str(b & 1) if k == pos else "1" for k in range(n)))
    pk_mulb = lambda d, a, b: "v_pk_mul_f32 %s, %s, %s %s" % (v2(d), v2(a), v2(b & ~1), bsel(b, 1, 2))
    pk_subb = lambda d, a, b: "v_pk_add_f32 %s, %s, %s %s neg_lo:[0,1] neg_hi:[0,1]" % (v2(d), v2(a), v2(b & ~1), bsel(b, 1, 2))
    pk_fmab = lambda d, a, b, c: "v_pk_fma_f32 %s, %s, %s, %s %s" % (v2(d), v2(a), v2(b & ~1), v2(c), bsel(b, 1, 3))
    pk_add = lambda d, a, b: "v_pk_add_f32 %s, %s, %s" % (v2(d), v2(a), v2(b))
    def pack_tile(src, dst):
        return ["v_cvt_pk_bf16_f32 v%d, v%d, v%d" % (dst + k, src + 2 * k, src + 2 * k + 1) for k in range(8)]
    FULL = int(os.environ.get("FULL", "1"))
    def publish(val):
        lab = p.newlabel("M_pub")
        return ["s_cmp_lg_u32 s%d, 0" % sWave, "s_cbranch_scc1 %s" % lab,
                "s_lshl_b32 s%d, s2, 7" % sT, "v_mov_b32 v%d, %d" % (t0, val), "v_lshlrev_b32 v%d, 2, v%d" % (t1, vLane),
                "s_mov_b32 exec_hi, 0" if FULL else "s_mov_b64 exec, 1",
                "buffer_store_dword v%d, v%d, s[%d:%d], s%d offen sc1" % (t0, t1, sD, sD + 3, sT),
                "s_mov_b64 exec, -1", "%s:" % lab]
    def poll_load(kind):
        if kind == "go":
            return ["v_mov_b32 v%d, 0" % t0, "global_load_dword v%d, v%d, s[%d:%d] sc1" % (vGo, t0, ptr(D_DBG), ptr(D_DBG) + 1)]
        if kind == 2:
            r = ["v_min_u32 v%d, 29, v%d" % (t0, vLane), "v_lshlrev_b32 v%d, 10, v%d" % (t0, t0), "s_lshl_b32 s%d, s%d, 7" % (sT, sXcd)]
        elif kind in (1, "KV"):
            r = ["v_and_b32 v%d, 7, v%d" % (t0, vLane), "v_lshlrev_b32 v%d, 10, v%d" % (t0, t0), "s_andn2_b32 s%d, s2, 0x38" % sT, "s_lshl_b32 s%d, s%d, 7" % (sT, sT)]
        elif kind in ("A", "B", 7, 3):
            return ["buffer_load_dword v%d, v%d, s[%d:%d], 0 offen sc1" % (vDum, vPoll, sD, sD + 3)]
        else:
            r = ["v_and_b32 v%d, 7, v%d" % (t0, vLane), "v_lshlrev_b32 v%d, 7, v%d" % (t0, t0), "s_lshl_b32 s%d, s%d, 10" % (sT, sIdx)]
        return r + ["buffer_load_dword v%d, v%d, s[%d:%d], s%d offen sc1" % (vKV if kind == "KV" else vDum, t0, sD, sD + 3, sT)]
    def poll_check(kind, lvl=None):
        lab = p.newlabel("M_poll")
        chk = ["v_cmp_gt_u32 vcc, %s, v%d" % (("1", vGo) if kind == "go" else (("v%d" % (vPoll + 1), vDum) if kind in ("A", "B", 3) else (str(lvl or kind), vDum)))]
        if kind == "KV":
            chk = ["v_cmp_gt_u32 vcc, %d, v%d" % (lvl, vKV)]
        tail.extend(["%s:" % lab, "s_mov_b32 s%d, 0x40000" % sSpin, "%s_l:" % lab, "s_sleep 1"] + poll_load(kind) + ["s_waitcnt vmcnt(0)"] + chk +
                    ["s_cbranch_vccz %s_r" % lab, "s_sub_u32 s%d, s%d, 1" % (sSpin, sSpin), "s_cbranch_scc0 %s_l" % lab, "s_branch %s_r" % lab])
        if kind in ("KV", 3):
            c = I(chk[0])
            c.rd = set()
            chk = ["s_waitcnt vmcnt(8)", c]
        return chk + ["s_cbranch_vccnz %s" % lab, "%s_r:" % lab]
    def pf(which, total, first, nlines):
        return ["s_lshl_b32 s%d, s2, 2" % sT, "s_add_u32 s%d, s%d, s%d" % (sT, sT, sWave), "s_mul_i32 s%d, s%d, %d" % (sT, sT, nlines),
                "s_add_u32 s%d, s%d, %d" % (sT, sT, first), "v_min_u32 v%d, %d, v%d" % (t0, nlines - 1, vLane), "v_add_u32 v%d, s%d, v%d" % (t0, sT, t0),
                "v_min_u32 v%d, %d, v%d" % (t0, total // 128 - 1, t0), "v_lshlrev_b32 v%d, 7, v%d" % (t0, t0),
                "global_load_dword v%d, v%d, s[%d:%d]" % (vDum, t0, ptr(which), ptr(which) + 1)]

    sPC0 = 96
    def code_touch(dst, mode):
        if not (CODEPF & mode):
            return []
        return ["s_lshl_b32 s%d, s%d, 2" % (sT, sIdx), "s_add_u32 s%d, s%d, s%d" % (sT, sT, sWave), "s_lshl_b32 s%d, s%d, 9" % (sT, sT),
                "v_and_b32 v%d, 3, v%d" % (t0, vLane), "v_lshl_add_u32 v%d, v%d, 7, s%d" % (t0, t0, sT), "v_min_u32 v%d, M_codeend-M_pc0-4, v%d" % (t0, t0),
                "global_load_dword v%d, v%d, s[%d:%d]" % (dst, t0, sPC0, sPC0 + 1)]
    p("s_cmp_ge_u32 s2, 256\ns_cbranch_scc1 M_exit")
    if os.environ.get("TWICE"):
        p("s_mov_b32 s3, 0\nM_again:")
    p("s_getpc_b64 s[%d:%d]\nM_pc0:" % (sPC0, sPC0 + 1))
    p("s_load_dwordx16 s[%d:%d], s[0:1], 0" % (P, P + 15))
    p("s_load_dwordx8 s[%d:%d], s[0:1], 64" % (P + 16, P + 23))
    p("s_load_dwordx2 s[%d:%d], s[0:1], 96" % (P + 24, P + 25))
    st_ = Stamper(p, vStamp, kid=0)
    p("v_and_b32 v%d, 63, v0" % vLane)
    p("v_lshrrev_b32 v%d, 6, v0" % t0)
    p("v_readfirstlane_b32 s%d, v%d" % (sWave, t0))
    p("s_and_b32 s%d, s2, 7" % sXcd)
    p("s_lshr_b32 s%d, s2, 3" % sIdx)
    p("s_lshl_b32 s%d, s%d, 12" % (sW4, sWave))
    p("s_lshl_b32 s%d, s%d, 2" % (sH, sXcd))
    p("s_lshr_b32 s%d, s%d, 3" % (sT, sIdx))
    p("s_add_u32 s%d, s%d, s%d" % (sH, sH, sT))
    p("s_and_b32 s%d, s%d, 7" % (sI, sIdx))
    p.add(code_touch(vDum, 1))
    pl.hook(code_touch(vDum, 1))
    p.add(x_voffs(1024, 9))
    p.add(w_voffs(8192, 1))
    p("s_waitcnt lgkmcnt(0)")
    st_()
    srd(p, sD, ptr(D_WS), off_imm=WS_FL, nrec=32768)
    if os.environ.get("TWICE"):
        p("s_cmp_lg_u32 s3, 0\ns_cbranch_scc1 M_nolead")
    p("s_cmp_lg_u32 s2, 255\ns_cbranch_scc1 M_nolead")
    p("v_lshlrev_b32 v%d, 7, v0\nv_mov_b32 v%d, 0" % (t0, t1))
    p("buffer_store_dword v%d, v%d, s[%d:%d], 0 offen sc1" % (t1, t0, sD, sD + 3))
    p("M_nolead:")
    p("s_lshl_b32 s%d, s%d, 15" % (sT, sI))
    srd(p, sX, ptr(A_CKV), off_s=sT)
    p("s_sub_u32 s%d, 0x200000, s%d" % (sX + 2, sT))
    w_srd(p, sW, A_WUK, sH, 512 * 8192)
    w_srd(p, sW2, A_WUV, sH, 512 * 8192)
    ST = os.environ.get("ST", "XWXW")
    for ty in ST:
        for g in range(2):
            pre, tag = pl.take(ty, 0)
            p.add(pre + dma(0, sX if ty == "X" else (sW, sW2)[g], "" if ty == "X" else NTW))
            pl.issue(tag)
    p.add(x_rd16(vXr))
    p("s_lshr_b32 s%d, s%d, 1" % (sT, sWave))
    p("s_lshl_b32 s%d, s%d, 14" % (sT, sT))
    p("v_add_u32 v%d, s%d, v%d" % (vXr, sT, vXr))
    p("v_xor_b32 v%d, 64, v%d" % (vXr + 1, vXr))
    p("s_lshl_b32 s%d, s%d, 3" % (sKo, sT))
    p.add(w_rd16(vWr))
    p("s_and_b32 s%d, s%d, 1" % (sT, sWave))
    p("s_lshl_b32 s%d, s%d, 7" % (sT, sT))
    p("s_add_u32 s%d, s%d, 0x%x" % (sT, sT, 2 * U))
    p("v_xor_b32 v%d, s%d, v%d" % (vWr, sT, vWr))
    for c in range(1, 4):
        p("v_xor_b32 v%d, %d, v%d" % (vWr + c, c * 32, vWr))
    p("v_lshlrev_b32 v%d, 4, v%d" % (vL16, vLane))
    def phi_ld(q):
        q("s_mul_i32 s%d, s%d, 800" % (sT, sIdx))
        srd(q, sPhi, ptr(B_WPHI), off_s=sT, nrec=800)
        q("v_subrev_u32 v%d, 480, v%d" % (t0, vL16))
        q("buffer_load_dwordx4 %s, v%d, s[%d:%d], 0 offen" % (rr("a", aRAW, 4), t0, sPhi, sPhi + 3))
        q("buffer_load_dwordx4 %s, v%d, s[%d:%d], 0 offen offset:544" % (rr("a", aRAW + 4, 4), vL16, sPhi, sPhi + 3))
    p("s_lshl_b32 s%d, s%d, 1" % (sTB, sXcd))
    p("s_cmp_ge_u32 s%d, 15" % sIdx)
    p("s_cselect_b32 s%d, 15, 0" % sT)
    p("s_addc_u32 s%d, s%d, 0" % (sTB, sTB))
    p("s_sub_u32 s%d, s%d, s%d" % (sCB, sIdx, sT))
    p("s_mul_i32 s%d, s%d, %d" % (sLo, sI, 128 * 1280))
    p("s_sub_u32 s%d, %d, s%d" % (sHi, 15 * 128 * 1280, sLo))

    fx = lambda st, i: 128 + st * 64 + i * 4
    fw = lambda st, i: 128 + st * 64 + 32 + i * 4
    def kvreg(mat, n):
        if mat == 0:
            return ("v", RB + 16 * n if n < 4 else RA + 16 * (n - 4))
        return ("v", RC + 16 * n) if n < 4 else (("v", RD + 16 * (n - 4)) if n < 6 else ("a", 16 * (n - 6)))
    def kv_reads(st):
        X = ["ds_read_b128 %s, v%d offset:%d" % (rr("a", fx(st, i), 4), vXr + st, i * 2048) for i in range(8)]
        W = ["ds_read_b64_tr_b16 %s, v%d offset:%d" % (rr("a", fw(st, i) + 2 * u, 2), vWr + (i & 3), (i >> 2) * U + st * 8192 + u * 1024) for i in range(8) for u in range(2)]
        return X[:2] + W[:8] + X[2:] + W[8:]
    def kv_mf(st, zero=False):
        r = []
        for mat in range(2):
            for n in range(8):
                f, b0 = kvreg(mat, n)
                for e in range(4):
                    a = rr(f, b0 + 4 * e, 4)
                    tt, cc = (e & 1, e >> 1) if mat else (e >> 1, e & 1)
                    X, W = rr("a", fx(st, 2 * (n >> 1) + tt), 4), rr("a", fw(st, mat * 4 + 2 * (n & 1) + cc), 4)
                    A, B = (X, W) if mat else (W, X)
                    r.append("%s %s, %s, %s, %s" % (M16, a, A, B, "0" if zero else a))
        return r
    WL = "s_waitcnt lgkmcnt(0)"
    mfA, mfB = kv_mf(1), kv_mf(0)
    NK = 6
    G = Gaps16(64)
    G.spread(kv_reads(0), NK, 55)
    put_dma(G, 0, sW, NK, 21, NTW); put_dma(G, 1, sW2, 22, 35, NTW)
    body("M_kvA", G, mfA, NP=NK)
    G = Gaps16(64)
    G.spread(kv_reads(1), NK, 55)
    put_dma(G, 0, sX, NK, 32); put_dma(G, 1, sX, 33, 57)
    sadd = lambda regs, sd: ["v_add_u32 v%d, s%d, v%d" % (r, sd, r) for r in regs]
    kv_upd = sadd([vXr, vXr + 1], sDa) + sadd([vWr + c for c in range(4)], sDb)
    G.spread(kv_upd, 58, 62)
    kv_del = lambda s: ["s_mov_b32 s%d, 0x%x" % (sDa, u32((((2 * s) % 5) - ((2 * s - 2) % 5)) * 2 * U)), "s_mov_b32 s%d, 0x%x" % (sDb, u32((((2 * s + 1) % 5) - ((2 * s - 1) % 5)) * 2 * U))]
    body("M_kvB", G, mfB, NP=NK)
    KVs = lambda s: [("KX", s, 0), ("KX", s, 1), ("KW", s, 0), ("KW", s, 1)]
    st_()
    p.add(pl.barrier(KVs(0), [], 1024))
    st_()
    p.add(kv_reads(0))
    p("s_cmp_lg_u32 s2, 255\ns_cbranch_scc1 M_nolead2\ns_cmp_lg_u32 s%d, 0\ns_cbranch_scc1 M_nolead2" % sWave)
    p("v_mov_b32 v%d, 0\nv_mov_b32 v%d, 1\ns_mov_b64 exec, 1" % (t0, t1))
    p("global_store_dword v%d, v%d, s[%d:%d] sc1" % (t0, t1, ptr(D_DBG), ptr(D_DBG) + 1))
    p("s_mov_b64 exec, -1\nM_nolead2:")
    p(WL)
    G = Gaps16(64)
    G.spread(kv_reads(1), 0, 47)
    rest = [(ty, g) for ty in "XWXWX"[len(ST):] for g in range(2)]
    wd = 58 // len(rest)
    for k, (ty, g) in enumerate(rest):
        pre, tag = pl.take(ty, k % 3)
        G.put(k * wd, pre)
        pl.issue(tag)
        put_dma(G, k % 3, sX if ty == "X" else (sW, sW2)[g], k * wd + 1, min(k * wd + wd, k * wd + 13), "" if ty == "X" else NTW)
    G.put(50, kv_del(1))
    G.spread(kv_upd, 60, 62)
    z = kv_mf(0, zero=True)
    p.add(G.emit(z, 0, 63))
    last = z[63]
    PN = int(os.environ.get("PN", "2"))
    arrs = [(B_WQKV, 640 * 3840, 0), (B_X, 2048 * 1280, 0), (A_X, 2048 * 1280, 0), (A_WQ, 640 * 8192, 0), (A_WQ, 640 * 8192, 20480)]
    if PREFETCH == 2:
        arrs += [(A_WO, 4096 * 1280, 0), (A_WO, 4096 * 1280, 20480)]
    hooks = [[] for _ in range(8)]
    hooksA = [[] for _ in range(9)]
    if PREFETCH:
        for k, (w_, tot, first) in enumerate(arrs):
            if PN == 1:
                hooks[k + 1] = pf(w_, tot, first, 20)
            else:
                hooks[k + 1] = pf(w_, tot, first, 10)
                hooksA[k + 2] = pf(w_, tot, first + 10240, 10)
    if PREFETCH == 5:
        hooks = [[] for _ in range(8)]
        hooksA = [[] for _ in range(9)]
        seq = [(B_WQKV, 640 * 3840, 0, 10), (B_X, 2048 * 1280, 0, 10), (B_WQKV, 640 * 3840, 10240, 10), (B_X, 2048 * 1280, 10240, 10), (A_X, 2048 * 1280, 0, 10),
               (A_WQ, 640 * 8192, 0, 10), (A_WQ, 640 * 8192, 10240, 10), (A_X, 2048 * 1280, 10240, 10), (A_WQ, 640 * 8192, 20480, 10), (A_WQ, 640 * 8192, 30720, 10),
               (A_WO, 4096 * 1280, 0, 14), (A_WO, 4096 * 1280, 14336, 13), (A_WO, 4096 * 1280, 27648, 13)]
        for k, x in enumerate(seq):
            (hooks if k & 1 else hooksA)[k // 2 + 1] = pf(*x)
    XS = 4 * 2560
    def xsetup(q, srdn, va, vb):
        q("s_and_b32 s%d, s%d, 1" % (sT, sXcd))
        q("s_lshl_b32 s%d, s%d, 5" % (sT, sT))
        q("s_add_u32 s%d, s%d, s%d" % (sT, sT, sIdx))
        q("s_mul_i32 s%d, s%d, %d" % (sT, sT, 16 * XS))
        srd(q, srdn, ptr(D_WS), off_s=sT, off_imm=WS_XB, nrec=16 * XS)
        q("s_mul_i32 s%d, s%d, 2560" % (sT, sWave))
        q("v_add_u32 v%d, s%d, v%d" % (va, sT, vL16))
        q("v_lshl_add_u32 v%d, v%d, 3, s%d" % (vb, vLane, sT))
    def xfer(q, op, qq, srdn, va, vb, regs, f="v"):
        q("s_lshr_b32 s%d, s%d, 1" % (sT2, sXcd))
        q("s_xor_b32 s%d, s%d, %d" % (sT, sT2, qq))
        q("s_lshl2_add_u32 s%d, s%d, s%d" % ((sT, sT, sT2) if op == "store" else (sT, sT2, sT)))
        q("s_mul_i32 s%d, s%d, %d" % (sT, sT, XS))
        for k in range(2):
            q("buffer_%s_dwordx4 %s, v%d, s[%d:%d], s%d offen offset:%d %s" % (op, rr(f, regs[k], 4), va, srdn, srdn + 3, sT, k * 1024, WT))
        q("buffer_%s_dwordx2 %s, v%d, s[%d:%d], s%d offen offset:2048 %s" % (op, rr(f, regs[2], 2), vb, srdn, srdn + 3, sT, WT))
    def xclear0(q):
        xsetup(q, sO, vKV, vA)
        for k in range(4):
            q("v_accvgpr_write_b32 a%d, -1" % (248 + k))
    xclear = lambda qq: L(xfer, "store", qq, sO, vKV, vA, (248, 248, 248), "a")
    hooks[7 if PREFETCH != 2 else 6] += L(phi_ld)
    hooks[6] = hooks[6] + poll_load("go")
    def upd(regs, d):
        return ["v_add_u32 v%d, 0x%x, v%d" % (r, u32(d), r) for r in regs]
    for s in range(1, 8):
        bar = pl.barrier(KVs(s), KVs(s - 1), 2048)
        cu = list(hooksA[s])
        pl.hook(cu)
        tags = []
        for i in range(2):
            pre, tag = pl.take("W", i)
            cu += pre
            tags.append(tag)
        for t in tags:
            pl.issue(t)
        if os.environ.get("FINEK"): st_()
        skel(last, bar, mfA, cu, "M_kvA", NK)
        if os.environ.get("FINEK"): st_()
        cu = list(hooks[s])
        pl.hook(cu)
        tags = []
        for i in range(2):
            pre, tag = pl.take("X", i)
            cu += pre
            tags.append(tag)
        for t in tags:
            pl.issue(t)
        skel(mfA[63], [WL], mfB, cu + kv_del(s + 1), "M_kvB", NK)
        last = mfB[63]
    st_()

    QT = int(os.environ.get("QT", "0"))
    vTx, vTw = vA + 2, vA + 3
    qt_init = ["s_lshl2_add_u32 s%d, s%d, s%d" % (sT, sIdx, sWave), "s_lshl_b32 s%d, s%d, 4" % (sT, sT), "v_and_b32 v%d, 15, v%d" % (vTx, vLane),
               "v_add_u32 v%d, s%d, v%d" % (vTx, sT, vTx), "v_mul_u32_u24 v%d, 1280, v%d" % (vTx, vTx),
               "s_lshr_b32 s%d, s%d, 5" % (sT, sT), "s_lshl_b32 s%d, s%d, 13" % (sT, sT), "s_lshl_b32 s%d, s%d, 10" % (sT2, sXcd), "s_add_u32 s%d, s%d, s%d" % (sT, sT, sT2),
               "s_and_b32 s%d, s%d, 1" % (sT2, sWave), "s_lshl_b32 s%d, s%d, 9" % (sT2, sT2), "s_add_u32 s%d, s%d, s%d" % (sT, sT, sT2),
               "v_and_b32 v%d, 3, v%d" % (vTw, vLane), "v_lshl_add_u32 v%d, v%d, 7, s%d" % (vTw, vTw, sT)]
    def qt(st):
        if not QT or st > 9:
            return []
        return (qt_init if st == 0 else ["v_add_u32 v%d, 0x80000, v%d" % (vTw, vTw)]) + \
               ["global_load_dword v%d, v%d, s[%d:%d] offset:%d" % (vA, vTx, ptr(A_X), ptr(A_X) + 1, st * 128), "global_load_dword v%d, v%d, s[%d:%d]" % (vA, vTw, ptr(A_WQ), ptr(A_WQ) + 1)]
    bfx = lambda st, k, i: 128 + st * 32 + k * 16 + i * 4
    bfw = lambda st, k, i: 128 + st * 32 + k * 16 + 8 + i * 4
    def b_reads(st):
        r = []
        for k in range(2):
            ks = st * 2 + k
            for i in range(2):
                r.append("ds_read_b128 %s, v%d offset:%d" % (rr("a", bfx(st, k, i), 4), vXr + ks, i * 4096))
                for u in range(2):
                    r.append("ds_read_b64_tr_b16 %s, v%d offset:%d" % (rr("a", bfw(st, k, i) + 2 * u, 2), vWr + i, ks * 4096 + u * 1024))
        return r
    def b_mf(var, st, zero=False):
        mf = []
        for k in range(2):
            for b in range(2):
                for c in range(2):
                    a = rr("v", RA + (b * 2 + c) * 16, 16)
                    X, W = rr("a", bfx(st, k, b), 4), rr("a", bfw(st, k, c), 4)
                    A, B = (X, W) if var else (W, X)
                    mf.append("%s %s, %s, %s, %s" % (MF, a, A, B, "0" if (zero and k == 0) else a))
        return mf
    def kv_pack(mat, n):
        f, b0 = kvreg(mat, n)
        dst = (RC if mat else RB) + 8 * n
        if f == "v":
            return pack_tile(b0, dst)
        return ["v_accvgpr_read_b32 v%d, a%d" % (RD + k, b0 + k) for k in range(16)] + pack_tile(RD, dst)
    def kv_store(mat, n):
        f, reg = ("v", (RC if mat else RB) + 8 * n) if n < 4 else ("a", aPK + (mat * 4 + n - 4) * 8)
        if mat == 0 and n in (2, 3):
            f, reg = "a", 104 + 8 * (n - 2)
        st = lambda m, so, imm: "buffer_store_dwordx4 %s, v%d, s[%d:%d], s%d offen offset:%d %s" % (rr(f, reg + 4 * m, 4), vL16, sO, sO + 3, so, imm, WT)
        if mat:
            return ["s_and_b32 s%d, s%d, 0x1000" % (sOff, sW4), "s_add_u32 s%d, s%d, s%d" % (sOff, sOff, sKo), "s_add_u32 s%d, s%d, 0x%x" % (sOff, sOff, (n >> 1) * 16 * U + 8192),
                    st(0, sOff, (n & 1) * 2048), st(1, sOff, (n & 1) * 2048 + 1024)]
        return ["s_lshr_b32 s%d, s%d, 1" % (sOff, sW4), "s_and_b32 s%d, s%d, 0x800" % (sOff, sOff), "s_add_u32 s%d, s%d, s%d" % (sOff, sOff, sKo), "s_add_u32 s%d, s%d, 0x%x" % (sOff, sOff, (n >> 1) * 16 * U),
                st(0, sOff, (n & 1) * 1024), "s_addk_i32 s%d, 0x1000" % sOff, st(1, sOff, (n & 1) * 1024)]
    def b_store(t):
        return ["s_add_u32 s%d, s%d, 0x%x" % (sOff, sBo, (t >> 1) * 120 * 1024)] + \
               ["buffer_store_dwordx4 %s, v%d, s[%d:%d], s%d offen offset:%d %s" % (rr("v", RD + 8 * t + 4 * m, 4), vL16, sBO, sBO + 3, sOff, (t & 1) * 2048 + m * 1024, WT) for m in range(2)]
    Bs = lambda b: [("BX", b), ("BW", b)]
    Qs = lambda s: [("QX", s, 0), ("QX", s, 1), ("QW", s)]
    p(last)
    p.add(pl.barrier(Bs(0), KVs(7), 1280))
    def baddr(q):
        x_rd_addr(q, vXr, vLane, t0, t1)
        q("s_lshr_b32 s%d, s%d, 1" % (sT, sWave))
        q("s_lshl_b32 s%d, s%d, 13" % (sT, sT))
        q("s_add_u32 s%d, s%d, 0x%x" % (sT, sT, pl.unit[("BX", 0)] * U))
        for ks in range(4):
            q("v_add_u32 v%d, s%d, v%d" % (vXr + ks, sT, vXr + ks))
        q("s_and_b32 s%d, s%d, 1" % (sT, sWave))
        q("s_lshl_b32 s%d, s%d, 1" % (sT, sT))
        q("v_mov_b32 v%d, s%d" % (t2, sT))
        w_rd_addr(q, vWr, vLane, t0, t1, t2)
        q("v_add_u32 v%d, 0x%x, v%d" % (vWr, pl.unit[("BW", 0)] * U, vWr))
        q("v_xor_b32 v%d, 64, v%d" % (vWr + 1, vWr))
        q("s_lshl_b32 s%d, s%d, 20" % (sT, sH))
        q("s_lshl_b32 s%d, s%d, 14" % (sT2, sI))
        q("s_add_u32 s%d, s%d, s%d" % (sT, sT, sT2))
        srd(q, sO, ptr(D_WS), off_s=sT, off_imm=WS_KV)
        q("s_sub_u32 s%d, 0x100000, s%d" % (sO + 2, sT2))
    G = Gaps16(64)
    ba = L(baddr)
    for k in range(16):
        G.put(k, ba[k * len(ba) // 16:(k + 1) * len(ba) // 16], post=True)
    for i, ty in enumerate("WWX"):
        pre, tag = pl.take(ty, i)
        assert len(pre) == 2
        G.put(0, pre)
        pl.issue(tag)
        put_dma(G, i, sW if ty == "W" else sX, 1 + 20 * i, 20 + 20 * i)
    G.spread(b_reads(0), 20, 56)
    G.stream([x for n in range(8) for x in kv_pack(0, n)], 16, 49)
    G.stream([x for n in range(3) for x in kv_pack(1, n)], 50, 63)
    p.add(G.emit(kv_mf(1)))
    p(WL)
    p("s_cmp_ge_u32 s%d, 10\ns_cbranch_scc1 M_bv" % sCB)
    pl0 = pl
    qfx = lambda st, i: st * 48 + i * 4
    qfw = lambda st, i: st * 48 + 16 + i * 4
    qacc = lambda j, d: RA + j * 32 + d * 4
    def q_reads(st):
        X = ["ds_read_b128 %s, v%d offset:%d" % (rr("a", qfx(st, j), 4), vXr + 2 * (j >> 1) + st, (j & 1) * 2048) for j in (2, 3, 0, 1)]
        W = ["ds_read_b64_tr_b16 %s, v%d offset:%d" % (rr("a", qfw(st, i) + 2 * u, 2), vWr + i, st * 8192 + u * 1024) for i in range(8) for u in range(2)]
        return X[:2] + W + X[2:]
    def q_derive():
        return ["v_xor_b32 v%d, 64, v%d" % (vXr + 1, vXr), "v_xor_b32 v%d, 64, v%d" % (vXr + 3, vXr + 2)] + \
               ["v_xor_b32 v%d, %d, v%d" % (vWr + c, c * 32, vWr) for c in range(1, 8)]
    for var in range(2):
        pl = pl0.copy()
        if var:
            p("M_bv:")
        mfb = b_mf(var, 1) + b_mf(var, 0)
        G = Gaps(16)
        G.spread(b_reads(0), 2, 6); G.put(7, WL); G.spread(b_reads(1), 8, 13)
        put_dma(G, 0, sW, 2, 8); put_dma(G, 1, sX, 9, 14)
        b_upd = sadd([vXr, vXr + 1], sDa), sadd([vXr + 2, vXr + 3], sDa) + sadd([vWr, vWr + 1], sDb)
        G.put(10, b_upd[0]); G.put(14, b_upd[1])
        b_del = lambda b: ["s_mov_b32 s%d, 0x%x" % (sd, u32((pl.unit[(k, b)] - pl.unit[(k, b - 1)]) * U)) for sd, k in ((sDa, "BX"), (sDb, "BW"))] if b < 10 else []
        body("M_b%d" % var, G, mfb)
        G = Gaps(8)
        pre, tag = pl.take("X", 1)
        assert len(pre) == 2
        G.put(0, pre)
        pl.issue(tag)
        put_dma(G, 1, sX, 1, 6)
        G.spread(b_reads(1), 0, 5)
        G.stream([x for n in range(3, 8) for x in kv_pack(1, n)], 0, 6)
        G.put(0, b_del(1))
        G.put(6, b_upd[0] + b_upd[1])
        z = b_mf(var, 0, zero=True)
        p.add(G.emit(z, 0, 7))
        last = z[7]
        park = ["v_accvgpr_write_b32 a%d, v%d" % (aPK + k, RB + 32 + k) for k in range(32)] + ["v_accvgpr_write_b32 a%d, v%d" % (aPK + 32 + k, RC + 32 + k) for k in range(32)]
        park += ["v_accvgpr_write_b32 a%d, v%d" % (104 + k, RB + 16 + k) for k in range(16)]
        pk_ = park[:32] + park[64:]
        stores = [kv_store(0, 0), pk_[:10], kv_store(0, 1), pk_[10:20], kv_store(1, 0), pk_[20:30], kv_store(1, 1), pk_[30:39], pk_[39:]]
        for b in range(1, 10):
            bar = pl.barrier(Bs(b), Bs(b - 1), 512)
            cu = b_del(b + 1)
            cu += extra("X" if (b != 2) else "W", 2)
            tags = []
            for i, ty in enumerate("WX"):
                pre, tag = pl.take(ty, i)
                cu += pre
                tags.append(tag)
            cu += stores[b - 1]
            pl.hook(stores[b - 1], "kv")
            k0 = b - (10 - (2 + QT))
            if k0 >= 0:
                cu += qt(k0)
                pl.hook(qt(k0))
            for t in tags:
                pl.issue(t)
            skel(last, bar, mfb, cu, "M_b%d" % var)
            if STAMPS and os.environ.get("FINE"):
                if var and b == 1:
                    st_.n -= 9
                st_()
            last = mfb[15]
        p(last)
        p.add(pl.barrier(Qs(0), Bs(9), 1024))
        G = Gaps(8)
        qa = x_rd16(vXr) + ["s_add_u32 s%d, s%d, 0x%x" % (sT, sW4, pl.unit[("QX", 0, 1)] * U), "v_add_u32 v%d, s%d, v%d" % (vXr + 2, sT, vXr),
                            "s_add_u32 s%d, s%d, 0x%x" % (sT, sW4, pl.unit[("QX", 0, 0)] * U), "v_add_u32 v%d, s%d, v%d" % (vXr, sT, vXr)] + \
             w_rd16(vWr) + upd([vWr], pl.unit[("QW", 0)] * U) + q_derive()
        for k in range(4):
            G.put(k, qa[k * len(qa) // 4:(k + 1) * len(qa) // 4], post=True)
        pre, tag = pl.take("X", 0)
        assert len(pre) == 2
        G.put(0, pre)
        pl.issue(tag)
        put_dma(G, 0, sX, 0, 7)
        G.spread(q_reads(0), 4, 7)
        p.add(G.emit(b_mf(var, 1)))
        if var == 0:
            p("s_branch M_bdone")
    p("M_bdone:")
    st_()

    qorder = [(j, d) for jj in (2, 0) for d in range(8) for j in (jj, jj + 1)]
    def q_mf(st, zero=False):
        return ["%s %s, %s, %s, %s" % (M16, rr("v", qacc(j, d), 4), rr("a", qfw(st, d), 4), rr("a", qfx(st, j), 4), "0" if zero else rr("v", qacc(j, d), 4)) for j, d in qorder]
    mfq = q_mf(1) + q_mf(0)
    NQ = 5
    G = Gaps16(64)
    G.spread(q_reads(0), NQ, int(os.environ.get('QE', '26')))
    G.put(31, WL)
    G.spread(q_reads(1), 32, 54)
    QC = int(os.environ.get("QC", "17"))
    put_dma(G, 0, sX, NQ, NQ + QC - 1); put_dma(G, 1, sX, NQ + QC, NQ + 2 * QC - 1); put_dma(G, 2, sW, NQ + 2 * QC, NQ + 3 * QC - 1)
    q_upd = sadd([vXr], sDa) + sadd([vXr + 2], sDb) + sadd([vWr], sDc) + q_derive()
    G.spread(q_upd, 57, 62)
    def q_del(s):
        if s > 9:
            return []
        return ["s_mov_b32 s%d, 0x%x" % (sd, u32((pl.unit[k(s)] - pl.unit[k(s - 1)]) * U))
                for sd, k in ((sDa, lambda x: ("QX", x, 0)), (sDb, lambda x: ("QX", x, 1)), (sDc, lambda x: ("QW", x)))]
    body("M_q", G, mfq, NP=NQ)
    p("s_mul_i32 s%d, s%d, %d" % (sT, sTB, 4 * 120 * 1024))
    p("s_lshl_b32 s%d, s%d, 13" % (sT2, sCB))
    p("s_add_u32 s%d, s%d, s%d" % (sT, sT, sT2))
    srd(p, sBO, ptr(D_WS), off_s=sT, off_imm=WS_BF)
    p("s_cmp_lt_u32 s2, 240\ns_cselect_b32 s%d, %d, 0" % (sBO + 2, 4 * 120 * 1024))
    p("s_lshr_b32 s%d, s%d, 1" % (sBo, sWave))
    p("s_mul_i32 s%d, s%d, %d" % (sBo, sBo, 2 * 120 * 1024))
    p("s_and_b32 s%d, s%d, 0x1000" % (sT, sW4))
    p("s_add_u32 s%d, s%d, s%d" % (sBo, sBo, sT))
    G = Gaps16(32)
    for i, ty in ((1, "X"), (2, "W")):
        pre, tag = pl.take(ty, i)
        p.add(pre)
        pl.issue(tag)
        put_dma(G, i, sX if ty == "X" else sW, 15 * (i - 1), 15 * (i - 1) + 14)
    p(WL)
    G.spread(q_reads(1), 0, 22)
    G.put(16, q_del(1))
    G.spread(q_upd, 25, 30)
    G.stream([x for t in range(4) for x in pack_tile(RA + 16 * t, RD + 8 * t)], 0, 14)
    z = q_mf(0, zero=True)
    p.add(G.emit(z, 0, 31))
    last = z[31]
    def bm_frag_loads(q, fbase, aXF):
        q("s_lshl_b32 s%d, s%d, 3" % (sTT, sXcd))
        q("s_lshl_b32 s%d, s%d, 1" % (sT, sWave))
        q("s_add_u32 s%d, s%d, s%d" % (sTT, sTT, sT))
        q("s_mul_i32 s%d, s%d, %d" % (sT, sTT, 120 * 1024))
        srd(q, sBF, ptr(D_WS), off_s=sT, off_imm=WS_BF, nrec=2 * 120 * 1024)
        q("s_mul_i32 s%d, s%d, 5" % (sT, sIdx))
        q("s_lshr_b32 s%d, s%d, 2" % (sT, sT))
        q("s_add_u32 s%d, s%d, %d" % (sT, sT, fbase))
        q("s_lshl_b32 s%d, s%d, 10" % (sT, sT))
        for tt in range(2):
            for u in range(2):
                q("buffer_load_dwordx4 %s, v%d, s[%d:%d], s%d offen offset:%d %s" % (rr("a", aXF + (tt * 2 + u) * 4, 4), vL16, sBF, sBF + 3, sT, u * 1024, WT))
            if tt == 0:
                q("s_add_u32 s%d, s%d, %d" % (sT, sT, 120 * 1024))
    vV, vWa, vRd = vA + 2, vA + 3, vA
    def bm1_loads(q):
        bm_frag_loads(q, 40, aXF)
        q("s_mul_i32 s%d, s%d, 20" % (sT, sIdx))
        q("v_and_b32 v%d, 31, v%d" % (t2, vLane))
        q("v_add_u32 v%d, s%d, v%d" % (t1, sT, t2))
        q("v_lshrrev_b32 v%d, 5, v%d" % (vV, t1))
        q("v_lshlrev_b32 v%d, 11, v%d" % (vV, vV))
        q("v_and_b32 v%d, 31, v%d" % (t1, t1))
        q("v_lshl_add_u32 v%d, v%d, 4, v%d" % (vV, t1, vV))
        q("v_and_b32 v%d, 32, v%d" % (t1, vLane))
        q("v_lshl_add_u32 v%d, v%d, 4, v%d" % (vV, t1, vV))
        q("v_bfrev_b32 v%d, 1" % t1)
        q("v_cmp_gt_u32 vcc, 20, v%d" % t2)
        q("v_cndmask_b32 v%d, v%d, v%d, vcc" % (vV, t1, vV))
        for tt in range(2):
            q("s_mov_b32 s%d, %d" % (sT, (tt * 120 + 80) * 1024))
            for mm in range(2):
                q("buffer_load_dwordx4 %s, v%d, s[%d:%d], s%d offen offset:%d %s" % (rr("a", aVF + (tt * 2 + mm) * 4, 4), vV, sBF, sBF + 3, sT, mm * 1024, WT))
    qst = {k + 1: [("b", b_store(k))] for k in range(4)}
    qst.update({7: [("k2", kv_store(0, 2))], 8: [("k2", kv_store(0, 3)), ("k2", kv_store(1, 2))], 9: [("k2", kv_store(1, 3))]})
    for k in range(4):
        qst.setdefault(5 + k, []).append(("p", park[32 + 8 * k:40 + 8 * k]))
    pubB = pubKV = None
    for s in range(1, 10):
        bar = pl.barrier(Qs(s), Qs(s - 1), 1024)
        cu = q_del(s + 1)
        cu += extra("X", 3)
        tags = []
        for i, ty in enumerate("XXW"):
            pre, tag = pl.take(ty, i)
            cu += pre
            tags.append(tag)
        cu += qt(s + 1 + QT)
        pl.hook(qt(s + 1 + QT))
        if s == 1:
            cu.append(poll_check("go"))
        if pubKV is None and pl.complete("kv"):
            pubKV = s
            cu.append(publish(1))
        if pubB is None and s > 4 and pl.complete("b"):
            pubB = s
            cu.append(publish(2))
        if PREFETCH == 4 and s in (5, 6, 7, 8):
            ins = [x.replace("global_load_dword v%d" % vDum, "global_load_dword v%d" % vA) for x in pf(A_WO, 4096 * 1280, (s - 5) * 10240, 10)]
            cu += ins
            pl.hook(ins)
        if s == 6:
            ins = code_touch(vA, 4)
            cu += ins
            pl.hook(ins)
        if s == 5:
            ins = poll_load(1)
            cu += ins
            pl.hook(ins, "poll")
        if s == 7:
            assert pl.complete("poll")
            cu.append(poll_check(1))
        if s == 8:
            ins = poll_load(2)
            cu += ins
            pl.hook(ins, "poll")
        for tag, ins in qst.get(s, []):
            cu += ins
            pl.hook(ins, tag)
        for t in tags:
            pl.issue(t)
        skel(last, bar, mfq, cu, "M_q", NQ)
        last = mfq[63]
        if STAMPS and os.environ.get("FINE"):
            st_()
    if VERB:
        print("pubB", pubB, "pubKV", pubKV)
    assert pubB and pubKV and not pl.pend["X"] and not pl.pend["W"]
    C1, C2, PH, VF, KC, AF, RR = 48, 64, 80, 96, 112, TMP, 32
    def phi(xf, more=None):
        for tile, C in ((0, C1), (1, C2)):
            for u in range(2):
                p("%s %s, %s, %s, %s" % (MF, rr("v", C, 16), rr("v", AW + (tile * 2 + u) * 4, 4), rr("a", xf + u * 4, 4), rr("v", C, 16) if u else "0"))
        if more:
            more()
        p(call("M_phi"))
    aXQ = 232
    q = Prog()
    q("M_phi:")
    x = [C1 + k for k in range(16)] + [C2 + k for k in range(4)]
    m = t1
    q("v_max3_f32 v%d, v%d, v%d, v%d" % (m, x[0], x[1], x[2]))
    for k in range(3, 19, 2):
        q("v_max3_f32 v%d, v%d, v%d, v%d" % (m, m, x[k], x[k + 1]))
    q("v_max_f32 v%d, v%d, v%d" % (m, m, x[19]))
    q("v_mul_f32 v%d, s%d, v%d" % (m, sL2, m))
    for k in range(0, 20, 2):
        q("v_pk_fma_f32 %s, %s, s[%d:%d], %s op_sel:[0,1,0] op_sel_hi:[1,1,0] neg_lo:[0,0,1] neg_hi:[0,0,1]" % (v2(x[k]), v2(x[k]), sL2 - 1, sL2, v2(m)))
    for k in range(20):
        q("v_exp_f32 v%d, v%d" % (x[k], x[k]))
    y = C2 + 4
    q(pk_add(y, x[0], x[2]))
    for k in range(4, 20, 2):
        q(pk_add(y, y, x[k]))
    q("v_add_f32 v%d, v%d, v%d" % (m, y, y + 1))
    q("v_rcp_f32 v%d, v%d" % (m, m))
    for k in range(0, 20, 2):
        q(pk_mulb(x[k], x[k], m))
    for k in range(10):
        q("v_cvt_pk_bf16_f32 v%d, v%d, v%d" % (PH + k, x[2 * k], x[2 * k + 1]))
    q(ret)
    tail += q.ins

    vWo = vA + 1
    sKb, sNt = sHi, sLo
    def wo_src(q):
        q("s_lshr_b32 s%d, s2, 1" % sT)
        q("s_mul_i32 s%d, s%d, 40960" % (sT, sT))
        q("s_and_b32 s%d, s2, 1" % sT2)
        q("s_lshl2_add_u32 s%d, s%d, s%d" % (sT2, sT2, sWave))
        q("s_mul_i32 s%d, s%d, 160" % (sT2, sT2))
        q("s_add_u32 s%d, s%d, s%d" % (sT, sT, sT2))
        srd(q, sY, ptr(A_WO), off_s=sT)
        q("s_sub_u32 s%d, %d, s%d" % (sY + 2, 4096 * 1280, sT))
        q("s_lshl_b32 s%d, s%d, 13" % (sT2, sWave))
        q("s_add_u32 m0, s%d, 0x20000" % sT2)
        for k in range(5):
            q("v_add_u32 v%d, %d, v%d" % (t0, 64 * k, vLane))
            q("v_mul_u32_u24 v%d, 0x199a, v%d" % (t1, t0))
            q("v_lshrrev_b32 v%d, 16, v%d" % (t1, t1))
            q("v_mul_u32_u24 v%d, 1120, v%d" % (t1, t1))
            q("v_lshl_add_u32 v%d, v%d, 4, v%d" % (t0, t0, t1))
            q("buffer_load_dwordx4 v%d, s[%d:%d], 0 offen lds" % (t0, sY, sY + 3))
            q("s_add_u32 m0, m0, 0x400")
        q("s_mul_i32 s%d, s2, 0x667" % sKb)
        q("s_lshr_b32 s%d, s%d, 16" % (sKb, sKb))
        q("s_mul_i32 s%d, s%d, 40" % (sT, sKb))
        q("s_sub_u32 s%d, s2, s%d" % (sNt, sT))
        q("s_lshl2_add_u32 s%d, s%d, s%d" % (sKb, sKb, sWave))
        q("s_mul_i32 s%d, s%d, 0x3334" % (sOff, sKb))
        q("s_lshr_b32 s%d, s%d, 16" % (sOff, sOff))
        q("s_mul_i32 s%d, s%d, 5" % (sT2, sOff))
        q("s_sub_u32 s%d, s%d, s%d" % (sT2, sKb, sT2))
        q("s_mul_i32 s%d, s%d, 160" % (sOff, sOff))
        q("s_mul_i32 s%d, s%d, 40" % (sT, sT2))
        q("s_cmp_eq_u32 s%d, 4" % sT2)
        q("s_cselect_b32 s%d, 16, s%d" % (sT, sT))
        q("s_cselect_b64 vcc, -1, 0")
        q("s_add_u32 s%d, s%d, s%d" % (sT, sT, sOff))
        q("s_mul_i32 s%d, s%d, 40" % (sT, sT))
        q("s_add_u32 s%d, s%d, s%d" % (sT, sT, sNt))
        q("s_lshl_b32 s%d, s%d, 5" % (sT, sT))
        srd(q, sY, ptr(B_WO), nrec=640 * 1280)
        q("v_lshrrev_b32 v%d, 5, v%d" % (t0, vLane))
        q("v_mul_u32_u24 v%d, 20, v%d" % (t0, t0))
        q("v_bfe_u32 v%d, v%d, 3, 1" % (t1, vLane))
        q("v_lshl_add_u32 v%d, v%d, 3, v%d" % (t0, t1, t0))
        q("v_bfe_u32 v%d, v%d, 4, 1" % (t1, vLane))
        q("v_lshl_add_u32 v%d, v%d, 2, v%d" % (t0, t1, t0))
        q("v_lshrrev_b32 v%d, 3, v%d" % (t1, vLane))
        q("v_mul_u32_u24 v%d, 20, v%d" % (t1, t1))
        q("v_cndmask_b32 v%d, v%d, v%d, vcc" % (t0, t0, t1))
        q("v_bfe_u32 v%d, v%d, 1, 2" % (t1, vLane))
        q("v_add_u32 v%d, v%d, v%d" % (t0, t0, t1))
        q("v_mul_u32_u24 v%d, 1280, v%d" % (t0, t0))
        q("v_and_b32 v%d, 1, v%d" % (t1, vLane))
        q("v_lshl_add_u32 v%d, v%d, 4, v%d" % (t0, t1, t0))
        q("buffer_load_dwordx4 v%d, s[%d:%d], s%d offen lds" % (t0, sY, sY + 3, sT))
        q("s_mul_i32 s%d, s%d, 0x3334" % (sT, sNt))
        q("s_lshr_b32 s%d, s%d, 16" % (sT, sT))
        q("s_mul_i32 s%d, s%d, 95" % (sT, sT))
        q("s_add_u32 s%d, s%d, s%d" % (sT, sT, sNt))
        q("s_mul_i32 s%d, s%d, 5" % (sKb, sKb))
        q("s_add_u32 s%d, s%d, s%d" % (sT, sT, sKb))
        q("s_lshl_b32 s%d, s%d, 10" % (sT, sT))
        q("s_add_u32 s%d, s%d, 0x%x" % (sT, sT, WS_WOB - WS_WOA))
        q("s_cmp_lt_u32 s2, 200")
        q("s_cselect_b32 s%d, s%d, 0x10000000" % (sBo, sT))
        q("s_and_b32 s%d, s2, 1" % sT)
        q("s_lshl_b32 s%d, s%d, 1" % (sT, sT))
        q("s_lshr_b32 s%d, s%d, 1" % (sT2, sWave))
        q("s_add_u32 s%d, s%d, s%d" % (sT, sT, sT2))
        q("s_lshl_b32 s%d, s%d, 8" % (sT, sT))
        q("s_andn2_b32 s%d, s2, 1" % sT2)
        q("s_add_u32 s%d, s%d, s%d" % (sT, sT, sT2))
        q("s_and_b32 s%d, s%d, 1" % (sT2, sWave))
        q("s_add_u32 s%d, s%d, s%d" % (sT, sT, sT2))
        q("s_mul_i32 s%d, s%d, 5120" % (sDc, sT))
    WR = S(1, 0)
    def wo_out(q):
        q("v_lshrrev_b32 v%d, 2, v%d" % (t0, vLane))
        q("v_mul_u32_u24 v%d, 160, v%d" % (vWo, t0))
        q("v_and_b32 v%d, 3, v%d" % (t1, vLane))
        q("s_lshl_b32 s%d, s%d, 13" % (sT, sWave))
        q("s_add_u32 s%d, s%d, 0x20000" % (sT, sT))
        q("v_lshl_add_u32 v%d, v%d, 3, s%d" % (t1, t1, sT))
        q("v_add_u32 v%d, v%d, v%d" % (vWo, vWo, t1))
        for n in range(5):
            for u in range(2):
                q("ds_read_b64_tr_b16 %s, v%d offset:%d" % (rr("v", WR + 4 * n + 2 * u, 2), vWo, n * 32 + u * 16 * 160))
        q("v_lshl_add_u32 v%d, v%d, 5, v%d" % (t1, t0, t1))
        q("v_lshrrev_b32 v%d, 4, v%d" % (t0, vLane))
        q("v_lshl_add_u32 v%d, v%d, 7, v%d" % (t1, t0, t1))
        for u in range(2):
            q("ds_read_b64_tr_b16 %s, v%d offset:%d" % (rr("v", WR + 20 + 2 * u, 2), t1, 5120 + u * 128))
        srd(q, sBF, ptr(D_WS), off_imm=WS_WOA, nrec=WS_OB - WS_WOA)
    def wo_st(q):
        for n in range(5):
            if n == 4:
                q("s_addk_i32 s%d, 0x1000" % sDc)
            q("buffer_store_dwordx4 %s, v%d, s[%d:%d], s%d offen offset:%d %s" % (rr("v", WR + 4 * n, 4), vL16, sBF, sBF + 3, sDc, (n & 3) * 1024, WT))
        q("buffer_store_dwordx4 %s, v%d, s[%d:%d], s%d offen %s" % (rr("v", WR + 20, 4), vL16, sBF, sBF + 3, sBo, WT))
    p(last)
    p(WL + "\ns_barrier")
    sQs = sTB
    def kvsetup(q):
        q("s_mov_b32 s%d, 0x%x\ns_mov_b32 s%d, s%d" % (sDa, QSCALE, sDa + 1, sDa))
        q("s_mov_b32 s%d, 0x%x" % (sL2, LOG2E))
        q("s_lshl_b32 s%d, s%d, 20" % (sT, sH))
        srd(q, sKV, ptr(D_WS), off_s=sT, off_imm=WS_KV)
        q("s_lshl_b32 s%d, s%d, 16" % (sT, sI))
        q("s_sub_u32 s%d, 0x100000, s%d" % (sKV + 2, sT))
        q("s_lshl_b32 s%d, s%d, 11" % (sW2k, sWave))
        q("v_add_u32 v%d, s%d, v%d" % (vDma, sW2k, vL16))
    kvld = lambda so, k: "buffer_load_dwordx4 v%d, s[%d:%d], s%d offen offset:%d %s lds" % (vDma, sKV, sKV + 3, so, k * 1024, WT)
    def kv0(t, half):
        o = t * U + half * 8192
        return [["s_add_u32 m0, s%d, 0x%x" % (sW2k, o), "s_mov_b32 s%d, 0x%x" % (sOff, o), kvld(sOff, 0)], kvld(sOff, 1)]
    sSc = sCB
    def aw_prep(q):
        q("s_lshr_b32 s%d, s%d, 1" % (sSc, sWave))
        q("s_lshl_b32 s%d, s%d, 13" % (sSc, sSc))
        q("s_add_u32 s%d, s%d, s%d" % (sSc, sSc, sW4))
        q("s_add_u32 s%d, s%d, %d" % (sSc, sSc, 4 * U + 8192))
        q("v_add_u32 v%d, s%d, v%d" % (t0, sSc, vL16))
        q("ds_write_b128 v%d, %s" % (t0, rr("a", aRAW, 4)))
        q("ds_write_b128 v%d, %s offset:1024" % (t0, rr("a", aRAW + 4, 4)))
        q("s_and_b32 s%d, s%d, 3" % (sT, sIdx))
        q("s_mul_i32 s%d, s%d, 160" % (sT, sT))
        q("s_sub_u32 s%d, s%d, s%d" % (sT, sSc, sT))
        q("s_addk_i32 s%d, 480" % sT)
        q("v_lshrrev_b32 v%d, 5, v%d" % (t0, vLane))
        q("v_bfe_u32 v%d, v%d, 2, 2" % (t1, vLane))
        q("v_lshl_add_u32 v%d, v%d, 2, v%d" % (t0, t0, t1))
        q("v_mul_u32_u24 v%d, 40, v%d" % (t0, t0))
        q("v_add_u32 v%d, s%d, v%d" % (t0, sT, t0))
        q("v_bfe_u32 v%d, v%d, 4, 1" % (t1, vLane))
        q("v_lshl_add_u32 v%d, v%d, 4, v%d" % (t2, t1, t0))
        q("v_bfe_u32 v%d, v%d, 1, 1" % (t1, vLane))
        q("v_lshl_add_u32 v%d, v%d, 3, v%d" % (t2, t1, t2))
        for tile in range(2):
            for u in range(4):
                q("ds_read_b64_tr_b16 %s, v%d offset:%d" % (rr("v", AW + tile * 8 + 2 * u, 2), t0 if tile else t2, u * 320 + tile * 32))
        q("v_bfe_u32 v%d, v%d, 2, 1" % (vWa, vLane))
        q("v_mul_u32_u24 v%d, 0x8000, v%d" % (vWa, vWa))
        q("v_lshl_or_b32 v%d, v%d, 16, v%d" % (vWa, vWa, vWa))
    fl = L(kvsetup) + kv0(0, 0) + kv0(1, 0) + [poll_check(2)] + L(bm1_loads) + L(aw_prep)
    mfl = q_mf(1)
    for k in range(32):
        p(mfl[k])
        p.add(fl[k * len(fl) // 32:(k + 1) * len(fl) // 32])
    st_()
    wo_chunk = L(wo_src)
    va = []
    for j in (2, 3, 0, 1):
        if os.environ.get("PKMUL", "1") == "1":
            va += ["v_pk_mul_f32 %s, %s, s[%d:%d]" % (rr("v", qacc(j, 0) + k, 2), rr("v", qacc(j, 0) + k, 2), sDa, sDa + 1) for k in range(0, 32, 2)]
        else:
            va += ["v_mul_f32 v%d, s%d, v%d" % (qacc(j, 0) + k, sDa, qacc(j, 0) + k) for k in range(32)]
        va += pack_tile(qacc(j, 0), Q(j, 0)) + pack_tile(qacc(j, 4), Q(j, 2))
    va += ["v_xor_b32 v%d, v%d, v%d" % (AW + k, AW + k, vWa) for k in range(16)]
    vm = kv0(2, 0) + kv0(0, 1) + kv0(1, 1) + kv0(3, 0) + kv0(4, 0) + kv0(5, 0) + kv0(2, 1) + kv0(3, 1) + [wo_chunk]
    for k, x in enumerate(vm):
        p.add([x] + va[k * len(va) // len(vm):(k + 1) * len(va) // len(vm)])
    st_()
    phi(aXF)
    fb = (lambda: st_()) if os.environ.get("FINEB") else (lambda: None)
    fb()
    for k in range(4):
        p("v_mov_b32 v%d, 0" % (RR + k))
    zero_o = lambda k, z: "%s %s, %s, %s, 0" % (MF, rr("a", 16 * k, 16), rr("v", z, 4), rr("v", z, 4))
    p("v_and_b32 v%d, 31, v%d" % (t2, vLane))
    p("s_mov_b32 s%d, s%d" % (sT, sSc))
    p("v_mul_u32_u24 v%d, 48, v%d" % (vWa, vLane))
    p("v_add_u32 v%d, s%d, v%d" % (vWa, sT, vWa))
    p("v_lshrrev_b32 v%d, 5, v%d" % (t1, vLane))
    p(zero_o(0, RR))
    p("v_bfe_u32 v%d, v%d, 2, 2" % (vRd, vLane))
    p("v_lshl_add_u32 v%d, v%d, 2, v%d" % (vRd, t1, vRd))
    p("v_mul_u32_u24 v%d, 48, v%d" % (vRd, vRd))
    p("v_bfe_u32 v%d, v%d, 4, 1" % (t1, vLane))
    p("v_lshl_add_u32 v%d, v%d, 5, v%d" % (vRd, t1, vRd))
    p("v_and_b32 v%d, 3, v%d" % (t1, vLane))
    p("v_lshl_add_u32 v%d, v%d, 3, v%d" % (vRd, t1, vRd))
    p("v_add_u32 v%d, s%d, v%d" % (vRd, sT, vRd))
    p(zero_o(1, RR))
    p("v_mov_b32 v%d, 0x3f803f80" % t0)
    p("v_cmp_eq_u32 vcc, 20, v%d" % t2)
    def tr_out():
        p("ds_write_b128 v%d, %s" % (vWa, rr("v", PH, 4)))
        p("ds_write_b128 v%d, %s offset:16" % (vWa, rr("v", PH + 4, 4)))
        p("ds_write_b64 v%d, %s offset:32" % (vWa, rr("v", PH + 8, 2)))
    def tr_in():
        for nn in range(2):
            for mm in range(2):
                for u in range(2):
                    p("ds_read_b64_tr_b16 %s, v%d offset:%d" % (rr("v", AF + (nn * 2 + mm) * 4 + 2 * u, 2), vRd, (16 * mm + 8 * u) * 48 + nn * 1536))
    def kv_mm(tt):
        for mm in range(2):
            for nn in range(2):
                c = rr("v", KC + nn * 16, 16)
                p("%s %s, %s, %s, %s" % (MF, c, rr("v", AF + (nn * 2 + mm) * 4, 4), rr("v", VF + tt * 8 + mm * 4, 4), "0" if (tt == 0 and mm == 0) else c))
    tr_out(); tr_in()
    for k in range(16):
        p("v_accvgpr_read_b32 v%d, a%d" % (VF + k, aVF + k))
        if k % 6 == 5:
            p(zero_o(2 + k // 6, RR))
    for k in range(16):
        p("v_cndmask_b32 v%d, v%d, v%d, vcc" % (VF + k, VF + k, t0))
        if k % 6 == 5:
            p(zero_o(4 + k // 6, RR))
    phi(aXF + 8, lambda: kv_mm(0))
    tr_out(); tr_in()
    p(zero_o(6, RR))
    p("v_lshrrev_b32 v%d, 5, v%d" % (t0, vLane))
    p("v_lshlrev_b32 v%d, 10, v%d" % (vV, t0))
    p("v_lshl_add_u32 v%d, v%d, 4, v%d" % (vV, t2, vV))
    p("v_and_b32 v%d, 15, v%d" % (vLim, vLane))
    p("v_lshrrev_b32 v%d, 4, v%d" % (t0, vLane))
    p("v_lshlrev_b32 v%d, 2, v%d" % (t0, t0))
    p("v_sub_u32 v%d, v%d, v%d" % (vLim, vLim, t0))
    p("v_mov_b32 v%d, 0x%x" % (vNeg, NEG))
    for j in range(4):
        p("v_mov_b32 v%d, 0" % (vL + j))
        p("v_mov_b32 v%d, 0x3f803f80" % (vOne + j))
    p(zero_o(7, RR))
    fb()
    R0 = 6 * U
    p("s_mul_i32 s%d, s%d, 6144" % (sT, sWave))
    p("s_add_u32 s%d, s%d, %d" % (sT, sT, R0))
    p("v_add_u32 v%d, s%d, v%d" % (t1, sT, vL16))
    kv_mm(1)
    p("s_lshl_b32 s%d, s%d, 3" % (sT, sIdx))
    p("s_add_u32 s%d, s%d, s%d" % (sT, sT, sXcd))
    p("s_lshl_b32 s%d, s%d, 13" % (sT, sT))
    srd(p, sY, ptr(D_WS), off_s=sT, off_imm=WS_KVP, nrec=5120)
    srd(p, sC, ptr(D_WS), off_imm=WS_CTX, nrec=16 * MB)
    p("s_lshl_b32 s%d, s%d, 10" % (sT, sWave))
    p("s_add_u32 s%d, s%d, %d" % (sT, sT, R0))
    p("v_mov_b32 v%d, v%d" % (vB, vL16))
    p("v_add_u32 v%d, 0x4000, v%d" % (vB + 1, vL16))
    for nn in range(2):
        for jj in range(3):
            p("ds_write_b128 v%d, %s offset:%d" % (t1, rr("v", KC + nn * 16 + jj * 4, 4), (nn * 3 + jj) * 1024))
    p("v_add_u32 v%d, s%d, v%d" % (t1, sT, vL16))
    fb()
    p("s_waitcnt vmcnt(16) lgkmcnt(0)\ns_barrier")
    st_()
    for j in range(8):
        p("ds_read_b128 %s, v%d offset:%d" % (rr("a", FB(j), 4), vB, j * 1024))
    RS = 128
    for k in range(2):
        for w in range(4):
            p("ds_read_b128 %s, v%d offset:%d" % (rr("v", RS + k * 16 + w * 4, 4), t1, w * 6144 + k * 4096))
    p("s_cmp_eq_u32 s%d, 3" % sWave)
    p("s_cselect_b32 s%d, 512, s%d" % (sSpin, sW2k))
    p("s_add_u32 s%d, s%d, 2560" % (sOff, sW2k))
    def mask_code(sl, tri, c=None):
        c = CI(2 * sl) if c is None else c
        r = ["s_sub_i32 s%d, s%d, s%d" % (sT, sNext, tri), "s_lshl_b32 s%d, s%d, 5" % (sT, sT), "v_subrev_u32 v%d, s%d, v%d" % (t0, sT, vLim)]
        for off, regs in ((0, (c, c + 12)), (16, (c + 4,)), (-16, (c + 8,))):
            r += ["v_cmp_gt_i32 s[%d:%d], %d, v%d" % (84 + 2 * k, 85 + 2 * k, off + k, t0) for k in range(4)]
            r += ["v_cndmask_b32 v%d, v%d, v%d, s[%d:%d]" % (b + k, b + k, vNeg, 84 + 2 * k, 85 + 2 * k) for b in regs for k in range(4)]
        return r
    xch = ["s_xor_b32 s%d, s%d, 1" % (sT, sWave), "s_lshl_b32 s%d, s%d, 13" % (sT, sT), "s_add_u32 s%d, s%d, 0x20000" % (sT, sT), "v_add_u32 v%d, s%d, v%d" % (t0, sT, vL16)] + \
          ["ds_read_b128 %s, v%d offset:%d" % (rr("v", Q(2, 0) + 4 * k, 4), t0, k * 1024) for k in range(8)] + \
          ["v_mov_b32 v%d, v%d" % (CI(2) + k, vMp + (k >> 3)) for k in range(16)] + \
          ["v_mov_b32 v%d, v%d" % (vM + 2, vMp), "v_mov_b32 v%d, v%d" % (vM + 3, vMp + 1), "s_xor_b32 s%d, s%d, 1" % (sTriB, sTriA), "s_mov_b32 s%d, 0" % sKeep, WL]
    def evt_check(kind):
        lab = p.newlabel("M_ev")
        back = "%s_r" % lab
        code = ["%s:" % lab]
        if kind == "x":
            code += ["s_cmp_eq_u32 s%d, s%d" % (sIt, sNlo), "s_cbranch_scc1 %s_x" % lab] + mask_code(1, sTriB) + ["s_branch " + back, "%s_x:" % lab] + xch + \
                    ["s_cmp_lt_u32 s%d, 32" % sIt, "s_cbranch_scc1 " + back]
        code += mask_code(1, sTriB, S(0, 2) if kind == "s0" else None)
        if kind == "l1":
            code += ["s_cmp_lt_u32 s%d, 32" % sIt, "s_cbranch_scc1 " + back]
        if kind not in ("lo", "s0"):
            code += mask_code(0, sTriA)
        tail.extend(code + ["s_branch " + back])
        return ["s_bitcmp1_b64 s[%d:%d], s%d" % (sMask, sMask + 1, sIt), "s_cbranch_scc1 %s" % lab, "%s:" % back]
    qk_mf = lambda par: ["%s %s, %s, %s, %s" % (M16, rr("v", S(par, j) + 4 * (f >> 2), 4), rr("a", FB(f), 4), rr("v", Q(j, f & 3), 4),
                                                 rr("v", (CI(j) if (f & 3) == 0 else S(par, j)) + 4 * (f >> 2), 4)) for f in range(8) for j in range(4)]
    pv_mf = lambda par: ["%s %s, %s, %s, %s" % (M16, rr("a", O(j, d), 4), rr("a", FB(8 + d), 4), rr("v", PP(par, j), 4), rr("a", O(j, d), 4)) for d in range(8) for j in range(4)]
    def allg(op, dst, tmp):
        return ["v_mov_b32 v%d, v%d" % (tmp, dst), "v_permlane32_swap_b32 v%d, v%d" % (dst, tmp), "%s v%d, v%d, v%d" % (op, dst, dst, tmp),
                "v_mov_b32 v%d, v%d" % (tmp, dst), "v_permlane16_swap_b32 v%d, v%d" % (dst, tmp), "%s v%d, v%d, v%d" % (op, dst, dst, tmp)]
    def rowmax(par, j, dst, tmp):
        s = S(par, j)
        return ["v_max3_f32 v%d, v%d, v%d, v%d" % (dst, s, s + 1, s + 2), "v_max3_f32 v%d, v%d, v%d, v%d" % (dst, dst, s + 3, s + 4),
                "v_max3_f32 v%d, v%d, v%d, v%d" % (dst, dst, s + 5, s + 6), "v_max_f32 v%d, v%d, v%d" % (dst, dst, s + 7)] + allg("v_max_f32", dst, tmp) + \
               ["v_add_f32 v%d, 0x%x, v%d" % (dst, f2u(BIAS), dst)]
    NG1 = int(os.environ.get("NG1", "9"))
    def sm_stream(par, part):
        allg_ = [(j, k) for k in range(4) for j in range(4)]
        groups = allg_[:NG1] if part == 0 else (allg_[NG1:] if part == 1 else allg_)
        out = []
        tm = lambda n: (TMP + (n % 4) * 2, TMP + (n % 4) * 2 + 1)
        cv = lambda n: "v_cvt_pk_bf16_f32 v%d, v%d, v%d" % ((PP(par, groups[n][0]) + groups[n][1],) + tm(n))
        for n, (j, k) in enumerate(groups):
            a, b = tm(n)
            out += ["v_exp_f32 v%d, v%d" % (a, S(par, j) + 2 * k)] + ([cv(n - 1)] if n else []) + ["v_exp_f32 v%d, v%d" % (b, S(par, j) + 2 * k + 1)]
        return out + [cv(len(groups) - 1)]
    NE = 4
    def sm_place(G, par, part, lo, hi, ne=0):
        st = sm_stream(par, part)
        ex = [x for x in st if x.startswith("v_exp")]
        cv = [x for x in st if x.startswith("v_cvt")]
        nc = 0
        for g in range(lo, hi + 1):
            ready = ne // 2
            left = 8 - G.load(g)
            rest = sum(max(0, 8 - G.load(x)) for x in range(g + 1, hi + 1))
            while True:
                todo = 8 * (len(ex) - ne) + 4 * (len(cv) - nc)
                force = todo > rest + max(left, 0) - 4 and left > -4 and g < hi or g == hi and todo
                if ne < len(ex) and (left >= 8 or (force and nc >= ready)) and ne // 2 - nc < 4 and not (ready - nc >= 3 and left >= 8 and ne % 2 == 0):
                    G.va[g].append(ex[ne]); ne += 1; left -= 8
                elif nc < (ready if g < hi else ne // 2) and (left >= 4 or force):
                    G.va[g].append(cv[nc]); nc += 1; left -= 4
                else:
                    break
        assert ne == len(ex) and nc == len(cv), (ne, nc)
    LT = lambda par, j: PP(par ^ 1, j)
    sum_mf = lambda par: ["%s %s, %s, %s, 0" % (M16, rr("v", LT(par, j), 4), rr("v", vOne, 4), rr("v", PP(par, j), 4)) for j in range(4)]
    need = lambda js: I("need", xrd=[("a", FB(j) + e) for j in js for e in range(4)])
    fread = lambda f, par: "ds_read_b128 %s, v%d offset:%d" % (rr("a", FB(f), 4), vB + par, f * 1024)
    ALL = (0, 1, 2, 3)
    def slow_site(par):
        lab = p.newlabel("M_sl")
        tail.extend(["%s:" % lab, call("M_slow%d" % par), "s_branch %s_r" % lab])
        chk = ["v_max3_f32 v%d, v%d, v%d, v%d" % (vU, LT(par, 0), LT(par, 1), LT(par, 2)), "v_max_f32 v%d, v%d, v%d" % (vU, vU, LT(par, 3)), "v_cmp_lt_f32 vcc, s%d, v%d" % (sThr, vU)]
        return chk, ["s_cbranch_vccnz %s" % lab, "%s_r:" % lab]
    accl = lambda par: ["v_add_f32 v%d, v%d, v%d" % (vL + j, vL + j, LT(par, j)) for j in range(4)]
    def iteration(par, barrier, ntile, kind, endc=(), endb=(), mid=()):
        qk = qk_mf(par ^ 1)
        SP = 24
        mf = qk[:SP] + sum_mf(par) + qk[SP:] + pv_mf(par)
        pos = lambda f: 4 * f + (4 if 4 * f >= SP else 0)
        G = Gaps16(68)
        LA = int(os.environ.get("LA", "14")); LV = int(os.environ.get("LV", "18")); BP = int(os.environ.get("BP", "53")); LG = ""
        for f in range(4, 16):
            G.put(pos(f) - (LA if f < 6 else LV), fread(f, (par ^ 1) if f < 8 else par))
        for f in range(2, 16, 2):
            G.nv[pos(f) - 1].insert(0, need([f, f + 1]))
        G.put(66, need([0, 1]))
        G.put(0, ["s_add_u32 s%d, s%d, 1" % (sIt, sIt)]); G.put(1, ["s_add_u32 s%d, s%d, 2" % (sNb, sNb)])
        G.put(3, ["s_max_i32 s%d, s%d, s%d" % (sNext, sIt, sNb)]); G.put(4, ["s_lshl_b32 s%d, s%d, 14" % (sRd, sNext)])
        G.put(5, ["s_and_b32 s%d, s%d, 0x1ffff" % (sRd, sRd)])
        G.put(64 - LV, "v_add_u32 v%d, s%d, v%d" % (vB + par, sRd, vL16))
        if barrier:
            G.put(BP, ["s_waitcnt vmcnt(%d)%s" % (4 + 4 * ntile, LG), "s_barrier"])
        for f in range(4):
            G.put(BP + 1 + 2 * f + (f >> 1) * 2, fread(f, par))
        slots = eval(os.environ.get("SL2", "[8, 16, 23, 28, 33, 40, 45, 50]")) if ntile == 2 else eval(os.environ.get("SL1", "[23, 28, 33, 45]"))
        for hh in range(2 * ntile):
            so = sGv if hh < ntile else sG
            g0, g1 = slots[2 * hh], slots[2 * hh + 1]
            G.put(g0 - 2, ["s_and_b32 s%d, s%d, 0x1ffff" % (sT, so)])
            G.put(g0 - 1, ["s_add_u32 m0, s%d, s%d" % (sT, sW2k)])
            G.put(g0, kvld(so, 0))
            G.put(g1, [kvld(so, 1), "s_add_u32 s%d, s%d, 0x4000" % (so, so)])
        chk, br = slow_site(par)
        G.put(35, br)
        G.put(64, evt_check(kind))
        for k, x in enumerate(mid):
            G.put(55 + k, x)
        G.put(67, list(endc))
        G.put(67, list(endb), post=True)
        sm_place(G, par, 1, 0, SP - 3)
        G.put(32, chk[:2]); G.put(34, chk[2])
        early = [x for x in sm_stream(par ^ 1, 0) if x.startswith("v_exp")][:NE]
        for g in range(SP - 2, 32):
            if early and G.load(g) == 0:
                G.put(g, early.pop(0))
        assert not early
        G.put(36, accl(par)[:2]); G.put(37, accl(par)[2:])
        sm_place(G, par ^ 1, 0, 38, 66, NE)
        if VERB:
            print("iteration", par, ntile, G.report(), sum(max(0, x - 8) for x in G.report()))
        out = [x if isinstance(x, I) else I(x) for x in G.emit(mf)]
        X = os.environ.get("X_DROP", "")
        if "d" in X: out = [x for x in out if x.kind != "dma"]
        if "b" in X: out = [x for x in out if x.mn != "s_barrier"]
        if "e" in X: out = [x for x in out if x.mn != "v_exp_f32"]
        if "c" in X: out = [x for x in out if x.mn != "v_cvt_pk_bf16_f32"]
        if "l" in X: out = [x for x in out if x.kind != "ds"]
        if "w" in X:
            for x in out:
                if x.kind == "ds": x.wr = set()
        if "v" in X: out = [x for x in out if not (x.kind == "branch" and (x.target.startswith("M_ev") or x.target.startswith("M_sl")))]
        p.add(out)

    pp, p = p, Prog()
    p("s_mov_b32 s%d, 0x%x" % (sThr, THRESH))
    p("s_lshl_b32 s%d, s%d, 2" % (sT, sI))
    p("s_add_u32 s%d, s%d, s%d" % (sTriB, sT, sWave))
    p("s_sub_u32 s%d, 60, s%d" % (sTriA, sT))
    p("s_add_u32 s%d, s%d, s%d" % (sTriA, sTriA, sWave))
    p("s_add_u32 s%d, s%d, 4" % (sNlo, sT))
    p("s_mov_b32 s%d, 0\ns_mov_b32 s%d, 3" % (sMask, sMask + 1))
    p("s_bitset1_b64 s[%d:%d], s%d" % (sMask, sMask + 1, sNlo))
    p("s_bitset1_b64 s[%d:%d], s%d" % (sMask, sMask + 1, sTriB))
    p("s_add_u32 s%d, s%d, 1" % (sT, sTriB))
    p("s_bitset1_b64 s[%d:%d], s%d" % (sMask, sMask + 1, sT))
    if os.environ.get("X_NOHOOK"):
        p("s_mov_b64 s[%d:%d], 0" % (sMask, sMask + 1))
    p("s_and_b32 s%d, s%d, 1" % (sNb, sWave))
    p("s_sub_u32 s%d, s%d, s%d" % (sNb, sNb, sNlo))
    p("s_add_u32 s%d, s%d, 2" % (sNb, sNb))
    p("s_mov_b32 s%d, 0\ns_mov_b32 s%d, 0\ns_mov_b32 s%d, 1.0" % (sIt, sNext, sKeep))
    p("s_mov_b32 s%d, 0x%x\ns_mov_b32 s%d, 0x%x" % (sG, 6 * U, sGv, 4 * U + 8192))

    p("s_lshr_b32 s%d, s%d, 1" % (sT, sXcd))
    p("s_lshl_b32 s%d, s%d, 6" % (sT, sT))
    p("s_lshr_b32 s%d, s%d, 4" % (sT2, sIdx))
    p("s_add_u32 s%d, s%d, s%d" % (sT, sT, sT2))
    p("v_and_b32 v%d, 31, v%d" % (t0, vLane))
    p("v_lshl_add_u32 v%d, v%d, 1, s%d" % (t0, t0, sT))
    p("s_lshl_b32 s%d, s%d, 3" % (sT, sIdx))
    p("v_and_b32 v%d, 7, v%d" % (t1, vLane))
    p("v_add_u32 v%d, s%d, v%d" % (t1, sT, t1))
    p("v_cmp_gt_u32 vcc, 32, v%d" % vLane)
    p("v_cndmask_b32 v%d, v%d, v%d, vcc" % (vPoll, t0, t1))
    p("s_andn2_b32 s%d, s2, 0x38" % sT)
    p("v_and_b32 v%d, 7, v%d" % (t1, vLane))
    p("v_lshl_add_u32 v%d, v%d, 3, s%d" % (t1, t1, sT))
    p("v_lshrrev_b32 v%d, 4, v%d" % (t0, vLane))
    p("v_cmp_eq_u32 vcc, 1, v%d" % t0)
    p("v_cndmask_b32 v%d, v%d, v%d, vcc" % (vPoll, vPoll, t1))
    p("v_cndmask_b32 v%d, 3, 4, vcc" % (vPoll + 1))
    p("v_lshlrev_b32 v%d, 7, v%d" % (vPoll, vPoll))
    p("s_lshl_b32 s%d, s%d, 1" % (sCnt, sI))
    p("s_add_u32 s%d, s%d, 1" % (sCnt, sCnt))
    p("s_lshl_b32 s%d, s%d, 9" % (sT, sWave))
    p("s_add_u32 s%d, s%d, %d" % (sT, sT, 7 * U + 8192))
    p("v_lshl_add_u32 v%d, v%d, 3, s%d" % (t2, vLane, sT))
    setup0, p = p.ins, pp
    G = Gaps16(32)
    for k in range(32):
        G.put(k, setup0[k * len(setup0) // 32:(k + 1) * len(setup0) // 32], post=True)
    red = []
    for k in range(2):
        b = RS + k * 16
        for e in range(4):
            red += ["v_add_f32 v%d, v%d, v%d" % (b + e, b + e, b + 4 + e), "v_add_f32 v%d, v%d, v%d" % (b + 8 + e, b + 8 + e, b + 12 + e)]
        red += ["v_add_f32 v%d, v%d, v%d" % (b + e, b + e, b + 8 + e) for e in range(4)]
    G.stream(red, 2, 16)
    for k in range(2):
        G.put(18 + 2 * k, "buffer_store_dwordx4 %s, v%d, s[%d:%d], s%d offen %s" % (rr("v", RS + k * 16, 4), vV, sY, sY + 3, sOff if k else sSpin, WT))
    G.spread([fread(f, 1) for f in range(4)], 22, 31)
    p.add(G.emit([x.replace(", " + x.split(", ")[-1], ", 0") if (k & 15) < 4 else x for k, x in enumerate(qk_mf(0))]))
    p.add(evt_check("s0"))
    p("s_mov_b32 s%d, 1\ns_mov_b32 s%d, 1" % (sIt, sNext))
    rm = [rowmax(0, j, vU + 2 * j, vU + 2 * j + 1) + ["v_sub_f32 v%d, 0, v%d" % (vM + j, vU + 2 * j)] for j in range(4)]
    p.add([rm[j][k] for k in range(len(rm[0])) for j in range(4)])
    p("ds_write_b64 v%d, %s" % (t2, rr("v", vM, 2)))
    for j in range(4):
        for k in range(0, 8, 2):
            p(pk_subb(S(0, j) + k, S(0, j) + k, vU + 2 * j))
            p("v_pk_mov_b32 %s, %s, %s op_sel:[%d,%d]" % (v2(CI(j) + k), v2((vM + j) & ~1), v2((vM + j) & ~1), j & 1, j & 1))
    fb()
    p.add(evt_check("lo"))
    p("s_waitcnt vmcnt(2)")
    wo_out(p)
    p.add(sm_stream(0, 0))
    wo_st(p)
    fb()
    p("v_xor_b32 v%d, 0x200, v%d" % (t2, t2))
    p("s_lshl_b32 s%d, s%d, 13" % (sT, sWave))
    p("s_add_u32 s%d, s%d, 0x20000" % (sT, sT))
    p("v_add_u32 v%d, s%d, v%d" % (t0, sT, vL16))
    p(WL + "\ns_barrier")
    p("ds_read_b64 %s, v%d" % (rr("v", vMp, 2), t2))
    for k in range(8):
        p("ds_write_b128 v%d, %s offset:%d" % (t0, rr("v", Q(0, 0) + 4 * k, 4), k * 1024))
    st_()
    dec = ["s_sub_u32 s%d, s%d, 1" % (sCnt, sCnt)]
    HOOKS = (3, 5, 7, 9, 13, 15) + ((29,) if CODEPF & 8 else ())
    HM = sum(1 << e for e in HOOKS)
    hk = ["s_mov_b32 s%d, 0x%x" % (sT, HM), "s_bitcmp1_b32 s%d, s%d" % (sT, sIt)]
    chain = lambda hs: [x for e in hs for x in ("s_cmp_eq_u32 s%d, %d" % (sIt, e), "s_cbranch_scc1 M_hook%d" % e)]
    def setcont(lab):
        p("s_getpc_b64 s[%d:%d]\n%s_pc:" % (sCont, sCont + 1, lab))
        p("s_add_u32 s%d, s%d, %s-%s_pc\ns_addc_u32 s%d, s%d, 0" % (sCont, sCont, lab, lab, sCont + 1, sCont + 1))
    p.add(kv_store(0, 4) + kv_store(1, 4))
    setcont("M_l1")
    p("M_l1:")
    iteration(0, False, 1, "x")
    e1 = dec + ["s_cselect_b32 s%d, M_l1x-M_l1, 0" % sT, "s_cselect_b32 s%d, -1, 0x%x" % (sT2, HM),
                "s_add_u32 s%d, s%d, s%d" % (sCont, sCont, sT), "s_addc_u32 s%d, s%d, 0" % (sCont + 1, sCont + 1)]
    iteration(1, True, 1, "l1", ["s_bitcmp1_b32 s%d, s%d" % (sT2, sIt)], ["s_cbranch_scc0 M_l1"], mid=e1)
    p.add(chain(HOOKS))
    p("M_l1x:")
    st_()
    def ctx_base(sblk):
        p("s_lshl_b32 s%d, s%d, 20" % (sT, sblk))
        p("s_lshl_b32 s%d, s%d, 15" % (sT2, sH))
        p("s_add_u32 s%d, s%d, s%d" % (sT, sT, sT2))
        p("s_add_u32 s%d, s%d, s%d" % (sCb, sT, sW2k))
    ctx_store = lambda r, jj: "buffer_store_dwordx4 %s, v%d, s[%d:%d], s%d offen offset:%d %s" % (rr("v", r, 4), vL16, sC, sC + 3, sCb, jj * 1024, WT)
    ctx_base(sI)
    for jj in range(2):
        p("v_rcp_f32 v%d, v%d" % (vU + 2 + jj, vL + 2 + jj))
        p("v_mov_b32 v%d, 0" % (vL + 2 + jj))
    Z = PP(1, 0)
    for k in range(4):
        p("v_mov_b32 v%d, 0" % (Z + k))
    for ds in range(4):
        T = S(1, 0) + (ds & 1) * 16
        for jj in range(2):
            for k in range(8):
                p("v_accvgpr_read_b32 v%d, a%d" % (T + 8 * jj + k, O(2 + jj, 2 * ds) + k))
        for jj in range(2):
            for k in range(0, 8, 2):
                p(pk_mulb(T + 8 * jj + k, T + 8 * jj + k, vU + 2 + jj))
        p.add(pack_tile(T, T))
        if ds & 1:
            p(zero_o(4 + (ds >> 1), Z)); p(zero_o(6 + (ds >> 1), Z))
        p(ctx_store(T, 0)); p(ctx_store(T + 4, 1))
        if ds < 3:
            p("s_add_u32 s%d, s%d, 0x2000" % (sCb, sCb))
    for hh in range(2):
        so = sG
        p.add(["s_and_b32 s%d, s%d, 0x1ffff" % (sT, so), "s_add_u32 m0, s%d, s%d" % (sT, sW2k), kvld(so, 0), kvld(so, 1), "s_add_u32 s%d, s%d, 0x4000" % (so, so)])
    p("s_mov_b32 s%d, 1.0" % sKeep)
    p("s_lshl_b32 s%d, s%d, 1" % (sCnt, sI))
    p("s_sub_u32 s%d, 14, s%d" % (sCnt, sCnt))
    st_()
    setcont("M_l2")
    p("M_l2:")
    iteration(0, True, 2, "l2", dec, ["s_cbranch_scc1 M_l2x"])
    iteration(1, True, 2, "l2", hk, ["s_cbranch_scc0 M_l2"])
    back = jump("s_setpc_b64 s[%d:%d]" % (sCont, sCont + 1), ["M_l1", "M_l1x", "M_l2"])
    vP = vA
    def bm2_loads(q):
        bm_frag_loads(q, 0, aXQ)
        q("s_lshl_b32 s%d, s%d, 16" % (sT, sIdx))
        q("s_lshl_b32 s%d, s%d, 14" % (sT2, sWave))
        q("s_add_u32 s%d, s%d, s%d" % (sT, sT, sT2))
        srd(q, sO, ptr(D_WS), off_s=sT, off_imm=WS_KVP, nrec=16384)
        for j in range(2):
            for k in range(5):
                if k in (0, 4):
                    q("s_mov_b32 s%d, %d" % (sT, j * 8192 + k * 1024))
                q("buffer_load_dwordx4 %s, v%d, s[%d:%d], s%d offen offset:%d %s" % (rr("a", aPA + j * 20 + k * 4, 4), vL16, sO, sO + 3, sT, (k & 3) * 1024, WT))
    jobs = {3: publish(3) + kv_store(0, 5) + kv_store(1, 5), 5: poll_load("KV") + kv_store(0, 6) + kv_store(1, 6), 7: poll_check("KV", 3) + kv_store(0, 7) + kv_store(1, 7),
            9: publish(4) + L(xclear0) + xclear(1), 13: poll_load(3) + xclear(2), 15: poll_check(3) + xclear(3) + L(bm2_loads), 29: code_touch(vKV, 8)}
    p.add(chain(HOOKS[:-1]))
    for e in reversed(HOOKS):
        p("M_hook%d:" % e)
        ins = [x if isinstance(x, I) else I(x) for x in jobs[e]]
        for x in ins:
            if x.kind == "vmem":
                x.wr = set()
        p.add(ins + [back])
    p("M_l2x:")
    for f in range(8, 16):
        p(fread(f, 1))
    chk, br = slow_site(1)
    p.add(sm_stream(1, 1) + sum_mf(1) + chk + br + accl(1))
    p("s_waitcnt vmcnt(0) lgkmcnt(0)\ns_barrier")
    p.add(publish(5))
    mfl = pv_mf(1)
    mfl = [mfl[d * 4 + j] for jj in (2, 0) for d in range(8) for j in (jj, jj + 1)]
    sKq, sMb, sCc, sGc, sGw, sGw2, sWs, sRs, sW5, sDl = range(37, 47)
    sPC, sPW, sXO, sOut = sBO, sW2, sO, sW
    sIc, sIw = sKo, sNext
    vDw, vC, vWf = 3, 4, 8
    SZ = 36864
    odd = "s_bitcmp1_b32 s%d, 0" % sXcd
    pp, p = p, Prog()
    p("s_lshr_b32 s%d, s%d, 1" % (sKq, sXcd))
    p("s_lshr_b32 s%d, s%d, 3" % (sCc, sIdx))
    p("s_sub_u32 s%d, 15, s%d" % (sT, sI))
    p(odd)
    p("s_cselect_b32 s%d, s%d, s%d" % (sMb, sT, sI))
    p("s_cselect_b32 s%d, 6, 5" % sT2)
    p("v_mov_b32 v%d, s%d" % (vPoll + 1, sT2))
    p("s_and_b32 s%d, s2, 0x3e" % sT)
    p("v_bfe_u32 v%d, v%d, 1, 2" % (t1, vLane))
    p("v_lshl_add_u32 v%d, v%d, 6, s%d" % (t1, t1, sT))
    p("v_and_b32 v%d, 1, v%d" % (t2, vLane))
    p("v_add_lshl_u32 v%d, v%d, v%d, 7" % (vPoll, t1, t2))
    p("s_lshl_b32 s%d, s%d, 20" % (sT, sMb))
    p("s_lshl_b32 s%d, s%d, 18" % (sT2, sKq))
    p("s_add_u32 s%d, s%d, s%d" % (sT, sT, sT2))
    srd(p, sPC, ptr(D_WS), off_s=sT, off_imm=WS_CTX, nrec=32 * 8192)
    p("s_lshl_b32 s%d, s%d, 2" % (sT, sCc))
    p("s_add_u32 s%d, s%d, s%d" % (sT, sT, sKq))
    p("s_mul_i32 s%d, s%d, %d" % (sT, sT, 32 * 10240))
    srd(p, sPW, ptr(D_WS), off_s=sT, off_imm=WS_WOA, nrec=32 * 10240)
    p("s_mul_i32 s%d, s%d, 5120" % (sW5, sWave))
    p("v_add_u32 v%d, s%d, v%d" % (vDw, sW5, vL16))
    p("s_add_u32 s%d, s%d, 0x4000" % (sW5, sW5))
    p("s_movk_i32 s%d, 0x4000\ns_movk_i32 s%d, 0x5000" % (sIc, sIw))
    ldc = lambda k: "buffer_load_dwordx4 v%d, s[%d:%d], s%d offen offset:%d %s lds" % (vDma, sPC, sPC + 3, sGc, k * 1024, WT)
    ldw = lambda so, k: "buffer_load_dwordx4 v%d, s[%d:%d], s%d offen offset:%d %s lds" % (vDw, sPW, sPW + 3, so, k * 1024, WT)
    sSt, sBw = sDa, sDb
    dPos = ["s_mul_i32 s%d, s%d, s%d" % (sGc, sSt, sIc), "s_mul_i32 s%d, s%d, s%d" % (sGw, sSt, sIw), "s_add_u32 s%d, s%d, s%d" % (sGw, sGw, sBw),
            "s_add_u32 s%d, s%d, 0x1000" % (sGw2, sGw)]
    dC = [["s_add_u32 m0, s%d, s%d" % (sWs, sW4)]] + [ldc(k) for k in range(4)]
    dW = [["s_add_u32 m0, s%d, s%d" % (sWs, sW5)]] + [ldw(sGw, k) for k in range(4)] + [["s_add_u32 m0, m0, 0x1000"], ldw(sGw2, 0)]
    dAdv = ["s_add_u32 s%d, s%d, 1" % (sSt, sSt), "s_and_b32 s%d, s%d, 15" % (sSt, sSt),
            "s_add_u32 s%d, s%d, %d" % (sWs, sWs, SZ), "s_cmp_eq_u32 s%d, %d" % (sWs, 4 * SZ), "s_cselect_b32 s%d, 0, s%d" % (sWs, sWs)]
    p("s_and_b32 s%d, s%d, 7" % (sSt, sH))
    p("s_lshl_b32 s%d, s%d, 1" % (sSt, sSt))
    p("s_mov_b32 s%d, 0\ns_mov_b32 s%d, 0" % (sWs, sBw))
    p("v_add_u32 v%d, 0x20000, v%d" % (vKV, vDw))
    setup, p = p.ins, pp
    wpre = []
    for k in range(3):
        wpre += [(dAdv if k else []) + dPos + dW[0]] + dW[1:]
    Lr, SUM, KA, N = 96, 176, 200, 96
    vMw, vLw = vB, vB + 1
    p("s_mul_i32 s%d, s%d, %d" % (sT, sWave, SZ))
    p("v_add_u32 v%d, s%d, v%d" % (vMw, sT, vL16))
    p("v_lshlrev_b32 v%d, 4, v0" % vLw)
    p("v_add_u32 v%d, 0x%x, v%d" % (vLw, 124 * 1024, vLw))
    p("v_mov_b32 v%d, v%d\nv_mov_b32 v%d, v%d" % (vOne, vM + 2, vOne + 1, vM + 3))
    G = Gaps16(32)
    G.put(0, "ds_write_b128 v%d, %s" % (vLw, rr("v", vL + 2, 4)))
    for k in range(16):
        G.put(16 + k, "ds_write_b128 v%d, %s offset:%d" % (vMw, rr("a", O(2 + (k & 1), k >> 1), 4), k * 1024))
    for k in range(30):
        G.put(k, setup[k * len(setup) // 30:(k + 1) * len(setup) // 30], post=True)
    G.stream(["v_accvgpr_read_b32 v%d, a%d" % (Lr + k, aPA + k) for k in range(40)] + ["v_add_f32 v%d, v%d, v%d" % (Lr + e, Lr + e, Lr + 20 + e) for e in range(20)], 0, 31)
    p.add(G.emit(mfl))
    st_()
    for k in range(5):
        p("ds_write_b128 v%d, %s offset:%d" % (vKV, rr("v", Lr + 4 * k, 4), k * 1024))
    p("v_add_u32 v%d, s%d, v%d" % (vDma, sW4, vL16))
    p("v_and_b32 v%d, 31, v%d" % (t2, vLane))
    p("v_min_u32 v%d, 20, v%d" % (t2, t2))
    p("v_and_b32 v%d, 32, v%d" % (t1, vLane))
    p("v_add_lshl_u32 v%d, v%d, v%d, 4" % (vP, t1, t2))
    p("v_add_u32 v%d, 0x20000, v%d" % (vP, vP))
    p("s_xor_b32 s%d, s%d, 1" % (sT, sWave))
    p("s_mul_i32 s%d, s%d, %d" % (sT, sT, SZ))
    p("v_add_u32 v%d, s%d, v%d" % (t0, sT, vL16))
    p("v_xor_b32 v%d, 0x400, v%d" % (vLw, vLw))
    p("s_sub_u32 s%d, 15, s%d" % (sOff, sI))
    ctx_base(sOff)
    p(WL + "\ns_barrier")
    XO = 144
    p("ds_read_b128 %s, v%d" % (rr("v", TMP, 4), vLw))
    for k in range(16):
        p("ds_read_b128 %s, v%d offset:%d" % (rr("v", XO + (k >> 2) * 16 + (k & 1) * 8 + ((k >> 1) & 1) * 4, 4), t0, k * 1024))
    pp, p = p, Prog()
    for jj in range(2):
        fa, fb = vU + 2 * jj, vU + 2 * jj + 1
        p("v_min_f32 v%d, v%d, v%d" % (t1, vM + jj, TMP + 2 + jj))
        p("v_sub_f32 v%d, v%d, v%d" % (fa, t1, vM + jj))
        p("v_sub_f32 v%d, v%d, v%d" % (fb, t1, TMP + 2 + jj))
        p("v_exp_f32 v%d, v%d" % (fa, fa))
        p("v_exp_f32 v%d, v%d" % (fb, fb))
        p("v_mul_f32 v%d, v%d, v%d" % (vL + jj, vL + jj, fa))
        p("v_fmac_f32 v%d, v%d, v%d" % (vL + jj, TMP + jj, fb))
        p("v_rcp_f32 v%d, v%d" % (t1, vL + jj))
        p("v_mul_f32 v%d, v%d, v%d" % (fa, fa, t1))
        p("v_mul_f32 v%d, v%d, v%d" % (fb, fb, t1))
    KP = lambda ds: (32, 40, 212, 220)[ds]
    for ds in range(4):
        T = 48 + (ds & 1) * 16
        for jj in range(2):
            for k in range(8):
                p("v_accvgpr_read_b32 v%d, a%d" % (T + 8 * jj + k, O(jj, 2 * ds) + k))
        for jj in range(2):
            for k in range(0, 8, 2):
                p(pk_mulb(T + 8 * jj + k, T + 8 * jj + k, vU + 2 * jj))
            for k in range(0, 8, 2):
                p(pk_fmab(T + 8 * jj + k, XO + ds * 16 + jj * 8 + k, vU + 2 * jj + 1, T + 8 * jj + k))
        p.add(pack_tile(T, KP(ds)))
        p(ctx_store(KP(ds), 0)); p(ctx_store(KP(ds) + 4, 1))
        if ds < 3:
            p("s_addk_i32 s%d, 0x2000" % sCb)
    epi, p = p.ins, pp
    n1 = len(epi) * 2 // 3
    for k, x in enumerate(wpre):
        p.add([x] + epi[k * n1 // len(wpre):(k + 1) * n1 // len(wpre)])
    p.add(epi[n1:])
    st_()
    for w in range(4):
        for k in range(5):
            p("ds_read_b128 %s, v%d offset:%d" % (rr("v", Lr + w * 20 + 4 * k, 4), vP, w * 5120 + k * 1024))
    phi(aXQ)
    sums = []
    for e in range(0, 20, 2):
        sums += [pk_add(Lr + e, Lr + e, Lr + 20 + e), pk_add(Lr + 40 + e, Lr + 40 + e, Lr + 60 + e)]
    sums += [pk_add(SUM + e, Lr + e, Lr + 40 + e) for e in range(0, 20, 2)]
    sums += ["v_cvt_pk_bf16_f32 v%d, v%d, v%d" % (KA + k, SUM + 2 * k, SUM + 2 * k + 1) for k in range(10)]
    sums += ["v_mov_b32 v%d, 0" % r for r in (KA + 10, KA + 11, PH + 10, PH + 11)]
    p.add(sums)
    def num(N):
        for u in range(3):
            p("%s %s, %s, %s, %s" % (MF, rr("v", N, 16), rr("v", KA + 4 * u, 4), rr("v", PH + 4 * u, 4), rr("v", N, 16) if u else "0"))
    num(N)
    p("s_waitcnt vmcnt(0) lgkmcnt(0)\ns_barrier")
    p.add(publish(6))
    p(odd + "\ns_cbranch_scc0 M_own0")
    p("v_add_u32 v%d, s%d, v%d" % (t2, sW2k, vL16))
    for ds in range(4):
        for jj in range(2):
            p("ds_write_b128 v%d, %s offset:%d" % (t2, rr("v", KP(ds) + 4 * jj, 4), (ds >> 1) * SZ + (ds & 1) * 8192 + jj * 1024))
    p("s_branch M_own1\nM_own0:")
    p("s_and_b32 s%d, s%d, 7" % (sGc, sH))
    p("s_lshl_b32 s%d, s%d, 15" % (sGc, sGc))
    p.add(["s_mov_b32 m0, s%d" % sW4] + dC[1:] + ["s_add_u32 m0, m0, %d" % SZ, "s_addk_i32 s%d, 0x4000" % sGc] + dC[1:] + dPos[:1])
    p("M_own1:")
    phi(aXQ + 8)
    p.add(poll_load("A"))
    num(N + 32)
    p("s_lshr_b32 s%d, s%d, 1" % (sT, sTT))
    p("s_mul_i32 s%d, s%d, 81920" % (sT, sT))
    srd(p, sY, ptr(D_WS), off_s=sT, off_imm=WS_OB, nrec=81920)
    vO = vA
    p("v_and_b32 v%d, 15, v%d" % (t0, vLane))
    p("v_bfe_u32 v%d, v%d, 4, 1" % (t2, vLane))
    p("v_lshlrev_b32 v%d, 10, v%d" % (t2, t2))
    p("v_lshrrev_b32 v%d, 5, v%d" % (t1, vLane))
    p("v_lshl_add_u32 v%d, v%d, 4, v%d" % (vO, t0, t2))
    p("v_lshl_add_u32 v%d, v%d, 8, v%d" % (vO, t1, vO))
    p("v_lshl_add_u32 v%d, v%d, 3, v%d" % (vO + 1, t0, t2))
    p("v_lshl_add_u32 v%d, v%d, 31, v%d" % (vO + 1, t1, vO + 1))
    p("s_lshr_b32 s%d, s%d, 3" % (sT, sIdx))
    p("s_mul_i32 s%d, s%d, 20480" % (sT, sT))
    p("s_bfe_u32 s%d, s%d, 0x20001" % (sT2, sIdx))
    p("s_and_b32 s%d, s%d, 1" % (sSpin, sIdx))
    p("s_lshl_b32 s%d, s%d, 7" % (sOff, sI))
    p("s_add_u32 s%d, s%d, s%d" % (sOff, sOff, sT))
    p("s_addk_i32 s%d, 0x4000" % sOff)
    p("s_lshl_b32 s%d, s%d, 12" % (sT2, sT2))
    p("s_lshl_b32 s%d, s%d, 9" % (sSpin, sSpin))
    p("s_add_u32 s%d, s%d, s%d" % (sT, sT, sT2))
    p("s_add_u32 s%d, s%d, s%d" % (sT, sT, sSpin))
    for tt in range(2):
        n0 = N + 32 * tt
        p("v_add_f32 v%d, 0x%x, v%d" % (n0 + 12, f2u(1e-6), n0 + 12))
        p("v_rcp_f32 v%d, v%d" % (n0 + 12, n0 + 12))
        for k in range(0, 12, 2):
            p(pk_mulb(n0 + k, n0 + k, n0 + 12))
        for k in range(6):
            p("v_cvt_pk_bf16_f32 v%d, v%d, v%d" % (n0 + 16 + k, n0 + 2 * k, n0 + 2 * k + 1))
        p("buffer_store_dwordx4 %s, v%d, s[%d:%d], s%d offen offset:%d %s" % (rr("v", n0 + 16, 4), vO, sY, sY + 3, sT, tt * 2048, WT))
        if os.environ.get("X_OB") == "1":
            p("buffer_store_dwordx4 %s, v%d, s[%d:%d], s%d offen offset:%d %s" % (rr("v", n0 + 16, 4), vO, sY, sY + 3, sT, tt * 2048, WT))
        else:
            p("buffer_store_dwordx2 %s, v%d, s[%d:%d], s%d offen offset:%d %s" % (rr("v", n0 + 20, 2), vO + 1, sY, sY + 3, sOff, tt * 2048, WT))
    MF16 = "v_mfma_f32_16x16x32_bf16"
    PA = 160
    pacc = lambda q, n: PA + (q * 5 + n) * 4
    pfr = lambda st, i: st * 36 + i * 4
    aOB = 80
    p("s_lshr_b32 s%d, s%d, 1" % (sT, sWave))
    p("s_lshl_b32 s%d, s%d, 2" % (sT, sT))
    p("s_add_u32 s%d, s%d, s%d" % (sT, sT, sKq))
    p("s_lshl_b32 s%d, s%d, 10" % (sT, sT))
    p("v_add_u32 v%d, s%d, v%d" % (vC, sT, vL16))
    for qq in range(1, 4):
        p("v_xor_b32 v%d, 0x%x, v%d" % (vC + qq, qq << 10, vC))
    p("s_and_b32 s%d, s%d, 1" % (sT, sWave))
    p("s_mul_i32 s%d, s%d, 5120" % (sT, sT))
    p("s_add_u32 s%d, s%d, 0x4000" % (sT, sT))
    p("v_add_u32 v%d, s%d, v%d" % (vWf, sT, vL16))
    p("s_mov_b32 s%d, 0" % sRs)
    for k in range(4):
        p("v_mov_b32 v%d, 0" % (32 + k))
    for k in range(5):
        p("%s %s, v[32:35], v[32:35], 0" % (MF, rr("v", PA + 16 * k, 16)))
    def p_reads(st):
        c = ["ds_read_b128 %s, v%d offset:%d" % (rr("a", pfr(st, qq), 4), vC + qq, st * 8192) for qq in range(4)]
        w = ["ds_read_b128 %s, v%d offset:%d" % (rr("a", pfr(st, 4 + n), 4), vWf, st * 10240 + n * 1024) for n in range(5)]
        return [w[0]] + c + w[1:]
    p_mf = lambda st: ["%s %s, %s, %s, %s" % (MF16, rr("v", pacc(qq, n), 4), rr("a", pfr(st, 4 + n), 4), rr("a", pfr(st, qq), 4), rr("v", pacc(qq, n), 4)) for n in range(5) for qq in range(4)]
    G = Gaps(40)
    G.spread(p_reads(1), 0, 12)
    G.put(19, ["s_waitcnt vmcnt(13) lgkmcnt(0)", "s_barrier"])
    G.put(13, ["s_add_u32 s%d, s%d, 1" % (sRs, sRs), "s_and_b32 s%d, s%d, 3" % (sRs, sRs)])
    G.put(14, ["s_mov_b32 s%d, %d" % (sDl, SZ), "s_cselect_b32 s%d, s%d, 0x%x" % (sDl, sDl, u32(-3 * SZ))])
    G.spread(["v_add_u32 v%d, s%d, v%d" % (r, sDl, r) for r in (vWf, vC, vC + 1, vC + 2, vC + 3)], 15, 18)
    G.spread(p_reads(0), 20, 32)
    for k, x in enumerate(dC):
        G.put(max(0, 4 * k - 1) + (1 if k == 0 else 0), x)
    for k, x in zip((20, 21, 25, 29, 33, 36, 37), dW):
        G.put(k, x)
    G.spread(dAdv, 30, 35); G.put(38, dPos); G.put(39, ["s_sub_u32 s%d, s%d, 1" % (sNlo, sNlo), WL, "s_cbranch_scc0 M_p3"])
    o3 = [x if isinstance(x, I) else I(x) for x in G.emit(p_mf(0) + p_mf(1))]
    X3 = os.environ.get("X_P3", "")
    if "m" in X3: o3 = [x for x in o3 if x.kind not in ("mfma", "ds")]
    if "d" in X3: o3 = [x for x in o3 if x.kind != "dma"]
    if "s" in X3: o3 = [I(x.text.replace(" sc1", "")) if x.kind == "dma" else x for x in o3]
    tail.extend(["M_p3:"] + o3 + [ret])
    p.add(poll_check("A"))
    p.add(dC + dAdv + dPos)
    st_()
    p("s_waitcnt vmcnt(8) lgkmcnt(0)\ns_barrier")
    st_()
    p.add(p_reads(0))
    p(WL)
    def run(n):
        p("s_mov_b32 s%d, %d" % (sNlo, n - 1))
        p(call("M_p3"))
        if os.environ.get("FINE3") and n != 14:
            st_()
    xr = lambda qq: (PA + qq * 20, PA + qq * 20 + 4, PA + qq * 20 + 8)
    def xrecv(q):
        for qq in range(1, 4):
            xfer(q, "load", qq, sXO, vDw, vC, xr(qq))
    for _ in range(3 if os.environ.get("FINE3") else 1):
        run(1 if os.environ.get("FINE3") else 3)
    p.add(publish(7))
    run(5)
    p("s_lshr_b32 s%d, s%d, 2" % (sT, sIdx))
    p("s_mul_i32 s%d, s%d, 5" % (sT, sT))
    p("v_mul_u32_u24 v%d, 0x3334, v%d" % (t1, vLane))
    p("v_lshrrev_b32 v%d, 16, v%d" % (t1, t1))
    p("v_mul_u32_u24 v%d, 35, v%d" % (t1, t1))
    p("v_add3_u32 v%d, v%d, v%d, s%d" % (t0, t1, vLane, sT))
    p("s_andn2_b32 s%d, s2, 6" % sT)
    p("v_and_b32 v%d, 3, v%d" % (t1, vLane))
    p("v_lshl_add_u32 v%d, v%d, 1, s%d" % (t1, t1, sT))
    p("v_cmp_gt_u32 vcc, 25, v%d" % vLane)
    p("v_cndmask_b32 v%d, v%d, v%d, vcc" % (t0, t1, t0))
    p("v_and_b32 v%d, 31, v%d" % (t1, vLane))
    p("v_lshl_add_u32 v%d, v%d, 3, s%d" % (t1, t1, sXcd))
    p("v_cmp_gt_u32 vcc, 32, v%d" % vLane)
    p("v_cndmask_b32 v%d, v%d, v%d, vcc" % (vPoll, t1, t0))
    p("v_lshlrev_b32 v%d, 7, v%d" % (vPoll, vPoll))
    p("v_cndmask_b32 v%d, 7, 5, vcc" % (vPoll + 1))
    p.add(poll_load("B"))
    p("s_lshl_b32 s%d, s%d, 2" % (sTT, sXcd))
    p("s_and_b32 s%d, s%d, 3" % (sT, sIdx))
    p("s_add_u32 s%d, s%d, s%d" % (sTT, sTT, sT))
    p("s_mul_i32 s%d, s%d, 81920" % (sT, sTT))
    srd(p, sY, ptr(D_WS), off_s=sT, off_imm=WS_OB, nrec=81920)
    p("s_lshl_b32 s%d, s%d, 10" % (sOff, sWave))
    p("v_and_b32 v%d, 15, v%d" % (t0, vLane))
    p("v_lshlrev_b32 v%d, 3, v%d" % (t0, t0))
    p("v_sub_u32 v%d, v%d, v%d" % (vO, vL16, t0))
    run(2)
    p.add(poll_check("B"))
    for s in range(10, 16):
        if s == 13:
            p("s_lshr_b32 s%d, s%d, 2" % (sT, sIdx))
            p("s_mul_i32 s%d, s%d, 102400" % (sT, sT))
            srd(p, sPC, ptr(D_WS), off_s=sT, off_imm=WS_WOB, nrec=102400)
            p("s_mov_b64 s[%d:%d], s[%d:%d]\ns_mov_b32 s%d, s%d" % (sPW, sPW + 1, sPC, sPC + 1, sPW + 2, sPC + 2))
            p("s_mov_b32 s%d, 0\ns_mov_b32 s%d, %d\ns_mov_b32 s%d, %d\ns_movk_i32 s%d, 0x4000" % (sSt, sIc, SZ, sIw, SZ, sBw))
            p.add(dPos)
        for ks in range(20)[(s - 10) * 20 // 6:(s - 9) * 20 // 6]:
            if ks % 5 == 4:
                for u in range(2):
                    p("buffer_load_dwordx2 %s, v%d, s[%d:%d], s%d offen offset:%d %s" % (rr("a", aOB + 4 * ks + 2 * u, 2), vO, sY, sY + 3, sOff, u * 128, WT))
            else:
                p("buffer_load_dwordx4 %s, v%d, s[%d:%d], s%d offen %s" % (rr("a", aOB + 4 * ks, 4), vL16, sY, sY + 3, sOff, WT))
            p("s_addk_i32 s%d, 0x1000" % sOff)
        run(1)
    st_()
    xsetup(p, sXO, vDw, vC)
    for qq in range(1, 4):
        for k in range(10):
            p("v_cvt_pk_bf16_f32 v%d, v%d, v%d" % (PA + qq * 20 + k, PA + qq * 20 + 2 * k, PA + qq * 20 + 2 * k + 1))
        for k in range(10):
            p("v_min_u32 v%d, -2, v%d" % (PA + qq * 20 + k, PA + qq * 20 + k))
        xfer(p, "store", qq, sXO, vDw, vC, xr(qq))
    BA = 32
    p("v_add_u32 v%d, %d, v%d" % (vWf, 10 * 5120, vL16))
    p("s_waitcnt vmcnt(9)\ns_barrier")
    bfr = lambda k: (k % 15) * 4
    brd = lambda k: "ds_read_b128 %s, v%d offset:%d" % (rr("a", bfr(k), 4), vWf if k >= 50 else vL16, (k % 50) * 1024)
    for k in range(10):
        p(brd(k))
    for k in range(100):
        ks, n = divmod(k, 5)
        a = rr("v", BA + 4 * n, 4)
        if n == 0:
            p.add([I("need", xrd=[("a", bfr(k + 4) + e) for e in range(4)])])
        p("%s %s, %s, %s, %s" % (MF16, a, rr("a", bfr(k), 4), rr("a", aOB + 4 * ks, 4), a if ks else "0"))
        if k + 10 < 100:
            p(brd(k + 10))
        if k == int(os.environ.get("XK", "90")):
            xrecv(p)
    st_()
    srd(p, sOut, ptr(D_OUT), nrec=2048 * 2560)
    p("v_and_b32 v%d, 15, v%d" % (t0, vLane))
    p("v_mul_u32_u24 v%d, 2560, v%d" % (vWf, t0))
    p("v_lshrrev_b32 v%d, 4, v%d" % (t0, vLane))
    p("v_lshl_add_u32 v%d, v%d, 3, v%d" % (vWf, t0, vWf))
    p("s_lshl_b32 s%d, s%d, 2" % (sT, sTT))
    p("s_add_u32 s%d, s%d, s%d" % (sT, sT, sWave))
    p("s_mul_i32 s%d, s%d, %d" % (sT, sT, 16 * 2560))
    p("s_lshr_b32 s%d, s%d, 2" % (sT2, sIdx))
    p("s_mul_i32 s%d, s%d, 160" % (sT2, sT2))
    p("s_add_u32 s%d, s%d, s%d" % (sOff, sT, sT2))
    for n in range(5):
        b = BA + 4 * n
        p("v_cvt_pk_bf16_f32 v%d, v%d, v%d" % (b, b, b + 1))
        p("v_cvt_pk_bf16_f32 v%d, v%d, v%d" % (b + 1, b + 2, b + 3))
        p("buffer_store_dwordx2 %s, v%d, s[%d:%d], s%d offen offset:%d" % (rr("v", b, 2), vWf, sOut, sOut + 3, sOff, 1280 + n * 32))
    p("s_lshl_b32 s%d, s%d, 3" % (sT, sMb))
    p("s_lshr_b32 s%d, s%d, 1" % (sT2, sWave))
    p("s_lshl_b32 s%d, s%d, 2" % (sT2, sT2))
    p("s_add_u32 s%d, s%d, s%d" % (sT, sT, sT2))
    p("s_add_u32 s%d, s%d, s%d" % (sT, sT, sKq))
    p("s_mul_i32 s%d, s%d, %d" % (sT, sT, 16 * 2560))
    p("s_lshl_b32 s%d, s%d, 1" % (sT2, sCc))
    p("s_and_b32 s%d, s%d, 1" % (sOff, sWave))
    p("s_add_u32 s%d, s%d, s%d" % (sT2, sT2, sOff))
    p("s_mul_i32 s%d, s%d, 160" % (sT2, sT2))
    p("s_add_u32 s%d, s%d, s%d" % (sOff, sT, sT2))
    if os.environ.get("FINE3"): st_()
    p("s_mov_b32 s%d, 0x40000\nM_xchk:" % sSpin)
    xs = [PA + qq * 20 + k for qq in range(1, 4) for k in range(10)]
    p("v_max_u32 v%d, v%d, v%d" % (t0, xs[0], xs[1]))
    for k in range(2, 30, 2):
        p("v_max3_u32 v%d, v%d, v%d, v%d" % (t0, t0, xs[k], xs[k + 1]))
    p("v_cmp_eq_u32 vcc, -1, v%d\ns_cbranch_vccnz M_xagain\nM_xok:" % t0)
    p("s_mov_b32 s%d, 0xffff0000" % sT)
    tail.extend(["M_xagain:"] + L(xrecv) + ["s_waitcnt vmcnt(0)", "s_sub_u32 s%d, s%d, 1" % (sSpin, sSpin), "s_cbranch_scc0 M_xchk", "s_branch M_xok"])
    for qq in range(1, 4):
        for k in range(10):
            r = PA + qq * 20 + k
            u = 96 + 2 * (k & 3)
            p("v_lshlrev_b32 v%d, 16, v%d" % (u, r))
            p("v_and_b32 v%d, s%d, v%d" % (u + 1, sT, r))
            p(pk_add(PA + 2 * k, PA + 2 * k, u))
    for n in range(5):
        b = pacc(0, n)
        p("v_cvt_pk_bf16_f32 v%d, v%d, v%d" % (b, b, b + 1))
        p("v_cvt_pk_bf16_f32 v%d, v%d, v%d" % (b + 1, b + 2, b + 3))
        p("buffer_store_dwordx2 %s, v%d, s[%d:%d], s%d offen offset:%d" % (rr("v", b, 2), vWf, sOut, sOut + 3, sOff, n * 32))
    st_()
    if os.environ.get("TWICE"):
        p("s_waitcnt vmcnt(0) lgkmcnt(0)\ns_barrier\ns_add_u32 s3, s3, 1\ns_cmp_eq_u32 s3, 1\ns_cbranch_scc1 M_again")
    st_.dump(vtmp=t0)
    p("M_exit:\ns_endpgm")
    p.add(tail)
    for par in range(2):
        p("M_slow%d:" % par)
        p("s_nop 15")
        for j in range(4):
            d, f, d2 = vU + 2, vU + 3, vU + 4
            p.add(rowmax(par, j, d, f))
            p("v_max_f32 v%d, 0, v%d" % (d, d))
            p("v_exp_f32 v%d, -v%d" % (f, d))
            if j >= 2:
                p("v_mul_f32 v%d, s%d, v%d" % (d2, sKeep, d))
            else:
                d2 = d
            for k in range(8):
                p("v_sub_f32 v%d, v%d, v%d" % (S(par, j) + k, S(par, j) + k, d))
                for b in (S(par ^ 1, j), CI(j)):
                    p("v_sub_f32 v%d, v%d, v%d" % (b + k, b + k, d2))
            p("v_sub_f32 v%d, v%d, v%d" % (vM + j, vM + j, d2))
            p("v_mul_f32 v%d, v%d, v%d" % (vL + j, vL + j, f))
            for k in range(0, 32, 8):
                for e in range(8):
                    p("v_accvgpr_read_b32 v%d, a%d" % (TMP + e, O(j, 0) + k + e))
                for e in range(8):
                    p("v_mul_f32 v%d, v%d, v%d" % (TMP + e, TMP + e, f))
                for e in range(8):
                    p("v_accvgpr_write_b32 a%d, v%d" % (O(j, 0) + k + e, TMP + e))
        p.add(sm_stream(par, 2) + sum_mf(par))
        p.add([x for x in sm_stream(par ^ 1, 0) if x.startswith("v_exp")][:NE])
        p("s_nop 3")
        p(ret)
    p("M_codeend:")
    if os.environ.get("NOST"):
        p.ins = [I("buffer_load_dword v%d, off, s[%d:%d], 0" % (vA + 3, sD, sD + 3)) if (i.mn == "buffer_store_dwordx4" and ("s[16:19]" in i.text or "s[24:27]" in i.text) and i.ops[0][0] == "v") else i for i in p.ins]
    p.finish()
    return p
```

```python
from asmlib import *
from layout import *
from k_p1 import srd, x_rd_addr, w_rd_addr, MF
import os, struct

def f2u(x):
    return struct.unpack("<I", struct.pack("<f", x))[0]

NEG = 0xF149F2CA
THRESH = int(os.environ.get("THRESH", "0x5F800000"), 0)
BIAS = float(os.environ.get("BIAS", "40"))
QSCALE = f2u((128 ** -0.5) * 1.4426950408889634)
LOG2E = f2u(1.4426950408889634)
WT = os.environ.get("WT", "sc1")
PREFETCH = int(os.environ.get("PREFETCH", "3"))
NTW = os.environ.get("NTW", "nt")
WE = int(os.environ.get("WE", "10"))
CODEPF = int(os.environ.get("CODEPF", "13"))
WBL2 = int(os.environ.get("WBL2", "0"))
VERB = int(os.environ.get("VERB", "0"))
U = 16384
M16 = "v_mfma_f32_16x16x32_bf16"
u32 = lambda x: x & 0xffffffff

def L(f, *a, **k):
    q = Prog()
    f(q, *a, **k)
    return q.ins

def build_main():
    p = Prog()
    sX, sW, sW2, sO, sD, sBO = 4, 8, 12, 16, 20, 24
    sBF, sPhi, sY, sC, sKV = sW2, sO, sX, sW, sBO
    sH, sI, sWave, sW4, sT, sT2, sOff, sXcd, sIdx, sTB, sCB, sHi, sLo = range(28, 41)
    sM, sS, sKo, sRet, sTT, sL2, sSpin, sBo = 41, 44, 47, 48, 50, 51, 52, 53
    sRd, sGv, sG, sIt, sNb, sTriA, sTriB, sThr, sCnt, sCb = range(37, 47)
    sMask, sNext, sKeep, sW2k, sNlo, sCont = 54, 92, 93, 94, 95, 82
    sDa, sDb, sDc = 86, 87, 83
    P = 56
    ptr = lambda off: P + off // 4
    vLane = 1
    vX, vW, vXr, vWr = 2, 6, 10, 14
    vL16, t0, t1, t2, vDum, vStamp, vA = 22, 23, 24, 25, 26, 27, 28
    vGo = vA + 1
    vDma, vLim, vNeg, vKV, vB, vL, vOne, vM, vPoll, vU = 2, 3, 4, 5, 6, 8, 12, 16, 20, 232
    vMp = vA + 2
    RA, RB, RC, RD = 32, 96, 160, 224
    TMP, AW = 224, 240
    S = lambda par, j: 32 + par * 32 + j * 8
    CI = lambda j: 96 + j * 8
    PP = lambda par, j: 128 + par * 16 + j * 4
    Q = lambda j, ds: 160 + j * 16 + ds * 4
    O = lambda j, d: j * 32 + d * 4
    FB = lambda j: 128 + j * 4
    aXF, aVF, aRAW, aPA, aPK = 128, 144, 96, 192, 192
    tail = []
    ret = "s_setpc_b64 s[%d:%d]" % (sRet, sRet + 1)
    call = lambda lab: "s_call_b64 s[%d:%d], %s" % (sRet, sRet + 1, lab)

    def x_voffs(pitch, wsh=5):
        return ["v_lshrrev_b32 v%d, 3, v%d" % (t0, vLane),
                "s_lshl_b32 s%d, s%d, %d" % (sT, sWave, wsh),
                "v_add_u32 v%d, s%d, v%d" % (t0, sT, t0),
                "v_mul_u32_u24 v%d, %d, v%d" % (t0, pitch, t0),
                "v_lshrrev_b32 v%d, 4, v%d" % (t1, vLane),
                "v_and_b32 v%d, 7, v%d" % (t2, vLane),
                "v_xor_b32 v%d, v%d, v%d" % (t2, t2, t1),
                "v_lshl_add_u32 v%d, v%d, 4, v%d" % (vX, t2, t0),
                "v_xor_b32 v%d, 4, v%d" % (t2, t2),
                "v_lshl_add_u32 v%d, v%d, 4, v%d" % (vX + 1, t2, t0),
                "v_add_u32 v%d, %d, v%d" % (vX + 1, 8 * pitch - 1024, vX + 1),
                "v_add_u32 v%d, %d, v%d" % (vX + 2, 2 * (8 * pitch - 1024), vX),
                "v_add_u32 v%d, %d, v%d" % (vX + 3, 2 * (8 * pitch - 1024), vX + 1)]
    def w_voffs(pitch, m16):
        r = ["v_lshrrev_b32 v%d, 4, v%d" % (t0, vLane),
             "v_lshlrev_b32 v%d, 2, v%d" % (t1, t0),
             "s_lshl_b32 s%d, s%d, 4" % (sT, sWave),
             "v_add_u32 v%d, s%d, v%d" % (t0, sT, t0),
             "v_mul_u32_u24 v%d, %d, v%d" % (t0, pitch, t0),
             "v_and_b32 v%d, 15, v%d" % (t2, vLane),
             "v_xor_b32 v%d, v%d, v%d" % (t2, t2, t1),
             "v_lshl_add_u32 v%d, v%d, 4, v%d" % (vW, t2, t0)] + \
            ["v_add_u32 v%d, %d, v%d" % (vW + k, k * (4 * pitch - 1024), vW) for k in range(1, 4)]
        if m16:
            r += ["v_xor_b32 v%d, 32, v%d" % (vW + k, vW + k) for k in (2, 3)]
        return r
    def x_rd16(dst):
        return ["v_and_b32 v%d, 15, v%d" % (t0, vLane), "v_bfe_u32 v%d, v%d, 1, 3" % (t1, vLane), "v_lshrrev_b32 v%d, 4, v%d" % (dst, vLane),
                "v_xor_b32 v%d, v%d, v%d" % (dst, dst, t1), "v_lshlrev_b32 v%d, 4, v%d" % (dst, dst), "v_lshl_add_u32 v%d, v%d, 7, v%d" % (dst, t0, dst)]
    def w_rd16(dst):
        return ["v_bfe_u32 v%d, v%d, 2, 2" % (t0, vLane), "v_lshrrev_b32 v%d, 4, v%d" % (t1, vLane),
                "v_lshlrev_b32 v%d, 11, v%d" % (dst, t1), "v_lshl_add_u32 v%d, v%d, 8, v%d" % (dst, t0, dst), "v_lshl_add_u32 v%d, v%d, 6, v%d" % (dst, t0, dst),
                "v_and_b32 v%d, 1, v%d" % (t1, t1), "v_lshl_add_u32 v%d, v%d, 5, v%d" % (dst, t1, dst),
                "v_and_b32 v%d, 3, v%d" % (t0, vLane), "v_lshl_add_u32 v%d, v%d, 3, v%d" % (dst, t0, dst)]
    def dma(i, srdn, fl=""):
        v = vX if srdn == sX else vW
        return [["s_mov_b32 m0, s%d" % (sM + i)]] + \
               ["buffer_load_dwordx4 v%d, s[%d:%d], s%d offen offset:%d %s lds" % (v + q, srdn, srdn + 3, sS + i, q * 1024, fl) for q in range(4)]
    def put_dma(G, i, srdn, lo, hi, fl=""):
        d = dma(i, srdn, fl)
        G.put(lo, d[0])
        G.spread(d[1:], lo + 1, hi)
    def w_srd(q, d, which, col_s, total):
        q("s_lshl_b32 s%d, s%d, 8" % (sT, col_s))
        srd(q, d, ptr(which), off_s=sT)
        q("s_sub_u32 s%d, %d, s%d" % (d + 2, total, sT))
    def sw_XB(q):
        q("s_mul_i32 s%d, s%d, %d" % (sT, sTB, 128 * 1280))
        srd(q, sX, ptr(B_X), off_s=sT)
        q("s_cmp_lt_u32 s2, 240\ns_cselect_b32 s%d, %d, 0" % (sX + 2, 128 * 1280))
        q.add(x_voffs(1280))
    def sw_WB(q):
        w_srd(q, sW, B_WQKV, sCB, 640 * 3840)
        q("s_cmp_lt_u32 s2, 240\ns_cselect_b32 s%d, s%d, 0" % (sW + 2, sW + 2))
        q("s_mov_b64 s[%d:%d], s[%d:%d]\ns_mov_b32 s%d, s%d" % (sW2, sW2 + 1, sW, sW + 1, sW2 + 2, sW + 2))
        q.add(w_voffs(3840, 0))
    def sw_XQ(q):
        srd(q, sX, ptr(A_X), nrec=2048 * 1280)
    def sw_WQ(q):
        w_srd(q, sW, A_WQ, sH, 640 * 8192)
        q.add(w_voffs(8192, 1))

    class Plan:
        def __init__(s):
            s.vm, s.unit, s.free, s.when, s.now = [], {}, [], {}, 0
            s.pend = {"X": [], "W": []}
            s.job = {"X": "KV", "W": "KV"}
            for st in range(8):
                for g in range(2):
                    s.pend["X"].append((("KX", st, g), "KV", st, str(g * 256 * 1024 + st * 128), ((2 * st) % 5) * 2 + g))
                    s.pend["W"].append((("KW", st, g), "KV", st, str(st * 64 * 8192), ((2 * st + 1) % 5) * 2 + g))
            for b in range(10):
                s.pend["X"].append((("BX", b), "B", 8 + b, str(b * 128), None))
                s.pend["W"].append((("BW", b), "B", 8 + b, str(b * 64 * 3840), None))
            for st in range(10):
                s.pend["X"].append((("QX", st, 0), "Q", 18 + st, (sHi, st * 128), None))
                s.pend["X"].append((("QX", st, 1), "Q", 18 + st, (sLo, st * 128), None))
                s.pend["W"].append((("QW", st), "Q", 18 + st, str(st * 64 * 8192), None))
            s.free = list(range(10))
        def copy(s):
            import copy
            return copy.deepcopy(s)
        def take(s, ty, i):
            oth = "W" if ty == "X" else "X"
            pre = []
            c = s.pend[ty][0] if s.pend[ty] else None
            if c is not None:
                if c[4] is not None:
                    ok = c[4] in s.free
                else:
                    resv = {g[4] for t in "XW" for g in s.pend[t] if g[4] is not None}
                    av = [x for x in s.free if x not in resv]
                    ok = len(av) - 1 >= sum(1 for g in s.pend[oth] if g[2] < c[2] and g[4] is None)
                if not ok:
                    c = None
            if c is None:
                return ["s_mov_b32 s%d, 0x30000" % (sM + i), "s_brev_b32 s%d, 1" % (sS + i)], None
            s.pend[ty].pop(0)
            un = c[4] if c[4] is not None else av[0]
            s.free.remove(un)
            s.unit[c[0]] = un
            s.when[c[0]] = s.now
            if c[1] != s.job[ty]:
                s.job[ty] = c[1]
                pre += L({"XB": sw_XB, "WB": sw_WB, "XQ": sw_XQ, "WQ": sw_WQ}[ty + c[1]])
            pre.append("s_add_u32 s%d, s%d, 0x%x" % (sM + i, sW4, un * U))
            if isinstance(c[3], tuple):
                pre.append("s_add_u32 s%d, s%d, %d" % (sS + i, c[3][0], c[3][1]))
            else:
                pre.append("s_mov_b32 s%d, %s" % (sS + i, c[3]))
            return pre, c[0]
        def issue(s, tag, n=4):
            s.vm += [tag] * n
        def hook(s, ins, tag="h"):
            for t in ins:
                i = t if isinstance(t, I) else I(t)
                if i.cnt == "vm":
                    s.vm.append(tag)
        def barrier(s, need, free, dt):
            last = max(max(k for k, t in enumerate(s.vm) if t == n) for n in need) if need else -1
            N = len(s.vm) - 1 - last
            if VERB:
                print("barrier need", need, "N", N, "flight", [s.now - s.when[n] for n in need if n in s.when])
            for f in free:
                s.free.append(s.unit[f])
            s.now += dt
            s.done = last
            return ["s_waitcnt %slgkmcnt(0)" % ("vmcnt(%d) " % min(N, 63) if need else ""), "s_barrier"]
        def complete(s, tag):
            return max(k for k, t in enumerate(s.vm) if t == tag) <= s.done
    pl = Plan()

    def pf_lin(which, total, k):
        share = total // 32
        return ["s_mul_i32 s%d, s%d, %d" % (sT, sIdx, share), "s_lshl_b32 s%d, s%d, 13" % (sT2, sWave), "s_add_u32 s%d, s%d, s%d" % (sT, sT, sT2),
                "s_add_u32 s%d, s%d, %d" % (sT, sT, k * 32768),
                "v_lshl_add_u32 v%d, v%d, 7, s%d" % (t0, vLane, sT), "v_min_u32 v%d, %d, v%d" % (t0, total - 128, t0),
                "global_load_dword v%d, v%d, s[%d:%d]" % (vDum, t0, ptr(which), ptr(which) + 1)]
    def pf_w(which, rows):
        share = rows // 32
        return ["s_mul_i32 s%d, s%d, %d" % (sT, sIdx, share), "s_lshl_b32 s%d, s%d, 3" % (sT2, sWave), "s_add_u32 s%d, s%d, s%d" % (sT, sT, sT2),
                "v_lshrrev_b32 v%d, 3, v%d" % (t0, vLane), "v_add_u32 v%d, s%d, v%d" % (t0, sT, t0), "v_min_u32 v%d, %d, v%d" % (t0, rows - 1, t0),
                "v_lshlrev_b32 v%d, 13, v%d" % (t0, t0), "v_and_b32 v%d, 7, v%d" % (t1, vLane), "v_lshl_add_u32 v%d, v%d, 7, v%d" % (t0, t1, t0),
                "s_lshl_b32 s%d, s%d, 10" % (sT, sXcd), "v_add_u32 v%d, s%d, v%d" % (t0, sT, t0),
                "global_load_dword v%d, v%d, s[%d:%d]" % (vDum, t0, ptr(which), ptr(which) + 1)]
    def pf_bx():
        return ["s_mul_i32 s%d, s%d, %d" % (sT, sXcd, 256 * 1280), "s_mul_i32 s%d, s%d, 10240" % (sT2, sIdx), "s_add_u32 s%d, s%d, s%d" % (sT, sT, sT2),
                "v_lshlrev_b32 v%d, 7, v0" % t0, "v_min_u32 v%d, %d, v%d" % (t0, 10240 - 128, t0), "v_add_u32 v%d, s%d, v%d" % (t0, sT, t0),
                "global_load_dword v%d, v%d, s[%d:%d]" % (vDum, t0, ptr(B_X), ptr(B_X) + 1)]

    def extra(ty, keep):
        if len(pl.free) <= keep:
            return []
        pre, tag = pl.take(ty, 2)
        if tag is None:
            return []
        pl.issue(tag)
        d = dma(2, sX if ty == "X" else sW)
        return pre + d[0] + d[1:]
    def skel(last_mf, bar, mf, custom, target, NP=2):
        if last_mf:
            p(last_mf)
        p.add(bar)
        n = len(custom)
        for k in range(NP):
            p.add([mf[k]] + custom[k * n // NP:(k + 1) * n // NP])
        p(call(target))
    def body(name, G, mf, entries=None, NP=2):
        out = ["%s:" % name]
        for k in range(NP, G.n - 1):
            if entries and k in entries:
                out.append("%s:" % entries[k])
            out += [mf[k]] + G.gap(k)
        assert not any(G.gap(k) for k in list(range(NP)) + [G.n - 1])
        X = os.environ.get("X_" + name[2], "")
        out = [x if isinstance(x, I) else I(x) for x in out]
        if "d" in X: out = [x for x in out if x.kind != "dma"]
        if "m" in X: out = [x for x in out if x.kind != "mfma"]
        if "l" in X: out = [x for x in out if x.kind != "ds"]
        tail.extend(out + [ret])
    v2 = lambda r: rr("v", r, 2)
    bsel = lambda b, pos, n: "op_sel:[%s] op_sel_hi:[%s]" % (",".join(str(b & 1) if k == pos else "0" for k in range(n)), ",".join(str(b & 1) if k == pos else "1" for k in range(n)))
    pk_mulb = lambda d, a, b: "v_pk_mul_f32 %s, %s, %s %s" % (v2(d), v2(a), v2(b & ~1), bsel(b, 1, 2))
    pk_subb = lambda d, a, b: "v_pk_add_f32 %s, %s, %s %s neg_lo:[0,1] neg_hi:[0,1]" % (v2(d), v2(a), v2(b & ~1), bsel(b, 1, 2))
    pk_fmab = lambda d, a, b, c: "v_pk_fma_f32 %s, %s, %s, %s %s" % (v2(d), v2(a), v2(b & ~1), v2(c), bsel(b, 1, 3))
    pk_add = lambda d, a, b: "v_pk_add_f32 %s, %s, %s" % (v2(d), v2(a), v2(b))
    def pack_tile(src, dst):
        return ["v_cvt_pk_bf16_f32 v%d, v%d, v%d" % (dst + k, src + 2 * k, src + 2 * k + 1) for k in range(8)]
    FULL = int(os.environ.get("FULL", "1"))
    def publish(val):
        lab = p.newlabel("M_pub")
        return ["s_cmp_lg_u32 s%d, 0" % sWave, "s_cbranch_scc1 %s" % lab,
                "s_lshl_b32 s%d, s2, 7" % sT, "v_mov_b32 v%d, %d" % (t0, val), "v_lshlrev_b32 v%d, 2, v%d" % (t1, vLane),
                "s_mov_b32 exec_hi, 0" if FULL else "s_mov_b64 exec, 1",
                "buffer_store_dword v%d, v%d, s[%d:%d], s%d offen sc1" % (t0, t1, sD, sD + 3, sT),
                "s_mov_b64 exec, -1", "%s:" % lab]
    def poll_load(kind):
        if kind == "go":
            return ["v_mov_b32 v%d, 0" % t0, "global_load_dword v%d, v%d, s[%d:%d] sc1" % (vGo, t0, ptr(D_DBG), ptr(D_DBG) + 1)]
        if kind == 2:
            r = ["v_min_u32 v%d, 29, v%d" % (t0, vLane), "v_lshlrev_b32 v%d, 10, v%d" % (t0, t0), "s_lshl_b32 s%d, s%d, 7" % (sT, sXcd)]
        elif kind in (1, "KV"):
            r = ["v_and_b32 v%d, 7, v%d" % (t0, vLane), "v_lshlrev_b32 v%d, 10, v%d" % (t0, t0), "s_andn2_b32 s%d, s2, 0x38" % sT, "s_lshl_b32 s%d, s%d, 7" % (sT, sT)]
        elif kind in ("A", "B", 7, 3):
            return ["buffer_load_dword v%d, v%d, s[%d:%d], 0 offen sc1" % (vDum, vPoll, sD, sD + 3)]
        else:
            r = ["v_and_b32 v%d, 7, v%d" % (t0, vLane), "v_lshlrev_b32 v%d, 7, v%d" % (t0, t0), "s_lshl_b32 s%d, s%d, 10" % (sT, sIdx)]
        return r + ["buffer_load_dword v%d, v%d, s[%d:%d], s%d offen sc1" % (vKV if kind == "KV" else vDum, t0, sD, sD + 3, sT)]
    def poll_check(kind, lvl=None):
        lab = p.newlabel("M_poll")
        chk = ["v_cmp_gt_u32 vcc, %s, v%d" % (("1", vGo) if kind == "go" else (("v%d" % (vPoll + 1), vDum) if kind in ("A", "B", 3) else (str(lvl or kind), vDum)))]
        if kind == "KV":
            chk = ["v_cmp_gt_u32 vcc, %d, v%d" % (lvl, vKV)]
        tail.extend(["%s:" % lab, "s_mov_b32 s%d, 0x40000" % sSpin, "%s_l:" % lab, "s_sleep 1"] + poll_load(kind) + ["s_waitcnt vmcnt(0)"] + chk +
                    ["s_cbranch_vccz %s_r" % lab, "s_sub_u32 s%d, s%d, 1" % (sSpin, sSpin), "s_cbranch_scc0 %s_l" % lab, "s_branch %s_r" % lab])
        if kind in ("KV", 3):
            c = I(chk[0])
            c.rd = set()
            chk = ["s_waitcnt vmcnt(8)", c]
        return chk + ["s_cbranch_vccnz %s" % lab, "%s_r:" % lab]
    def pf(which, total, first, nlines):
        return ["s_lshl_b32 s%d, s2, 2" % sT, "s_add_u32 s%d, s%d, s%d" % (sT, sT, sWave), "s_mul_i32 s%d, s%d, %d" % (sT, sT, nlines),
                "s_add_u32 s%d, s%d, %d" % (sT, sT, first), "v_min_u32 v%d, %d, v%d" % (t0, nlines - 1, vLane), "v_add_u32 v%d, s%d, v%d" % (t0, sT, t0),
                "v_min_u32 v%d, %d, v%d" % (t0, total // 128 - 1, t0), "v_lshlrev_b32 v%d, 7, v%d" % (t0, t0),
                "global_load_dword v%d, v%d, s[%d:%d]" % (vDum, t0, ptr(which), ptr(which) + 1)]

    sPC0 = 96
    def code_touch(dst, mode):
        if not (CODEPF & mode):
            return []
        return ["s_lshl_b32 s%d, s%d, 2" % (sT, sIdx), "s_add_u32 s%d, s%d, s%d" % (sT, sT, sWave), "s_lshl_b32 s%d, s%d, 9" % (sT, sT),
                "v_and_b32 v%d, 3, v%d" % (t0, vLane), "v_lshl_add_u32 v%d, v%d, 7, s%d" % (t0, t0, sT), "v_min_u32 v%d, M_codeend-M_pc0-4, v%d" % (t0, t0),
                "global_load_dword v%d, v%d, s[%d:%d]" % (dst, t0, sPC0, sPC0 + 1)]
    p("s_cmp_ge_u32 s2, 256\ns_cbranch_scc1 M_exit")
    if os.environ.get("TWICE"):
        p("s_mov_b32 s3, 0\nM_again:")
    p("s_getpc_b64 s[%d:%d]\nM_pc0:" % (sPC0, sPC0 + 1))
    p("s_load_dwordx16 s[%d:%d], s[0:1], 0" % (P, P + 15))
    p("s_load_dwordx8 s[%d:%d], s[0:1], 64" % (P + 16, P + 23))
    p("s_load_dwordx2 s[%d:%d], s[0:1], 96" % (P + 24, P + 25))
    st_ = Stamper(p, vStamp, kid=0)
    p("v_and_b32 v%d, 63, v0" % vLane)
    p("v_lshrrev_b32 v%d, 6, v0" % t0)
    p("v_readfirstlane_b32 s%d, v%d" % (sWave, t0))
    p("s_and_b32 s%d, s2, 7" % sXcd)
    p("s_lshr_b32 s%d, s2, 3" % sIdx)
    p("s_lshl_b32 s%d, s%d, 12" % (sW4, sWave))
    p("s_lshl_b32 s%d, s%d, 2" % (sH, sXcd))
    p("s_lshr_b32 s%d, s%d, 3" % (sT, sIdx))
    p("s_add_u32 s%d, s%d, s%d" % (sH, sH, sT))
    p("s_and_b32 s%d, s%d, 7" % (sI, sIdx))
    p.add(code_touch(vDum, 1))
    pl.hook(code_touch(vDum, 1))
    p.add(x_voffs(1024, 9))
    p.add(w_voffs(8192, 1))
    p("s_waitcnt lgkmcnt(0)")
    if os.environ.get("X_DELAY"):
        p("s_bitcmp1_b32 s2, 6\ns_cbranch_scc0 M_nodel\ns_mov_b32 s%d, %s\nM_del:\ns_sleep 16\ns_sub_u32 s%d, s%d, 1\ns_cbranch_scc0 M_del\nM_nodel:" % (sT, os.environ["X_DELAY"], sT, sT))
    st_()
    srd(p, sD, ptr(D_WS), off_imm=WS_FL, nrec=32768)
    if os.environ.get("TWICE"):
        p("s_cmp_lg_u32 s3, 0\ns_cbranch_scc1 M_nolead")
    p("s_cmp_lg_u32 s2, 255\ns_cbranch_scc1 M_nolead")
    p("v_lshlrev_b32 v%d, 7, v0\nv_mov_b32 v%d, 0" % (t0, t1))
    p("buffer_store_dword v%d, v%d, s[%d:%d], 0 offen sc1" % (t1, t0, sD, sD + 3))
    p("M_nolead:")
    p("s_lshl_b32 s%d, s%d, 15" % (sT, sI))
    srd(p, sX, ptr(A_CKV), off_s=sT)
    p("s_sub_u32 s%d, 0x200000, s%d" % (sX + 2, sT))
    w_srd(p, sW, A_WUK, sH, 512 * 8192)
    w_srd(p, sW2, A_WUV, sH, 512 * 8192)
    ST = os.environ.get("ST", "XWXW")
    for ty in ST:
        for g in range(2):
            pre, tag = pl.take(ty, 0)
            p.add(pre + dma(0, sX if ty == "X" else (sW, sW2)[g], "" if ty == "X" else NTW))
            pl.issue(tag)
    p.add(x_rd16(vXr))
    p("s_lshr_b32 s%d, s%d, 1" % (sT, sWave))
    p("s_lshl_b32 s%d, s%d, 14" % (sT, sT))
    p("v_add_u32 v%d, s%d, v%d" % (vXr, sT, vXr))
    p("v_xor_b32 v%d, 64, v%d" % (vXr + 1, vXr))
    p("s_lshl_b32 s%d, s%d, 3" % (sKo, sT))
    p.add(w_rd16(vWr))
    p("s_and_b32 s%d, s%d, 1" % (sT, sWave))
    p("s_lshl_b32 s%d, s%d, 7" % (sT, sT))
    p("s_add_u32 s%d, s%d, 0x%x" % (sT, sT, 2 * U))
    p("v_xor_b32 v%d, s%d, v%d" % (vWr, sT, vWr))
    for c in range(1, 4):
        p("v_xor_b32 v%d, %d, v%d" % (vWr + c, c * 32, vWr))
    p("v_lshlrev_b32 v%d, 4, v%d" % (vL16, vLane))
    def phi_ld(q):
        q("s_mul_i32 s%d, s%d, 800" % (sT, sIdx))
        srd(q, sPhi, ptr(B_WPHI), off_s=sT, nrec=800)
        q("v_subrev_u32 v%d, 480, v%d" % (t0, vL16))
        q("buffer_load_dwordx4 %s, v%d, s[%d:%d], 0 offen" % (rr("a", aRAW, 4), t0, sPhi, sPhi + 3))
        q("buffer_load_dwordx4 %s, v%d, s[%d:%d], 0 offen offset:544" % (rr("a", aRAW + 4, 4), vL16, sPhi, sPhi + 3))
    p("s_lshl_b32 s%d, s%d, 1" % (sTB, sXcd))
    p("s_cmp_ge_u32 s%d, 15" % sIdx)
    p("s_cselect_b32 s%d, 15, 0" % sT)
    p("s_addc_u32 s%d, s%d, 0" % (sTB, sTB))
    p("s_sub_u32 s%d, s%d, s%d" % (sCB, sIdx, sT))
    p("s_mul_i32 s%d, s%d, %d" % (sLo, sI, 128 * 1280))
    p("s_sub_u32 s%d, %d, s%d" % (sHi, 15 * 128 * 1280, sLo))

    fx = lambda st, i: 128 + st * 64 + i * 4
    fw = lambda st, i: 128 + st * 64 + 32 + i * 4
    def kvreg(mat, n):
        if mat == 0:
            return ("v", RB + 16 * n if n < 4 else RA + 16 * (n - 4))
        return ("v", RC + 16 * n) if n < 4 else (("v", RD + 16 * (n - 4)) if n < 6 else ("a", 16 * (n - 6)))
    def kv_reads(st):
        X = ["ds_read_b128 %s, v%d offset:%d" % (rr("a", fx(st, i), 4), vXr + st, i * 2048) for i in range(8)]
        W = ["ds_read_b64_tr_b16 %s, v%d offset:%d" % (rr("a", fw(st, i) + 2 * u, 2), vWr + (i & 3), (i >> 2) * U + st * 8192 + u * 1024) for i in range(8) for u in range(2)]
        return X[:2] + W[:8] + X[2:] + W[8:]
    def kv_mf(st, zero=False):
        r = []
        for mat in range(2):
            for n in range(8):
                f, b0 = kvreg(mat, n)
                for e in range(4):
                    a = rr(f, b0 + 4 * e, 4)
                    tt, cc = (e & 1, e >> 1) if mat else (e >> 1, e & 1)
                    X, W = rr("a", fx(st, 2 * (n >> 1) + tt), 4), rr("a", fw(st, mat * 4 + 2 * (n & 1) + cc), 4)
                    A, B = (X, W) if mat else (W, X)
                    r.append("%s %s, %s, %s, %s" % (M16, a, A, B, "0" if zero else a))
        return r
    WL = "s_waitcnt lgkmcnt(0)"
    mfA, mfB = kv_mf(1), kv_mf(0)
    NK = 6
    G = Gaps16(64)
    G.spread(kv_reads(0), NK, 55)
    put_dma(G, 0, sW, NK, 21, NTW); put_dma(G, 1, sW2, 22, 35, NTW)
    body("M_kvA", G, mfA, NP=NK)
    G = Gaps16(64)
    G.spread(kv_reads(1), NK, 55)
    put_dma(G, 0, sX, NK, 32); put_dma(G, 1, sX, 33, 57)
    sadd = lambda regs, sd: ["v_add_u32 v%d, s%d, v%d" % (r, sd, r) for r in regs]
    kv_upd = sadd([vXr, vXr + 1], sDa) + sadd([vWr + c for c in range(4)], sDb)
    G.spread(kv_upd, 58, 62)
    kv_del = lambda s: ["s_mov_b32 s%d, 0x%x" % (sDa, u32((((2 * s) % 5) - ((2 * s - 2) % 5)) * 2 * U)), "s_mov_b32 s%d, 0x%x" % (sDb, u32((((2 * s + 1) % 5) - ((2 * s - 1) % 5)) * 2 * U))]
    body("M_kvB", G, mfB, NP=NK)
    KVs = lambda s: [("KX", s, 0), ("KX", s, 1), ("KW", s, 0), ("KW", s, 1)]
    st_()
    p.add(pl.barrier(KVs(0), [], 1024))
    st_()
    p.add(kv_reads(0))
    p("s_cmp_lg_u32 s2, 255\ns_cbranch_scc1 M_nolead2\ns_cmp_lg_u32 s%d, 0\ns_cbranch_scc1 M_nolead2" % sWave)
    p("v_mov_b32 v%d, 0\nv_mov_b32 v%d, 1\ns_mov_b64 exec, 1" % (t0, t1))
    p("global_store_dword v%d, v%d, s[%d:%d] sc1" % (t0, t1, ptr(D_DBG), ptr(D_DBG) + 1))
    p("s_mov_b64 exec, -1\nM_nolead2:")
    p(WL)
    G = Gaps16(64)
    G.spread(kv_reads(1), 0, 47)
    rest = [(ty, g) for ty in "XWXWX"[len(ST):] for g in range(2)]
    wd = 58 // len(rest)
    for k, (ty, g) in enumerate(rest):
        pre, tag = pl.take(ty, k % 3)
        G.put(k * wd, pre)
        pl.issue(tag)
        put_dma(G, k % 3, sX if ty == "X" else (sW, sW2)[g], k * wd + 1, min(k * wd + wd, k * wd + 13), "" if ty == "X" else NTW)
    G.put(50, kv_del(1))
    G.spread(kv_upd, 60, 62)
    z = kv_mf(0, zero=True)
    p.add(G.emit(z, 0, 63))
    last = z[63]
    PN = int(os.environ.get("PN", "2"))
    arrs = [(B_WQKV, 640 * 3840, 0), (B_X, 2048 * 1280, 0), (A_X, 2048 * 1280, 0), (A_WQ, 640 * 8192, 0), (A_WQ, 640 * 8192, 20480)]
    if PREFETCH == 2:
        arrs += [(A_WO, 4096 * 1280, 0), (A_WO, 4096 * 1280, 20480)]
    hooks = [[] for _ in range(8)]
    hooksA = [[] for _ in range(9)]
    if PREFETCH:
        for k, (w_, tot, first) in enumerate(arrs):
            if PN == 1:
                hooks[k + 1] = pf(w_, tot, first, 20)
            else:
                hooks[k + 1] = pf(w_, tot, first, 10)
                hooksA[k + 2] = pf(w_, tot, first + 10240, 10)
    if PREFETCH == 5:
        hooks = [[] for _ in range(8)]
        hooksA = [[] for _ in range(9)]
        seq = [(B_WQKV, 640 * 3840, 0, 10), (B_X, 2048 * 1280, 0, 10), (B_WQKV, 640 * 3840, 10240, 10), (B_X, 2048 * 1280, 10240, 10), (A_X, 2048 * 1280, 0, 10),
               (A_WQ, 640 * 8192, 0, 10), (A_WQ, 640 * 8192, 10240, 10), (A_X, 2048 * 1280, 10240, 10), (A_WQ, 640 * 8192, 20480, 10), (A_WQ, 640 * 8192, 30720, 10),
               (A_WO, 4096 * 1280, 0, 14), (A_WO, 4096 * 1280, 14336, 13), (A_WO, 4096 * 1280, 27648, 13)]
        for k, x in enumerate(seq):
            (hooks if k & 1 else hooksA)[k // 2 + 1] = pf(*x)
    XS = 4 * 2560
    def xsetup(q, srdn, va, vb):
        q("s_and_b32 s%d, s%d, 1" % (sT, sXcd))
        q("s_lshl_b32 s%d, s%d, 5" % (sT, sT))
        q("s_add_u32 s%d, s%d, s%d" % (sT, sT, sIdx))
        q("s_mul_i32 s%d, s%d, %d" % (sT, sT, 16 * XS))
        srd(q, srdn, ptr(D_WS), off_s=sT, off_imm=WS_XB, nrec=16 * XS)
        q("s_mul_i32 s%d, s%d, 2560" % (sT, sWave))
        q("v_add_u32 v%d, s%d, v%d" % (va, sT, vL16))
        q("v_lshl_add_u32 v%d, v%d, 3, s%d" % (vb, vLane, sT))
    def xfer(q, op, qq, srdn, va, vb, regs, f="v"):
        q("s_lshr_b32 s%d, s%d, 1" % (sT2, sXcd))
        q("s_xor_b32 s%d, s%d, %d" % (sT, sT2, qq))
        q("s_lshl2_add_u32 s%d, s%d, s%d" % ((sT, sT, sT2) if op == "store" else (sT, sT2, sT)))
        q("s_mul_i32 s%d, s%d, %d" % (sT, sT, XS))
        for k in range(2):
            q("buffer_%s_dwordx4 %s, v%d, s[%d:%d], s%d offen offset:%d %s" % (op, rr(f, regs[k], 4), va, srdn, srdn + 3, sT, k * 1024, WT))
        q("buffer_%s_dwordx2 %s, v%d, s[%d:%d], s%d offen offset:2048 %s" % (op, rr(f, regs[2], 2), vb, srdn, srdn + 3, sT, WT))
    def xclear0(q):
        xsetup(q, sO, vKV, vA)
        for k in range(4):
            q("v_accvgpr_write_b32 a%d, -1" % (248 + k))
    xclear = lambda qq: L(xfer, "store", qq, sO, vKV, vA, (248, 248, 248), "a")
    hooks[7 if PREFETCH != 2 else 6] += L(phi_ld)
    hooks[6] = hooks[6] + poll_load("go")
    def upd(regs, d):
        return ["v_add_u32 v%d, 0x%x, v%d" % (r, u32(d), r) for r in regs]
    for s in range(1, 8):
        bar = pl.barrier(KVs(s), KVs(s - 1), 2048)
        cu = list(hooksA[s])
        pl.hook(cu)
        tags = []
        for i in range(2):
            pre, tag = pl.take("W", i)
            cu += pre
            tags.append(tag)
        for t in tags:
            pl.issue(t)
        if os.environ.get("FINEK"): st_()
        skel(last, bar, mfA, cu, "M_kvA", NK)
        if os.environ.get("FINEK"): st_()
        cu = list(hooks[s])
        pl.hook(cu)
        tags = []
        for i in range(2):
            pre, tag = pl.take("X", i)
            cu += pre
            tags.append(tag)
        for t in tags:
            pl.issue(t)
        skel(mfA[63], [WL], mfB, cu + kv_del(s + 1), "M_kvB", NK)
        last = mfB[63]
    st_()

    QT = int(os.environ.get("QT", "0"))
    vTx, vTw = vA + 2, vA + 3
    qt_init = ["s_lshl2_add_u32 s%d, s%d, s%d" % (sT, sIdx, sWave), "s_lshl_b32 s%d, s%d, 4" % (sT, sT), "v_and_b32 v%d, 15, v%d" % (vTx, vLane),
               "v_add_u32 v%d, s%d, v%d" % (vTx, sT, vTx), "v_mul_u32_u24 v%d, 1280, v%d" % (vTx, vTx),
               "s_lshr_b32 s%d, s%d, 5" % (sT, sT), "s_lshl_b32 s%d, s%d, 13" % (sT, sT), "s_lshl_b32 s%d, s%d, 10" % (sT2, sXcd), "s_add_u32 s%d, s%d, s%d" % (sT, sT, sT2),
               "s_and_b32 s%d, s%d, 1" % (sT2, sWave), "s_lshl_b32 s%d, s%d, 9" % (sT2, sT2), "s_add_u32 s%d, s%d, s%d" % (sT, sT, sT2),
               "v_and_b32 v%d, 3, v%d" % (vTw, vLane), "v_lshl_add_u32 v%d, v%d, 7, s%d" % (vTw, vTw, sT)]
    def qt(st):
        if not QT or st > 9:
            return []
        return (qt_init if st == 0 else ["v_add_u32 v%d, 0x80000, v%d" % (vTw, vTw)]) + \
               ["global_load_dword v%d, v%d, s[%d:%d] offset:%d" % (vA, vTx, ptr(A_X), ptr(A_X) + 1, st * 128), "global_load_dword v%d, v%d, s[%d:%d]" % (vA, vTw, ptr(A_WQ), ptr(A_WQ) + 1)]
    bfx = lambda st, k, i: 128 + st * 32 + k * 16 + i * 4
    bfw = lambda st, k, i: 128 + st * 32 + k * 16 + 8 + i * 4
    def b_reads(st):
        r = []
        for k in range(2):
            ks = st * 2 + k
            for i in range(2):
                r.append("ds_read_b128 %s, v%d offset:%d" % (rr("a", bfx(st, k, i), 4), vXr + ks, i * 4096))
                for u in range(2):
                    r.append("ds_read_b64_tr_b16 %s, v%d offset:%d" % (rr("a", bfw(st, k, i) + 2 * u, 2), vWr + i, ks * 4096 + u * 1024))
        return r
    def b_mf(var, st, zero=False):
        mf = []
        for k in range(2):
            for b in range(2):
                for c in range(2):
                    a = rr("v", RA + (b * 2 + c) * 16, 16)
                    X, W = rr("a", bfx(st, k, b), 4), rr("a", bfw(st, k, c), 4)
                    A, B = (X, W) if var else (W, X)
                    mf.append("%s %s, %s, %s, %s" % (MF, a, A, B, "0" if (zero and k == 0) else a))
        return mf
    def kv_pack(mat, n):
        f, b0 = kvreg(mat, n)
        dst = (RC if mat else RB) + 8 * n
        if f == "v":
            return pack_tile(b0, dst)
        return ["v_accvgpr_read_b32 v%d, a%d" % (RD + k, b0 + k) for k in range(16)] + pack_tile(RD, dst)
    def kv_store(mat, n):
        f, reg = ("v", (RC if mat else RB) + 8 * n) if n < 4 else ("a", aPK + (mat * 4 + n - 4) * 8)
        if mat == 0 and n in (2, 3):
            f, reg = "a", 104 + 8 * (n - 2)
        st = lambda m, so, imm: "buffer_store_dwordx4 %s, v%d, s[%d:%d], s%d offen offset:%d %s" % (rr(f, reg + 4 * m, 4), vL16, sO, sO + 3, so, imm, WT)
        if mat:
            return ["s_and_b32 s%d, s%d, 0x1000" % (sOff, sW4), "s_add_u32 s%d, s%d, s%d" % (sOff, sOff, sKo), "s_add_u32 s%d, s%d, 0x%x" % (sOff, sOff, (n >> 1) * 16 * U + 8192),
                    st(0, sOff, (n & 1) * 2048), st(1, sOff, (n & 1) * 2048 + 1024)]
        return ["s_lshr_b32 s%d, s%d, 1" % (sOff, sW4), "s_and_b32 s%d, s%d, 0x800" % (sOff, sOff), "s_add_u32 s%d, s%d, s%d" % (sOff, sOff, sKo), "s_add_u32 s%d, s%d, 0x%x" % (sOff, sOff, (n >> 1) * 16 * U),
                st(0, sOff, (n & 1) * 1024), "s_addk_i32 s%d, 0x1000" % sOff, st(1, sOff, (n & 1) * 1024)]
    def b_store(t):
        return ["s_add_u32 s%d, s%d, 0x%x" % (sOff, sBo, (t >> 1) * 120 * 1024)] + \
               ["buffer_store_dwordx4 %s, v%d, s[%d:%d], s%d offen offset:%d %s" % (rr("v", RD + 8 * t + 4 * m, 4), vL16, sBO, sBO + 3, sOff, (t & 1) * 2048 + m * 1024, WT) for m in range(2)]
    Bs = lambda b: [("BX", b), ("BW", b)]
    Qs = lambda s: [("QX", s, 0), ("QX", s, 1), ("QW", s)]
    p(last)
    p.add(pl.barrier(Bs(0), KVs(7), 1280))
    def baddr(q):
        x_rd_addr(q, vXr, vLane, t0, t1)
        q("s_lshr_b32 s%d, s%d, 1" % (sT, sWave))
        q("s_lshl_b32 s%d, s%d, 13" % (sT, sT))
        q("s_add_u32 s%d, s%d, 0x%x" % (sT, sT, pl.unit[("BX", 0)] * U))
        for ks in range(4):
            q("v_add_u32 v%d, s%d, v%d" % (vXr + ks, sT, vXr + ks))
        q("s_and_b32 s%d, s%d, 1" % (sT, sWave))
        q("s_lshl_b32 s%d, s%d, 1" % (sT, sT))
        q("v_mov_b32 v%d, s%d" % (t2, sT))
        w_rd_addr(q, vWr, vLane, t0, t1, t2)
        q("v_add_u32 v%d, 0x%x, v%d" % (vWr, pl.unit[("BW", 0)] * U, vWr))
        q("v_xor_b32 v%d, 64, v%d" % (vWr + 1, vWr))
        q("s_lshl_b32 s%d, s%d, 20" % (sT, sH))
        q("s_lshl_b32 s%d, s%d, 14" % (sT2, sI))
        q("s_add_u32 s%d, s%d, s%d" % (sT, sT, sT2))
        srd(q, sO, ptr(D_WS), off_s=sT, off_imm=WS_KV)
        q("s_sub_u32 s%d, 0x100000, s%d" % (sO + 2, sT2))
    G = Gaps16(64)
    ba = L(baddr)
    for k in range(16):
        G.put(k, ba[k * len(ba) // 16:(k + 1) * len(ba) // 16], post=True)
    for i, ty in enumerate("WWX"):
        pre, tag = pl.take(ty, i)
        assert len(pre) == 2
        G.put(0, pre)
        pl.issue(tag)
        put_dma(G, i, sW if ty == "W" else sX, 1 + 20 * i, 20 + 20 * i)
    G.spread(b_reads(0), 20, 56)
    G.stream([x for n in range(8) for x in kv_pack(0, n)], 16, 49)
    G.stream([x for n in range(3) for x in kv_pack(1, n)], 50, 63)
    p.add(G.emit(kv_mf(1)))
    p(WL)
    p("s_cmp_ge_u32 s%d, 10\ns_cbranch_scc1 M_bv" % sCB)
    pl0 = pl
    qfx = lambda st, i: st * 48 + i * 4
    qfw = lambda st, i: st * 48 + 16 + i * 4
    qacc = lambda j, d: RA + j * 32 + d * 4
    def q_reads(st):
        X = ["ds_read_b128 %s, v%d offset:%d" % (rr("a", qfx(st, j), 4), vXr + 2 * (j >> 1) + st, (j & 1) * 2048) for j in (2, 3, 0, 1)]
        W = ["ds_read_b64_tr_b16 %s, v%d offset:%d" % (rr("a", qfw(st, i) + 2 * u, 2), vWr + i, st * 8192 + u * 1024) for i in range(8) for u in range(2)]
        return X[:2] + W + X[2:]
    def q_derive():
        return ["v_xor_b32 v%d, 64, v%d" % (vXr + 1, vXr), "v_xor_b32 v%d, 64, v%d" % (vXr + 3, vXr + 2)] + \
               ["v_xor_b32 v%d, %d, v%d" % (vWr + c, c * 32, vWr) for c in range(1, 8)]
    for var in range(2):
        pl = pl0.copy()
        if var:
            p("M_bv:")
        mfb = b_mf(var, 1) + b_mf(var, 0)
        G = Gaps(16)
        G.spread(b_reads(0), 2, 6); G.put(7, WL); G.spread(b_reads(1), 8, 13)
        put_dma(G, 0, sW, 2, 8); put_dma(G, 1, sX, 9, 14)
        b_upd = sadd([vXr, vXr + 1], sDa), sadd([vXr + 2, vXr + 3], sDa) + sadd([vWr, vWr + 1], sDb)
        G.put(10, b_upd[0]); G.put(14, b_upd[1])
        b_del = lambda b: ["s_mov_b32 s%d, 0x%x" % (sd, u32((pl.unit[(k, b)] - pl.unit[(k, b - 1)]) * U)) for sd, k in ((sDa, "BX"), (sDb, "BW"))] if b < 10 else []
        body("M_b%d" % var, G, mfb)
        G = Gaps(8)
        pre, tag = pl.take("X", 1)
        assert len(pre) == 2
        G.put(0, pre)
        pl.issue(tag)
        put_dma(G, 1, sX, 1, 6)
        G.spread(b_reads(1), 0, 5)
        G.stream([x for n in range(3, 8) for x in kv_pack(1, n)], 0, 6)
        G.put(0, b_del(1))
        G.put(6, b_upd[0] + b_upd[1])
        z = b_mf(var, 0, zero=True)
        p.add(G.emit(z, 0, 7))
        last = z[7]
        park = ["v_accvgpr_write_b32 a%d, v%d" % (aPK + k, RB + 32 + k) for k in range(32)] + ["v_accvgpr_write_b32 a%d, v%d" % (aPK + 32 + k, RC + 32 + k) for k in range(32)]
        park += ["v_accvgpr_write_b32 a%d, v%d" % (104 + k, RB + 16 + k) for k in range(16)]
        pk_ = park[:32] + park[64:]
        stores = [kv_store(0, 0), pk_[:10], kv_store(0, 1), pk_[10:20], kv_store(1, 0), pk_[20:30], kv_store(1, 1), pk_[30:39], pk_[39:]]
        for b in range(1, 10):
            bar = pl.barrier(Bs(b), Bs(b - 1), 512)
            cu = b_del(b + 1)
            cu += extra("X" if (b != 2) else "W", 2)
            tags = []
            for i, ty in enumerate("WX"):
                pre, tag = pl.take(ty, i)
                cu += pre
                tags.append(tag)
            cu += stores[b - 1]
            pl.hook(stores[b - 1], "kv")
            k0 = b - (10 - (2 + QT))
            if k0 >= 0:
                cu += qt(k0)
                pl.hook(qt(k0))
            for t in tags:
                pl.issue(t)
            skel(last, bar, mfb, cu, "M_b%d" % var)
            if STAMPS and os.environ.get("FINE"):
                if var and b == 1:
                    st_.n -= 9
                st_()
            last = mfb[15]
        p(last)
        p.add(pl.barrier(Qs(0), Bs(9), 1024))
        G = Gaps(8)
        qa = x_rd16(vXr) + ["s_add_u32 s%d, s%d, 0x%x" % (sT, sW4, pl.unit[("QX", 0, 1)] * U), "v_add_u32 v%d, s%d, v%d" % (vXr + 2, sT, vXr),
                            "s_add_u32 s%d, s%d, 0x%x" % (sT, sW4, pl.unit[("QX", 0, 0)] * U), "v_add_u32 v%d, s%d, v%d" % (vXr, sT, vXr)] + \
             w_rd16(vWr) + upd([vWr], pl.unit[("QW", 0)] * U) + q_derive()
        for k in range(4):
            G.put(k, qa[k * len(qa) // 4:(k + 1) * len(qa) // 4], post=True)
        pre, tag = pl.take("X", 0)
        assert len(pre) == 2
        G.put(0, pre)
        pl.issue(tag)
        put_dma(G, 0, sX, 0, 7)
        G.spread(q_reads(0), 4, 7)
        p.add(G.emit(b_mf(var, 1)))
        if var == 0:
            p("s_branch M_bdone")
    p("M_bdone:")
    st_()

    qorder = [(j, d) for jj in (2, 0) for d in range(8) for j in (jj, jj + 1)]
    def q_mf(st, zero=False):
        return ["%s %s, %s, %s, %s" % (M16, rr("v", qacc(j, d), 4), rr("a", qfw(st, d), 4), rr("a", qfx(st, j), 4), "0" if zero else rr("v", qacc(j, d), 4)) for j, d in qorder]
    mfq = q_mf(1) + q_mf(0)
    NQ = 5
    G = Gaps16(64)
    G.spread(q_reads(0), NQ, int(os.environ.get('QE', '26')))
    G.put(31, WL)
    G.spread(q_reads(1), 32, 54)
    QC = int(os.environ.get("QC", "17"))
    put_dma(G, 0, sX, NQ, NQ + QC - 1); put_dma(G, 1, sX, NQ + QC, NQ + 2 * QC - 1); put_dma(G, 2, sW, NQ + 2 * QC, NQ + 3 * QC - 1)
    q_upd = sadd([vXr], sDa) + sadd([vXr + 2], sDb) + sadd([vWr], sDc) + q_derive()
    G.spread(q_upd, 57, 62)
    def q_del(s):
        if s > 9:
            return []
        return ["s_mov_b32 s%d, 0x%x" % (sd, u32((pl.unit[k(s)] - pl.unit[k(s - 1)]) * U))
                for sd, k in ((sDa, lambda x: ("QX", x, 0)), (sDb, lambda x: ("QX", x, 1)), (sDc, lambda x: ("QW", x)))]
    body("M_q", G, mfq, NP=NQ)
    p("s_mul_i32 s%d, s%d, %d" % (sT, sTB, 4 * 120 * 1024))
    p("s_lshl_b32 s%d, s%d, 13" % (sT2, sCB))
    p("s_add_u32 s%d, s%d, s%d" % (sT, sT, sT2))
    srd(p, sBO, ptr(D_WS), off_s=sT, off_imm=WS_BF)
    p("s_cmp_lt_u32 s2, 240\ns_cselect_b32 s%d, %d, 0" % (sBO + 2, 4 * 120 * 1024))
    p("s_lshr_b32 s%d, s%d, 1" % (sBo, sWave))
    p("s_mul_i32 s%d, s%d, %d" % (sBo, sBo, 2 * 120 * 1024))
    p("s_and_b32 s%d, s%d, 0x1000" % (sT, sW4))
    p("s_add_u32 s%d, s%d, s%d" % (sBo, sBo, sT))
    G = Gaps16(32)
    for i, ty in ((1, "X"), (2, "W")):
        pre, tag = pl.take(ty, i)
        p.add(pre)
        pl.issue(tag)
        put_dma(G, i, sX if ty == "X" else sW, 15 * (i - 1), 15 * (i - 1) + 14)
    p(WL)
    G.spread(q_reads(1), 0, 22)
    G.put(16, q_del(1))
    G.spread(q_upd, 25, 30)
    G.stream([x for t in range(4) for x in pack_tile(RA + 16 * t, RD + 8 * t)], 0, 14)
    z = q_mf(0, zero=True)
    p.add(G.emit(z, 0, 31))
    last = z[31]
    def bm_frag_loads(q, fbase, aXF):
        q("s_lshl_b32 s%d, s%d, 3" % (sTT, sXcd))
        q("s_lshl_b32 s%d, s%d, 1" % (sT, sWave))
        q("s_add_u32 s%d, s%d, s%d" % (sTT, sTT, sT))
        q("s_mul_i32 s%d, s%d, %d" % (sT, sTT, 120 * 1024))
        srd(q, sBF, ptr(D_WS), off_s=sT, off_imm=WS_BF, nrec=2 * 120 * 1024)
        q("s_mul_i32 s%d, s%d, 5" % (sT, sIdx))
        q("s_lshr_b32 s%d, s%d, 2" % (sT, sT))
        q("s_add_u32 s%d, s%d, %d" % (sT, sT, fbase))
        q("s_lshl_b32 s%d, s%d, 10" % (sT, sT))
        for tt in range(2):
            for u in range(2):
                q("buffer_load_dwordx4 %s, v%d, s[%d:%d], s%d offen offset:%d %s" % (rr("a", aXF + (tt * 2 + u) * 4, 4), vL16, sBF, sBF + 3, sT, u * 1024, WT))
            if tt == 0:
                q("s_add_u32 s%d, s%d, %d" % (sT, sT, 120 * 1024))
    vV, vWa, vRd = vA + 2, vA + 3, vA
    def bm1_loads(q):
        bm_frag_loads(q, 40, aXF)
        q("s_mul_i32 s%d, s%d, 20" % (sT, sIdx))
        q("v_and_b32 v%d, 31, v%d" % (t2, vLane))
        q("v_add_u32 v%d, s%d, v%d" % (t1, sT, t2))
        q("v_lshrrev_b32 v%d, 5, v%d" % (vV, t1))
        q("v_lshlrev_b32 v%d, 11, v%d" % (vV, vV))
        q("v_and_b32 v%d, 31, v%d" % (t1, t1))
        q("v_lshl_add_u32 v%d, v%d, 4, v%d" % (vV, t1, vV))
        q("v_and_b32 v%d, 32, v%d" % (t1, vLane))
        q("v_lshl_add_u32 v%d, v%d, 4, v%d" % (vV, t1, vV))
        q("v_bfrev_b32 v%d, 1" % t1)
        q("v_cmp_gt_u32 vcc, 20, v%d" % t2)
        q("v_cndmask_b32 v%d, v%d, v%d, vcc" % (vV, t1, vV))
        for tt in range(2):
            q("s_mov_b32 s%d, %d" % (sT, (tt * 120 + 80) * 1024))
            for mm in range(2):
                q("buffer_load_dwordx4 %s, v%d, s[%d:%d], s%d offen offset:%d %s" % (rr("a", aVF + (tt * 2 + mm) * 4, 4), vV, sBF, sBF + 3, sT, mm * 1024, WT))
    qst = {k + 1: [("b", b_store(k))] for k in range(4)}
    qst.update({7: [("k2", kv_store(0, 2))], 8: [("k2", kv_store(0, 3)), ("k2", kv_store(1, 2))], 9: [("k2", kv_store(1, 3))]})
    for k in range(4):
        qst.setdefault(5 + k, []).append(("p", park[32 + 8 * k:40 + 8 * k]))
    pubB = pubKV = None
    for s in range(1, 10):
        bar = pl.barrier(Qs(s), Qs(s - 1), 1024)
        cu = q_del(s + 1)
        cu += extra("X", 3)
        tags = []
        for i, ty in enumerate("XXW"):
            pre, tag = pl.take(ty, i)
            cu += pre
            tags.append(tag)
        cu += qt(s + 1 + QT)
        pl.hook(qt(s + 1 + QT))
        if s == 1:
            cu.append(poll_check("go"))
        if pubKV is None and pl.complete("kv"):
            pubKV = s
            cu.append(publish(1))
        if pubB is None and s > 4 and pl.complete("b"):
            pubB = s
            cu.append(publish(2))
        if PREFETCH == 4 and s in (5, 6, 7, 8):
            ins = [x.replace("global_load_dword v%d" % vDum, "global_load_dword v%d" % vA) for x in pf(A_WO, 4096 * 1280, (s - 5) * 10240, 10)]
            cu += ins
            pl.hook(ins)
        if s == 6:
            ins = code_touch(vA, 4)
            cu += ins
            pl.hook(ins)
        if s == 5:
            ins = poll_load(1)
            cu += ins
            pl.hook(ins, "poll")
        if s == 7:
            assert pl.complete("poll")
            cu.append(poll_check(1))
        if s == 8:
            ins = poll_load(2)
            cu += ins
            pl.hook(ins, "poll")
        for tag, ins in qst.get(s, []):
            cu += ins
            pl.hook(ins, tag)
        for t in tags:
            pl.issue(t)
        skel(last, bar, mfq, cu, "M_q", NQ)
        last = mfq[63]
        if STAMPS and os.environ.get("FINE"):
            st_()
    if VERB:
        print("pubB", pubB, "pubKV", pubKV)
    assert pubB and pubKV and not pl.pend["X"] and not pl.pend["W"]
    C1, C2, PH, VF, KC, AF, RR = 48, 64, 80, 96, 112, TMP, 32
    def phi(xf, more=None):
        for tile, C in ((0, C1), (1, C2)):
            for u in range(2):
                p("%s %s, %s, %s, %s" % (MF, rr("v", C, 16), rr("v", AW + (tile * 2 + u) * 4, 4), rr("a", xf + u * 4, 4), rr("v", C, 16) if u else "0"))
        if more:
            more()
        p(call("M_phi"))
    aXQ = 232
    q = Prog()
    q("M_phi:")
    x = [C1 + k for k in range(16)] + [C2 + k for k in range(4)]
    m = t1
    q("v_max3_f32 v%d, v%d, v%d, v%d" % (m, x[0], x[1], x[2]))
    for k in range(3, 19, 2):
        q("v_max3_f32 v%d, v%d, v%d, v%d" % (m, m, x[k], x[k + 1]))
    q("v_max_f32 v%d, v%d, v%d" % (m, m, x[19]))
    q("v_mul_f32 v%d, s%d, v%d" % (m, sL2, m))
    for k in range(0, 20, 2):
        q("v_pk_fma_f32 %s, %s, s[%d:%d], %s op_sel:[0,1,0] op_sel_hi:[1,1,0] neg_lo:[0,0,1] neg_hi:[0,0,1]" % (v2(x[k]), v2(x[k]), sL2 - 1, sL2, v2(m)))
    for k in range(20):
        q("v_exp_f32 v%d, v%d" % (x[k], x[k]))
    y = C2 + 4
    q(pk_add(y, x[0], x[2]))
    for k in range(4, 20, 2):
        q(pk_add(y, y, x[k]))
    q("v_add_f32 v%d, v%d, v%d" % (m, y, y + 1))
    q("v_rcp_f32 v%d, v%d" % (m, m))
    for k in range(0, 20, 2):
        q(pk_mulb(x[k], x[k], m))
    for k in range(10):
        q("v_cvt_pk_bf16_f32 v%d, v%d, v%d" % (PH + k, x[2 * k], x[2 * k + 1]))
    q(ret)
    tail += q.ins

    vWo = vA + 1
    sKb, sNt = sHi, sLo
    def wo_src(q):
        q("s_lshr_b32 s%d, s2, 1" % sT)
        q("s_mul_i32 s%d, s%d, 40960" % (sT, sT))
        q("s_and_b32 s%d, s2, 1" % sT2)
        q("s_lshl2_add_u32 s%d, s%d, s%d" % (sT2, sT2, sWave))
        q("s_mul_i32 s%d, s%d, 160" % (sT2, sT2))
        q("s_add_u32 s%d, s%d, s%d" % (sT, sT, sT2))
        srd(q, sY, ptr(A_WO), off_s=sT)
        q("s_sub_u32 s%d, %d, s%d" % (sY + 2, 4096 * 1280, sT))
        q("s_lshl_b32 s%d, s%d, 13" % (sT2, sWave))
        q("s_add_u32 m0, s%d, 0x20000" % sT2)
        for k in range(5):
            q("v_add_u32 v%d, %d, v%d" % (t0, 64 * k, vLane))
            q("v_mul_u32_u24 v%d, 0x199a, v%d" % (t1, t0))
            q("v_lshrrev_b32 v%d, 16, v%d" % (t1, t1))
            q("v_mul_u32_u24 v%d, 1120, v%d" % (t1, t1))
            q("v_lshl_add_u32 v%d, v%d, 4, v%d" % (t0, t0, t1))
            q("buffer_load_dwordx4 v%d, s[%d:%d], 0 offen lds" % (t0, sY, sY + 3))
            q("s_add_u32 m0, m0, 0x400")
        q("s_mul_i32 s%d, s2, 0x667" % sKb)
        q("s_lshr_b32 s%d, s%d, 16" % (sKb, sKb))
        q("s_mul_i32 s%d, s%d, 40" % (sT, sKb))
        q("s_sub_u32 s%d, s2, s%d" % (sNt, sT))
        q("s_lshl2_add_u32 s%d, s%d, s%d" % (sKb, sKb, sWave))
        q("s_mul_i32 s%d, s%d, 0x3334" % (sOff, sKb))
        q("s_lshr_b32 s%d, s%d, 16" % (sOff, sOff))
        q("s_mul_i32 s%d, s%d, 5" % (sT2, sOff))
        q("s_sub_u32 s%d, s%d, s%d" % (sT2, sKb, sT2))
        q("s_mul_i32 s%d, s%d, 160" % (sOff, sOff))
        q("s_mul_i32 s%d, s%d, 40" % (sT, sT2))
        q("s_cmp_eq_u32 s%d, 4" % sT2)
        q("s_cselect_b32 s%d, 16, s%d" % (sT, sT))
        q("s_cselect_b64 vcc, -1, 0")
        q("s_add_u32 s%d, s%d, s%d" % (sT, sT, sOff))
        q("s_mul_i32 s%d, s%d, 40" % (sT, sT))
        q("s_add_u32 s%d, s%d, s%d" % (sT, sT, sNt))
        q("s_lshl_b32 s%d, s%d, 5" % (sT, sT))
        srd(q, sY, ptr(B_WO), nrec=640 * 1280)
        q("v_lshrrev_b32 v%d, 5, v%d" % (t0, vLane))
        q("v_mul_u32_u24 v%d, 20, v%d" % (t0, t0))
        q("v_bfe_u32 v%d, v%d, 3, 1" % (t1, vLane))
        q("v_lshl_add_u32 v%d, v%d, 3, v%d" % (t0, t1, t0))
        q("v_bfe_u32 v%d, v%d, 4, 1" % (t1, vLane))
        q("v_lshl_add_u32 v%d, v%d, 2, v%d" % (t0, t1, t0))
        q("v_lshrrev_b32 v%d, 3, v%d" % (t1, vLane))
        q("v_mul_u32_u24 v%d, 20, v%d" % (t1, t1))
        q("v_cndmask_b32 v%d, v%d, v%d, vcc" % (t0, t0, t1))
        q("v_bfe_u32 v%d, v%d, 1, 2" % (t1, vLane))
        q("v_add_u32 v%d, v%d, v%d" % (t0, t0, t1))
        q("v_mul_u32_u24 v%d, 1280, v%d" % (t0, t0))
        q("v_and_b32 v%d, 1, v%d" % (t1, vLane))
        q("v_lshl_add_u32 v%d, v%d, 4, v%d" % (t0, t1, t0))
        q("buffer_load_dwordx4 v%d, s[%d:%d], s%d offen lds" % (t0, sY, sY + 3, sT))
        q("s_mul_i32 s%d, s%d, 0x3334" % (sT, sNt))
        q("s_lshr_b32 s%d, s%d, 16" % (sT, sT))
        q("s_mul_i32 s%d, s%d, 95" % (sT, sT))
        q("s_add_u32 s%d, s%d, s%d" % (sT, sT, sNt))
        q("s_mul_i32 s%d, s%d, 5" % (sKb, sKb))
        q("s_add_u32 s%d, s%d, s%d" % (sT, sT, sKb))
        q("s_lshl_b32 s%d, s%d, 10" % (sT, sT))
        q("s_add_u32 s%d, s%d, 0x%x" % (sT, sT, WS_WOB - WS_WOA))
        q("s_cmp_lt_u32 s2, 200")
        q("s_cselect_b32 s%d, s%d, 0x10000000" % (sBo, sT))
        q("s_and_b32 s%d, s2, 1" % sT)
        q("s_lshl_b32 s%d, s%d, 1" % (sT, sT))
        q("s_lshr_b32 s%d, s%d, 1" % (sT2, sWave))
        q("s_add_u32 s%d, s%d, s%d" % (sT, sT, sT2))
        q("s_lshl_b32 s%d, s%d, 8" % (sT, sT))
        q("s_andn2_b32 s%d, s2, 1" % sT2)
        q("s_add_u32 s%d, s%d, s%d" % (sT, sT, sT2))
        q("s_and_b32 s%d, s%d, 1" % (sT2, sWave))
        q("s_add_u32 s%d, s%d, s%d" % (sT, sT, sT2))
        q("s_mul_i32 s%d, s%d, 5120" % (sDc, sT))
    WR = S(1, 0)
    def wo_out(q):
        q("v_lshrrev_b32 v%d, 2, v%d" % (t0, vLane))
        q("v_mul_u32_u24 v%d, 160, v%d" % (vWo, t0))
        q("v_and_b32 v%d, 3, v%d" % (t1, vLane))
        q("s_lshl_b32 s%d, s%d, 13" % (sT, sWave))
        q("s_add_u32 s%d, s%d, 0x20000" % (sT, sT))
        q("v_lshl_add_u32 v%d, v%d, 3, s%d" % (t1, t1, sT))
        q("v_add_u32 v%d, v%d, v%d" % (vWo, vWo, t1))
        for n in range(5):
            for u in range(2):
                q("ds_read_b64_tr_b16 %s, v%d offset:%d" % (rr("v", WR + 4 * n + 2 * u, 2), vWo, n * 32 + u * 16 * 160))
        q("v_lshl_add_u32 v%d, v%d, 5, v%d" % (t1, t0, t1))
        q("v_lshrrev_b32 v%d, 4, v%d" % (t0, vLane))
        q("v_lshl_add_u32 v%d, v%d, 7, v%d" % (t1, t0, t1))
        for u in range(2):
            q("ds_read_b64_tr_b16 %s, v%d offset:%d" % (rr("v", WR + 20 + 2 * u, 2), t1, 5120 + u * 128))
        srd(q, sBF, ptr(D_WS), off_imm=WS_WOA, nrec=WS_OB - WS_WOA)
    def wo_st(q):
        for n in range(5):
            if n == 4:
                q("s_addk_i32 s%d, 0x1000" % sDc)
            q("buffer_store_dwordx4 %s, v%d, s[%d:%d], s%d offen offset:%d %s" % (rr("v", WR + 4 * n, 4), vL16, sBF, sBF + 3, sDc, (n & 3) * 1024, WT))
        q("buffer_store_dwordx4 %s, v%d, s[%d:%d], s%d offen %s" % (rr("v", WR + 20, 4), vL16, sBF, sBF + 3, sBo, WT))
    p(last)
    p(WL + "\ns_barrier")
    sQs = sTB
    def kvsetup(q):
        q("s_mov_b32 s%d, 0x%x\ns_mov_b32 s%d, s%d" % (sDa, QSCALE, sDa + 1, sDa))
        q("s_mov_b32 s%d, 0x%x" % (sL2, LOG2E))
        q("s_lshl_b32 s%d, s%d, 20" % (sT, sH))
        srd(q, sKV, ptr(D_WS), off_s=sT, off_imm=WS_KV)
        q("s_lshl_b32 s%d, s%d, 16" % (sT, sI))
        q("s_sub_u32 s%d, 0x100000, s%d" % (sKV + 2, sT))
        q("s_lshl_b32 s%d, s%d, 11" % (sW2k, sWave))
        q("v_add_u32 v%d, s%d, v%d" % (vDma, sW2k, vL16))
    kvld = lambda so, k: "buffer_load_dwordx4 v%d, s[%d:%d], s%d offen offset:%d %s lds" % (vDma, sKV, sKV + 3, so, k * 1024, WT)
    def kv0(t, half):
        o = t * U + half * 8192
        return [["s_add_u32 m0, s%d, 0x%x" % (sW2k, o), "s_mov_b32 s%d, 0x%x" % (sOff, o), kvld(sOff, 0)], kvld(sOff, 1)]
    sSc = sCB
    def aw_prep(q):
        q("s_lshr_b32 s%d, s%d, 1" % (sSc, sWave))
        q("s_lshl_b32 s%d, s%d, 13" % (sSc, sSc))
        q("s_add_u32 s%d, s%d, s%d" % (sSc, sSc, sW4))
        q("s_add_u32 s%d, s%d, %d" % (sSc, sSc, 4 * U + 8192))
        q("v_add_u32 v%d, s%d, v%d" % (t0, sSc, vL16))
        q("ds_write_b128 v%d, %s" % (t0, rr("a", aRAW, 4)))
        q("ds_write_b128 v%d, %s offset:1024" % (t0, rr("a", aRAW + 4, 4)))
        q("s_and_b32 s%d, s%d, 3" % (sT, sIdx))
        q("s_mul_i32 s%d, s%d, 160" % (sT, sT))
        q("s_sub_u32 s%d, s%d, s%d" % (sT, sSc, sT))
        q("s_addk_i32 s%d, 480" % sT)
        q("v_lshrrev_b32 v%d, 5, v%d" % (t0, vLane))
        q("v_bfe_u32 v%d, v%d, 2, 2" % (t1, vLane))
        q("v_lshl_add_u32 v%d, v%d, 2, v%d" % (t0, t0, t1))
        q("v_mul_u32_u24 v%d, 40, v%d" % (t0, t0))
        q("v_add_u32 v%d, s%d, v%d" % (t0, sT, t0))
        q("v_bfe_u32 v%d, v%d, 4, 1" % (t1, vLane))
        q("v_lshl_add_u32 v%d, v%d, 4, v%d" % (t2, t1, t0))
        q("v_bfe_u32 v%d, v%d, 1, 1" % (t1, vLane))
        q("v_lshl_add_u32 v%d, v%d, 3, v%d" % (t2, t1, t2))
        for tile in range(2):
            for u in range(4):
                q("ds_read_b64_tr_b16 %s, v%d offset:%d" % (rr("v", AW + tile * 8 + 2 * u, 2), t0 if tile else t2, u * 320 + tile * 32))
        q("v_bfe_u32 v%d, v%d, 2, 1" % (vWa, vLane))
        q("v_mul_u32_u24 v%d, 0x8000, v%d" % (vWa, vWa))
        q("v_lshl_or_b32 v%d, v%d, 16, v%d" % (vWa, vWa, vWa))
    fl = L(kvsetup) + kv0(0, 0) + kv0(1, 0) + [poll_check(2)] + L(bm1_loads) + L(aw_prep)
    mfl = q_mf(1)
    for k in range(32):
        p(mfl[k])
        p.add(fl[k * len(fl) // 32:(k + 1) * len(fl) // 32])
    st_()
    wo_chunk = L(wo_src)
    va = []
    for j in (2, 3, 0, 1):
        if os.environ.get("PKMUL", "1") == "1":
            va += ["v_pk_mul_f32 %s, %s, s[%d:%d]" % (rr("v", qacc(j, 0) + k, 2), rr("v", qacc(j, 0) + k, 2), sDa, sDa + 1) for k in range(0, 32, 2)]
        else:
            va += ["v_mul_f32 v%d, s%d, v%d" % (qacc(j, 0) + k, sDa, qacc(j, 0) + k) for k in range(32)]
        va += pack_tile(qacc(j, 0), Q(j, 0)) + pack_tile(qacc(j, 4), Q(j, 2))
    va += ["v_xor_b32 v%d, v%d, v%d" % (AW + k, AW + k, vWa) for k in range(16)]
    vm = kv0(2, 0) + kv0(0, 1) + kv0(1, 1) + kv0(3, 0) + kv0(4, 0) + kv0(5, 0) + kv0(2, 1) + kv0(3, 1) + [wo_chunk]
    for k, x in enumerate(vm):
        p.add([x] + va[k * len(va) // len(vm):(k + 1) * len(va) // len(vm)])
    st_()
    phi(aXF)
    fb = (lambda: st_()) if os.environ.get("FINEB") else (lambda: None)
    fb()
    for k in range(4):
        p("v_mov_b32 v%d, 0" % (RR + k))
    zero_o = lambda k, z: "%s %s, %s, %s, 0" % (MF, rr("a", 16 * k, 16), rr("v", z, 4), rr("v", z, 4))
    p("v_and_b32 v%d, 31, v%d" % (t2, vLane))
    p("s_mov_b32 s%d, s%d" % (sT, sSc))
    p("v_mul_u32_u24 v%d, 48, v%d" % (vWa, vLane))
    p("v_add_u32 v%d, s%d, v%d" % (vWa, sT, vWa))
    p("v_lshrrev_b32 v%d, 5, v%d" % (t1, vLane))
    p(zero_o(0, RR))
    p("v_bfe_u32 v%d, v%d, 2, 2" % (vRd, vLane))
    p("v_lshl_add_u32 v%d, v%d, 2, v%d" % (vRd, t1, vRd))
    p("v_mul_u32_u24 v%d, 48, v%d" % (vRd, vRd))
    p("v_bfe_u32 v%d, v%d, 4, 1" % (t1, vLane))
    p("v_lshl_add_u32 v%d, v%d, 5, v%d" % (vRd, t1, vRd))
    p("v_and_b32 v%d, 3, v%d" % (t1, vLane))
    p("v_lshl_add_u32 v%d, v%d, 3, v%d" % (vRd, t1, vRd))
    p("v_add_u32 v%d, s%d, v%d" % (vRd, sT, vRd))
    p(zero_o(1, RR))
    p("v_mov_b32 v%d, 0x3f803f80" % t0)
    p("v_cmp_eq_u32 vcc, 20, v%d" % t2)
    def tr_out():
        p("ds_write_b128 v%d, %s" % (vWa, rr("v", PH, 4)))
        p("ds_write_b128 v%d, %s offset:16" % (vWa, rr("v", PH + 4, 4)))
        p("ds_write_b64 v%d, %s offset:32" % (vWa, rr("v", PH + 8, 2)))
    def tr_in():
        for nn in range(2):
            for mm in range(2):
                for u in range(2):
                    p("ds_read_b64_tr_b16 %s, v%d offset:%d" % (rr("v", AF + (nn * 2 + mm) * 4 + 2 * u, 2), vRd, (16 * mm + 8 * u) * 48 + nn * 1536))
    def kv_mm(tt):
        for mm in range(2):
            for nn in range(2):
                c = rr("v", KC + nn * 16, 16)
                p("%s %s, %s, %s, %s" % (MF, c, rr("v", AF + (nn * 2 + mm) * 4, 4), rr("v", VF + tt * 8 + mm * 4, 4), "0" if (tt == 0 and mm == 0) else c))
    tr_out(); tr_in()
    for k in range(16):
        p("v_accvgpr_read_b32 v%d, a%d" % (VF + k, aVF + k))
        if k % 6 == 5:
            p(zero_o(2 + k // 6, RR))
    for k in range(16):
        p("v_cndmask_b32 v%d, v%d, v%d, vcc" % (VF + k, VF + k, t0))
        if k % 6 == 5:
            p(zero_o(4 + k // 6, RR))
    phi(aXF + 8, lambda: kv_mm(0))
    tr_out(); tr_in()
    p(zero_o(6, RR))
    p("v_lshrrev_b32 v%d, 5, v%d" % (t0, vLane))
    p("v_lshlrev_b32 v%d, 10, v%d" % (vV, t0))
    p("v_lshl_add_u32 v%d, v%d, 4, v%d" % (vV, t2, vV))
    p("v_and_b32 v%d, 15, v%d" % (vLim, vLane))
    p("v_lshrrev_b32 v%d, 4, v%d" % (t0, vLane))
    p("v_lshlrev_b32 v%d, 2, v%d" % (t0, t0))
    p("v_sub_u32 v%d, v%d, v%d" % (vLim, vLim, t0))
    p("v_mov_b32 v%d, 0x%x" % (vNeg, NEG))
    for j in range(4):
        p("v_mov_b32 v%d, 0" % (vL + j))
        p("v_mov_b32 v%d, 0x3f803f80" % (vOne + j))
    p(zero_o(7, RR))
    fb()
    R0 = 6 * U
    p("s_mul_i32 s%d, s%d, 6144" % (sT, sWave))
    p("s_add_u32 s%d, s%d, %d" % (sT, sT, R0))
    p("v_add_u32 v%d, s%d, v%d" % (t1, sT, vL16))
    kv_mm(1)
    p("s_lshl_b32 s%d, s%d, 3" % (sT, sIdx))
    p("s_add_u32 s%d, s%d, s%d" % (sT, sT, sXcd))
    p("s_lshl_b32 s%d, s%d, 13" % (sT, sT))
    srd(p, sY, ptr(D_WS), off_s=sT, off_imm=WS_KVP, nrec=5120)
    srd(p, sC, ptr(D_WS), off_imm=WS_CTX, nrec=16 * MB)
    p("s_lshl_b32 s%d, s%d, 10" % (sT, sWave))
    p("s_add_u32 s%d, s%d, %d" % (sT, sT, R0))
    p("v_mov_b32 v%d, v%d" % (vB, vL16))
    p("v_add_u32 v%d, 0x4000, v%d" % (vB + 1, vL16))
    for nn in range(2):
        for jj in range(3):
            p("ds_write_b128 v%d, %s offset:%d" % (t1, rr("v", KC + nn * 16 + jj * 4, 4), (nn * 3 + jj) * 1024))
    p("v_add_u32 v%d, s%d, v%d" % (t1, sT, vL16))
    fb()
    p("s_waitcnt vmcnt(16) lgkmcnt(0)\ns_barrier")
    st_()
    for j in range(8):
        p("ds_read_b128 %s, v%d offset:%d" % (rr("a", FB(j), 4), vB, j * 1024))
    RS = 128
    for k in range(2):
        for w in range(4):
            p("ds_read_b128 %s, v%d offset:%d" % (rr("v", RS + k * 16 + w * 4, 4), t1, w * 6144 + k * 4096))
    p("s_cmp_eq_u32 s%d, 3" % sWave)
    p("s_cselect_b32 s%d, 512, s%d" % (sSpin, sW2k))
    p("s_add_u32 s%d, s%d, 2560" % (sOff, sW2k))
    def mask_code(sl, tri, c=None):
        c = CI(2 * sl) if c is None else c
        r = ["s_sub_i32 s%d, s%d, s%d" % (sT, sNext, tri), "s_lshl_b32 s%d, s%d, 5" % (sT, sT), "v_subrev_u32 v%d, s%d, v%d" % (t0, sT, vLim)]
        for off, regs in ((0, (c, c + 12)), (16, (c + 4,)), (-16, (c + 8,))):
            r += ["v_cmp_gt_i32 s[%d:%d], %d, v%d" % (84 + 2 * k, 85 + 2 * k, off + k, t0) for k in range(4)]
            r += ["v_cndmask_b32 v%d, v%d, v%d, s[%d:%d]" % (b + k, b + k, vNeg, 84 + 2 * k, 85 + 2 * k) for b in regs for k in range(4)]
        return r
    xch = ["s_xor_b32 s%d, s%d, 1" % (sT, sWave), "s_lshl_b32 s%d, s%d, 13" % (sT, sT), "s_add_u32 s%d, s%d, 0x20000" % (sT, sT), "v_add_u32 v%d, s%d, v%d" % (t0, sT, vL16)] + \
          ["ds_read_b128 %s, v%d offset:%d" % (rr("v", Q(2, 0) + 4 * k, 4), t0, k * 1024) for k in range(8)] + \
          ["v_mov_b32 v%d, v%d" % (CI(2) + k, vMp + (k >> 3)) for k in range(16)] + \
          ["v_mov_b32 v%d, v%d" % (vM + 2, vMp), "v_mov_b32 v%d, v%d" % (vM + 3, vMp + 1), "s_xor_b32 s%d, s%d, 1" % (sTriB, sTriA), "s_mov_b32 s%d, 0" % sKeep, WL]
    def evt_check(kind):
        lab = p.newlabel("M_ev")
        back = "%s_r" % lab
        code = ["%s:" % lab]
        if kind == "x":
            code += ["s_cmp_eq_u32 s%d, s%d" % (sIt, sNlo), "s_cbranch_scc1 %s_x" % lab] + mask_code(1, sTriB) + ["s_branch " + back, "%s_x:" % lab] + xch + \
                    ["s_cmp_lt_u32 s%d, 32" % sIt, "s_cbranch_scc1 " + back]
        code += mask_code(1, sTriB, S(0, 2) if kind == "s0" else None)
        if kind == "l1":
            code += ["s_cmp_lt_u32 s%d, 32" % sIt, "s_cbranch_scc1 " + back]
        if kind not in ("lo", "s0"):
            code += mask_code(0, sTriA)
        tail.extend(code + ["s_branch " + back])
        return ["s_bitcmp1_b64 s[%d:%d], s%d" % (sMask, sMask + 1, sIt), "s_cbranch_scc1 %s" % lab, "%s:" % back]
    qk_mf = lambda par: ["%s %s, %s, %s, %s" % (M16, rr("v", S(par, j) + 4 * (f >> 2), 4), rr("a", FB(f), 4), rr("v", Q(j, f & 3), 4),
                                                 rr("v", (CI(j) if (f & 3) == 0 else S(par, j)) + 4 * (f >> 2), 4)) for f in range(8) for j in range(4)]
    pv_mf = lambda par: ["%s %s, %s, %s, %s" % (M16, rr("a", O(j, d), 4), rr("a", FB(8 + d), 4), rr("v", PP(par, j), 4), rr("a", O(j, d), 4)) for d in range(8) for j in range(4)]
    def allg(op, dst, tmp):
        return ["v_mov_b32 v%d, v%d" % (tmp, dst), "v_permlane32_swap_b32 v%d, v%d" % (dst, tmp), "%s v%d, v%d, v%d" % (op, dst, dst, tmp),
                "v_mov_b32 v%d, v%d" % (tmp, dst), "v_permlane16_swap_b32 v%d, v%d" % (dst, tmp), "%s v%d, v%d, v%d" % (op, dst, dst, tmp)]
    def rowmax(par, j, dst, tmp):
        s = S(par, j)
        return ["v_max3_f32 v%d, v%d, v%d, v%d" % (dst, s, s + 1, s + 2), "v_max3_f32 v%d, v%d, v%d, v%d" % (dst, dst, s + 3, s + 4),
                "v_max3_f32 v%d, v%d, v%d, v%d" % (dst, dst, s + 5, s + 6), "v_max_f32 v%d, v%d, v%d" % (dst, dst, s + 7)] + allg("v_max_f32", dst, tmp) + \
               ["v_add_f32 v%d, 0x%x, v%d" % (dst, f2u(BIAS), dst)]
    NG1 = int(os.environ.get("NG1", "9"))
    def sm_stream(par, part):
        allg_ = [(j, k) for k in range(4) for j in range(4)]
        groups = allg_[:NG1] if part == 0 else (allg_[NG1:] if part == 1 else allg_)
        out = []
        tm = lambda n: (TMP + (n % 4) * 2, TMP + (n % 4) * 2 + 1)
        cv = lambda n: "v_cvt_pk_bf16_f32 v%d, v%d, v%d" % ((PP(par, groups[n][0]) + groups[n][1],) + tm(n))
        for n, (j, k) in enumerate(groups):
            a, b = tm(n)
            out += ["v_exp_f32 v%d, v%d" % (a, S(par, j) + 2 * k)] + ([cv(n - 1)] if n else []) + ["v_exp_f32 v%d, v%d" % (b, S(par, j) + 2 * k + 1)]
        return out + [cv(len(groups) - 1)]
    NE = 4
    def sm_place(G, par, part, lo, hi, ne=0):
        st = sm_stream(par, part)
        ex = [x for x in st if x.startswith("v_exp")]
        cv = [x for x in st if x.startswith("v_cvt")]
        nc = 0
        for g in range(lo, hi + 1):
            ready = ne // 2
            left = 8 - G.load(g)
            rest = sum(max(0, 8 - G.load(x)) for x in range(g + 1, hi + 1))
            while True:
                todo = 8 * (len(ex) - ne) + 4 * (len(cv) - nc)
                force = todo > rest + max(left, 0) - 4 and left > -4 and g < hi or g == hi and todo
                if ne < len(ex) and (left >= 8 or (force and nc >= ready)) and ne // 2 - nc < 4 and not (ready - nc >= 3 and left >= 8 and ne % 2 == 0):
                    G.va[g].append(ex[ne]); ne += 1; left -= 8
                elif nc < (ready if g < hi else ne // 2) and (left >= 4 or force):
                    G.va[g].append(cv[nc]); nc += 1; left -= 4
                else:
                    break
        assert ne == len(ex) and nc == len(cv), (ne, nc)
    LT = lambda par, j: PP(par ^ 1, j)
    sum_mf = lambda par: ["%s %s, %s, %s, 0" % (M16, rr("v", LT(par, j), 4), rr("v", vOne, 4), rr("v", PP(par, j), 4)) for j in range(4)]
    need = lambda js: I("need", xrd=[("a", FB(j) + e) for j in js for e in range(4)])
    fread = lambda f, par: "ds_read_b128 %s, v%d offset:%d" % (rr("a", FB(f), 4), vB + par, f * 1024)
    ALL = (0, 1, 2, 3)
    def slow_site(par):
        lab = p.newlabel("M_sl")
        tail.extend(["%s:" % lab, call("M_slow%d" % par), "s_branch %s_r" % lab])
        chk = ["v_max3_f32 v%d, v%d, v%d, v%d" % (vU, LT(par, 0), LT(par, 1), LT(par, 2)), "v_max_f32 v%d, v%d, v%d" % (vU, vU, LT(par, 3)), "v_cmp_lt_f32 vcc, s%d, v%d" % (sThr, vU)]
        return chk, ["s_cbranch_vccnz %s" % lab, "%s_r:" % lab]
    accl = lambda par: ["v_add_f32 v%d, v%d, v%d" % (vL + j, vL + j, LT(par, j)) for j in range(4)]
    def iteration(par, barrier, ntile, kind, endc=(), endb=(), mid=()):
        qk = qk_mf(par ^ 1)
        SP = 24
        mf = qk[:SP] + sum_mf(par) + qk[SP:] + pv_mf(par)
        pos = lambda f: 4 * f + (4 if 4 * f >= SP else 0)
        G = Gaps16(68)
        LA = int(os.environ.get("LA", "14")); LV = int(os.environ.get("LV", "18")); BP = int(os.environ.get("BP", "53")); LG = ""
        for f in range(4, 16):
            G.put(pos(f) - (LA if f < 6 else LV), fread(f, (par ^ 1) if f < 8 else par))
        for f in range(2, 16, 2):
            G.nv[pos(f) - 1].insert(0, need([f, f + 1]))
        G.put(66, need([0, 1]))
        G.put(0, ["s_add_u32 s%d, s%d, 1" % (sIt, sIt)]); G.put(1, ["s_add_u32 s%d, s%d, 2" % (sNb, sNb)])
        G.put(3, ["s_max_i32 s%d, s%d, s%d" % (sNext, sIt, sNb)]); G.put(4, ["s_lshl_b32 s%d, s%d, 14" % (sRd, sNext)])
        G.put(5, ["s_and_b32 s%d, s%d, 0x1ffff" % (sRd, sRd)])
        G.put(64 - LV, "v_add_u32 v%d, s%d, v%d" % (vB + par, sRd, vL16))
        if barrier:
            G.put(BP, ["s_waitcnt vmcnt(%d)%s" % (4 + 4 * ntile, LG), "s_barrier"])
        for f in range(4):
            G.put(BP + 1 + 2 * f + (f >> 1) * 2, fread(f, par))
        slots = eval(os.environ.get("SL2", "[8, 16, 23, 28, 33, 40, 45, 50]")) if ntile == 2 else eval(os.environ.get("SL1", "[23, 28, 33, 45]"))
        for hh in range(2 * ntile):
            so = sGv if hh < ntile else sG
            g0, g1 = slots[2 * hh], slots[2 * hh + 1]
            G.put(g0 - 2, ["s_and_b32 s%d, s%d, 0x1ffff" % (sT, so)])
            G.put(g0 - 1, ["s_add_u32 m0, s%d, s%d" % (sT, sW2k)])
            G.put(g0, kvld(so, 0))
            G.put(g1, [kvld(so, 1), "s_add_u32 s%d, s%d, 0x4000" % (so, so)])
        chk, br = slow_site(par)
        G.put(35, br)
        G.put(64, evt_check(kind))
        for k, x in enumerate(mid):
            G.put(55 + k, x)
        G.put(67, list(endc))
        G.put(67, list(endb), post=True)
        sm_place(G, par, 1, 0, SP - 3)
        G.put(32, chk[:2]); G.put(34, chk[2])
        early = [x for x in sm_stream(par ^ 1, 0) if x.startswith("v_exp")][:NE]
        for g in range(SP - 2, 32):
            if early and G.load(g) == 0:
                G.put(g, early.pop(0))
        assert not early
        G.put(36, accl(par)[:2]); G.put(37, accl(par)[2:])
        sm_place(G, par ^ 1, 0, 38, 66, NE)
        if VERB:
            print("iteration", par, ntile, G.report(), sum(max(0, x - 8) for x in G.report()))
        out = [x if isinstance(x, I) else I(x) for x in G.emit(mf)]
        X = os.environ.get("X_DROP", "")
        if "d" in X: out = [x for x in out if x.kind != "dma"]
        if "b" in X: out = [x for x in out if x.mn != "s_barrier"]
        if "e" in X: out = [x for x in out if x.mn != "v_exp_f32"]
        if "c" in X: out = [x for x in out if x.mn != "v_cvt_pk_bf16_f32"]
        if "l" in X: out = [x for x in out if x.kind != "ds"]
        if "w" in X:
            for x in out:
                if x.kind == "ds": x.wr = set()
        if "v" in X: out = [x for x in out if not (x.kind == "branch" and (x.target.startswith("M_ev") or x.target.startswith("M_sl")))]
        p.add(out)

    pp, p = p, Prog()
    p("s_mov_b32 s%d, 0x%x" % (sThr, THRESH))
    p("s_lshl_b32 s%d, s%d, 2" % (sT, sI))
    p("s_add_u32 s%d, s%d, s%d" % (sTriB, sT, sWave))
    p("s_sub_u32 s%d, 60, s%d" % (sTriA, sT))
    p("s_add_u32 s%d, s%d, s%d" % (sTriA, sTriA, sWave))
    p("s_add_u32 s%d, s%d, 4" % (sNlo, sT))
    p("s_mov_b32 s%d, 0\ns_mov_b32 s%d, 3" % (sMask, sMask + 1))
    p("s_bitset1_b64 s[%d:%d], s%d" % (sMask, sMask + 1, sNlo))
    p("s_bitset1_b64 s[%d:%d], s%d" % (sMask, sMask + 1, sTriB))
    p("s_add_u32 s%d, s%d, 1" % (sT, sTriB))
    p("s_bitset1_b64 s[%d:%d], s%d" % (sMask, sMask + 1, sT))
    if os.environ.get("X_NOHOOK"):
        p("s_mov_b64 s[%d:%d], 0" % (sMask, sMask + 1))
    p("s_and_b32 s%d, s%d, 1" % (sNb, sWave))
    p("s_sub_u32 s%d, s%d, s%d" % (sNb, sNb, sNlo))
    p("s_add_u32 s%d, s%d, 2" % (sNb, sNb))
    p("s_mov_b32 s%d, 0\ns_mov_b32 s%d, 0\ns_mov_b32 s%d, 1.0" % (sIt, sNext, sKeep))
    p("s_mov_b32 s%d, 0x%x\ns_mov_b32 s%d, 0x%x" % (sG, 6 * U, sGv, 4 * U + 8192))

    p("s_lshr_b32 s%d, s%d, 1" % (sT, sXcd))
    p("s_lshl_b32 s%d, s%d, 6" % (sT, sT))
    p("s_lshr_b32 s%d, s%d, 4" % (sT2, sIdx))
    p("s_add_u32 s%d, s%d, s%d" % (sT, sT, sT2))
    p("v_and_b32 v%d, 31, v%d" % (t0, vLane))
    p("v_lshl_add_u32 v%d, v%d, 1, s%d" % (t0, t0, sT))
    p("s_lshl_b32 s%d, s%d, 3" % (sT, sIdx))
    p("v_and_b32 v%d, 7, v%d" % (t1, vLane))
    p("v_add_u32 v%d, s%d, v%d" % (t1, sT, t1))
    p("v_cmp_gt_u32 vcc, 32, v%d" % vLane)
    p("v_cndmask_b32 v%d, v%d, v%d, vcc" % (vPoll, t0, t1))
    p("s_andn2_b32 s%d, s2, 0x38" % sT)
    p("v_and_b32 v%d, 7, v%d" % (t1, vLane))
    p("v_lshl_add_u32 v%d, v%d, 3, s%d" % (t1, t1, sT))
    p("v_lshrrev_b32 v%d, 4, v%d" % (t0, vLane))
    p("v_cmp_eq_u32 vcc, 1, v%d" % t0)
    p("v_cndmask_b32 v%d, v%d, v%d, vcc" % (vPoll, vPoll, t1))
    p("v_cndmask_b32 v%d, 3, 4, vcc" % (vPoll + 1))
    p("v_lshlrev_b32 v%d, 7, v%d" % (vPoll, vPoll))
    p("s_lshl_b32 s%d, s%d, 1" % (sCnt, sI))
    p("s_add_u32 s%d, s%d, 1" % (sCnt, sCnt))
    p("s_lshl_b32 s%d, s%d, 9" % (sT, sWave))
    p("s_add_u32 s%d, s%d, %d" % (sT, sT, 7 * U + 8192))
    p("v_lshl_add_u32 v%d, v%d, 3, s%d" % (t2, vLane, sT))
    setup0, p = p.ins, pp
    G = Gaps16(32)
    for k in range(32):
        G.put(k, setup0[k * len(setup0) // 32:(k + 1) * len(setup0) // 32], post=True)
    red = []
    for k in range(2):
        b = RS + k * 16
        for e in range(4):
            red += ["v_add_f32 v%d, v%d, v%d" % (b + e, b + e, b + 4 + e), "v_add_f32 v%d, v%d, v%d" % (b + 8 + e, b + 8 + e, b + 12 + e)]
        red += ["v_add_f32 v%d, v%d, v%d" % (b + e, b + e, b + 8 + e) for e in range(4)]
    G.stream(red, 2, 16)
    for k in range(2):
        G.put(18 + 2 * k, "buffer_store_dwordx4 %s, v%d, s[%d:%d], s%d offen %s" % (rr("v", RS + k * 16, 4), vV, sY, sY + 3, sOff if k else sSpin, WT))
    G.spread([fread(f, 1) for f in range(4)], 22, 31)
    p.add(G.emit([x.replace(", " + x.split(", ")[-1], ", 0") if (k & 15) < 4 else x for k, x in enumerate(qk_mf(0))]))
    p.add(evt_check("s0"))
    p("s_mov_b32 s%d, 1\ns_mov_b32 s%d, 1" % (sIt, sNext))
    rm = [rowmax(0, j, vU + 2 * j, vU + 2 * j + 1) + ["v_sub_f32 v%d, 0, v%d" % (vM + j, vU + 2 * j)] for j in range(4)]
    p.add([rm[j][k] for k in range(len(rm[0])) for j in range(4)])
    p("ds_write_b64 v%d, %s" % (t2, rr("v", vM, 2)))
    for j in range(4):
        for k in range(0, 8, 2):
            p(pk_subb(S(0, j) + k, S(0, j) + k, vU + 2 * j))
            p("v_pk_mov_b32 %s, %s, %s op_sel:[%d,%d]" % (v2(CI(j) + k), v2((vM + j) & ~1), v2((vM + j) & ~1), j & 1, j & 1))
    fb()
    p.add(evt_check("lo"))
    p("s_waitcnt vmcnt(2)")
    wo_out(p)
    p.add(sm_stream(0, 0))
    wo_st(p)
    fb()
    p("v_xor_b32 v%d, 0x200, v%d" % (t2, t2))
    p("s_lshl_b32 s%d, s%d, 13" % (sT, sWave))
    p("s_add_u32 s%d, s%d, 0x20000" % (sT, sT))
    p("v_add_u32 v%d, s%d, v%d" % (t0, sT, vL16))
    p(WL + "\ns_barrier")
    p("ds_read_b64 %s, v%d" % (rr("v", vMp, 2), t2))
    for k in range(8):
        p("ds_write_b128 v%d, %s offset:%d" % (t0, rr("v", Q(0, 0) + 4 * k, 4), k * 1024))
    st_()
    dec = ["s_sub_u32 s%d, s%d, 1" % (sCnt, sCnt)]
    HOOKS = (3, 5, 7, 9, 13, 15) + ((29,) if CODEPF & 8 else ())
    HM = sum(1 << e for e in HOOKS)
    hk = ["s_mov_b32 s%d, 0x%x" % (sT, HM), "s_bitcmp1_b32 s%d, s%d" % (sT, sIt)]
    chain = lambda hs: [x for e in hs for x in ("s_cmp_eq_u32 s%d, %d" % (sIt, e), "s_cbranch_scc1 M_hook%d" % e)]
    def setcont(lab):
        p("s_getpc_b64 s[%d:%d]\n%s_pc:" % (sCont, sCont + 1, lab))
        p("s_add_u32 s%d, s%d, %s-%s_pc\ns_addc_u32 s%d, s%d, 0" % (sCont, sCont, lab, lab, sCont + 1, sCont + 1))
    p.add(kv_store(0, 4) + kv_store(1, 4))
    setcont("M_l1")
    p("M_l1:")
    iteration(0, False, 1, "x")
    e1 = dec + ["s_cselect_b32 s%d, M_l1x-M_l1, 0" % sT, "s_cselect_b32 s%d, -1, 0x%x" % (sT2, HM),
                "s_add_u32 s%d, s%d, s%d" % (sCont, sCont, sT), "s_addc_u32 s%d, s%d, 0" % (sCont + 1, sCont + 1)]
    iteration(1, True, 1, "l1", ["s_bitcmp1_b32 s%d, s%d" % (sT2, sIt)], ["s_cbranch_scc0 M_l1"], mid=e1)
    p.add(chain(HOOKS))
    p("M_l1x:")
    st_()
    def ctx_base(sblk):
        p("s_lshl_b32 s%d, s%d, 20" % (sT, sblk))
        p("s_lshl_b32 s%d, s%d, 15" % (sT2, sH))
        p("s_add_u32 s%d, s%d, s%d" % (sT, sT, sT2))
        p("s_add_u32 s%d, s%d, s%d" % (sCb, sT, sW2k))
    ctx_store = lambda r, jj: "buffer_store_dwordx4 %s, v%d, s[%d:%d], s%d offen offset:%d %s" % (rr("v", r, 4), vL16, sC, sC + 3, sCb, jj * 1024, WT)
    ctx_base(sI)
    for jj in range(2):
        p("v_rcp_f32 v%d, v%d" % (vU + 2 + jj, vL + 2 + jj))
        p("v_mov_b32 v%d, 0" % (vL + 2 + jj))
    Z = PP(1, 0)
    for k in range(4):
        p("v_mov_b32 v%d, 0" % (Z + k))
    for ds in range(4):
        T = S(1, 0) + (ds & 1) * 16
        for jj in range(2):
            for k in range(8):
                p("v_accvgpr_read_b32 v%d, a%d" % (T + 8 * jj + k, O(2 + jj, 2 * ds) + k))
        for jj in range(2):
            for k in range(0, 8, 2):
                p(pk_mulb(T + 8 * jj + k, T + 8 * jj + k, vU + 2 + jj))
        p.add(pack_tile(T, T))
        if ds & 1:
            p(zero_o(4 + (ds >> 1), Z)); p(zero_o(6 + (ds >> 1), Z))
        p(ctx_store(T, 0)); p(ctx_store(T + 4, 1))
        if ds < 3:
            p("s_add_u32 s%d, s%d, 0x2000" % (sCb, sCb))
    for hh in range(2):
        so = sG
        p.add(["s_and_b32 s%d, s%d, 0x1ffff" % (sT, so), "s_add_u32 m0, s%d, s%d" % (sT, sW2k), kvld(so, 0), kvld(so, 1), "s_add_u32 s%d, s%d, 0x4000" % (so, so)])
    p("s_mov_b32 s%d, 1.0" % sKeep)
    p("s_lshl_b32 s%d, s%d, 1" % (sCnt, sI))
    p("s_sub_u32 s%d, 14, s%d" % (sCnt, sCnt))
    st_()
    setcont("M_l2")
    p("M_l2:")
    iteration(0, True, 2, "l2", dec, ["s_cbranch_scc1 M_l2x"])
    iteration(1, True, 2, "l2", hk, ["s_cbranch_scc0 M_l2"])
    back = jump("s_setpc_b64 s[%d:%d]" % (sCont, sCont + 1), ["M_l1", "M_l1x", "M_l2"])
    vP = vA
    def bm2_loads(q):
        bm_frag_loads(q, 0, aXQ)
        q("s_lshl_b32 s%d, s%d, 16" % (sT, sIdx))
        q("s_lshl_b32 s%d, s%d, 14" % (sT2, sWave))
        q("s_add_u32 s%d, s%d, s%d" % (sT, sT, sT2))
        srd(q, sO, ptr(D_WS), off_s=sT, off_imm=WS_KVP, nrec=16384)
        for j in range(2):
            for k in range(5):
                if k in (0, 4):
                    q("s_mov_b32 s%d, %d" % (sT, j * 8192 + k * 1024))
                q("buffer_load_dwordx4 %s, v%d, s[%d:%d], s%d offen offset:%d %s" % (rr("a", aPA + j * 20 + k * 4, 4), vL16, sO, sO + 3, sT, (k & 3) * 1024, WT))
    jobs = {3: publish(3) + kv_store(0, 5) + kv_store(1, 5), 5: poll_load("KV") + kv_store(0, 6) + kv_store(1, 6), 7: poll_check("KV", 3) + kv_store(0, 7) + kv_store(1, 7),
            9: publish(4) + L(xclear0) + xclear(1), 13: poll_load(3) + xclear(2), 15: poll_check(3) + xclear(3) + L(bm2_loads), 29: code_touch(vKV, 8)}
    p.add(chain(HOOKS[:-1]))
    for e in reversed(HOOKS):
        p("M_hook%d:" % e)
        ins = [x if isinstance(x, I) else I(x) for x in jobs[e]]
        for x in ins:
            if x.kind == "vmem":
                x.wr = set()
        p.add(ins + [back])
    p("M_l2x:")
    for f in range(8, 16):
        p(fread(f, 1))
    chk, br = slow_site(1)
    p.add(sm_stream(1, 1) + sum_mf(1) + chk + br + accl(1))
    p("s_waitcnt vmcnt(0) lgkmcnt(0)\ns_barrier")
    p.add(publish(5))
    mfl = pv_mf(1)
    mfl = [mfl[d * 4 + j] for jj in (2, 0) for d in range(8) for j in (jj, jj + 1)]
    sKq, sMb, sCc, sGc, sGw, sGw2, sWs, sRs, sW5, sDl = range(37, 47)
    sPC, sPW, sXO, sOut = sBO, sW2, sO, sW
    sIc, sIw = sKo, sNext
    vDw, vC, vWf = 3, 4, 8
    SZ = 36864
    odd = "s_bitcmp1_b32 s%d, 0" % sXcd
    pp, p = p, Prog()
    p("s_lshr_b32 s%d, s%d, 1" % (sKq, sXcd))
    p("s_lshr_b32 s%d, s%d, 3" % (sCc, sIdx))
    p("s_sub_u32 s%d, 15, s%d" % (sT, sI))
    p(odd)
    p("s_cselect_b32 s%d, s%d, s%d" % (sMb, sT, sI))
    p("s_cselect_b32 s%d, 6, 5" % sT2)
    p("v_mov_b32 v%d, s%d" % (vPoll + 1, sT2))
    p("s_and_b32 s%d, s2, 0x3e" % sT)
    p("v_bfe_u32 v%d, v%d, 1, 2" % (t1, vLane))
    p("v_lshl_add_u32 v%d, v%d, 6, s%d" % (t1, t1, sT))
    p("v_and_b32 v%d, 1, v%d" % (t2, vLane))
    p("v_add_lshl_u32 v%d, v%d, v%d, 7" % (vPoll, t1, t2))
    p("s_lshl_b32 s%d, s%d, 20" % (sT, sMb))
    p("s_lshl_b32 s%d, s%d, 18" % (sT2, sKq))
    p("s_add_u32 s%d, s%d, s%d" % (sT, sT, sT2))
    srd(p, sPC, ptr(D_WS), off_s=sT, off_imm=WS_CTX, nrec=32 * 8192)
    p("s_lshl_b32 s%d, s%d, 2" % (sT, sCc))
    p("s_add_u32 s%d, s%d, s%d" % (sT, sT, sKq))
    p("s_mul_i32 s%d, s%d, %d" % (sT, sT, 32 * 10240))
    srd(p, sPW, ptr(D_WS), off_s=sT, off_imm=WS_WOA, nrec=32 * 10240)
    p("s_mul_i32 s%d, s%d, 5120" % (sW5, sWave))
    p("v_add_u32 v%d, s%d, v%d" % (vDw, sW5, vL16))
    p("s_add_u32 s%d, s%d, 0x4000" % (sW5, sW5))
    p("s_movk_i32 s%d, 0x4000\ns_movk_i32 s%d, 0x5000" % (sIc, sIw))
    ldc = lambda k: "buffer_load_dwordx4 v%d, s[%d:%d], s%d offen offset:%d %s lds" % (vDma, sPC, sPC + 3, sGc, k * 1024, WT)
    ldw = lambda so, k: "buffer_load_dwordx4 v%d, s[%d:%d], s%d offen offset:%d %s lds" % (vDw, sPW, sPW + 3, so, k * 1024, WT)
    sSt, sBw = sDa, sDb
    dPos = ["s_mul_i32 s%d, s%d, s%d" % (sGc, sSt, sIc), "s_mul_i32 s%d, s%d, s%d" % (sGw, sSt, sIw), "s_add_u32 s%d, s%d, s%d" % (sGw, sGw, sBw),
            "s_add_u32 s%d, s%d, 0x1000" % (sGw2, sGw)]
    dC = [["s_add_u32 m0, s%d, s%d" % (sWs, sW4)]] + [ldc(k) for k in range(4)]
    dW = [["s_add_u32 m0, s%d, s%d" % (sWs, sW5)]] + [ldw(sGw, k) for k in range(4)] + [["s_add_u32 m0, m0, 0x1000"], ldw(sGw2, 0)]
    dAdv = ["s_add_u32 s%d, s%d, 1" % (sSt, sSt), "s_and_b32 s%d, s%d, 15" % (sSt, sSt),
            "s_add_u32 s%d, s%d, %d" % (sWs, sWs, SZ), "s_cmp_eq_u32 s%d, %d" % (sWs, 4 * SZ), "s_cselect_b32 s%d, 0, s%d" % (sWs, sWs)]
    p("s_and_b32 s%d, s%d, 7" % (sSt, sH))
    p("s_lshl_b32 s%d, s%d, 1" % (sSt, sSt))
    p("s_mov_b32 s%d, 0\ns_mov_b32 s%d, 0" % (sWs, sBw))
    p("v_add_u32 v%d, 0x20000, v%d" % (vKV, vDw))
    setup, p = p.ins, pp
    wpre = []
    for k in range(3):
        wpre += [(dAdv if k else []) + dPos + dW[0]] + dW[1:]
    Lr, SUM, KA, N = 96, 176, 200, 96
    vMw, vLw = vB, vB + 1
    p("s_mul_i32 s%d, s%d, %d" % (sT, sWave, SZ))
    p("v_add_u32 v%d, s%d, v%d" % (vMw, sT, vL16))
    p("v_lshlrev_b32 v%d, 4, v0" % vLw)
    p("v_add_u32 v%d, 0x%x, v%d" % (vLw, 124 * 1024, vLw))
    p("v_mov_b32 v%d, v%d\nv_mov_b32 v%d, v%d" % (vOne, vM + 2, vOne + 1, vM + 3))
    G = Gaps16(32)
    G.put(0, "ds_write_b128 v%d, %s" % (vLw, rr("v", vL + 2, 4)))
    for k in range(16):
        G.put(16 + k, "ds_write_b128 v%d, %s offset:%d" % (vMw, rr("a", O(2 + (k & 1), k >> 1), 4), k * 1024))
    for k in range(30):
        G.put(k, setup[k * len(setup) // 30:(k + 1) * len(setup) // 30], post=True)
    G.stream(["v_accvgpr_read_b32 v%d, a%d" % (Lr + k, aPA + k) for k in range(40)] + ["v_add_f32 v%d, v%d, v%d" % (Lr + e, Lr + e, Lr + 20 + e) for e in range(20)], 0, 31)
    p.add(G.emit(mfl))
    st_()
    for k in range(5):
        p("ds_write_b128 v%d, %s offset:%d" % (vKV, rr("v", Lr + 4 * k, 4), k * 1024))
    p("v_add_u32 v%d, s%d, v%d" % (vDma, sW4, vL16))
    p("v_and_b32 v%d, 31, v%d" % (t2, vLane))
    p("v_min_u32 v%d, 20, v%d" % (t2, t2))
    p("v_and_b32 v%d, 32, v%d" % (t1, vLane))
    p("v_add_lshl_u32 v%d, v%d, v%d, 4" % (vP, t1, t2))
    p("v_add_u32 v%d, 0x20000, v%d" % (vP, vP))
    p("s_xor_b32 s%d, s%d, 1" % (sT, sWave))
    p("s_mul_i32 s%d, s%d, %d" % (sT, sT, SZ))
    p("v_add_u32 v%d, s%d, v%d" % (t0, sT, vL16))
    p("v_xor_b32 v%d, 0x400, v%d" % (vLw, vLw))
    p("s_sub_u32 s%d, 15, s%d" % (sOff, sI))
    ctx_base(sOff)
    p(WL + "\ns_barrier")
    XO = 144
    p("ds_read_b128 %s, v%d" % (rr("v", TMP, 4), vLw))
    for k in range(16):
        p("ds_read_b128 %s, v%d offset:%d" % (rr("v", XO + (k >> 2) * 16 + (k & 1) * 8 + ((k >> 1) & 1) * 4, 4), t0, k * 1024))
    pp, p = p, Prog()
    for jj in range(2):
        fa, fb = vU + 2 * jj, vU + 2 * jj + 1
        p("v_min_f32 v%d, v%d, v%d" % (t1, vM + jj, TMP + 2 + jj))
        p("v_sub_f32 v%d, v%d, v%d" % (fa, t1, vM + jj))
        p("v_sub_f32 v%d, v%d, v%d" % (fb, t1, TMP + 2 + jj))
        p("v_exp_f32 v%d, v%d" % (fa, fa))
        p("v_exp_f32 v%d, v%d" % (fb, fb))
        p("v_mul_f32 v%d, v%d, v%d" % (vL + jj, vL + jj, fa))
        p("v_fmac_f32 v%d, v%d, v%d" % (vL + jj, TMP + jj, fb))
        p("v_rcp_f32 v%d, v%d" % (t1, vL + jj))
        p("v_mul_f32 v%d, v%d, v%d" % (fa, fa, t1))
        p("v_mul_f32 v%d, v%d, v%d" % (fb, fb, t1))
    KP = lambda ds: (32, 40, 212, 220)[ds]
    for ds in range(4):
        T = 48 + (ds & 1) * 16
        for jj in range(2):
            for k in range(8):
                p("v_accvgpr_read_b32 v%d, a%d" % (T + 8 * jj + k, O(jj, 2 * ds) + k))
        for jj in range(2):
            for k in range(0, 8, 2):
                p(pk_mulb(T + 8 * jj + k, T + 8 * jj + k, vU + 2 * jj))
            for k in range(0, 8, 2):
                p(pk_fmab(T + 8 * jj + k, XO + ds * 16 + jj * 8 + k, vU + 2 * jj + 1, T + 8 * jj + k))
        p.add(pack_tile(T, KP(ds)))
        p(ctx_store(KP(ds), 0)); p(ctx_store(KP(ds) + 4, 1))
        if ds < 3:
            p("s_addk_i32 s%d, 0x2000" % sCb)
    epi, p = p.ins, pp
    n1 = len(epi) * 2 // 3
    for k, x in enumerate(wpre):
        p.add([x] + epi[k * n1 // len(wpre):(k + 1) * n1 // len(wpre)])
    p.add(epi[n1:])
    st_()
    for w in range(4):
        for k in range(5):
            p("ds_read_b128 %s, v%d offset:%d" % (rr("v", Lr + w * 20 + 4 * k, 4), vP, w * 5120 + k * 1024))
    phi(aXQ)
    sums = []
    for e in range(0, 20, 2):
        sums += [pk_add(Lr + e, Lr + e, Lr + 20 + e), pk_add(Lr + 40 + e, Lr + 40 + e, Lr + 60 + e)]
    sums += [pk_add(SUM + e, Lr + e, Lr + 40 + e) for e in range(0, 20, 2)]
    sums += ["v_cvt_pk_bf16_f32 v%d, v%d, v%d" % (KA + k, SUM + 2 * k, SUM + 2 * k + 1) for k in range(10)]
    sums += ["v_mov_b32 v%d, 0" % r for r in (KA + 10, KA + 11, PH + 10, PH + 11)]
    p.add(sums)
    def num(N):
        for u in range(3):
            p("%s %s, %s, %s, %s" % (MF, rr("v", N, 16), rr("v", KA + 4 * u, 4), rr("v", PH + 4 * u, 4), rr("v", N, 16) if u else "0"))
    num(N)
    p("s_waitcnt vmcnt(0) lgkmcnt(0)\ns_barrier")
    p.add(publish(6))
    p(odd + "\ns_cbranch_scc0 M_own0")
    p("v_add_u32 v%d, s%d, v%d" % (t2, sW2k, vL16))
    for ds in range(4):
        for jj in range(2):
            p("ds_write_b128 v%d, %s offset:%d" % (t2, rr("v", KP(ds) + 4 * jj, 4), (ds >> 1) * SZ + (ds & 1) * 8192 + jj * 1024))
    p("s_branch M_own1\nM_own0:")
    p("s_and_b32 s%d, s%d, 7" % (sGc, sH))
    p("s_lshl_b32 s%d, s%d, 15" % (sGc, sGc))
    p.add(["s_mov_b32 m0, s%d" % sW4] + dC[1:] + ["s_add_u32 m0, m0, %d" % SZ, "s_addk_i32 s%d, 0x4000" % sGc] + dC[1:] + dPos[:1])
    p("M_own1:")
    phi(aXQ + 8)
    p.add(poll_load("A"))
    num(N + 32)
    p("s_lshr_b32 s%d, s%d, 1" % (sT, sTT))
    p("s_mul_i32 s%d, s%d, 81920" % (sT, sT))
    srd(p, sY, ptr(D_WS), off_s=sT, off_imm=WS_OB, nrec=81920)
    vO = vA
    p("v_and_b32 v%d, 15, v%d" % (t0, vLane))
    p("v_bfe_u32 v%d, v%d, 4, 1" % (t2, vLane))
    p("v_lshlrev_b32 v%d, 10, v%d" % (t2, t2))
    p("v_lshrrev_b32 v%d, 5, v%d" % (t1, vLane))
    p("v_lshl_add_u32 v%d, v%d, 4, v%d" % (vO, t0, t2))
    p("v_lshl_add_u32 v%d, v%d, 8, v%d" % (vO, t1, vO))
    p("v_lshl_add_u32 v%d, v%d, 3, v%d" % (vO + 1, t0, t2))
    p("v_lshl_add_u32 v%d, v%d, 31, v%d" % (vO + 1, t1, vO + 1))
    p("s_lshr_b32 s%d, s%d, 3" % (sT, sIdx))
    p("s_mul_i32 s%d, s%d, 20480" % (sT, sT))
    p("s_bfe_u32 s%d, s%d, 0x20001" % (sT2, sIdx))
    p("s_and_b32 s%d, s%d, 1" % (sSpin, sIdx))
    p("s_lshl_b32 s%d, s%d, 7" % (sOff, sI))
    p("s_add_u32 s%d, s%d, s%d" % (sOff, sOff, sT))
    p("s_addk_i32 s%d, 0x4000" % sOff)
    p("s_lshl_b32 s%d, s%d, 12" % (sT2, sT2))
    p("s_lshl_b32 s%d, s%d, 9" % (sSpin, sSpin))
    p("s_add_u32 s%d, s%d, s%d" % (sT, sT, sT2))
    p("s_add_u32 s%d, s%d, s%d" % (sT, sT, sSpin))
    for tt in range(2):
        n0 = N + 32 * tt
        p("v_add_f32 v%d, 0x%x, v%d" % (n0 + 12, f2u(1e-6), n0 + 12))
        p("v_rcp_f32 v%d, v%d" % (n0 + 12, n0 + 12))
        for k in range(0, 12, 2):
            p(pk_mulb(n0 + k, n0 + k, n0 + 12))
        for k in range(6):
            p("v_cvt_pk_bf16_f32 v%d, v%d, v%d" % (n0 + 16 + k, n0 + 2 * k, n0 + 2 * k + 1))
        p("buffer_store_dwordx4 %s, v%d, s[%d:%d], s%d offen offset:%d %s" % (rr("v", n0 + 16, 4), vO, sY, sY + 3, sT, tt * 2048, WT))
        if os.environ.get("X_OB") == "1":
            p("buffer_store_dwordx4 %s, v%d, s[%d:%d], s%d offen offset:%d %s" % (rr("v", n0 + 16, 4), vO, sY, sY + 3, sT, tt * 2048, WT))
        else:
            p("buffer_store_dwordx2 %s, v%d, s[%d:%d], s%d offen offset:%d %s" % (rr("v", n0 + 20, 2), vO + 1, sY, sY + 3, sOff, tt * 2048, WT))
    MF16 = "v_mfma_f32_16x16x32_bf16"
    PA = 160
    pacc = lambda q, n: PA + (q * 5 + n) * 4
    pfr = lambda st, i: st * 36 + i * 4
    aOB = 80
    p("s_lshr_b32 s%d, s%d, 1" % (sT, sWave))
    p("s_lshl_b32 s%d, s%d, 2" % (sT, sT))
    p("s_add_u32 s%d, s%d, s%d" % (sT, sT, sKq))
    p("s_lshl_b32 s%d, s%d, 10" % (sT, sT))
    p("v_add_u32 v%d, s%d, v%d" % (vC, sT, vL16))
    for qq in range(1, 4):
        p("v_xor_b32 v%d, 0x%x, v%d" % (vC + qq, qq << 10, vC))
    p("s_and_b32 s%d, s%d, 1" % (sT, sWave))
    p("s_mul_i32 s%d, s%d, 5120" % (sT, sT))
    p("s_add_u32 s%d, s%d, 0x4000" % (sT, sT))
    p("v_add_u32 v%d, s%d, v%d" % (vWf, sT, vL16))
    p("s_mov_b32 s%d, 0" % sRs)
    for k in range(4):
        p("v_mov_b32 v%d, 0" % (32 + k))
    for k in range(5):
        p("%s %s, v[32:35], v[32:35], 0" % (MF, rr("v", PA + 16 * k, 16)))
    def p_reads(st):
        c = ["ds_read_b128 %s, v%d offset:%d" % (rr("a", pfr(st, qq), 4), vC + qq, st * 8192) for qq in range(4)]
        w = ["ds_read_b128 %s, v%d offset:%d" % (rr("a", pfr(st, 4 + n), 4), vWf, st * 10240 + n * 1024) for n in range(5)]
        return [w[0]] + c + w[1:]
    p_mf = lambda st: ["%s %s, %s, %s, %s" % (MF16, rr("v", pacc(qq, n), 4), rr("a", pfr(st, 4 + n), 4), rr("a", pfr(st, qq), 4), rr("v", pacc(qq, n), 4)) for n in range(5) for qq in range(4)]
    G = Gaps(40)
    G.spread(p_reads(1), 0, 12)
    G.put(19, ["s_waitcnt vmcnt(13) lgkmcnt(0)", "s_barrier"])
    G.put(13, ["s_add_u32 s%d, s%d, 1" % (sRs, sRs), "s_and_b32 s%d, s%d, 3" % (sRs, sRs)])
    G.put(14, ["s_mov_b32 s%d, %d" % (sDl, SZ), "s_cselect_b32 s%d, s%d, 0x%x" % (sDl, sDl, u32(-3 * SZ))])
    G.spread(["v_add_u32 v%d, s%d, v%d" % (r, sDl, r) for r in (vWf, vC, vC + 1, vC + 2, vC + 3)], 15, 18)
    G.spread(p_reads(0), 20, 32)
    for k, x in enumerate(dC):
        G.put(max(0, 4 * k - 1) + (1 if k == 0 else 0), x)
    for k, x in zip((20, 21, 25, 29, 33, 36, 37), dW):
        G.put(k, x)
    G.spread(dAdv, 30, 35); G.put(38, dPos); G.put(39, ["s_sub_u32 s%d, s%d, 1" % (sNlo, sNlo), WL, "s_cbranch_scc0 M_p3"])
    o3 = [x if isinstance(x, I) else I(x) for x in G.emit(p_mf(0) + p_mf(1))]
    X3 = os.environ.get("X_P3", "")
    if "m" in X3: o3 = [x for x in o3 if x.kind not in ("mfma", "ds")]
    if "d" in X3: o3 = [x for x in o3 if x.kind != "dma"]
    if "s" in X3: o3 = [I(x.text.replace(" sc1", "")) if x.kind == "dma" else x for x in o3]
    tail.extend(["M_p3:"] + o3 + [ret])
    p.add(poll_check("A"))
    p.add(dC + dAdv + dPos)
    st_()
    p("s_waitcnt vmcnt(8) lgkmcnt(0)\ns_barrier")
    st_()
    p.add(p_reads(0))
    p(WL)
    def run(n):
        p("s_mov_b32 s%d, %d" % (sNlo, n - 1))
        p(call("M_p3"))
        if os.environ.get("FINE3") and n != 14:
            st_()
    xr = lambda qq: (PA + qq * 20, PA + qq * 20 + 4, PA + qq * 20 + 8)
    def xrecv(q):
        for qq in range(1, 4):
            xfer(q, "load", qq, sXO, vDw, vC, xr(qq))
    for _ in range(3 if os.environ.get("FINE3") else 1):
        run(1 if os.environ.get("FINE3") else 3)
    p.add(publish(7))
    run(5)
    p("s_lshr_b32 s%d, s%d, 2" % (sT, sIdx))
    p("s_mul_i32 s%d, s%d, 5" % (sT, sT))
    p("v_mul_u32_u24 v%d, 0x3334, v%d" % (t1, vLane))
    p("v_lshrrev_b32 v%d, 16, v%d" % (t1, t1))
    p("v_mul_u32_u24 v%d, 35, v%d" % (t1, t1))
    p("v_add3_u32 v%d, v%d, v%d, s%d" % (t0, t1, vLane, sT))
    p("s_andn2_b32 s%d, s2, 6" % sT)
    p("v_and_b32 v%d, 3, v%d" % (t1, vLane))
    p("v_lshl_add_u32 v%d, v%d, 1, s%d" % (t1, t1, sT))
    p("v_cmp_gt_u32 vcc, 25, v%d" % vLane)
    p("v_cndmask_b32 v%d, v%d, v%d, vcc" % (t0, t1, t0))
    p("v_and_b32 v%d, 31, v%d" % (t1, vLane))
    p("v_lshl_add_u32 v%d, v%d, 3, s%d" % (t1, t1, sXcd))
    p("v_cmp_gt_u32 vcc, 32, v%d" % vLane)
    p("v_cndmask_b32 v%d, v%d, v%d, vcc" % (vPoll, t1, t0))
    p("v_lshlrev_b32 v%d, 7, v%d" % (vPoll, vPoll))
    p("v_cndmask_b32 v%d, 7, 5, vcc" % (vPoll + 1))
    p.add(poll_load("B"))
    p("s_lshl_b32 s%d, s%d, 2" % (sTT, sXcd))
    p("s_and_b32 s%d, s%d, 3" % (sT, sIdx))
    p("s_add_u32 s%d, s%d, s%d" % (sTT, sTT, sT))
    p("s_mul_i32 s%d, s%d, 81920" % (sT, sTT))
    srd(p, sY, ptr(D_WS), off_s=sT, off_imm=WS_OB, nrec=81920)
    p("s_lshl_b32 s%d, s%d, 10" % (sOff, sWave))
    p("v_and_b32 v%d, 15, v%d" % (t0, vLane))
    p("v_lshlrev_b32 v%d, 3, v%d" % (t0, t0))
    p("v_sub_u32 v%d, v%d, v%d" % (vO, vL16, t0))
    run(2)
    p.add(poll_check("B"))
    for s in range(10, 16):
        if s == 13:
            p("s_lshr_b32 s%d, s%d, 2" % (sT, sIdx))
            p("s_mul_i32 s%d, s%d, 102400" % (sT, sT))
            srd(p, sPC, ptr(D_WS), off_s=sT, off_imm=WS_WOB, nrec=102400)
            p("s_mov_b64 s[%d:%d], s[%d:%d]\ns_mov_b32 s%d, s%d" % (sPW, sPW + 1, sPC, sPC + 1, sPW + 2, sPC + 2))
            p("s_mov_b32 s%d, 0\ns_mov_b32 s%d, %d\ns_mov_b32 s%d, %d\ns_movk_i32 s%d, 0x4000" % (sSt, sIc, SZ, sIw, SZ, sBw))
            p.add(dPos)
        for ks in range(20)[(s - 10) * 20 // 6:(s - 9) * 20 // 6]:
            if ks % 5 == 4:
                for u in range(2):
                    p("buffer_load_dwordx2 %s, v%d, s[%d:%d], s%d offen offset:%d %s" % (rr("a", aOB + 4 * ks + 2 * u, 2), vO, sY, sY + 3, sOff, u * 128, WT))
            else:
                p("buffer_load_dwordx4 %s, v%d, s[%d:%d], s%d offen %s" % (rr("a", aOB + 4 * ks, 4), vL16, sY, sY + 3, sOff, WT))
            p("s_addk_i32 s%d, 0x1000" % sOff)
        run(1)
    st_()
    xsetup(p, sXO, vDw, vC)
    for qq in range(1, 4):
        for k in range(10):
            p("v_cvt_pk_bf16_f32 v%d, v%d, v%d" % (PA + qq * 20 + k, PA + qq * 20 + 2 * k, PA + qq * 20 + 2 * k + 1))
        for k in range(10):
            p("v_min_u32 v%d, -2, v%d" % (PA + qq * 20 + k, PA + qq * 20 + k))
        xfer(p, "store", qq, sXO, vDw, vC, xr(qq))
    BA = 32
    p("v_add_u32 v%d, %d, v%d" % (vWf, 10 * 5120, vL16))
    p("s_waitcnt vmcnt(9)\ns_barrier")
    bfr = lambda k: (k % 15) * 4
    brd = lambda k: "ds_read_b128 %s, v%d offset:%d" % (rr("a", bfr(k), 4), vWf if k >= 50 else vL16, (k % 50) * 1024)
    for k in range(10):
        p(brd(k))
    for k in range(100):
        ks, n = divmod(k, 5)
        a = rr("v", BA + 4 * n, 4)
        if n == 0:
            p.add([I("need", xrd=[("a", bfr(k + 4) + e) for e in range(4)])])
        p("%s %s, %s, %s, %s" % (MF16, a, rr("a", bfr(k), 4), rr("a", aOB + 4 * ks, 4), a if ks else "0"))
        if k + 10 < 100:
            p(brd(k + 10))
        if k == int(os.environ.get("XK", "90")):
            xrecv(p)
    st_()
    srd(p, sOut, ptr(D_OUT), nrec=2048 * 2560)
    p("v_and_b32 v%d, 15, v%d" % (t0, vLane))
    p("v_mul_u32_u24 v%d, 2560, v%d" % (vWf, t0))
    p("v_lshrrev_b32 v%d, 4, v%d" % (t0, vLane))
    p("v_lshl_add_u32 v%d, v%d, 3, v%d" % (vWf, t0, vWf))
    p("s_lshl_b32 s%d, s%d, 2" % (sT, sTT))
    p("s_add_u32 s%d, s%d, s%d" % (sT, sT, sWave))
    p("s_mul_i32 s%d, s%d, %d" % (sT, sT, 16 * 2560))
    p("s_lshr_b32 s%d, s%d, 2" % (sT2, sIdx))
    p("s_mul_i32 s%d, s%d, 160" % (sT2, sT2))
    p("s_add_u32 s%d, s%d, s%d" % (sOff, sT, sT2))
    for n in range(5):
        b = BA + 4 * n
        p("v_cvt_pk_bf16_f32 v%d, v%d, v%d" % (b, b, b + 1))
        p("v_cvt_pk_bf16_f32 v%d, v%d, v%d" % (b + 1, b + 2, b + 3))
        p("buffer_store_dwordx2 %s, v%d, s[%d:%d], s%d offen offset:%d" % (rr("v", b, 2), vWf, sOut, sOut + 3, sOff, 1280 + n * 32))
    p("s_lshl_b32 s%d, s%d, 3" % (sT, sMb))
    p("s_lshr_b32 s%d, s%d, 1" % (sT2, sWave))
    p("s_lshl_b32 s%d, s%d, 2" % (sT2, sT2))
    p("s_add_u32 s%d, s%d, s%d" % (sT, sT, sT2))
    p("s_add_u32 s%d, s%d, s%d" % (sT, sT, sKq))
    p("s_mul_i32 s%d, s%d, %d" % (sT, sT, 16 * 2560))
    p("s_lshl_b32 s%d, s%d, 1" % (sT2, sCc))
    p("s_and_b32 s%d, s%d, 1" % (sOff, sWave))
    p("s_add_u32 s%d, s%d, s%d" % (sT2, sT2, sOff))
    p("s_mul_i32 s%d, s%d, 160" % (sT2, sT2))
    p("s_add_u32 s%d, s%d, s%d" % (sOff, sT, sT2))
    if os.environ.get("FINE3"): st_()
    p("s_mov_b32 s%d, 0x40000\nM_xchk:" % sSpin)
    xs = [PA + qq * 20 + k for qq in range(1, 4) for k in range(10)]
    p("v_max_u32 v%d, v%d, v%d" % (t0, xs[0], xs[1]))
    for k in range(2, 30, 2):
        p("v_max3_u32 v%d, v%d, v%d, v%d" % (t0, t0, xs[k], xs[k + 1]))
    p("v_cmp_eq_u32 vcc, -1, v%d\ns_cbranch_vccnz M_xagain\nM_xok:" % t0)
    p("s_mov_b32 s%d, 0xffff0000" % sT)
    tail.extend(["M_xagain:"] + L(xrecv) + ["s_waitcnt vmcnt(0)", "s_sub_u32 s%d, s%d, 1" % (sSpin, sSpin), "s_cbranch_scc0 M_xchk", "s_branch M_xok"])
    for qq in range(1, 4):
        for k in range(10):
            r = PA + qq * 20 + k
            u = 96 + 2 * (k & 3)
            p("v_lshlrev_b32 v%d, 16, v%d" % (u, r))
            p("v_and_b32 v%d, s%d, v%d" % (u + 1, sT, r))
            p(pk_add(PA + 2 * k, PA + 2 * k, u))
    for n in range(5):
        b = pacc(0, n)
        p("v_cvt_pk_bf16_f32 v%d, v%d, v%d" % (b, b, b + 1))
        p("v_cvt_pk_bf16_f32 v%d, v%d, v%d" % (b + 1, b + 2, b + 3))
        p("buffer_store_dwordx2 %s, v%d, s[%d:%d], s%d offen offset:%d" % (rr("v", b, 2), vWf, sOut, sOut + 3, sOff, n * 32))
    st_()
    if os.environ.get("TWICE"):
        p("s_waitcnt vmcnt(0) lgkmcnt(0)\ns_barrier\ns_add_u32 s3, s3, 1\ns_cmp_eq_u32 s3, 1\ns_cbranch_scc1 M_again")
    st_.dump(vtmp=t0)
    p("M_exit:\ns_endpgm")
    p.add(tail)
    for par in range(2):
        p("M_slow%d:" % par)
        p("s_nop 15")
        for j in range(4):
            d, f, d2 = vU + 2, vU + 3, vU + 4
            p.add(rowmax(par, j, d, f))
            p("v_max_f32 v%d, 0, v%d" % (d, d))
            p("v_exp_f32 v%d, -v%d" % (f, d))
            if j >= 2:
                p("v_mul_f32 v%d, s%d, v%d" % (d2, sKeep, d))
            else:
                d2 = d
            for k in range(8):
                p("v_sub_f32 v%d, v%d, v%d" % (S(par, j) + k, S(par, j) + k, d))
                for b in (S(par ^ 1, j), CI(j)):
                    p("v_sub_f32 v%d, v%d, v%d" % (b + k, b + k, d2))
            p("v_sub_f32 v%d, v%d, v%d" % (vM + j, vM + j, d2))
            p("v_mul_f32 v%d, v%d, v%d" % (vL + j, vL + j, f))
            for k in range(0, 32, 8):
                for e in range(8):
                    p("v_accvgpr_read_b32 v%d, a%d" % (TMP + e, O(j, 0) + k + e))
                for e in range(8):
                    p("v_mul_f32 v%d, v%d, v%d" % (TMP + e, TMP + e, f))
                for e in range(8):
                    p("v_accvgpr_write_b32 a%d, v%d" % (O(j, 0) + k + e, TMP + e))
        p.add(sm_stream(par, 2) + sum_mf(par))
        p.add([x for x in sm_stream(par ^ 1, 0) if x.startswith("v_exp")][:NE])
        p("s_nop 3")
        p(ret)
    p("M_codeend:")
    if os.environ.get("NOST"):
        p.ins = [I("buffer_load_dword v%d, off, s[%d:%d], 0" % (vA + 3, sD, sD + 3)) if (i.mn == "buffer_store_dwordx4" and ("s[16:19]" in i.text or "s[24:27]" in i.text) and i.ops[0][0] == "v") else i for i in p.ins]
    AL = os.environ.get("ALIGN", "")
    if AL:
        out = []
        for i in p.ins:
            if i.kind == "label" and i.label in ("M_l1", "M_l2", "M_p3", "M_kvA", "M_kvB", "M_b0", "M_b1", "M_q", "M_phi"):
                out.append(I(".p2align " + AL))
            out.append(i)
        p.ins = out
    p.finish()
    return p
```

```python
from asmlib import *
from layout import *
from k_p1 import srd, x_rd_addr, w_rd_addr, MF
import os, struct

def f2u(x):
    return struct.unpack("<I", struct.pack("<f", x))[0]

NEG = 0xF149F2CA
THRESH = int(os.environ.get("THRESH", "0x5F800000"), 0)
BIAS = float(os.environ.get("BIAS", "40"))
QSCALE = f2u((128 ** -0.5) * 1.4426950408889634)
LOG2E = f2u(1.4426950408889634)
WT = os.environ.get("WT", "sc1")
PREFETCH = int(os.environ.get("PREFETCH", "3"))
NTW = os.environ.get("NTW", "nt")
WE = int(os.environ.get("WE", "10"))
CODEPF = int(os.environ.get("CODEPF", "13"))
WBL2 = int(os.environ.get("WBL2", "0"))
VERB = int(os.environ.get("VERB", "0"))
U = 16384
M16 = "v_mfma_f32_16x16x32_bf16"
u32 = lambda x: x & 0xffffffff

def L(f, *a, **k):
    q = Prog()
    f(q, *a, **k)
    return q.ins

def build_main():
    p = Prog()
    sX, sW, sW2, sO, sD, sBO = 4, 8, 12, 16, 20, 24
    sBF, sPhi, sY, sC, sKV = sW2, sO, sX, sW, sBO
    sH, sI, sWave, sW4, sT, sT2, sOff, sXcd, sIdx, sTB, sCB, sHi, sLo = range(28, 41)
    sM, sS, sKo, sRet, sTT, sL2, sSpin, sBo = 41, 44, 47, 48, 50, 51, 52, 53
    sRd, sGv, sG, sIt, sNb, sTriA, sTriB, sThr, sCnt, sCb = range(37, 47)
    sMask, sNext, sKeep, sW2k, sNlo, sCont = 54, 92, 93, 94, 95, 82
    sDa, sDb, sDc = 86, 87, 83
    P = 56
    ptr = lambda off: P + off // 4
    vLane = 1
    vX, vW, vXr, vWr = 2, 6, 10, 14
    vL16, t0, t1, t2, vDum, vStamp, vA = 22, 23, 24, 25, 26, 27, 28
    vGo = vA + 1
    vDma, vLim, vNeg, vKV, vB, vL, vOne, vM, vPoll, vU = 2, 3, 4, 5, 6, 8, 12, 16, 20, 232
    vMp = vA + 2
    RA, RB, RC, RD = 32, 96, 160, 224
    TMP, AW = 224, 240
    S = lambda par, j: 32 + par * 32 + j * 8
    CI = lambda j: 96 + j * 8
    PP = lambda par, j: 128 + par * 16 + j * 4
    Q = lambda j, ds: 160 + j * 16 + ds * 4
    O = lambda j, d: j * 32 + d * 4
    FB = lambda j: 128 + j * 4
    aXF, aVF, aRAW, aPA, aPK = 128, 144, 96, 192, 192
    tail = []
    ret = "s_setpc_b64 s[%d:%d]" % (sRet, sRet + 1)
    call = lambda lab: "s_call_b64 s[%d:%d], %s" % (sRet, sRet + 1, lab)

    def x_voffs(pitch, wsh=5):
        return ["v_lshrrev_b32 v%d, 3, v%d" % (t0, vLane),
                "s_lshl_b32 s%d, s%d, %d" % (sT, sWave, wsh),
                "v_add_u32 v%d, s%d, v%d" % (t0, sT, t0),
                "v_mul_u32_u24 v%d, %d, v%d" % (t0, pitch, t0),
                "v_lshrrev_b32 v%d, 4, v%d" % (t1, vLane),
                "v_and_b32 v%d, 7, v%d" % (t2, vLane),
                "v_xor_b32 v%d, v%d, v%d" % (t2, t2, t1),
                "v_lshl_add_u32 v%d, v%d, 4, v%d" % (vX, t2, t0),
                "v_xor_b32 v%d, 4, v%d" % (t2, t2),
                "v_lshl_add_u32 v%d, v%d, 4, v%d" % (vX + 1, t2, t0),
                "v_add_u32 v%d, %d, v%d" % (vX + 1, 8 * pitch - 1024, vX + 1),
                "v_add_u32 v%d, %d, v%d" % (vX + 2, 2 * (8 * pitch - 1024), vX),
                "v_add_u32 v%d, %d, v%d" % (vX + 3, 2 * (8 * pitch - 1024), vX + 1)]
    def w_voffs(pitch, m16):
        r = ["v_lshrrev_b32 v%d, 4, v%d" % (t0, vLane),
             "v_lshlrev_b32 v%d, 2, v%d" % (t1, t0),
             "s_lshl_b32 s%d, s%d, 4" % (sT, sWave),
             "v_add_u32 v%d, s%d, v%d" % (t0, sT, t0),
             "v_mul_u32_u24 v%d, %d, v%d" % (t0, pitch, t0),
             "v_and_b32 v%d, 15, v%d" % (t2, vLane),
             "v_xor_b32 v%d, v%d, v%d" % (t2, t2, t1),
             "v_lshl_add_u32 v%d, v%d, 4, v%d" % (vW, t2, t0)] + \
            ["v_add_u32 v%d, %d, v%d" % (vW + k, k * (4 * pitch - 1024), vW) for k in range(1, 4)]
        if m16:
            r += ["v_xor_b32 v%d, 32, v%d" % (vW + k, vW + k) for k in (2, 3)]
        return r
    def x_rd16(dst):
        return ["v_and_b32 v%d, 15, v%d" % (t0, vLane), "v_bfe_u32 v%d, v%d, 1, 3" % (t1, vLane), "v_lshrrev_b32 v%d, 4, v%d" % (dst, vLane),
                "v_xor_b32 v%d, v%d, v%d" % (dst, dst, t1), "v_lshlrev_b32 v%d, 4, v%d" % (dst, dst), "v_lshl_add_u32 v%d, v%d, 7, v%d" % (dst, t0, dst)]
    def w_rd16(dst):
        return ["v_bfe_u32 v%d, v%d, 2, 2" % (t0, vLane), "v_lshrrev_b32 v%d, 4, v%d" % (t1, vLane),
                "v_lshlrev_b32 v%d, 11, v%d" % (dst, t1), "v_lshl_add_u32 v%d, v%d, 8, v%d" % (dst, t0, dst), "v_lshl_add_u32 v%d, v%d, 6, v%d" % (dst, t0, dst),
                "v_and_b32 v%d, 1, v%d" % (t1, t1), "v_lshl_add_u32 v%d, v%d, 5, v%d" % (dst, t1, dst),
                "v_and_b32 v%d, 3, v%d" % (t0, vLane), "v_lshl_add_u32 v%d, v%d, 3, v%d" % (dst, t0, dst)]
    def dma(i, srdn, fl=""):
        v = vX if srdn == sX else vW
        return [["s_mov_b32 m0, s%d" % (sM + i)]] + \
               ["buffer_load_dwordx4 v%d, s[%d:%d], s%d offen offset:%d %s lds" % (v + q, srdn, srdn + 3, sS + i, q * 1024, fl) for q in range(4)]
    def put_dma(G, i, srdn, lo, hi, fl=""):
        d = dma(i, srdn, fl)
        G.put(lo, d[0])
        G.spread(d[1:], lo + 1, hi)
    def w_srd(q, d, which, col_s, total):
        q("s_lshl_b32 s%d, s%d, 8" % (sT, col_s))
        srd(q, d, ptr(which), off_s=sT)
        q("s_sub_u32 s%d, %d, s%d" % (d + 2, total, sT))
    def sw_XB(q):
        q("s_mul_i32 s%d, s%d, %d" % (sT, sTB, 128 * 1280))
        srd(q, sX, ptr(B_X), off_s=sT)
        q("s_cmp_lt_u32 s2, 240\ns_cselect_b32 s%d, %d, 0" % (sX + 2, 128 * 1280))
        q.add(x_voffs(1280))
    def sw_WB(q):
        w_srd(q, sW, B_WQKV, sCB, 640 * 3840)
        q("s_cmp_lt_u32 s2, 240\ns_cselect_b32 s%d, s%d, 0" % (sW + 2, sW + 2))
        q("s_mov_b64 s[%d:%d], s[%d:%d]\ns_mov_b32 s%d, s%d" % (sW2, sW2 + 1, sW, sW + 1, sW2 + 2, sW + 2))
        q.add(w_voffs(3840, 0))
    def sw_XQ(q):
        srd(q, sX, ptr(A_X), nrec=2048 * 1280)
    def sw_WQ(q):
        w_srd(q, sW, A_WQ, sH, 640 * 8192)
        q.add(w_voffs(8192, 1))

    class Plan:
        def __init__(s):
            s.vm, s.unit, s.free, s.when, s.now = [], {}, [], {}, 0
            s.pend = {"X": [], "W": []}
            s.job = {"X": "KV", "W": "KV"}
            for st in range(8):
                for g in range(2):
                    s.pend["X"].append((("KX", st, g), "KV", st, str(g * 256 * 1024 + st * 128), ((2 * st) % 5) * 2 + g))
                    s.pend["W"].append((("KW", st, g), "KV", st, str(st * 64 * 8192), ((2 * st + 1) % 5) * 2 + g))
            for b in range(10):
                s.pend["X"].append((("BX", b), "B", 8 + b, str(b * 128), None))
                s.pend["W"].append((("BW", b), "B", 8 + b, str(b * 64 * 3840), None))
            for st in range(10):
                s.pend["X"].append((("QX", st, 0), "Q", 18 + st, (sHi, st * 128), None))
                s.pend["X"].append((("QX", st, 1), "Q", 18 + st, (sLo, st * 128), None))
                s.pend["W"].append((("QW", st), "Q", 18 + st, str(st * 64 * 8192), None))
            s.free = list(range(10))
        def copy(s):
            import copy
            return copy.deepcopy(s)
        def take(s, ty, i):
            oth = "W" if ty == "X" else "X"
            pre = []
            c = s.pend[ty][0] if s.pend[ty] else None
            if c is not None:
                if c[4] is not None:
                    ok = c[4] in s.free
                else:
                    resv = {g[4] for t in "XW" for g in s.pend[t] if g[4] is not None}
                    av = [x for x in s.free if x not in resv]
                    ok = len(av) - 1 >= sum(1 for g in s.pend[oth] if g[2] < c[2] and g[4] is None)
                if not ok:
                    c = None
            if c is None:
                return ["s_mov_b32 s%d, 0x30000" % (sM + i), "s_brev_b32 s%d, 1" % (sS + i)], None
            s.pend[ty].pop(0)
            un = c[4] if c[4] is not None else av[0]
            s.free.remove(un)
            s.unit[c[0]] = un
            s.when[c[0]] = s.now
            if c[1] != s.job[ty]:
                s.job[ty] = c[1]
                pre += L({"XB": sw_XB, "WB": sw_WB, "XQ": sw_XQ, "WQ": sw_WQ}[ty + c[1]])
            pre.append("s_add_u32 s%d, s%d, 0x%x" % (sM + i, sW4, un * U))
            if isinstance(c[3], tuple):
                pre.append("s_add_u32 s%d, s%d, %d" % (sS + i, c[3][0], c[3][1]))
            else:
                pre.append("s_mov_b32 s%d, %s" % (sS + i, c[3]))
            return pre, c[0]
        def issue(s, tag, n=4):
            s.vm += [tag] * n
        def hook(s, ins, tag="h"):
            for t in ins:
                i = t if isinstance(t, I) else I(t)
                if i.cnt == "vm":
                    s.vm.append(tag)
        def barrier(s, need, free, dt):
            last = max(max(k for k, t in enumerate(s.vm) if t == n) for n in need) if need else -1
            N = len(s.vm) - 1 - last
            if VERB:
                print("barrier need", need, "N", N, "flight", [s.now - s.when[n] for n in need if n in s.when])
            for f in free:
                s.free.append(s.unit[f])
            s.now += dt
            s.done = last
            return ["s_waitcnt %slgkmcnt(0)" % ("vmcnt(%d) " % min(N, 63) if need else ""), "s_barrier"]
        def complete(s, tag):
            return max(k for k, t in enumerate(s.vm) if t == tag) <= s.done
    pl = Plan()

    def pf_lin(which, total, k):
        share = total // 32
        return ["s_mul_i32 s%d, s%d, %d" % (sT, sIdx, share), "s_lshl_b32 s%d, s%d, 13" % (sT2, sWave), "s_add_u32 s%d, s%d, s%d" % (sT, sT, sT2),
                "s_add_u32 s%d, s%d, %d" % (sT, sT, k * 32768),
                "v_lshl_add_u32 v%d, v%d, 7, s%d" % (t0, vLane, sT), "v_min_u32 v%d, %d, v%d" % (t0, total - 128, t0),
                "global_load_dword v%d, v%d, s[%d:%d]" % (vDum, t0, ptr(which), ptr(which) + 1)]
    def pf_w(which, rows):
        share = rows // 32
        return ["s_mul_i32 s%d, s%d, %d" % (sT, sIdx, share), "s_lshl_b32 s%d, s%d, 3" % (sT2, sWave), "s_add_u32 s%d, s%d, s%d" % (sT, sT, sT2),
                "v_lshrrev_b32 v%d, 3, v%d" % (t0, vLane), "v_add_u32 v%d, s%d, v%d" % (t0, sT, t0), "v_min_u32 v%d, %d, v%d" % (t0, rows - 1, t0),
                "v_lshlrev_b32 v%d, 13, v%d" % (t0, t0), "v_and_b32 v%d, 7, v%d" % (t1, vLane), "v_lshl_add_u32 v%d, v%d, 7, v%d" % (t0, t1, t0),
                "s_lshl_b32 s%d, s%d, 10" % (sT, sXcd), "v_add_u32 v%d, s%d, v%d" % (t0, sT, t0),
                "global_load_dword v%d, v%d, s[%d:%d]" % (vDum, t0, ptr(which), ptr(which) + 1)]
    def pf_bx():
        return ["s_mul_i32 s%d, s%d, %d" % (sT, sXcd, 256 * 1280), "s_mul_i32 s%d, s%d, 10240" % (sT2, sIdx), "s_add_u32 s%d, s%d, s%d" % (sT, sT, sT2),
                "v_lshlrev_b32 v%d, 7, v0" % t0, "v_min_u32 v%d, %d, v%d" % (t0, 10240 - 128, t0), "v_add_u32 v%d, s%d, v%d" % (t0, sT, t0),
                "global_load_dword v%d, v%d, s[%d:%d]" % (vDum, t0, ptr(B_X), ptr(B_X) + 1)]

    def extra(ty, keep):
        if len(pl.free) <= keep:
            return []
        pre, tag = pl.take(ty, 2)
        if tag is None:
            return []
        pl.issue(tag)
        d = dma(2, sX if ty == "X" else sW)
        return pre + d[0] + d[1:]
    def skel(last_mf, bar, mf, custom, target, NP=2):
        if last_mf:
            p(last_mf)
        p.add(bar)
        n = len(custom)
        for k in range(NP):
            p.add([mf[k]] + custom[k * n // NP:(k + 1) * n // NP])
        p(call(target))
    def body(name, G, mf, entries=None, NP=2):
        out = ["%s:" % name]
        for k in range(NP, G.n - 1):
            if entries and k in entries:
                out.append("%s:" % entries[k])
            out += [mf[k]] + G.gap(k)
        assert not any(G.gap(k) for k in list(range(NP)) + [G.n - 1])
        X = os.environ.get("X_" + name[2], "")
        out = [x if isinstance(x, I) else I(x) for x in out]
        if "d" in X: out = [x for x in out if x.kind != "dma"]
        if "m" in X: out = [x for x in out if x.kind != "mfma"]
        if "l" in X: out = [x for x in out if x.kind != "ds"]
        tail.extend(out + [ret])
    v2 = lambda r: rr("v", r, 2)
    bsel = lambda b, pos, n: "op_sel:[%s] op_sel_hi:[%s]" % (",".join(str(b & 1) if k == pos else "0" for k in range(n)), ",".join(str(b & 1) if k == pos else "1" for k in range(n)))
    pk_mulb = lambda d, a, b: "v_pk_mul_f32 %s, %s, %s %s" % (v2(d), v2(a), v2(b & ~1), bsel(b, 1, 2))
    pk_subb = lambda d, a, b: "v_pk_add_f32 %s, %s, %s %s neg_lo:[0,1] neg_hi:[0,1]" % (v2(d), v2(a), v2(b & ~1), bsel(b, 1, 2))
    pk_fmab = lambda d, a, b, c: "v_pk_fma_f32 %s, %s, %s, %s %s" % (v2(d), v2(a), v2(b & ~1), v2(c), bsel(b, 1, 3))
    pk_add = lambda d, a, b: "v_pk_add_f32 %s, %s, %s" % (v2(d), v2(a), v2(b))
    def pack_tile(src, dst):
        return ["v_cvt_pk_bf16_f32 v%d, v%d, v%d" % (dst + k, src + 2 * k, src + 2 * k + 1) for k in range(8)]
    FULL = int(os.environ.get("FULL", "1"))
    def publish(val):
        lab = p.newlabel("M_pub")
        return ["s_cmp_lg_u32 s%d, 0" % sWave, "s_cbranch_scc1 %s" % lab,
                "s_lshl_b32 s%d, s2, 7" % sT, "v_mov_b32 v%d, %d" % (t0, val), "v_lshlrev_b32 v%d, 2, v%d" % (t1, vLane),
                "s_mov_b32 exec_hi, 0" if FULL else "s_mov_b64 exec, 1",
                "buffer_store_dword v%d, v%d, s[%d:%d], s%d offen sc1" % (t0, t1, sD, sD + 3, sT),
                "s_mov_b64 exec, -1", "%s:" % lab]
    def poll_load(kind):
        if kind == "go":
            return ["v_mov_b32 v%d, 0" % t0, "global_load_dword v%d, v%d, s[%d:%d] sc1" % (vGo, t0, ptr(D_DBG), ptr(D_DBG) + 1)]
        if kind == 2:
            r = ["v_min_u32 v%d, 29, v%d" % (t0, vLane), "v_lshlrev_b32 v%d, 10, v%d" % (t0, t0), "s_lshl_b32 s%d, s%d, 7" % (sT, sXcd)]
        elif kind in (1, "KV"):
            r = ["v_and_b32 v%d, 7, v%d" % (t0, vLane), "v_lshlrev_b32 v%d, 10, v%d" % (t0, t0), "s_andn2_b32 s%d, s2, 0x38" % sT, "s_lshl_b32 s%d, s%d, 7" % (sT, sT)]
        elif kind in ("A", "B", 7, 3):
            return ["buffer_load_dword v%d, v%d, s[%d:%d], 0 offen sc1" % (vDum, vPoll, sD, sD + 3)]
        else:
            r = ["v_and_b32 v%d, 7, v%d" % (t0, vLane), "v_lshlrev_b32 v%d, 7, v%d" % (t0, t0), "s_lshl_b32 s%d, s%d, 10" % (sT, sIdx)]
        return r + ["buffer_load_dword v%d, v%d, s[%d:%d], s%d offen sc1" % (vKV if kind == "KV" else vDum, t0, sD, sD + 3, sT)]
    def poll_check(kind, lvl=None):
        lab = p.newlabel("M_poll")
        chk = ["v_cmp_gt_u32 vcc, %s, v%d" % (("1", vGo) if kind == "go" else (("v%d" % (vPoll + 1), vDum) if kind in ("A", "B", 3) else (str(lvl or kind), vDum)))]
        if kind == "KV":
            chk = ["v_cmp_gt_u32 vcc, %d, v%d" % (lvl, vKV)]
        tail.extend(["%s:" % lab, "s_mov_b32 s%d, 0x40000" % sSpin, "%s_l:" % lab, "s_sleep 1"] + poll_load(kind) + ["s_waitcnt vmcnt(0)"] + chk +
                    ["s_cbranch_vccz %s_r" % lab, "s_sub_u32 s%d, s%d, 1" % (sSpin, sSpin), "s_cbranch_scc0 %s_l" % lab, "s_branch %s_r" % lab])
        if kind in ("KV", 3):
            c = I(chk[0])
            c.rd = set()
            chk = ["s_waitcnt vmcnt(8)", c]
        return chk + ["s_cbranch_vccnz %s" % lab, "%s_r:" % lab]
    def pf(which, total, first, nlines):
        return ["s_lshl_b32 s%d, s2, 2" % sT, "s_add_u32 s%d, s%d, s%d" % (sT, sT, sWave), "s_mul_i32 s%d, s%d, %d" % (sT, sT, nlines),
                "s_add_u32 s%d, s%d, %d" % (sT, sT, first), "v_min_u32 v%d, %d, v%d" % (t0, nlines - 1, vLane), "v_add_u32 v%d, s%d, v%d" % (t0, sT, t0),
                "v_min_u32 v%d, %d, v%d" % (t0, total // 128 - 1, t0), "v_lshlrev_b32 v%d, 7, v%d" % (t0, t0),
                "global_load_dword v%d, v%d, s[%d:%d]" % (vDum, t0, ptr(which), ptr(which) + 1)]

    sPC0 = 96
    def code_touch(dst, mode):
        if not (CODEPF & mode):
            return []
        return ["s_lshl_b32 s%d, s%d, 2" % (sT, sIdx), "s_add_u32 s%d, s%d, s%d" % (sT, sT, sWave), "s_lshl_b32 s%d, s%d, 9" % (sT, sT),
                "v_and_b32 v%d, 3, v%d" % (t0, vLane), "v_lshl_add_u32 v%d, v%d, 7, s%d" % (t0, t0, sT), "v_min_u32 v%d, M_codeend-M_pc0-4, v%d" % (t0, t0),
                "global_load_dword v%d, v%d, s[%d:%d]" % (dst, t0, sPC0, sPC0 + 1)]
    p("s_cmp_ge_u32 s2, 256\ns_cbranch_scc1 M_exit")
    if os.environ.get("TWICE"):
        p("s_mov_b32 s3, 0\nM_again:")
    p("s_getpc_b64 s[%d:%d]\nM_pc0:" % (sPC0, sPC0 + 1))
    p("s_load_dwordx16 s[%d:%d], s[0:1], 0" % (P, P + 15))
    p("s_load_dwordx8 s[%d:%d], s[0:1], 64" % (P + 16, P + 23))
    p("s_load_dwordx2 s[%d:%d], s[0:1], 96" % (P + 24, P + 25))
    st_ = Stamper(p, vStamp, kid=0)
    p("v_and_b32 v%d, 63, v0" % vLane)
    p("v_lshrrev_b32 v%d, 6, v0" % t0)
    p("v_readfirstlane_b32 s%d, v%d" % (sWave, t0))
    p("s_and_b32 s%d, s2, 7" % sXcd)
    p("s_lshr_b32 s%d, s2, 3" % sIdx)
    p("s_lshl_b32 s%d, s%d, 12" % (sW4, sWave))
    p("s_lshl_b32 s%d, s%d, 2" % (sH, sXcd))
    p("s_lshr_b32 s%d, s%d, 3" % (sT, sIdx))
    p("s_add_u32 s%d, s%d, s%d" % (sH, sH, sT))
    p("s_and_b32 s%d, s%d, 7" % (sI, sIdx))
    p.add(code_touch(vDum, 1))
    pl.hook(code_touch(vDum, 1))
    p.add(x_voffs(1024, 9))
    p.add(w_voffs(8192, 1))
    p("s_waitcnt lgkmcnt(0)")
    if os.environ.get("X_DELAY"):
        p("s_bitcmp1_b32 s2, 6\ns_cbranch_scc0 M_nodel\ns_mov_b32 s%d, %s\nM_del:\ns_sleep 16\ns_sub_u32 s%d, s%d, 1\ns_cbranch_scc0 M_del\nM_nodel:" % (sT, os.environ["X_DELAY"], sT, sT))
    st_()
    srd(p, sD, ptr(D_WS), off_imm=WS_FL, nrec=32768)
    if os.environ.get("TWICE"):
        p("s_cmp_lg_u32 s3, 0\ns_cbranch_scc1 M_nolead")
    p("s_cmp_lg_u32 s2, 255\ns_cbranch_scc1 M_nolead")
    p("v_lshlrev_b32 v%d, 7, v0\nv_mov_b32 v%d, 0" % (t0, t1))
    p("buffer_store_dword v%d, v%d, s[%d:%d], 0 offen sc1" % (t1, t0, sD, sD + 3))
    p("M_nolead:")
    p("s_lshl_b32 s%d, s%d, 15" % (sT, sI))
    srd(p, sX, ptr(A_CKV), off_s=sT)
    p("s_sub_u32 s%d, 0x200000, s%d" % (sX + 2, sT))
    w_srd(p, sW, A_WUK, sH, 512 * 8192)
    w_srd(p, sW2, A_WUV, sH, 512 * 8192)
    ST = os.environ.get("ST", "XWXW")
    for ty in ST:
        for g in range(2):
            pre, tag = pl.take(ty, 0)
            p.add(pre + dma(0, sX if ty == "X" else (sW, sW2)[g], "" if ty == "X" else NTW))
            pl.issue(tag)
    p.add(x_rd16(vXr))
    p("s_lshr_b32 s%d, s%d, 1" % (sT, sWave))
    p("s_lshl_b32 s%d, s%d, 14" % (sT, sT))
    p("v_add_u32 v%d, s%d, v%d" % (vXr, sT, vXr))
    p("v_xor_b32 v%d, 64, v%d" % (vXr + 1, vXr))
    p("s_lshl_b32 s%d, s%d, 3" % (sKo, sT))
    p.add(w_rd16(vWr))
    p("s_and_b32 s%d, s%d, 1" % (sT, sWave))
    p("s_lshl_b32 s%d, s%d, 7" % (sT, sT))
    p("s_add_u32 s%d, s%d, 0x%x" % (sT, sT, 2 * U))
    p("v_xor_b32 v%d, s%d, v%d" % (vWr, sT, vWr))
    for c in range(1, 4):
        p("v_xor_b32 v%d, %d, v%d" % (vWr + c, c * 32, vWr))
    p("v_lshlrev_b32 v%d, 4, v%d" % (vL16, vLane))
    def phi_ld(q):
        q("s_mul_i32 s%d, s%d, 800" % (sT, sIdx))
        srd(q, sPhi, ptr(B_WPHI), off_s=sT, nrec=800)
        q("v_subrev_u32 v%d, 480, v%d" % (t0, vL16))
        q("buffer_load_dwordx4 %s, v%d, s[%d:%d], 0 offen" % (rr("a", aRAW, 4), t0, sPhi, sPhi + 3))
        q("buffer_load_dwordx4 %s, v%d, s[%d:%d], 0 offen offset:544" % (rr("a", aRAW + 4, 4), vL16, sPhi, sPhi + 3))
    p("s_lshl_b32 s%d, s%d, 1" % (sTB, sXcd))
    p("s_cmp_ge_u32 s%d, 15" % sIdx)
    p("s_cselect_b32 s%d, 15, 0" % sT)
    p("s_addc_u32 s%d, s%d, 0" % (sTB, sTB))
    p("s_sub_u32 s%d, s%d, s%d" % (sCB, sIdx, sT))
    p("s_mul_i32 s%d, s%d, %d" % (sLo, sI, 128 * 1280))
    p("s_sub_u32 s%d, %d, s%d" % (sHi, 15 * 128 * 1280, sLo))

    fx = lambda st, i: 128 + st * 64 + i * 4
    fw = lambda st, i: 128 + st * 64 + 32 + i * 4
    def kvreg(mat, n):
        if mat == 0:
            return ("v", RB + 16 * n if n < 4 else RA + 16 * (n - 4))
        return ("v", RC + 16 * n) if n < 4 else (("v", RD + 16 * (n - 4)) if n < 6 else ("a", 16 * (n - 6)))
    def kv_reads(st):
        X = ["ds_read_b128 %s, v%d offset:%d" % (rr("a", fx(st, i), 4), vXr + st, i * 2048) for i in range(8)]
        W = ["ds_read_b64_tr_b16 %s, v%d offset:%d" % (rr("a", fw(st, i) + 2 * u, 2), vWr + (i & 3), (i >> 2) * U + st * 8192 + u * 1024) for i in range(8) for u in range(2)]
        return X[:2] + W[:8] + X[2:] + W[8:]
    def kv_mf(st, zero=False):
        r = []
        for mat in range(2):
            for n in range(8):
                f, b0 = kvreg(mat, n)
                for e in range(4):
                    a = rr(f, b0 + 4 * e, 4)
                    tt, cc = (e & 1, e >> 1) if mat else (e >> 1, e & 1)
                    X, W = rr("a", fx(st, 2 * (n >> 1) + tt), 4), rr("a", fw(st, mat * 4 + 2 * (n & 1) + cc), 4)
                    A, B = (X, W) if mat else (W, X)
                    r.append("%s %s, %s, %s, %s" % (M16, a, A, B, "0" if zero else a))
        return r
    WL = "s_waitcnt lgkmcnt(0)"
    mfA, mfB = kv_mf(1), kv_mf(0)
    NK = 6
    G = Gaps16(64)
    G.spread(kv_reads(0), NK, 55)
    put_dma(G, 0, sW, NK, 21, NTW); put_dma(G, 1, sW2, 22, 35, NTW)
    body("M_kvA", G, mfA, NP=NK)
    G = Gaps16(64)
    G.spread(kv_reads(1), NK, 55)
    put_dma(G, 0, sX, NK, 32); put_dma(G, 1, sX, 33, 57)
    sadd = lambda regs, sd: ["v_add_u32 v%d, s%d, v%d" % (r, sd, r) for r in regs]
    kv_upd = sadd([vXr, vXr + 1], sDa) + sadd([vWr + c for c in range(4)], sDb)
    G.spread(kv_upd, 58, 62)
    kv_del = lambda s: ["s_mov_b32 s%d, 0x%x" % (sDa, u32((((2 * s) % 5) - ((2 * s - 2) % 5)) * 2 * U)), "s_mov_b32 s%d, 0x%x" % (sDb, u32((((2 * s + 1) % 5) - ((2 * s - 1) % 5)) * 2 * U))]
    body("M_kvB", G, mfB, NP=NK)
    KVs = lambda s: [("KX", s, 0), ("KX", s, 1), ("KW", s, 0), ("KW", s, 1)]
    st_()
    p.add(pl.barrier(KVs(0), [], 1024))
    st_()
    p.add(kv_reads(0))
    p("s_cmp_lg_u32 s2, 255\ns_cbranch_scc1 M_nolead2\ns_cmp_lg_u32 s%d, 0\ns_cbranch_scc1 M_nolead2" % sWave)
    p("v_mov_b32 v%d, 0\nv_mov_b32 v%d, 1\ns_mov_b64 exec, 1" % (t0, t1))
    p("global_store_dword v%d, v%d, s[%d:%d] sc1" % (t0, t1, ptr(D_DBG), ptr(D_DBG) + 1))
    p("s_mov_b64 exec, -1\nM_nolead2:")
    p(WL)
    G = Gaps16(64)
    G.spread(kv_reads(1), 0, 47)
    rest = [(ty, g) for ty in "XWXWX"[len(ST):] for g in range(2)]
    wd = 58 // len(rest)
    for k, (ty, g) in enumerate(rest):
        pre, tag = pl.take(ty, k % 3)
        G.put(k * wd, pre)
        pl.issue(tag)
        put_dma(G, k % 3, sX if ty == "X" else (sW, sW2)[g], k * wd + 1, min(k * wd + wd, k * wd + 13), "" if ty == "X" else NTW)
    G.put(50, kv_del(1))
    G.spread(kv_upd, 60, 62)
    z = kv_mf(0, zero=True)
    p.add(G.emit(z, 0, 63))
    last = z[63]
    PN = int(os.environ.get("PN", "2"))
    arrs = [(B_WQKV, 640 * 3840, 0), (B_X, 2048 * 1280, 0), (A_X, 2048 * 1280, 0), (A_WQ, 640 * 8192, 0), (A_WQ, 640 * 8192, 20480)]
    if PREFETCH == 2:
        arrs += [(A_WO, 4096 * 1280, 0), (A_WO, 4096 * 1280, 20480)]
    hooks = [[] for _ in range(8)]
    hooksA = [[] for _ in range(9)]
    if PREFETCH:
        for k, (w_, tot, first) in enumerate(arrs):
            if PN == 1:
                hooks[k + 1] = pf(w_, tot, first, 20)
            else:
                hooks[k + 1] = pf(w_, tot, first, 10)
                hooksA[k + 2] = pf(w_, tot, first + 10240, 10)
    if PREFETCH == 5:
        hooks = [[] for _ in range(8)]
        hooksA = [[] for _ in range(9)]
        seq = [(B_WQKV, 640 * 3840, 0, 10), (B_X, 2048 * 1280, 0, 10), (B_WQKV, 640 * 3840, 10240, 10), (B_X, 2048 * 1280, 10240, 10), (A_X, 2048 * 1280, 0, 10),
               (A_WQ, 640 * 8192, 0, 10), (A_WQ, 640 * 8192, 10240, 10), (A_X, 2048 * 1280, 10240, 10), (A_WQ, 640 * 8192, 20480, 10), (A_WQ, 640 * 8192, 30720, 10),
               (A_WO, 4096 * 1280, 0, 14), (A_WO, 4096 * 1280, 14336, 13), (A_WO, 4096 * 1280, 27648, 13)]
        for k, x in enumerate(seq):
            (hooks if k & 1 else hooksA)[k // 2 + 1] = pf(*x)
    XS = 4 * 2560
    def xsetup(q, srdn, va, vb):
        q("s_and_b32 s%d, s%d, 1" % (sT, sXcd))
        q("s_lshl_b32 s%d, s%d, 5" % (sT, sT))
        q("s_add_u32 s%d, s%d, s%d" % (sT, sT, sIdx))
        q("s_mul_i32 s%d, s%d, %d" % (sT, sT, 16 * XS))
        srd(q, srdn, ptr(D_WS), off_s=sT, off_imm=WS_XB, nrec=16 * XS)
        q("s_mul_i32 s%d, s%d, 2560" % (sT, sWave))
        q("v_add_u32 v%d, s%d, v%d" % (va, sT, vL16))
        q("v_lshl_add_u32 v%d, v%d, 3, s%d" % (vb, vLane, sT))
    def xfer(q, op, qq, srdn, va, vb, regs, f="v"):
        q("s_lshr_b32 s%d, s%d, 1" % (sT2, sXcd))
        q("s_xor_b32 s%d, s%d, %d" % (sT, sT2, qq))
        q("s_lshl2_add_u32 s%d, s%d, s%d" % ((sT, sT, sT2) if op == "store" else (sT, sT2, sT)))
        q("s_mul_i32 s%d, s%d, %d" % (sT, sT, XS))
        for k in range(2):
            q("buffer_%s_dwordx4 %s, v%d, s[%d:%d], s%d offen offset:%d %s" % (op, rr(f, regs[k], 4), va, srdn, srdn + 3, sT, k * 1024, WT))
        q("buffer_%s_dwordx2 %s, v%d, s[%d:%d], s%d offen offset:2048 %s" % (op, rr(f, regs[2], 2), vb, srdn, srdn + 3, sT, WT))
    def xclear0(q):
        xsetup(q, sO, vKV, vA)
        for k in range(4):
            q("v_accvgpr_write_b32 a%d, -1" % (248 + k))
    xclear = lambda qq: L(xfer, "store", qq, sO, vKV, vA, (248, 248, 248), "a")
    hooks[7 if PREFETCH != 2 else 6] += L(phi_ld)
    hooks[6] = hooks[6] + poll_load("go")
    def upd(regs, d):
        return ["v_add_u32 v%d, 0x%x, v%d" % (r, u32(d), r) for r in regs]
    for s in range(1, 8):
        bar = pl.barrier(KVs(s), KVs(s - 1), 2048)
        cu = list(hooksA[s])
        pl.hook(cu)
        tags = []
        for i in range(2):
            pre, tag = pl.take("W", i)
            cu += pre
            tags.append(tag)
        for t in tags:
            pl.issue(t)
        if os.environ.get("FINEK"): st_()
        skel(last, bar, mfA, cu, "M_kvA", NK)
        if os.environ.get("FINEK"): st_()
        cu = list(hooks[s])
        pl.hook(cu)
        tags = []
        for i in range(2):
            pre, tag = pl.take("X", i)
            cu += pre
            tags.append(tag)
        for t in tags:
            pl.issue(t)
        skel(mfA[63], [WL], mfB, cu + kv_del(s + 1), "M_kvB", NK)
        last = mfB[63]
    st_()

    QT = int(os.environ.get("QT", "0"))
    vTx, vTw = vA + 2, vA + 3
    qt_init = ["s_lshl2_add_u32 s%d, s%d, s%d" % (sT, sIdx, sWave), "s_lshl_b32 s%d, s%d, 4" % (sT, sT), "v_and_b32 v%d, 15, v%d" % (vTx, vLane),
               "v_add_u32 v%d, s%d, v%d" % (vTx, sT, vTx), "v_mul_u32_u24 v%d, 1280, v%d" % (vTx, vTx),
               "s_lshr_b32 s%d, s%d, 5" % (sT, sT), "s_lshl_b32 s%d, s%d, 13" % (sT, sT), "s_lshl_b32 s%d, s%d, 10" % (sT2, sXcd), "s_add_u32 s%d, s%d, s%d" % (sT, sT, sT2),
               "s_and_b32 s%d, s%d, 1" % (sT2, sWave), "s_lshl_b32 s%d, s%d, 9" % (sT2, sT2), "s_add_u32 s%d, s%d, s%d" % (sT, sT, sT2),
               "v_and_b32 v%d, 3, v%d" % (vTw, vLane), "v_lshl_add_u32 v%d, v%d, 7, s%d" % (vTw, vTw, sT)]
    def qt(st):
        if not QT or st > 9:
            return []
        return (qt_init if st == 0 else ["v_add_u32 v%d, 0x80000, v%d" % (vTw, vTw)]) + \
               ["global_load_dword v%d, v%d, s[%d:%d] offset:%d" % (vA, vTx, ptr(A_X), ptr(A_X) + 1, st * 128), "global_load_dword v%d, v%d, s[%d:%d]" % (vA, vTw, ptr(A_WQ), ptr(A_WQ) + 1)]
    bfx = lambda st, k, i: 128 + st * 32 + k * 16 + i * 4
    bfw = lambda st, k, i: 128 + st * 32 + k * 16 + 8 + i * 4
    def b_reads(st):
        r = []
        for k in range(2):
            ks = st * 2 + k
            for i in range(2):
                r.append("ds_read_b128 %s, v%d offset:%d" % (rr("a", bfx(st, k, i), 4), vXr + ks, i * 4096))
                for u in range(2):
                    r.append("ds_read_b64_tr_b16 %s, v%d offset:%d" % (rr("a", bfw(st, k, i) + 2 * u, 2), vWr + i, ks * 4096 + u * 1024))
        return r
    def b_mf(var, st, zero=False):
        mf = []
        for k in range(2):
            for b in range(2):
                for c in range(2):
                    a = rr("v", RA + (b * 2 + c) * 16, 16)
                    X, W = rr("a", bfx(st, k, b), 4), rr("a", bfw(st, k, c), 4)
                    A, B = (X, W) if var else (W, X)
                    mf.append("%s %s, %s, %s, %s" % (MF, a, A, B, "0" if (zero and k == 0) else a))
        return mf
    def kv_pack(mat, n):
        f, b0 = kvreg(mat, n)
        dst = (RC if mat else RB) + 8 * n
        if f == "v":
            return pack_tile(b0, dst)
        return ["v_accvgpr_read_b32 v%d, a%d" % (RD + k, b0 + k) for k in range(16)] + pack_tile(RD, dst)
    def kv_store(mat, n):
        f, reg = ("v", (RC if mat else RB) + 8 * n) if n < 4 else ("a", aPK + (mat * 4 + n - 4) * 8)
        if mat == 0 and n in (2, 3):
            f, reg = "a", 104 + 8 * (n - 2)
        st = lambda m, so, imm: "buffer_store_dwordx4 %s, v%d, s[%d:%d], s%d offen offset:%d %s" % (rr(f, reg + 4 * m, 4), vL16, sO, sO + 3, so, imm, WT)
        if mat:
            return ["s_and_b32 s%d, s%d, 0x1000" % (sOff, sW4), "s_add_u32 s%d, s%d, s%d" % (sOff, sOff, sKo), "s_add_u32 s%d, s%d, 0x%x" % (sOff, sOff, (n >> 1) * 16 * U + 8192),
                    st(0, sOff, (n & 1) * 2048), st(1, sOff, (n & 1) * 2048 + 1024)]
        return ["s_lshr_b32 s%d, s%d, 1" % (sOff, sW4), "s_and_b32 s%d, s%d, 0x800" % (sOff, sOff), "s_add_u32 s%d, s%d, s%d" % (sOff, sOff, sKo), "s_add_u32 s%d, s%d, 0x%x" % (sOff, sOff, (n >> 1) * 16 * U),
                st(0, sOff, (n & 1) * 1024), "s_addk_i32 s%d, 0x1000" % sOff, st(1, sOff, (n & 1) * 1024)]
    def b_store(t):
        return ["s_add_u32 s%d, s%d, 0x%x" % (sOff, sBo, (t >> 1) * 120 * 1024)] + \
               ["buffer_store_dwordx4 %s, v%d, s[%d:%d], s%d offen offset:%d %s" % (rr("v", RD + 8 * t + 4 * m, 4), vL16, sBO, sBO + 3, sOff, (t & 1) * 2048 + m * 1024, WT) for m in range(2)]
    Bs = lambda b: [("BX", b), ("BW", b)]
    Qs = lambda s: [("QX", s, 0), ("QX", s, 1), ("QW", s)]
    p(last)
    p.add(pl.barrier(Bs(0), KVs(7), 1280))
    def baddr(q):
        x_rd_addr(q, vXr, vLane, t0, t1)
        q("s_lshr_b32 s%d, s%d, 1" % (sT, sWave))
        q("s_lshl_b32 s%d, s%d, 13" % (sT, sT))
        q("s_add_u32 s%d, s%d, 0x%x" % (sT, sT, pl.unit[("BX", 0)] * U))
        for ks in range(4):
            q("v_add_u32 v%d, s%d, v%d" % (vXr + ks, sT, vXr + ks))
        q("s_and_b32 s%d, s%d, 1" % (sT, sWave))
        q("s_lshl_b32 s%d, s%d, 1" % (sT, sT))
        q("v_mov_b32 v%d, s%d" % (t2, sT))
        w_rd_addr(q, vWr, vLane, t0, t1, t2)
        q("v_add_u32 v%d, 0x%x, v%d" % (vWr, pl.unit[("BW", 0)] * U, vWr))
        q("v_xor_b32 v%d, 64, v%d" % (vWr + 1, vWr))
        q("s_lshl_b32 s%d, s%d, 20" % (sT, sH))
        q("s_lshl_b32 s%d, s%d, 14" % (sT2, sI))
        q("s_add_u32 s%d, s%d, s%d" % (sT, sT, sT2))
        srd(q, sO, ptr(D_WS), off_s=sT, off_imm=WS_KV)
        q("s_sub_u32 s%d, 0x100000, s%d" % (sO + 2, sT2))
    G = Gaps16(64)
    ba = L(baddr)
    for k in range(16):
        G.put(k, ba[k * len(ba) // 16:(k + 1) * len(ba) // 16], post=True)
    for i, ty in enumerate("WWX"):
        pre, tag = pl.take(ty, i)
        assert len(pre) == 2
        G.put(0, pre)
        pl.issue(tag)
        put_dma(G, i, sW if ty == "W" else sX, 1 + 20 * i, 20 + 20 * i)
    G.spread(b_reads(0), 20, 56)
    G.stream([x for n in range(8) for x in kv_pack(0, n)], 16, 49)
    G.stream([x for n in range(3) for x in kv_pack(1, n)], 50, 63)
    p.add(G.emit(kv_mf(1)))
    p(WL)
    p("s_cmp_ge_u32 s%d, 10\ns_cbranch_scc1 M_bv" % sCB)
    pl0 = pl
    qfx = lambda st, i: st * 48 + i * 4
    qfw = lambda st, i: st * 48 + 16 + i * 4
    qacc = lambda j, d: RA + j * 32 + d * 4
    def q_reads(st):
        X = ["ds_read_b128 %s, v%d offset:%d" % (rr("a", qfx(st, j), 4), vXr + 2 * (j >> 1) + st, (j & 1) * 2048) for j in (2, 3, 0, 1)]
        W = ["ds_read_b64_tr_b16 %s, v%d offset:%d" % (rr("a", qfw(st, i) + 2 * u, 2), vWr + i, st * 8192 + u * 1024) for i in range(8) for u in range(2)]
        return X[:2] + W + X[2:]
    def q_derive():
        return ["v_xor_b32 v%d, 64, v%d" % (vXr + 1, vXr), "v_xor_b32 v%d, 64, v%d" % (vXr + 3, vXr + 2)] + \
               ["v_xor_b32 v%d, %d, v%d" % (vWr + c, c * 32, vWr) for c in range(1, 8)]
    for var in range(2):
        pl = pl0.copy()
        if var:
            p("M_bv:")
        mfb = b_mf(var, 1) + b_mf(var, 0)
        G = Gaps(16)
        G.spread(b_reads(0), 2, 6); G.put(7, WL); G.spread(b_reads(1), 8, 13)
        put_dma(G, 0, sW, 2, 8); put_dma(G, 1, sX, 9, 14)
        b_upd = sadd([vXr, vXr + 1], sDa), sadd([vXr + 2, vXr + 3], sDa) + sadd([vWr, vWr + 1], sDb)
        G.put(10, b_upd[0]); G.put(14, b_upd[1])
        b_del = lambda b: ["s_mov_b32 s%d, 0x%x" % (sd, u32((pl.unit[(k, b)] - pl.unit[(k, b - 1)]) * U)) for sd, k in ((sDa, "BX"), (sDb, "BW"))] if b < 10 else []
        body("M_b%d" % var, G, mfb)
        G = Gaps(8)
        pre, tag = pl.take("X", 1)
        assert len(pre) == 2
        G.put(0, pre)
        pl.issue(tag)
        put_dma(G, 1, sX, 1, 6)
        G.spread(b_reads(1), 0, 5)
        G.stream([x for n in range(3, 8) for x in kv_pack(1, n)], 0, 6)
        G.put(0, b_del(1))
        G.put(6, b_upd[0] + b_upd[1])
        z = b_mf(var, 0, zero=True)
        p.add(G.emit(z, 0, 7))
        last = z[7]
        park = ["v_accvgpr_write_b32 a%d, v%d" % (aPK + k, RB + 32 + k) for k in range(32)] + ["v_accvgpr_write_b32 a%d, v%d" % (aPK + 32 + k, RC + 32 + k) for k in range(32)]
        park += ["v_accvgpr_write_b32 a%d, v%d" % (104 + k, RB + 16 + k) for k in range(16)]
        pk_ = park[:32] + park[64:]
        stores = [kv_store(0, 0), pk_[:10], kv_store(0, 1), pk_[10:20], kv_store(1, 0), pk_[20:30], kv_store(1, 1), pk_[30:39], pk_[39:]]
        for b in range(1, 10):
            bar = pl.barrier(Bs(b), Bs(b - 1), 512)
            cu = b_del(b + 1)
            cu += extra("X" if (b != 2) else "W", 2)
            tags = []
            for i, ty in enumerate("WX"):
                pre, tag = pl.take(ty, i)
                cu += pre
                tags.append(tag)
            cu += stores[b - 1]
            pl.hook(stores[b - 1], "kv")
            k0 = b - (10 - (2 + QT))
            if k0 >= 0:
                cu += qt(k0)
                pl.hook(qt(k0))
            for t in tags:
                pl.issue(t)
            skel(last, bar, mfb, cu, "M_b%d" % var)
            if STAMPS and os.environ.get("FINE"):
                if var and b == 1:
                    st_.n -= 9
                st_()
            last = mfb[15]
        p(last)
        p.add(pl.barrier(Qs(0), Bs(9), 1024))
        G = Gaps(8)
        qa = x_rd16(vXr) + ["s_add_u32 s%d, s%d, 0x%x" % (sT, sW4, pl.unit[("QX", 0, 1)] * U), "v_add_u32 v%d, s%d, v%d" % (vXr + 2, sT, vXr),
                            "s_add_u32 s%d, s%d, 0x%x" % (sT, sW4, pl.unit[("QX", 0, 0)] * U), "v_add_u32 v%d, s%d, v%d" % (vXr, sT, vXr)] + \
             w_rd16(vWr) + upd([vWr], pl.unit[("QW", 0)] * U) + q_derive()
        for k in range(4):
            G.put(k, qa[k * len(qa) // 4:(k + 1) * len(qa) // 4], post=True)
        pre, tag = pl.take("X", 0)
        assert len(pre) == 2
        G.put(0, pre)
        pl.issue(tag)
        put_dma(G, 0, sX, 0, 7)
        G.spread(q_reads(0), 4, 7)
        p.add(G.emit(b_mf(var, 1)))
        if var == 0:
            p("s_branch M_bdone")
    p("M_bdone:")
    st_()

    qorder = [(j, d) for jj in (2, 0) for d in range(8) for j in (jj, jj + 1)]
    def q_mf(st, zero=False):
        return ["%s %s, %s, %s, %s" % (M16, rr("v", qacc(j, d), 4), rr("a", qfw(st, d), 4), rr("a", qfx(st, j), 4), "0" if zero else rr("v", qacc(j, d), 4)) for j, d in qorder]
    mfq = q_mf(1) + q_mf(0)
    NQ = 5
    G = Gaps16(64)
    G.spread(q_reads(0), NQ, int(os.environ.get('QE', '26')))
    G.put(31, WL)
    G.spread(q_reads(1), 32, 54)
    QC = int(os.environ.get("QC", "17"))
    put_dma(G, 0, sX, NQ, NQ + QC - 1); put_dma(G, 1, sX, NQ + QC, NQ + 2 * QC - 1); put_dma(G, 2, sW, NQ + 2 * QC, NQ + 3 * QC - 1)
    q_upd = sadd([vXr], sDa) + sadd([vXr + 2], sDb) + sadd([vWr], sDc) + q_derive()
    G.spread(q_upd, 57, 62)
    def q_del(s):
        if s > 9:
            return []
        return ["s_mov_b32 s%d, 0x%x" % (sd, u32((pl.unit[k(s)] - pl.unit[k(s - 1)]) * U))
                for sd, k in ((sDa, lambda x: ("QX", x, 0)), (sDb, lambda x: ("QX", x, 1)), (sDc, lambda x: ("QW", x)))]
    body("M_q", G, mfq, NP=NQ)
    p("s_mul_i32 s%d, s%d, %d" % (sT, sTB, 4 * 120 * 1024))
    p("s_lshl_b32 s%d, s%d, 13" % (sT2, sCB))
    p("s_add_u32 s%d, s%d, s%d" % (sT, sT, sT2))
    srd(p, sBO, ptr(D_WS), off_s=sT, off_imm=WS_BF)
    p("s_cmp_lt_u32 s2, 240\ns_cselect_b32 s%d, %d, 0" % (sBO + 2, 4 * 120 * 1024))
    p("s_lshr_b32 s%d, s%d, 1" % (sBo, sWave))
    p("s_mul_i32 s%d, s%d, %d" % (sBo, sBo, 2 * 120 * 1024))
    p("s_and_b32 s%d, s%d, 0x1000" % (sT, sW4))
    p("s_add_u32 s%d, s%d, s%d" % (sBo, sBo, sT))
    G = Gaps16(32)
    for i, ty in ((1, "X"), (2, "W")):
        pre, tag = pl.take(ty, i)
        p.add(pre)
        pl.issue(tag)
        put_dma(G, i, sX if ty == "X" else sW, 15 * (i - 1), 15 * (i - 1) + 14)
    p(WL)
    G.spread(q_reads(1), 0, 22)
    G.put(16, q_del(1))
    G.spread(q_upd, 25, 30)
    G.stream([x for t in range(4) for x in pack_tile(RA + 16 * t, RD + 8 * t)], 0, 14)
    z = q_mf(0, zero=True)
    p.add(G.emit(z, 0, 31))
    last = z[31]
    def bm_frag_loads(q, fbase, aXF):
        q("s_lshl_b32 s%d, s%d, 3" % (sTT, sXcd))
        q("s_lshl_b32 s%d, s%d, 1" % (sT, sWave))
        q("s_add_u32 s%d, s%d, s%d" % (sTT, sTT, sT))
        q("s_mul_i32 s%d, s%d, %d" % (sT, sTT, 120 * 1024))
        srd(q, sBF, ptr(D_WS), off_s=sT, off_imm=WS_BF, nrec=2 * 120 * 1024)
        q("s_mul_i32 s%d, s%d, 5" % (sT, sIdx))
        q("s_lshr_b32 s%d, s%d, 2" % (sT, sT))
        q("s_add_u32 s%d, s%d, %d" % (sT, sT, fbase))
        q("s_lshl_b32 s%d, s%d, 10" % (sT, sT))
        for tt in range(2):
            for u in range(2):
                q("buffer_load_dwordx4 %s, v%d, s[%d:%d], s%d offen offset:%d %s" % (rr("a", aXF + (tt * 2 + u) * 4, 4), vL16, sBF, sBF + 3, sT, u * 1024, WT))
            if tt == 0:
                q("s_add_u32 s%d, s%d, %d" % (sT, sT, 120 * 1024))
    vV, vWa, vRd = vA + 2, vA + 3, vA
    def bm1_loads(q):
        bm_frag_loads(q, 40, aXF)
        q("s_mul_i32 s%d, s%d, 20" % (sT, sIdx))
        q("v_and_b32 v%d, 31, v%d" % (t2, vLane))
        q("v_add_u32 v%d, s%d, v%d" % (t1, sT, t2))
        q("v_lshrrev_b32 v%d, 5, v%d" % (vV, t1))
        q("v_lshlrev_b32 v%d, 11, v%d" % (vV, vV))
        q("v_and_b32 v%d, 31, v%d" % (t1, t1))
        q("v_lshl_add_u32 v%d, v%d, 4, v%d" % (vV, t1, vV))
        q("v_and_b32 v%d, 32, v%d" % (t1, vLane))
        q("v_lshl_add_u32 v%d, v%d, 4, v%d" % (vV, t1, vV))
        q("v_bfrev_b32 v%d, 1" % t1)
        q("v_cmp_gt_u32 vcc, 20, v%d" % t2)
        q("v_cndmask_b32 v%d, v%d, v%d, vcc" % (vV, t1, vV))
        for tt in range(2):
            q("s_mov_b32 s%d, %d" % (sT, (tt * 120 + 80) * 1024))
            for mm in range(2):
                q("buffer_load_dwordx4 %s, v%d, s[%d:%d], s%d offen offset:%d %s" % (rr("a", aVF + (tt * 2 + mm) * 4, 4), vV, sBF, sBF + 3, sT, mm * 1024, WT))
    qst = {k + 1: [("b", b_store(k))] for k in range(4)}
    qst.update({7: [("k2", kv_store(0, 2))], 8: [("k2", kv_store(0, 3)), ("k2", kv_store(1, 2))], 9: [("k2", kv_store(1, 3))]})
    for k in range(4):
        qst.setdefault(5 + k, []).append(("p", park[32 + 8 * k:40 + 8 * k]))
    pubB = pubKV = None
    for s in range(1, 10):
        bar = pl.barrier(Qs(s), Qs(s - 1), 1024)
        cu = q_del(s + 1)
        cu += extra("X", 3)
        tags = []
        for i, ty in enumerate("XXW"):
            pre, tag = pl.take(ty, i)
            cu += pre
            tags.append(tag)
        cu += qt(s + 1 + QT)
        pl.hook(qt(s + 1 + QT))
        if s == 1:
            cu.append(poll_check("go"))
        if pubKV is None and pl.complete("kv"):
            pubKV = s
            cu.append(publish(1))
        if pubB is None and s > 4 and pl.complete("b"):
            pubB = s
            cu.append(publish(2))
        if PREFETCH == 4 and s in (5, 6, 7, 8):
            ins = [x.replace("global_load_dword v%d" % vDum, "global_load_dword v%d" % vA) for x in pf(A_WO, 4096 * 1280, (s - 5) * 10240, 10)]
            cu += ins
            pl.hook(ins)
        if s == 6:
            ins = code_touch(vA, 4)
            cu += ins
            pl.hook(ins)
        if s == 5:
            ins = poll_load(1)
            cu += ins
            pl.hook(ins, "poll")
        if s == 7:
            assert pl.complete("poll")
            cu.append(poll_check(1))
        if s == 8:
            ins = poll_load(2)
            cu += ins
            pl.hook(ins, "poll")
        for tag, ins in qst.get(s, []):
            cu += ins
            pl.hook(ins, tag)
        for t in tags:
            pl.issue(t)
        skel(last, bar, mfq, cu, "M_q", NQ)
        last = mfq[63]
        if STAMPS and os.environ.get("FINE"):
            st_()
    if VERB:
        print("pubB", pubB, "pubKV", pubKV)
    assert pubB and pubKV and not pl.pend["X"] and not pl.pend["W"]
    C1, C2, PH, VF, KC, AF, RR = 48, 64, 80, 96, 112, TMP, 32
    def phi(xf, more=None):
        for tile, C in ((0, C1), (1, C2)):
            for u in range(2):
                p("%s %s, %s, %s, %s" % (MF, rr("v", C, 16), rr("v", AW + (tile * 2 + u) * 4, 4), rr("a", xf + u * 4, 4), rr("v", C, 16) if u else "0"))
        if more:
            more()
        p(call("M_phi"))
    aXQ = 232
    q = Prog()
    q("M_phi:")
    x = [C1 + k for k in range(16)] + [C2 + k for k in range(4)]
    m = t1
    q("v_max3_f32 v%d, v%d, v%d, v%d" % (m, x[0], x[1], x[2]))
    for k in range(3, 19, 2):
        q("v_max3_f32 v%d, v%d, v%d, v%d" % (m, m, x[k], x[k + 1]))
    q("v_max_f32 v%d, v%d, v%d" % (m, m, x[19]))
    q("v_mul_f32 v%d, s%d, v%d" % (m, sL2, m))
    for k in range(0, 20, 2):
        q("v_pk_fma_f32 %s, %s, s[%d:%d], %s op_sel:[0,1,0] op_sel_hi:[1,1,0] neg_lo:[0,0,1] neg_hi:[0,0,1]" % (v2(x[k]), v2(x[k]), sL2 - 1, sL2, v2(m)))
    for k in range(20):
        q("v_exp_f32 v%d, v%d" % (x[k], x[k]))
    y = C2 + 4
    q(pk_add(y, x[0], x[2]))
    for k in range(4, 20, 2):
        q(pk_add(y, y, x[k]))
    q("v_add_f32 v%d, v%d, v%d" % (m, y, y + 1))
    q("v_rcp_f32 v%d, v%d" % (m, m))
    for k in range(0, 20, 2):
        q(pk_mulb(x[k], x[k], m))
    for k in range(10):
        q("v_cvt_pk_bf16_f32 v%d, v%d, v%d" % (PH + k, x[2 * k], x[2 * k + 1]))
    q(ret)
    tail += q.ins

    vWo = vA + 1
    sKb, sNt = sHi, sLo
    def wo_src(q):
        q("s_lshr_b32 s%d, s2, 1" % sT)
        q("s_mul_i32 s%d, s%d, 40960" % (sT, sT))
        q("s_and_b32 s%d, s2, 1" % sT2)
        q("s_lshl2_add_u32 s%d, s%d, s%d" % (sT2, sT2, sWave))
        q("s_mul_i32 s%d, s%d, 160" % (sT2, sT2))
        q("s_add_u32 s%d, s%d, s%d" % (sT, sT, sT2))
        srd(q, sY, ptr(A_WO), off_s=sT)
        q("s_sub_u32 s%d, %d, s%d" % (sY + 2, 4096 * 1280, sT))
        q("s_lshl_b32 s%d, s%d, 13" % (sT2, sWave))
        q("s_add_u32 m0, s%d, 0x20000" % sT2)
        for k in range(5):
            q("v_add_u32 v%d, %d, v%d" % (t0, 64 * k, vLane))
            q("v_mul_u32_u24 v%d, 0x199a, v%d" % (t1, t0))
            q("v_lshrrev_b32 v%d, 16, v%d" % (t1, t1))
            q("v_mul_u32_u24 v%d, 1120, v%d" % (t1, t1))
            q("v_lshl_add_u32 v%d, v%d, 4, v%d" % (t0, t0, t1))
            q("buffer_load_dwordx4 v%d, s[%d:%d], 0 offen lds" % (t0, sY, sY + 3))
            q("s_add_u32 m0, m0, 0x400")
        q("s_mul_i32 s%d, s2, 0x667" % sKb)
        q("s_lshr_b32 s%d, s%d, 16" % (sKb, sKb))
        q("s_mul_i32 s%d, s%d, 40" % (sT, sKb))
        q("s_sub_u32 s%d, s2, s%d" % (sNt, sT))
        q("s_lshl2_add_u32 s%d, s%d, s%d" % (sKb, sKb, sWave))
        q("s_mul_i32 s%d, s%d, 0x3334" % (sOff, sKb))
        q("s_lshr_b32 s%d, s%d, 16" % (sOff, sOff))
        q("s_mul_i32 s%d, s%d, 5" % (sT2, sOff))
        q("s_sub_u32 s%d, s%d, s%d" % (sT2, sKb, sT2))
        q("s_mul_i32 s%d, s%d, 160" % (sOff, sOff))
        q("s_mul_i32 s%d, s%d, 40" % (sT, sT2))
        q("s_cmp_eq_u32 s%d, 4" % sT2)
        q("s_cselect_b32 s%d, 16, s%d" % (sT, sT))
        q("s_cselect_b64 vcc, -1, 0")
        q("s_add_u32 s%d, s%d, s%d" % (sT, sT, sOff))
        q("s_mul_i32 s%d, s%d, 40" % (sT, sT))
        q("s_add_u32 s%d, s%d, s%d" % (sT, sT, sNt))
        q("s_lshl_b32 s%d, s%d, 5" % (sT, sT))
        srd(q, sY, ptr(B_WO), nrec=640 * 1280)
        q("v_lshrrev_b32 v%d, 5, v%d" % (t0, vLane))
        q("v_mul_u32_u24 v%d, 20, v%d" % (t0, t0))
        q("v_bfe_u32 v%d, v%d, 3, 1" % (t1, vLane))
        q("v_lshl_add_u32 v%d, v%d, 3, v%d" % (t0, t1, t0))
        q("v_bfe_u32 v%d, v%d, 4, 1" % (t1, vLane))
        q("v_lshl_add_u32 v%d, v%d, 2, v%d" % (t0, t1, t0))
        q("v_lshrrev_b32 v%d, 3, v%d" % (t1, vLane))
        q("v_mul_u32_u24 v%d, 20, v%d" % (t1, t1))
        q("v_cndmask_b32 v%d, v%d, v%d, vcc" % (t0, t0, t1))
        q("v_bfe_u32 v%d, v%d, 1, 2" % (t1, vLane))
        q("v_add_u32 v%d, v%d, v%d" % (t0, t0, t1))
        q("v_mul_u32_u24 v%d, 1280, v%d" % (t0, t0))
        q("v_and_b32 v%d, 1, v%d" % (t1, vLane))
        q("v_lshl_add_u32 v%d, v%d, 4, v%d" % (t0, t1, t0))
        q("buffer_load_dwordx4 v%d, s[%d:%d], s%d offen lds" % (t0, sY, sY + 3, sT))
        q("s_mul_i32 s%d, s%d, 0x3334" % (sT, sNt))
        q("s_lshr_b32 s%d, s%d, 16" % (sT, sT))
        q("s_mul_i32 s%d, s%d, 95" % (sT, sT))
        q("s_add_u32 s%d, s%d, s%d" % (sT, sT, sNt))
        q("s_mul_i32 s%d, s%d, 5" % (sKb, sKb))
        q("s_add_u32 s%d, s%d, s%d" % (sT, sT, sKb))
        q("s_lshl_b32 s%d, s%d, 10" % (sT, sT))
        q("s_add_u32 s%d, s%d, 0x%x" % (sT, sT, WS_WOB - WS_WOA))
        q("s_cmp_lt_u32 s2, 200")
        q("s_cselect_b32 s%d, s%d, 0x10000000" % (sBo, sT))
        q("s_and_b32 s%d, s2, 1" % sT)
        q("s_lshl_b32 s%d, s%d, 1" % (sT, sT))
        q("s_lshr_b32 s%d, s%d, 1" % (sT2, sWave))
        q("s_add_u32 s%d, s%d, s%d" % (sT, sT, sT2))
        q("s_lshl_b32 s%d, s%d, 8" % (sT, sT))
        q("s_andn2_b32 s%d, s2, 1" % sT2)
        q("s_add_u32 s%d, s%d, s%d" % (sT, sT, sT2))
        q("s_and_b32 s%d, s%d, 1" % (sT2, sWave))
        q("s_add_u32 s%d, s%d, s%d" % (sT, sT, sT2))
        q("s_mul_i32 s%d, s%d, 5120" % (sDc, sT))
    WR = S(1, 0)
    def wo_out(q):
        q("v_lshrrev_b32 v%d, 2, v%d" % (t0, vLane))
        q("v_mul_u32_u24 v%d, 160, v%d" % (vWo, t0))
        q("v_and_b32 v%d, 3, v%d" % (t1, vLane))
        q("s_lshl_b32 s%d, s%d, 13" % (sT, sWave))
        q("s_add_u32 s%d, s%d, 0x20000" % (sT, sT))
        q("v_lshl_add_u32 v%d, v%d, 3, s%d" % (t1, t1, sT))
        q("v_add_u32 v%d, v%d, v%d" % (vWo, vWo, t1))
        for n in range(5):
            for u in range(2):
                q("ds_read_b64_tr_b16 %s, v%d offset:%d" % (rr("v", WR + 4 * n + 2 * u, 2), vWo, n * 32 + u * 16 * 160))
        q("v_lshl_add_u32 v%d, v%d, 5, v%d" % (t1, t0, t1))
        q("v_lshrrev_b32 v%d, 4, v%d" % (t0, vLane))
        q("v_lshl_add_u32 v%d, v%d, 7, v%d" % (t1, t0, t1))
        for u in range(2):
            q("ds_read_b64_tr_b16 %s, v%d offset:%d" % (rr("v", WR + 20 + 2 * u, 2), t1, 5120 + u * 128))
        srd(q, sBF, ptr(D_WS), off_imm=WS_WOA, nrec=WS_OB - WS_WOA)
    def wo_st(q):
        for n in range(5):
            if n == 4:
                q("s_addk_i32 s%d, 0x1000" % sDc)
            q("buffer_store_dwordx4 %s, v%d, s[%d:%d], s%d offen offset:%d %s" % (rr("v", WR + 4 * n, 4), vL16, sBF, sBF + 3, sDc, (n & 3) * 1024, WT))
        q("buffer_store_dwordx4 %s, v%d, s[%d:%d], s%d offen %s" % (rr("v", WR + 20, 4), vL16, sBF, sBF + 3, sBo, WT))
    p(last)
    p(WL + "\ns_barrier")
    sQs = sTB
    def kvsetup(q):
        q("s_mov_b32 s%d, 0x%x\ns_mov_b32 s%d, s%d" % (sDa, QSCALE, sDa + 1, sDa))
        q("s_mov_b32 s%d, 0x%x" % (sL2, LOG2E))
        q("s_lshl_b32 s%d, s%d, 20" % (sT, sH))
        srd(q, sKV, ptr(D_WS), off_s=sT, off_imm=WS_KV)
        q("s_lshl_b32 s%d, s%d, 16" % (sT, sI))
        q("s_sub_u32 s%d, 0x100000, s%d" % (sKV + 2, sT))
        q("s_lshl_b32 s%d, s%d, 11" % (sW2k, sWave))
        q("v_add_u32 v%d, s%d, v%d" % (vDma, sW2k, vL16))
    kvld = lambda so, k: "buffer_load_dwordx4 v%d, s[%d:%d], s%d offen offset:%d %s lds" % (vDma, sKV, sKV + 3, so, k * 1024, WT)
    def kv0(t, half):
        o = t * U + half * 8192
        return [["s_add_u32 m0, s%d, 0x%x" % (sW2k, o), "s_mov_b32 s%d, 0x%x" % (sOff, o), kvld(sOff, 0)], kvld(sOff, 1)]
    sSc = sCB
    def aw_prep(q):
        q("s_lshr_b32 s%d, s%d, 1" % (sSc, sWave))
        q("s_lshl_b32 s%d, s%d, 13" % (sSc, sSc))
        q("s_add_u32 s%d, s%d, s%d" % (sSc, sSc, sW4))
        q("s_add_u32 s%d, s%d, %d" % (sSc, sSc, 4 * U + 8192))
        q("v_add_u32 v%d, s%d, v%d" % (t0, sSc, vL16))
        q("ds_write_b128 v%d, %s" % (t0, rr("a", aRAW, 4)))
        q("ds_write_b128 v%d, %s offset:1024" % (t0, rr("a", aRAW + 4, 4)))
        q("s_and_b32 s%d, s%d, 3" % (sT, sIdx))
        q("s_mul_i32 s%d, s%d, 160" % (sT, sT))
        q("s_sub_u32 s%d, s%d, s%d" % (sT, sSc, sT))
        q("s_addk_i32 s%d, 480" % sT)
        q("v_lshrrev_b32 v%d, 5, v%d" % (t0, vLane))
        q("v_bfe_u32 v%d, v%d, 2, 2" % (t1, vLane))
        q("v_lshl_add_u32 v%d, v%d, 2, v%d" % (t0, t0, t1))
        q("v_mul_u32_u24 v%d, 40, v%d" % (t0, t0))
        q("v_add_u32 v%d, s%d, v%d" % (t0, sT, t0))
        q("v_bfe_u32 v%d, v%d, 4, 1" % (t1, vLane))
        q("v_lshl_add_u32 v%d, v%d, 4, v%d" % (t2, t1, t0))
        q("v_bfe_u32 v%d, v%d, 1, 1" % (t1, vLane))
        q("v_lshl_add_u32 v%d, v%d, 3, v%d" % (t2, t1, t2))
        for tile in range(2):
            for u in range(4):
                q("ds_read_b64_tr_b16 %s, v%d offset:%d" % (rr("v", AW + tile * 8 + 2 * u, 2), t0 if tile else t2, u * 320 + tile * 32))
        q("v_bfe_u32 v%d, v%d, 2, 1" % (vWa, vLane))
        q("v_mul_u32_u24 v%d, 0x8000, v%d" % (vWa, vWa))
        q("v_lshl_or_b32 v%d, v%d, 16, v%d" % (vWa, vWa, vWa))
    fl = L(kvsetup) + kv0(0, 0) + kv0(1, 0) + [poll_check(2)] + L(bm1_loads) + L(aw_prep)
    mfl = q_mf(1)
    for k in range(32):
        p(mfl[k])
        p.add(fl[k * len(fl) // 32:(k + 1) * len(fl) // 32])
    st_()
    wo_chunk = L(wo_src)
    va = []
    for j in (2, 3, 0, 1):
        if os.environ.get("PKMUL", "1") == "1":
            va += ["v_pk_mul_f32 %s, %s, s[%d:%d]" % (rr("v", qacc(j, 0) + k, 2), rr("v", qacc(j, 0) + k, 2), sDa, sDa + 1) for k in range(0, 32, 2)]
        else:
            va += ["v_mul_f32 v%d, s%d, v%d" % (qacc(j, 0) + k, sDa, qacc(j, 0) + k) for k in range(32)]
        va += pack_tile(qacc(j, 0), Q(j, 0)) + pack_tile(qacc(j, 4), Q(j, 2))
    va += ["v_xor_b32 v%d, v%d, v%d" % (AW + k, AW + k, vWa) for k in range(16)]
    vm = kv0(2, 0) + kv0(0, 1) + kv0(1, 1) + kv0(3, 0) + kv0(4, 0) + kv0(5, 0) + kv0(2, 1) + kv0(3, 1) + [wo_chunk]
    for k, x in enumerate(vm):
        p.add([x] + va[k * len(va) // len(vm):(k + 1) * len(va) // len(vm)])
    st_()
    phi(aXF)
    fb = (lambda: st_()) if os.environ.get("FINEB") else (lambda: None)
    fb()
    for k in range(4):
        p("v_mov_b32 v%d, 0" % (RR + k))
    zero_o = lambda k, z: "%s %s, %s, %s, 0" % (MF, rr("a", 16 * k, 16), rr("v", z, 4), rr("v", z, 4))
    p("v_and_b32 v%d, 31, v%d" % (t2, vLane))
    p("s_mov_b32 s%d, s%d" % (sT, sSc))
    p("v_mul_u32_u24 v%d, 48, v%d" % (vWa, vLane))
    p("v_add_u32 v%d, s%d, v%d" % (vWa, sT, vWa))
    p("v_lshrrev_b32 v%d, 5, v%d" % (t1, vLane))
    p(zero_o(0, RR))
    p("v_bfe_u32 v%d, v%d, 2, 2" % (vRd, vLane))
    p("v_lshl_add_u32 v%d, v%d, 2, v%d" % (vRd, t1, vRd))
    p("v_mul_u32_u24 v%d, 48, v%d" % (vRd, vRd))
    p("v_bfe_u32 v%d, v%d, 4, 1" % (t1, vLane))
    p("v_lshl_add_u32 v%d, v%d, 5, v%d" % (vRd, t1, vRd))
    p("v_and_b32 v%d, 3, v%d" % (t1, vLane))
    p("v_lshl_add_u32 v%d, v%d, 3, v%d" % (vRd, t1, vRd))
    p("v_add_u32 v%d, s%d, v%d" % (vRd, sT, vRd))
    p(zero_o(1, RR))
    p("v_mov_b32 v%d, 0x3f803f80" % t0)
    p("v_cmp_eq_u32 vcc, 20, v%d" % t2)
    def tr_out():
        p("ds_write_b128 v%d, %s" % (vWa, rr("v", PH, 4)))
        p("ds_write_b128 v%d, %s offset:16" % (vWa, rr("v", PH + 4, 4)))
        p("ds_write_b64 v%d, %s offset:32" % (vWa, rr("v", PH + 8, 2)))
    def tr_in():
        for nn in range(2):
            for mm in range(2):
                for u in range(2):
                    p("ds_read_b64_tr_b16 %s, v%d offset:%d" % (rr("v", AF + (nn * 2 + mm) * 4 + 2 * u, 2), vRd, (16 * mm + 8 * u) * 48 + nn * 1536))
    def kv_mm(tt):
        for mm in range(2):
            for nn in range(2):
                c = rr("v", KC + nn * 16, 16)
                p("%s %s, %s, %s, %s" % (MF, c, rr("v", AF + (nn * 2 + mm) * 4, 4), rr("v", VF + tt * 8 + mm * 4, 4), "0" if (tt == 0 and mm == 0) else c))
    tr_out(); tr_in()
    for k in range(16):
        p("v_accvgpr_read_b32 v%d, a%d" % (VF + k, aVF + k))
        if k % 6 == 5:
            p(zero_o(2 + k // 6, RR))
    for k in range(16):
        p("v_cndmask_b32 v%d, v%d, v%d, vcc" % (VF + k, VF + k, t0))
        if k % 6 == 5:
            p(zero_o(4 + k // 6, RR))
    phi(aXF + 8, lambda: kv_mm(0))
    tr_out(); tr_in()
    p(zero_o(6, RR))
    p("v_lshrrev_b32 v%d, 5, v%d" % (t0, vLane))
    p("v_lshlrev_b32 v%d, 10, v%d" % (vV, t0))
    p("v_lshl_add_u32 v%d, v%d, 4, v%d" % (vV, t2, vV))
    p("v_and_b32 v%d, 15, v%d" % (vLim, vLane))
    p("v_lshrrev_b32 v%d, 4, v%d" % (t0, vLane))
    p("v_lshlrev_b32 v%d, 2, v%d" % (t0, t0))
    p("v_sub_u32 v%d, v%d, v%d" % (vLim, vLim, t0))
    p("v_mov_b32 v%d, 0x%x" % (vNeg, NEG))
    for j in range(4):
        p("v_mov_b32 v%d, 0" % (vL + j))
        p("v_mov_b32 v%d, 0x3f803f80" % (vOne + j))
    p(zero_o(7, RR))
    fb()
    R0 = 6 * U
    p("s_mul_i32 s%d, s%d, 6144" % (sT, sWave))
    p("s_add_u32 s%d, s%d, %d" % (sT, sT, R0))
    p("v_add_u32 v%d, s%d, v%d" % (t1, sT, vL16))
    kv_mm(1)
    p("s_lshl_b32 s%d, s%d, 3" % (sT, sIdx))
    p("s_add_u32 s%d, s%d, s%d" % (sT, sT, sXcd))
    p("s_lshl_b32 s%d, s%d, 13" % (sT, sT))
    srd(p, sY, ptr(D_WS), off_s=sT, off_imm=WS_KVP, nrec=5120)
    srd(p, sC, ptr(D_WS), off_imm=WS_CTX, nrec=16 * MB)
    p("s_lshl_b32 s%d, s%d, 10" % (sT, sWave))
    p("s_add_u32 s%d, s%d, %d" % (sT, sT, R0))
    p("v_mov_b32 v%d, v%d" % (vB, vL16))
    p("v_add_u32 v%d, 0x4000, v%d" % (vB + 1, vL16))
    for nn in range(2):
        for jj in range(3):
            p("ds_write_b128 v%d, %s offset:%d" % (t1, rr("v", KC + nn * 16 + jj * 4, 4), (nn * 3 + jj) * 1024))
    p("v_add_u32 v%d, s%d, v%d" % (t1, sT, vL16))
    fb()
    p("s_waitcnt vmcnt(16) lgkmcnt(0)\ns_barrier")
    st_()
    for j in range(8):
        p("ds_read_b128 %s, v%d offset:%d" % (rr("a", FB(j), 4), vB, j * 1024))
    RS = 128
    for k in range(2):
        for w in range(4):
            p("ds_read_b128 %s, v%d offset:%d" % (rr("v", RS + k * 16 + w * 4, 4), t1, w * 6144 + k * 4096))
    p("s_cmp_eq_u32 s%d, 3" % sWave)
    p("s_cselect_b32 s%d, 512, s%d" % (sSpin, sW2k))
    p("s_add_u32 s%d, s%d, 2560" % (sOff, sW2k))
    def mask_code(sl, tri, c=None):
        c = CI(2 * sl) if c is None else c
        r = ["s_sub_i32 s%d, s%d, s%d" % (sT, sNext, tri), "s_lshl_b32 s%d, s%d, 5" % (sT, sT), "v_subrev_u32 v%d, s%d, v%d" % (t0, sT, vLim)]
        for off, regs in ((0, (c, c + 12)), (16, (c + 4,)), (-16, (c + 8,))):
            r += ["v_cmp_gt_i32 s[%d:%d], %d, v%d" % (84 + 2 * k, 85 + 2 * k, off + k, t0) for k in range(4)]
            r += ["v_cndmask_b32 v%d, v%d, v%d, s[%d:%d]" % (b + k, b + k, vNeg, 84 + 2 * k, 85 + 2 * k) for b in regs for k in range(4)]
        return r
    xch = ["s_xor_b32 s%d, s%d, 1" % (sT, sWave), "s_lshl_b32 s%d, s%d, 13" % (sT, sT), "s_add_u32 s%d, s%d, 0x20000" % (sT, sT), "v_add_u32 v%d, s%d, v%d" % (t0, sT, vL16)] + \
          ["ds_read_b128 %s, v%d offset:%d" % (rr("v", Q(2, 0) + 4 * k, 4), t0, k * 1024) for k in range(8)] + \
          ["v_mov_b32 v%d, v%d" % (CI(2) + k, vMp + (k >> 3)) for k in range(16)] + \
          ["v_mov_b32 v%d, v%d" % (vM + 2, vMp), "v_mov_b32 v%d, v%d" % (vM + 3, vMp + 1), "s_xor_b32 s%d, s%d, 1" % (sTriB, sTriA), "s_mov_b32 s%d, 0" % sKeep, WL]
    def evt_check(kind):
        lab = p.newlabel("M_ev")
        back = "%s_r" % lab
        code = ["%s:" % lab]
        if kind == "x":
            code += ["s_cmp_eq_u32 s%d, s%d" % (sIt, sNlo), "s_cbranch_scc1 %s_x" % lab] + mask_code(1, sTriB) + ["s_branch " + back, "%s_x:" % lab] + xch + \
                    ["s_cmp_lt_u32 s%d, 32" % sIt, "s_cbranch_scc1 " + back]
        code += mask_code(1, sTriB, S(0, 2) if kind == "s0" else None)
        if kind == "l1":
            code += ["s_cmp_lt_u32 s%d, 32" % sIt, "s_cbranch_scc1 " + back]
        if kind not in ("lo", "s0"):
            code += mask_code(0, sTriA)
        tail.extend(code + ["s_branch " + back])
        return ["s_bitcmp1_b64 s[%d:%d], s%d" % (sMask, sMask + 1, sIt), "s_cbranch_scc1 %s" % lab, "%s:" % back]
    qk_mf = lambda par: ["%s %s, %s, %s, %s" % (M16, rr("v", S(par, j) + 4 * (f >> 2), 4), rr("a", FB(f), 4), rr("v", Q(j, f & 3), 4),
                                                 rr("v", (CI(j) if (f & 3) == 0 else S(par, j)) + 4 * (f >> 2), 4)) for f in range(8) for j in range(4)]
    pv_mf = lambda par: ["%s %s, %s, %s, %s" % (M16, rr("a", O(j, d), 4), rr("a", FB(8 + d), 4), rr("v", PP(par, j), 4), rr("a", O(j, d), 4)) for d in range(8) for j in range(4)]
    def allg(op, dst, tmp):
        return ["v_mov_b32 v%d, v%d" % (tmp, dst), "v_permlane32_swap_b32 v%d, v%d" % (dst, tmp), "%s v%d, v%d, v%d" % (op, dst, dst, tmp),
                "v_mov_b32 v%d, v%d" % (tmp, dst), "v_permlane16_swap_b32 v%d, v%d" % (dst, tmp), "%s v%d, v%d, v%d" % (op, dst, dst, tmp)]
    def rowmax(par, j, dst, tmp):
        s = S(par, j)
        return ["v_max3_f32 v%d, v%d, v%d, v%d" % (dst, s, s + 1, s + 2), "v_max3_f32 v%d, v%d, v%d, v%d" % (dst, dst, s + 3, s + 4),
                "v_max3_f32 v%d, v%d, v%d, v%d" % (dst, dst, s + 5, s + 6), "v_max_f32 v%d, v%d, v%d" % (dst, dst, s + 7)] + allg("v_max_f32", dst, tmp) + \
               ["v_add_f32 v%d, 0x%x, v%d" % (dst, f2u(BIAS), dst)]
    NG1 = int(os.environ.get("NG1", "9"))
    def sm_stream(par, part):
        allg_ = [(j, k) for k in range(4) for j in range(4)]
        groups = allg_[:NG1] if part == 0 else (allg_[NG1:] if part == 1 else allg_)
        out = []
        tm = lambda n: (TMP + (n % 4) * 2, TMP + (n % 4) * 2 + 1)
        cv = lambda n: "v_cvt_pk_bf16_f32 v%d, v%d, v%d" % ((PP(par, groups[n][0]) + groups[n][1],) + tm(n))
        for n, (j, k) in enumerate(groups):
            a, b = tm(n)
            out += ["v_exp_f32 v%d, v%d" % (a, S(par, j) + 2 * k)] + ([cv(n - 1)] if n else []) + ["v_exp_f32 v%d, v%d" % (b, S(par, j) + 2 * k + 1)]
        return out + [cv(len(groups) - 1)]
    NE = 4
    def sm_place(G, par, part, lo, hi, ne=0):
        st = sm_stream(par, part)
        ex = [x for x in st if x.startswith("v_exp")]
        cv = [x for x in st if x.startswith("v_cvt")]
        nc = 0
        for g in range(lo, hi + 1):
            ready = ne // 2
            left = 8 - G.load(g)
            rest = sum(max(0, 8 - G.load(x)) for x in range(g + 1, hi + 1))
            while True:
                todo = 8 * (len(ex) - ne) + 4 * (len(cv) - nc)
                force = todo > rest + max(left, 0) - 4 and left > -4 and g < hi or g == hi and todo
                if ne < len(ex) and (left >= 8 or (force and nc >= ready)) and ne // 2 - nc < 4 and not (ready - nc >= 3 and left >= 8 and ne % 2 == 0):
                    G.va[g].append(ex[ne]); ne += 1; left -= 8
                elif nc < (ready if g < hi else ne // 2) and (left >= 4 or force):
                    G.va[g].append(cv[nc]); nc += 1; left -= 4
                else:
                    break
        assert ne == len(ex) and nc == len(cv), (ne, nc)
    LT = lambda par, j: PP(par ^ 1, j)
    sum_mf = lambda par: ["%s %s, %s, %s, 0" % (M16, rr("v", LT(par, j), 4), rr("v", vOne, 4), rr("v", PP(par, j), 4)) for j in range(4)]
    need = lambda js: I("need", xrd=[("a", FB(j) + e) for j in js for e in range(4)])
    fread = lambda f, par: "ds_read_b128 %s, v%d offset:%d" % (rr("a", FB(f), 4), vB + par, f * 1024)
    ALL = (0, 1, 2, 3)
    def slow_site(par):
        lab = p.newlabel("M_sl")
        tail.extend(["%s:" % lab, call("M_slow%d" % par), "s_branch %s_r" % lab])
        chk = ["v_max3_f32 v%d, v%d, v%d, v%d" % (vU, LT(par, 0), LT(par, 1), LT(par, 2)), "v_max_f32 v%d, v%d, v%d" % (vU, vU, LT(par, 3)), "v_cmp_lt_f32 vcc, s%d, v%d" % (sThr, vU)]
        return chk, ["s_cbranch_vccnz %s" % lab, "%s_r:" % lab]
    accl = lambda par: ["v_add_f32 v%d, v%d, v%d" % (vL + j, vL + j, LT(par, j)) for j in range(4)]
    def iteration(par, barrier, ntile, kind, endc=(), endb=(), mid=()):
        qk = qk_mf(par ^ 1)
        SP = 24
        mf = qk[:SP] + sum_mf(par) + qk[SP:] + pv_mf(par)
        pos = lambda f: 4 * f + (4 if 4 * f >= SP else 0)
        G = Gaps16(68)
        LA = int(os.environ.get("LA", "14")); LV = int(os.environ.get("LV", "18")); BP = int(os.environ.get("BP", "53")); LG = ""
        for f in range(4, 16):
            G.put(pos(f) - (LA if f < 6 else LV), fread(f, (par ^ 1) if f < 8 else par))
        for f in range(2, 16, 2):
            G.nv[pos(f) - 1].insert(0, need([f, f + 1]))
        G.put(66, need([0, 1]))
        G.put(0, ["s_add_u32 s%d, s%d, 1" % (sIt, sIt)]); G.put(1, ["s_add_u32 s%d, s%d, 2" % (sNb, sNb)])
        G.put(3, ["s_max_i32 s%d, s%d, s%d" % (sNext, sIt, sNb)]); G.put(4, ["s_lshl_b32 s%d, s%d, 14" % (sRd, sNext)])
        G.put(5, ["s_and_b32 s%d, s%d, 0x1ffff" % (sRd, sRd)])
        G.put(64 - LV, "v_add_u32 v%d, s%d, v%d" % (vB + par, sRd, vL16))
        if barrier:
            G.put(BP, ["s_waitcnt vmcnt(%d)%s" % (4 + 4 * ntile, LG), "s_barrier"])
        for f in range(4):
            G.put(BP + 1 + 2 * f + (f >> 1) * 2, fread(f, par))
        slots = eval(os.environ.get("SL2", "[8, 16, 23, 28, 33, 40, 45, 50]")) if ntile == 2 else eval(os.environ.get("SL1", "[23, 28, 33, 45]"))
        for hh in range(2 * ntile):
            so = sGv if hh < ntile else sG
            g0, g1 = slots[2 * hh], slots[2 * hh + 1]
            G.put(g0 - 2, ["s_and_b32 s%d, s%d, 0x1ffff" % (sT, so)])
            G.put(g0 - 1, ["s_add_u32 m0, s%d, s%d" % (sT, sW2k)])
            G.put(g0, kvld(so, 0))
            G.put(g1, [kvld(so, 1), "s_add_u32 s%d, s%d, 0x4000" % (so, so)])
        chk, br = slow_site(par)
        G.put(35, br)
        G.put(64, evt_check(kind))
        for k, x in enumerate(mid):
            G.put(55 + k, x)
        G.put(67, list(endc))
        G.put(67, list(endb), post=True)
        sm_place(G, par, 1, 0, SP - 3)
        G.put(32, chk[:2]); G.put(34, chk[2])
        early = [x for x in sm_stream(par ^ 1, 0) if x.startswith("v_exp")][:NE]
        for g in range(SP - 2, 32):
            if early and G.load(g) == 0:
                G.put(g, early.pop(0))
        assert not early
        G.put(36, accl(par)[:2]); G.put(37, accl(par)[2:])
        sm_place(G, par ^ 1, 0, 38, 66, NE)
        if VERB:
            print("iteration", par, ntile, G.report(), sum(max(0, x - 8) for x in G.report()))
        out = [x if isinstance(x, I) else I(x) for x in G.emit(mf)]
        X = os.environ.get("X_DROP", "")
        if "d" in X: out = [x for x in out if x.kind != "dma"]
        if "b" in X: out = [x for x in out if x.mn != "s_barrier"]
        if "e" in X: out = [x for x in out if x.mn != "v_exp_f32"]
        if "c" in X: out = [x for x in out if x.mn != "v_cvt_pk_bf16_f32"]
        if "l" in X: out = [x for x in out if x.kind != "ds"]
        if "w" in X:
            for x in out:
                if x.kind == "ds": x.wr = set()
        if "v" in X: out = [x for x in out if not (x.kind == "branch" and (x.target.startswith("M_ev") or x.target.startswith("M_sl")))]
        p.add(out)

    pp, p = p, Prog()
    p("s_mov_b32 s%d, 0x%x" % (sThr, THRESH))
    p("s_lshl_b32 s%d, s%d, 2" % (sT, sI))
    p("s_add_u32 s%d, s%d, s%d" % (sTriB, sT, sWave))
    p("s_sub_u32 s%d, 60, s%d" % (sTriA, sT))
    p("s_add_u32 s%d, s%d, s%d" % (sTriA, sTriA, sWave))
    p("s_add_u32 s%d, s%d, 4" % (sNlo, sT))
    p("s_mov_b32 s%d, 0\ns_mov_b32 s%d, 3" % (sMask, sMask + 1))
    p("s_bitset1_b64 s[%d:%d], s%d" % (sMask, sMask + 1, sNlo))
    p("s_bitset1_b64 s[%d:%d], s%d" % (sMask, sMask + 1, sTriB))
    p("s_add_u32 s%d, s%d, 1" % (sT, sTriB))
    p("s_bitset1_b64 s[%d:%d], s%d" % (sMask, sMask + 1, sT))
    if os.environ.get("X_NOHOOK"):
        p("s_mov_b64 s[%d:%d], 0" % (sMask, sMask + 1))
    p("s_and_b32 s%d, s%d, 1" % (sNb, sWave))
    p("s_sub_u32 s%d, s%d, s%d" % (sNb, sNb, sNlo))
    p("s_add_u32 s%d, s%d, 2" % (sNb, sNb))
    p("s_mov_b32 s%d, 0\ns_mov_b32 s%d, 0\ns_mov_b32 s%d, 1.0" % (sIt, sNext, sKeep))
    p("s_mov_b32 s%d, 0x%x\ns_mov_b32 s%d, 0x%x" % (sG, 6 * U, sGv, 4 * U + 8192))

    p("s_lshr_b32 s%d, s%d, 1" % (sT, sXcd))
    p("s_lshl_b32 s%d, s%d, 6" % (sT, sT))
    p("s_lshr_b32 s%d, s%d, 4" % (sT2, sIdx))
    p("s_add_u32 s%d, s%d, s%d" % (sT, sT, sT2))
    p("v_and_b32 v%d, 31, v%d" % (t0, vLane))
    p("v_lshl_add_u32 v%d, v%d, 1, s%d" % (t0, t0, sT))
    p("s_lshl_b32 s%d, s%d, 3" % (sT, sIdx))
    p("v_and_b32 v%d, 7, v%d" % (t1, vLane))
    p("v_add_u32 v%d, s%d, v%d" % (t1, sT, t1))
    p("v_cmp_gt_u32 vcc, 32, v%d" % vLane)
    p("v_cndmask_b32 v%d, v%d, v%d, vcc" % (vPoll, t0, t1))
    p("s_andn2_b32 s%d, s2, 0x38" % sT)
    p("v_and_b32 v%d, 7, v%d" % (t1, vLane))
    p("v_lshl_add_u32 v%d, v%d, 3, s%d" % (t1, t1, sT))
    p("v_lshrrev_b32 v%d, 4, v%d" % (t0, vLane))
    p("v_cmp_eq_u32 vcc, 1, v%d" % t0)
    p("v_cndmask_b32 v%d, v%d, v%d, vcc" % (vPoll, vPoll, t1))
    p("v_cndmask_b32 v%d, 3, 4, vcc" % (vPoll + 1))
    p("v_lshlrev_b32 v%d, 7, v%d" % (vPoll, vPoll))
    p("s_lshl_b32 s%d, s%d, 1" % (sCnt, sI))
    p("s_add_u32 s%d, s%d, 1" % (sCnt, sCnt))
    p("s_lshl_b32 s%d, s%d, 9" % (sT, sWave))
    p("s_add_u32 s%d, s%d, %d" % (sT, sT, 7 * U + 8192))
    p("v_lshl_add_u32 v%d, v%d, 3, s%d" % (t2, vLane, sT))
    setup0, p = p.ins, pp
    G = Gaps16(32)
    for k in range(32):
        G.put(k, setup0[k * len(setup0) // 32:(k + 1) * len(setup0) // 32], post=True)
    red = []
    for k in range(2):
        b = RS + k * 16
        for e in range(4):
            red += ["v_add_f32 v%d, v%d, v%d" % (b + e, b + e, b + 4 + e), "v_add_f32 v%d, v%d, v%d" % (b + 8 + e, b + 8 + e, b + 12 + e)]
        red += ["v_add_f32 v%d, v%d, v%d" % (b + e, b + e, b + 8 + e) for e in range(4)]
    G.stream(red, 2, 16)
    for k in range(2):
        G.put(18 + 2 * k, "buffer_store_dwordx4 %s, v%d, s[%d:%d], s%d offen %s" % (rr("v", RS + k * 16, 4), vV, sY, sY + 3, sOff if k else sSpin, WT))
    G.spread([fread(f, 1) for f in range(4)], 22, 31)
    p.add(G.emit([x.replace(", " + x.split(", ")[-1], ", 0") if (k & 15) < 4 else x for k, x in enumerate(qk_mf(0))]))
    p.add(evt_check("s0"))
    p("s_mov_b32 s%d, 1\ns_mov_b32 s%d, 1" % (sIt, sNext))
    rm = [rowmax(0, j, vU + 2 * j, vU + 2 * j + 1) + ["v_sub_f32 v%d, 0, v%d" % (vM + j, vU + 2 * j)] for j in range(4)]
    p.add([rm[j][k] for k in range(len(rm[0])) for j in range(4)])
    p("ds_write_b64 v%d, %s" % (t2, rr("v", vM, 2)))
    for j in range(4):
        for k in range(0, 8, 2):
            p(pk_subb(S(0, j) + k, S(0, j) + k, vU + 2 * j))
            p("v_pk_mov_b32 %s, %s, %s op_sel:[%d,%d]" % (v2(CI(j) + k), v2((vM + j) & ~1), v2((vM + j) & ~1), j & 1, j & 1))
    fb()
    p.add(evt_check("lo"))
    p("s_waitcnt vmcnt(2)")
    wo_out(p)
    p.add(sm_stream(0, 0))
    wo_st(p)
    fb()
    p("v_xor_b32 v%d, 0x200, v%d" % (t2, t2))
    p("s_lshl_b32 s%d, s%d, 13" % (sT, sWave))
    p("s_add_u32 s%d, s%d, 0x20000" % (sT, sT))
    p("v_add_u32 v%d, s%d, v%d" % (t0, sT, vL16))
    p(WL + "\ns_barrier")
    p("ds_read_b64 %s, v%d" % (rr("v", vMp, 2), t2))
    for k in range(8):
        p("ds_write_b128 v%d, %s offset:%d" % (t0, rr("v", Q(0, 0) + 4 * k, 4), k * 1024))
    st_()
    dec = ["s_sub_u32 s%d, s%d, 1" % (sCnt, sCnt)]
    HOOKS = (3, 5, 7, 9, 13, 15) + ((29,) if CODEPF & 8 else ())
    HM = sum(1 << e for e in HOOKS)
    hk = ["s_mov_b32 s%d, 0x%x" % (sT, HM), "s_bitcmp1_b32 s%d, s%d" % (sT, sIt)]
    chain = lambda hs: [x for e in hs for x in ("s_cmp_eq_u32 s%d, %d" % (sIt, e), "s_cbranch_scc1 M_hook%d" % e)]
    def setcont(lab):
        p("s_getpc_b64 s[%d:%d]\n%s_pc:" % (sCont, sCont + 1, lab))
        p("s_add_u32 s%d, s%d, %s-%s_pc\ns_addc_u32 s%d, s%d, 0" % (sCont, sCont, lab, lab, sCont + 1, sCont + 1))
    p.add(kv_store(0, 4) + kv_store(1, 4))
    setcont("M_l1")
    p("M_l1:")
    iteration(0, False, 1, "x")
    e1 = dec + ["s_cselect_b32 s%d, M_l1x-M_l1, 0" % sT, "s_cselect_b32 s%d, -1, 0x%x" % (sT2, HM),
                "s_add_u32 s%d, s%d, s%d" % (sCont, sCont, sT), "s_addc_u32 s%d, s%d, 0" % (sCont + 1, sCont + 1)]
    iteration(1, True, 1, "l1", ["s_bitcmp1_b32 s%d, s%d" % (sT2, sIt)], ["s_cbranch_scc0 M_l1"], mid=e1)
    p.add(chain(HOOKS))
    p("M_l1x:")
    st_()
    def ctx_base(sblk):
        p("s_lshl_b32 s%d, s%d, 20" % (sT, sblk))
        p("s_lshl_b32 s%d, s%d, 15" % (sT2, sH))
        p("s_add_u32 s%d, s%d, s%d" % (sT, sT, sT2))
        p("s_add_u32 s%d, s%d, s%d" % (sCb, sT, sW2k))
    ctx_store = lambda r, jj: "buffer_store_dwordx4 %s, v%d, s[%d:%d], s%d offen offset:%d %s" % (rr("v", r, 4), vL16, sC, sC + 3, sCb, jj * 1024, WT)
    ctx_base(sI)
    for jj in range(2):
        p("v_rcp_f32 v%d, v%d" % (vU + 2 + jj, vL + 2 + jj))
        p("v_mov_b32 v%d, 0" % (vL + 2 + jj))
    Z = PP(1, 0)
    for k in range(4):
        p("v_mov_b32 v%d, 0" % (Z + k))
    for ds in range(4):
        T = S(1, 0) + (ds & 1) * 16
        for jj in range(2):
            for k in range(8):
                p("v_accvgpr_read_b32 v%d, a%d" % (T + 8 * jj + k, O(2 + jj, 2 * ds) + k))
        for jj in range(2):
            for k in range(0, 8, 2):
                p(pk_mulb(T + 8 * jj + k, T + 8 * jj + k, vU + 2 + jj))
        p.add(pack_tile(T, T))
        if ds & 1:
            p(zero_o(4 + (ds >> 1), Z)); p(zero_o(6 + (ds >> 1), Z))
        p(ctx_store(T, 0)); p(ctx_store(T + 4, 1))
        if ds < 3:
            p("s_add_u32 s%d, s%d, 0x2000" % (sCb, sCb))
    for hh in range(2):
        so = sG
        p.add(["s_and_b32 s%d, s%d, 0x1ffff" % (sT, so), "s_add_u32 m0, s%d, s%d" % (sT, sW2k), kvld(so, 0), kvld(so, 1), "s_add_u32 s%d, s%d, 0x4000" % (so, so)])
    p("s_mov_b32 s%d, 1.0" % sKeep)
    p("s_lshl_b32 s%d, s%d, 1" % (sCnt, sI))
    p("s_sub_u32 s%d, 14, s%d" % (sCnt, sCnt))
    st_()
    setcont("M_l2")
    p("M_l2:")
    iteration(0, True, 2, "l2", dec, ["s_cbranch_scc1 M_l2x"])
    iteration(1, True, 2, "l2", hk, ["s_cbranch_scc0 M_l2"])
    back = jump("s_setpc_b64 s[%d:%d]" % (sCont, sCont + 1), ["M_l1", "M_l1x", "M_l2"])
    vP = vA
    def bm2_loads(q):
        bm_frag_loads(q, 0, aXQ)
        q("s_lshl_b32 s%d, s%d, 16" % (sT, sIdx))
        q("s_lshl_b32 s%d, s%d, 14" % (sT2, sWave))
        q("s_add_u32 s%d, s%d, s%d" % (sT, sT, sT2))
        srd(q, sO, ptr(D_WS), off_s=sT, off_imm=WS_KVP, nrec=16384)
        for j in range(2):
            for k in range(5):
                if k in (0, 4):
                    q("s_mov_b32 s%d, %d" % (sT, j * 8192 + k * 1024))
                q("buffer_load_dwordx4 %s, v%d, s[%d:%d], s%d offen offset:%d %s" % (rr("a", aPA + j * 20 + k * 4, 4), vL16, sO, sO + 3, sT, (k & 3) * 1024, WT))
    jobs = {3: publish(3) + kv_store(0, 5) + kv_store(1, 5), 5: poll_load("KV") + kv_store(0, 6) + kv_store(1, 6), 7: poll_check("KV", 3) + kv_store(0, 7) + kv_store(1, 7),
            9: publish(4) + L(xclear0) + xclear(1), 13: poll_load(3) + xclear(2), 15: poll_check(3) + xclear(3) + L(bm2_loads), 29: code_touch(vKV, 8)}
    p.add(chain(HOOKS[:-1]))
    for e in reversed(HOOKS):
        p("M_hook%d:" % e)
        ins = [x if isinstance(x, I) else I(x) for x in jobs[e]]
        for x in ins:
            if x.kind == "vmem":
                x.wr = set()
        p.add(ins + [back])
    p("M_l2x:")
    for f in range(8, 16):
        p(fread(f, 1))
    chk, br = slow_site(1)
    p.add(sm_stream(1, 1) + sum_mf(1) + chk + br + accl(1))
    p("s_waitcnt vmcnt(0) lgkmcnt(0)\ns_barrier")
    p.add(publish(5))
    mfl = pv_mf(1)
    mfl = [mfl[d * 4 + j] for jj in (2, 0) for d in range(8) for j in (jj, jj + 1)]
    sKq, sMb, sCc, sGc, sGw, sGw2, sWs, sRs, sW5, sDl = range(37, 47)
    sPC, sPW, sXO, sOut = sBO, sW2, sO, sW
    sIc, sIw = sKo, sNext
    vDw, vC, vWf = 3, 4, 8
    SZ = 36864
    odd = "s_bitcmp1_b32 s%d, 0" % sXcd
    pp, p = p, Prog()
    p("s_lshr_b32 s%d, s%d, 1" % (sKq, sXcd))
    p("s_lshr_b32 s%d, s%d, 3" % (sCc, sIdx))
    p("s_sub_u32 s%d, 15, s%d" % (sT, sI))
    p(odd)
    p("s_cselect_b32 s%d, s%d, s%d" % (sMb, sT, sI))
    p("s_cselect_b32 s%d, 6, 5" % sT2)
    p("v_mov_b32 v%d, s%d" % (vPoll + 1, sT2))
    p("s_and_b32 s%d, s2, 0x3e" % sT)
    p("v_bfe_u32 v%d, v%d, 1, 2" % (t1, vLane))
    p("v_lshl_add_u32 v%d, v%d, 6, s%d" % (t1, t1, sT))
    p("v_and_b32 v%d, 1, v%d" % (t2, vLane))
    p("v_add_lshl_u32 v%d, v%d, v%d, 7" % (vPoll, t1, t2))
    p("s_lshl_b32 s%d, s%d, 20" % (sT, sMb))
    p("s_lshl_b32 s%d, s%d, 18" % (sT2, sKq))
    p("s_add_u32 s%d, s%d, s%d" % (sT, sT, sT2))
    srd(p, sPC, ptr(D_WS), off_s=sT, off_imm=WS_CTX, nrec=32 * 8192)
    p("s_lshl_b32 s%d, s%d, 2" % (sT, sCc))
    p("s_add_u32 s%d, s%d, s%d" % (sT, sT, sKq))
    p("s_mul_i32 s%d, s%d, %d" % (sT, sT, 32 * 10240))
    srd(p, sPW, ptr(D_WS), off_s=sT, off_imm=WS_WOA, nrec=32 * 10240)
    p("s_mul_i32 s%d, s%d, 5120" % (sW5, sWave))
    p("v_add_u32 v%d, s%d, v%d" % (vDw, sW5, vL16))
    p("s_add_u32 s%d, s%d, 0x4000" % (sW5, sW5))
    p("s_movk_i32 s%d, 0x4000\ns_movk_i32 s%d, 0x5000" % (sIc, sIw))
    ldc = lambda k: "buffer_load_dwordx4 v%d, s[%d:%d], s%d offen offset:%d %s lds" % (vDma, sPC, sPC + 3, sGc, k * 1024, WT)
    ldw = lambda so, k: "buffer_load_dwordx4 v%d, s[%d:%d], s%d offen offset:%d %s lds" % (vDw, sPW, sPW + 3, so, k * 1024, WT)
    sSt, sBw = sDa, sDb
    dPos = ["s_mul_i32 s%d, s%d, s%d" % (sGc, sSt, sIc), "s_mul_i32 s%d, s%d, s%d" % (sGw, sSt, sIw), "s_add_u32 s%d, s%d, s%d" % (sGw, sGw, sBw),
            "s_add_u32 s%d, s%d, 0x1000" % (sGw2, sGw)]
    dC = [["s_add_u32 m0, s%d, s%d" % (sWs, sW4)]] + [ldc(k) for k in range(4)]
    dW = [["s_add_u32 m0, s%d, s%d" % (sWs, sW5)]] + [ldw(sGw, k) for k in range(4)] + [["s_add_u32 m0, m0, 0x1000"], ldw(sGw2, 0)]
    dAdv = ["s_add_u32 s%d, s%d, 1" % (sSt, sSt), "s_and_b32 s%d, s%d, 15" % (sSt, sSt),
            "s_add_u32 s%d, s%d, %d" % (sWs, sWs, SZ), "s_cmp_eq_u32 s%d, %d" % (sWs, 4 * SZ), "s_cselect_b32 s%d, 0, s%d" % (sWs, sWs)]
    p("s_and_b32 s%d, s%d, 7" % (sSt, sH))
    p("s_lshl_b32 s%d, s%d, 1" % (sSt, sSt))
    p("s_mov_b32 s%d, 0\ns_mov_b32 s%d, 0" % (sWs, sBw))
    p("v_add_u32 v%d, 0x20000, v%d" % (vKV, vDw))
    setup, p = p.ins, pp
    wpre = []
    for k in range(3):
        wpre += [(dAdv if k else []) + dPos + dW[0]] + dW[1:]
    Lr, SUM, KA, N = 96, 176, 200, 96
    vMw, vLw = vB, vB + 1
    p("s_mul_i32 s%d, s%d, %d" % (sT, sWave, SZ))
    p("v_add_u32 v%d, s%d, v%d" % (vMw, sT, vL16))
    p("v_lshlrev_b32 v%d, 4, v0" % vLw)
    p("v_add_u32 v%d, 0x%x, v%d" % (vLw, 124 * 1024, vLw))
    p("v_mov_b32 v%d, v%d\nv_mov_b32 v%d, v%d" % (vOne, vM + 2, vOne + 1, vM + 3))
    G = Gaps16(32)
    G.put(0, "ds_write_b128 v%d, %s" % (vLw, rr("v", vL + 2, 4)))
    for k in range(16):
        G.put(16 + k, "ds_write_b128 v%d, %s offset:%d" % (vMw, rr("a", O(2 + (k & 1), k >> 1), 4), k * 1024))
    for k in range(30):
        G.put(k, setup[k * len(setup) // 30:(k + 1) * len(setup) // 30], post=True)
    G.stream(["v_accvgpr_read_b32 v%d, a%d" % (Lr + k, aPA + k) for k in range(40)] + ["v_add_f32 v%d, v%d, v%d" % (Lr + e, Lr + e, Lr + 20 + e) for e in range(20)], 0, 31)
    p.add(G.emit(mfl))
    st_()
    for k in range(5):
        p("ds_write_b128 v%d, %s offset:%d" % (vKV, rr("v", Lr + 4 * k, 4), k * 1024))
    p("v_add_u32 v%d, s%d, v%d" % (vDma, sW4, vL16))
    p("v_and_b32 v%d, 31, v%d" % (t2, vLane))
    p("v_min_u32 v%d, 20, v%d" % (t2, t2))
    p("v_and_b32 v%d, 32, v%d" % (t1, vLane))
    p("v_add_lshl_u32 v%d, v%d, v%d, 4" % (vP, t1, t2))
    p("v_add_u32 v%d, 0x20000, v%d" % (vP, vP))
    p("s_xor_b32 s%d, s%d, 1" % (sT, sWave))
    p("s_mul_i32 s%d, s%d, %d" % (sT, sT, SZ))
    p("v_add_u32 v%d, s%d, v%d" % (t0, sT, vL16))
    p("v_xor_b32 v%d, 0x400, v%d" % (vLw, vLw))
    p("s_sub_u32 s%d, 15, s%d" % (sOff, sI))
    ctx_base(sOff)
    p(WL + "\ns_barrier")
    XO = 144
    p("ds_read_b128 %s, v%d" % (rr("v", TMP, 4), vLw))
    for k in range(16):
        p("ds_read_b128 %s, v%d offset:%d" % (rr("v", XO + (k >> 2) * 16 + (k & 1) * 8 + ((k >> 1) & 1) * 4, 4), t0, k * 1024))
    pp, p = p, Prog()
    for jj in range(2):
        fa, fb = vU + 2 * jj, vU + 2 * jj + 1
        p("v_min_f32 v%d, v%d, v%d" % (t1, vM + jj, TMP + 2 + jj))
        p("v_sub_f32 v%d, v%d, v%d" % (fa, t1, vM + jj))
        p("v_sub_f32 v%d, v%d, v%d" % (fb, t1, TMP + 2 + jj))
        p("v_exp_f32 v%d, v%d" % (fa, fa))
        p("v_exp_f32 v%d, v%d" % (fb, fb))
        p("v_mul_f32 v%d, v%d, v%d" % (vL + jj, vL + jj, fa))
        p("v_fmac_f32 v%d, v%d, v%d" % (vL + jj, TMP + jj, fb))
        p("v_rcp_f32 v%d, v%d" % (t1, vL + jj))
        p("v_mul_f32 v%d, v%d, v%d" % (fa, fa, t1))
        p("v_mul_f32 v%d, v%d, v%d" % (fb, fb, t1))
    KP = lambda ds: (32, 40, 212, 220)[ds]
    for ds in range(4):
        T = 48 + (ds & 1) * 16
        for jj in range(2):
            for k in range(8):
                p("v_accvgpr_read_b32 v%d, a%d" % (T + 8 * jj + k, O(jj, 2 * ds) + k))
        for jj in range(2):
            for k in range(0, 8, 2):
                p(pk_mulb(T + 8 * jj + k, T + 8 * jj + k, vU + 2 * jj))
            for k in range(0, 8, 2):
                p(pk_fmab(T + 8 * jj + k, XO + ds * 16 + jj * 8 + k, vU + 2 * jj + 1, T + 8 * jj + k))
        p.add(pack_tile(T, KP(ds)))
        p(ctx_store(KP(ds), 0)); p(ctx_store(KP(ds) + 4, 1))
        if ds < 3:
            p("s_addk_i32 s%d, 0x2000" % sCb)
    epi, p = p.ins, pp
    n1 = len(epi) * 2 // 3
    for k, x in enumerate(wpre):
        p.add([x] + epi[k * n1 // len(wpre):(k + 1) * n1 // len(wpre)])
    p.add(epi[n1:])
    st_()
    for w in range(4):
        for k in range(5):
            p("ds_read_b128 %s, v%d offset:%d" % (rr("v", Lr + w * 20 + 4 * k, 4), vP, w * 5120 + k * 1024))
    phi(aXQ)
    sums = []
    for e in range(0, 20, 2):
        sums += [pk_add(Lr + e, Lr + e, Lr + 20 + e), pk_add(Lr + 40 + e, Lr + 40 + e, Lr + 60 + e)]
    sums += [pk_add(SUM + e, Lr + e, Lr + 40 + e) for e in range(0, 20, 2)]
    sums += ["v_cvt_pk_bf16_f32 v%d, v%d, v%d" % (KA + k, SUM + 2 * k, SUM + 2 * k + 1) for k in range(10)]
    sums += ["v_mov_b32 v%d, 0" % r for r in (KA + 10, KA + 11, PH + 10, PH + 11)]
    p.add(sums)
    def num(N):
        for u in range(3):
            p("%s %s, %s, %s, %s" % (MF, rr("v", N, 16), rr("v", KA + 4 * u, 4), rr("v", PH + 4 * u, 4), rr("v", N, 16) if u else "0"))
    num(N)
    p("s_waitcnt vmcnt(0) lgkmcnt(0)\ns_barrier")
    p.add(publish(6))
    p(odd + "\ns_cbranch_scc0 M_own0")
    p("v_add_u32 v%d, s%d, v%d" % (t2, sW2k, vL16))
    for ds in range(4):
        for jj in range(2):
            p("ds_write_b128 v%d, %s offset:%d" % (t2, rr("v", KP(ds) + 4 * jj, 4), (ds >> 1) * SZ + (ds & 1) * 8192 + jj * 1024))
    p("s_branch M_own1\nM_own0:")
    p("s_and_b32 s%d, s%d, 7" % (sGc, sH))
    p("s_lshl_b32 s%d, s%d, 15" % (sGc, sGc))
    p.add(["s_mov_b32 m0, s%d" % sW4] + dC[1:] + ["s_add_u32 m0, m0, %d" % SZ, "s_addk_i32 s%d, 0x4000" % sGc] + dC[1:] + dPos[:1])
    p("M_own1:")
    phi(aXQ + 8)
    p.add(poll_load("A"))
    num(N + 32)
    p("s_lshr_b32 s%d, s%d, 1" % (sT, sTT))
    p("s_mul_i32 s%d, s%d, 81920" % (sT, sT))
    srd(p, sY, ptr(D_WS), off_s=sT, off_imm=WS_OB, nrec=81920)
    vO = vA
    p("v_and_b32 v%d, 15, v%d" % (t0, vLane))
    p("v_bfe_u32 v%d, v%d, 4, 1" % (t2, vLane))
    p("v_lshlrev_b32 v%d, 10, v%d" % (t2, t2))
    p("v_lshrrev_b32 v%d, 5, v%d" % (t1, vLane))
    p("v_lshl_add_u32 v%d, v%d, 4, v%d" % (vO, t0, t2))
    p("v_lshl_add_u32 v%d, v%d, 8, v%d" % (vO, t1, vO))
    p("v_lshl_add_u32 v%d, v%d, 3, v%d" % (vO + 1, t0, t2))
    p("v_lshl_add_u32 v%d, v%d, 31, v%d" % (vO + 1, t1, vO + 1))
    p("s_lshr_b32 s%d, s%d, 3" % (sT, sIdx))
    p("s_mul_i32 s%d, s%d, 20480" % (sT, sT))
    p("s_bfe_u32 s%d, s%d, 0x20001" % (sT2, sIdx))
    p("s_and_b32 s%d, s%d, 1" % (sSpin, sIdx))
    p("s_lshl_b32 s%d, s%d, 7" % (sOff, sI))
    p("s_add_u32 s%d, s%d, s%d" % (sOff, sOff, sT))
    p("s_addk_i32 s%d, 0x4000" % sOff)
    p("s_lshl_b32 s%d, s%d, 12" % (sT2, sT2))
    p("s_lshl_b32 s%d, s%d, 9" % (sSpin, sSpin))
    p("s_add_u32 s%d, s%d, s%d" % (sT, sT, sT2))
    p("s_add_u32 s%d, s%d, s%d" % (sT, sT, sSpin))
    for tt in range(2):
        n0 = N + 32 * tt
        p("v_add_f32 v%d, 0x%x, v%d" % (n0 + 12, f2u(1e-6), n0 + 12))
        p("v_rcp_f32 v%d, v%d" % (n0 + 12, n0 + 12))
        for k in range(0, 12, 2):
            p(pk_mulb(n0 + k, n0 + k, n0 + 12))
        for k in range(6):
            p("v_cvt_pk_bf16_f32 v%d, v%d, v%d" % (n0 + 16 + k, n0 + 2 * k, n0 + 2 * k + 1))
        p("buffer_store_dwordx4 %s, v%d, s[%d:%d], s%d offen offset:%d %s" % (rr("v", n0 + 16, 4), vO, sY, sY + 3, sT, tt * 2048, WT))
        if os.environ.get("X_OB") == "1":
            p("buffer_store_dwordx4 %s, v%d, s[%d:%d], s%d offen offset:%d %s" % (rr("v", n0 + 16, 4), vO, sY, sY + 3, sT, tt * 2048, WT))
        else:
            p("buffer_store_dwordx2 %s, v%d, s[%d:%d], s%d offen offset:%d %s" % (rr("v", n0 + 20, 2), vO + 1, sY, sY + 3, sOff, tt * 2048, WT))
    MF16 = "v_mfma_f32_16x16x32_bf16"
    PA = 160
    pacc = lambda q, n: PA + (q * 5 + n) * 4
    pfr = lambda st, i: st * 36 + i * 4
    aOB = 80
    p("s_lshr_b32 s%d, s%d, 1" % (sT, sWave))
    p("s_lshl_b32 s%d, s%d, 2" % (sT, sT))
    p("s_add_u32 s%d, s%d, s%d" % (sT, sT, sKq))
    p("s_lshl_b32 s%d, s%d, 10" % (sT, sT))
    p("v_add_u32 v%d, s%d, v%d" % (vC, sT, vL16))
    for qq in range(1, 4):
        p("v_xor_b32 v%d, 0x%x, v%d" % (vC + qq, qq << 10, vC))
    p("s_and_b32 s%d, s%d, 1" % (sT, sWave))
    p("s_mul_i32 s%d, s%d, 5120" % (sT, sT))
    p("s_add_u32 s%d, s%d, 0x4000" % (sT, sT))
    p("v_add_u32 v%d, s%d, v%d" % (vWf, sT, vL16))
    p("s_mov_b32 s%d, 0" % sRs)
    for k in range(4):
        p("v_mov_b32 v%d, 0" % (32 + k))
    for k in range(5):
        p("%s %s, v[32:35], v[32:35], 0" % (MF, rr("v", PA + 16 * k, 16)))
    def p_reads(st):
        c = ["ds_read_b128 %s, v%d offset:%d" % (rr("a", pfr(st, qq), 4), vC + qq, st * 8192) for qq in range(4)]
        w = ["ds_read_b128 %s, v%d offset:%d" % (rr("a", pfr(st, 4 + n), 4), vWf, st * 10240 + n * 1024) for n in range(5)]
        return [w[0]] + c + w[1:]
    p_mf = lambda st: ["%s %s, %s, %s, %s" % (MF16, rr("v", pacc(qq, n), 4), rr("a", pfr(st, 4 + n), 4), rr("a", pfr(st, qq), 4), rr("v", pacc(qq, n), 4)) for n in range(5) for qq in range(4)]
    G = Gaps(40)
    G.spread(p_reads(1), 0, 12)
    G.put(19, ["s_waitcnt vmcnt(13) lgkmcnt(0)", "s_barrier"])
    G.put(13, ["s_add_u32 s%d, s%d, 1" % (sRs, sRs), "s_and_b32 s%d, s%d, 3" % (sRs, sRs)])
    G.put(14, ["s_mov_b32 s%d, %d" % (sDl, SZ), "s_cselect_b32 s%d, s%d, 0x%x" % (sDl, sDl, u32(-3 * SZ))])
    G.spread(["v_add_u32 v%d, s%d, v%d" % (r, sDl, r) for r in (vWf, vC, vC + 1, vC + 2, vC + 3)], 15, 18)
    G.spread(p_reads(0), 20, 32)
    for k, x in enumerate(dC):
        G.put(max(0, 4 * k - 1) + (1 if k == 0 else 0), x)
    for k, x in zip((20, 21, 25, 29, 33, 36, 37), dW):
        G.put(k, x)
    G.spread(dAdv, 30, 35); G.put(38, dPos); G.put(39, ["s_sub_u32 s%d, s%d, 1" % (sNlo, sNlo), WL, "s_cbranch_scc0 M_p3"])
    o3 = [x if isinstance(x, I) else I(x) for x in G.emit(p_mf(0) + p_mf(1))]
    X3 = os.environ.get("X_P3", "")
    if "m" in X3: o3 = [x for x in o3 if x.kind not in ("mfma", "ds")]
    if "d" in X3: o3 = [x for x in o3 if x.kind != "dma"]
    if "s" in X3: o3 = [I(x.text.replace(" sc1", "")) if x.kind == "dma" else x for x in o3]
    tail.extend(["M_p3:"] + o3 + [ret])
    p.add(poll_check("A"))
    p.add(dC + dAdv + dPos)
    st_()
    p("s_waitcnt vmcnt(8) lgkmcnt(0)\ns_barrier")
    st_()
    p.add(p_reads(0))
    p(WL)
    def run(n):
        p("s_mov_b32 s%d, %d" % (sNlo, n - 1))
        p(call("M_p3"))
        if os.environ.get("FINE3") and n != 14:
            st_()
    xr = lambda qq: (PA + qq * 20, PA + qq * 20 + 4, PA + qq * 20 + 8)
    def xrecv(q):
        for qq in range(1, 4):
            xfer(q, "load", qq, sXO, vDw, vC, xr(qq))
    for _ in range(3 if os.environ.get("FINE3") else 1):
        run(1 if os.environ.get("FINE3") else 3)
    p.add(publish(7))
    run(5)
    p("s_lshr_b32 s%d, s%d, 2" % (sT, sIdx))
    p("s_mul_i32 s%d, s%d, 5" % (sT, sT))
    p("v_mul_u32_u24 v%d, 0x3334, v%d" % (t1, vLane))
    p("v_lshrrev_b32 v%d, 16, v%d" % (t1, t1))
    p("v_mul_u32_u24 v%d, 35, v%d" % (t1, t1))
    p("v_add3_u32 v%d, v%d, v%d, s%d" % (t0, t1, vLane, sT))
    p("s_andn2_b32 s%d, s2, 6" % sT)
    p("v_and_b32 v%d, 3, v%d" % (t1, vLane))
    p("v_lshl_add_u32 v%d, v%d, 1, s%d" % (t1, t1, sT))
    p("v_cmp_gt_u32 vcc, 25, v%d" % vLane)
    p("v_cndmask_b32 v%d, v%d, v%d, vcc" % (t0, t1, t0))
    p("v_and_b32 v%d, 31, v%d" % (t1, vLane))
    p("v_lshl_add_u32 v%d, v%d, 3, s%d" % (t1, t1, sXcd))
    p("v_cmp_gt_u32 vcc, 32, v%d" % vLane)
    p("v_cndmask_b32 v%d, v%d, v%d, vcc" % (vPoll, t1, t0))
    p("v_lshlrev_b32 v%d, 7, v%d" % (vPoll, vPoll))
    p("v_cndmask_b32 v%d, 7, 5, vcc" % (vPoll + 1))
    p.add(poll_load("B"))
    p("s_lshl_b32 s%d, s%d, 2" % (sTT, sXcd))
    p("s_and_b32 s%d, s%d, 3" % (sT, sIdx))
    p("s_add_u32 s%d, s%d, s%d" % (sTT, sTT, sT))
    p("s_mul_i32 s%d, s%d, 81920" % (sT, sTT))
    srd(p, sY, ptr(D_WS), off_s=sT, off_imm=WS_OB, nrec=81920)
    p("s_lshl_b32 s%d, s%d, 10" % (sOff, sWave))
    p("v_and_b32 v%d, 15, v%d" % (t0, vLane))
    p("v_lshlrev_b32 v%d, 3, v%d" % (t0, t0))
    p("v_sub_u32 v%d, v%d, v%d" % (vO, vL16, t0))
    run(2)
    p.add(poll_check("B"))
    for s in range(10, 16):
        if s == 13:
            p("s_lshr_b32 s%d, s%d, 2" % (sT, sIdx))
            p("s_mul_i32 s%d, s%d, 102400" % (sT, sT))
            srd(p, sPC, ptr(D_WS), off_s=sT, off_imm=WS_WOB, nrec=102400)
            p("s_mov_b64 s[%d:%d], s[%d:%d]\ns_mov_b32 s%d, s%d" % (sPW, sPW + 1, sPC, sPC + 1, sPW + 2, sPC + 2))
            p("s_mov_b32 s%d, 0\ns_mov_b32 s%d, %d\ns_mov_b32 s%d, %d\ns_movk_i32 s%d, 0x4000" % (sSt, sIc, SZ, sIw, SZ, sBw))
            p.add(dPos)
        for ks in range(20)[(s - 10) * 20 // 6:(s - 9) * 20 // 6]:
            if ks % 5 == 4:
                for u in range(2):
                    p("buffer_load_dwordx2 %s, v%d, s[%d:%d], s%d offen offset:%d %s" % (rr("a", aOB + 4 * ks + 2 * u, 2), vO, sY, sY + 3, sOff, u * 128, WT))
            else:
                p("buffer_load_dwordx4 %s, v%d, s[%d:%d], s%d offen %s" % (rr("a", aOB + 4 * ks, 4), vL16, sY, sY + 3, sOff, WT))
            p("s_addk_i32 s%d, 0x1000" % sOff)
        run(1)
    st_()
    xsetup(p, sXO, vDw, vC)
    for qq in range(1, 4):
        for k in range(10):
            p("v_cvt_pk_bf16_f32 v%d, v%d, v%d" % (PA + qq * 20 + k, PA + qq * 20 + 2 * k, PA + qq * 20 + 2 * k + 1))
        for k in range(10):
            p("v_min_u32 v%d, -2, v%d" % (PA + qq * 20 + k, PA + qq * 20 + k))
        xfer(p, "store", qq, sXO, vDw, vC, xr(qq))
    BA = 32
    p("v_add_u32 v%d, %d, v%d" % (vWf, 10 * 5120, vL16))
    p("s_waitcnt vmcnt(9)\ns_barrier")
    bfr = lambda k: (k % 15) * 4
    brd = lambda k: "ds_read_b128 %s, v%d offset:%d" % (rr("a", bfr(k), 4), vWf if k >= 50 else vL16, (k % 50) * 1024)
    for k in range(10):
        p(brd(k))
    for k in range(100):
        ks, n = divmod(k, 5)
        a = rr("v", BA + 4 * n, 4)
        if n == 0:
            p.add([I("need", xrd=[("a", bfr(k + 4) + e) for e in range(4)])])
        p("%s %s, %s, %s, %s" % (MF16, a, rr("a", bfr(k), 4), rr("a", aOB + 4 * ks, 4), a if ks else "0"))
        if k + 10 < 100:
            p(brd(k + 10))
        if k == int(os.environ.get("XK", "90")):
            xrecv(p)
    st_()
    srd(p, sOut, ptr(D_OUT), nrec=2048 * 2560)
    p("v_and_b32 v%d, 15, v%d" % (t0, vLane))
    p("v_mul_u32_u24 v%d, 2560, v%d" % (vWf, t0))
    p("v_lshrrev_b32 v%d, 4, v%d" % (t0, vLane))
    p("v_lshl_add_u32 v%d, v%d, 3, v%d" % (vWf, t0, vWf))
    p("s_lshl_b32 s%d, s%d, 2" % (sT, sTT))
    p("s_add_u32 s%d, s%d, s%d" % (sT, sT, sWave))
    p("s_mul_i32 s%d, s%d, %d" % (sT, sT, 16 * 2560))
    p("s_lshr_b32 s%d, s%d, 2" % (sT2, sIdx))
    p("s_mul_i32 s%d, s%d, 160" % (sT2, sT2))
    p("s_add_u32 s%d, s%d, s%d" % (sOff, sT, sT2))
    for n in range(5):
        b = BA + 4 * n
        p("v_cvt_pk_bf16_f32 v%d, v%d, v%d" % (b, b, b + 1))
        p("v_cvt_pk_bf16_f32 v%d, v%d, v%d" % (b + 1, b + 2, b + 3))
        p("buffer_store_dwordx2 %s, v%d, s[%d:%d], s%d offen offset:%d %s" % (rr("v", b, 2), vWf, sOut, sOut + 3, sOff, 1280 + n * 32, os.environ.get("OUTF", "")))
    p("s_lshl_b32 s%d, s%d, 3" % (sT, sMb))
    p("s_lshr_b32 s%d, s%d, 1" % (sT2, sWave))
    p("s_lshl_b32 s%d, s%d, 2" % (sT2, sT2))
    p("s_add_u32 s%d, s%d, s%d" % (sT, sT, sT2))
    p("s_add_u32 s%d, s%d, s%d" % (sT, sT, sKq))
    p("s_mul_i32 s%d, s%d, %d" % (sT, sT, 16 * 2560))
    p("s_lshl_b32 s%d, s%d, 1" % (sT2, sCc))
    p("s_and_b32 s%d, s%d, 1" % (sOff, sWave))
    p("s_add_u32 s%d, s%d, s%d" % (sT2, sT2, sOff))
    p("s_mul_i32 s%d, s%d, 160" % (sT2, sT2))
    p("s_add_u32 s%d, s%d, s%d" % (sOff, sT, sT2))
    if os.environ.get("FINE3"): st_()
    p("s_mov_b32 s%d, 0x40000\nM_xchk:" % sSpin)
    xs = [PA + qq * 20 + k for qq in range(1, 4) for k in range(10)]
    p("v_max_u32 v%d, v%d, v%d" % (t0, xs[0], xs[1]))
    for k in range(2, 30, 2):
        p("v_max3_u32 v%d, v%d, v%d, v%d" % (t0, t0, xs[k], xs[k + 1]))
    p("v_cmp_eq_u32 vcc, -1, v%d\ns_cbranch_vccnz M_xagain\nM_xok:" % t0)
    p("s_mov_b32 s%d, 0xffff0000" % sT)
    tail.extend(["M_xagain:"] + L(xrecv) + ["s_waitcnt vmcnt(0)", "s_sub_u32 s%d, s%d, 1" % (sSpin, sSpin), "s_cbranch_scc0 M_xchk", "s_branch M_xok"])
    for qq in range(1, 4):
        for k in range(10):
            r = PA + qq * 20 + k
            u = 96 + 2 * (k & 3)
            p("v_lshlrev_b32 v%d, 16, v%d" % (u, r))
            p("v_and_b32 v%d, s%d, v%d" % (u + 1, sT, r))
            p(pk_add(PA + 2 * k, PA + 2 * k, u))
    for n in range(5):
        b = pacc(0, n)
        p("v_cvt_pk_bf16_f32 v%d, v%d, v%d" % (b, b, b + 1))
        p("v_cvt_pk_bf16_f32 v%d, v%d, v%d" % (b + 1, b + 2, b + 3))
        p("buffer_store_dwordx2 %s, v%d, s[%d:%d], s%d offen offset:%d %s" % (rr("v", b, 2), vWf, sOut, sOut + 3, sOff, n * 32, os.environ.get("OUTF", "")))
    st_()
    if os.environ.get("TWICE"):
        p("s_waitcnt vmcnt(0) lgkmcnt(0)\ns_barrier\ns_add_u32 s3, s3, 1\ns_cmp_eq_u32 s3, 1\ns_cbranch_scc1 M_again")
    st_.dump(vtmp=t0)
    p("M_exit:\ns_endpgm")
    p.add(tail)
    for par in range(2):
        p("M_slow%d:" % par)
        p("s_nop 15")
        for j in range(4):
            d, f, d2 = vU + 2, vU + 3, vU + 4
            p.add(rowmax(par, j, d, f))
            p("v_max_f32 v%d, 0, v%d" % (d, d))
            p("v_exp_f32 v%d, -v%d" % (f, d))
            if j >= 2:
                p("v_mul_f32 v%d, s%d, v%d" % (d2, sKeep, d))
            else:
                d2 = d
            for k in range(8):
                p("v_sub_f32 v%d, v%d, v%d" % (S(par, j) + k, S(par, j) + k, d))
                for b in (S(par ^ 1, j), CI(j)):
                    p("v_sub_f32 v%d, v%d, v%d" % (b + k, b + k, d2))
            p("v_sub_f32 v%d, v%d, v%d" % (vM + j, vM + j, d2))
            p("v_mul_f32 v%d, v%d, v%d" % (vL + j, vL + j, f))
            for k in range(0, 32, 8):
                for e in range(8):
                    p("v_accvgpr_read_b32 v%d, a%d" % (TMP + e, O(j, 0) + k + e))
                for e in range(8):
                    p("v_mul_f32 v%d, v%d, v%d" % (TMP + e, TMP + e, f))
                for e in range(8):
                    p("v_accvgpr_write_b32 a%d, v%d" % (O(j, 0) + k + e, TMP + e))
        p.add(sm_stream(par, 2) + sum_mf(par))
        p.add([x for x in sm_stream(par ^ 1, 0) if x.startswith("v_exp")][:NE])
        p("s_nop 3")
        p(ret)
    p("M_codeend:")
    if os.environ.get("NOST"):
        p.ins = [I("buffer_load_dword v%d, off, s[%d:%d], 0" % (vA + 3, sD, sD + 3)) if (i.mn == "buffer_store_dwordx4" and ("s[16:19]" in i.text or "s[24:27]" in i.text) and i.ops[0][0] == "v") else i for i in p.ins]
    if os.environ.get("PERTURB"):
        out, n = [], 0
        for k, i in enumerate(p.ins):
            out.append(i)
            if i.text == "s_waitcnt lgkmcnt(0)" and n == 0:
                out += [I("s_memtime s[100:101]"), I("s_waitcnt lgkmcnt(0)"), I("s_mul_i32 s3, s100, 0x9e3779b1"), I("s_lshr_b32 s100, s3, 7"), I("s_and_b32 s3, s3, s100")]
                n = 1
            if i.mn == "s_barrier" or (i.kind == "label" and i.label.startswith("M_hook")):
                live = False
                for j in p.ins[k + 1:k + 60]:
                    if "scc" in j.rd:
                        live = True
                    if "scc" in j.rd or "scc" in j.wr or j.kind in ("call", "ret", "jump", "end"):
                        break
                if not live:
                    n += 1
                    out += [I("s_mul_i32 s3, s3, 0x41c64e6d"), I("s_add_u32 s3, s3, 12345"), I("s_bfe_u32 s100, s3, 0x30010"), I("s_cmp_lg_u32 s100, 0"),
                            I("s_cbranch_scc1 M_pt%d" % n), I("s_sleep %s" % os.environ["PERTURB"]), I("M_pt%d:" % n)]
        p.ins = out
    AL = os.environ.get("ALIGN", "")
    if AL:
        out = []
        for i in p.ins:
            if i.kind == "label" and i.label in ("M_l1", "M_l2", "M_p3", "M_kvA", "M_kvB", "M_b0", "M_b1", "M_q", "M_phi"):
                out.append(I(".p2align " + AL))
            out.append(i)
        p.ins = out
    p.finish()
    return p
```
